```python
import torch

def _softmax(x, axis=-1):
    return torch.softmax(x, dim=axis)
def _gelu(x):
    return torch.nn.functional.gelu(x, approximate="tanh")
def _silu(x):
    return torch.nn.functional.silu(x)
def _sigmoid(x):
    return torch.sigmoid(x)
def _layernorm(x, axis=-1, eps=1e-5):
    m = x.mean(dim=axis, keepdim=True)
    v = x.var(dim=axis, keepdim=True, unbiased=False)
    return (x - m) / torch.sqrt(v + eps)
def _scatter_add(tgt, idx, src, axis=0):
    return tgt.clone().index_add_(axis, idx, src)
def _segment_sum(src, seg, n):
    out = torch.zeros((n,) + src.shape[1:], dtype=src.dtype)
    return out.index_add_(0, seg, src)
def _pad(x, pw):
    flat = tuple(v for pair in reversed(pw) for v in pair)
    return torch.nn.functional.pad(x, flat)

kernel_name = 'interleave_layers__softmax_full_mha__mixer_channel_mlp__prompt'

def setup_inputs():

    _w = (lambda a: (lambda t: t.to(torch.bfloat16) if t.is_floating_point() else t)(torch.as_tensor(a)))
    def _A_setup():
        B, S, D = 1, 2048, 512
        return {
            "x": _w((lambda *s: torch.randn(*s, dtype=torch.bfloat16) * 0.05)(B, S, D)),
            "wqkv": _w((lambda *s: torch.randn(*s, dtype=torch.bfloat16) * 0.05)(D, 3 * D)),
            "wo": _w((lambda *s: torch.randn(*s, dtype=torch.bfloat16) * 0.05)(D, D)),
        }
    _A_in = _A_setup()

    def _B_setup():
        B, S, D, F = 1, 2048, 512, 1376
        return {
            "x": _w((lambda *s: torch.randn(*s, dtype=torch.bfloat16) * 0.05)(B, S, D)),
            "w1": _w((lambda *s: torch.randn(*s, dtype=torch.bfloat16) * 1.6)(D, F) * (D ** -0.5)),
            "b1": _w((lambda *s: torch.randn(*s, dtype=torch.bfloat16) * 0.4)(F)),
            "w2": _w((lambda *s: torch.randn(*s, dtype=torch.bfloat16) * 0.2)(F, D) * (F ** -0.5)),
            "b2": _w((lambda *s: torch.randn(*s, dtype=torch.bfloat16) * 0.2)(D)),
        }
    _B_in = _B_setup()

    return {
        "A_x": _A_in["x"],
        "A_wqkv": _A_in["wqkv"],
        "A_wo": _A_in["wo"],
        "B_x": _B_in["x"],
        "B_w1": _B_in["w1"],
        "B_b1": _B_in["b1"],
        "B_w2": _B_in["w2"],
        "B_b2": _B_in["b2"],
    }

def reference(A_x, A_wqkv, A_wo, B_x, B_w1, B_b1, B_w2, B_b2):
    def _A_ref(x, wqkv, wo):
        B, S, D = x.shape
        H = 32; Dh = D // H
        qkv = (lambda x, *d: x.permute(*d))((x @ wqkv).reshape(B, S, 3, H, Dh), 2, 0, 3, 1, 4)
        q, k, v = qkv[0], qkv[1], qkv[2]
        scale = Dh ** -0.5
        scores = torch.einsum("bhqd,bhkd->bhqk", q, k) * scale
        p = _softmax(scores, axis=-1)
        o = torch.einsum("bhqk,bhkd->bhqd", p, v)
        return (lambda x, *d: x.permute(*d))(o, 0, 2, 1, 3).reshape(B, S, D) @ wo

    def _B_ref(x, w1, b1, w2, b2):
        y = _layernorm(x, axis=-1)
        h = _gelu(torch.einsum("bsd,df->bsf", y, w1) + b1)
        return torch.einsum("bsf,fd->bsd", h, w2) + b2

    x = A_x
    x = x + _A_ref(_layernorm(x, axis=-1), A_wqkv, A_wo)
    x = x + _B_ref(_layernorm(x, axis=-1), B_w1, B_b1, B_w2, B_b2)
    x = x + _A_ref(_layernorm(x, axis=-1), A_wqkv, A_wo)
    x = x + _B_ref(_layernorm(x, axis=-1), B_w1, B_b1, B_w2, B_b2)
    return x
```

```python
import struct
import sys

NAME = "interleave_layers__softmax_full_mha__mixer_channel_mlp__prompt"
PROFILE = "--prof" in sys.argv
FORCE_SLOW = "--slow" in sys.argv
OUT = [a for a in sys.argv[1:] if not a.startswith("--")]
OUT = OUT[0] if OUT else f"cdna_kernels/{NAME}.s"


def f32(x):
    return "0x%08x" % struct.unpack("<I", struct.pack("<f", x))[0]


WS_SIZE = 0x10000000
FLG = 0x100000
FLG_L = 6144 * 64
FW = 2 * 6144
FX, FQ, FA, FO, FH = 0, 1024, 2048, 4096, 5120
WQF, WOF, W1F, W2F = 0x200000, 0x380000, 0x400000, 0x580000
CSQ, CS1, CSD = 0x700000, 0x720000, 0x740000
LB0, LBS = 0x800000, 0x1400000
XF, ST, QF, KVF, OF, X1F, ST1, HF = 0, 0x200000, 0x300000, 0x500000, 0x900000, 0xB00000, 0xD00000, 0xE00000
HSTR = 96 * 1024
TSB = 0x4000000
RED = 140 * 1024
CONST = 156 * 1024
CSQ_L, CS1_L, B1_L, STAT_L = CONST, CONST + 512, CONST + 1024, CONST + 1536
LDS_BYTES = 160 * 1024
sWS, sTMP = "s[4:7]", "s[8:11]"
sW, sNONCE, sL, sLB, sFB = "s34", "s35", "s36", "s37", "s38"
sXCD, sJ, sTBW, sC, sTBN, sNB, sKH, sNT, sHEAD, sQB = ("s%d" % i for i in range(39, 49))
sHW = "s49"
T = ["s%d" % i for i in range(50, 60)]
sCNT, sIT = "s60", "s61"
sMV = "s[62:63]"
sM0, sM1 = "s[64:65]", "s[66:67]"
sREDO = "s68"
STAMP0 = 72
vLANE, vL16, vFV, vPO, vT5, vPD = 0, 1, 2, 4, 5, 6
vRES = 8
vA, vACC, vWB, vSTS = 16, 144, 192, 228
vW0, vW1, vMU, vR, vRQ, vCA, vL4, vK16, vVOF, vH16 = 244, 245, 246, 248, 250, 251, 252, 253, 254, 255
POLL_LIMIT = 1 << 16

L = []
uid = [0]
nstamp = [0]


def e(s):
    L.append("    " + s)


def lab(n):
    L.append(n + ":")


def cm(s):
    L.append("    ; " + s)


def v(i, n=1):
    return "v%d" % i if n == 1 else "v[%d:%d]" % (i, i + n - 1)


def newlab(p):
    uid[0] += 1
    return "L_%s_%d" % (p, uid[0])


def stamp(fixed=None):
    if not PROFILE:
        return
    e("s_memtime s[70:71]")
    e("s_waitcnt lgkmcnt(0)")
    if fixed:
        e("s_mov_b32 %s, s70" % fixed)
        return
    e("s_mul_i32 s69, %s, 15" % sL)
    e("s_add_u32 m0, s69, %d" % nstamp[0])
    e("s_nop 1")
    e("s_movreld_b32 s%d, s70" % STAMP0)
    nstamp[0] += 1
    assert nstamp[0] <= 15


def srd(dst, lo, size):
    b = int(dst[2:dst.index(":")])
    e("s_mov_b32 s%d, s%d" % (b, lo))
    e("s_and_b32 s%d, s%d, 0xffff" % (b + 1, lo + 1))
    e("s_mov_b32 s%d, %s" % (b + 2, size if isinstance(size, str) else hex(size)))
    e("s_mov_b32 s%d, 0x20000" % (b + 3))


def poll(soff):
    a, b = newlab("poll"), newlab("pok")
    e("s_mov_b32 %s, %d" % (sCNT, POLL_LIMIT))
    lab(a)
    e("buffer_load_dwordx2 %s, %s, %s, %s offen sc1" % (v(vPD, 2), v(vPO), sWS, soff))
    e("s_waitcnt vmcnt(0)")
    e("v_cmp_eq_u64 vcc, %s, %s" % (v(vPD, 2), v(vFV, 2)))
    e("s_nop 1")
    e("s_cmp_eq_u64 vcc, -1")
    e("s_cbranch_scc1 %s" % b)
    e("s_sub_u32 %s, %s, 1" % (sCNT, sCNT))
    e("s_cbranch_scc0 %s" % a)
    e("s_endpgm")
    lab(b)


def flag(soff, n=0):
    e("s_waitcnt vmcnt(%d)" % n)
    e("s_mov_b64 exec, 1")
    e("buffer_store_dwordx2 %s, off, %s, %s sc1" % (v(vFV, 2), sWS, soff))
    e("s_mov_b64 exec, -1")


def slot(dst, base, terms):
    e("s_add_u32 %s, %s, %d" % (dst, sFB, base * 64))
    for r, m in terms:
        e("s_mul_i32 %s, %s, %d" % (T[9], r, m * 64))
        e("s_add_u32 %s, %s, %s" % (dst, dst, T[9]))


def addr(dst, base_reg, const, terms):
    if base_reg is None:
        e("s_mov_b32 %s, 0x%x" % (dst, const))
    else:
        e("s_add_u32 %s, %s, 0x%x" % (dst, base_reg, const))
    for r, m in terms:
        e("s_mul_i32 %s, %s, %d" % (T[9], r, m))
        e("s_add_u32 %s, %s, %s" % (dst, dst, T[9]))


def dma(sg, sl, n):
    for g in range(0, n, 4):
        if g:
            e("s_add_u32 %s, %s, 4096" % (sg, sg))
            e("s_add_u32 %s, %s, 4096" % (sl, sl))
        e("s_mov_b32 m0, %s" % sl)
        e("s_nop 0")
        for i in range(min(4, n - g)):
            e("buffer_load_dwordx4 %s, %s, %s offen offset:%d sc1 lds" % (v(vL16), sWS, sg, i * 1024))


def load_frags(sg, first, n, reg_of):
    for j in range(first, first + n):
        if j % 4 == 0 or j == first:
            e("s_add_u32 %s, %s, %d" % (T[8], sg, (j // 4) * 4096))
        e("buffer_load_dwordx4 %s, %s, %s, %s offen offset:%d sc1" %
          (v(reg_of(j), 4), v(vL16), sWS, T[8], (j % 4) * 1024))


def mfma(d, a, b, c):
    e("v_mfma_f32_32x32x16_bf16 %s, %s, %s, %s" % (v(d, 16), v(a, 4), v(b, 4), c if isinstance(c, str) else v(c, 16)))


def half_sum(a, b):
    e("s_nop 1")
    e("v_permlane32_swap_b32 %s, %s" % (v(a), v(b)))
    e("s_nop 1")
    e("v_add_f32 %s, %s, %s" % (v(a), v(a), v(b)))


def tile_stats(y, t):
    e("v_pk_add_f32 %s, %s, %s" % (v(t, 2), v(y, 2), v(y + 2, 2)))
    e("v_pk_mul_f32 %s, %s, %s" % (v(t + 2, 2), v(y, 2), v(y, 2)))
    for p in range(1, 8):
        if p > 1:
            e("v_pk_add_f32 %s, %s, %s" % (v(t, 2), v(t, 2), v(y + 2 * p, 2)))
        e("v_pk_fma_f32 %s, %s, %s, %s" % (v(t + 2, 2), v(y + 2 * p, 2), v(y + 2 * p, 2), v(t + 2, 2)))
    e("v_add_f32 %s, %s, %s" % (v(t), v(t), v(t + 1)))
    e("v_add_f32 %s, %s, %s" % (v(t + 2), v(t + 2), v(t + 3)))
    half_sum(t, t + 2)


def unpack(dst, src, n):
    for i in range(n):
        e("v_lshlrev_b32 %s, 16, %s" % (v(dst + 2 * i), v(src + i)))
        e("v_and_b32 %s, 0xffff0000, %s" % (v(dst + 2 * i + 1), v(src + i)))


def publish_x(lb, xoff, stoff, fbase_add, fbase, ystat):
    addr(T[0], lb, xoff, [(sTBN, 32768), (sNT, 2048)])
    addr(T[1], lb, stoff, [(sTBN, 4096), (sNT, 256)])
    e("buffer_store_dwordx4 %s, %s, %s, %s offen sc1" % (v(vRES, 4), v(vL16), sWS, T[0]))
    e("buffer_store_dwordx4 %s, %s, %s, %s offen offset:1024 sc1" % (v(vRES + 4, 4), v(vL16), sWS, T[0]))
    e("buffer_store_dword %s, %s, %s, %s offen sc1" % (v(ystat), v(vL4), sWS, T[1]))
    slot(T[2], fbase, [(sTBN, 16), (sNT, 1)])
    if fbase_add:
        e("s_add_u32 %s, %s, %d" % (T[2], T[2], fbase_add))
    flag(T[2])


def prologue():
    e("s_cmp_ge_u32 s2, 256")
    e("s_cbranch_scc1 L_end")
    e("s_load_dwordx16 s[12:27], s[0:1], 0")
    e("s_load_dwordx4 s[28:31], s[0:1], 64")
    e("s_load_dwordx2 s[32:33], s[0:1], 80")
    e("v_lshrrev_b32 v1, 6, v0")
    e("v_and_b32 v0, 63, v0")
    e("v_readfirstlane_b32 %s, v1" % sW)
    e("v_lshlrev_b32 %s, 4, v0" % v(vL16))
    e("v_lshlrev_b32 %s, 2, v0" % v(vL4))
    e("v_lshrrev_b32 %s, 5, v0" % v(vT5))
    e("v_lshlrev_b32 %s, 4, %s" % (v(vH16), v(vT5)))
    cm("K fragments are stored with token bits 2 and 3 swapped (matches the sparse-MFMA key order)")
    e("v_and_b32 %s, 0x33, v0" % v(vK16))
    e("v_and_b32 %s, 4, v0" % v(vPO))
    e("v_lshl_or_b32 %s, %s, 1, %s" % (v(vK16), v(vPO), v(vK16)))
    e("v_and_b32 %s, 8, v0" % v(vPO))
    e("v_lshrrev_b32 %s, 1, %s" % (v(vPO), v(vPO)))
    e("v_or_b32 %s, %s, %s" % (v(vK16), v(vK16), v(vPO)))
    e("v_lshlrev_b32 %s, 4, %s" % (v(vK16), v(vK16)))
    cm("V store offset: head parity*128K + half*512 + d*16")
    e("v_and_b32 %s, 15, v0" % v(vVOF))
    e("v_lshlrev_b32 %s, 4, %s" % (v(vVOF), v(vVOF)))
    e("v_lshl_or_b32 %s, %s, 9, %s" % (v(vVOF), v(vT5), v(vVOF)))
    e("v_bfe_u32 %s, v0, 4, 1" % v(vPO))
    e("v_lshl_or_b32 %s, %s, 17, %s" % (v(vVOF), v(vPO), v(vVOF)))
    e("s_and_b32 %s, s2, 7" % sXCD)
    e("s_lshr_b32 %s, s2, 3" % sJ)
    e("s_and_b32 %s, %s, 3" % (sHW, sW))
    e("s_and_b32 %s, %s, 15" % (sC, sJ))
    e("s_lshr_b32 %s, %s, 4" % (T[0], sJ))
    e("s_lshl_b32 %s, %s, 3" % (T[1], sXCD))
    e("s_lshl_b32 %s, %s, 2" % (T[0], T[0]))
    e("s_add_u32 %s, %s, %s" % (sTBW, T[0], T[1]))
    e("s_add_u32 %s, %s, %s" % (sTBW, sTBW, sHW))
    e("s_and_b32 %s, %s, 7" % (sNB, sJ))
    e("s_lshr_b32 %s, %s, 3" % (T[0], sJ))
    e("s_lshl_b32 %s, %s, 2" % (sHEAD, sXCD))
    e("s_add_u32 %s, %s, %s" % (sHEAD, sHEAD, T[0]))
    e("s_mov_b32 %s, %s" % (sQB, sNB))
    e("s_lshl_b32 %s, %s, 1" % (T[0], T[0]))
    e("s_add_u32 %s, %s, %s" % (sTBN, T[0], T[1]))
    e("s_and_b32 %s, %s, 1" % (T[0], sW))
    e("s_add_u32 %s, %s, %s" % (sTBN, sTBN, T[0]))
    e("s_lshr_b32 %s, %s, 1" % (sKH, sHW))
    e("s_lshl_b32 %s, %s, 1" % (sNT, sNB))
    e("s_add_u32 %s, %s, %s" % (sNT, sNT, sKH))
    e("s_mov_b32 s62, 0xffff")
    e("s_mov_b32 s63, 0xffff")
    e("s_mov_b32 %s, 0" % sL)
    e("s_mov_b32 %s, 0x%x" % (sLB, LB0))
    e("s_mov_b32 %s, 0x%x" % (sFB, FLG))
    e("s_waitcnt lgkmcnt(0)")
    srd(sWS, 32, WS_SIZE)
    srd(sTMP, 12, 2048 * 1024)
    cm("hand-off tag: ws[0] only tells this launch's flags from an earlier launch's")
    e("s_load_dword %s, s[32:33], 0" % sNONCE)
    if PROFILE:
        e("s_memrealtime s[70:71]")
        e("s_waitcnt lgkmcnt(0)")
        e("s_mov_b32 s3, s70")
        stamp("s18")


def p0():
    cm("================ P0: x tile -> residual registers + fragments; weights -> fragment order")
    skipx, skipu, xdone = newlab("skipx"), newlab("skipu"), newlab("xdone")
    e("s_cmp_ge_u32 %s, 4" % sW)
    e("s_cbranch_scc1 %s" % skipx)
    e("v_and_b32 %s, 31, v0" % v(vPO))
    e("v_lshlrev_b32 %s, 10, %s" % (v(vPO), v(vPO)))
    e("v_lshl_or_b32 %s, %s, 3, %s" % (v(vPO), v(vT5), v(vPO)))
    addr(T[0], None, 0, [(sTBN, 32768), (sNT, 64)])
    for i in range(4):
        e("buffer_load_dwordx2 %s, %s, %s, %s offen offset:%d" % (v(vRES + 2 * i, 2), v(vPO), sTMP, T[0], 16 * i))
    lab(skipx)
    cm("unit index: waves 4..7 -> (w-4)*256+wg, wave 0 -> 1024+wg")
    U, ROW, KC, NC, WF, KS, CS = T[0], T[1], T[2], T[3], T[4], T[5], T[6]
    e("s_sub_u32 %s, %s, 4" % (U, sW))
    e("s_lshl_b32 %s, %s, 8" % (U, U))
    e("s_cmp_eq_u32 %s, 0" % sW)
    e("s_cselect_b32 %s, 1024, %s" % (U, U))
    e("s_add_u32 %s, %s, s2" % (U, U))
    e("s_mov_b32 %s, %s" % (sREDO, U))
    e("s_cmp_ge_u32 %s, 1208" % U)
    e("s_cbranch_scc1 %s" % skipu)
    sel = newlab("sel")
    cases = [(384, 0, 14, 3072, 512 * 3072, WQF, 32, CSQ), (512, 384, 16, 1024, 512 * 1024, WOF, 32, CSD),
             (864, 512, 20, 2752, 512 * 2752, W1F, 32, CS1), (None, 864, 24, 1024, 1376 * 1024, W2F, 86, CSD)]
    for hi, lo, ptr, row, size, wf, ks, cs in cases:
        nxt = newlab("case")
        if hi:
            e("s_cmp_ge_u32 %s, %d" % (U, hi))
            e("s_cbranch_scc1 %s" % nxt)
        srd(sTMP, ptr, size)
        e("s_sub_u32 %s, %s, %d" % (T[7], U, lo))
        if hi:
            e("s_and_b32 %s, %s, 15" % (KC, T[7]))
            e("s_lshr_b32 %s, %s, 4" % (NC, T[7]))
        else:
            e("s_and_b32 %s, %s, 7" % (NC, T[7]))
            e("s_lshr_b32 %s, %s, 3" % (KC, T[7]))
        e("s_mov_b32 %s, %d" % (ROW, row))
        e("s_mov_b32 %s, 0x%x" % (WF, wf))
        e("s_mov_b32 %s, %d" % (KS, ks * 1024))
        e("s_mov_b32 %s, 0x%x" % (CS, cs))
        if hi:
            e("s_branch %s" % sel)
            lab(nxt)
    lab(sel)
    e("s_lshl_b32 %s, %s, 2" % (T[7], ROW))
    e("v_mul_lo_u32 %s, %s, %s" % (v(vPO), v(vT5), T[7]))
    e("v_and_b32 %s, 31, v0" % v(vPD))
    e("v_lshl_add_u32 %s, %s, 1, %s" % (v(vPO), v(vPD), v(vPO)))
    e("s_mul_i32 %s, %s, %s" % (T[7], KC, ROW))
    e("s_lshl_b32 %s, %s, 5" % (T[7], T[7]))
    e("s_lshl_b32 %s, %s, 7" % (T[8], NC))
    e("s_add_u32 %s, %s, %s" % (T[7], T[7], T[8]))
    e("s_mul_i32 %s, %s, 5" % (T[8], ROW))
    RAW, PK = 16, 48
    for ksl in range(2):
        for el in range(8):
            for ntl in range(2):
                e("buffer_load_ushort %s, %s, %s, %s offen offset:%d" %
                  (v(RAW + ntl * 16 + ksl * 8 + el), v(vPO), sTMP, T[7], ntl * 64))
            e("s_add_u32 %s, %s, %s" % (T[7], T[7], T[8] if el in (3, 7) else ROW))
    cm("destination offsets")
    e("s_lshl_b32 %s, %s, 1" % (T[7], NC))
    e("s_mul_i32 %s, %s, %s" % (T[7], T[7], KS))
    e("s_add_u32 %s, %s, %s" % (WF, WF, T[7]))
    e("s_lshl_b32 %s, %s, 11" % (T[7], KC))
    e("s_add_u32 %s, %s, %s" % (WF, WF, T[7]))
    e("s_add_u32 %s, %s, %s" % (KS, KS, WF))
    e("s_mul_i32 %s, %s, 6144" % (T[7], KC))
    e("s_add_u32 %s, %s, %s" % (CS, CS, T[7]))
    e("s_lshl_b32 %s, %s, 8" % (T[7], NC))
    e("s_add_u32 %s, %s, %s" % (CS, CS, T[7]))
    lab(skipu)
    e("s_waitcnt vmcnt(0) lgkmcnt(0)")
    e("s_add_u32 %s, %s, 16" % (sNONCE, sNONCE))
    e("v_mov_b32 %s, %s" % (v(vFV), sNONCE))
    e("v_not_b32 %s, %s" % (v(vFV + 1), v(vFV)))
    e("s_cmp_ge_u32 %s, 4" % sW)
    e("s_cbranch_scc1 %s" % xdone)
    unpack(66, vRES, 8)
    tile_stats(66, 84)
    publish_x(sLB, XF, ST, 0, FX, 84)
    lab(xdone)
    udone = newlab("udone")
    e("s_cmp_ge_u32 %s, 1208" % sREDO)
    e("s_cbranch_scc1 %s" % udone)
    e("v_mov_b32 v64, 0")
    e("v_mov_b32 v65, 0")
    e("s_mov_b32 %s, 0x3f803f80" % T[7])
    for i in range(16):
        e("v_lshl_or_b32 %s, %s, 16, %s" % (v(PK + i), v(RAW + 2 * i + 1), v(RAW + 2 * i)))
    for i in range(8):
        e("v_dot2_f32_bf16 v64, %s, %s, v64" % (v(PK + i), T[7]))
        e("v_dot2_f32_bf16 v65, %s, %s, v65" % (v(PK + 8 + i), T[7]))
    e("buffer_store_dwordx4 %s, %s, %s, %s offen sc1" % (v(PK, 4), v(vL16), sWS, WF))
    e("buffer_store_dwordx4 %s, %s, %s, %s offen offset:1024 sc1" % (v(PK + 4, 4), v(vL16), sWS, WF))
    e("buffer_store_dwordx4 %s, %s, %s, %s offen sc1" % (v(PK + 8, 4), v(vL16), sWS, KS))
    e("buffer_store_dwordx4 %s, %s, %s, %s offen offset:1024 sc1" % (v(PK + 12, 4), v(vL16), sWS, KS))
    e("s_nop 2")
    half_sum(64, 65)
    e("buffer_store_dword v64, %s, %s, %s offen sc1" % (v(vL4), sWS, CS))
    e("s_lshl_b32 %s, %s, 6" % (T[7], sREDO))
    e("s_add_u32 %s, %s, 0x%x" % (T[7], T[7], FLG + FW * 64))
    flag(T[7])
    lab(udone)
    stamp("s19")


def colsum_to_lds(csbase, ntile_terms, dst_l):
    e("v_and_b32 %s, 31, v0" % v(vPO))
    e("v_lshlrev_b32 %s, 2, %s" % (v(vPO), v(vPO)))
    e("v_add_u32 v40, %d, %s" % (dst_l, v(vPO)))
    e("s_lshl_b32 %s, %s, 7" % (T[0], sHW))
    e("v_add_u32 v40, %s, v40" % T[0])
    e("s_mov_b32 %s, %d" % (T[0], 8 * 6144))
    e("v_lshrrev_b32 %s, 5, v0" % v(vT5))
    e("v_mul_lo_u32 v41, %s, %s" % (v(vT5), T[0]))
    e("v_add_u32 %s, %s, v41" % (v(vPO), v(vPO)))
    addr(T[0], None, csbase, ntile_terms)
    for k in range(8):
        e("buffer_load_dword %s, %s, %s, %s offen sc1" % (v(16 + k), v(vPO), sWS, T[0]))
        if k < 7:
            e("s_add_u32 %s, %s, 6144" % (T[0], T[0]))
    e("s_waitcnt vmcnt(0)")
    for k in range(1, 8):
        e("v_add_f32 v16, v16, %s" % v(16 + k))
    e("v_mov_b32 v17, v16")
    half_sum(16, 17)
    e("ds_write_b32 v40, v16")


def dma_wide(terms3):
    for i, (base, terms) in enumerate(terms3):
        addr(T[0], None, base, terms + [(sHW, 8192)])
        addr(T[1], None, i * 32768, [(sHW, 8192)])
        dma(T[0], T[1], 8)


def dma_wq():
    dma_wide([(WQF + i * 16 * 32768, [(sC, 32768)]) for i in range(3)])


def wide_compute_front(fbase, xoff, stoff, swap_last):
    e("v_and_b32 %s, 15, v0" % v(vPO))
    e("v_lshlrev_b32 %s, 6, %s" % (v(vPO), v(vPO)))
    slot(T[0], fbase, [(sTBW, 16)])
    addr(T[1], sLB, xoff, [(sTBW, 32768)])
    addr(T[2], sLB, stoff, [(sTBW, 4096)])
    e("v_mov_b32 %s, %s" % (v(vW0), v(vL16)))
    e("v_add_u32 %s, 0x10000, %s" % (v(vW1), v(vL16)))
    poll(T[0])
    stamp()
    load_frags(T[1], 0, 32, lambda j: vA + 4 * j)
    for k in range(16):
        e("buffer_load_dword %s, %s, %s, %s offen offset:%d sc1" % (v(vSTS + k), v(vL4), sWS, T[2], 256 * k))
    e("s_barrier")

    def rd(ks, i):
        base, off = (vW0, i * 32768 + ks * 1024) if i < 2 else (vW1, ks * 1024)
        e("ds_read_b128 %s, %s offset:%d" % (v(vWB + (ks % 3) * 12 + 4 * i, 4), v(base), off))
    for ks in range(2):
        for i in range(3):
            rd(ks, i)
    for ks in range(32):
        e("s_waitcnt vmcnt(%d) lgkmcnt(%d)" % (31 - ks + 16, 3 if ks < 31 else 0))
        for i in range(3):
            w, a = vWB + (ks % 3) * 12 + 4 * i, vA + 4 * ks
            c = "0" if ks == 0 else vACC + 16 * i
            if swap_last and i == 2:
                mfma(vACC + 16 * i, a, w, c)
            else:
                mfma(vACC + 16 * i, w, a, c)
            if ks + 2 < 32:
                rd(ks + 2, i)
    e("s_barrier")
    stamp()
    cm("row statistics -> mean / rstd")
    e("s_waitcnt vmcnt(0)")
    for k in range(1, 16):
        e("v_add_f32 %s, %s, %s" % (v(vSTS), v(vSTS), v(vSTS + k)))
    e("v_mov_b32 %s, %s" % (v(vSTS + 1), v(vSTS)))
    e("s_nop 1")
    e("v_permlane32_swap_b32 %s, %s" % (v(vSTS), v(vSTS + 1)))
    e("s_nop 1")
    e("v_mul_f32 %s, %s, %s" % (v(vMU), f32(1.0 / 512), v(vSTS)))
    e("v_mul_f32 %s, %s, %s" % (v(vSTS + 1), f32(1.0 / 512), v(vSTS + 1)))
    e("v_fma_f32 %s, -%s, %s, %s" % (v(vSTS + 1), v(vMU), v(vMU), v(vSTS + 1)))
    e("v_max_f32 %s, 0, %s" % (v(vSTS + 1), v(vSTS + 1)))
    e("v_add_f32 %s, %s, %s" % (v(vSTS + 2), f32(1e-5), v(vSTS + 1)))
    e("v_rsq_f32 %s, %s" % (v(vR), v(vSTS + 2)))
    e("v_add_u32 %s, %d, %s" % (v(vCA), CONST, v(vH16)))


def center(acc, cs, p):
    e("v_pk_fma_f32 %s, %s, %s, %s op_sel_hi:[0,1,1] neg_lo:[1,0,0] neg_hi:[1,0,0]" %
      (v(acc + 2 * p, 2), v(vMU, 2), v(cs + 2 * p, 2), v(acc + 2 * p, 2)))


def qkv():
    cm("================ QKV projection")
    hl, hl1, done = newlab("qkv_h"), newlab("qkv_h1"), newlab("qkv_done")
    e("s_cmp_ge_u32 %s, 4" % sW)
    e("s_cbranch_scc1 %s" % hl)
    wide_compute_front(FX, XF, ST, True)
    e("v_and_b32 v48, 31, v0")
    e("v_lshlrev_b32 v48, 2, v48")
    addr(T[0], None, STAT_L, [(sHW, 256)])
    e("v_add_u32 v49, %s, v48" % T[0])
    e("v_add_u32 v50, %s, %s" % (T[0], v(vH16)))
    e("v_add_u32 v48, %d, v48" % CSQ_L)
    e("ds_write_b32 v49, %s" % v(vMU))
    e("ds_write_b32 v49, %s offset:128" % v(vR))
    for t in range(2):
        for i in range(4):
            e("ds_read_b128 %s, %s offset:%d" % (v(16 + 16 * t + 4 * i, 4), v(vCA), t * 128 + 32 * i))
    e("ds_read_b32 v52, v48 offset:256")
    for i in range(4):
        e("ds_read_b128 %s, v50 offset:%d" % (v(64 + 4 * i, 4), 32 * i))
    for i in range(4):
        e("ds_read_b128 %s, v50 offset:%d" % (v(80 + 4 * i, 4), 128 + 32 * i))
    e("v_mul_f32 %s, %s, %s" % (v(vRQ), f32(0.25 * 1.4426950408889634), v(vR)))
    addr(T[0], sLB, QF, [(sC, 2 * 65536), (sTBW, 1024)])
    e("s_add_u32 %s, %s, 0x10000" % (T[1], T[0]))
    addr(T[2], sLB, KVF, [(sC, 2 * 131072), (sTBW, 2048)])
    e("s_add_u32 %s, %s, 0x20000" % (T[3], T[2]))
    P = 96
    for t in range(2):
        acc = vACC + 16 * t
        e("s_waitcnt lgkmcnt(%d)" % (13 if t == 0 else 9))
        for p in range(8):
            center(acc, 16 + 16 * t, p)
        for p in range(8):
            e("v_pk_mul_f32 %s, %s, %s op_sel_hi:[1,0]" % (v(acc + 2 * p, 2), v(acc + 2 * p, 2), v(vRQ if t == 0 else vR, 2)))
        for p in range(8):
            e("v_cvt_pk_bf16_f32 %s, %s, %s" % (v(P + 8 * t + p), v(acc + 2 * p), v(acc + 2 * p + 1)))
        for hh in range(2):
            e("buffer_store_dwordx4 %s, %s, %s, %s offen sc1" %
              (v(P + 8 * t + 4 * hh, 4), v(vL16 if t == 0 else vK16), sWS, T[2 * t + hh]))
    acc = vACC + 32
    e("s_waitcnt lgkmcnt(0)")
    for p in range(8):
        e("v_pk_fma_f32 %s, %s, v[52:53], %s op_sel_hi:[1,0,1] neg_lo:[1,0,0] neg_hi:[1,0,0]" %
          (v(acc + 2 * p, 2), v(64 + 2 * p, 2), v(acc + 2 * p, 2)))
    for p in range(8):
        e("v_pk_mul_f32 %s, %s, %s" % (v(acc + 2 * p, 2), v(acc + 2 * p, 2), v(80 + 2 * p, 2)))
    for p in range(8):
        e("v_cvt_pk_bf16_f32 %s, %s, %s" % (v(P + 16 + p), v(acc + 2 * p), v(acc + 2 * p + 1)))
    for t in range(2):
        e("buffer_store_dwordx4 %s, %s, %s, %s offen offset:%d sc1" %
          (v(P + 16 + 4 * t, 4), v(vVOF), sWS, T[2], 1024 + 256 * t))
    slot(T[0], FQ, [(sC, 64), (sTBW, 1)])
    flag(T[0])
    e("s_branch %s" % done)
    lab(hl)
    e("s_cmp_lg_u32 %s, 0" % sL)
    e("s_cbranch_scc1 %s" % hl1)
    e("v_lshrrev_b32 %s, 4, v0" % v(vPO))
    e("v_min_u32 %s, 2, %s" % (v(vPO), v(vPO)))
    e("v_lshlrev_b32 %s, 7, %s" % (v(vPO), v(vPO)))
    e("v_and_or_b32 %s, v0, 15, %s" % (v(vPO), v(vPO)))
    e("v_lshlrev_b32 %s, 6, %s" % (v(vPO), v(vPO)))
    e("s_lshr_b32 %s, %s, 1" % (T[1], sC))
    addr(T[0], None, FLG + FW * 64, [(T[1], 1024)])
    poll(T[0])
    dma_wq()
    colsum_to_lds(CSQ, [(sHW, 16 * 128), (sC, 128)], CSQ_L)
    lab(hl1)
    e("s_waitcnt vmcnt(0) lgkmcnt(0)")
    e("s_barrier")
    hl2 = newlab("qkv_h2")
    e("s_cmp_lg_u32 %s, 0" % sL)
    e("s_cbranch_scc1 %s" % hl2)
    cm("remaining weight-layout flags: lanes 0-15 Wo, 16-47 W1; then W2")
    e("s_mul_i32 %s, %s, 3" % (T[0], sC))
    e("s_lshr_b32 %s, %s, 1" % (T[0], T[0]))
    e("v_lshrrev_b32 %s, 4, v0" % v(vPO))
    e("v_min_u32 %s, 2, %s" % (v(vPO), v(vPO)))
    e("v_add_u32 v16, %s, %s" % (T[0], v(vPO)))
    e("v_subrev_u32 v16, 1, v16")
    e("v_min_u32 v16, 21, v16")
    e("v_add_u32 v16, 32, v16")
    e("s_add_u32 %s, %s, 24" % (T[0], sNB))
    e("v_mov_b32 v17, %s" % T[0])
    e("v_cmp_eq_u32 vcc, 0, %s" % v(vPO))
    e("s_nop 1")
    e("v_cndmask_b32 v16, v16, v17, vcc")
    e("v_lshlrev_b32 v16, 4, v16")
    e("v_and_or_b32 %s, v0, 15, v16" % v(vPO))
    e("v_lshlrev_b32 %s, 6, %s" % (v(vPO), v(vPO)))
    e("s_mov_b32 %s, 0x%x" % (T[0], FLG + FW * 64))
    poll(T[0])
    e("v_min_u32 %s, 42, v0" % v(vPO))
    e("v_lshlrev_b32 %s, 9, %s" % (v(vPO), v(vPO)))
    addr(T[0], None, FLG + (FW + 864) * 64, [(sNB, 64)])
    poll(T[0])
    lab(hl2)
    e("s_barrier")
    lab(done)
    stamp()


def attention():
    cm("================ attention: S^T = K Q^T, P = exp2(S^T), O^T += V^T P via sparse MFMA")
    S, O, Q, KB, VB, IDX, AD, CN = (16, 32), 48, 64, (68, 72), (76, 84), 92, 93, 96
    e("v_and_b32 %s, 7, v0" % v(vPO))
    e("v_lshlrev_b32 %s, 9, %s" % (v(vPO), v(vPO)))
    e("s_lshr_b32 %s, %s, 1" % (T[1], sHEAD))
    slot(T[0], FQ, [(T[1], 64), (sW, 1)])
    addr(T[1], sLB, QF, [(sHEAD, 65536), (sQB, 8192), (sW, 1024)])
    addr(T[2], sLB, KVF, [(sHEAD, 131072), (sW, 2048)])
    e("s_lshl_b32 %s, %s, 11" % (T[3], sW))
    for i in range(16):
        e("v_mov_b32 %s, 0" % v(O + i))
        e("v_mov_b32 %s, 0x3f803f80" % v(VB[0] + i))
    e("v_mov_b32 %s, 0xdddddddd" % v(IDX))
    e("v_mov_b32 %s, %s" % (v(AD), v(vL16)))
    poll(T[0])
    stamp()
    e("buffer_load_dwordx4 %s, %s, %s, %s offen sc1" % (v(Q, 4), v(vL16), sWS, T[1]))
    for c in range(8):
        e("s_mov_b32 m0, %s" % T[3])
        e("s_add_u32 %s, %s, 16384" % (T[3], T[3]))
        e("buffer_load_dwordx4 %s, %s, %s offen sc1 lds" % (v(vL16), sWS, T[2]))
        e("buffer_load_dwordx4 %s, %s, %s offen offset:1024 sc1 lds" % (v(vL16), sWS, T[2]))
        e("s_add_u32 %s, %s, 16384" % (T[2], T[2]))
    e("s_waitcnt vmcnt(14)")
    e("s_barrier")

    def rdk(t):
        e("ds_read_b128 %s, %s offset:%d" % (v(KB[t & 1], 4), v(AD), t * 2048))

    def rdv(t):
        e("s_mov_b64 exec, %s" % sMV)
        e("ds_read_b128 %s, %s offset:%d" % (v(VB[t & 1], 4), v(AD), t * 2048 + 1024))
        e("ds_read_b128 %s, %s offset:%d" % (v(VB[t & 1] + 4, 4), v(AD), t * 2048 + 1280))
        e("s_mov_b64 exec, -1")

    def smf(vb, p):
        e("v_smfmac_f32_32x32x32_bf16 %s, %s, %s, %s" % (v(O, 16), v(vb, 4), v(p, 8), v(IDX)))
    rdk(0)
    rdk(1)
    rdv(0)
    e("s_waitcnt lgkmcnt(3)")
    mfma(S[0], KB[0], Q, "0")
    e("s_mov_b32 %s, 0" % sIT)
    e("s_nop 7")
    loop, nobar = newlab("att"), newlab("nobar")
    L.append(".p2align 6")
    lab(loop)
    for t in range(8):
        cur, nxt = t & 1, (t + 1) & 1
        if t == 6:
            e("s_cmp_lg_u32 %s, 0" % sIT)
            e("s_cbranch_scc1 %s" % nobar)
            e("s_waitcnt vmcnt(0)")
            e("s_barrier")
            lab(nobar)
        e("s_waitcnt lgkmcnt(2)")
        mfma(S[nxt], KB[nxt], Q, "0")
        rdk(t + 2)
        for i in range(10):
            e("v_exp_f32 %s, %s" % (v(S[cur] + i), v(S[cur] + i)))
        e("s_waitcnt lgkmcnt(1)")
        smf(VB[cur], S[cur])
        for i in range(10, 16):
            e("v_exp_f32 %s, %s" % (v(S[cur] + i), v(S[cur] + i)))
        rdv(t + 1)
        smf(VB[cur] + 4, S[cur] + 8)
    e("v_add_u32 %s, 16384, %s" % (v(AD), v(AD)))
    e("s_add_u32 %s, %s, 1" % (sIT, sIT))
    e("s_cmp_lt_u32 %s, 8" % sIT)
    e("s_cbranch_scc1 %s" % loop)
    e("s_waitcnt lgkmcnt(0)")
    e("s_nop 11")
    stamp()
    cm("Softmax guard. The loop above used 0 as a stand-in for the row max. That is exact while the row sum")
    cm("stays in [2^-64, 2^64] and the accumulators are finite; otherwise redo this tile with the true max.")
    fin, slow = newlab("att_fin"), newlab("att_slow")
    e("v_mul_f32 v16, 0, %s" % v(O))
    for i in range(1, 8):
        e("v_fma_f32 v16, %s, 0, v16" % v(O + i))
    e("v_cmp_le_f32 vcc, %s, %s" % (f32(2.0 ** (64 if FORCE_SLOW else -64)), v(O + 8)))
    e("s_mov_b64 %s, vcc" % sM0)
    e("v_cmp_ge_f32 vcc, %s, %s" % (f32(2.0 ** 64), v(O + 8)))
    e("s_and_b64 %s, %s, vcc" % (sM0, sM0))
    e("v_cmp_eq_f32 vcc, 0, v16")
    e("s_and_b64 %s, %s, vcc" % (sM0, sM0))
    e("s_cmp_eq_u64 %s, -1" % sM0)
    e("s_cbranch_scc0 %s" % slow)
    lab(fin)
    e("v_rcp_f32 v16, %s" % v(O + 8))
    addr(T[0], sLB, OF, [(sQB, 8 * 32768), (sW, 32768), (sHEAD, 1024)])
    for p in range(4):
        e("v_pk_mul_f32 %s, %s, v[16:17] op_sel_hi:[1,0]" % (v(O + 2 * p, 2), v(O + 2 * p, 2)))
    for p in range(4):
        e("v_cvt_pk_bf16_f32 %s, %s, %s" % (v(20 + p), v(O + 2 * p), v(O + 2 * p + 1)))
    e("buffer_store_dwordx4 v[20:23], %s, %s, %s offen sc1" % (v(vL16), sWS, T[0]))
    slot(T[2], FA, [(sQB, 256), (sW, 32), (sHEAD, 1)])
    e("s_barrier")
    cw, done = newlab("att_cw"), newlab("att_done")
    e("s_cmp_lt_u32 %s, 4" % sW)
    e("s_cbranch_scc1 %s" % cw)
    addr(T[0], None, WOF, [(sNB, 65536), (sHW, 16384)])
    e("s_lshl_b32 %s, %s, 14" % (T[1], sHW))
    dma(T[0], T[1], 16)
    flag(T[2], 16)
    e("s_branch %s" % done)
    lab(slow)
    l1, l2 = newlab("slow1"), newlab("slow2")
    addr(T[2], sLB, KVF, [(sHEAD, 131072)])
    e("v_mov_b32 %s, 0xff800000" % v(CN))
    e("s_mov_b32 %s, 0" % sIT)
    lab(l1)
    e("buffer_load_dwordx4 %s, %s, %s, %s offen sc1" % (v(KB[0], 4), v(vL16), sWS, T[2]))
    e("s_waitcnt vmcnt(0)")
    mfma(S[0], KB[0], Q, "0")
    e("s_nop 15")
    for i in range(8):
        e("v_max3_f32 %s, %s, %s, %s" % (v(CN), v(S[0] + 2 * i), v(S[0] + 2 * i + 1), v(CN)))
    e("s_add_u32 %s, %s, 2048" % (T[2], T[2]))
    e("s_add_u32 %s, %s, 1" % (sIT, sIT))
    e("s_cmp_lt_u32 %s, 64" % sIT)
    e("s_cbranch_scc1 %s" % l1)
    e("v_mov_b32 %s, %s" % (v(CN + 1), v(CN)))
    e("s_nop 1")
    e("v_permlane32_swap_b32 %s, %s" % (v(CN), v(CN + 1)))
    e("s_nop 1")
    e("v_max_f32 %s, %s, %s" % (v(CN), v(CN), v(CN + 1)))
    e("v_sub_f32 %s, 0, %s" % (v(CN), v(CN)))
    for i in range(1, 16):
        e("v_mov_b32 %s, %s" % (v(CN + i), v(CN)))
    for i in range(16):
        e("v_mov_b32 %s, 0" % v(O + i))
    addr(T[2], sLB, KVF, [(sHEAD, 131072)])
    e("s_mov_b32 %s, 0" % sIT)
    lab(l2)
    e("buffer_load_dwordx4 %s, %s, %s, %s offen sc1" % (v(KB[0], 4), v(vL16), sWS, T[2]))
    e("s_mov_b64 exec, %s" % sMV)
    e("buffer_load_dwordx4 %s, %s, %s, %s offen offset:1024 sc1" % (v(VB[0], 4), v(vL16), sWS, T[2]))
    e("buffer_load_dwordx4 %s, %s, %s, %s offen offset:1280 sc1" % (v(VB[0] + 4, 4), v(vL16), sWS, T[2]))
    e("s_mov_b64 exec, -1")
    e("s_waitcnt vmcnt(0)")
    mfma(S[0], KB[0], Q, CN)
    e("s_nop 15")
    for i in range(16):
        e("v_exp_f32 %s, %s" % (v(S[0] + i), v(S[0] + i)))
    e("s_nop 1")
    smf(VB[0], S[0])
    smf(VB[0] + 4, S[0] + 8)
    e("s_nop 15")
    e("s_add_u32 %s, %s, 2048" % (T[2], T[2]))
    e("s_add_u32 %s, %s, 1" % (sIT, sIT))
    e("s_cmp_lt_u32 %s, 64" % sIT)
    e("s_cbranch_scc1 %s" % l2)
    e("s_branch %s" % fin)
    lab(cw)
    flag(T[2])
    lab(done)
    stamp()


def n512(kind):
    wo = kind == "wo"
    cm("================ %s" % ("output projection + residual" if wo else "MLP down projection + residual"))
    NS, J = (16, 16) if wo else (43, 35)
    AK, AS = vACC, vACC + 16
    hl, done = newlab("n_h"), newlab("n_done")
    e("s_cmp_ge_u32 %s, 4" % sW)
    e("s_cbranch_scc1 %s" % hl)
    if not wo:
        srd(sTMP, 26, 1024)
        e("v_lshrrev_b32 %s, 1, %s" % (v(vPO), v(vH16)))
        e("s_lshl_b32 %s, %s, 6" % (T[0], sNT))
        for i in range(4):
            e("buffer_load_dwordx2 %s, %s, %s, %s offen offset:%d" % (v(vWB + 2 * i, 2), v(vPO), sTMP, T[0], 16 * i))
    unpack(AK, vRES, 8)
    if not wo:
        e("s_waitcnt vmcnt(0)")
        unpack(AS, vWB, 8)
        for p in range(8):
            e("v_pk_add_f32 %s, %s, %s" % (v(AK + 2 * p, 2), v(AK + 2 * p, 2), v(AS + 2 * p, 2)))
    addr(T[0], None, 0, [(sKH, 3 * J * 1024)])
    e("v_add_u32 %s, %s, %s" % (v(vW0), T[0], v(vL16)))
    e("s_mul_i32 %s, %s, %d" % (T[0], sKH, J * 1024))
    e("s_sub_u32 %s, %d, %s" % (T[0], 2 * J * 1024, T[0]))
    e("v_add_u32 %s, %s, %s" % (v(vW1), T[0], v(vL16)))
    if wo:
        e("v_and_b32 %s, 15, v0" % v(vPO))
        slot(T[0], FA, [(sTBN, 32), (sKH, 16)])
        addr(T[1], sLB, OF, [(sTBN, 32768), (sKH, 16384)])
    else:
        e("v_and_b32 %s, 7, v0" % v(vPO))
        slot(T[0], FH, [(sTBN, 16), (sKH, 7)])
        addr(T[1], sLB, HF, [(sTBN, HSTR), (sKH, 43 * 1024)])
    e("v_lshlrev_b32 %s, 6, %s" % (v(vPO), v(vPO)))
    poll(T[0])
    stamp()
    areg = lambda j: vA + 4 * (j % 32)
    load_frags(T[1], 0, min(NS, 32), areg)
    e("s_barrier")

    def rd(j, i):
        e("ds_read_b128 %s, %s offset:%d" % (v(vWB + (j % 3) * 8 + 4 * i, 4), v((vW0, vW1)[i]), (j % J) * 1024))
    for j in range(2):
        for i in range(2):
            rd(j, i)
    for j in range(NS):
        issued = min(NS, 32 + j)
        if not wo and j == J - 2:
            e("s_barrier")
        e("s_waitcnt vmcnt(%d) lgkmcnt(%d)" % (issued - j - 1, 2 if j < NS - 1 else 0))
        for i in range(2):
            acc = AK + 16 * i
            mfma(acc, vWB + (j % 3) * 8 + 4 * i, areg(j), "0" if (j == 0 and i == 1) else acc)
            if j + 2 < NS:
                rd(j + 2, i)
        if 32 + j < NS:
            load_frags(T[1], 32 + j, 1, areg)
        if not wo and j == NS - J - 1:
            e("s_barrier")
    addr(T[0], None, RED, [(sHW, 4096)])
    e("v_add_u32 v16, %s, %s" % (T[0], v(vL16)))
    e("s_xor_b32 %s, %s, 2" % (T[1], sHW))
    addr(T[0], None, RED, [(T[1], 4096)])
    e("v_add_u32 v17, %s, %s" % (T[0], v(vL16)))
    e("s_nop 3")
    for i in range(4):
        e("ds_write_b128 v16, %s offset:%d" % (v(AS + 4 * i, 4), 1024 * i))
    e("s_waitcnt lgkmcnt(0)")
    e("s_barrier")
    stamp()
    for i in range(4):
        e("ds_read_b128 %s, v17 offset:%d" % (v(AS + 4 * i, 4), 1024 * i))
    for i in range(4):
        e("s_waitcnt lgkmcnt(%d)" % (3 - i))
        for p in (2 * i, 2 * i + 1):
            e("v_pk_add_f32 %s, %s, %s" % (v(AK + 2 * p, 2), v(AK + 2 * p, 2), v(AS + 2 * p, 2)))
    for p in range(8):
        e("v_cvt_pk_bf16_f32 %s, %s, %s" % (v(vRES + p), v(AK + 2 * p), v(AK + 2 * p + 1)))
    if wo:
        tile_stats(AK, 20)
        publish_x(sLB, X1F, ST1, 0, FO, 20)
    else:
        last = newlab("last")
        e("s_cmp_lg_u32 %s, 0" % sL)
        e("s_cbranch_scc1 %s" % last)
        tile_stats(AK, 20)
        publish_x(sLB, LBS + XF, LBS + ST, FLG_L, FX, 20)
        e("s_branch %s" % done)
        lab(last)
        srd(sTMP, 28, 2048 * 1024)
        e("v_and_b32 v16, 31, v0")
        e("v_lshlrev_b32 v16, 10, v16")
        e("v_add_u32 v16, v16, %s" % v(vH16))
        addr(T[0], None, 0, [(sTBN, 32768), (sNT, 64)])
        for g in range(2):
            e("v_permlane32_swap_b32 %s, %s" % (v(vRES + 4 * g), v(vRES + 4 * g + 2)))
            e("v_permlane32_swap_b32 %s, %s" % (v(vRES + 4 * g + 1), v(vRES + 4 * g + 3)))
        for g in range(2):
            e("buffer_store_dwordx4 %s, v16, %s, %s offen offset:%d" % (v(vRES + 4 * g, 4), sTMP, T[0], 32 * g))
    e("s_branch %s" % done)
    lab(hl)
    e("s_waitcnt vmcnt(0)")
    e("s_barrier")
    if not wo:
        e("s_barrier")
        e("s_lshr_b32 %s, %s, 1" % (T[2], sHW))
        e("s_and_b32 %s, %s, 1" % (T[3], sHW))
        addr(T[0], None, W2F + J * 1024, [(sNB, 2 * 86 * 1024), (T[2], 86 * 1024), (T[3], 43 * 1024)])
        e("s_mul_i32 %s, %s, %d" % (T[1], sHW, J * 1024))
        dma(T[0], T[1], NS - J)
        e("s_waitcnt vmcnt(0)")
        e("s_barrier")
    e("s_barrier")
    if wo:
        dma_wide([(W1F + i * 32768, [(sC, 3 * 32768)]) for i in range(3)])
        e("s_cmp_lg_u32 %s, 0" % sL)
        e("s_cbranch_scc1 %s" % done)
        colsum_to_lds(CS1, [(sHW, 128), (sC, 3 * 128)], CS1_L)
        srd(sTMP, 22, 2752)
        e("v_and_b32 %s, 31, v0" % v(vPO))
        e("v_lshlrev_b32 %s, 1, %s" % (v(vPO), v(vPO)))
        addr(T[0], None, 0, [(sHW, 64), (sC, 192)])
        e("buffer_load_ushort v18, %s, %s, %s offen" % (v(vPO), sTMP, T[0]))
        e("s_waitcnt vmcnt(0)")
        e("v_lshlrev_b32 v18, 16, v18")
        e("ds_write_b32 v40, v18 offset:%d" % (B1_L - CS1_L))
    else:
        e("s_cmp_lg_u32 %s, 0" % sL)
        e("s_cbranch_scc1 %s" % done)
        dma_wq()
    lab(done)
    stamp()


def ffn1():
    cm("================ MLP up projection + GELU")
    hl, done = newlab("f1_h"), newlab("f1_done")
    e("s_cmp_ge_u32 %s, 4" % sW)
    e("s_cbranch_scc1 %s" % hl)
    wide_compute_front(FO, X1F, ST1, False)
    cm("second LayerNorm of the already normalised row: mean 0, variance var*r^2")
    e("s_nop 0")
    e("v_mul_f32 %s, %s, %s" % (v(vSTS + 2), v(vR), v(vR)))
    e("v_mul_f32 %s, %s, %s" % (v(vSTS + 2), v(vSTS + 2), v(vSTS + 1)))
    e("v_add_f32 %s, %s, %s" % (v(vSTS + 2), f32(1e-5), v(vSTS + 2)))
    e("v_rsq_f32 %s, %s" % (v(vSTS + 2), v(vSTS + 2)))
    for t in range(3):
        for i in range(4):
            e("ds_read_b128 %s, %s offset:%d" % (v(16 + 32 * t + 4 * i, 4), v(vCA), 512 + t * 128 + 32 * i))
        for i in range(4):
            e("ds_read_b128 %s, %s offset:%d" % (v(32 + 32 * t + 4 * i, 4), v(vCA), 1024 + t * 128 + 32 * i))
        if t == 0:
            e("v_mul_f32 %s, %s, %s" % (v(vR), v(vR), v(vSTS + 2)))
        if t == 1:
            e("s_waitcnt lgkmcnt(8)")
    c0 = -2.0 * 1.4426950408889634 * 0.7978845608028654
    e("v_mov_b32 v112, %s" % f32(c0))
    e("v_mov_b32 v113, %s" % f32(c0 * 0.044715))
    e("v_mov_b32 v114, 1.0")
    addr(T[0], sLB, HF, [(sTBW, HSTR), (sC, 6144)])
    e("s_add_u32 %s, %s, 4096" % (T[1], T[0]))
    Z, P = 120, vWB
    for t in range(3):
        acc, cs, b1 = vACC + 16 * t, 16 + 32 * t, 32 + 32 * t
        if t > 0:
            e("s_waitcnt lgkmcnt(%d)" % (8 if t == 1 else 0))
        for p in range(8):
            center(acc, cs, p)
        for p in range(8):
            e("v_pk_fma_f32 %s, %s, %s, %s op_sel_hi:[1,0,1]" %
              (v(acc + 2 * p, 2), v(acc + 2 * p, 2), v(vR, 2), v(b1 + 2 * p, 2)))
        for p in range(8):
            e("v_pk_mul_f32 %s, %s, %s" % (v(Z + 2 * p, 2), v(acc + 2 * p, 2), v(acc + 2 * p, 2)))
        for p in range(8):
            e("v_pk_fma_f32 %s, %s, v[112:113], v[112:113] op_sel:[0,1,0] op_sel_hi:[1,1,0]" %
              (v(Z + 2 * p, 2), v(Z + 2 * p, 2)))
        for p in range(8):
            e("v_pk_mul_f32 %s, %s, %s" % (v(Z + 2 * p, 2), v(Z + 2 * p, 2), v(acc + 2 * p, 2)))
        for i in range(16):
            e("v_exp_f32 %s, %s" % (v(Z + i), v(Z + i)))
        for p in range(8):
            e("v_pk_add_f32 %s, %s, v[114:115] op_sel_hi:[1,0]" % (v(Z + 2 * p, 2), v(Z + 2 * p, 2)))
        for i in range(16):
            e("v_rcp_f32 %s, %s" % (v(Z + i), v(Z + i)))
        for p in range(8):
            e("v_pk_mul_f32 %s, %s, %s" % (v(acc + 2 * p, 2), v(acc + 2 * p, 2), v(Z + 2 * p, 2)))
        for p in range(8):
            e("v_cvt_pk_bf16_f32 %s, %s, %s" % (v(P + 8 * t + p), v(acc + 2 * p), v(acc + 2 * p + 1)))
        for hh in range(2):
            k = 2 * t + hh
            e("buffer_store_dwordx4 %s, %s, %s, %s offen offset:%d sc1" %
              (v(P + 8 * t + 4 * hh, 4), v(vL16), sWS, T[k // 4], (k % 4) * 1024))
    slot(T[0], FH, [(sTBW, 16), (sC, 1)])
    flag(T[0])
    e("s_branch %s" % done)
    lab(hl)
    e("s_waitcnt vmcnt(0) lgkmcnt(0)")
    e("s_barrier")
    e("s_barrier")
    e("s_lshr_b32 %s, %s, 1" % (T[2], sHW))
    e("s_and_b32 %s, %s, 1" % (T[3], sHW))
    addr(T[0], None, W2F, [(sNB, 2 * 86 * 1024), (T[2], 86 * 1024), (T[3], 43 * 1024)])
    e("s_mul_i32 %s, %s, %d" % (T[1], sHW, 35 * 1024))
    dma(T[0], T[1], 35)
    lab(done)
    stamp()


def epilogue():
    e("s_add_u32 %s, %s, 1" % (sL, sL))
    e("s_add_u32 %s, %s, 0x%x" % (sLB, sLB, LBS))
    e("s_add_u32 %s, %s, %d" % (sFB, sFB, FLG_L))
    e("s_cmp_lt_u32 %s, 2" % sL)
    e("s_cbranch_scc1 L_layer")
    if PROFILE:
        e("s_lshl_b32 %s, s2, 3" % T[0])
        e("s_add_u32 %s, %s, %s" % (T[0], T[0], sW))
        e("s_lshl_b32 %s, %s, 8" % (T[0], T[0]))
        e("s_add_u32 %s, %s, 0x%x" % (T[0], T[0], TSB))
        e("s_mov_b64 exec, 1")
        for i, r in enumerate([3, 18, 19] + list(range(STAMP0, STAMP0 + 30))):
            e("v_mov_b32 v16, s%d" % r)
            e("buffer_store_dword v16, off, %s, %s offset:%d" % (sWS, T[0], 4 * i))
        e("s_mov_b64 exec, -1")
    cm("advance the hand-off tag for the next launch")
    e("s_or_b32 %s, s2, %s" % (T[0], sW))
    e("s_cmp_lg_u32 %s, 0" % T[0])
    e("s_cbranch_scc1 L_end")
    e("s_mov_b64 exec, 1")
    e("buffer_store_dword %s, off, %s, 0" % (v(vFV), sWS))
    lab("L_end")
    e("s_endpgm")


HEADER = open(f"cdna_kernels/{NAME}.s.ref").read().split("; Override launch")[0]


def main():
    prologue()
    p0()
    lab("L_layer")
    qkv()
    attention()
    n512("wo")
    ffn1()
    n512("f2")
    epilogue()
    k = NAME + "_kernel"
    out = HEADER
    out += "; @launch grid=(256,1,1) block=(512,1,1) lds=%d\n" % LDS_BYTES
    out += '.amdgcn_target "amdgcn-amd-amdhsa--gfx950"\n.text\n.globl %s\n.p2align 8\n.type %s,@function\n%s:\n' % (k, k, k)
    out += "\n".join(L) + "\n"
    out += """.section .rodata,"a"
.p2align 6
.amdhsa_kernel %s
  .amdhsa_next_free_vgpr 256
  .amdhsa_next_free_sgpr 102
  .amdhsa_accum_offset 256
  .amdhsa_group_segment_fixed_size 0
  .amdhsa_kernarg_size 88
  .amdhsa_user_sgpr_count 2
  .amdhsa_user_sgpr_kernarg_segment_ptr 1
  .amdhsa_system_sgpr_workgroup_id_x 1
.end_amdhsa_kernel
""" % k
    open(OUT, "w").write(out)


main()
```

```python
import struct
import sys

NAME = "interleave_layers__softmax_full_mha__mixer_channel_mlp__prompt"
PROFILE = "--prof" in sys.argv
CLK = "s_memrealtime" if "--rt" in sys.argv else "s_memtime"
FORCE_SLOW = "--slow" in sys.argv
FORCE_GLOBAL = "--global" in sys.argv
OUT = [a for a in sys.argv[1:] if not a.startswith("--")]
OUT = OUT[0] if OUT else f"cdna_kernels/{NAME}.s"


def f32(x):
    return "0x%08x" % struct.unpack("<I", struct.pack("<f", x))[0]


WS_SIZE = 0x10000000
FLG = 0x100000
FQG, FQG_L = 0, 1024
KVF, KVF_L = 0x200000, 0x400000
ARENA, ARENA_X = 0x1000000, 0x400000
XF, X1F, OF, QF, KVL, HF, ST, ST1, LFL = 0, 0x40000, 0x80000, 0xC0000, 0x100000, 0x180000, 0x240000, 0x248000, 0x250000
FX, FQ, FA, FO, FH, LFL_L = 0, 128, 256, 512, 640, 768
HSTR = 96 * 1024
TSB = 0x4000000
DEPTH = 10
PACE = 5
RED = 140 * 1024
CONST = 156 * 1024
CSQ_L, CS1_L, B1_L, STAT_L = CONST, CONST + 512, CONST + 1024, CONST + 1536
LDS_BYTES = 160 * 1024
sWS, sTMP = "s[4:7]", "s[8:11]"
sW, sNONCE, sL, sLB, sFB = "s34", "s35", "s36", "s37", "s38"
sXCD, sJ, sTBW, sC, sTBN, sNB, sKH, sNT, sHEAD, sQB = ("s%d" % i for i in range(39, 49))
sHW = "s49"
T = ["s%d" % i for i in range(50, 60)]
sCNT, sIT = "s60", "s61"
sMV = "s[62:63]"
sM0, sM1 = "s[64:65]", "s[66:67]"
sMODE = "s3"
STAMP0 = 72
vLANE, vL16, vFV, vPO, vT5, vPD = 0, 1, 2, 4, 5, 6
vRES = 8
vA, vACC, vWB, vSTS = 16, 144, 192, 228
vW0, vW1, vMU, vW2, vR, vW3, vRQ, vCA, vTR, vK16, vVOF, vH16 = 244, 245, 246, 247, 248, 249, 250, 251, 252, 253, 254, 255
vSTASH = 128
QL = 128 * 1024
POLL_LIMIT = 1 << 16

L = []
TAIL = []
uid = [0]
nstamp = [0]


def e(s):
    L.append("    " + s)


def lab(n):
    L.append(n + ":")


def cm(s):
    L.append("    ; " + s)


def v(i, n=1):
    return "v%d" % i if n == 1 else "v[%d:%d]" % (i, i + n - 1)


def newlab(p):
    uid[0] += 1
    return "L_%s_%d" % (p, uid[0])


def stamp(fixed=None):
    if not PROFILE:
        return
    e(CLK + " s[70:71]")
    e("s_waitcnt lgkmcnt(0)")
    if fixed:
        e("s_mov_b32 %s, s70" % fixed)
        return
    e("s_mul_i32 s69, %s, 15" % sL)
    e("s_add_u32 m0, s69, %d" % nstamp[0])
    e("s_nop 1")
    e("s_movreld_b32 s%d, s70" % STAMP0)
    nstamp[0] += 1
    assert nstamp[0] <= 15


FINE = [a.split("=")[1] for a in sys.argv if a.startswith("--fine=")]
FINE = FINE[0] if FINE else None
nfine = [0]


def fine(phase):
    if not PROFILE or FINE != phase:
        return
    e(CLK + " s[70:71]")
    e("s_waitcnt lgkmcnt(0)")
    e("v_writelane_b32 v5, s70, %d" % nfine[0])
    nfine[0] += 1


def srd(dst, lo, size):
    b = int(dst[2:dst.index(":")])
    e("s_mov_b32 s%d, s%d" % (b, lo))
    e("s_and_b32 s%d, s%d, 0xffff" % (b + 1, lo + 1))
    e("s_mov_b32 s%d, %s" % (b + 2, size if isinstance(size, str) else hex(size)))
    e("s_mov_b32 s%d, 0x20000" % (b + 3))


def poll(soff):
    a, b = newlab("poll"), newlab("pok")
    e("s_mov_b32 %s, %d" % (sCNT, POLL_LIMIT))
    lab(a)
    e("buffer_load_dwordx2 %s, %s, %s, %s offen sc1" % (v(vPD, 2), v(vPO), sWS, soff))
    e("s_waitcnt vmcnt(0)")
    e("v_cmp_eq_u64 vcc, %s, %s" % (v(vPD, 2), v(vFV, 2)))
    e("s_nop 1")
    e("s_cmp_eq_u64 vcc, -1")
    e("s_cbranch_scc1 %s" % b)
    e("s_sub_u32 %s, %s, 1" % (sCNT, sCNT))
    e("s_cbranch_scc0 %s" % a)
    e("s_endpgm")
    lab(b)


def lstores(lines):
    g, d = newlab("wt"), newlab("wtd")
    e("s_cmp_eq_u32 %s, 0" % sMODE)
    e("s_cbranch_scc1 %s" % g)
    for x in lines:
        e(x)
    lab(d)
    TAIL.append(g + ":")
    for x in lines:
        TAIL.append("    " + x + (" sc1" if x.startswith("buffer_store") else ""))
    TAIL.append("    s_branch " + d)


def flag(soff, n=0, local=False):
    if n is not None:
        e("s_waitcnt vmcnt(%d)" % n)
    e("s_mov_b64 exec, 1")
    x = "buffer_store_dwordx2 %s, off, %s, %s" % (v(vFV, 2), sWS, soff)
    if local:
        lstores([x])
    else:
        e(x + " sc1")
    e("s_mov_b64 exec, -1")


def mode_poll():
    a, b = newlab("mp"), newlab("mpok")
    srd(sTMP, 30, 256)
    e("v_and_b32 %s, 31, v0" % v(vPO))
    e("s_lshl_b32 %s, %s, 5" % (T[0], sXCD))
    e("s_getreg_b32 %s, hwreg(HW_REG_XCC_ID, 0, 4)" % T[1])
    e("s_add_u32 %s, %s, 1" % (T[1], T[1]))
    e("s_mov_b32 %s, %d" % (sCNT, POLL_LIMIT))
    lab(a)
    e("buffer_load_ubyte %s, %s, %s, %s offen sc1" % (v(vPD), v(vPO), sTMP, T[0]))
    e("s_waitcnt vmcnt(0)")
    e("v_cmp_ne_u32 vcc, 0, %s" % v(vPD))
    e("s_nop 1")
    e("s_cmp_eq_u64 vcc, -1")
    e("s_cbranch_scc1 %s" % b)
    e("s_sub_u32 %s, %s, 1" % (sCNT, sCNT))
    e("s_cbranch_scc0 %s" % a)
    e("s_endpgm")
    lab(b)
    e("v_cmp_eq_u32 vcc, %s, %s" % (T[1], v(vPD)))
    e("s_nop 1")
    e("s_cmp_eq_u64 vcc, -1")
    e("s_cselect_b32 %s, %d, 0" % (sMODE, 0 if FORCE_GLOBAL else 1))


def slot(dst, base, terms):
    e("s_add_u32 %s, %s, %d" % (dst, sFB, base * 64))
    for r, m in terms:
        e("s_mul_i32 %s, %s, %d" % (T[9], r, m * 64))
        e("s_add_u32 %s, %s, %s" % (dst, dst, T[9]))


def addr(dst, base_reg, const, terms):
    if base_reg is None:
        e("s_mov_b32 %s, 0x%x" % (dst, const))
    else:
        e("s_add_u32 %s, %s, 0x%x" % (dst, base_reg, const))
    for r, m in terms:
        e("s_mul_i32 %s, %s, %d" % (T[9], r, m))
        e("s_add_u32 %s, %s, %s" % (dst, dst, T[9]))


def load_frags(sg, first, n, reg_of, rebase=True):
    for j in range(first, first + n):
        if j % 4 == 0 or (j == first and rebase):
            e("s_add_u32 %s, %s, %d" % (T[8], sg, (j // 4) * 4096))
        e("buffer_load_dwordx4 %s, %s, %s, %s offen offset:%d sc1" %
          (v(reg_of(j), 4), v(vL16), sWS, T[8], (j % 4) * 1024))


def mfma(d, a, b, c):
    e("v_mfma_f32_32x32x16_bf16 %s, %s, %s, %s" % (v(d, 16), v(a, 4), v(b, 4), c if isinstance(c, str) else v(c, 16)))


def half_sum(a, b):
    e("s_nop 1")
    e("v_permlane32_swap_b32 %s, %s" % (v(a), v(b)))
    e("s_nop 1")
    e("v_add_f32 %s, %s, %s" % (v(a), v(a), v(b)))


def tile_stats(y, t):
    e("v_pk_add_f32 %s, %s, %s" % (v(t, 2), v(y, 2), v(y + 2, 2)))
    e("v_pk_mul_f32 %s, %s, %s" % (v(t + 2, 2), v(y, 2), v(y, 2)))
    for p in range(1, 8):
        if p > 1:
            e("v_pk_add_f32 %s, %s, %s" % (v(t, 2), v(t, 2), v(y + 2 * p, 2)))
        e("v_pk_fma_f32 %s, %s, %s, %s" % (v(t + 2, 2), v(y + 2 * p, 2), v(y + 2 * p, 2), v(t + 2, 2)))
    e("v_add_f32 %s, %s, %s" % (v(t), v(t), v(t + 1)))
    e("v_add_f32 %s, %s, %s" % (v(t + 2), v(t + 2), v(t + 3)))
    half_sum(t, t + 2)


def unpack(dst, src, n):
    for i in range(n):
        e("v_lshlrev_b32 %s, 16, %s" % (v(dst + 2 * i), v(src + i)))
        e("v_and_b32 %s, 0xffff0000, %s" % (v(dst + 2 * i + 1), v(src + i)))


def publish_x(lb, xoff, stoff, fbase_add, fbase, ystat, between=None):
    addr(T[0], lb, xoff, [(sTBN, 32768), (sNT, 2048)])
    e("s_lshr_b32 %s, %s, 2" % (T[2], sNT))
    e("s_and_b32 %s, %s, 3" % (T[8], sNT))
    addr(T[1], lb, stoff, [(sTBN, 4096), (T[2], 1024), (T[8], 4)])
    lstores(["buffer_store_dwordx4 %s, %s, %s, %s offen" % (v(vRES, 4), v(vL16), sWS, T[0]),
             "buffer_store_dwordx4 %s, %s, %s, %s offen offset:1024" % (v(vRES + 4, 4), v(vL16), sWS, T[0]),
             "buffer_store_dword %s, %s, %s, %s offen" % (v(ystat), v(vL16), sWS, T[1])])
    slot(T[2], fbase, [(sTBN, 16), (sNT, 1)])
    if fbase_add:
        e("s_add_u32 %s, %s, %d" % (T[2], T[2], fbase_add))
    if between:
        between()
    flag(T[2], local=True)


def prologue():
    e("s_cmp_ge_u32 s2, 256")
    e("s_cbranch_scc1 L_end")
    e("s_load_dwordx16 s[12:27], s[0:1], 0")
    e("s_load_dwordx4 s[28:31], s[0:1], 64")
    e("s_load_dwordx2 s[32:33], s[0:1], 80")
    e("v_lshrrev_b32 v1, 6, v0")
    e("v_and_b32 v0, 63, v0")
    e("v_readfirstlane_b32 %s, v1" % sW)
    e("v_lshlrev_b32 %s, 4, v0" % v(vL16))
    cm("column part of a transposing-read address: (lane&3)*8 + ((lane>>4)&1)*32")
    e("v_and_b32 %s, 3, v0" % v(vTR))
    e("v_lshlrev_b32 %s, 3, %s" % (v(vTR), v(vTR)))
    e("v_bfe_u32 %s, v0, 4, 1" % v(vT5))
    e("v_lshl_or_b32 %s, %s, 5, %s" % (v(vTR), v(vT5), v(vTR)))
    e("v_lshrrev_b32 %s, 5, v0" % v(vT5))
    e("v_lshlrev_b32 %s, 4, %s" % (v(vH16), v(vT5)))
    cm("K fragments are stored with token bits 2 and 3 swapped (matches the sparse-MFMA key order)")
    e("v_and_b32 %s, 0x33, v0" % v(vK16))
    e("v_and_b32 %s, 4, v0" % v(vPO))
    e("v_lshl_or_b32 %s, %s, 1, %s" % (v(vK16), v(vPO), v(vK16)))
    e("v_and_b32 %s, 8, v0" % v(vPO))
    e("v_lshrrev_b32 %s, 1, %s" % (v(vPO), v(vPO)))
    e("v_or_b32 %s, %s, %s" % (v(vK16), v(vK16), v(vPO)))
    e("v_lshlrev_b32 %s, 4, %s" % (v(vK16), v(vK16)))
    cm("V store offset: head parity*128K + half*512 + d*16")
    e("v_and_b32 %s, 15, v0" % v(vVOF))
    e("v_lshlrev_b32 %s, 4, %s" % (v(vVOF), v(vVOF)))
    e("v_lshl_or_b32 %s, %s, 9, %s" % (v(vVOF), v(vT5), v(vVOF)))
    e("v_bfe_u32 %s, v0, 4, 1" % v(vPO))
    e("v_lshl_or_b32 %s, %s, 17, %s" % (v(vVOF), v(vPO), v(vVOF)))
    e("s_and_b32 %s, s2, 7" % sXCD)
    e("s_lshr_b32 %s, s2, 3" % sJ)
    e("s_and_b32 %s, %s, 3" % (sHW, sW))
    e("s_and_b32 %s, %s, 15" % (sC, sJ))
    e("s_lshr_b32 %s, %s, 4" % (T[0], sJ))
    e("s_lshl_b32 %s, %s, 2" % (T[0], T[0]))
    e("s_add_u32 %s, %s, %s" % (sTBW, T[0], sHW))
    e("s_and_b32 %s, %s, 7" % (sNB, sJ))
    e("s_lshr_b32 %s, %s, 3" % (T[0], sJ))
    e("s_mov_b32 %s, %s" % (sHEAD, sJ))
    e("s_lshl_b32 %s, %s, 1" % (sTBN, T[0]))
    e("s_and_b32 %s, %s, 1" % (T[0], sW))
    e("s_add_u32 %s, %s, %s" % (sTBN, sTBN, T[0]))
    e("s_lshr_b32 %s, %s, 1" % (sKH, sHW))
    e("s_lshl_b32 %s, %s, 1" % (sNT, sNB))
    e("s_add_u32 %s, %s, %s" % (sNT, sNT, sKH))
    e("s_mov_b32 s62, 0xffff")
    e("s_mov_b32 s63, 0xffff")
    e("s_mov_b32 %s, 0" % sL)
    addr(sLB, None, ARENA, [(sXCD, ARENA_X)])
    e("s_add_u32 %s, %s, 0x%x" % (sFB, sLB, LFL))
    e("s_waitcnt lgkmcnt(0)")
    srd(sWS, 32, WS_SIZE)
    srd(sTMP, 12, 2048 * 1024)
    cm("hand-off tag: ws[0] only tells this launch's flags from an earlier launch's")
    e("s_load_dword %s, s[32:33], 0" % sNONCE)
    if PROFILE:
        e("s_memrealtime s[70:71]")
        e("s_waitcnt lgkmcnt(0)")
        e("s_mov_b32 s68, s70")
        stamp("s18")


def make_tag():
    e("s_waitcnt lgkmcnt(0)")
    e("s_add_u32 %s, %s, 16" % (sNONCE, sNONCE))
    e("v_mov_b32 %s, %s" % (v(vFV), sNONCE))
    e("v_not_b32 %s, %s" % (v(vFV + 1), v(vFV)))


def p0():
    cm("================ P0 (waves 0-3): x tile -> residual registers, fragments and row statistics")
    p0end, noid, nox = newlab("p0end"), newlab("noid"), newlab("nox")
    e("s_cmp_ge_u32 %s, 4" % sW)
    e("s_cbranch_scc1 %s" % nox)
    e("v_and_b32 %s, 31, v0" % v(vPO))
    e("v_lshlrev_b32 %s, 10, %s" % (v(vPO), v(vPO)))
    e("v_lshl_or_b32 %s, %s, 3, %s" % (v(vPO), v(vT5), v(vPO)))
    addr(T[0], None, 0, [(sXCD, 262144), (sTBN, 32768), (sNT, 64)])
    for i in range(4):
        e("buffer_load_dwordx2 %s, %s, %s, %s offen offset:%d" % (v(vRES + 2 * i, 2), v(vPO), sTMP, T[0], 16 * i))
    lab(nox)
    cm("one line per lane: the 32 workgroups of a group pull Wqkv into their L2")
    srd(sTMP, 14, 512 * 3072)
    e("v_lshlrev_b32 v17, 7, v0")
    addr(T[0], None, 0, [(sJ, 384 * 128), (sW, 48 * 128)])
    e("buffer_load_dword v16, v17, %s, %s offen" % (sTMP, T[0]))
    e("s_cmp_ge_u32 %s, 4" % sW)
    e("s_cbranch_scc1 %s" % p0end)
    cm("waves 1-3: first touch of Wo / W1 / W2; wave 0: report which die this workgroup runs on")
    idw = newlab("idw")
    e("s_cmp_eq_u32 %s, 0" % sW)
    e("s_cbranch_scc1 %s" % idw)
    e("s_mov_b32 s10, %d" % (1376 * 1024))
    e("s_mov_b32 %s, %d" % (T[0], 43 * 128))
    e("s_cmp_eq_u32 %s, 2" % sW)
    e("s_cselect_b64 s[8:9], s[20:21], s[24:25]")
    e("s_cmp_eq_u32 %s, 1" % sW)
    e("s_cselect_b64 s[8:9], s[16:17], s[8:9]")
    e("s_cselect_b32 s10, %d, s10" % (512 * 1024))
    e("s_cselect_b32 %s, %d, %s" % (T[0], 16 * 128, T[0]))
    e("s_and_b32 s9, s9, 0xffff")
    e("s_mul_i32 %s, %s, s2" % (T[0], T[0]))
    e("buffer_load_dword v18, v17, %s, %s offen" % (sTMP, T[0]))
    e("s_branch %s" % noid)
    lab(idw)
    srd(sTMP, 30, 256)
    e("s_getreg_b32 %s, hwreg(HW_REG_XCC_ID, 0, 4)" % T[7])
    e("s_add_u32 %s, %s, 1" % (T[7], T[7]))
    addr(T[8], sJ, 0, [(sXCD, 32)])
    e("v_mov_b32 v66, %s" % T[7])
    e("s_mov_b64 exec, 1")
    e("buffer_store_byte v66, off, %s, %s sc1" % (sTMP, T[8]))
    e("s_mov_b64 exec, -1")
    lab(noid)
    stamp("s0")
    make_tag()
    e("s_waitcnt vmcnt(2)")
    stamp("s1")
    unpack(66, vRES, 8)
    tile_stats(66, 84)
    mode_poll()
    publish_x(sLB, XF, ST, 0, FX, 84)
    lab(p0end)
    stamp("s19")


def tr_rows(dst, rowbytes):
    e("v_bfe_u32 %s, v0, 2, 2" % v(dst))
    e("v_lshrrev_b32 %s, 2, %s" % (v(vPD), v(vH16)))
    e("v_add_u32 %s, %s, %s" % (v(dst), v(dst), v(vPD)))
    e("v_mul_u32_u24 %s, %d, %s" % (v(dst), rowbytes, v(dst)))
    e("v_add_u32 %s, %s, %s" % (v(dst), v(dst), v(vTR)))


def voff_128(dst):
    e("v_lshrrev_b32 %s, 3, v0" % v(dst))
    e("v_lshlrev_b32 %s, 10, %s" % (v(dst), v(dst)))
    e("v_and_b32 %s, 7, v0" % v(vPD))
    e("v_lshrrev_b32 %s, 2, v0" % v(vPD + 1))
    e("v_and_b32 %s, 4, %s" % (v(vPD + 1), v(vPD + 1)))
    e("v_xor_b32 %s, %s, %s" % (v(vPD), v(vPD), v(vPD + 1)))
    e("v_lshl_or_b32 %s, %s, 4, %s" % (v(dst), v(vPD), v(dst)))


def voff_192(dst):
    for i in range(3):
        e("v_add_u32 %s, %d, v0" % (v(vPD), 64 * i))
        e("v_mul_u32_u24 %s, 5462, %s" % (v(vPD + 1), v(vPD)))
        e("v_lshrrev_b32 %s, 16, %s" % (v(vPD + 1), v(vPD + 1)))
        e("v_mul_u32_u24 %s, %d, %s" % (v(dst + i), 2752 - 192, v(vPD + 1)))
        e("v_lshl_add_u32 %s, %s, 4, %s" % (v(dst + i), v(vPD), v(dst + i)))


def dma1(vo, sg):
    e("buffer_load_dwordx4 %s, %s, %s offen lds" % (v(vo), sTMP, sg))


def dma_loop(n, body):
    lp = newlab("dl")
    e("s_mov_b32 %s, %d" % (T[2], n))
    lab(lp)
    body()
    e("s_sub_u32 %s, %s, 1" % (T[2], T[2]))
    e("s_cmp_lg_u32 %s, 0" % T[2])
    e("s_cbranch_scc1 %s" % lp)


def dma_w2(piece0, lds0, n, pace=PACE):
    addr(T[0], None, piece0 * 8192, [(sHW, n * 8192), (sNB, 128)])
    addr(T[1], None, lds0, [(sHW, n * 1024)])

    def body():
        e("s_mov_b32 m0, %s" % T[1])
        e("s_add_u32 %s, %s, 1024" % (T[1], T[1]))
        dma1(40, T[0])
        e("s_add_u32 %s, %s, 8192" % (T[0], T[0]))
        if pace:
            e("s_waitcnt vmcnt(%d)" % pace)
    dma_loop(n, body)


def dma_w1(n):
    def body():
        for i in range(3):
            e("s_add_u32 m0, %s, %d" % (T[1], 1024 * i))
            e("s_nop 0")
            dma1(44 + i, T[0])
        e("s_add_u32 %s, %s, %d" % (T[0], T[0], 16 * 2752))
        e("s_add_u32 %s, %s, 3072" % (T[1], T[1]))
    dma_loop(n, body)


def wq_begin():
    srd(sTMP, 14, 512 * 3072)
    e("v_lshrrev_b32 v40, 2, v0")
    e("v_mul_u32_u24 v40, 3072, v40")
    e("v_and_b32 v41, 3, v0")
    e("v_lshl_or_b32 v40, v41, 4, v40")
    addr(T[3], None, 0, [(sHW, 2 * 49152), (sC, 64)])
    e("s_lshl_b32 %s, %s, 11" % (T[4], sHW))


def wq_chunk():
    for dk in range(2):
        for i in range(3):
            e("s_add_u32 m0, %s, %d" % (T[4], i * 31744 + dk * 1024))
            e("s_nop 0")
            e("buffer_load_dwordx4 v40, %s, %s offen offset:%d lds" % (sTMP, T[3], i * 1024))
        e("s_add_u32 %s, %s, %d" % (T[3], T[3], 49152 if dk == 0 else 7 * 49152))
    e("s_add_u32 %s, %s, 8192" % (T[4], T[4]))


def colsum_steps(n, step, second):
    for g in range(0, n, 4):
        m = min(4, n - g)
        for k in range(2 * m):
            e("ds_read_b64_tr_b16 %s, v42 offset:%d" % (v(16 + 2 * k, 2), (g + k // 2) * step + (k % 2) * second))
        for k in range(2 * m):
            e("s_waitcnt lgkmcnt(%d)" % (2 * m - 1 - k))
            for r in (16 + 2 * k, 17 + 2 * k):
                e("v_lshlrev_b32 v45, 16, %s" % v(r))
                e("v_and_b32 %s, %s, %s" % (v(r), T[1], v(r)))
                e("v_add_f32 v43, v43, v45")
                e("v_add_f32 v44, v44, %s" % v(r))


def colsum_begin(rowbytes, base, tilestep):
    tr_rows(42, rowbytes)
    addr(T[0], None, base, [(sHW, tilestep)])
    e("v_add_u32 v42, %s, v42" % T[0])
    e("v_mov_b32 v43, 0")
    e("v_mov_b32 v44, 0")
    e("s_mov_b32 %s, 0xffff0000" % T[1])


def colsum_end(dst_l):
    e("v_add_f32 v43, v43, v44")
    e("v_and_b32 v41, 31, v0")
    e("v_mov_b32 v44, v43")
    addr(T[0], None, dst_l, [(sHW, 128)])
    e("v_lshl_add_u32 v41, v41, 2, %s" % T[0])
    half_sum(43, 44)
    e("ds_write_b32 v41, v43")


def stats_code(second_ln):
    c = []
    for k in range(1, 16):
        c.append("v_add_f32 %s, %s, %s" % (v(vSTS), v(vSTS), v(vSTS + k)))
    c += ["v_mov_b32 %s, %s" % (v(vSTS + 1), v(vSTS)), "s_nop 1",
          "v_permlane32_swap_b32 %s, %s" % (v(vSTS), v(vSTS + 1)), "s_nop 1",
          "v_mul_f32 %s, %s, %s" % (v(vMU), f32(1.0 / 512), v(vSTS)),
          "v_mul_f32 %s, %s, %s" % (v(vSTS + 1), f32(1.0 / 512), v(vSTS + 1)),
          "v_fma_f32 %s, -%s, %s, %s" % (v(vSTS + 1), v(vMU), v(vMU), v(vSTS + 1)),
          "v_max_f32 %s, 0, %s" % (v(vSTS + 1), v(vSTS + 1)),
          "v_add_f32 %s, %s, %s" % (v(vSTS + 2), f32(1e-5), v(vSTS + 1)),
          "v_rsq_f32 %s, %s" % (v(vR), v(vSTS + 2)), "s_nop 0"]
    if second_ln:
        c += ["v_mul_f32 %s, %s, %s" % (v(vSTS + 2), v(vR), v(vR)),
              "v_mul_f32 %s, %s, %s" % (v(vSTS + 2), v(vSTS + 2), v(vSTS + 1)),
              "v_add_f32 %s, %s, %s" % (v(vSTS + 2), f32(1e-5), v(vSTS + 2)),
              "v_rsq_f32 %s, %s" % (v(vSTS + 2), v(vSTS + 2)), "s_nop 0",
              "v_mul_f32 %s, %s, %s" % (v(vR), v(vR), v(vSTS + 2))]
    return c


def wide_compute_front(fbase, xoff, stoff, qkv_phase, tail_code):
    ph = "q" if qkv_phase else "f"
    e("v_and_b32 %s, 15, v0" % v(vPO))
    e("v_lshlrev_b32 %s, 6, %s" % (v(vPO), v(vPO)))
    slot(T[0], fbase, [(sTBW, 16)])
    addr(T[1], sLB, xoff, [(sTBW, 32768)])
    addr(T[2], sLB, stoff, [(sTBW, 4096)])
    e("v_add_u32 %s, %d, %s" % (v(vCA), CONST, v(vH16)))
    if qkv_phase:
        tr_rows(vW0, 64)
        e("v_add_u32 %s, 0x10000, %s" % (v(vW1), v(vW0)))
        e("s_barrier")
    else:
        tr_rows(vW2, 192)
        e("v_add_u32 %s, 0x10000, %s" % (v(vW0), v(vW2)))
        e("v_add_u32 %s, %d, %s" % (v(vW1), 21 * 3072, v(vW0)))

    def rd(ks, i):
        d = vWB + (ks % 3) * 12 + 4 * i
        if qkv_phase:
            base, off, sec = ((vW0, i * 32768 + ks * 1024) if i < 2 else (vW1, ks * 1024)) + (512,)
        else:
            base, off = (vW0, ks * 3072) if ks < 21 else (vW1, (ks - 21) * 3072) if ks < 30 else (vW2, 58 * 1024 + (ks - 30) * 3072)
            off, sec = off + 64 * i, 1536
        e("ds_read_b64_tr_b16 %s, %s offset:%d" % (v(d, 2), v(base), off))
        e("ds_read_b64_tr_b16 %s, %s offset:%d" % (v(d + 2, 2), v(base), off + sec))
    for ks in range(2):
        for i in range(3):
            rd(ks, i)
    poll(T[0])
    stamp()

    def item(n):
        if n < 32:
            load_frags(T[1], n, 1, lambda j: vA + 4 * j, n % 4 == 0)
        elif n < 36:
            e("buffer_load_dwordx4 %s, %s, %s, %s offen offset:%d sc1" % (v(vSTS + 4 * (n - 32), 4), v(vL16), sWS, T[2], 1024 * (n - 32)))
    for n in range(DEPTH):
        item(n)
    if qkv_phase:
        e("s_barrier")
    fine(ph)
    st = stats_code(not qkv_phase)
    per = -(-len(st) // 8)
    for ks in range(32):
        if ks in ((6, 14, 22) if qkv_phase else (6, 26)):
            e("s_barrier")
        e("s_waitcnt vmcnt(%d) lgkmcnt(%d)" % (0 if ks >= 29 else min(36, DEPTH + ks) - ks - 1, 6 if ks < 31 else 0))
        if ks in (0, 8, 16, 31):
            fine(ph)
        for i in range(3):
            w, a = vWB + (ks % 3) * 12 + 4 * i, vA + 4 * ks
            c = "0" if ks == 0 else vACC + 16 * i
            if qkv_phase and i == 2:
                mfma(vACC + 16 * i, a, w, c)
            else:
                mfma(vACC + 16 * i, w, a, c)
            if ks + 2 < 32:
                rd(ks + 2, i)
            if i == 0:
                item(ks + DEPTH)
            if ks >= 29:
                g = (ks - 29) * 3 + i
                for x in st[g * per:(g + 1) * per]:
                    e(x)
            if ks == 31 and i == 2:
                tail_code()
    e("s_barrier")
    stamp()


def center(acc, cs, p):
    e("v_pk_fma_f32 %s, %s, %s, %s op_sel_hi:[0,1,1] neg_lo:[1,0,0] neg_hi:[1,0,0]" %
      (v(acc + 2 * p, 2), v(vMU, 2), v(cs + 2 * p, 2), v(acc + 2 * p, 2)))


PKV = 116


def qkv():
    cm("================ QKV projection")
    hl, done = newlab("qkv_h"), newlab("qkv_done")
    e("s_cmp_ge_u32 %s, 4" % sW)
    e("s_cbranch_scc1 %s" % hl)

    def tail():
        for t in range(2):
            for i in range(4):
                e("ds_read_b128 %s, %s offset:%d" % (v(16 + 16 * t + 4 * i, 4), v(vCA), t * 128 + 32 * i))
        e("v_and_b32 v48, 31, v0")
        e("v_lshlrev_b32 v48, 2, v48")
        addr(T[0], None, STAT_L, [(sHW, 256)])
        e("v_add_u32 v49, %s, v48" % T[0])
        e("v_add_u32 v50, %s, %s" % (T[0], v(vH16)))
        e("v_add_u32 v48, %d, v48" % CSQ_L)
        e("ds_write_b32 v49, %s" % v(vMU))
        e("ds_write_b32 v49, %s offset:128" % v(vR))
        e("v_mul_f32 %s, %s, %s" % (v(vRQ), f32(0.25 * 1.4426950408889634), v(vR)))
    wide_compute_front(FX, XF, ST, True, lambda: None)
    tail()
    e("ds_read_b32 v52, v48 offset:256")
    for i in range(4):
        e("ds_read_b128 %s, v50 offset:%d" % (v(64 + 4 * i, 4), 32 * i))
    for i in range(4):
        e("ds_read_b128 %s, v50 offset:%d" % (v(80 + 4 * i, 4), 128 + 32 * i))
    addr(T[0], sLB, QF, [(sC, 2 * 8192), (sTBW, 1024)])
    e("s_add_u32 %s, %s, 8192" % (T[1], T[0]))
    addr(T[2], sLB, KVL, [(sC, 2 * 16384), (sTBW, 2048)])
    e("s_add_u32 %s, %s, 16384" % (T[3], T[2]))
    addr(T[4], None, KVF, [(sL, KVF_L), (sC, 2 * 131072), (sXCD, 16384), (sTBW, 2048)])
    e("s_add_u32 %s, %s, 0x20000" % (T[5], T[4]))
    e("v_and_b32 v51, 0x1ffff, %s" % v(vVOF))
    e("v_lshrrev_b32 v54, 17, %s" % v(vVOF))
    e("v_lshl_or_b32 v51, v54, 14, v51")
    P = PKV

    def row_tile(t):
        acc = vACC + 16 * t
        for p in range(8):
            center(acc, 16 + 16 * t, p)
        for p in range(8):
            e("v_pk_mul_f32 %s, %s, %s op_sel_hi:[1,0]" % (v(acc + 2 * p, 2), v(acc + 2 * p, 2), v(vRQ if t == 0 else vR, 2)))
        for p in range(8):
            e("v_cvt_pk_bf16_f32 %s, %s, %s" % (v(P + 8 * t + p), v(acc + 2 * p), v(acc + 2 * p + 1)))
    e("s_waitcnt lgkmcnt(11)")
    row_tile(1)
    cm("K and V get a write-through copy for the other dies and a copy for this die group")
    for hh in range(2):
        e("buffer_store_dwordx4 %s, %s, %s, %s offen sc1" % (v(P + 8 + 4 * hh, 4), v(vK16), sWS, T[4 + hh]))
    acc = vACC + 32
    e("s_waitcnt lgkmcnt(0)")
    for p in range(8):
        e("v_pk_fma_f32 %s, %s, v[52:53], %s op_sel_hi:[1,0,1] neg_lo:[1,0,0] neg_hi:[1,0,0]" %
          (v(acc + 2 * p, 2), v(64 + 2 * p, 2), v(acc + 2 * p, 2)))
    for p in range(8):
        e("v_pk_mul_f32 %s, %s, %s" % (v(acc + 2 * p, 2), v(acc + 2 * p, 2), v(80 + 2 * p, 2)))
    for p in range(8):
        e("v_cvt_pk_bf16_f32 %s, %s, %s" % (v(P + 16 + p), v(acc + 2 * p), v(acc + 2 * p + 1)))
    for t in range(2):
        e("buffer_store_dwordx4 %s, %s, %s, %s offen offset:%d sc1" % (v(P + 16 + 4 * t, 4), v(vVOF), sWS, T[4], 1024 + 256 * t))
    row_tile(0)
    lstores(["buffer_store_dwordx4 %s, %s, %s, %s offen" % (v(P + 8 + 4 * hh, 4), v(vK16), sWS, T[2 + hh]) for hh in range(2)] +
            ["buffer_store_dwordx4 %s, v51, %s, %s offen offset:%d" % (v(P + 16 + 4 * t, 4), sWS, T[2], 1024 + 256 * t) for t in range(2)] +
            ["buffer_store_dwordx4 %s, %s, %s, %s offen" % (v(P + 4 * hh, 4), v(vL16), sWS, T[hh]) for hh in range(2)])
    fine("q")
    slot(T[0], FQ, [(sC, 8), (sTBW, 1)])
    addr(T[1], None, FLG + FQG * 64, [(sL, FQG_L * 64), (sC, 4096), (sXCD, 512), (sTBW, 64)])
    flag(T[0], 0, local=True)
    flag(T[1], None)
    e("s_branch %s" % done)
    lab(hl)
    h1, lp = newlab("qh1"), newlab("qhl")
    e("s_cmp_lg_u32 %s, 0" % sL)
    e("s_cbranch_scc1 %s" % h1)
    wq_begin()
    dma_loop(2, wq_chunk)
    make_tag()
    colsum_begin(64, 0, 32768)
    e("s_mov_b32 %s, 0" % sIT)
    lab(lp)
    b1, b2, b3 = newlab("qw"), newlab("qw"), newlab("qw")
    e("s_waitcnt vmcnt(6)")
    e("s_cmp_lt_u32 %s, 3" % sIT)
    e("s_cbranch_scc1 %s" % b1)
    e("s_waitcnt vmcnt(0)")
    lab(b1)
    e("s_barrier")
    e("s_cmp_lg_u32 %s, 0" % sIT)
    e("s_cbranch_scc1 %s" % b2)
    e("s_barrier")
    lab(b2)
    e("s_cmp_ge_u32 %s, 2" % sIT)
    e("s_cbranch_scc1 %s" % b3)
    wq_chunk()
    lab(b3)
    colsum_steps(8, 1024, 512)
    e("v_add_u32 v42, 8192, v42")
    e("s_add_u32 %s, %s, 1" % (sIT, sIT))
    e("s_cmp_lt_u32 %s, 4" % sIT)
    e("s_cbranch_scc1 %s" % lp)
    colsum_end(CSQ_L)
    cm("park the weight tile in registers for the second layer pair")
    e("s_mul_i32 %s, %s, 24576" % (T[0], sHW))
    e("v_add_u32 v42, %s, %s" % (T[0], v(vL16)))
    for k in range(24):
        e("ds_read_b128 %s, v42 offset:%d" % (v(vSTASH + 4 * k, 4), 1024 * k))
    e("s_waitcnt lgkmcnt(0)")
    e("s_barrier")
    mode_poll()
    e("s_branch %s" % done)
    lab(h1)
    e("s_waitcnt lgkmcnt(0)")
    for _ in range(6):
        e("s_barrier")
    lab(done)
    stamp()


def attention():
    cm("================ attention: S^T = K Q^T, P = exp2(S^T), O^T += V^T P via sparse MFMA")
    S, O, Q, KB, VB, IDX, AD, VO, CN = (16, 32), 48, 64, (68, 72), (76, 84), 92, 93, 94, 100
    PF = 100
    KVG, LP, CH, GF, ISS = T[2], T[3], T[4], T[5], T[6]
    for i in range(16):
        e("v_mov_b32 %s, 0" % v(O + i))
        e("v_mov_b32 %s, 0x3f803f80" % v(VB[0] + i))
    for i in range(8):
        e("v_mov_b32 %s, 0" % v(S[1] + 8 + i))
    e("v_mov_b32 %s, 0xdddddddd" % v(IDX))
    e("v_mov_b32 %s, %s" % (v(AD), v(vL16)))
    voff_128(VO)
    voff_192(VO + 1)
    e("s_mov_b32 %s, 1" % ISS)
    a1 = newlab("a1")
    e("s_cmp_lt_u32 %s, 4" % sW)
    e("s_cbranch_scc1 %s" % a1)
    cm("waves 4-7 fetch Q and this die's K/V, and later the other dies' K/V")
    e("v_and_b32 %s, 7, v0" % v(vPO))
    e("v_lshlrev_b32 %s, 6, %s" % (v(vPO), v(vPO)))
    e("s_lshr_b32 %s, %s, 1" % (T[1], sHEAD))
    addr(GF, None, FLG + FQG * 64, [(sL, FQG_L * 64), (T[1], 4096)])
    slot(T[0], FQ, [(T[1], 8)])
    addr(T[1], sLB, QF, [(sHEAD, 8192), (sHW, 2048)])
    addr(KVG, None, KVF, [(sL, KVF_L), (sHEAD, 131072), (sHW, 4096)])
    addr(T[8], sLB, KVL, [(sHEAD, 16384), (sHW, 4096)])
    addr(T[7], None, QL, [(sHW, 2048)])
    e("s_lshl_b32 %s, %s, 12" % (LP, sHW))
    e("s_add_u32 %s, %s, 1" % (CH, sXCD))
    e("s_mov_b32 %s, 0" % ISS)
    poll(T[0])
    e("s_mov_b32 m0, %s" % LP)
    e("v_lshlrev_b32 %s, 6, v0" % v(vPO))
    for i in range(4):
        e("buffer_load_dwordx4 %s, %s, %s offen offset:%d sc1 lds" % (v(vL16), sWS, T[8], 1024 * i))
    e("s_mov_b32 m0, %s" % T[7])
    e("s_nop 0")
    for i in range(2):
        e("buffer_load_dwordx4 %s, %s, %s offen offset:%d sc1 lds" % (v(vL16), sWS, T[1], 1024 * i))

    def gflag_load():
        e("buffer_load_dwordx2 %s, %s, %s, %s offen sc1" % (v(vPD, 2), v(vPO), sWS, GF))

    def kv_issue():
        e("s_and_b32 %s, %s, 7" % (CH, CH))
        e("s_lshl_b32 %s, %s, 14" % (T[9], CH))
        e("s_add_u32 %s, %s, 16384" % (LP, LP))
        e("s_add_u32 %s, %s, %s" % (T[9], T[9], KVG))
        e("s_mov_b32 m0, %s" % LP)
        e("s_add_u32 %s, %s, 1" % (CH, CH))
        for i in range(4):
            e("buffer_load_dwordx4 %s, %s, %s offen offset:%d sc1 lds" % (v(vL16), sWS, T[9], 1024 * i))

    def kv_issue_helpers():
        sk, cw = newlab("kvs"), newlab("kvc")
        e("s_cmp_lt_u32 %s, 4" % sW)
        e("s_cbranch_scc1 %s" % cw)
        kv_issue()
        lab(sk)
        TAIL.extend([cw + ":", "    s_cmp_lt_u32 %s, 4" % sIT, "    s_cbranch_scc1 %s" % sk, "    s_mov_b64 exec, 0xffffffff",
                     "    buffer_load_dword %s, %s, %s, %s offen" % (v(PF + 2), v(PF + 1), sTMP, T[7]),
                     "    s_mov_b64 exec, -1", "    s_add_u32 %s, %s, %d" % (T[7], T[7], 16 * 2752),
                     "    s_branch %s" % sk])
    e("s_waitcnt vmcnt(0)")
    gflag_load()
    lab(a1)
    addr(T[0], None, QL, [(sW, 1024)])
    e("v_add_u32 v16, %s, %s" % (T[0], v(vL16)))
    e("s_barrier")
    stamp()

    def rdk(t):
        e("ds_read_b128 %s, %s offset:%d" % (v(KB[t & 1], 4), v(AD), t * 2048))

    def rdv(t):
        e("s_mov_b64 exec, %s" % sMV)
        e("ds_read_b128 %s, %s offset:%d" % (v(VB[t & 1], 4), v(AD), t * 2048 + 1024))
        e("ds_read_b128 %s, %s offset:%d" % (v(VB[t & 1] + 4, 4), v(AD), t * 2048 + 1280))
        e("s_mov_b64 exec, -1")

    def smf(vb, p):
        e("v_smfmac_f32_32x32x32_bf16 %s, %s, %s, %s" % (v(O, 16), v(vb, 4), v(p, 8), v(IDX)))

    def ex(cur, a, b):
        for i in range(a, b):
            e("v_exp_f32 %s, %s" % (v(S[cur] + i), v(S[cur] + i)))

    def tile(t, extra=None):
        cur, nxt = t & 1, (t + 1) & 1
        ex(cur, 0, 2)
        smf(VB[nxt] + 4, S[nxt] + 8)
        rdv(t + 1)
        ex(cur, 2, 6)
        e("s_waitcnt lgkmcnt(2)")
        mfma(S[nxt], KB[nxt], Q, "0")
        rdk(t + 2)
        if extra:
            extra()
        ex(cur, 6, 12)
        smf(VB[cur], S[cur])
        ex(cur, 12, 16)
    e("ds_read_b128 %s, v16" % v(Q, 4))
    rdk(0)
    rdv(0)
    rdk(1)
    e("s_waitcnt lgkmcnt(3)")
    mfma(S[0], KB[0], Q, "0")
    e("s_mov_b32 %s, 0" % sIT)
    e("s_mov_b32 %s, %d" % (sCNT, POLL_LIMIT))
    e("s_nop 7")
    cm("keys of this die first; the other dies' K/V are requested as soon as their flags arrive")
    loc, go, retry, issue, chk3 = (newlab(x) for x in ("loc", "go", "retry", "issue", "chk3"))
    lab(loc)
    e("s_cmp_eq_u32 %s, 0" % sIT)
    e("s_cbranch_scc1 %s" % go)
    e("s_cmp_lg_u32 %s, 0" % ISS)
    e("s_cbranch_scc1 %s" % chk3)
    lab(retry)
    e("s_waitcnt vmcnt(0)")
    e("v_cmp_eq_u64 vcc, %s, %s" % (v(vPD, 2), v(vFV, 2)))
    e("s_nop 1")
    e("s_cmp_eq_u64 vcc, -1")
    e("s_cbranch_scc1 %s" % issue)
    gflag_load()
    e("s_cmp_lt_u32 %s, 3" % sIT)
    e("s_cbranch_scc1 %s" % go)
    e("s_sub_u32 %s, %s, 1" % (sCNT, sCNT))
    e("s_cbranch_scc0 %s" % retry)
    e("s_endpgm")
    lab(issue)
    kv_issue()
    kv_issue()
    e("s_mov_b32 %s, 1" % ISS)
    lab(chk3)
    e("s_cmp_lt_u32 %s, 3" % sIT)
    e("s_cbranch_scc1 %s" % go)
    e("s_waitcnt vmcnt(4)")
    e("s_barrier")
    lab(go)
    tile(0)
    tile(1)
    e("v_add_u32 %s, 4096, %s" % (v(AD), v(AD)))
    e("s_add_u32 %s, %s, 1" % (sIT, sIT))
    e("s_cmp_lt_u32 %s, 4" % sIT)
    e("s_cbranch_scc1 %s" % loc)
    fine("a")
    cm("lines of the W1 rows that are loaded after attention (128-351, 480-511): half per workgroup of a pair")
    srd(sTMP, 20, 512 * 2752)
    e("s_lshr_b32 %s, %s, 4" % (T[0], sJ))
    addr(T[7], None, 128, [(T[0], 128), (sHW, 32)])
    e("s_cmp_eq_u32 %s, 352" % T[7])
    e("s_cselect_b32 %s, 480, %s" % (T[7], T[7]))
    e("s_mul_i32 %s, %s, 2752" % (T[7], T[7]))
    e("s_mul_i32 %s, %s, 192" % (T[0], sC))
    e("s_add_u32 %s, %s, %s" % (T[7], T[7], T[0]))
    e("v_lshrrev_b32 %s, 1, v0" % v(PF + 1))
    e("v_mul_u32_u24 %s, 2752, %s" % (v(PF + 1), v(PF + 1)))
    e("v_and_b32 %s, 1, v0" % v(PF + 2))
    e("v_lshl_add_u32 %s, %s, 7, %s" % (v(PF + 1), v(PF + 2), v(PF + 1)))
    e("s_mov_b32 %s, 1" % sIT)
    loop = newlab("att")
    L.append(".p2align 6")
    lab(loop)
    for t in range(8):
        if t % 2 == 0:
            e("s_setprio %d" % (3 - t // 2))
        if t == 6:
            e("s_waitcnt vmcnt(4)")
            e("s_barrier")
        tile(t, kv_issue_helpers if t == 1 else None)
    e("v_add_u32 %s, 16384, %s" % (v(AD), v(AD)))
    e("s_add_u32 %s, %s, 1" % (sIT, sIT))
    e("s_cmp_lt_u32 %s, 6" % sIT)
    e("s_cbranch_scc1 %s" % loop)
    fine("a")
    cm("last two chunks: stream Wo and part of W1 into the dead K/V space, one piece per tile")
    srd(sTMP, 16, 512 * 1024)
    addr(T[0], None, 0, [(sW, 65536), (sNB, 128)])
    e("s_lshl_b32 %s, %s, 13" % (T[1], sW))

    srd("s[64:67]", 24, 1376 * 1024)
    e("s_lshr_b32 %s, %s, 3" % (T[4], sJ))
    addr(T[2], None, 0, [(T[4], 344 * 1024), (sW, 43 * 1024), (sNB, 128)])
    e("v_lshlrev_b32 %s, 10, v0" % v(PF))

    def w2_lines(trip):
        cm("one line per lane: pull this workgroup's share of W2 into the die's L2")
        e("s_mov_b64 exec, 0x3fffff")
        e("buffer_load_dword %s, %s, s[64:67], %s offen" % (v(PF + 2), v(PF), T[2]))
        e("s_mov_b64 exec, -1")
        e("s_add_u32 %s, %s, %d" % (T[2], T[2], 22 * 1024))

    def wo_piece(t):
        e("s_add_u32 m0, %s, %d" % (T[1], 1024 * t))
        e("s_nop 0")
        dma1(VO, T[0])
        e("s_add_u32 %s, %s, 8192" % (T[0], T[0]))
        if t == 3:
            w2_lines(0)

    def w1_piece(t):
        if t == 1:
            w2_lines(1)
        if t >= 6:
            return
        e("s_add_u32 m0, %s, %d" % (T[1], (t // 3) * 22 * 3072 + (t % 3) * 1024))
        e("s_nop 0")
        dma1(VO + 1 + t % 3, T[0])
        if t == 2:
            e("s_add_u32 %s, %s, %d" % (T[0], T[0], 22 * 16 * 2752))
    for trip in range(2):
        for t in range(8):
            if t % 2 == 0:
                e("s_setprio %d" % (3 - t // 2))
            if t == 6 and trip == 0:
                e("s_waitcnt vmcnt(6)")
                e("s_barrier")
            tile(t + 8 * trip, (lambda t=t: wo_piece(t)) if trip == 0 else (lambda t=t: w1_piece(t)))
        if trip == 0:
            srd(sTMP, 20, 512 * 2752)
            addr(T[0], None, 0, [(sW, 16 * 2752), (sC, 192)])
            addr(T[1], None, 65536, [(sW, 3072)])
    smf(VB[1] + 4, S[1] + 8)
    e("s_setprio 0")
    e("s_waitcnt lgkmcnt(0)")
    e("s_nop 10")
    stamp()
    cm("Softmax guard. The loops above used 0 as a stand-in for the row max. That is exact while the row sum")
    cm("stays in [2^-64, 2^64] and the accumulators are finite; otherwise redo this tile with the true max.")
    fin, slow = newlab("att_fin"), newlab("att_slow")
    e("v_mul_f32 v16, 0, %s" % v(O))
    for i in range(1, 8):
        e("v_fma_f32 v16, %s, 0, v16" % v(O + i))
    e("v_cmp_le_f32 vcc, %s, %s" % (f32(2.0 ** (64 if FORCE_SLOW else -64)), v(O + 8)))
    e("s_mov_b64 %s, vcc" % sM0)
    e("v_cmp_ge_f32 vcc, %s, %s" % (f32(2.0 ** 64), v(O + 8)))
    e("s_and_b64 %s, %s, vcc" % (sM0, sM0))
    e("v_cmp_eq_f32 vcc, 0, v16")
    e("s_and_b64 %s, %s, vcc" % (sM0, sM0))
    e("s_cmp_eq_u64 %s, -1" % sM0)
    e("s_cbranch_scc0 %s" % slow)
    lab(fin)
    e("v_rcp_f32 v16, %s" % v(O + 8))
    addr(T[0], sLB, OF, [(sW, 32768), (sHEAD, 1024)])
    for p in range(4):
        e("v_pk_mul_f32 %s, %s, v[16:17] op_sel_hi:[1,0]" % (v(O + 2 * p, 2), v(O + 2 * p, 2)))
    for p in range(4):
        e("v_cvt_pk_bf16_f32 %s, %s, %s" % (v(20 + p), v(O + 2 * p), v(O + 2 * p + 1)))
    lstores(["buffer_store_dwordx4 v[20:23], %s, %s, %s offen" % (v(vL16), sWS, T[0])])
    slot(T[2], FA, [(sW, 32), (sHEAD, 1)])
    flag(T[2], 0, local=True)
    e("s_barrier")
    keep = L[:]
    del L[:]
    lab(slow)
    l1, l2 = newlab("slow1"), newlab("slow2")
    addr(T[2], None, KVF, [(sL, KVF_L), (sHEAD, 131072)])
    e("v_mov_b32 %s, 0xff800000" % v(CN))
    e("s_mov_b32 %s, 0" % sIT)
    lab(l1)
    e("buffer_load_dwordx4 %s, %s, %s, %s offen sc1" % (v(KB[0], 4), v(vL16), sWS, T[2]))
    e("s_waitcnt vmcnt(0)")
    mfma(S[0], KB[0], Q, "0")
    e("s_nop 15")
    for i in range(8):
        e("v_max3_f32 %s, %s, %s, %s" % (v(CN), v(S[0] + 2 * i), v(S[0] + 2 * i + 1), v(CN)))
    e("s_add_u32 %s, %s, 2048" % (T[2], T[2]))
    e("s_add_u32 %s, %s, 1" % (sIT, sIT))
    e("s_cmp_lt_u32 %s, 64" % sIT)
    e("s_cbranch_scc1 %s" % l1)
    e("v_mov_b32 %s, %s" % (v(CN + 1), v(CN)))
    e("s_nop 1")
    e("v_permlane32_swap_b32 %s, %s" % (v(CN), v(CN + 1)))
    e("s_nop 1")
    e("v_max_f32 %s, %s, %s" % (v(CN), v(CN), v(CN + 1)))
    e("v_sub_f32 %s, 0, %s" % (v(CN), v(CN)))
    for i in range(1, 16):
        e("v_mov_b32 %s, %s" % (v(CN + i), v(CN)))
    for i in range(16):
        e("v_mov_b32 %s, 0" % v(O + i))
    addr(T[2], None, KVF, [(sL, KVF_L), (sHEAD, 131072)])
    e("s_mov_b32 %s, 0" % sIT)
    lab(l2)
    e("buffer_load_dwordx4 %s, %s, %s, %s offen sc1" % (v(KB[0], 4), v(vL16), sWS, T[2]))
    e("s_mov_b64 exec, %s" % sMV)
    e("buffer_load_dwordx4 %s, %s, %s, %s offen offset:1024 sc1" % (v(VB[0], 4), v(vL16), sWS, T[2]))
    e("buffer_load_dwordx4 %s, %s, %s, %s offen offset:1280 sc1" % (v(VB[0] + 4, 4), v(vL16), sWS, T[2]))
    e("s_mov_b64 exec, -1")
    e("s_waitcnt vmcnt(0)")
    mfma(S[0], KB[0], Q, CN)
    e("s_nop 15")
    for i in range(16):
        e("v_exp_f32 %s, %s" % (v(S[0] + i), v(S[0] + i)))
    e("s_nop 1")
    smf(VB[0], S[0])
    smf(VB[0] + 4, S[0] + 8)
    e("s_nop 15")
    e("s_add_u32 %s, %s, 2048" % (T[2], T[2]))
    e("s_add_u32 %s, %s, 1" % (sIT, sIT))
    e("s_cmp_lt_u32 %s, 64" % sIT)
    e("s_cbranch_scc1 %s" % l2)
    e("s_branch %s" % fin)
    TAIL.extend(L)
    L[:] = keep
    stamp()


def n512(kind):
    wo = kind == "wo"
    ph = "o" if wo else "g"
    cm("================ %s" % ("output projection + residual" if wo else "MLP down projection + residual"))
    NS, J = (16, 16) if wo else (43, 39)
    AK, AS = vACC, vACC + 16
    hl, done = newlab("n_h"), newlab("n_done")
    e("s_cmp_ge_u32 %s, 4" % sW)
    e("s_cbranch_scc1 %s" % hl)
    if not wo:
        srd(sTMP, 26, 1024)
        e("v_lshrrev_b32 %s, 1, %s" % (v(vPO), v(vH16)))
        e("s_lshl_b32 %s, %s, 6" % (T[0], sNT))
        for i in range(4):
            e("buffer_load_dwordx2 %s, %s, %s, %s offen offset:%d" % (v(176 + 2 * i, 2), v(vPO), sTMP, T[0], 16 * i))
    unpack(AK, vRES, 8)
    tr_rows(vW0, 128)
    e("v_bfe_u32 %s, v0, 3, 1" % v(vPD))
    e("v_xor_b32 %s, %s, %s" % (v(vPD), sKH, v(vPD)))
    e("v_lshl_or_b32 %s, %s, 6, %s" % (v(vW0), v(vPD), v(vW0)))
    e("s_mul_i32 %s, %s, %d" % (T[0], sKH, J * 2048))
    e("v_add_u32 %s, %s, %s" % (v(vW0), T[0], v(vW0)))
    e("v_xor_b32 %s, 64, %s" % (v(vW1), v(vW0)))
    if not wo:
        e("v_add_u32 %s, 0x10000, %s" % (v(vW2), v(vW0)))
        e("v_add_u32 %s, 0x10000, %s" % (v(vW3), v(vW1)))
    if wo:
        e("v_and_b32 %s, 15, v0" % v(vPO))
        slot(T[0], FA, [(sTBN, 32), (sKH, 16)])
        addr(T[1], sLB, OF, [(sTBN, 32768), (sKH, 16384)])
    else:
        e("v_and_b32 %s, 7, v0" % v(vPO))
        slot(T[0], FH, [(sTBN, 16), (sKH, 7)])
        addr(T[1], sLB, HF, [(sTBN, HSTR), (sKH, 43 * 1024)])
    e("v_lshlrev_b32 %s, 6, %s" % (v(vPO), v(vPO)))
    if not wo:
        e("s_waitcnt vmcnt(0)")
        unpack(AS, 176, 8)
        for p in range(8):
            e("v_pk_add_f32 %s, %s, %s" % (v(AK + 2 * p, 2), v(AK + 2 * p, 2), v(AS + 2 * p, 2)))
        e("s_barrier")

    def rd(j, i):
        jj = j % J
        base, off = ((vW0, vW1)[i], jj * 2048) if jj < 32 else ((vW2, vW3)[i], (jj - 32) * 2048)
        d = vWB + (j % 3) * 8 + 4 * i
        e("ds_read_b64_tr_b16 %s, %s offset:%d" % (v(d, 2), v(base), off))
        e("ds_read_b64_tr_b16 %s, %s offset:%d" % (v(d + 2, 2), v(base), off + 1024))
    for j in range(2):
        for i in range(2):
            rd(j, i)
    poll(T[0])
    stamp()
    areg = lambda j: vA + 4 * (j % 32)
    load_frags(T[1], 0, DEPTH, areg)
    fine(ph)
    for j in range(NS):
        issued = min(NS, DEPTH + j)
        if not wo and j == J - 2:
            e("s_barrier")
        e("s_waitcnt vmcnt(%d) lgkmcnt(%d)" % (issued - j - 1, 4 if j + 1 < NS else 0))
        if j in ((0, 4, 8, 15) if wo else (0, 11, 22, 42)):
            fine(ph)
        for i in range(2):
            acc = AK + 16 * i
            mfma(acc, vWB + (j % 3) * 8 + 4 * i, areg(j), "0" if (j == 0 and i == 1) else acc)
            if j + 2 < NS:
                rd(j + 2, i)
            if i == 0 and DEPTH + j < NS:
                load_frags(T[1], DEPTH + j, 1, areg, False)
        if j == (8 if wo else NS - J - 1):
            e("s_barrier")
    e("s_and_b32 %s, %s, 1" % (T[2], sW))
    if wo:
        addr(T[0], None, 0, [(T[2], 4096), (sKH, 32768)])
        e("s_xor_b32 %s, %s, 32768" % (T[1], T[0]))
    else:
        addr(T[0], None, 98304, [(T[2], 4096), (sKH, 8192)])
        e("s_xor_b32 %s, %s, 8192" % (T[1], T[0]))
    e("v_add_u32 v16, %s, %s" % (T[0], v(vL16)))
    e("v_add_u32 v17, %s, %s" % (T[1], v(vL16)))
    e("s_nop 3")
    for i in range(4):
        e("ds_write_b128 v16, %s offset:%d" % (v(AS + 4 * i, 4), 1024 * i))
    e("s_waitcnt lgkmcnt(0)")
    e("s_barrier")
    stamp()
    for i in range(4):
        e("ds_read_b128 %s, v17 offset:%d" % (v(AS + 4 * i, 4), 1024 * i))
    for i in range(4):
        e("s_waitcnt lgkmcnt(%d)" % (3 - i))
        for p in (2 * i, 2 * i + 1):
            e("v_pk_add_f32 %s, %s, %s" % (v(AK + 2 * p, 2), v(AK + 2 * p, 2), v(AS + 2 * p, 2)))
    for p in range(8):
        e("v_cvt_pk_bf16_f32 %s, %s, %s" % (v(vRES + p), v(AK + 2 * p), v(AK + 2 * p + 1)))
    if wo:
        tile_stats(AK, 20)
        publish_x(sLB, X1F, ST1, 0, FO, 20)
    else:
        last = newlab("last")
        e("s_cmp_lg_u32 %s, 0" % sL)
        e("s_cbranch_scc1 %s" % last)
        tile_stats(AK, 20)
        publish_x(sLB, XF, ST, LFL_L * 64, FX, 20)
        e("s_branch %s" % done)
        lab(last)
        srd(sTMP, 28, 2048 * 1024)
        e("v_and_b32 v16, 31, v0")
        e("v_lshlrev_b32 v16, 10, v16")
        e("v_add_u32 v16, v16, %s" % v(vH16))
        addr(T[0], None, 0, [(sXCD, 262144), (sTBN, 32768), (sNT, 64)])
        for g in range(2):
            e("v_permlane32_swap_b32 %s, %s" % (v(vRES + 4 * g), v(vRES + 4 * g + 2)))
            e("v_permlane32_swap_b32 %s, %s" % (v(vRES + 4 * g + 1), v(vRES + 4 * g + 3)))
        for g in range(2):
            e("buffer_store_dwordx4 %s, v16, %s, %s offen offset:%d" % (v(vRES + 4 * g, 4), sTMP, T[0], 32 * g))
    e("s_branch %s" % done)
    lab(hl)
    if wo:
        voff_192(44)
        e("s_lshl_b32 %s, %s, 2" % (T[3], sHW))
        e("s_min_u32 %s, %s, 10" % (T[3], T[3]))
        addr(T[0], None, 8 * 16 * 2752, [(T[3], 16 * 2752), (sC, 192)])
        addr(T[1], None, 65536 + 8 * 3072, [(T[3], 3072)])
        e("s_barrier")
        dma_w1(2)
        e("s_barrier")
        dma_w1(2)
        e("s_and_b32 %s, %s, 1" % (T[3], sHW))
        addr(T[0], None, 30 * 16 * 2752, [(T[3], 16 * 2752), (sC, 192)])
        addr(T[1], None, 58 * 1024, [(T[3], 3072)])
        dma_w1(1)
    else:
        e("s_waitcnt vmcnt(0)")
        e("s_barrier")
        e("s_lshr_b32 %s, %s, 1" % (T[3], sHW))
        e("s_and_b32 %s, %s, 1" % (T[4], sHW))
        addr(T[0], None, 78 * 8192, [(T[3], 86 * 8192), (T[4], 4 * 8192), (sNB, 128)])
        addr(T[1], None, 0, [(T[3], 78 * 1024), (T[4], 4096)])
        e("s_barrier")
        for k in range(4):
            e("s_add_u32 m0, %s, %d" % (T[1], 1024 * k))
            e("s_nop 0")
            dma1(40, T[0])
            e("s_add_u32 %s, %s, 8192" % (T[0], T[0]))
        e("s_waitcnt vmcnt(0)")
        e("s_barrier")
        e("s_mul_i32 %s, %s, 24576" % (T[0], sHW))
        e("v_add_u32 v42, %s, %s" % (T[0], v(vL16)))
        e("s_barrier")
        e("s_cmp_lg_u32 %s, 0" % sL)
        e("s_cbranch_scc1 %s" % done)
        for k in range(24):
            e("ds_write_b128 v42, %s offset:%d" % (v(vSTASH + 4 * k, 4), 1024 * k))
    lab(done)
    stamp()


def ffn1():
    cm("================ MLP up projection + GELU")
    hl, done = newlab("f1_h"), newlab("f1_done")
    e("s_cmp_ge_u32 %s, 4" % sW)
    e("s_cbranch_scc1 %s" % hl)
    wide_compute_front(FO, X1F, ST1, False, lambda: None)
    for t in range(3):
        for i in range(4):
            e("ds_read_b128 %s, %s offset:%d" % (v(16 + 32 * t + 4 * i, 4), v(vCA), 512 + t * 128 + 32 * i))
        for i in range(4):
            e("ds_read_b128 %s, %s offset:%d" % (v(32 + 32 * t + 4 * i, 4), v(vCA), 1024 + t * 128 + 32 * i))
        if t == 1:
            e("s_waitcnt lgkmcnt(8)")
    c0 = -2.0 * 1.4426950408889634 * 0.7978845608028654
    e("v_mov_b32 v112, %s" % f32(c0))
    e("v_mov_b32 v113, %s" % f32(c0 * 0.044715))
    e("v_mov_b32 v114, 1.0")
    addr(T[0], sLB, HF, [(sTBW, HSTR), (sC, 6144)])
    e("s_add_u32 %s, %s, 4096" % (T[1], T[0]))
    Z, P = 120, vWB
    for t in range(3):
        acc, cs, b1 = vACC + 16 * t, 16 + 32 * t, 32 + 32 * t
        if t > 0:
            e("s_waitcnt lgkmcnt(%d)" % (8 if t == 1 else 0))
        for p in range(8):
            center(acc, cs, p)
        for p in range(8):
            e("v_pk_fma_f32 %s, %s, %s, %s op_sel_hi:[1,0,1]" %
              (v(acc + 2 * p, 2), v(acc + 2 * p, 2), v(vR, 2), v(b1 + 2 * p, 2)))
        for p in range(8):
            e("v_pk_mul_f32 %s, %s, %s" % (v(Z + 2 * p, 2), v(acc + 2 * p, 2), v(acc + 2 * p, 2)))
        for p in range(8):
            e("v_pk_fma_f32 %s, %s, v[112:113], v[112:113] op_sel:[0,1,0] op_sel_hi:[1,1,0]" %
              (v(Z + 2 * p, 2), v(Z + 2 * p, 2)))
        for p in range(8):
            e("v_pk_mul_f32 %s, %s, %s" % (v(Z + 2 * p, 2), v(Z + 2 * p, 2), v(acc + 2 * p, 2)))
        for i in range(16):
            e("v_exp_f32 %s, %s" % (v(Z + i), v(Z + i)))
        for p in range(8):
            e("v_pk_add_f32 %s, %s, v[114:115] op_sel_hi:[1,0]" % (v(Z + 2 * p, 2), v(Z + 2 * p, 2)))
        for i in range(16):
            e("v_rcp_f32 %s, %s" % (v(Z + i), v(Z + i)))
        for p in range(8):
            e("v_pk_mul_f32 %s, %s, %s" % (v(acc + 2 * p, 2), v(acc + 2 * p, 2), v(Z + 2 * p, 2)))
        for p in range(8):
            e("v_cvt_pk_bf16_f32 %s, %s, %s" % (v(P + 8 * t + p), v(acc + 2 * p), v(acc + 2 * p + 1)))
        lstores(["buffer_store_dwordx4 %s, %s, %s, %s offen offset:%d" %
                 (v(P + 8 * t + 4 * hh, 4), v(vL16), sWS, T[(2 * t + hh) // 4], ((2 * t + hh) % 4) * 1024) for hh in range(2)])
        if t != 1:
            fine("f")
    slot(T[0], FH, [(sTBW, 16), (sC, 1)])
    flag(T[0], 0, local=True)
    e("s_branch %s" % done)
    lab(hl)
    h1, h2, lp = newlab("fh1"), newlab("fh2"), newlab("fhl")
    voff_128(40)
    e("s_waitcnt vmcnt(3)")
    e("s_barrier")
    e("s_cmp_lg_u32 %s, 0" % sL)
    e("s_cbranch_scc1 %s" % h1)
    cm("first layer pair: column sums of W1 and the bias, kept in LDS")
    srd(sTMP, 22, 2752)
    e("v_and_b32 %s, 31, v0" % v(vPO))
    e("v_lshlrev_b32 %s, 1, %s" % (v(vPO), v(vPO)))
    addr(T[0], None, 0, [(sHW, 64), (sC, 192)])
    e("buffer_load_ushort v47, %s, %s, %s offen" % (v(vPO), sTMP, T[0]))
    colsum_begin(192, 65536, 64)
    e("s_mov_b32 %s, 0" % sIT)
    lab(lp)
    colsum_steps(6, 3072, 1536)
    e("v_add_u32 v42, %d, v42" % (6 * 3072))
    e("s_add_u32 %s, %s, 1" % (sIT, sIT))
    e("s_cmp_lt_u32 %s, 5" % sIT)
    e("s_cbranch_scc1 %s" % lp)
    e("v_subrev_u32 v42, %d, v42" % (65536 + 30 * 3072 - 58 * 1024))
    lab(h1)
    srd(sTMP, 24, 1376 * 1024)
    e("s_waitcnt vmcnt(0)")
    e("s_barrier")
    e("s_cmp_lg_u32 %s, 0" % sL)
    e("s_cbranch_scc1 %s" % h2)
    colsum_steps(2, 3072, 1536)
    colsum_end(CS1_L)
    e("v_lshlrev_b32 v47, 16, v47")
    e("ds_write_b32 v41, v47 offset:%d" % (B1_L - CS1_L))
    lab(h2)
    dma_w2(0, 0, 6, None)
    e("s_waitcnt lgkmcnt(0)")
    e("s_barrier")
    dma_w2(86, 78 * 1024, 10)
    dma_w2(22, 22 * 1024, 14)
    dma_w2(86 + 38, (78 + 38) * 1024, 10)
    lab(done)
    stamp()


def epilogue():
    e("s_add_u32 %s, %s, 1" % (sL, sL))
    e("s_add_u32 %s, %s, %d" % (sFB, sFB, LFL_L * 64))
    e("s_cmp_lt_u32 %s, 2" % sL)
    e("s_cbranch_scc1 L_layer")
    if PROFILE:
        e("s_memrealtime s[22:23]")
        e("s_waitcnt lgkmcnt(0)")
        stamp("s23")
        e("s_lshl_b32 %s, s2, 3" % T[0])
        e("s_add_u32 %s, %s, %s" % (T[0], T[0], sW))
        e("s_lshl_b32 %s, %s, 8" % (T[0], T[0]))
        e("s_add_u32 %s, %s, 0x%x" % (T[0], T[0], TSB))
        e("s_mov_b64 exec, 1")
        for i, r in enumerate([68, 18, 19] + list(range(STAMP0, STAMP0 + 30)) + [22, 23, 0, 1]):
            e("v_mov_b32 v16, s%d" % r)
            e("buffer_store_dword v16, off, %s, %s offset:%d" % (sWS, T[0], 4 * i))
        e("s_mov_b64 exec, 0xff")
        e("v_lshlrev_b32 v16, 2, v0")
        e("buffer_store_dword v5, v16, %s, %s offen offset:148" % (sWS, T[0]))
        e("s_mov_b64 exec, -1")
    cm("advance the hand-off tag for the next launch")
    e("s_or_b32 %s, s2, %s" % (T[0], sW))
    e("s_cmp_lg_u32 %s, 0" % T[0])
    e("s_cbranch_scc1 L_end")
    e("s_mov_b64 exec, 1")
    e("buffer_store_dword %s, off, %s, 0" % (v(vFV), sWS))
    lab("L_end")
    e("s_endpgm")
    L.extend(TAIL)


HEADER = open(f"cdna_kernels/{NAME}.s.ref").read().split("; Override launch")[0]


def main():
    prologue()
    p0()
    lab("L_layer")
    qkv()
    attention()
    n512("wo")
    ffn1()
    n512("f2")
    epilogue()
    k = NAME + "_kernel"
    out = HEADER
    out += "; @launch grid=(256,1,1) block=(512,1,1) lds=%d\n" % LDS_BYTES
    out += '.amdgcn_target "amdgcn-amd-amdhsa--gfx950"\n.text\n.globl %s\n.p2align 8\n.type %s,@function\n%s:\n' % (k, k, k)
    out += "\n".join(L) + "\n"
    out += """.section .rodata,"a"
.p2align 6
.amdhsa_kernel %s
  .amdhsa_next_free_vgpr 256
  .amdhsa_next_free_sgpr 102
  .amdhsa_accum_offset 256
  .amdhsa_group_segment_fixed_size 0
  .amdhsa_kernarg_size 88
  .amdhsa_user_sgpr_count 2
  .amdhsa_user_sgpr_kernarg_segment_ptr 1
  .amdhsa_system_sgpr_workgroup_id_x 1
.end_amdhsa_kernel
""" % k
    open(OUT, "w").write(out)


main()
```

```python
import struct
import sys

NAME = "interleave_layers__softmax_full_mha__mixer_channel_mlp__prompt"
PROFILE = "--prof" in sys.argv
CLK = "s_memrealtime" if "--rt" in sys.argv else "s_memtime"
FORCE_SLOW = "--slow" in sys.argv
FORCE_GLOBAL = "--global" in sys.argv
OUT = [a for a in sys.argv[1:] if not a.startswith("--")]
OUT = OUT[0] if OUT else f"cdna_kernels/{NAME}.s"


def f32(x):
    return "0x%08x" % struct.unpack("<I", struct.pack("<f", x))[0]


WS_SIZE = 0x10000000
FLG = 0x100000
FQG, FQG_L, FI = 0, 1024, 2048
KVF, KVF_L = 0x200000, 0x400000
ARENA, ARENA_X = 0x1000000, 0x400000
XF, X1F, OF, QF, KVL, HF, ST, ST1, LFL = 0, 0x40000, 0x80000, 0xC0000, 0x100000, 0x180000, 0x240000, 0x248000, 0x250000
FX, FQ, FA, FO, FH, LFL_L = 0, 128, 256, 512, 640, 768
HSTR = 96 * 1024
TSB = 0x4000000
DEPTH = 10
PACE = 5
RED = 140 * 1024
CONST = 156 * 1024
CSQ_L, CS1_L, B1_L, STAT_L = CONST, CONST + 512, CONST + 1024, CONST + 1536
LDS_BYTES = 160 * 1024
sWS, sTMP = "s[4:7]", "s[8:11]"
sW, sNONCE, sL, sLB, sFB = "s34", "s35", "s36", "s37", "s38"
sXCD, sJ, sTBW, sC, sTBN, sNB, sKH, sNT, sHEAD, sQB = ("s%d" % i for i in range(39, 49))
sHW = "s49"
T = ["s%d" % i for i in range(50, 60)]
sCNT, sIT = "s60", "s61"
sMV = "s[62:63]"
sM0, sM1 = "s[64:65]", "s[66:67]"
sMODE = "s3"
STAMP0 = 72
vLANE, vL16, vFV, vPO, vT5, vPD = 0, 1, 2, 4, 5, 6
vRES = 8
vA, vACC, vWB, vSTS = 16, 144, 192, 228
vW0, vW1, vMU, vW2, vR, vW3, vRQ, vCA, vTR, vK16, vVOF, vH16 = 244, 245, 246, 247, 248, 249, 250, 251, 252, 253, 254, 255
vSTASH = 128
QL = 128 * 1024
POLL_LIMIT = 1 << 16

L = []
TAIL = []
uid = [0]
nstamp = [0]


def e(s):
    L.append("    " + s)


def lab(n):
    L.append(n + ":")


def cm(s):
    L.append("    ; " + s)


def v(i, n=1):
    return "v%d" % i if n == 1 else "v[%d:%d]" % (i, i + n - 1)


def newlab(p):
    uid[0] += 1
    return "L_%s_%d" % (p, uid[0])


def stamp(fixed=None):
    if not PROFILE:
        return
    e(CLK + " s[70:71]")
    e("s_waitcnt lgkmcnt(0)")
    if fixed:
        e("s_mov_b32 %s, s70" % fixed)
        return
    e("s_mul_i32 s69, %s, 15" % sL)
    e("s_add_u32 m0, s69, %d" % nstamp[0])
    e("s_nop 1")
    e("s_movreld_b32 s%d, s70" % STAMP0)
    nstamp[0] += 1
    assert nstamp[0] <= 15


FINE = [a.split("=")[1] for a in sys.argv if a.startswith("--fine=")]
FINE = FINE[0] if FINE else None
nfine = [0]


def fine(phase):
    if not PROFILE or FINE != phase:
        return
    e(CLK + " s[70:71]")
    e("s_waitcnt lgkmcnt(0)")
    sk = newlab("fs")
    e("s_cmp_lg_u32 %s, %d" % (sL, 0 if "--l0" in sys.argv else 1))
    e("s_cbranch_scc1 %s" % sk)
    e("v_writelane_b32 v5, s70, %d" % nfine[0])
    lab(sk)
    nfine[0] += 1


def srd(dst, lo, size):
    b = int(dst[2:dst.index(":")])
    e("s_mov_b32 s%d, s%d" % (b, lo))
    e("s_and_b32 s%d, s%d, 0xffff" % (b + 1, lo + 1))
    e("s_mov_b32 s%d, %s" % (b + 2, size if isinstance(size, str) else hex(size)))
    e("s_mov_b32 s%d, 0x20000" % (b + 3))


def poll(soff):
    a, b = newlab("poll"), newlab("pok")
    e("s_mov_b32 %s, %d" % (sCNT, POLL_LIMIT))
    lab(a)
    e("buffer_load_dwordx2 %s, %s, %s, %s offen sc1" % (v(vPD, 2), v(vPO), sWS, soff))
    e("s_waitcnt vmcnt(0)")
    e("v_cmp_eq_u64 vcc, %s, %s" % (v(vPD, 2), v(vFV, 2)))
    e("s_nop 1")
    e("s_cmp_eq_u64 vcc, -1")
    e("s_cbranch_scc1 %s" % b)
    e("s_sub_u32 %s, %s, 1" % (sCNT, sCNT))
    e("s_cbranch_scc0 %s" % a)
    e("s_endpgm")
    lab(b)


def lstores(lines):
    g, d = newlab("wt"), newlab("wtd")
    e("s_cmp_eq_u32 %s, 0" % sMODE)
    e("s_cbranch_scc1 %s" % g)
    for x in lines:
        e(x)
    lab(d)
    TAIL.append(g + ":")
    for x in lines:
        TAIL.append("    " + x + (" sc1" if x.startswith("buffer_store") else ""))
    TAIL.append("    s_branch " + d)


def flag(soff, n=0, local=False):
    if n is not None:
        e("s_waitcnt vmcnt(%d)" % n)
    e("s_mov_b64 exec, 1")
    x = "buffer_store_dwordx2 %s, off, %s, %s" % (v(vFV, 2), sWS, soff)
    if local:
        lstores([x])
    else:
        e(x + " sc1")
    e("s_mov_b64 exec, -1")


def mode_poll(first=False):
    a, b, glob, out = newlab("mp"), newlab("mpok"), newlab("mpg"), newlab("mpo")
    e("v_and_b32 %s, 31, v0" % v(vPD))
    e("v_lshlrev_b32 %s, 9, %s" % (v(vPD), v(vPD)))
    addr(T[3], None, FLG + FI * 64, [(sXCD, 64)])
    e("v_add_u32 %s, %s, %s" % (v(vPD), T[3], v(vPD)))
    if first:
        e("v_add_u32 %s, %s, %s" % (v(vPD + 1), T[0], v(vPO)))
        e("v_cmp_gt_u32 vcc, 32, v0")
        e("s_mov_b32 %s, %s" % (T[5], T[0]))
        e("v_cndmask_b32 v60, %s, %s, vcc" % (v(vPD), v(vPD + 1)))
    else:
        e("v_mov_b32 v60, %s" % v(vPD))
    e("s_getreg_b32 %s, hwreg(HW_REG_XCC_ID, 0, 4)" % T[3])
    e("s_mov_b32 %s, %d" % (sCNT, POLL_LIMIT))
    e("s_mov_b32 %s, 1" % sMODE)
    lab(a)
    e("buffer_load_dwordx2 %s, v60, %s, 0 offen sc1" % (v(vPD, 2), sWS))
    e("s_waitcnt vmcnt(0)")
    e("v_xor_b32 %s, %s, %s" % (v(vPD + 1), v(vPD + 1), v(vFV + 1)))
    e("v_cmp_eq_u32 %s, %s, %s" % (sM0, v(vPD), v(vFV)))
    e("v_cmp_eq_u32 %s, %s, %s" % (sM1, T[3], v(vPD + 1)))
    e("v_cmp_gt_u32 vcc, 16, %s" % v(vPD + 1))
    e("s_nop 1")
    e("s_and_b64 %s, %s, %s" % (sM1, sM1, sM0))
    e("s_and_b64 vcc, vcc, %s" % sM0)
    if not FORCE_GLOBAL:
        e("s_cmp_eq_u64 %s, -1" % sM1)
        e("s_cbranch_scc1 %s" % out)
    e("s_cmp_eq_u32 vcc_hi, -1")
    e("s_cbranch_scc0 %s" % b)
    if not FORCE_GLOBAL:
        e("s_cmp_eq_u32 s67, -1")
        e("s_cbranch_scc0 %s" % glob)
    else:
        e("s_branch %s" % glob)
    lab(b)
    e("s_sub_u32 %s, %s, 1" % (sCNT, sCNT))
    e("s_cbranch_scc0 %s" % a)
    e("s_endpgm")
    lab(glob)
    e("s_mov_b32 %s, 0" % sMODE)
    if first:
        e("s_mov_b32 %s, %s" % (T[6], T[1]))
        e("s_mov_b32 %s, %s" % (T[7], T[2]))
        e("v_xor_b32 %s, 31, %s" % (v(vFV + 1), v(vFV + 1)))
        publish_x(sLB, XF, ST, 0, FX, 84)
        poll(T[5])
        e("v_xor_b32 %s, 31, %s" % (v(vFV + 1), v(vFV + 1)))
        e("s_mov_b32 %s, %s" % (T[1], T[6]))
        e("s_mov_b32 %s, %s" % (T[2], T[7]))
    lab(out)


def slot(dst, base, terms):
    e("s_add_u32 %s, %s, %d" % (dst, sFB, base * 64))
    for r, m in terms:
        e("s_mul_i32 %s, %s, %d" % (T[9], r, m * 64))
        e("s_add_u32 %s, %s, %s" % (dst, dst, T[9]))


def addr(dst, base_reg, const, terms):
    if base_reg is None:
        e("s_mov_b32 %s, 0x%x" % (dst, const))
    else:
        e("s_add_u32 %s, %s, 0x%x" % (dst, base_reg, const))
    for r, m in terms:
        e("s_mul_i32 %s, %s, %d" % (T[9], r, m))
        e("s_add_u32 %s, %s, %s" % (dst, dst, T[9]))


def load_frags(sg, first, n, reg_of, rebase=True):
    for j in range(first, first + n):
        if j % 4 == 0 or (j == first and rebase):
            e("s_add_u32 %s, %s, %d" % (T[8], sg, (j // 4) * 4096))
        e("buffer_load_dwordx4 %s, %s, %s, %s offen offset:%d sc1" %
          (v(reg_of(j), 4), v(vL16), sWS, T[8], (j % 4) * 1024))


def mfma(d, a, b, c):
    e("v_mfma_f32_32x32x16_bf16 %s, %s, %s, %s" % (v(d, 16), v(a, 4), v(b, 4), c if isinstance(c, str) else v(c, 16)))


def half_sum(a, b):
    e("s_nop 1")
    e("v_permlane32_swap_b32 %s, %s" % (v(a), v(b)))
    e("s_nop 1")
    e("v_add_f32 %s, %s, %s" % (v(a), v(a), v(b)))


def tile_stats(y, t):
    e("v_pk_add_f32 %s, %s, %s" % (v(t, 2), v(y, 2), v(y + 2, 2)))
    e("v_pk_mul_f32 %s, %s, %s" % (v(t + 2, 2), v(y, 2), v(y, 2)))
    for p in range(1, 8):
        if p > 1:
            e("v_pk_add_f32 %s, %s, %s" % (v(t, 2), v(t, 2), v(y + 2 * p, 2)))
        e("v_pk_fma_f32 %s, %s, %s, %s" % (v(t + 2, 2), v(y + 2 * p, 2), v(y + 2 * p, 2), v(t + 2, 2)))
    e("v_add_f32 %s, %s, %s" % (v(t), v(t), v(t + 1)))
    e("v_add_f32 %s, %s, %s" % (v(t + 2), v(t + 2), v(t + 3)))
    half_sum(t, t + 2)


def unpack(dst, src, n):
    for i in range(n):
        e("v_lshlrev_b32 %s, 16, %s" % (v(dst + 2 * i), v(src + i)))
        e("v_and_b32 %s, 0xffff0000, %s" % (v(dst + 2 * i + 1), v(src + i)))


def publish_x(lb, xoff, stoff, fbase_add, fbase, ystat, between=None):
    addr(T[0], lb, xoff, [(sTBN, 32768), (sNT, 2048)])
    e("s_lshr_b32 %s, %s, 2" % (T[2], sNT))
    e("s_and_b32 %s, %s, 3" % (T[8], sNT))
    addr(T[1], lb, stoff, [(sTBN, 4096), (T[2], 1024), (T[8], 4)])
    lstores(["buffer_store_dwordx4 %s, %s, %s, %s offen" % (v(vRES, 4), v(vL16), sWS, T[0]),
             "buffer_store_dwordx4 %s, %s, %s, %s offen offset:1024" % (v(vRES + 4, 4), v(vL16), sWS, T[0]),
             "buffer_store_dword %s, %s, %s, %s offen" % (v(ystat), v(vL16), sWS, T[1])])
    slot(T[2], fbase, [(sTBN, 16), (sNT, 1)])
    if fbase_add:
        e("s_add_u32 %s, %s, %d" % (T[2], T[2], fbase_add))
    if between:
        between()
    flag(T[2], local=True)


def prologue():
    e("s_cmp_ge_u32 s2, 256")
    e("s_cbranch_scc1 L_end")
    e("s_load_dwordx16 s[12:27], s[0:1], 0")
    e("s_load_dwordx4 s[28:31], s[0:1], 64")
    e("s_load_dwordx2 s[32:33], s[0:1], 80")
    e("v_lshrrev_b32 v1, 6, v0")
    e("v_and_b32 v0, 63, v0")
    e("v_readfirstlane_b32 %s, v1" % sW)
    e("v_lshlrev_b32 %s, 4, v0" % v(vL16))
    cm("column part of a transposing-read address: (lane&3)*8 + ((lane>>4)&1)*32")
    e("v_and_b32 %s, 3, v0" % v(vTR))
    e("v_lshlrev_b32 %s, 3, %s" % (v(vTR), v(vTR)))
    e("v_bfe_u32 %s, v0, 4, 1" % v(vT5))
    e("v_lshl_or_b32 %s, %s, 5, %s" % (v(vTR), v(vT5), v(vTR)))
    e("v_lshrrev_b32 %s, 5, v0" % v(vT5))
    e("v_lshlrev_b32 %s, 4, %s" % (v(vH16), v(vT5)))
    cm("K fragments are stored with token bits 2 and 3 swapped (matches the sparse-MFMA key order)")
    e("v_and_b32 %s, 0x33, v0" % v(vK16))
    e("v_and_b32 %s, 4, v0" % v(vPO))
    e("v_lshl_or_b32 %s, %s, 1, %s" % (v(vK16), v(vPO), v(vK16)))
    e("v_and_b32 %s, 8, v0" % v(vPO))
    e("v_lshrrev_b32 %s, 1, %s" % (v(vPO), v(vPO)))
    e("v_or_b32 %s, %s, %s" % (v(vK16), v(vK16), v(vPO)))
    e("v_lshlrev_b32 %s, 4, %s" % (v(vK16), v(vK16)))
    cm("V store offset: head parity*128K + half*512 + d*16")
    e("v_and_b32 %s, 15, v0" % v(vVOF))
    e("v_lshlrev_b32 %s, 4, %s" % (v(vVOF), v(vVOF)))
    e("v_lshl_or_b32 %s, %s, 9, %s" % (v(vVOF), v(vT5), v(vVOF)))
    e("v_bfe_u32 %s, v0, 4, 1" % v(vPO))
    e("v_lshl_or_b32 %s, %s, 17, %s" % (v(vVOF), v(vPO), v(vVOF)))
    e("s_and_b32 %s, s2, 7" % sXCD)
    e("s_lshr_b32 %s, s2, 3" % sJ)
    e("s_and_b32 %s, %s, 3" % (sHW, sW))
    e("s_and_b32 %s, %s, 15" % (sC, sJ))
    e("s_lshr_b32 %s, %s, 4" % (T[0], sJ))
    e("s_lshl_b32 %s, %s, 2" % (T[0], T[0]))
    e("s_add_u32 %s, %s, %s" % (sTBW, T[0], sHW))
    e("s_and_b32 %s, %s, 7" % (sNB, sJ))
    e("s_lshr_b32 %s, %s, 3" % (T[0], sJ))
    e("s_mov_b32 %s, %s" % (sHEAD, sJ))
    e("s_lshl_b32 %s, %s, 1" % (sTBN, T[0]))
    e("s_and_b32 %s, %s, 1" % (T[0], sW))
    e("s_add_u32 %s, %s, %s" % (sTBN, sTBN, T[0]))
    e("s_lshr_b32 %s, %s, 1" % (sKH, sHW))
    e("s_lshl_b32 %s, %s, 1" % (sNT, sNB))
    e("s_add_u32 %s, %s, %s" % (sNT, sNT, sKH))
    e("s_mov_b32 s62, 0xffff")
    e("s_mov_b32 s63, 0xffff")
    e("s_mov_b32 %s, 0" % sL)
    addr(sLB, None, ARENA, [(sXCD, ARENA_X)])
    e("s_add_u32 %s, %s, 0x%x" % (sFB, sLB, LFL))
    e("s_waitcnt lgkmcnt(0)")
    srd(sWS, 32, WS_SIZE)
    srd(sTMP, 12, 2048 * 1024)
    cm("hand-off tag: ws[0] only tells this launch's flags from an earlier launch's")
    e("s_load_dword %s, s[32:33], 0" % sNONCE)
    if PROFILE:
        e("s_memrealtime s[70:71]")
        e("s_waitcnt lgkmcnt(0)")
        e("s_mov_b32 s68, s70")
        stamp("s18")


def make_tag():
    e("s_waitcnt lgkmcnt(0)")
    e("s_add_u32 %s, %s, 16" % (sNONCE, sNONCE))
    e("v_mov_b32 %s, %s" % (v(vFV), sNONCE))
    e("v_not_b32 %s, %s" % (v(vFV + 1), v(vFV)))


def p0():
    cm("================ P0 (waves 0-3): x tile -> residual registers, fragments and row statistics")
    p0end, noid, nox = newlab("p0end"), newlab("noid"), newlab("nox")
    e("s_cmp_ge_u32 %s, 4" % sW)
    e("s_cbranch_scc1 %s" % nox)
    e("v_and_b32 %s, 31, v0" % v(vPO))
    e("v_lshlrev_b32 %s, 10, %s" % (v(vPO), v(vPO)))
    e("v_lshl_or_b32 %s, %s, 3, %s" % (v(vPO), v(vT5), v(vPO)))
    addr(T[0], None, 0, [(sXCD, 262144), (sTBN, 32768), (sNT, 64)])
    for i in range(4):
        e("buffer_load_dwordx2 %s, %s, %s, %s offen offset:%d" % (v(vRES + 2 * i, 2), v(vPO), sTMP, T[0], 16 * i))
    lab(nox)
    cm("one line per lane: the 32 workgroups of a group pull Wqkv into their L2")
    srd(sTMP, 14, 512 * 3072)
    e("v_lshlrev_b32 v17, 7, v0")
    addr(T[0], None, 0, [(sJ, 384 * 128), (sW, 48 * 128)])
    e("buffer_load_dword v16, v17, %s, %s offen" % (sTMP, T[0]))
    e("s_cmp_ge_u32 %s, 4" % sW)
    e("s_cbranch_scc1 %s" % p0end)
    cm("waves 1-3: first touch of Wo / W1 / W2; wave 0: report which die this workgroup runs on")
    idw = newlab("idw")
    e("s_cmp_eq_u32 %s, 0" % sW)
    e("s_cbranch_scc1 %s" % idw)
    e("s_mov_b32 s10, %d" % (1376 * 1024))
    e("s_mov_b32 %s, %d" % (T[0], 43 * 128))
    e("s_cmp_eq_u32 %s, 2" % sW)
    e("s_cselect_b64 s[8:9], s[20:21], s[24:25]")
    e("s_cmp_eq_u32 %s, 1" % sW)
    e("s_cselect_b64 s[8:9], s[16:17], s[8:9]")
    e("s_cselect_b32 s10, %d, s10" % (512 * 1024))
    e("s_cselect_b32 %s, %d, %s" % (T[0], 16 * 128, T[0]))
    e("s_and_b32 s9, s9, 0xffff")
    e("s_mul_i32 %s, %s, s2" % (T[0], T[0]))
    e("buffer_load_dword v18, v17, %s, %s offen" % (sTMP, T[0]))
    e("s_branch %s" % noid)
    lab(idw)
    lab(noid)
    stamp("s0")
    make_tag()
    e("s_getreg_b32 %s, hwreg(HW_REG_XCC_ID, 0, 4)" % T[7])
    e("s_mov_b32 %s, 1" % sMODE)
    e("v_xor_b32 %s, %s, %s" % (v(vFV + 1), T[7], v(vFV + 1)))
    nid = newlab("nid")
    e("s_cmp_lg_u32 %s, 0" % sW)
    e("s_cbranch_scc1 %s" % nid)
    e("s_lshl_b32 %s, s2, 6" % T[8])
    e("s_add_u32 %s, %s, 0x%x" % (T[8], T[8], FLG + FI * 64))
    flag(T[8], None)
    lab(nid)
    e("s_waitcnt vmcnt(2)")
    stamp("s1")
    unpack(66, vRES, 8)
    tile_stats(66, 84)
    publish_x(sLB, XF, ST, 0, FX, 84)
    e("s_nop 0")
    e("v_not_b32 %s, %s" % (v(vFV + 1), v(vFV)))
    lab(p0end)
    stamp("s19")


def tr_rows(dst, rowbytes):
    e("v_bfe_u32 %s, v0, 2, 2" % v(dst))
    e("v_lshrrev_b32 %s, 2, %s" % (v(vPD), v(vH16)))
    e("v_add_u32 %s, %s, %s" % (v(dst), v(dst), v(vPD)))
    e("v_mul_u32_u24 %s, %d, %s" % (v(dst), rowbytes, v(dst)))
    e("v_add_u32 %s, %s, %s" % (v(dst), v(dst), v(vTR)))


def voff_128(dst):
    e("v_lshrrev_b32 %s, 3, v0" % v(dst))
    e("v_lshlrev_b32 %s, 10, %s" % (v(dst), v(dst)))
    e("v_and_b32 %s, 7, v0" % v(vPD))
    e("v_lshrrev_b32 %s, 2, v0" % v(vPD + 1))
    e("v_and_b32 %s, 4, %s" % (v(vPD + 1), v(vPD + 1)))
    e("v_xor_b32 %s, %s, %s" % (v(vPD), v(vPD), v(vPD + 1)))
    e("v_lshl_or_b32 %s, %s, 4, %s" % (v(dst), v(vPD), v(dst)))


def voff_192(dst):
    for i in range(3):
        e("v_add_u32 %s, %d, v0" % (v(vPD), 64 * i))
        e("v_mul_u32_u24 %s, 5462, %s" % (v(vPD + 1), v(vPD)))
        e("v_lshrrev_b32 %s, 16, %s" % (v(vPD + 1), v(vPD + 1)))
        e("v_mul_u32_u24 %s, %d, %s" % (v(dst + i), 2752 - 192, v(vPD + 1)))
        e("v_lshl_add_u32 %s, %s, 4, %s" % (v(dst + i), v(vPD), v(dst + i)))


def dma1(vo, sg):
    e("buffer_load_dwordx4 %s, %s, %s offen lds" % (v(vo), sTMP, sg))


def dma_loop(n, body):
    lp = newlab("dl")
    e("s_mov_b32 %s, %d" % (T[2], n))
    lab(lp)
    body()
    e("s_sub_u32 %s, %s, 1" % (T[2], T[2]))
    e("s_cmp_lg_u32 %s, 0" % T[2])
    e("s_cbranch_scc1 %s" % lp)


def dma_w2(piece0, lds0, n, pace=PACE):
    addr(T[0], None, piece0 * 8192, [(sHW, n * 8192), (sNB, 128)])
    addr(T[1], None, lds0, [(sHW, n * 1024)])

    def body():
        e("s_mov_b32 m0, %s" % T[1])
        e("s_add_u32 %s, %s, 1024" % (T[1], T[1]))
        dma1(40, T[0])
        e("s_add_u32 %s, %s, 8192" % (T[0], T[0]))
        if pace:
            e("s_waitcnt vmcnt(%d)" % pace)
    dma_loop(n, body)


def dma_w1(n):
    def body():
        for i in range(3):
            e("s_add_u32 m0, %s, %d" % (T[1], 1024 * i))
            e("s_nop 0")
            dma1(44 + i, T[0])
        e("s_add_u32 %s, %s, %d" % (T[0], T[0], 16 * 2752))
        e("s_add_u32 %s, %s, 3072" % (T[1], T[1]))
    dma_loop(n, body)


def wq_begin():
    srd(sTMP, 14, 512 * 3072)
    e("v_lshrrev_b32 v40, 2, v0")
    e("v_mul_u32_u24 v40, 3072, v40")
    e("v_and_b32 v41, 3, v0")
    e("v_lshl_or_b32 v40, v41, 4, v40")
    addr(T[3], None, 0, [(sHW, 2 * 49152), (sC, 64)])
    e("s_lshl_b32 %s, %s, 11" % (T[4], sHW))


def wq_chunk():
    for dk in range(2):
        for i in range(3):
            e("s_add_u32 m0, %s, %d" % (T[4], i * 31744 + dk * 1024))
            e("s_nop 0")
            e("buffer_load_dwordx4 v40, %s, %s offen offset:%d lds" % (sTMP, T[3], i * 1024))
        e("s_add_u32 %s, %s, %d" % (T[3], T[3], 49152 if dk == 0 else 7 * 49152))
    e("s_add_u32 %s, %s, 8192" % (T[4], T[4]))


def colsum_begin(rowbytes, step, tilestep):
    tr_rows(43, rowbytes)
    for r in range(50, 56):
        e("v_mov_b32 v%d, 0" % r)
    e("s_mul_i32 %s, %s, %d" % (T[6], sHW, tilestep))
    e("s_mov_b32 %s, %d" % (T[5], step))
    e("s_cmp_eq_u32 %s, 3" % sHW)
    e("s_cselect_b32 %s, %d, %s" % (T[5], tilestep, T[5]))
    e("s_cselect_b32 %s, %d, %s" % (T[6], 3 * step, T[6]))


def colsum_quads(n, step, second, last=None):
    lp = newlab("cs")
    e("s_add_u32 %s, %s, %s" % (T[0], T[0], T[6]))
    if last:
        e("s_cmp_eq_u32 %s, 3" % sHW)
        e("s_cselect_b32 %s, %d, %s" % (T[0], last[1], T[0]))
    e("v_add_u32 v42, %s, v43" % T[0])
    e("v_add_u32 v48, %s, v42" % T[5])
    e("v_add_u32 v56, %s, v48" % T[5])
    if last:
        sk = newlab("cs")
        e("s_cbranch_scc1 %s" % sk)
        e("s_add_u32 %s, %s, %d" % (T[0], T[6], last[0]))
        e("v_add_u32 v56, %s, v43" % T[0])
        lab(sk)
    e("s_mov_b32 %s, %d" % (T[0], n))
    e("s_mov_b32 %s, 0xffff0000" % T[1])
    lab(lp)
    for i, a in enumerate((42, 48, 56)):
        for h in range(2):
            e("ds_read_b64_tr_b16 %s, v%d offset:%d" % (v(16 + 4 * i + 2 * h, 2), a, h * second))
        e("v_add_u32 v%d, %d, v%d" % (a, 4 * step, a))
    for i in range(3):
        e("s_waitcnt lgkmcnt(%d)" % (4 - 2 * i))
        for r in range(16 + 4 * i, 20 + 4 * i):
            e("v_lshlrev_b32 v49, 16, %s" % v(r))
            e("v_and_b32 %s, %s, %s" % (v(r), T[1], v(r)))
            e("v_add_f32 v%d, v%d, v49" % (50 + 2 * i, 50 + 2 * i))
            e("v_add_f32 v%d, v%d, %s" % (51 + 2 * i, 51 + 2 * i, v(r)))
    e("s_sub_u32 %s, %s, 1" % (T[0], T[0]))
    e("s_cmp_lg_u32 %s, 0" % T[0])
    e("s_cbranch_scc1 %s" % lp)


def colsum_end(dst_l):
    w3, dn = newlab("ce"), newlab("ce")
    e("v_and_b32 v41, 31, v0")
    e("v_lshlrev_b32 v41, 2, v41")
    e("v_add_u32 v41, %d, v41" % dst_l)
    for i in range(3):
        e("v_add_f32 v%d, v%d, v%d" % (50 + 2 * i, 50 + 2 * i, 51 + 2 * i))
        e("v_mov_b32 v%d, v%d" % (51 + 2 * i, 50 + 2 * i))
        half_sum(50 + 2 * i, 51 + 2 * i)
    e("s_mov_b64 exec, 0xffffffff")
    e("s_cmp_eq_u32 %s, 3" % sHW)
    e("s_cbranch_scc1 %s" % w3)
    e("v_add_f32 v50, v50, v52")
    e("s_lshl_b32 %s, %s, 7" % (T[0], sHW))
    e("v_add_f32 v50, v50, v54")
    e("v_add_u32 v42, %s, v41" % T[0])
    e("ds_add_f32 v42, v50")
    e("s_branch %s" % dn)
    lab(w3)
    for i in range(3):
        e("ds_add_f32 v41, v%d offset:%d" % (50 + 2 * i, 128 * i))
    lab(dn)
    e("s_mov_b64 exec, -1")


def stats_code(second_ln):
    c = []
    for k in range(1, 16):
        c.append("v_add_f32 %s, %s, %s" % (v(vSTS), v(vSTS), v(vSTS + k)))
    c += ["v_mov_b32 %s, %s" % (v(vSTS + 1), v(vSTS)), "s_nop 1",
          "v_permlane32_swap_b32 %s, %s" % (v(vSTS), v(vSTS + 1)), "s_nop 1",
          "v_mul_f32 %s, %s, %s" % (v(vMU), f32(1.0 / 512), v(vSTS)),
          "v_mul_f32 %s, %s, %s" % (v(vSTS + 1), f32(1.0 / 512), v(vSTS + 1)),
          "v_fma_f32 %s, -%s, %s, %s" % (v(vSTS + 1), v(vMU), v(vMU), v(vSTS + 1)),
          "v_max_f32 %s, 0, %s" % (v(vSTS + 1), v(vSTS + 1)),
          "v_add_f32 %s, %s, %s" % (v(vSTS + 2), f32(1e-5), v(vSTS + 1)),
          "v_rsq_f32 %s, %s" % (v(vR), v(vSTS + 2)), "s_nop 0"]
    if second_ln:
        c += ["v_mul_f32 %s, %s, %s" % (v(vSTS + 2), v(vR), v(vR)),
              "v_mul_f32 %s, %s, %s" % (v(vSTS + 2), v(vSTS + 2), v(vSTS + 1)),
              "v_add_f32 %s, %s, %s" % (v(vSTS + 2), f32(1e-5), v(vSTS + 2)),
              "v_rsq_f32 %s, %s" % (v(vSTS + 2), v(vSTS + 2)), "s_nop 0",
              "v_mul_f32 %s, %s, %s" % (v(vR), v(vR), v(vSTS + 2))]
    return c


def wide_compute_front(fbase, xoff, stoff, qkv_phase, tail_code):
    ph = "q" if qkv_phase else "f"
    e("v_and_b32 %s, 15, v0" % v(vPO))
    e("v_lshlrev_b32 %s, 6, %s" % (v(vPO), v(vPO)))
    slot(T[0], fbase, [(sTBW, 16)])
    addr(T[1], sLB, xoff, [(sTBW, 32768)])
    addr(T[2], sLB, stoff, [(sTBW, 4096)])
    e("v_add_u32 %s, %d, %s" % (v(vCA), CONST, v(vH16)))
    if qkv_phase:
        tr_rows(vW0, 64)
        e("v_add_u32 %s, 0x10000, %s" % (v(vW1), v(vW0)))
        e("s_barrier")
    else:
        tr_rows(vW2, 192)
        e("v_add_u32 %s, 0x10000, %s" % (v(vW0), v(vW2)))
        e("v_add_u32 %s, %d, %s" % (v(vW1), 21 * 3072, v(vW0)))

    def rd(ks, i):
        d = vWB + (ks % 3) * 12 + 4 * i
        if qkv_phase:
            base, off, sec = ((vW0, i * 32768 + ks * 1024) if i < 2 else (vW1, ks * 1024)) + (512,)
        else:
            base, off = (vW0, ks * 3072) if ks < 21 else (vW1, (ks - 21) * 3072) if ks < 30 else (vW2, 58 * 1024 + (ks - 30) * 3072)
            off, sec = off + 64 * i, 1536
        e("ds_read_b64_tr_b16 %s, %s offset:%d" % (v(d, 2), v(base), off))
        e("ds_read_b64_tr_b16 %s, %s offset:%d" % (v(d + 2, 2), v(base), off + sec))
    for ks in range(2):
        for i in range(3):
            rd(ks, i)
    if qkv_phase:
        l1, l2 = newlab("fx"), newlab("fx")
        e("s_cmp_lg_u32 %s, 0" % sL)
        e("s_cbranch_scc1 %s" % l1)
        mode_poll(True)
        e("s_branch %s" % l2)
        lab(l1)
        poll(T[0])
        lab(l2)
    else:
        poll(T[0])
    stamp()

    def item(n):
        if n < 32:
            load_frags(T[1], n, 1, lambda j: vA + 4 * j, n % 4 == 0)
        elif n < 36:
            e("buffer_load_dwordx4 %s, %s, %s, %s offen offset:%d sc1" % (v(vSTS + 4 * (n - 32), 4), v(vL16), sWS, T[2], 1024 * (n - 32)))
    for n in range(DEPTH):
        item(n)
    if qkv_phase:
        e("s_barrier")
    fine(ph)
    st = stats_code(not qkv_phase)
    per = -(-len(st) // 8)
    for ks in range(32):
        if ks in ((6, 14, 22, 30) if qkv_phase else (6, 26)):
            e("s_barrier")
        e("s_waitcnt vmcnt(%d) lgkmcnt(%d)" % (0 if ks >= 29 else min(36, DEPTH + ks) - ks - 1, 6 if ks < 31 else 0))
        if ks in (0, 8, 16, 31):
            fine(ph)
        for i in range(3):
            w, a = vWB + (ks % 3) * 12 + 4 * i, vA + 4 * ks
            c = "0" if ks == 0 else vACC + 16 * i
            if qkv_phase and i == 2:
                mfma(vACC + 16 * i, a, w, c)
            else:
                mfma(vACC + 16 * i, w, a, c)
            if ks + 2 < 32:
                rd(ks + 2, i)
            if i == 0:
                item(ks + DEPTH)
            if ks >= 29:
                g = (ks - 29) * 3 + i
                for x in st[g * per:(g + 1) * per]:
                    e(x)
            if ks == 31:
                tail_code(i)
    e("s_barrier")
    stamp()


def center(acc, cs, p):
    e("v_pk_fma_f32 %s, %s, %s, %s op_sel_hi:[0,1,1] neg_lo:[1,0,0] neg_hi:[1,0,0]" %
      (v(acc + 2 * p, 2), v(vMU, 2), v(cs + 2 * p, 2), v(acc + 2 * p, 2)))


PKV = 116


def qkv():
    cm("================ QKV projection")
    hl, done = newlab("qkv_h"), newlab("qkv_done")
    e("s_cmp_ge_u32 %s, 4" % sW)
    e("s_cbranch_scc1 %s" % hl)

    def tail(m):
        if m < 2:
            for i in range(4):
                e("ds_read_b128 %s, %s offset:%d" % (v(32 - 16 * m + 4 * i, 4), v(vCA), (1 - m) * 128 + 32 * i))
            return
        e("v_and_b32 v48, 31, v0")
        e("v_lshlrev_b32 v48, 2, v48")
        addr(T[0], None, STAT_L, [(sHW, 256)])
        e("v_add_u32 v49, %s, v48" % T[0])
        e("v_add_u32 v50, %s, %s" % (T[0], v(vH16)))
        e("v_add_u32 v48, %d, v48" % CSQ_L)
        e("ds_write_b32 v49, %s" % v(vMU))
        e("ds_write_b32 v49, %s offset:128" % v(vR))
        e("v_mul_f32 %s, %s, %s" % (v(vRQ), f32(0.25 * 1.4426950408889634), v(vR)))
    wide_compute_front(FX, XF, ST, True, tail)
    e("ds_read_b32 v52, v48 offset:256")
    for i in range(4):
        e("ds_read_b128 %s, v50 offset:%d" % (v(64 + 4 * i, 4), 32 * i))
    for i in range(4):
        e("ds_read_b128 %s, v50 offset:%d" % (v(80 + 4 * i, 4), 128 + 32 * i))
    addr(T[0], sLB, QF, [(sC, 2 * 8192), (sTBW, 1024)])
    e("s_add_u32 %s, %s, 8192" % (T[1], T[0]))
    addr(T[2], sLB, KVL, [(sC, 2 * 16384), (sTBW, 2048)])
    e("s_add_u32 %s, %s, 16384" % (T[3], T[2]))
    addr(T[4], None, KVF, [(sL, KVF_L), (sC, 2 * 131072), (sXCD, 16384), (sTBW, 2048)])
    e("s_add_u32 %s, %s, 0x20000" % (T[5], T[4]))
    e("v_and_b32 v51, 0x1ffff, %s" % v(vVOF))
    e("v_lshrrev_b32 v54, 17, %s" % v(vVOF))
    e("v_lshl_or_b32 v51, v54, 14, v51")
    P = PKV

    def row_tile(t):
        acc = vACC + 16 * t
        for p in range(8):
            center(acc, 16 + 16 * t, p)
        for p in range(8):
            e("v_pk_mul_f32 %s, %s, %s op_sel_hi:[1,0]" % (v(acc + 2 * p, 2), v(acc + 2 * p, 2), v(vRQ if t == 0 else vR, 2)))
        for p in range(8):
            e("v_cvt_pk_bf16_f32 %s, %s, %s" % (v(P + 8 * t + p), v(acc + 2 * p), v(acc + 2 * p + 1)))
    e("s_waitcnt lgkmcnt(15)")
    row_tile(1)
    cm("K and V get a write-through copy for the other dies and a copy for this die group")
    for hh in range(2):
        e("buffer_store_dwordx4 %s, %s, %s, %s offen sc1" % (v(P + 8 + 4 * hh, 4), v(vK16), sWS, T[4 + hh]))
    acc = vACC + 32
    e("s_waitcnt lgkmcnt(0)")
    for p in range(8):
        e("v_pk_fma_f32 %s, %s, v[52:53], %s op_sel_hi:[1,0,1] neg_lo:[1,0,0] neg_hi:[1,0,0]" %
          (v(acc + 2 * p, 2), v(64 + 2 * p, 2), v(acc + 2 * p, 2)))
    for p in range(8):
        e("v_pk_mul_f32 %s, %s, %s" % (v(acc + 2 * p, 2), v(acc + 2 * p, 2), v(80 + 2 * p, 2)))
    for p in range(8):
        e("v_cvt_pk_bf16_f32 %s, %s, %s" % (v(P + 16 + p), v(acc + 2 * p), v(acc + 2 * p + 1)))
    for t in range(2):
        e("buffer_store_dwordx4 %s, %s, %s, %s offen offset:%d sc1" % (v(P + 16 + 4 * t, 4), v(vVOF), sWS, T[4], 1024 + 256 * t))
    row_tile(0)
    lstores(["buffer_store_dwordx4 %s, %s, %s, %s offen" % (v(P + 8 + 4 * hh, 4), v(vK16), sWS, T[2 + hh]) for hh in range(2)] +
            ["buffer_store_dwordx4 %s, v51, %s, %s offen offset:%d" % (v(P + 16 + 4 * t, 4), sWS, T[2], 1024 + 256 * t) for t in range(2)] +
            ["buffer_store_dwordx4 %s, %s, %s, %s offen" % (v(P + 4 * hh, 4), v(vL16), sWS, T[hh]) for hh in range(2)])
    fine("q")
    slot(T[0], FQ, [(sC, 8), (sTBW, 1)])
    addr(T[1], None, FLG + FQG * 64, [(sL, FQG_L * 64), (sC, 4096), (sXCD, 512), (sTBW, 64)])
    flag(T[0], 0, local=True)
    flag(T[1], None)
    e("s_branch %s" % done)
    lab(hl)
    h1, lp = newlab("qh1"), newlab("qhl")
    e("s_cmp_lg_u32 %s, 0" % sL)
    e("s_cbranch_scc1 %s" % h1)
    wq_begin()
    dma_loop(2, wq_chunk)
    make_tag()
    e("v_lshlrev_b32 v42, 4, v0")
    e("v_add_u32 v42, %d, v42" % CONST)
    colsum_begin(64, 1024, 32768)
    e("ds_write_b128 v42, v[50:53]")
    e("s_mov_b32 %s, 0" % sIT)
    lab(lp)
    b1, b2, b3 = newlab("qw"), newlab("qw"), newlab("qw")
    e("s_waitcnt vmcnt(6) lgkmcnt(0)")
    e("s_cmp_lt_u32 %s, 3" % sIT)
    e("s_cbranch_scc1 %s" % b1)
    e("s_waitcnt vmcnt(0)")
    lab(b1)
    e("s_barrier")
    e("s_cmp_lg_u32 %s, 0" % sIT)
    e("s_cbranch_scc1 %s" % b2)
    e("s_barrier")
    lab(b2)
    e("s_cmp_ge_u32 %s, 2" % sIT)
    e("s_cbranch_scc1 %s" % b3)
    wq_chunk()
    lab(b3)
    e("s_lshl_b32 %s, %s, 13" % (T[0], sIT))
    colsum_quads(2, 1024, 512)
    e("s_add_u32 %s, %s, 1" % (sIT, sIT))
    e("s_cmp_lt_u32 %s, 4" % sIT)
    e("s_cbranch_scc1 %s" % lp)
    colsum_end(CSQ_L)
    e("s_waitcnt lgkmcnt(0)")
    e("s_barrier")
    cm("park the weight tile in registers for the second layer pair")
    e("s_mul_i32 %s, %s, 24576" % (T[0], sHW))
    e("v_add_u32 v42, %s, %s" % (T[0], v(vL16)))
    for k in range(24):
        e("ds_read_b128 %s, v42 offset:%d" % (v(vSTASH + 4 * k, 4), 1024 * k))
    e("s_waitcnt lgkmcnt(0)")
    e("s_barrier")
    mode_poll()
    e("s_branch %s" % done)
    lab(h1)
    e("s_waitcnt lgkmcnt(0)")
    for _ in range(7):
        e("s_barrier")
    lab(done)
    stamp()


def attention():
    cm("================ attention: S^T = K Q^T, P = exp2(S^T), O^T += V^T P via sparse MFMA")
    S, O, Q, KB, VB, IDX, AD, VO, CN = (16, 32), 48, 64, (68, 72), (76, 84), 92, 93, 94, 100
    PF = 100
    KVG, LP, CH, GF, ISS = T[2], T[3], T[4], T[5], T[6]
    for i in range(16):
        e("v_mov_b32 %s, 0" % v(O + i))
        e("v_mov_b32 %s, 0x3f803f80" % v(VB[0] + i))
    for i in range(8):
        e("v_mov_b32 %s, 0" % v(S[1] + 8 + i))
    e("v_mov_b32 %s, 0xdddddddd" % v(IDX))
    e("v_mov_b32 %s, %s" % (v(AD), v(vL16)))
    voff_128(VO)
    voff_192(VO + 1)
    e("s_mov_b32 %s, 1" % ISS)
    a1 = newlab("a1")
    e("s_cmp_lt_u32 %s, 4" % sW)
    e("s_cbranch_scc1 %s" % a1)
    cm("waves 4-7 fetch Q and this die's K/V, and later the other dies' K/V")
    e("v_and_b32 %s, 7, v0" % v(vPO))
    e("v_lshlrev_b32 %s, 6, %s" % (v(vPO), v(vPO)))
    e("s_lshr_b32 %s, %s, 1" % (T[1], sHEAD))
    addr(GF, None, FLG + FQG * 64, [(sL, FQG_L * 64), (T[1], 4096)])
    slot(T[0], FQ, [(T[1], 8)])
    addr(T[1], sLB, QF, [(sHEAD, 8192), (sHW, 2048)])
    addr(KVG, None, KVF, [(sL, KVF_L), (sHEAD, 131072), (sHW, 4096)])
    addr(T[8], sLB, KVL, [(sHEAD, 16384), (sHW, 4096)])
    addr(T[7], None, QL, [(sHW, 2048)])
    e("s_lshl_b32 %s, %s, 12" % (LP, sHW))
    e("s_add_u32 %s, %s, 1" % (CH, sXCD))
    e("s_mov_b32 %s, 0" % ISS)
    poll(T[0])
    e("s_mov_b32 m0, %s" % LP)
    e("v_lshlrev_b32 %s, 6, v0" % v(vPO))
    for i in range(4):
        e("buffer_load_dwordx4 %s, %s, %s offen offset:%d sc1 lds" % (v(vL16), sWS, T[8], 1024 * i))
    e("s_mov_b32 m0, %s" % T[7])
    e("s_nop 0")
    for i in range(2):
        e("buffer_load_dwordx4 %s, %s, %s offen offset:%d sc1 lds" % (v(vL16), sWS, T[1], 1024 * i))

    def gflag_load():
        e("buffer_load_dwordx2 %s, %s, %s, %s offen sc1" % (v(vPD, 2), v(vPO), sWS, GF))

    def kv_issue():
        e("s_and_b32 %s, %s, 7" % (CH, CH))
        e("s_lshl_b32 %s, %s, 14" % (T[9], CH))
        e("s_add_u32 %s, %s, 16384" % (LP, LP))
        e("s_add_u32 %s, %s, %s" % (T[9], T[9], KVG))
        e("s_mov_b32 m0, %s" % LP)
        e("s_add_u32 %s, %s, 1" % (CH, CH))
        for i in range(4):
            e("buffer_load_dwordx4 %s, %s, %s offen offset:%d sc1 lds" % (v(vL16), sWS, T[9], 1024 * i))

    def kv_issue_helpers():
        sk, cw = newlab("kvs"), newlab("kvc")
        e("s_cmp_lt_u32 %s, 4" % sW)
        e("s_cbranch_scc1 %s" % cw)
        kv_issue()
        lab(sk)
        TAIL.extend([cw + ":", "    s_cmp_lt_u32 %s, 4" % sIT, "    s_cbranch_scc1 %s" % sk, "    s_mov_b64 exec, 0xffffffff",
                     "    buffer_load_dword %s, %s, %s, %s offen" % (v(PF + 2), v(PF + 1), sTMP, T[7]),
                     "    s_mov_b64 exec, -1", "    s_add_u32 %s, %s, %d" % (T[7], T[7], 16 * 2752),
                     "    s_branch %s" % sk])
    e("s_waitcnt vmcnt(0)")
    gflag_load()
    lab(a1)
    addr(T[0], None, QL, [(sW, 1024)])
    e("v_add_u32 v16, %s, %s" % (T[0], v(vL16)))
    e("s_barrier")
    stamp()

    def rdk(t):
        e("ds_read_b128 %s, %s offset:%d" % (v(KB[t & 1], 4), v(AD), t * 2048))

    def rdv(t):
        e("s_mov_b64 exec, %s" % sMV)
        e("ds_read_b128 %s, %s offset:%d" % (v(VB[t & 1], 4), v(AD), t * 2048 + 1024))
        e("ds_read_b128 %s, %s offset:%d" % (v(VB[t & 1] + 4, 4), v(AD), t * 2048 + 1280))
        e("s_mov_b64 exec, -1")

    def smf(vb, p):
        e("v_smfmac_f32_32x32x32_bf16 %s, %s, %s, %s" % (v(O, 16), v(vb, 4), v(p, 8), v(IDX)))

    def ex(cur, a, b):
        for i in range(a, b):
            e("v_exp_f32 %s, %s" % (v(S[cur] + i), v(S[cur] + i)))

    def tile(t, extra=None):
        cur, nxt = t & 1, (t + 1) & 1
        ex(cur, 0, 2)
        smf(VB[nxt] + 4, S[nxt] + 8)
        rdv(t + 1)
        ex(cur, 2, 6)
        e("s_waitcnt lgkmcnt(2)")
        mfma(S[nxt], KB[nxt], Q, "0")
        rdk(t + 2)
        if extra:
            extra()
        ex(cur, 6, 12)
        smf(VB[cur], S[cur])
        ex(cur, 12, 16)
    e("ds_read_b128 %s, v16" % v(Q, 4))
    rdk(0)
    rdv(0)
    rdk(1)
    e("s_waitcnt lgkmcnt(3)")
    mfma(S[0], KB[0], Q, "0")
    e("s_mov_b32 %s, 0" % sIT)
    e("s_mov_b32 %s, %d" % (sCNT, POLL_LIMIT))
    e("s_nop 7")
    cm("keys of this die first; the other dies' K/V are requested as soon as their flags arrive")
    loc, go, retry, issue, chk3 = (newlab(x) for x in ("loc", "go", "retry", "issue", "chk3"))
    lab(loc)
    e("s_cmp_eq_u32 %s, 0" % sIT)
    e("s_cbranch_scc1 %s" % go)
    e("s_cmp_lg_u32 %s, 0" % ISS)
    e("s_cbranch_scc1 %s" % chk3)
    lab(retry)
    e("s_waitcnt vmcnt(0)")
    e("v_cmp_eq_u64 vcc, %s, %s" % (v(vPD, 2), v(vFV, 2)))
    e("s_nop 1")
    e("s_cmp_eq_u64 vcc, -1")
    e("s_cbranch_scc1 %s" % issue)
    gflag_load()
    e("s_cmp_lt_u32 %s, 3" % sIT)
    e("s_cbranch_scc1 %s" % go)
    e("s_sub_u32 %s, %s, 1" % (sCNT, sCNT))
    e("s_cbranch_scc0 %s" % retry)
    e("s_endpgm")
    lab(issue)
    kv_issue()
    kv_issue()
    e("s_mov_b32 %s, 1" % ISS)
    lab(chk3)
    e("s_cmp_lt_u32 %s, 3" % sIT)
    e("s_cbranch_scc1 %s" % go)
    e("s_waitcnt vmcnt(4)")
    e("s_barrier")
    lab(go)
    tile(0)
    tile(1)
    e("v_add_u32 %s, 4096, %s" % (v(AD), v(AD)))
    e("s_add_u32 %s, %s, 1" % (sIT, sIT))
    e("s_cmp_lt_u32 %s, 4" % sIT)
    e("s_cbranch_scc1 %s" % loc)
    fine("a")
    cm("lines of the W1 rows that are loaded after attention (128-351, 480-511): half per workgroup of a pair")
    srd(sTMP, 20, 512 * 2752)
    e("s_lshr_b32 %s, %s, 4" % (T[0], sJ))
    addr(T[7], None, 128, [(T[0], 128), (sHW, 32)])
    e("s_cmp_eq_u32 %s, 352" % T[7])
    e("s_cselect_b32 %s, 480, %s" % (T[7], T[7]))
    e("s_mul_i32 %s, %s, 2752" % (T[7], T[7]))
    e("s_mul_i32 %s, %s, 192" % (T[0], sC))
    e("s_add_u32 %s, %s, %s" % (T[7], T[7], T[0]))
    e("v_lshrrev_b32 %s, 1, v0" % v(PF + 1))
    e("v_mul_u32_u24 %s, 2752, %s" % (v(PF + 1), v(PF + 1)))
    e("v_and_b32 %s, 1, v0" % v(PF + 2))
    e("v_lshl_add_u32 %s, %s, 7, %s" % (v(PF + 1), v(PF + 2), v(PF + 1)))
    e("s_mov_b32 %s, 1" % sIT)
    loop = newlab("att")
    L.append(".p2align 6")
    lab(loop)
    for t in range(8):
        if t % 2 == 0:
            e("s_setprio %d" % (3 - t // 2))
        if t == 6:
            e("s_waitcnt vmcnt(4)")
            e("s_barrier")
        tile(t, kv_issue_helpers if t == 1 else None)
    e("v_add_u32 %s, 16384, %s" % (v(AD), v(AD)))
    e("s_add_u32 %s, %s, 1" % (sIT, sIT))
    e("s_cmp_lt_u32 %s, 6" % sIT)
    e("s_cbranch_scc1 %s" % loop)
    fine("a")
    cm("last two chunks: stream Wo and part of W1 into the dead K/V space, one piece per tile")
    srd(sTMP, 16, 512 * 1024)
    addr(T[0], None, 0, [(sW, 65536), (sNB, 128)])
    e("s_lshl_b32 %s, %s, 13" % (T[1], sW))

    srd("s[64:67]", 24, 1376 * 1024)
    e("s_lshr_b32 %s, %s, 3" % (T[4], sJ))
    addr(T[2], None, 0, [(T[4], 344 * 1024), (sW, 43 * 1024), (sNB, 128)])
    e("v_lshlrev_b32 %s, 10, v0" % v(PF))

    def w2_lines(trip):
        cm("one line per lane: pull this workgroup's share of W2 into the die's L2")
        e("s_mov_b64 exec, 0x3fffff")
        e("buffer_load_dword %s, %s, s[64:67], %s offen" % (v(PF + 2), v(PF), T[2]))
        e("s_mov_b64 exec, -1")
        e("s_add_u32 %s, %s, %d" % (T[2], T[2], 22 * 1024))

    def wo_piece(t):
        e("s_add_u32 m0, %s, %d" % (T[1], 1024 * t))
        e("s_nop 0")
        dma1(VO, T[0])
        e("s_add_u32 %s, %s, 8192" % (T[0], T[0]))
        if t == 3:
            w2_lines(0)

    def w1_piece(t):
        if t == 1:
            w2_lines(1)
        if t >= 6:
            return
        e("s_add_u32 m0, %s, %d" % (T[1], (t // 3) * 22 * 3072 + (t % 3) * 1024))
        e("s_nop 0")
        dma1(VO + 1 + t % 3, T[0])
        if t == 2:
            e("s_add_u32 %s, %s, %d" % (T[0], T[0], 22 * 16 * 2752))
    for trip in range(2):
        for t in range(8):
            if t % 2 == 0:
                e("s_setprio %d" % (3 - t // 2))
            if t == 6 and trip == 0:
                e("s_waitcnt vmcnt(6)")
                e("s_barrier")
            tile(t + 8 * trip, (lambda t=t: wo_piece(t)) if trip == 0 else (lambda t=t: w1_piece(t)))
        if trip == 0:
            srd(sTMP, 20, 512 * 2752)
            addr(T[0], None, 0, [(sW, 16 * 2752), (sC, 192)])
            addr(T[1], None, 65536, [(sW, 3072)])
    smf(VB[1] + 4, S[1] + 8)
    e("s_setprio 0")
    e("s_waitcnt lgkmcnt(0)")
    e("s_nop 10")
    stamp()
    cm("Softmax guard. The loops above used 0 as a stand-in for the row max. That is exact while the row sum")
    cm("stays in [2^-64, 2^64] and the accumulators are finite; otherwise redo this tile with the true max.")
    fin, slow = newlab("att_fin"), newlab("att_slow")
    e("v_mul_f32 v16, 0, %s" % v(O))
    for i in range(1, 8):
        e("v_fma_f32 v16, %s, 0, v16" % v(O + i))
    e("v_cmp_le_f32 vcc, %s, %s" % (f32(2.0 ** (64 if FORCE_SLOW else -64)), v(O + 8)))
    e("s_mov_b64 %s, vcc" % sM0)
    e("v_cmp_ge_f32 vcc, %s, %s" % (f32(2.0 ** 64), v(O + 8)))
    e("s_and_b64 %s, %s, vcc" % (sM0, sM0))
    e("v_cmp_eq_f32 vcc, 0, v16")
    e("s_and_b64 %s, %s, vcc" % (sM0, sM0))
    e("s_cmp_eq_u64 %s, -1" % sM0)
    e("s_cbranch_scc0 %s" % slow)
    lab(fin)
    e("v_rcp_f32 v16, %s" % v(O + 8))
    addr(T[0], sLB, OF, [(sW, 32768), (sHEAD, 1024)])
    for p in range(4):
        e("v_pk_mul_f32 %s, %s, v[16:17] op_sel_hi:[1,0]" % (v(O + 2 * p, 2), v(O + 2 * p, 2)))
    for p in range(4):
        e("v_cvt_pk_bf16_f32 %s, %s, %s" % (v(20 + p), v(O + 2 * p), v(O + 2 * p + 1)))
    lstores(["buffer_store_dwordx4 v[20:23], %s, %s, %s offen" % (v(vL16), sWS, T[0])])
    slot(T[2], FA, [(sW, 32), (sHEAD, 1)])
    flag(T[2], 0, local=True)
    e("s_barrier")
    keep = L[:]
    del L[:]
    lab(slow)
    l1, l2 = newlab("slow1"), newlab("slow2")
    addr(T[2], None, KVF, [(sL, KVF_L), (sHEAD, 131072)])
    e("v_mov_b32 %s, 0xff800000" % v(CN))
    e("s_mov_b32 %s, 0" % sIT)
    lab(l1)
    e("buffer_load_dwordx4 %s, %s, %s, %s offen sc1" % (v(KB[0], 4), v(vL16), sWS, T[2]))
    e("s_waitcnt vmcnt(0)")
    mfma(S[0], KB[0], Q, "0")
    e("s_nop 15")
    for i in range(8):
        e("v_max3_f32 %s, %s, %s, %s" % (v(CN), v(S[0] + 2 * i), v(S[0] + 2 * i + 1), v(CN)))
    e("s_add_u32 %s, %s, 2048" % (T[2], T[2]))
    e("s_add_u32 %s, %s, 1" % (sIT, sIT))
    e("s_cmp_lt_u32 %s, 64" % sIT)
    e("s_cbranch_scc1 %s" % l1)
    e("v_mov_b32 %s, %s" % (v(CN + 1), v(CN)))
    e("s_nop 1")
    e("v_permlane32_swap_b32 %s, %s" % (v(CN), v(CN + 1)))
    e("s_nop 1")
    e("v_max_f32 %s, %s, %s" % (v(CN), v(CN), v(CN + 1)))
    e("v_sub_f32 %s, 0, %s" % (v(CN), v(CN)))
    for i in range(1, 16):
        e("v_mov_b32 %s, %s" % (v(CN + i), v(CN)))
    for i in range(16):
        e("v_mov_b32 %s, 0" % v(O + i))
    addr(T[2], None, KVF, [(sL, KVF_L), (sHEAD, 131072)])
    e("s_mov_b32 %s, 0" % sIT)
    lab(l2)
    e("buffer_load_dwordx4 %s, %s, %s, %s offen sc1" % (v(KB[0], 4), v(vL16), sWS, T[2]))
    e("s_mov_b64 exec, %s" % sMV)
    e("buffer_load_dwordx4 %s, %s, %s, %s offen offset:1024 sc1" % (v(VB[0], 4), v(vL16), sWS, T[2]))
    e("buffer_load_dwordx4 %s, %s, %s, %s offen offset:1280 sc1" % (v(VB[0] + 4, 4), v(vL16), sWS, T[2]))
    e("s_mov_b64 exec, -1")
    e("s_waitcnt vmcnt(0)")
    mfma(S[0], KB[0], Q, CN)
    e("s_nop 15")
    for i in range(16):
        e("v_exp_f32 %s, %s" % (v(S[0] + i), v(S[0] + i)))
    e("s_nop 1")
    smf(VB[0], S[0])
    smf(VB[0] + 4, S[0] + 8)
    e("s_nop 15")
    e("s_add_u32 %s, %s, 2048" % (T[2], T[2]))
    e("s_add_u32 %s, %s, 1" % (sIT, sIT))
    e("s_cmp_lt_u32 %s, 64" % sIT)
    e("s_cbranch_scc1 %s" % l2)
    e("s_branch %s" % fin)
    TAIL.extend(L)
    L[:] = keep
    stamp()


def n512(kind):
    wo = kind == "wo"
    ph = "o" if wo else "g"
    cm("================ %s" % ("output projection + residual" if wo else "MLP down projection + residual"))
    NS, J = (16, 16) if wo else (43, 39)
    AK, AS = vACC, vACC + 16
    hl, done = newlab("n_h"), newlab("n_done")
    e("s_cmp_ge_u32 %s, 4" % sW)
    e("s_cbranch_scc1 %s" % hl)
    if not wo:
        srd(sTMP, 26, 1024)
        e("v_lshrrev_b32 %s, 1, %s" % (v(vPO), v(vH16)))
        e("s_lshl_b32 %s, %s, 6" % (T[0], sNT))
        for i in range(4):
            e("buffer_load_dwordx2 %s, %s, %s, %s offen offset:%d" % (v(176 + 2 * i, 2), v(vPO), sTMP, T[0], 16 * i))
    unpack(AK, vRES, 8)
    tr_rows(vW0, 128)
    e("v_bfe_u32 %s, v0, 3, 1" % v(vPD))
    e("v_xor_b32 %s, %s, %s" % (v(vPD), sKH, v(vPD)))
    e("v_lshl_or_b32 %s, %s, 6, %s" % (v(vW0), v(vPD), v(vW0)))
    e("s_mul_i32 %s, %s, %d" % (T[0], sKH, J * 2048))
    e("v_add_u32 %s, %s, %s" % (v(vW0), T[0], v(vW0)))
    e("v_xor_b32 %s, 64, %s" % (v(vW1), v(vW0)))
    if not wo:
        e("v_add_u32 %s, 0x10000, %s" % (v(vW2), v(vW0)))
        e("v_add_u32 %s, 0x10000, %s" % (v(vW3), v(vW1)))
    if wo:
        e("v_and_b32 %s, 15, v0" % v(vPO))
        slot(T[0], FA, [(sTBN, 32), (sKH, 16)])
        addr(T[1], sLB, OF, [(sTBN, 32768), (sKH, 16384)])
    else:
        e("v_and_b32 %s, 7, v0" % v(vPO))
        slot(T[0], FH, [(sTBN, 16), (sKH, 7)])
        addr(T[1], sLB, HF, [(sTBN, HSTR), (sKH, 43 * 1024)])
    e("v_lshlrev_b32 %s, 6, %s" % (v(vPO), v(vPO)))
    if not wo:
        e("s_waitcnt vmcnt(0)")
        unpack(AS, 176, 8)
        for p in range(8):
            e("v_pk_add_f32 %s, %s, %s" % (v(AK + 2 * p, 2), v(AK + 2 * p, 2), v(AS + 2 * p, 2)))
        e("s_barrier")

    def rd(j, i):
        jj = j % J
        base, off = ((vW0, vW1)[i], jj * 2048) if jj < 32 else ((vW2, vW3)[i], (jj - 32) * 2048)
        d = vWB + (j % 3) * 8 + 4 * i
        e("ds_read_b64_tr_b16 %s, %s offset:%d" % (v(d, 2), v(base), off))
        e("ds_read_b64_tr_b16 %s, %s offset:%d" % (v(d + 2, 2), v(base), off + 1024))
    for j in range(2):
        for i in range(2):
            rd(j, i)
    poll(T[0])
    stamp()
    areg = lambda j: vA + 4 * (j % 32)
    load_frags(T[1], 0, DEPTH, areg)
    fine(ph)
    for j in range(NS):
        issued = min(NS, DEPTH + j)
        if not wo and j == J - 2:
            e("s_barrier")
        e("s_waitcnt vmcnt(%d) lgkmcnt(%d)" % (issued - j - 1, 4 if j + 1 < NS else 0))
        if j in ((0, 4, 8, 15) if wo else (0, 11, 22, 42)):
            fine(ph)
        for i in range(2):
            acc = AK + 16 * i
            mfma(acc, vWB + (j % 3) * 8 + 4 * i, areg(j), "0" if (j == 0 and i == 1) else acc)
            if j + 2 < NS:
                rd(j + 2, i)
            if i == 0 and DEPTH + j < NS:
                load_frags(T[1], DEPTH + j, 1, areg, False)
        if j == (8 if wo else NS - J - 1):
            e("s_barrier")
    e("s_and_b32 %s, %s, 1" % (T[2], sW))
    if wo:
        addr(T[0], None, 0, [(T[2], 4096), (sKH, 32768)])
        e("s_xor_b32 %s, %s, 32768" % (T[1], T[0]))
    else:
        addr(T[0], None, 98304, [(T[2], 4096), (sKH, 8192)])
        e("s_xor_b32 %s, %s, 8192" % (T[1], T[0]))
    e("v_add_u32 v16, %s, %s" % (T[0], v(vL16)))
    e("v_add_u32 v17, %s, %s" % (T[1], v(vL16)))
    e("s_nop 3")
    for i in range(4):
        e("ds_write_b128 v16, %s offset:%d" % (v(AS + 4 * i, 4), 1024 * i))
    e("s_waitcnt lgkmcnt(0)")
    e("s_barrier")
    stamp()
    for i in range(4):
        e("ds_read_b128 %s, v17 offset:%d" % (v(AS + 4 * i, 4), 1024 * i))
    for i in range(4):
        e("s_waitcnt lgkmcnt(%d)" % (3 - i))
        for p in (2 * i, 2 * i + 1):
            e("v_pk_add_f32 %s, %s, %s" % (v(AK + 2 * p, 2), v(AK + 2 * p, 2), v(AS + 2 * p, 2)))
    for p in range(8):
        e("v_cvt_pk_bf16_f32 %s, %s, %s" % (v(vRES + p), v(AK + 2 * p), v(AK + 2 * p + 1)))
    if wo:
        tile_stats(AK, 20)
        publish_x(sLB, X1F, ST1, 0, FO, 20)
    else:
        last = newlab("last")
        e("s_cmp_lg_u32 %s, 0" % sL)
        e("s_cbranch_scc1 %s" % last)
        tile_stats(AK, 20)
        publish_x(sLB, XF, ST, LFL_L * 64, FX, 20)
        e("s_branch %s" % done)
        lab(last)
        srd(sTMP, 28, 2048 * 1024)
        e("v_and_b32 v16, 31, v0")
        e("v_lshlrev_b32 v16, 10, v16")
        e("v_add_u32 v16, v16, %s" % v(vH16))
        addr(T[0], None, 0, [(sXCD, 262144), (sTBN, 32768), (sNT, 64)])
        for g in range(2):
            e("v_permlane32_swap_b32 %s, %s" % (v(vRES + 4 * g), v(vRES + 4 * g + 2)))
            e("v_permlane32_swap_b32 %s, %s" % (v(vRES + 4 * g + 1), v(vRES + 4 * g + 3)))
        for g in range(2):
            e("buffer_store_dwordx4 %s, v16, %s, %s offen offset:%d" % (v(vRES + 4 * g, 4), sTMP, T[0], 32 * g))
    e("s_branch %s" % done)
    lab(hl)
    if wo:
        voff_192(44)
        w0 = newlab("wcs")
        e("s_cmp_lg_u32 %s, 0" % sL)
        e("s_cbranch_scc1 %s" % w0)
        colsum_begin(192, 3072, 64)
        e("s_mov_b32 %s, 65536" % T[0])
        colsum_quads(2, 3072, 1536)
        e("s_mov_b32 %s, %d" % (T[0], 65536 + 22 * 3072))
        colsum_quads(2, 3072, 1536)
        lab(w0)
        e("s_lshl_b32 %s, %s, 2" % (T[3], sHW))
        e("s_min_u32 %s, %s, 10" % (T[3], T[3]))
        addr(T[0], None, 8 * 16 * 2752, [(T[3], 16 * 2752), (sC, 192)])
        addr(T[1], None, 65536 + 8 * 3072, [(T[3], 3072)])
        e("s_barrier")
        dma_w1(2)
        e("s_barrier")
        dma_w1(2)
        e("s_lshr_b32 %s, %s, 1" % (T[3], sHW))
        e("s_and_b32 %s, %s, %s" % (T[3], T[3], sHW))
        addr(T[0], None, 30 * 16 * 2752, [(T[3], 16 * 2752), (sC, 192)])
        addr(T[1], None, 58 * 1024, [(T[3], 3072)])
        dma_w1(1)
    else:
        e("s_waitcnt vmcnt(0)")
        e("s_barrier")
        e("s_lshr_b32 %s, %s, 1" % (T[3], sHW))
        e("s_and_b32 %s, %s, 1" % (T[4], sHW))
        addr(T[0], None, 78 * 8192, [(T[3], 86 * 8192), (T[4], 4 * 8192), (sNB, 128)])
        addr(T[1], None, 0, [(T[3], 78 * 1024), (T[4], 4096)])
        e("s_barrier")
        for k in range(4):
            e("s_add_u32 m0, %s, %d" % (T[1], 1024 * k))
            e("s_nop 0")
            dma1(40, T[0])
            e("s_add_u32 %s, %s, 8192" % (T[0], T[0]))
        e("s_waitcnt vmcnt(0)")
        e("s_barrier")
        e("s_mul_i32 %s, %s, 24576" % (T[0], sHW))
        e("v_add_u32 v42, %s, %s" % (T[0], v(vL16)))
        e("s_barrier")
        e("s_cmp_lg_u32 %s, 0" % sL)
        e("s_cbranch_scc1 %s" % done)
        for k in range(24):
            e("ds_write_b128 v42, %s offset:%d" % (v(vSTASH + 4 * k, 4), 1024 * k))
    lab(done)
    stamp()


def ffn1():
    cm("================ MLP up projection + GELU")
    hl, done = newlab("f1_h"), newlab("f1_done")
    e("s_cmp_ge_u32 %s, 4" % sW)
    e("s_cbranch_scc1 %s" % hl)

    def consts(t, part):
        for i in range(4):
            e("ds_read_b128 %s, %s offset:%d" % (v(16 + 32 * t + 16 * part + 4 * i, 4), v(vCA), 512 + 512 * part + t * 128 + 32 * i))
    wide_compute_front(FO, X1F, ST1, False, lambda m: consts(m // 2, m % 2))
    consts(1, 1)
    c0 = -2.0 * 1.4426950408889634 * 0.7978845608028654
    e("v_mov_b32 v112, %s" % f32(c0))
    e("v_mov_b32 v113, %s" % f32(c0 * 0.044715))
    e("v_mov_b32 v114, 1.0")
    addr(T[0], sLB, HF, [(sTBW, HSTR), (sC, 6144)])
    e("s_add_u32 %s, %s, 4096" % (T[1], T[0]))
    Z, P = 120, vWB
    for t in range(3):
        acc, cs, b1 = vACC + 16 * t, 16 + 32 * t, 32 + 32 * t
        e("s_waitcnt lgkmcnt(%d)" % (8 if t < 2 else 0))
        if t == 0:
            consts(2, 0)
            consts(2, 1)
        for p in range(8):
            center(acc, cs, p)
        for p in range(8):
            e("v_pk_fma_f32 %s, %s, %s, %s op_sel_hi:[1,0,1]" %
              (v(acc + 2 * p, 2), v(acc + 2 * p, 2), v(vR, 2), v(b1 + 2 * p, 2)))
        for p in range(8):
            e("v_pk_mul_f32 %s, %s, %s" % (v(Z + 2 * p, 2), v(acc + 2 * p, 2), v(acc + 2 * p, 2)))
        for p in range(8):
            e("v_pk_fma_f32 %s, %s, v[112:113], v[112:113] op_sel:[0,1,0] op_sel_hi:[1,1,0]" %
              (v(Z + 2 * p, 2), v(Z + 2 * p, 2)))
        for p in range(8):
            e("v_pk_mul_f32 %s, %s, %s" % (v(Z + 2 * p, 2), v(Z + 2 * p, 2), v(acc + 2 * p, 2)))
        for i in range(16):
            e("v_exp_f32 %s, %s" % (v(Z + i), v(Z + i)))
        for p in range(8):
            e("v_pk_add_f32 %s, %s, v[114:115] op_sel_hi:[1,0]" % (v(Z + 2 * p, 2), v(Z + 2 * p, 2)))
        for i in range(16):
            e("v_rcp_f32 %s, %s" % (v(Z + i), v(Z + i)))
        for p in range(8):
            e("v_pk_mul_f32 %s, %s, %s" % (v(acc + 2 * p, 2), v(acc + 2 * p, 2), v(Z + 2 * p, 2)))
        for p in range(8):
            e("v_cvt_pk_bf16_f32 %s, %s, %s" % (v(P + 8 * t + p), v(acc + 2 * p), v(acc + 2 * p + 1)))
        lstores(["buffer_store_dwordx4 %s, %s, %s, %s offen offset:%d" %
                 (v(P + 8 * t + 4 * hh, 4), v(vL16), sWS, T[(2 * t + hh) // 4], ((2 * t + hh) % 4) * 1024) for hh in range(2)])
        if t != 1:
            fine("f")
    slot(T[0], FH, [(sTBW, 16), (sC, 1)])
    flag(T[0], 0, local=True)
    e("s_branch %s" % done)
    lab(hl)
    h1 = newlab("fh1")
    voff_128(40)
    e("s_waitcnt vmcnt(3)")
    e("s_barrier")
    e("s_cmp_lg_u32 %s, 0" % sL)
    e("s_cbranch_scc1 %s" % h1)
    cm("first layer pair: column sums of W1 and the bias, kept in LDS")
    srd(sTMP, 22, 2752)
    e("v_and_b32 %s, 31, v0" % v(vPO))
    e("v_lshlrev_b32 %s, 1, %s" % (v(vPO), v(vPO)))
    addr(T[0], None, 0, [(sHW, 64), (sC, 192)])
    e("buffer_load_ushort v47, %s, %s, %s offen" % (v(vPO), sTMP, T[0]))
    e("s_mov_b32 %s, %d" % (T[0], 65536 + 8 * 3072))
    colsum_quads(3, 3072, 1536)
    e("s_mov_b32 %s, %d" % (T[0], 65536 + 20 * 3072))
    e("s_waitcnt vmcnt(0)")
    colsum_quads(1, 3072, 1536, (58 * 1024, 58 * 1024 + 3072))
    colsum_end(CS1_L)
    e("v_lshlrev_b32 v47, 16, v47")
    e("s_lshl_b32 %s, %s, 7" % (T[0], sHW))
    e("v_add_u32 v41, %s, v41" % T[0])
    e("ds_write_b32 v41, v47 offset:%d" % (B1_L - CS1_L))
    lab(h1)
    srd(sTMP, 24, 1376 * 1024)
    e("s_waitcnt vmcnt(0) lgkmcnt(0)")
    e("s_barrier")
    dma_w2(0, 0, 6, None)
    e("s_barrier")
    dma_w2(86, 78 * 1024, 10)
    dma_w2(22, 22 * 1024, 14)
    dma_w2(86 + 38, (78 + 38) * 1024, 10)
    lab(done)
    stamp()


def epilogue():
    e("s_add_u32 %s, %s, 1" % (sL, sL))
    e("s_add_u32 %s, %s, %d" % (sFB, sFB, LFL_L * 64))
    e("s_cmp_lt_u32 %s, 2" % sL)
    e("s_cbranch_scc1 L_layer")
    if PROFILE:
        e("s_memrealtime s[22:23]")
        e("s_waitcnt lgkmcnt(0)")
        stamp("s23")
        e("s_lshl_b32 %s, s2, 3" % T[0])
        e("s_add_u32 %s, %s, %s" % (T[0], T[0], sW))
        e("s_lshl_b32 %s, %s, 8" % (T[0], T[0]))
        e("s_add_u32 %s, %s, 0x%x" % (T[0], T[0], TSB))
        e("s_mov_b64 exec, 1")
        for i, r in enumerate([68, 18, 19] + list(range(STAMP0, STAMP0 + 30)) + [22, 23, 0, 1]):
            e("v_mov_b32 v16, s%d" % r)
            e("buffer_store_dword v16, off, %s, %s offset:%d" % (sWS, T[0], 4 * i))
        e("s_mov_b64 exec, 0xff")
        e("v_lshlrev_b32 v16, 2, v0")
        e("buffer_store_dword v5, v16, %s, %s offen offset:148" % (sWS, T[0]))
        e("s_mov_b64 exec, -1")
    cm("advance the hand-off tag for the next launch")
    e("s_or_b32 %s, s2, %s" % (T[0], sW))
    e("s_cmp_lg_u32 %s, 0" % T[0])
    e("s_cbranch_scc1 L_end")
    e("s_mov_b64 exec, 1")
    e("buffer_store_dword %s, off, %s, 0" % (v(vFV), sWS))
    lab("L_end")
    e("s_endpgm")
    L.extend(TAIL)


HEADER = open(f"cdna_kernels/{NAME}.s.ref").read().split("; Override launch")[0]


def main():
    prologue()
    p0()
    lab("L_layer")
    qkv()
    attention()
    n512("wo")
    ffn1()
    n512("f2")
    epilogue()
    k = NAME + "_kernel"
    out = HEADER
    out += "; @launch grid=(256,1,1) block=(512,1,1) lds=%d\n" % LDS_BYTES
    out += '.amdgcn_target "amdgcn-amd-amdhsa--gfx950"\n.text\n.globl %s\n.p2align 8\n.type %s,@function\n%s:\n' % (k, k, k)
    out += "\n".join(L) + "\n"
    out += """.section .rodata,"a"
.p2align 6
.amdhsa_kernel %s
  .amdhsa_next_free_vgpr 256
  .amdhsa_next_free_sgpr 102
  .amdhsa_accum_offset 256
  .amdhsa_group_segment_fixed_size 0
  .amdhsa_kernarg_size 88
  .amdhsa_user_sgpr_count 2
  .amdhsa_user_sgpr_kernarg_segment_ptr 1
  .amdhsa_system_sgpr_workgroup_id_x 1
.end_amdhsa_kernel
""" % k
    open(OUT, "w").write(out)


main()
```

```python
import struct
import sys

NAME = "interleave_layers__softmax_full_mha__mixer_channel_mlp__prompt"
PROFILE = "--prof" in sys.argv
CLK = "s_memrealtime" if "--rt" in sys.argv else "s_memtime"
FORCE_SLOW = "--slow" in sys.argv
FORCE_GLOBAL = "--global" in sys.argv
OUT = [a for a in sys.argv[1:] if not a.startswith("--")]
OUT = OUT[0] if OUT else f"cdna_kernels/{NAME}.s"


def OPT(name, default):
    a = [x.split("=")[1] for x in sys.argv if x.startswith("--%s=" % name)]
    return int(a[0]) if a else default


def f32(x):
    return "0x%08x" % struct.unpack("<I", struct.pack("<f", x))[0]


WS_SIZE = 0x10000000
FLG = 0x100000
FQG, FQG_L, FI = 0, 1024, 2048
KVF, KVF_L = 0x200000, 0x400000
ARENA, ARENA_X = 0x1000000, 0x200000
XSTR, HSTR = 33 * 1024, 97 * 1024
XF, OF, BLK, ST, LFL = 0, 0x48000, 0x90000, 0x158000, 0x160000
X1F, ST1, HF, QF, KVL = XF, ST, BLK, BLK, BLK + 32768
FX, FQ, FA, FO, FH, LFL_L = 0, 128, 256, 512, 640, 768
TSB = 0x4000000
DEPTH = OPT("depth", 10)
PACE = OPT("pace", 5)
QPACE = OPT("qpace", 2)
RED = 140 * 1024
CONST = 156 * 1024
CSQ_L, CS1_L, B1_L, STAT_L = CONST, CONST + 512, CONST + 1024, CONST + 1536
LDS_BYTES = 160 * 1024
sWS, sTMP = "s[4:7]", "s[8:11]"
sW, sNONCE, sL, sLB, sFB = "s34", "s35", "s36", "s37", "s38"
sXCD, sJ, sTBW, sC, sTBN, sNB, sKH, sNT, sHEAD, sQB = ("s%d" % i for i in range(39, 49))
sHW = "s49"
T = ["s%d" % i for i in range(50, 60)]
sCNT, sIT = "s60", "s61"
sMV = "s[62:63]"
sM0, sM1 = "s[64:65]", "s[66:67]"
sMODE = "s3"
STAMP0 = 72
vLANE, vL16, vFV, vPO, vT5, vPD = 0, 1, 2, 4, 5, 6
vRES = 8
vA, vACC, vWB, vSTS = 16, 144, 192, 228
vW0, vW1, vMU, vW2, vR, vW3, vRQ, vCA, vTR, vK16, vVOF, vH16 = 244, 245, 246, 247, 248, 249, 250, 251, 252, 253, 254, 255
vSTASH = 128
QL = 128 * 1024
POLL_LIMIT = 1 << 16

L = []
TAIL = []
uid = [0]
nstamp = [0]


def e(s):
    L.append("    " + s)


def lab(n):
    L.append(n + ":")


def cm(s):
    L.append("    ; " + s)


def v(i, n=1):
    return "v%d" % i if n == 1 else "v[%d:%d]" % (i, i + n - 1)


def newlab(p):
    uid[0] += 1
    return "L_%s_%d" % (p, uid[0])


def stamp(fixed=None):
    if not PROFILE:
        return
    e(CLK + " s[70:71]")
    e("s_waitcnt lgkmcnt(0)")
    if fixed:
        e("s_mov_b32 %s, s70" % fixed)
        return
    e("s_mul_i32 s69, %s, 15" % sL)
    e("s_add_u32 m0, s69, %d" % nstamp[0])
    e("s_nop 1")
    e("s_movreld_b32 s%d, s70" % STAMP0)
    nstamp[0] += 1
    assert nstamp[0] <= 15


FINE = [a.split("=")[1] for a in sys.argv if a.startswith("--fine=")]
FINE = FINE[0] if FINE else None
nfine = [0]


def fine(phase):
    if not PROFILE or FINE != phase:
        return
    e(CLK + " s[70:71]")
    e("s_waitcnt lgkmcnt(0)")
    sk = newlab("fs")
    e("s_cmp_lg_u32 %s, %d" % (sL, 0 if "--l0" in sys.argv else 1))
    e("s_cbranch_scc1 %s" % sk)
    e("v_writelane_b32 v5, s70, %d" % nfine[0])
    lab(sk)
    nfine[0] += 1


def srd(dst, lo, size):
    b = int(dst[2:dst.index(":")])
    e("s_mov_b32 s%d, s%d" % (b, lo))
    e("s_and_b32 s%d, s%d, 0xffff" % (b + 1, lo + 1))
    e("s_mov_b32 s%d, %s" % (b + 2, size if isinstance(size, str) else hex(size)))
    e("s_mov_b32 s%d, 0x20000" % (b + 3))


def poll(soff):
    a, b = newlab("poll"), newlab("pok")
    e("s_mov_b32 %s, %d" % (sCNT, POLL_LIMIT))
    lab(a)
    e("buffer_load_dwordx2 %s, %s, %s, %s offen sc1" % (v(vPD, 2), v(vPO), sWS, soff))
    e("s_waitcnt vmcnt(0)")
    e("v_cmp_eq_u64 vcc, %s, %s" % (v(vPD, 2), v(vFV, 2)))
    e("s_nop 1")
    e("s_cmp_eq_u64 vcc, -1")
    e("s_cbranch_scc1 %s" % b)
    e("s_sub_u32 %s, %s, 1" % (sCNT, sCNT))
    e("s_cbranch_scc0 %s" % a)
    e("s_endpgm")
    lab(b)


def lstores(lines):
    g, d = newlab("wt"), newlab("wtd")
    e("s_cmp_eq_u32 %s, 0" % sMODE)
    e("s_cbranch_scc1 %s" % g)
    for x in lines:
        e(x)
    lab(d)
    TAIL.append(g + ":")
    for x in lines:
        TAIL.append("    " + x + (" sc1" if x.startswith("buffer_store") else ""))
    TAIL.append("    s_branch " + d)


def flag(soff, n=0, local=False):
    if n is not None:
        e("s_waitcnt vmcnt(%d)" % n)
    e("s_mov_b64 exec, 1")
    x = "buffer_store_dwordx2 %s, off, %s, %s" % (v(vFV, 2), sWS, soff)
    if local:
        lstores([x])
    else:
        e(x + " sc1")
    e("s_mov_b64 exec, -1")


def mode_poll(first=False):
    a, b, glob, out = newlab("mp"), newlab("mpok"), newlab("mpg"), newlab("mpo")
    e("v_and_b32 %s, 31, v0" % v(vPD))
    e("v_lshlrev_b32 %s, 9, %s" % (v(vPD), v(vPD)))
    addr(T[3], None, FLG + FI * 64, [(sXCD, 64)])
    e("v_add_u32 %s, %s, %s" % (v(vPD), T[3], v(vPD)))
    if first:
        e("v_add_u32 %s, %s, %s" % (v(vPD + 1), T[0], v(vPO)))
        e("v_cmp_gt_u32 vcc, 32, v0")
        e("s_mov_b32 %s, %s" % (T[5], T[0]))
        e("v_cndmask_b32 v60, %s, %s, vcc" % (v(vPD), v(vPD + 1)))
    else:
        e("v_mov_b32 v60, %s" % v(vPD))
    e("s_getreg_b32 %s, hwreg(HW_REG_XCC_ID, 0, 4)" % T[3])
    e("s_mov_b32 %s, %d" % (sCNT, POLL_LIMIT))
    e("s_mov_b32 %s, 1" % sMODE)
    lab(a)
    e("buffer_load_dwordx2 %s, v60, %s, 0 offen sc1" % (v(vPD, 2), sWS))
    e("s_waitcnt vmcnt(0)")
    e("v_xor_b32 %s, %s, %s" % (v(vPD + 1), v(vPD + 1), v(vFV + 1)))
    e("v_cmp_eq_u32 %s, %s, %s" % (sM0, v(vPD), v(vFV)))
    e("v_cmp_eq_u32 %s, %s, %s" % (sM1, T[3], v(vPD + 1)))
    e("v_cmp_gt_u32 vcc, 16, %s" % v(vPD + 1))
    e("s_nop 1")
    e("s_and_b64 %s, %s, %s" % (sM1, sM1, sM0))
    e("s_and_b64 vcc, vcc, %s" % sM0)
    if not FORCE_GLOBAL:
        e("s_cmp_eq_u64 %s, -1" % sM1)
        e("s_cbranch_scc1 %s" % out)
    e("s_cmp_eq_u32 vcc_hi, -1")
    e("s_cbranch_scc0 %s" % b)
    if not FORCE_GLOBAL:
        e("s_cmp_eq_u32 s67, -1")
        e("s_cbranch_scc0 %s" % glob)
    else:
        e("s_branch %s" % glob)
    lab(b)
    e("s_sub_u32 %s, %s, 1" % (sCNT, sCNT))
    e("s_cbranch_scc0 %s" % a)
    e("s_endpgm")
    lab(glob)
    e("s_mov_b32 %s, 0" % sMODE)
    if first:
        e("s_mov_b32 %s, %s" % (T[6], T[1]))
        e("s_mov_b32 %s, %s" % (T[7], T[2]))
        e("v_xor_b32 %s, 31, %s" % (v(vFV + 1), v(vFV + 1)))
        publish_x(sLB, XF, ST, 0, FX, 84)
        poll(T[5])
        e("v_xor_b32 %s, 31, %s" % (v(vFV + 1), v(vFV + 1)))
        e("s_mov_b32 %s, %s" % (T[1], T[6]))
        e("s_mov_b32 %s, %s" % (T[2], T[7]))
    lab(out)


def slot(dst, base, terms):
    e("s_add_u32 %s, %s, %d" % (dst, sFB, base * 64))
    for r, m in terms:
        e("s_mul_i32 %s, %s, %d" % (T[9], r, m * 64))
        e("s_add_u32 %s, %s, %s" % (dst, dst, T[9]))


def addr(dst, base_reg, const, terms):
    if base_reg is None:
        e("s_mov_b32 %s, 0x%x" % (dst, const))
    else:
        e("s_add_u32 %s, %s, 0x%x" % (dst, base_reg, const))
    for r, m in terms:
        e("s_mul_i32 %s, %s, %d" % (T[9], r, m))
        e("s_add_u32 %s, %s, %s" % (dst, dst, T[9]))


def load_frags(sg, first, n, reg_of, rebase=True):
    for j in range(first, first + n):
        if j % 4 == 0 or (j == first and rebase):
            e("s_add_u32 %s, %s, %d" % (T[8], sg, (j // 4) * 4096))
        e("buffer_load_dwordx4 %s, %s, %s, %s offen offset:%d sc1" %
          (v(reg_of(j), 4), v(vL16), sWS, T[8], (j % 4) * 1024))


def mfma(d, a, b, c):
    e("v_mfma_f32_32x32x16_bf16 %s, %s, %s, %s" % (v(d, 16), v(a, 4), v(b, 4), c if isinstance(c, str) else v(c, 16)))


def half_sum(a, b):
    e("s_nop 1")
    e("v_permlane32_swap_b32 %s, %s" % (v(a), v(b)))
    e("s_nop 1")
    e("v_add_f32 %s, %s, %s" % (v(a), v(a), v(b)))


def tile_stats(y, t):
    e("v_pk_add_f32 %s, %s, %s" % (v(t, 2), v(y, 2), v(y + 2, 2)))
    e("v_pk_mul_f32 %s, %s, %s" % (v(t + 2, 2), v(y, 2), v(y, 2)))
    for p in range(1, 8):
        if p > 1:
            e("v_pk_add_f32 %s, %s, %s" % (v(t, 2), v(t, 2), v(y + 2 * p, 2)))
        e("v_pk_fma_f32 %s, %s, %s, %s" % (v(t + 2, 2), v(y + 2 * p, 2), v(y + 2 * p, 2), v(t + 2, 2)))
    e("v_add_f32 %s, %s, %s" % (v(t), v(t), v(t + 1)))
    e("v_add_f32 %s, %s, %s" % (v(t + 2), v(t + 2), v(t + 3)))
    half_sum(t, t + 2)


def unpack(dst, src, n):
    for i in range(n):
        e("v_lshlrev_b32 %s, 16, %s" % (v(dst + 2 * i), v(src + i)))
        e("v_and_b32 %s, 0xffff0000, %s" % (v(dst + 2 * i + 1), v(src + i)))


def publish_x(lb, xoff, stoff, fbase_add, fbase, ystat, between=None):
    addr(T[0], lb, xoff, [(sTBN, XSTR), (sNT, 2048)])
    e("s_lshr_b32 %s, %s, 2" % (T[2], sNT))
    e("s_and_b32 %s, %s, 3" % (T[8], sNT))
    addr(T[1], lb, stoff, [(sTBN, 4096), (T[2], 1024), (T[8], 4)])
    lstores(["buffer_store_dwordx4 %s, %s, %s, %s offen" % (v(vRES, 4), v(vL16), sWS, T[0]),
             "buffer_store_dwordx4 %s, %s, %s, %s offen offset:1024" % (v(vRES + 4, 4), v(vL16), sWS, T[0]),
             "buffer_store_dword %s, %s, %s, %s offen" % (v(ystat), v(vL16), sWS, T[1])])
    slot(T[2], fbase, [(sTBN, 16), (sNT, 1)])
    if fbase_add:
        e("s_add_u32 %s, %s, %d" % (T[2], T[2], fbase_add))
    if between:
        between()
    flag(T[2], local=True)


def prologue():
    e("s_cmp_ge_u32 s2, 256")
    e("s_cbranch_scc1 L_end")
    e("s_load_dwordx16 s[12:27], s[0:1], 0")
    e("s_load_dwordx4 s[28:31], s[0:1], 64")
    e("s_load_dwordx2 s[32:33], s[0:1], 80")
    e("v_lshrrev_b32 v1, 6, v0")
    e("v_and_b32 v0, 63, v0")
    e("v_readfirstlane_b32 %s, v1" % sW)
    e("v_lshlrev_b32 %s, 4, v0" % v(vL16))
    cm("column part of a transposing-read address: (lane&3)*8 + ((lane>>4)&1)*32")
    e("v_and_b32 %s, 3, v0" % v(vTR))
    e("v_lshlrev_b32 %s, 3, %s" % (v(vTR), v(vTR)))
    e("v_bfe_u32 %s, v0, 4, 1" % v(vT5))
    e("v_lshl_or_b32 %s, %s, 5, %s" % (v(vTR), v(vT5), v(vTR)))
    e("v_lshrrev_b32 %s, 5, v0" % v(vT5))
    e("v_lshlrev_b32 %s, 4, %s" % (v(vH16), v(vT5)))
    cm("K fragments are stored with token bits 2 and 3 swapped (matches the sparse-MFMA key order)")
    e("v_and_b32 %s, 0x33, v0" % v(vK16))
    e("v_and_b32 %s, 4, v0" % v(vPO))
    e("v_lshl_or_b32 %s, %s, 1, %s" % (v(vK16), v(vPO), v(vK16)))
    e("v_and_b32 %s, 8, v0" % v(vPO))
    e("v_lshrrev_b32 %s, 1, %s" % (v(vPO), v(vPO)))
    e("v_or_b32 %s, %s, %s" % (v(vK16), v(vK16), v(vPO)))
    e("v_lshlrev_b32 %s, 4, %s" % (v(vK16), v(vK16)))
    cm("V store offset: head parity*128K + half*512 + d*16")
    e("v_and_b32 %s, 15, v0" % v(vVOF))
    e("v_lshlrev_b32 %s, 4, %s" % (v(vVOF), v(vVOF)))
    e("v_lshl_or_b32 %s, %s, 9, %s" % (v(vVOF), v(vT5), v(vVOF)))
    e("v_bfe_u32 %s, v0, 4, 1" % v(vPO))
    e("v_lshl_or_b32 %s, %s, 17, %s" % (v(vVOF), v(vPO), v(vVOF)))
    e("s_and_b32 %s, s2, 7" % sXCD)
    e("s_lshr_b32 %s, s2, 3" % sJ)
    e("s_and_b32 %s, %s, 3" % (sHW, sW))
    e("s_and_b32 %s, %s, 15" % (sC, sJ))
    e("s_lshr_b32 %s, %s, 4" % (T[0], sJ))
    e("s_lshl_b32 %s, %s, 2" % (T[0], T[0]))
    e("s_add_u32 %s, %s, %s" % (sTBW, T[0], sHW))
    e("s_and_b32 %s, %s, 7" % (sNB, sJ))
    e("s_lshr_b32 %s, %s, 3" % (T[0], sJ))
    e("s_mov_b32 %s, %s" % (sHEAD, sJ))
    e("s_lshl_b32 %s, %s, 1" % (sTBN, T[0]))
    e("s_and_b32 %s, %s, 1" % (T[0], sW))
    e("s_add_u32 %s, %s, %s" % (sTBN, sTBN, T[0]))
    e("s_lshr_b32 %s, %s, 1" % (sKH, sHW))
    e("s_lshl_b32 %s, %s, 1" % (sNT, sNB))
    e("s_add_u32 %s, %s, %s" % (sNT, sNT, sKH))
    e("s_mov_b32 s62, 0xffff")
    e("s_mov_b32 s63, 0xffff")
    e("s_mov_b32 %s, 0" % sL)
    addr(sLB, None, ARENA, [(sXCD, ARENA_X)])
    e("s_add_u32 %s, %s, 0x%x" % (sFB, sLB, LFL))
    e("s_waitcnt lgkmcnt(0)")
    srd(sWS, 32, WS_SIZE)
    srd(sTMP, 12, 2048 * 1024)
    cm("hand-off tag: ws[0] only tells this launch's flags from an earlier launch's")
    e("s_load_dword %s, s[32:33], 0" % sNONCE)
    if PROFILE:
        e("s_memrealtime s[70:71]")
        e("s_waitcnt lgkmcnt(0)")
        e("s_mov_b32 s68, s70")
        stamp("s18")


def make_tag():
    e("s_waitcnt lgkmcnt(0)")
    e("s_add_u32 %s, %s, 16" % (sNONCE, sNONCE))
    e("v_mov_b32 %s, %s" % (v(vFV), sNONCE))
    e("v_not_b32 %s, %s" % (v(vFV + 1), v(vFV)))


def p0():
    cm("================ P0 (waves 0-3): x tile -> residual registers, fragments and row statistics")
    p0end, noid, nox = newlab("p0end"), newlab("noid"), newlab("nox")
    e("s_cmp_ge_u32 %s, 4" % sW)
    e("s_cbranch_scc1 %s" % nox)
    e("v_and_b32 %s, 31, v0" % v(vPO))
    e("v_lshlrev_b32 %s, 10, %s" % (v(vPO), v(vPO)))
    e("v_lshl_or_b32 %s, %s, 3, %s" % (v(vPO), v(vT5), v(vPO)))
    addr(T[0], None, 0, [(sXCD, 262144), (sTBN, 32768), (sNT, 64)])
    for i in range(4):
        e("buffer_load_dwordx2 %s, %s, %s, %s offen offset:%d" % (v(vRES + 2 * i, 2), v(vPO), sTMP, T[0], 16 * i))
    lab(nox)
    cm("one line per lane: the 32 workgroups of a group pull Wqkv into their L2")
    srd(sTMP, 14, 512 * 3072)
    e("v_lshlrev_b32 v17, 7, v0")
    addr(T[0], None, 0, [(sJ, 384 * 128), (sW, 48 * 128)])
    e("s_mov_b32 exec_hi, 0xffff")
    e("buffer_load_dword v16, v17, %s, %s offen" % (sTMP, T[0]))
    e("s_mov_b64 exec, -1")
    e("s_cmp_ge_u32 %s, 4" % sW)
    e("s_cbranch_scc1 %s" % p0end)
    stamp("s0")
    make_tag()
    e("s_getreg_b32 %s, hwreg(HW_REG_XCC_ID, 0, 4)" % T[7])
    e("s_mov_b32 %s, 1" % sMODE)
    e("v_xor_b32 %s, %s, %s" % (v(vFV + 1), T[7], v(vFV + 1)))
    nid = newlab("nid")
    e("s_cmp_lg_u32 %s, 0" % sW)
    e("s_cbranch_scc1 %s" % nid)
    e("s_lshl_b32 %s, s2, 6" % T[8])
    e("s_add_u32 %s, %s, 0x%x" % (T[8], T[8], FLG + FI * 64))
    flag(T[8], None)
    e("s_waitcnt vmcnt(2)")
    e("s_branch %s" % noid)
    lab(nid)
    e("s_waitcnt vmcnt(1)")
    lab(noid)
    stamp("s1")
    unpack(66, vRES, 8)
    tile_stats(66, 84)
    publish_x(sLB, XF, ST, 0, FX, 84)
    e("s_nop 0")
    e("v_not_b32 %s, %s" % (v(vFV + 1), v(vFV)))
    lab(p0end)
    stamp("s19")


def tr_rows(dst, rowbytes):
    e("v_bfe_u32 %s, v0, 2, 2" % v(dst))
    e("v_lshrrev_b32 %s, 2, %s" % (v(vPD), v(vH16)))
    e("v_add_u32 %s, %s, %s" % (v(dst), v(dst), v(vPD)))
    e("v_mul_u32_u24 %s, %d, %s" % (v(dst), rowbytes, v(dst)))
    e("v_add_u32 %s, %s, %s" % (v(dst), v(dst), v(vTR)))


def voff_128(dst):
    e("v_lshrrev_b32 %s, 3, v0" % v(dst))
    e("v_lshlrev_b32 %s, 10, %s" % (v(dst), v(dst)))
    e("v_and_b32 %s, 7, v0" % v(vPD))
    e("v_lshrrev_b32 %s, 2, v0" % v(vPD + 1))
    e("v_and_b32 %s, 4, %s" % (v(vPD + 1), v(vPD + 1)))
    e("v_xor_b32 %s, %s, %s" % (v(vPD), v(vPD), v(vPD + 1)))
    e("v_lshl_or_b32 %s, %s, 4, %s" % (v(dst), v(vPD), v(dst)))


def voff_192(dst):
    for i in range(3):
        e("v_add_u32 %s, %d, v0" % (v(vPD), 64 * i))
        e("v_mul_u32_u24 %s, 5462, %s" % (v(vPD + 1), v(vPD)))
        e("v_lshrrev_b32 %s, 16, %s" % (v(vPD + 1), v(vPD + 1)))
        e("v_mul_u32_u24 %s, %d, %s" % (v(dst + i), 2752 - 192, v(vPD + 1)))
        e("v_lshl_add_u32 %s, %s, 4, %s" % (v(dst + i), v(vPD), v(dst + i)))


def dma1(vo, sg):
    e("buffer_load_dwordx4 %s, %s, %s offen lds" % (v(vo), sTMP, sg))


def dma_loop(n, body):
    lp = newlab("dl")
    e("s_mov_b32 %s, %d" % (T[2], n))
    lab(lp)
    body()
    e("s_sub_u32 %s, %s, 1" % (T[2], T[2]))
    e("s_cmp_lg_u32 %s, 0" % T[2])
    e("s_cbranch_scc1 %s" % lp)


def dma_w2(piece0, lds0, n, pace=PACE):
    addr(T[0], None, piece0 * 8192, [(sHW, n * 8192), (sNB, 128)])
    addr(T[1], None, lds0, [(sHW, n * 1024)])

    def body():
        e("s_mov_b32 m0, %s" % T[1])
        e("s_add_u32 %s, %s, 1024" % (T[1], T[1]))
        dma1(40, T[0])
        e("s_add_u32 %s, %s, 8192" % (T[0], T[0]))
        if pace:
            e("s_waitcnt vmcnt(%d)" % pace)
    dma_loop(n, body)


def dma_w1(n):
    def body():
        for i in range(3):
            e("s_add_u32 m0, %s, %d" % (T[1], 1024 * i))
            e("s_nop 0")
            dma1(44 + i, T[0])
        e("s_add_u32 %s, %s, %d" % (T[0], T[0], 16 * 2752))
        e("s_add_u32 %s, %s, 3072" % (T[1], T[1]))
    dma_loop(n, body)


def wq_begin():
    srd(sTMP, 14, 512 * 3072)
    e("v_lshrrev_b32 v40, 2, v0")
    e("v_mul_u32_u24 v40, 3072, v40")
    e("v_and_b32 v41, 3, v0")
    e("v_lshl_or_b32 v40, v41, 4, v40")
    addr(T[3], None, 0, [(sHW, 2 * 49152), (sC, 64)])
    e("s_lshl_b32 %s, %s, 11" % (T[4], sHW))


def wq_chunk(pace=None):
    for dk in range(2):
        for i in range(3):
            e("s_add_u32 m0, %s, %d" % (T[4], i * 31744 + dk * 1024))
            e("s_nop 0")
            e("buffer_load_dwordx4 v40, %s, %s offen offset:%d lds" % (sTMP, T[3], i * 1024))
            if pace is not None:
                e("s_waitcnt vmcnt(%d)" % pace)
        e("s_add_u32 %s, %s, %d" % (T[3], T[3], 49152 if dk == 0 else 7 * 49152))
    e("s_add_u32 %s, %s, 8192" % (T[4], T[4]))


CSA = 64


def colsum_begin(rowbytes, step, tilestep):
    tr_rows(43, rowbytes)
    for r in range(48):
        e("v_mov_b32 v%d, 0" % (CSA + r))
    for r in range(4):
        e("v_mov_b32 v%d, 0x3f803f80" % (52 + r))
    e("s_mul_i32 %s, %s, %d" % (T[6], sHW, tilestep))
    e("s_mov_b32 %s, %d" % (T[5], step))
    e("s_cmp_eq_u32 %s, 3" % sHW)
    e("s_cselect_b32 %s, %d, %s" % (T[5], tilestep, T[5]))
    e("s_cselect_b32 %s, %d, %s" % (T[6], 3 * step, T[6]))


def colsum_quads(n, step, second, last=None):
    lp = newlab("cs")
    e("s_add_u32 %s, %s, %s" % (T[0], T[0], T[6]))
    if last:
        e("s_cmp_eq_u32 %s, 3" % sHW)
        e("s_cselect_b32 %s, %d, %s" % (T[0], last[1], T[0]))
    e("v_add_u32 v42, %s, v43" % T[0])
    e("v_add_u32 v48, %s, v42" % T[5])
    e("v_add_u32 v56, %s, v48" % T[5])
    if last:
        sk = newlab("cs")
        e("s_cbranch_scc1 %s" % sk)
        e("s_add_u32 %s, %s, %d" % (T[0], T[6], last[0]))
        e("v_add_u32 v56, %s, v43" % T[0])
        lab(sk)
    e("s_mov_b32 %s, %d" % (T[0], n))
    lab(lp)
    for i, a in enumerate((42, 48, 56)):
        for h in range(2):
            e("ds_read_b64_tr_b16 %s, v%d offset:%d" % (v(16 + 4 * i + 2 * h, 2), a, h * second))
        e("v_add_u32 v%d, %d, v%d" % (a, 4 * step, a))
    for i in range(3):
        e("s_waitcnt lgkmcnt(%d)" % (4 - 2 * i))
        mfma(CSA + 16 * i, 52, 16 + 4 * i, CSA + 16 * i)
    e("s_sub_u32 %s, %s, 1" % (T[0], T[0]))
    e("s_cmp_lg_u32 %s, 0" % T[0])
    e("s_cbranch_scc1 %s" % lp)


def colsum_end(dst_l):
    w3, dn = newlab("ce"), newlab("ce")
    e("v_and_b32 v41, 31, v0")
    e("v_lshlrev_b32 v41, 2, v41")
    e("v_add_u32 v41, %d, v41" % dst_l)
    e("s_nop 7")
    e("s_mov_b32 exec_hi, 0")
    e("s_cmp_eq_u32 %s, 3" % sHW)
    e("s_cbranch_scc1 %s" % w3)
    e("v_add_f32 v50, v%d, v%d" % (CSA, CSA + 16))
    e("s_lshl_b32 %s, %s, 7" % (T[0], sHW))
    e("v_add_f32 v50, v50, v%d" % (CSA + 32))
    e("v_add_u32 v42, %s, v41" % T[0])
    e("ds_add_f32 v42, v50")
    e("s_branch %s" % dn)
    lab(w3)
    for i in range(3):
        e("ds_add_f32 v41, v%d offset:%d" % (CSA + 16 * i, 128 * i))
    lab(dn)
    e("s_mov_b64 exec, -1")


def stats_code(second_ln):
    c = []
    for k in range(1, 16):
        c.append("v_add_f32 %s, %s, %s" % (v(vSTS), v(vSTS), v(vSTS + k)))
    c += ["v_mov_b32 %s, %s" % (v(vSTS + 1), v(vSTS)), "s_nop 1",
          "v_permlane32_swap_b32 %s, %s" % (v(vSTS), v(vSTS + 1)), "s_nop 1",
          "v_mul_f32 %s, %s, %s" % (v(vMU), f32(1.0 / 512), v(vSTS)),
          "v_mul_f32 %s, %s, %s" % (v(vSTS + 1), f32(1.0 / 512), v(vSTS + 1)),
          "v_fma_f32 %s, -%s, %s, %s" % (v(vSTS + 1), v(vMU), v(vMU), v(vSTS + 1)),
          "v_max_f32 %s, 0, %s" % (v(vSTS + 1), v(vSTS + 1)),
          "v_add_f32 %s, %s, %s" % (v(vSTS + 2), f32(1e-5), v(vSTS + 1)),
          "v_rsq_f32 %s, %s" % (v(vR), v(vSTS + 2)), "s_nop 0"]
    if second_ln:
        c += ["v_mul_f32 %s, %s, %s" % (v(vSTS + 2), v(vR), v(vR)),
              "v_mul_f32 %s, %s, %s" % (v(vSTS + 2), v(vSTS + 2), v(vSTS + 1)),
              "v_add_f32 %s, %s, %s" % (v(vSTS + 2), f32(1e-5), v(vSTS + 2)),
              "v_rsq_f32 %s, %s" % (v(vSTS + 2), v(vSTS + 2)), "s_nop 0",
              "v_mul_f32 %s, %s, %s" % (v(vR), v(vR), v(vSTS + 2))]
    return c


def wide_compute_front(fbase, xoff, stoff, qkv_phase, tail_code):
    ph = "q" if qkv_phase else "f"
    e("v_and_b32 %s, 15, v0" % v(vPO))
    e("v_lshlrev_b32 %s, 6, %s" % (v(vPO), v(vPO)))
    slot(T[0], fbase, [(sTBW, 16)])
    addr(T[1], sLB, xoff, [(sTBW, XSTR)])
    addr(T[2], sLB, stoff, [(sTBW, 4096)])
    e("v_add_u32 %s, %d, %s" % (v(vCA), CONST, v(vH16)))
    if qkv_phase:
        tr_rows(vW0, 64)
        e("v_add_u32 %s, 0x10000, %s" % (v(vW1), v(vW0)))
        e("s_barrier")
    else:
        tr_rows(vW2, 192)
        e("v_add_u32 %s, 0x10000, %s" % (v(vW0), v(vW2)))
        e("v_add_u32 %s, %d, %s" % (v(vW1), 21 * 3072, v(vW0)))

    def rd(ks, i):
        d = vWB + (ks % 3) * 12 + 4 * i
        if qkv_phase:
            base, off, sec = ((vW0, i * 32768 + ks * 1024) if i < 2 else (vW1, ks * 1024)) + (512,)
        else:
            base, off = (vW0, ks * 3072) if ks < 21 else (vW1, (ks - 21) * 3072) if ks < 30 else (vW2, 58 * 1024 + (ks - 30) * 3072)
            off, sec = off + 64 * i, 1536
        e("ds_read_b64_tr_b16 %s, %s offset:%d" % (v(d, 2), v(base), off))
        e("ds_read_b64_tr_b16 %s, %s offset:%d" % (v(d + 2, 2), v(base), off + sec))
    for ks in range(2):
        for i in range(3):
            rd(ks, i)
    if qkv_phase:
        l1, l2 = newlab("fx"), newlab("fx")
        e("s_cmp_lg_u32 %s, 0" % sL)
        e("s_cbranch_scc1 %s" % l1)
        mode_poll(True)
        e("s_branch %s" % l2)
        lab(l1)
        poll(T[0])
        lab(l2)
    else:
        poll(T[0])
    stamp()

    def item(n):
        if n < 32:
            load_frags(T[1], n, 1, lambda j: vA + 4 * j, n % 4 == 0)
        elif n < 36:
            e("buffer_load_dwordx4 %s, %s, %s, %s offen offset:%d sc1" % (v(vSTS + 4 * (n - 32), 4), v(vL16), sWS, T[2], 1024 * (n - 32)))
    for n in range(DEPTH):
        item(n)
    if qkv_phase:
        e("s_barrier")
    fine(ph)
    st = stats_code(not qkv_phase)
    per = -(-len(st) // 8)
    for ks in range(32):
        if ks in ((6, 14, 22, 30) if qkv_phase else (6, 26)):
            e("s_barrier")
        e("s_waitcnt vmcnt(%d) lgkmcnt(%d)" % (0 if ks >= 29 else min(36, DEPTH + ks) - ks - 1, 6 if ks < 31 else 0))
        if ks in (0, 8, 16, 31):
            fine(ph)
        for i in range(3):
            w, a = vWB + (ks % 3) * 12 + 4 * i, vA + 4 * ks
            c = "0" if ks == 0 else vACC + 16 * i
            if qkv_phase and i == 2:
                mfma(vACC + 16 * i, a, w, c)
            else:
                mfma(vACC + 16 * i, w, a, c)
            if ks + 2 < 32:
                rd(ks + 2, i)
            if i == 0:
                item(ks + DEPTH)
            if ks >= 29:
                g = (ks - 29) * 3 + i
                for x in st[g * per:(g + 1) * per]:
                    e(x)
            if ks == 31:
                tail_code(i)
    e("s_barrier")
    stamp()


def center(acc, cs, p):
    e("v_pk_fma_f32 %s, %s, %s, %s op_sel_hi:[0,1,1] neg_lo:[1,0,0] neg_hi:[1,0,0]" %
      (v(acc + 2 * p, 2), v(vMU, 2), v(cs + 2 * p, 2), v(acc + 2 * p, 2)))


PKV = 116


def qkv():
    cm("================ QKV projection")
    hl, done = newlab("qkv_h"), newlab("qkv_done")
    e("s_cmp_ge_u32 %s, 4" % sW)
    e("s_cbranch_scc1 %s" % hl)

    def tail(m):
        if m < 2:
            for i in range(4):
                e("ds_read_b128 %s, %s offset:%d" % (v(32 - 16 * m + 4 * i, 4), v(vCA), (1 - m) * 128 + 32 * i))
            return
        e("v_and_b32 v48, 31, v0")
        e("v_lshlrev_b32 v48, 2, v48")
        addr(T[0], None, STAT_L, [(sHW, 256)])
        e("v_add_u32 v49, %s, v48" % T[0])
        e("v_add_u32 v50, %s, %s" % (T[0], v(vH16)))
        e("v_add_u32 v48, %d, v48" % CSQ_L)
        e("ds_write_b32 v49, %s" % v(vMU))
        e("ds_write_b32 v49, %s offset:128" % v(vR))
        e("v_mul_f32 %s, %s, %s" % (v(vRQ), f32(0.25 * 1.4426950408889634), v(vR)))
    wide_compute_front(FX, XF, ST, True, tail)
    e("ds_read_b32 v52, v48 offset:256")
    for i in range(4):
        e("ds_read_b128 %s, v50 offset:%d" % (v(64 + 4 * i, 4), 32 * i))
    for i in range(4):
        e("ds_read_b128 %s, v50 offset:%d" % (v(80 + 4 * i, 4), 128 + 32 * i))
    addr(T[0], sLB, QF, [(sC, 2048), (sTBW, HSTR)])
    e("s_add_u32 %s, %s, 1024" % (T[1], T[0]))
    addr(T[2], sLB, KVL, [(sC, 4096), (sTBW, HSTR)])
    e("s_add_u32 %s, %s, 2048" % (T[3], T[2]))
    addr(T[4], None, KVF, [(sL, KVF_L), (sC, 2 * 131072), (sXCD, 16384), (sTBW, 2048)])
    e("s_add_u32 %s, %s, 0x20000" % (T[5], T[4]))
    e("v_and_b32 v51, 0x1ffff, %s" % v(vVOF))
    e("v_lshrrev_b32 v54, 17, %s" % v(vVOF))
    e("v_lshl_or_b32 v51, v54, 11, v51")
    P = PKV

    def row_tile(t):
        acc = vACC + 16 * t
        for p in range(8):
            center(acc, 16 + 16 * t, p)
        for p in range(8):
            e("v_pk_mul_f32 %s, %s, %s op_sel_hi:[1,0]" % (v(acc + 2 * p, 2), v(acc + 2 * p, 2), v(vRQ if t == 0 else vR, 2)))
        for p in range(8):
            e("v_cvt_pk_bf16_f32 %s, %s, %s" % (v(P + 8 * t + p), v(acc + 2 * p), v(acc + 2 * p + 1)))
    e("s_waitcnt lgkmcnt(15)")
    row_tile(1)
    cm("K and V get a write-through copy for the other dies and a copy for this die group")
    for hh in range(2):
        e("buffer_store_dwordx4 %s, %s, %s, %s offen sc1" % (v(P + 8 + 4 * hh, 4), v(vK16), sWS, T[4 + hh]))
    acc = vACC + 32
    e("s_waitcnt lgkmcnt(0)")
    for p in range(8):
        e("v_pk_fma_f32 %s, %s, v[52:53], %s op_sel_hi:[1,0,1] neg_lo:[1,0,0] neg_hi:[1,0,0]" %
          (v(acc + 2 * p, 2), v(64 + 2 * p, 2), v(acc + 2 * p, 2)))
    for p in range(8):
        e("v_pk_mul_f32 %s, %s, %s" % (v(acc + 2 * p, 2), v(acc + 2 * p, 2), v(80 + 2 * p, 2)))
    for p in range(8):
        e("v_cvt_pk_bf16_f32 %s, %s, %s" % (v(P + 16 + p), v(acc + 2 * p), v(acc + 2 * p + 1)))
    for t in range(2):
        e("buffer_store_dwordx4 %s, %s, %s, %s offen offset:%d sc1" % (v(P + 16 + 4 * t, 4), v(vVOF), sWS, T[4], 1024 + 256 * t))
    row_tile(0)
    lstores(["buffer_store_dwordx4 %s, %s, %s, %s offen" % (v(P + 8 + 4 * hh, 4), v(vK16), sWS, T[2 + hh]) for hh in range(2)] +
            ["buffer_store_dwordx4 %s, v51, %s, %s offen offset:%d" % (v(P + 16 + 4 * t, 4), sWS, T[2], 1024 + 256 * t) for t in range(2)] +
            ["buffer_store_dwordx4 %s, %s, %s, %s offen" % (v(P + 4 * hh, 4), v(vL16), sWS, T[hh]) for hh in range(2)])
    fine("q")
    slot(T[0], FQ, [(sC, 8), (sTBW, 1)])
    addr(T[1], None, FLG + FQG * 64, [(sL, FQG_L * 64), (sC, 4096), (sXCD, 512), (sTBW, 64)])
    flag(T[0], 0, local=True)
    flag(T[1], None)
    e("s_branch %s" % done)
    lab(hl)
    h1, lp = newlab("qh1"), newlab("qhl")
    e("s_cmp_lg_u32 %s, 0" % sL)
    e("s_cbranch_scc1 %s" % h1)
    wq_begin()
    make_tag()
    e("s_waitcnt vmcnt(0)")
    dma_loop(2, lambda: wq_chunk(QPACE))
    e("v_lshlrev_b32 v42, 4, v0")
    e("v_add_u32 v42, %d, v42" % CONST)
    colsum_begin(64, 1024, 32768)
    e("ds_write_b128 v42, %s" % v(CSA, 4))
    e("s_mov_b32 %s, 0" % sIT)
    lab(lp)
    b1, b2, b3 = newlab("qw"), newlab("qw"), newlab("qw")
    e("s_waitcnt vmcnt(6) lgkmcnt(0)")
    e("s_cmp_lt_u32 %s, 3" % sIT)
    e("s_cbranch_scc1 %s" % b1)
    e("s_waitcnt vmcnt(0)")
    lab(b1)
    e("s_barrier")
    e("s_cmp_lg_u32 %s, 0" % sIT)
    e("s_cbranch_scc1 %s" % b2)
    e("s_barrier")
    lab(b2)
    e("s_cmp_ge_u32 %s, 2" % sIT)
    e("s_cbranch_scc1 %s" % b3)
    wq_chunk()
    lab(b3)
    e("s_lshl_b32 %s, %s, 13" % (T[0], sIT))
    colsum_quads(2, 1024, 512)
    e("s_add_u32 %s, %s, 1" % (sIT, sIT))
    e("s_cmp_lt_u32 %s, 4" % sIT)
    e("s_cbranch_scc1 %s" % lp)
    colsum_end(CSQ_L)
    e("s_waitcnt lgkmcnt(0)")
    e("s_barrier")
    cm("park the weight tile in registers for the second layer pair")
    e("s_mul_i32 %s, %s, 24576" % (T[0], sHW))
    e("v_add_u32 v42, %s, %s" % (T[0], v(vL16)))
    for k in range(24):
        e("ds_read_b128 %s, v42 offset:%d" % (v(vSTASH + 4 * k, 4), 1024 * k))
    e("s_waitcnt lgkmcnt(0)")
    e("s_barrier")
    mode_poll()
    e("s_branch %s" % done)
    lab(h1)
    e("s_waitcnt lgkmcnt(0)")
    for _ in range(7):
        e("s_barrier")
    lab(done)
    stamp()


def attention():
    cm("================ attention: S^T = K Q^T, P = exp2(S^T), O^T += V^T P via sparse MFMA")
    S, O, Q, KB, VB, IDX, AD, VO, CN = (16, 32), 48, 64, (68, 72), (76, 84), 92, 93, 94, 100
    PF = 100
    KVG, LP, CH, GF, ISS = T[2], T[3], T[4], T[5], T[6]
    for i in range(16):
        e("v_mov_b32 %s, 0" % v(O + i))
        e("v_mov_b32 %s, 0x3f803f80" % v(VB[0] + i))
    for i in range(8):
        e("v_mov_b32 %s, 0" % v(S[1] + 8 + i))
    e("v_mov_b32 %s, 0xdddddddd" % v(IDX))
    e("v_mov_b32 %s, %s" % (v(AD), v(vL16)))
    voff_128(VO)
    voff_192(VO + 1)
    e("s_mov_b32 %s, 1" % ISS)
    a1 = newlab("a1")
    e("s_cmp_lt_u32 %s, 4" % sW)
    e("s_cbranch_scc1 %s" % a1)
    cm("waves 4-7 fetch Q and this die's K/V, and later the other dies' K/V")
    e("v_and_b32 %s, 7, v0" % v(vPO))
    e("v_lshlrev_b32 %s, 6, %s" % (v(vPO), v(vPO)))
    e("s_lshr_b32 %s, %s, 1" % (T[1], sHEAD))
    addr(GF, None, FLG + FQG * 64, [(sL, FQG_L * 64), (T[1], 4096)])
    slot(T[0], FQ, [(T[1], 8)])
    addr(T[1], sLB, QF, [(sHEAD, 1024), (sHW, 2 * HSTR)])
    addr(KVG, None, KVF, [(sL, KVF_L), (sHEAD, 131072), (sHW, 4096)])
    addr(T[8], sLB, KVL, [(sHEAD, 2048), (sHW, 2 * HSTR)])
    addr(T[7], None, QL, [(sHW, 2048)])
    e("s_lshl_b32 %s, %s, 12" % (LP, sHW))
    e("s_add_u32 %s, %s, 1" % (CH, sXCD))
    e("s_mov_b32 %s, 0" % ISS)
    poll(T[0])
    for b in range(2):
        e("s_add_u32 m0, %s, %d" % (LP, 2048 * b))
        e("v_lshlrev_b32 %s, 6, v0" % v(vPO))
        for i in range(2):
            e("buffer_load_dwordx4 %s, %s, %s offen offset:%d sc1 lds" % (v(vL16), sWS, T[8], 1024 * i))
        e("s_add_u32 m0, %s, %d" % (T[7], 1024 * b))
        e("s_add_u32 %s, %s, %d" % (T[8], T[8], HSTR))
        e("buffer_load_dwordx4 %s, %s, %s offen sc1 lds" % (v(vL16), sWS, T[1]))
        e("s_add_u32 %s, %s, %d" % (T[1], T[1], HSTR))

    def gflag_load():
        e("buffer_load_dwordx2 %s, %s, %s, %s offen sc1" % (v(vPD, 2), v(vPO), sWS, GF))

    def kv_issue():
        e("s_and_b32 %s, %s, 7" % (CH, CH))
        e("s_lshl_b32 %s, %s, 14" % (T[9], CH))
        e("s_add_u32 %s, %s, 16384" % (LP, LP))
        e("s_add_u32 %s, %s, %s" % (T[9], T[9], KVG))
        e("s_mov_b32 m0, %s" % LP)
        e("s_add_u32 %s, %s, 1" % (CH, CH))
        for i in range(4):
            e("buffer_load_dwordx4 %s, %s, %s offen offset:%d sc1 lds" % (v(vL16), sWS, T[9], 1024 * i))

    def kv_issue_helpers():
        sk, cw = newlab("kvs"), newlab("kvc")
        e("s_cmp_lt_u32 %s, 4" % sW)
        e("s_cbranch_scc1 %s" % cw)
        kv_issue()
        lab(sk)
        ft = newlab("ft")
        TAIL.extend([ft + ":", "    s_cmp_lg_u32 %s, %s" % (sIT, T[8]), "    s_cbranch_scc1 %s" % sk,
                     "    buffer_load_dword %s, %s, s[64:67], %s offen" % (v(PF + 2), v(PF), T[1]), "    s_branch %s" % sk])
        TAIL.extend([cw + ":", "    s_cmp_lt_u32 %s, 4" % sIT, "    s_cbranch_scc1 %s" % ft, "    s_mov_b32 exec_hi, 0",
                     "    buffer_load_dword %s, %s, %s, %s offen" % (v(PF + 2), v(PF + 1), sTMP, T[7]),
                     "    s_mov_b64 exec, -1", "    s_add_u32 %s, %s, %d" % (T[7], T[7], 16 * 2752),
                     "    s_branch %s" % sk])
    e("s_waitcnt vmcnt(0)")
    gflag_load()
    lab(a1)
    addr(T[0], None, QL, [(sW, 1024)])
    e("v_add_u32 v16, %s, %s" % (T[0], v(vL16)))
    e("s_barrier")
    stamp()

    def rdk(t):
        e("ds_read_b128 %s, %s offset:%d" % (v(KB[t & 1], 4), v(AD), t * 2048))

    def rdv(t):
        e("s_mov_b64 exec, %s" % sMV)
        e("ds_read_b128 %s, %s offset:%d" % (v(VB[t & 1], 4), v(AD), t * 2048 + 1024))
        e("ds_read_b128 %s, %s offset:%d" % (v(VB[t & 1] + 4, 4), v(AD), t * 2048 + 1280))
        e("s_mov_b64 exec, -1")

    def smf(vb, p):
        e("v_smfmac_f32_32x32x32_bf16 %s, %s, %s, %s" % (v(O, 16), v(vb, 4), v(p, 8), v(IDX)))

    def ex(cur, a, b):
        for i in range(a, b):
            e("v_exp_f32 %s, %s" % (v(S[cur] + i), v(S[cur] + i)))

    def tile(t, extra=None):
        cur, nxt = t & 1, (t + 1) & 1
        ex(cur, 0, 2)
        smf(VB[nxt] + 4, S[nxt] + 8)
        rdv(t + 1)
        ex(cur, 2, 6)
        e("s_waitcnt lgkmcnt(2)")
        mfma(S[nxt], KB[nxt], Q, "0")
        rdk(t + 2)
        if extra:
            extra()
        ex(cur, 6, 12)
        smf(VB[cur], S[cur])
        ex(cur, 12, 16)
    e("ds_read_b128 %s, v16" % v(Q, 4))
    rdk(0)
    rdv(0)
    rdk(1)
    e("s_waitcnt lgkmcnt(3)")
    mfma(S[0], KB[0], Q, "0")
    e("s_mov_b32 %s, 0" % sIT)
    e("s_mov_b32 %s, %d" % (sCNT, POLL_LIMIT))
    e("s_nop 7")
    cm("keys of this die first; the other dies' K/V are requested as soon as their flags arrive")
    loc, go, retry, issue, chk3 = (newlab(x) for x in ("loc", "go", "retry", "issue", "chk3"))
    lab(loc)
    e("s_cmp_eq_u32 %s, 0" % sIT)
    e("s_cbranch_scc1 %s" % go)
    e("s_cmp_lg_u32 %s, 0" % ISS)
    e("s_cbranch_scc1 %s" % chk3)
    lab(retry)
    e("s_waitcnt vmcnt(0)")
    e("v_cmp_eq_u64 vcc, %s, %s" % (v(vPD, 2), v(vFV, 2)))
    e("s_nop 1")
    e("s_cmp_eq_u64 vcc, -1")
    e("s_cbranch_scc1 %s" % issue)
    gflag_load()
    e("s_cmp_lt_u32 %s, 3" % sIT)
    e("s_cbranch_scc1 %s" % go)
    e("s_sub_u32 %s, %s, 1" % (sCNT, sCNT))
    e("s_cbranch_scc0 %s" % retry)
    e("s_endpgm")
    lab(issue)
    kv_issue()
    kv_issue()
    e("s_mov_b32 %s, 1" % ISS)
    lab(chk3)
    e("s_cmp_lt_u32 %s, 3" % sIT)
    e("s_cbranch_scc1 %s" % go)
    e("s_waitcnt vmcnt(4)")
    e("s_barrier")
    lab(go)
    tile(0)
    tile(1)
    e("v_add_u32 %s, 4096, %s" % (v(AD), v(AD)))
    e("s_add_u32 %s, %s, 1" % (sIT, sIT))
    e("s_cmp_lt_u32 %s, 4" % sIT)
    e("s_cbranch_scc1 %s" % loc)
    fine("a")
    cm("first layer pair, waves 1-3: first touch of Wo / W1 / W2 (one line per lane, spread over all workgroups)")
    e("s_mov_b32 s66, %d" % (1376 * 1024))
    e("s_mov_b32 %s, %d" % (T[1], 43 * 128))
    e("s_cmp_eq_u32 %s, 2" % sW)
    e("s_cselect_b64 s[64:65], s[20:21], s[24:25]")
    e("s_cmp_eq_u32 %s, 1" % sW)
    e("s_cselect_b64 s[64:65], s[16:17], s[64:65]")
    e("s_cselect_b32 s66, %d, s66" % (512 * 1024))
    e("s_cselect_b32 %s, %d, %s" % (T[1], 16 * 128, T[1]))
    e("s_and_b32 s65, s65, 0xffff")
    e("s_mov_b32 s67, 0x20000")
    e("s_mul_i32 %s, %s, s2" % (T[1], T[1]))
    e("v_lshlrev_b32 %s, 7, v0" % v(PF))
    e("s_cmp_eq_u32 %s, 0" % sL)
    e("s_cselect_b32 %s, 1, 99" % T[8])
    e("s_cmp_eq_u32 %s, 0" % sW)
    e("s_cselect_b32 %s, 99, %s" % (T[8], T[8]))
    cm("lines of the W1 rows that are loaded after attention (128-351, 480-511): half per workgroup of a pair")
    srd(sTMP, 20, 512 * 2752)
    e("s_lshr_b32 %s, %s, 4" % (T[0], sJ))
    addr(T[7], None, 128, [(T[0], 128), (sHW, 32)])
    e("s_cmp_eq_u32 %s, 352" % T[7])
    e("s_cselect_b32 %s, 480, %s" % (T[7], T[7]))
    e("s_mul_i32 %s, %s, 2752" % (T[7], T[7]))
    e("s_mul_i32 %s, %s, 192" % (T[0], sC))
    e("s_add_u32 %s, %s, %s" % (T[7], T[7], T[0]))
    e("v_lshrrev_b32 %s, 1, v0" % v(PF + 1))
    e("v_mul_u32_u24 %s, 2752, %s" % (v(PF + 1), v(PF + 1)))
    e("v_and_b32 %s, 1, v0" % v(PF + 2))
    e("v_lshl_add_u32 %s, %s, 7, %s" % (v(PF + 1), v(PF + 2), v(PF + 1)))
    e("s_mov_b32 %s, 1" % sIT)
    loop = newlab("att")
    L.append(".p2align 6")
    lab(loop)
    for t in range(8):
        if t % 2 == 0:
            e("s_setprio %d" % (3 - t // 2))
        if t == 6:
            e("s_waitcnt vmcnt(4)")
            e("s_barrier")
        tile(t, kv_issue_helpers if t == 1 else None)
    e("v_add_u32 %s, 16384, %s" % (v(AD), v(AD)))
    e("s_add_u32 %s, %s, 1" % (sIT, sIT))
    e("s_cmp_lt_u32 %s, 6" % sIT)
    e("s_cbranch_scc1 %s" % loop)
    fine("a")
    cm("last two chunks: stream Wo and part of W1 into the dead K/V space, one piece per tile")
    srd(sTMP, 16, 512 * 1024)
    addr(T[0], None, 0, [(sW, 65536), (sNB, 128)])
    e("s_lshl_b32 %s, %s, 13" % (T[1], sW))

    srd("s[64:67]", 24, 1376 * 1024)
    e("s_lshr_b32 %s, %s, 3" % (T[4], sJ))
    addr(T[2], None, 0, [(T[4], 344 * 1024), (sW, 43 * 1024), (sNB, 128)])
    e("v_lshlrev_b32 %s, 10, v0" % v(PF))

    def w2_lines(trip):
        cm("one line per lane: pull this workgroup's share of W2 into the die's L2")
        e("s_mov_b64 exec, 0x3fffff")
        e("buffer_load_dword %s, %s, s[64:67], %s offen" % (v(PF + 2), v(PF), T[2]))
        e("s_mov_b64 exec, -1")
        e("s_add_u32 %s, %s, %d" % (T[2], T[2], 22 * 1024))

    def wo_piece(t):
        e("s_add_u32 m0, %s, %d" % (T[1], 1024 * t))
        e("s_nop 0")
        dma1(VO, T[0])
        e("s_add_u32 %s, %s, 8192" % (T[0], T[0]))
        if t == 3:
            w2_lines(0)

    def w1_piece(t):
        if t == 1:
            w2_lines(1)
        if t >= 6:
            return
        e("s_add_u32 m0, %s, %d" % (T[1], (t // 3) * 22 * 3072 + (t % 3) * 1024))
        e("s_nop 0")
        dma1(VO + 1 + t % 3, T[0])
        if t == 2:
            e("s_add_u32 %s, %s, %d" % (T[0], T[0], 22 * 16 * 2752))
    for trip in range(2):
        for t in range(8):
            if t % 2 == 0:
                e("s_setprio %d" % (3 - t // 2))
            if t == 6 and trip == 0:
                e("s_waitcnt vmcnt(6)")
                e("s_barrier")
            tile(t + 8 * trip, (lambda t=t: wo_piece(t)) if trip == 0 else (lambda t=t: w1_piece(t)))
        if trip == 0:
            srd(sTMP, 20, 512 * 2752)
            addr(T[0], None, 0, [(sW, 16 * 2752), (sC, 192)])
            addr(T[1], None, 65536, [(sW, 3072)])
    smf(VB[1] + 4, S[1] + 8)
    e("s_setprio 0")
    e("s_waitcnt lgkmcnt(0)")
    e("s_nop 10")
    stamp()
    cm("Softmax guard. The loops above used 0 as a stand-in for the row max. That is exact while the row sum")
    cm("stays in [2^-64, 2^64] and the accumulators are finite; otherwise redo this tile with the true max.")
    fin, slow = newlab("att_fin"), newlab("att_slow")
    e("v_mul_f32 v16, 0, %s" % v(O))
    for i in range(1, 8):
        e("v_fma_f32 v16, %s, 0, v16" % v(O + i))
    e("v_cmp_le_f32 vcc, %s, %s" % (f32(2.0 ** (64 if FORCE_SLOW else -64)), v(O + 8)))
    e("s_mov_b64 %s, vcc" % sM0)
    e("v_cmp_ge_f32 vcc, %s, %s" % (f32(2.0 ** 64), v(O + 8)))
    e("s_and_b64 %s, %s, vcc" % (sM0, sM0))
    e("v_cmp_eq_f32 vcc, 0, v16")
    e("s_and_b64 %s, %s, vcc" % (sM0, sM0))
    e("s_cmp_eq_u64 %s, -1" % sM0)
    e("s_cbranch_scc0 %s" % slow)
    lab(fin)
    e("v_rcp_f32 v16, %s" % v(O + 8))
    addr(T[0], sLB, OF, [(sW, XSTR), (sHEAD, 1024)])
    for p in range(4):
        e("v_pk_mul_f32 %s, %s, v[16:17] op_sel_hi:[1,0]" % (v(O + 2 * p, 2), v(O + 2 * p, 2)))
    for p in range(4):
        e("v_cvt_pk_bf16_f32 %s, %s, %s" % (v(20 + p), v(O + 2 * p), v(O + 2 * p + 1)))
    lstores(["buffer_store_dwordx4 v[20:23], %s, %s, %s offen" % (v(vL16), sWS, T[0])])
    slot(T[2], FA, [(sW, 32), (sHEAD, 1)])
    flag(T[2], 0, local=True)
    e("s_barrier")
    keep = L[:]
    del L[:]
    lab(slow)
    l1, l2 = newlab("slow1"), newlab("slow2")
    addr(T[2], None, KVF, [(sL, KVF_L), (sHEAD, 131072)])
    e("v_mov_b32 %s, 0xff800000" % v(CN))
    e("s_mov_b32 %s, 0" % sIT)
    lab(l1)
    e("buffer_load_dwordx4 %s, %s, %s, %s offen sc1" % (v(KB[0], 4), v(vL16), sWS, T[2]))
    e("s_waitcnt vmcnt(0)")
    mfma(S[0], KB[0], Q, "0")
    e("s_nop 15")
    for i in range(8):
        e("v_max3_f32 %s, %s, %s, %s" % (v(CN), v(S[0] + 2 * i), v(S[0] + 2 * i + 1), v(CN)))
    e("s_add_u32 %s, %s, 2048" % (T[2], T[2]))
    e("s_add_u32 %s, %s, 1" % (sIT, sIT))
    e("s_cmp_lt_u32 %s, 64" % sIT)
    e("s_cbranch_scc1 %s" % l1)
    e("v_mov_b32 %s, %s" % (v(CN + 1), v(CN)))
    e("s_nop 1")
    e("v_permlane32_swap_b32 %s, %s" % (v(CN), v(CN + 1)))
    e("s_nop 1")
    e("v_max_f32 %s, %s, %s" % (v(CN), v(CN), v(CN + 1)))
    e("v_sub_f32 %s, 0, %s" % (v(CN), v(CN)))
    for i in range(1, 16):
        e("v_mov_b32 %s, %s" % (v(CN + i), v(CN)))
    for i in range(16):
        e("v_mov_b32 %s, 0" % v(O + i))
    addr(T[2], None, KVF, [(sL, KVF_L), (sHEAD, 131072)])
    e("s_mov_b32 %s, 0" % sIT)
    lab(l2)
    e("buffer_load_dwordx4 %s, %s, %s, %s offen sc1" % (v(KB[0], 4), v(vL16), sWS, T[2]))
    e("s_mov_b64 exec, %s" % sMV)
    e("buffer_load_dwordx4 %s, %s, %s, %s offen offset:1024 sc1" % (v(VB[0], 4), v(vL16), sWS, T[2]))
    e("buffer_load_dwordx4 %s, %s, %s, %s offen offset:1280 sc1" % (v(VB[0] + 4, 4), v(vL16), sWS, T[2]))
    e("s_mov_b64 exec, -1")
    e("s_waitcnt vmcnt(0)")
    mfma(S[0], KB[0], Q, CN)
    e("s_nop 15")
    for i in range(16):
        e("v_exp_f32 %s, %s" % (v(S[0] + i), v(S[0] + i)))
    e("s_nop 1")
    smf(VB[0], S[0])
    smf(VB[0] + 4, S[0] + 8)
    e("s_nop 15")
    e("s_add_u32 %s, %s, 2048" % (T[2], T[2]))
    e("s_add_u32 %s, %s, 1" % (sIT, sIT))
    e("s_cmp_lt_u32 %s, 64" % sIT)
    e("s_cbranch_scc1 %s" % l2)
    e("s_branch %s" % fin)
    TAIL.extend(L)
    L[:] = keep
    stamp()


def n512(kind):
    wo = kind == "wo"
    ph = "o" if wo else "g"
    cm("================ %s" % ("output projection + residual" if wo else "MLP down projection + residual"))
    NS, J = (16, 16) if wo else (43, 39)
    AK, AS = vACC, vACC + 16
    hl, done = newlab("n_h"), newlab("n_done")
    e("s_cmp_ge_u32 %s, 4" % sW)
    e("s_cbranch_scc1 %s" % hl)
    if not wo:
        srd(sTMP, 26, 1024)
        e("v_lshrrev_b32 %s, 1, %s" % (v(vPO), v(vH16)))
        e("s_lshl_b32 %s, %s, 6" % (T[0], sNT))
        for i in range(4):
            e("buffer_load_dwordx2 %s, %s, %s, %s offen offset:%d" % (v(176 + 2 * i, 2), v(vPO), sTMP, T[0], 16 * i))
    unpack(AK, vRES, 8)
    tr_rows(vW0, 128)
    e("v_bfe_u32 %s, v0, 3, 1" % v(vPD))
    e("v_xor_b32 %s, %s, %s" % (v(vPD), sKH, v(vPD)))
    e("v_lshl_or_b32 %s, %s, 6, %s" % (v(vW0), v(vPD), v(vW0)))
    e("s_mul_i32 %s, %s, %d" % (T[0], sKH, J * 2048))
    e("v_add_u32 %s, %s, %s" % (v(vW0), T[0], v(vW0)))
    e("v_xor_b32 %s, 64, %s" % (v(vW1), v(vW0)))
    if not wo:
        e("v_add_u32 %s, 0x10000, %s" % (v(vW2), v(vW0)))
        e("v_add_u32 %s, 0x10000, %s" % (v(vW3), v(vW1)))
    if wo:
        e("v_and_b32 %s, 15, v0" % v(vPO))
        slot(T[0], FA, [(sTBN, 32), (sKH, 16)])
        addr(T[1], sLB, OF, [(sTBN, XSTR), (sKH, 16384)])
    else:
        e("v_and_b32 %s, 7, v0" % v(vPO))
        slot(T[0], FH, [(sTBN, 16), (sKH, 7)])
        addr(T[1], sLB, HF, [(sTBN, HSTR), (sKH, 43 * 1024)])
    e("v_lshlrev_b32 %s, 6, %s" % (v(vPO), v(vPO)))
    if not wo:
        e("s_waitcnt vmcnt(0)")
        unpack(AS, 176, 8)
        for p in range(8):
            e("v_pk_add_f32 %s, %s, %s" % (v(AK + 2 * p, 2), v(AK + 2 * p, 2), v(AS + 2 * p, 2)))
        e("s_barrier")

    def rd(j, i):
        jj = j % J
        base, off = ((vW0, vW1)[i], jj * 2048) if jj < 32 else ((vW2, vW3)[i], (jj - 32) * 2048)
        d = vWB + (j % 3) * 8 + 4 * i
        e("ds_read_b64_tr_b16 %s, %s offset:%d" % (v(d, 2), v(base), off))
        e("ds_read_b64_tr_b16 %s, %s offset:%d" % (v(d + 2, 2), v(base), off + 1024))
    for j in range(2):
        for i in range(2):
            rd(j, i)
    poll(T[0])
    stamp()
    areg = lambda j: vA + 4 * (j % 32)
    load_frags(T[1], 0, DEPTH, areg)
    fine(ph)
    for j in range(NS):
        issued = min(NS, DEPTH + j)
        if not wo and j == J - 2:
            e("s_barrier")
        e("s_waitcnt vmcnt(%d) lgkmcnt(%d)" % (issued - j - 1, 4 if j + 1 < NS else 0))
        if j in ((0, 4, 8, 15) if wo else (0, 11, 22, 42)):
            fine(ph)
        for i in range(2):
            acc = AK + 16 * i
            mfma(acc, vWB + (j % 3) * 8 + 4 * i, areg(j), "0" if (j == 0 and i == 1) else acc)
            if j + 2 < NS:
                rd(j + 2, i)
            if i == 0 and DEPTH + j < NS:
                load_frags(T[1], DEPTH + j, 1, areg, False)
        if j == (8 if wo else NS - J - 1):
            e("s_barrier")
    e("s_and_b32 %s, %s, 1" % (T[2], sW))
    if wo:
        addr(T[0], None, 0, [(T[2], 4096), (sKH, 32768)])
        e("s_xor_b32 %s, %s, 32768" % (T[1], T[0]))
    else:
        addr(T[0], None, 98304, [(T[2], 4096), (sKH, 8192)])
        e("s_xor_b32 %s, %s, 8192" % (T[1], T[0]))
    e("v_add_u32 v16, %s, %s" % (T[0], v(vL16)))
    e("v_add_u32 v17, %s, %s" % (T[1], v(vL16)))
    e("s_nop 3")
    for i in range(4):
        e("ds_write_b128 v16, %s offset:%d" % (v(AS + 4 * i, 4), 1024 * i))
    e("s_waitcnt lgkmcnt(0)")
    e("s_barrier")
    stamp()
    for i in range(4):
        e("ds_read_b128 %s, v17 offset:%d" % (v(AS + 4 * i, 4), 1024 * i))
    for i in range(4):
        e("s_waitcnt lgkmcnt(%d)" % (3 - i))
        for p in (2 * i, 2 * i + 1):
            e("v_pk_add_f32 %s, %s, %s" % (v(AK + 2 * p, 2), v(AK + 2 * p, 2), v(AS + 2 * p, 2)))
    for p in range(8):
        e("v_cvt_pk_bf16_f32 %s, %s, %s" % (v(vRES + p), v(AK + 2 * p), v(AK + 2 * p + 1)))
    if wo:
        tile_stats(AK, 20)
        publish_x(sLB, X1F, ST1, 0, FO, 20)
    else:
        last = newlab("last")
        e("s_cmp_lg_u32 %s, 0" % sL)
        e("s_cbranch_scc1 %s" % last)
        tile_stats(AK, 20)
        publish_x(sLB, XF, ST, LFL_L * 64, FX, 20)
        e("s_branch %s" % done)
        lab(last)
        srd(sTMP, 28, 2048 * 1024)
        e("v_and_b32 v16, 31, v0")
        e("v_lshlrev_b32 v16, 10, v16")
        e("v_add_u32 v16, v16, %s" % v(vH16))
        addr(T[0], None, 0, [(sXCD, 262144), (sTBN, 32768), (sNT, 64)])
        for g in range(2):
            e("v_permlane32_swap_b32 %s, %s" % (v(vRES + 4 * g), v(vRES + 4 * g + 2)))
            e("v_permlane32_swap_b32 %s, %s" % (v(vRES + 4 * g + 1), v(vRES + 4 * g + 3)))
        for g in range(2):
            e("buffer_store_dwordx4 %s, v16, %s, %s offen offset:%d" % (v(vRES + 4 * g, 4), sTMP, T[0], 32 * g))
    e("s_branch %s" % done)
    lab(hl)
    if wo:
        voff_192(44)
        w0 = newlab("wcs")
        e("s_cmp_lg_u32 %s, 0" % sL)
        e("s_cbranch_scc1 %s" % w0)
        colsum_begin(192, 3072, 64)
        e("s_mov_b32 %s, 65536" % T[0])
        colsum_quads(2, 3072, 1536)
        e("s_mov_b32 %s, %d" % (T[0], 65536 + 22 * 3072))
        colsum_quads(2, 3072, 1536)
        lab(w0)
        e("s_lshl_b32 %s, %s, 2" % (T[3], sHW))
        e("s_min_u32 %s, %s, 10" % (T[3], T[3]))
        addr(T[0], None, 8 * 16 * 2752, [(T[3], 16 * 2752), (sC, 192)])
        addr(T[1], None, 65536 + 8 * 3072, [(T[3], 3072)])
        e("s_barrier")
        dma_w1(2)
        e("s_barrier")
        dma_w1(2)
        e("s_lshr_b32 %s, %s, 1" % (T[3], sHW))
        e("s_and_b32 %s, %s, %s" % (T[3], T[3], sHW))
        addr(T[0], None, 30 * 16 * 2752, [(T[3], 16 * 2752), (sC, 192)])
        addr(T[1], None, 58 * 1024, [(T[3], 3072)])
        dma_w1(1)
    else:
        e("s_waitcnt vmcnt(0)")
        e("s_barrier")
        e("s_lshr_b32 %s, %s, 1" % (T[3], sHW))
        e("s_and_b32 %s, %s, 1" % (T[4], sHW))
        addr(T[0], None, 78 * 8192, [(T[3], 86 * 8192), (T[4], 4 * 8192), (sNB, 128)])
        addr(T[1], None, 0, [(T[3], 78 * 1024), (T[4], 4096)])
        e("s_barrier")
        for k in range(4):
            e("s_add_u32 m0, %s, %d" % (T[1], 1024 * k))
            e("s_nop 0")
            dma1(40, T[0])
            e("s_add_u32 %s, %s, 8192" % (T[0], T[0]))
        e("s_waitcnt vmcnt(0)")
        e("s_barrier")
        e("s_mul_i32 %s, %s, 24576" % (T[0], sHW))
        e("v_add_u32 v42, %s, %s" % (T[0], v(vL16)))
        e("s_barrier")
        e("s_cmp_lg_u32 %s, 0" % sL)
        e("s_cbranch_scc1 %s" % done)
        for k in range(24):
            e("ds_write_b128 v42, %s offset:%d" % (v(vSTASH + 4 * k, 4), 1024 * k))
    lab(done)
    stamp()


def ffn1():
    cm("================ MLP up projection + GELU")
    hl, done = newlab("f1_h"), newlab("f1_done")
    e("s_cmp_ge_u32 %s, 4" % sW)
    e("s_cbranch_scc1 %s" % hl)
    idle = newlab("f1_idle")
    e("s_cmp_eq_u32 %s, 15" % sC)
    e("s_cbranch_scc1 %s" % idle)
    TAIL.extend([idle + ":"] + ["    s_barrier"] * 3 + ["    s_branch " + done])

    def consts(t, part):
        for i in range(4):
            e("ds_read_b128 %s, %s offset:%d" % (v(16 + 32 * t + 16 * part + 4 * i, 4), v(vCA), 512 + 512 * part + t * 128 + 32 * i))
    wide_compute_front(FO, X1F, ST1, False, lambda m: consts(m // 2, m % 2))
    consts(1, 1)
    c0 = -2.0 * 1.4426950408889634 * 0.7978845608028654
    e("v_mov_b32 v112, %s" % f32(c0))
    e("v_mov_b32 v113, %s" % f32(c0 * 0.044715))
    e("v_mov_b32 v114, 1.0")
    addr(T[0], sLB, HF, [(sTBW, HSTR), (sC, 6144)])
    e("s_add_u32 %s, %s, 4096" % (T[1], T[0]))
    Z, P = 120, vWB
    for t in range(3):
        acc, cs, b1 = vACC + 16 * t, 16 + 32 * t, 32 + 32 * t
        e("s_waitcnt lgkmcnt(%d)" % (8 if t < 2 else 0))
        if t == 0:
            consts(2, 0)
            consts(2, 1)
        for p in range(8):
            center(acc, cs, p)
        for p in range(8):
            e("v_pk_fma_f32 %s, %s, %s, %s op_sel_hi:[1,0,1]" %
              (v(acc + 2 * p, 2), v(acc + 2 * p, 2), v(vR, 2), v(b1 + 2 * p, 2)))
        for p in range(8):
            e("v_pk_mul_f32 %s, %s, %s" % (v(Z + 2 * p, 2), v(acc + 2 * p, 2), v(acc + 2 * p, 2)))
        for p in range(8):
            e("v_pk_fma_f32 %s, %s, v[112:113], v[112:113] op_sel:[0,1,0] op_sel_hi:[1,1,0]" %
              (v(Z + 2 * p, 2), v(Z + 2 * p, 2)))
        for p in range(8):
            e("v_pk_mul_f32 %s, %s, %s" % (v(Z + 2 * p, 2), v(Z + 2 * p, 2), v(acc + 2 * p, 2)))
        for i in range(16):
            e("v_exp_f32 %s, %s" % (v(Z + i), v(Z + i)))
        for p in range(8):
            e("v_pk_add_f32 %s, %s, v[114:115] op_sel_hi:[1,0]" % (v(Z + 2 * p, 2), v(Z + 2 * p, 2)))
        for i in range(16):
            e("v_rcp_f32 %s, %s" % (v(Z + i), v(Z + i)))
        for p in range(8):
            e("v_pk_mul_f32 %s, %s, %s" % (v(acc + 2 * p, 2), v(acc + 2 * p, 2), v(Z + 2 * p, 2)))
        for p in range(8):
            e("v_cvt_pk_bf16_f32 %s, %s, %s" % (v(P + 8 * t + p), v(acc + 2 * p), v(acc + 2 * p + 1)))
        lstores(["buffer_store_dwordx4 %s, %s, %s, %s offen offset:%d" %
                 (v(P + 8 * t + 4 * hh, 4), v(vL16), sWS, T[(2 * t + hh) // 4], ((2 * t + hh) % 4) * 1024) for hh in range(2)])
        if t != 1:
            fine("f")
    slot(T[0], FH, [(sTBW, 16), (sC, 1)])
    flag(T[0], 0, local=True)
    e("s_branch %s" % done)
    lab(hl)
    h1 = newlab("fh1")
    voff_128(40)
    e("s_waitcnt vmcnt(3)")
    e("s_barrier")
    e("s_cmp_lg_u32 %s, 0" % sL)
    e("s_cbranch_scc1 %s" % h1)
    cm("first layer pair: column sums of W1 and the bias, kept in LDS")
    srd(sTMP, 22, 2752)
    e("v_and_b32 %s, 31, v0" % v(vPO))
    e("v_lshlrev_b32 %s, 1, %s" % (v(vPO), v(vPO)))
    addr(T[0], None, 0, [(sHW, 64), (sC, 192)])
    e("buffer_load_ushort v47, %s, %s, %s offen" % (v(vPO), sTMP, T[0]))
    e("s_mov_b32 %s, %d" % (T[0], 65536 + 8 * 3072))
    colsum_quads(3, 3072, 1536)
    e("s_mov_b32 %s, %d" % (T[0], 65536 + 20 * 3072))
    e("s_waitcnt vmcnt(0)")
    colsum_quads(1, 3072, 1536, (58 * 1024, 58 * 1024 + 3072))
    colsum_end(CS1_L)
    e("v_lshlrev_b32 v47, 16, v47")
    e("s_lshl_b32 %s, %s, 7" % (T[0], sHW))
    e("v_add_u32 v41, %s, v41" % T[0])
    e("ds_write_b32 v41, v47 offset:%d" % (B1_L - CS1_L))
    lab(h1)
    srd(sTMP, 24, 1376 * 1024)
    e("s_waitcnt vmcnt(0) lgkmcnt(0)")
    e("s_barrier")
    dma_w2(0, 0, 6, None)
    e("s_barrier")
    dma_w2(86, 78 * 1024, 10)
    dma_w2(22, 22 * 1024, 14)
    dma_w2(86 + 38, (78 + 38) * 1024, 10)
    lab(done)
    stamp()


def epilogue():
    e("s_add_u32 %s, %s, 1" % (sL, sL))
    e("s_add_u32 %s, %s, %d" % (sFB, sFB, LFL_L * 64))
    e("s_cmp_lt_u32 %s, 2" % sL)
    e("s_cbranch_scc1 L_layer")
    if PROFILE:
        e("s_memrealtime s[22:23]")
        e("s_waitcnt lgkmcnt(0)")
        stamp("s23")
        e("s_lshl_b32 %s, s2, 3" % T[0])
        e("s_add_u32 %s, %s, %s" % (T[0], T[0], sW))
        e("s_lshl_b32 %s, %s, 8" % (T[0], T[0]))
        e("s_add_u32 %s, %s, 0x%x" % (T[0], T[0], TSB))
        e("s_mov_b64 exec, 1")
        for i, r in enumerate([68, 18, 19] + list(range(STAMP0, STAMP0 + 30)) + [22, 23, 0, 1]):
            e("v_mov_b32 v16, s%d" % r)
            e("buffer_store_dword v16, off, %s, %s offset:%d" % (sWS, T[0], 4 * i))
        e("s_mov_b64 exec, 0xff")
        e("v_lshlrev_b32 v16, 2, v0")
        e("buffer_store_dword v5, v16, %s, %s offen offset:148" % (sWS, T[0]))
        e("s_mov_b64 exec, -1")
    cm("advance the hand-off tag for the next launch")
    e("s_or_b32 %s, s2, %s" % (T[0], sW))
    e("s_cmp_lg_u32 %s, 0" % T[0])
    e("s_cbranch_scc1 L_end")
    e("s_mov_b64 exec, 1")
    e("buffer_store_dword %s, off, %s, 0" % (v(vFV), sWS))
    lab("L_end")
    e("s_endpgm")
    L.extend(TAIL)


HEADER = open(f"cdna_kernels/{NAME}.s.ref").read().split("; Override launch")[0]


def main():
    prologue()
    p0()
    lab("L_layer")
    qkv()
    attention()
    n512("wo")
    ffn1()
    n512("f2")
    epilogue()
    k = NAME + "_kernel"
    out = HEADER
    out += "; @launch grid=(256,1,1) block=(512,1,1) lds=%d\n" % LDS_BYTES
    out += '.amdgcn_target "amdgcn-amd-amdhsa--gfx950"\n.text\n.globl %s\n.p2align 8\n.type %s,@function\n%s:\n' % (k, k, k)
    out += "\n".join(L) + "\n"
    out += """.section .rodata,"a"
.p2align 6
.amdhsa_kernel %s
  .amdhsa_next_free_vgpr 256
  .amdhsa_next_free_sgpr 102
  .amdhsa_accum_offset 256
  .amdhsa_group_segment_fixed_size 0
  .amdhsa_kernarg_size 88
  .amdhsa_user_sgpr_count 2
  .amdhsa_user_sgpr_kernarg_segment_ptr 1
  .amdhsa_system_sgpr_workgroup_id_x 1
.end_amdhsa_kernel
""" % k
    open(OUT, "w").write(out)


main()
```

```python
import struct
import sys

NAME = "interleave_layers__softmax_full_mha__mixer_channel_mlp__prompt"
PROFILE = "--prof" in sys.argv
CLK = "s_memrealtime" if "--rt" in sys.argv else "s_memtime"
FORCE_SLOW = "--slow" in sys.argv
FORCE_GLOBAL = "--global" in sys.argv
OUT = [a for a in sys.argv[1:] if not a.startswith("--")]
OUT = OUT[0] if OUT else f"cdna_kernels/{NAME}.s"


def f32(x):
    return "0x%08x" % struct.unpack("<I", struct.pack("<f", x))[0]


WS_SIZE = 0x10000000
FLG = 0x100000
FQG, FQG_L, FI = 0, 1024, 2048
KVF, KVF_L = 0x200000, 0x400000
ARENA, ARENA_X = 0x1000000, 0x200000
XSTR, HSTR = 33 * 1024, 97 * 1024
XF, OF, BLK, ST, LFL = 0, 0x48000, 0x90000, 0x158000, 0x160000
X1F, ST1, HF, QF, KVL = XF, ST, BLK, BLK, BLK + 32768
FX, FQ, FA, FO, FH, LFL_L = 0, 128, 256, 512, 640, 768
TSB = 0x4000000
DEPTH = 10
PACE = 5
RED = 140 * 1024
CONST = 156 * 1024
CSQ_L, CS1_L, B1_L, STAT_L = CONST, CONST + 512, CONST + 1024, CONST + 1536
LDS_BYTES = 160 * 1024
sWS, sTMP = "s[4:7]", "s[8:11]"
sW, sNONCE, sL, sLB, sFB = "s34", "s35", "s36", "s37", "s38"
sXCD, sJ, sTBW, sC, sTBN, sNB, sKH, sNT, sHEAD, sQB = ("s%d" % i for i in range(39, 49))
sHW = "s49"
T = ["s%d" % i for i in range(50, 60)]
sCNT, sIT = "s60", "s61"
sMV = "s[62:63]"
sM0, sM1 = "s[64:65]", "s[66:67]"
sMODE = "s3"
STAMP0 = 72
vLANE, vL16, vFV, vPO, vT5, vPD = 0, 1, 2, 4, 5, 6
vRES = 8
vA, vACC, vWB, vSTS = 16, 144, 192, 228
vW0, vW1, vMU, vW2, vR, vW3, vRQ, vCA, vTR, vK16, vVOF, vH16 = 244, 245, 246, 247, 248, 249, 250, 251, 252, 253, 254, 255
vSTASH = 128
QL = 128 * 1024
POLL_LIMIT = 1 << 16

L = []
TAIL = []
uid = [0]
nstamp = [0]


def e(s):
    L.append("    " + s)


def lab(n):
    L.append(n + ":")


def cm(s):
    L.append("    ; " + s)


def v(i, n=1):
    return "v%d" % i if n == 1 else "v[%d:%d]" % (i, i + n - 1)


def newlab(p):
    uid[0] += 1
    return "L_%s_%d" % (p, uid[0])


def stamp(fixed=None):
    if not PROFILE:
        return
    e(CLK + " s[70:71]")
    e("s_waitcnt lgkmcnt(0)")
    if fixed:
        e("s_mov_b32 %s, s70" % fixed)
        return
    e("s_mul_i32 s69, %s, 15" % sL)
    e("s_add_u32 m0, s69, %d" % nstamp[0])
    e("s_nop 1")
    e("s_movreld_b32 s%d, s70" % STAMP0)
    nstamp[0] += 1
    assert nstamp[0] <= 15


FINE = [a.split("=")[1] for a in sys.argv if a.startswith("--fine=")]
FINE = FINE[0] if FINE else None
nfine = [0]


def fine(phase):
    if not PROFILE or FINE != phase:
        return
    e(CLK + " s[70:71]")
    e("s_waitcnt lgkmcnt(0)")
    sk = newlab("fs")
    e("s_cmp_lg_u32 %s, %d" % (sL, 0 if "--l0" in sys.argv else 1))
    e("s_cbranch_scc1 %s" % sk)
    e("v_writelane_b32 v5, s70, %d" % nfine[0])
    lab(sk)
    nfine[0] += 1


def srd(dst, lo, size):
    b = int(dst[2:dst.index(":")])
    e("s_mov_b32 s%d, s%d" % (b, lo))
    e("s_and_b32 s%d, s%d, 0xffff" % (b + 1, lo + 1))
    e("s_mov_b32 s%d, %s" % (b + 2, size if isinstance(size, str) else hex(size)))
    e("s_mov_b32 s%d, 0x20000" % (b + 3))


def poll(soff):
    a, b = newlab("poll"), newlab("pok")
    e("s_mov_b32 %s, %d" % (sCNT, POLL_LIMIT))
    lab(a)
    e("buffer_load_dwordx2 %s, %s, %s, %s offen sc1" % (v(vPD, 2), v(vPO), sWS, soff))
    e("s_waitcnt vmcnt(0)")
    e("v_cmp_eq_u64 vcc, %s, %s" % (v(vPD, 2), v(vFV, 2)))
    e("s_nop 1")
    e("s_cmp_eq_u64 vcc, -1")
    e("s_cbranch_scc1 %s" % b)
    e("s_sub_u32 %s, %s, 1" % (sCNT, sCNT))
    e("s_cbranch_scc0 %s" % a)
    e("s_endpgm")
    lab(b)


def lstores(lines):
    g, d = newlab("wt"), newlab("wtd")
    e("s_cmp_eq_u32 %s, 0" % sMODE)
    e("s_cbranch_scc1 %s" % g)
    for x in lines:
        e(x)
    lab(d)
    TAIL.append(g + ":")
    for x in lines:
        TAIL.append("    " + x + (" sc1" if x.startswith("buffer_store") else ""))
    TAIL.append("    s_branch " + d)


def flag(soff, n=0, local=False):
    if n is not None:
        e("s_waitcnt vmcnt(%d)" % n)
    e("s_mov_b64 exec, 1")
    x = "buffer_store_dwordx2 %s, off, %s, %s" % (v(vFV, 2), sWS, soff)
    if local:
        lstores([x])
    else:
        e(x + " sc1")
    e("s_mov_b64 exec, -1")


def mode_poll(first=False):
    a, b, glob, out = newlab("mp"), newlab("mpok"), newlab("mpg"), newlab("mpo")
    e("v_and_b32 %s, 31, v0" % v(vPD))
    e("v_lshlrev_b32 %s, 9, %s" % (v(vPD), v(vPD)))
    addr(T[3], None, FLG + FI * 64, [(sXCD, 64)])
    e("v_add_u32 %s, %s, %s" % (v(vPD), T[3], v(vPD)))
    if first:
        e("v_add_u32 %s, %s, %s" % (v(vPD + 1), T[0], v(vPO)))
        e("v_cmp_gt_u32 vcc, 32, v0")
        e("s_mov_b32 %s, %s" % (T[5], T[0]))
        e("v_cndmask_b32 v60, %s, %s, vcc" % (v(vPD), v(vPD + 1)))
    else:
        e("v_mov_b32 v60, %s" % v(vPD))
    e("s_getreg_b32 %s, hwreg(HW_REG_XCC_ID, 0, 4)" % T[3])
    e("s_mov_b32 %s, %d" % (sCNT, POLL_LIMIT))
    e("s_mov_b32 %s, 1" % sMODE)
    lab(a)
    e("buffer_load_dwordx2 %s, v60, %s, 0 offen sc1" % (v(vPD, 2), sWS))
    e("s_waitcnt vmcnt(0)")
    e("v_xor_b32 %s, %s, %s" % (v(vPD + 1), v(vPD + 1), v(vFV + 1)))
    e("v_cmp_eq_u32 %s, %s, %s" % (sM0, v(vPD), v(vFV)))
    e("v_cmp_eq_u32 %s, %s, %s" % (sM1, T[3], v(vPD + 1)))
    e("v_cmp_gt_u32 vcc, 16, %s" % v(vPD + 1))
    e("s_nop 1")
    e("s_and_b64 %s, %s, %s" % (sM1, sM1, sM0))
    e("s_and_b64 vcc, vcc, %s" % sM0)
    if not FORCE_GLOBAL:
        e("s_cmp_eq_u64 %s, -1" % sM1)
        e("s_cbranch_scc1 %s" % out)
    e("s_cmp_eq_u32 vcc_hi, -1")
    e("s_cbranch_scc0 %s" % b)
    if not FORCE_GLOBAL:
        e("s_cmp_eq_u32 s67, -1")
        e("s_cbranch_scc0 %s" % glob)
    else:
        e("s_branch %s" % glob)
    lab(b)
    e("s_sub_u32 %s, %s, 1" % (sCNT, sCNT))
    e("s_cbranch_scc0 %s" % a)
    e("s_endpgm")
    lab(glob)
    e("s_mov_b32 %s, 0" % sMODE)
    if first:
        e("s_mov_b32 %s, %s" % (T[6], T[1]))
        e("s_mov_b32 %s, %s" % (T[7], T[2]))
        e("v_xor_b32 %s, 31, %s" % (v(vFV + 1), v(vFV + 1)))
        publish_x(sLB, XF, ST, 0, FX, 84)
        poll(T[5])
        e("v_xor_b32 %s, 31, %s" % (v(vFV + 1), v(vFV + 1)))
        e("s_mov_b32 %s, %s" % (T[1], T[6]))
        e("s_mov_b32 %s, %s" % (T[2], T[7]))
    lab(out)


def slot(dst, base, terms):
    e("s_add_u32 %s, %s, %d" % (dst, sFB, base * 64))
    for r, m in terms:
        e("s_mul_i32 %s, %s, %d" % (T[9], r, m * 64))
        e("s_add_u32 %s, %s, %s" % (dst, dst, T[9]))


def addr(dst, base_reg, const, terms):
    if base_reg is None:
        e("s_mov_b32 %s, 0x%x" % (dst, const))
    else:
        e("s_add_u32 %s, %s, 0x%x" % (dst, base_reg, const))
    for r, m in terms:
        e("s_mul_i32 %s, %s, %d" % (T[9], r, m))
        e("s_add_u32 %s, %s, %s" % (dst, dst, T[9]))


def load_frags(sg, first, n, reg_of, rebase=True):
    for j in range(first, first + n):
        if j % 4 == 0 or (j == first and rebase):
            e("s_add_u32 %s, %s, %d" % (T[8], sg, (j // 4) * 4096))
        e("buffer_load_dwordx4 %s, %s, %s, %s offen offset:%d sc1" %
          (v(reg_of(j), 4), v(vL16), sWS, T[8], (j % 4) * 1024))


def mfma(d, a, b, c):
    e("v_mfma_f32_32x32x16_bf16 %s, %s, %s, %s" % (v(d, 16), v(a, 4), v(b, 4), c if isinstance(c, str) else v(c, 16)))


def half_sum(a, b):
    e("s_nop 1")
    e("v_permlane32_swap_b32 %s, %s" % (v(a), v(b)))
    e("s_nop 1")
    e("v_add_f32 %s, %s, %s" % (v(a), v(a), v(b)))


def tile_stats(y, t):
    e("v_pk_add_f32 %s, %s, %s" % (v(t, 2), v(y, 2), v(y + 2, 2)))
    e("v_pk_mul_f32 %s, %s, %s" % (v(t + 2, 2), v(y, 2), v(y, 2)))
    for p in range(1, 8):
        if p > 1:
            e("v_pk_add_f32 %s, %s, %s" % (v(t, 2), v(t, 2), v(y + 2 * p, 2)))
        e("v_pk_fma_f32 %s, %s, %s, %s" % (v(t + 2, 2), v(y + 2 * p, 2), v(y + 2 * p, 2), v(t + 2, 2)))
    e("v_add_f32 %s, %s, %s" % (v(t), v(t), v(t + 1)))
    e("v_add_f32 %s, %s, %s" % (v(t + 2), v(t + 2), v(t + 3)))
    half_sum(t, t + 2)


def unpack(dst, src, n):
    for i in range(n):
        e("v_lshlrev_b32 %s, 16, %s" % (v(dst + 2 * i), v(src + i)))
        e("v_and_b32 %s, 0xffff0000, %s" % (v(dst + 2 * i + 1), v(src + i)))


def publish_x(lb, xoff, stoff, fbase_add, fbase, ystat, between=None):
    addr(T[0], lb, xoff, [(sTBN, XSTR), (sNT, 2048)])
    e("s_lshr_b32 %s, %s, 2" % (T[2], sNT))
    e("s_and_b32 %s, %s, 3" % (T[8], sNT))
    addr(T[1], lb, stoff, [(sTBN, 4096), (T[2], 1024), (T[8], 4)])
    lstores(["buffer_store_dwordx4 %s, %s, %s, %s offen" % (v(vRES, 4), v(vL16), sWS, T[0]),
             "buffer_store_dwordx4 %s, %s, %s, %s offen offset:1024" % (v(vRES + 4, 4), v(vL16), sWS, T[0]),
             "buffer_store_dword %s, %s, %s, %s offen" % (v(ystat), v(vL16), sWS, T[1])])
    slot(T[2], fbase, [(sTBN, 16), (sNT, 1)])
    if fbase_add:
        e("s_add_u32 %s, %s, %d" % (T[2], T[2], fbase_add))
    if between:
        between()
    flag(T[2], local=True)


def prologue():
    e("s_cmp_ge_u32 s2, 256")
    e("s_cbranch_scc1 L_end")
    e("s_load_dwordx16 s[12:27], s[0:1], 0")
    e("s_load_dwordx4 s[28:31], s[0:1], 64")
    e("s_load_dwordx2 s[32:33], s[0:1], 80")
    e("v_lshrrev_b32 v1, 6, v0")
    e("v_and_b32 v0, 63, v0")
    e("v_readfirstlane_b32 %s, v1" % sW)
    e("v_lshlrev_b32 %s, 4, v0" % v(vL16))
    cm("column part of a transposing-read address: (lane&3)*8 + ((lane>>4)&1)*32")
    e("v_and_b32 %s, 3, v0" % v(vTR))
    e("v_lshlrev_b32 %s, 3, %s" % (v(vTR), v(vTR)))
    e("v_bfe_u32 %s, v0, 4, 1" % v(vT5))
    e("v_lshl_or_b32 %s, %s, 5, %s" % (v(vTR), v(vT5), v(vTR)))
    e("v_lshrrev_b32 %s, 5, v0" % v(vT5))
    e("v_lshlrev_b32 %s, 4, %s" % (v(vH16), v(vT5)))
    cm("K fragments are stored with token bits 2 and 3 swapped (matches the sparse-MFMA key order)")
    e("v_and_b32 %s, 0x33, v0" % v(vK16))
    e("v_and_b32 %s, 4, v0" % v(vPO))
    e("v_lshl_or_b32 %s, %s, 1, %s" % (v(vK16), v(vPO), v(vK16)))
    e("v_and_b32 %s, 8, v0" % v(vPO))
    e("v_lshrrev_b32 %s, 1, %s" % (v(vPO), v(vPO)))
    e("v_or_b32 %s, %s, %s" % (v(vK16), v(vK16), v(vPO)))
    e("v_lshlrev_b32 %s, 4, %s" % (v(vK16), v(vK16)))
    cm("V store offset: head parity*128K + half*512 + d*16")
    e("v_and_b32 %s, 15, v0" % v(vVOF))
    e("v_lshlrev_b32 %s, 4, %s" % (v(vVOF), v(vVOF)))
    e("v_lshl_or_b32 %s, %s, 9, %s" % (v(vVOF), v(vT5), v(vVOF)))
    e("v_bfe_u32 %s, v0, 4, 1" % v(vPO))
    e("v_lshl_or_b32 %s, %s, 17, %s" % (v(vVOF), v(vPO), v(vVOF)))
    e("s_and_b32 %s, s2, 7" % sXCD)
    e("s_lshr_b32 %s, s2, 3" % sJ)
    e("s_and_b32 %s, %s, 3" % (sHW, sW))
    e("s_and_b32 %s, %s, 15" % (sC, sJ))
    e("s_lshr_b32 %s, %s, 4" % (T[0], sJ))
    e("s_lshl_b32 %s, %s, 2" % (T[0], T[0]))
    e("s_add_u32 %s, %s, %s" % (sTBW, T[0], sHW))
    e("s_and_b32 %s, %s, 7" % (sNB, sJ))
    e("s_lshr_b32 %s, %s, 3" % (T[0], sJ))
    e("s_mov_b32 %s, %s" % (sHEAD, sJ))
    e("s_lshl_b32 %s, %s, 1" % (sTBN, T[0]))
    e("s_and_b32 %s, %s, 1" % (T[0], sW))
    e("s_add_u32 %s, %s, %s" % (sTBN, sTBN, T[0]))
    e("s_lshr_b32 %s, %s, 1" % (sKH, sHW))
    e("s_lshl_b32 %s, %s, 1" % (sNT, sNB))
    e("s_add_u32 %s, %s, %s" % (sNT, sNT, sKH))
    e("s_mov_b32 s62, 0xffff")
    e("s_mov_b32 s63, 0xffff")
    e("s_mov_b32 %s, 0" % sL)
    addr(sLB, None, ARENA, [(sXCD, ARENA_X)])
    e("s_add_u32 %s, %s, 0x%x" % (sFB, sLB, LFL))
    e("s_waitcnt lgkmcnt(0)")
    srd(sWS, 32, WS_SIZE)
    srd(sTMP, 12, 2048 * 1024)
    cm("hand-off tag: ws[0] only tells this launch's flags from an earlier launch's")
    e("s_load_dword %s, s[32:33], 0" % sNONCE)
    if PROFILE:
        e("s_memrealtime s[70:71]")
        e("s_waitcnt lgkmcnt(0)")
        e("s_mov_b32 s68, s70")
        stamp("s18")


def make_tag():
    e("s_waitcnt lgkmcnt(0)")
    e("s_add_u32 %s, %s, 16" % (sNONCE, sNONCE))
    e("v_mov_b32 %s, %s" % (v(vFV), sNONCE))
    e("v_not_b32 %s, %s" % (v(vFV + 1), v(vFV)))


def p0():
    cm("================ P0 (waves 0-3): x tile -> residual registers, fragments and row statistics")
    p0end, noid, nox = newlab("p0end"), newlab("noid"), newlab("nox")
    e("s_cmp_ge_u32 %s, 4" % sW)
    e("s_cbranch_scc1 %s" % nox)
    e("v_and_b32 %s, 31, v0" % v(vPO))
    e("v_lshlrev_b32 %s, 10, %s" % (v(vPO), v(vPO)))
    e("v_lshl_or_b32 %s, %s, 3, %s" % (v(vPO), v(vT5), v(vPO)))
    addr(T[0], None, 0, [(sXCD, 262144), (sTBN, 32768), (sNT, 64)])
    for i in range(4):
        e("buffer_load_dwordx2 %s, %s, %s, %s offen offset:%d" % (v(vRES + 2 * i, 2), v(vPO), sTMP, T[0], 16 * i))
    lab(nox)
    cm("one line per lane: the 32 workgroups of a group pull Wqkv into their L2")
    srd(sTMP, 14, 512 * 3072)
    e("v_lshlrev_b32 v17, 7, v0")
    addr(T[0], None, 0, [(sJ, 384 * 128), (sW, 48 * 128)])
    e("s_mov_b32 exec_hi, 0xffff")
    e("buffer_load_dword v16, v17, %s, %s offen" % (sTMP, T[0]))
    e("s_mov_b64 exec, -1")
    e("s_cmp_ge_u32 %s, 4" % sW)
    e("s_cbranch_scc1 %s" % p0end)
    lab(noid)
    stamp("s0")
    make_tag()
    e("s_getreg_b32 %s, hwreg(HW_REG_XCC_ID, 0, 4)" % T[7])
    e("s_mov_b32 %s, 1" % sMODE)
    e("v_xor_b32 %s, %s, %s" % (v(vFV + 1), T[7], v(vFV + 1)))
    nid = newlab("nid")
    e("s_cmp_lg_u32 %s, 0" % sW)
    e("s_cbranch_scc1 %s" % nid)
    e("s_lshl_b32 %s, s2, 6" % T[8])
    e("s_add_u32 %s, %s, 0x%x" % (T[8], T[8], FLG + FI * 64))
    flag(T[8], None)
    lab(nid)
    e("s_waitcnt vmcnt(0)")
    stamp("s1")
    unpack(66, vRES, 8)
    tile_stats(66, 84)
    publish_x(sLB, XF, ST, 0, FX, 84)
    e("s_nop 0")
    e("v_not_b32 %s, %s" % (v(vFV + 1), v(vFV)))
    lab(p0end)
    stamp("s19")


def tr_rows(dst, rowbytes):
    e("v_bfe_u32 %s, v0, 2, 2" % v(dst))
    e("v_lshrrev_b32 %s, 2, %s" % (v(vPD), v(vH16)))
    e("v_add_u32 %s, %s, %s" % (v(dst), v(dst), v(vPD)))
    e("v_mul_u32_u24 %s, %d, %s" % (v(dst), rowbytes, v(dst)))
    e("v_add_u32 %s, %s, %s" % (v(dst), v(dst), v(vTR)))


def voff_128(dst):
    e("v_lshrrev_b32 %s, 3, v0" % v(dst))
    e("v_lshlrev_b32 %s, 10, %s" % (v(dst), v(dst)))
    e("v_and_b32 %s, 7, v0" % v(vPD))
    e("v_lshrrev_b32 %s, 2, v0" % v(vPD + 1))
    e("v_and_b32 %s, 4, %s" % (v(vPD + 1), v(vPD + 1)))
    e("v_xor_b32 %s, %s, %s" % (v(vPD), v(vPD), v(vPD + 1)))
    e("v_lshl_or_b32 %s, %s, 4, %s" % (v(dst), v(vPD), v(dst)))


def voff_192(dst):
    for i in range(3):
        e("v_add_u32 %s, %d, v0" % (v(vPD), 64 * i))
        e("v_mul_u32_u24 %s, 5462, %s" % (v(vPD + 1), v(vPD)))
        e("v_lshrrev_b32 %s, 16, %s" % (v(vPD + 1), v(vPD + 1)))
        e("v_mul_u32_u24 %s, %d, %s" % (v(dst + i), 2752 - 192, v(vPD + 1)))
        e("v_lshl_add_u32 %s, %s, 4, %s" % (v(dst + i), v(vPD), v(dst + i)))


def dma1(vo, sg):
    e("buffer_load_dwordx4 %s, %s, %s offen lds" % (v(vo), sTMP, sg))


def dma_loop(n, body):
    lp = newlab("dl")
    e("s_mov_b32 %s, %d" % (T[2], n))
    lab(lp)
    body()
    e("s_sub_u32 %s, %s, 1" % (T[2], T[2]))
    e("s_cmp_lg_u32 %s, 0" % T[2])
    e("s_cbranch_scc1 %s" % lp)


def dma_w2(piece0, lds0, n, pace=PACE):
    addr(T[0], None, piece0 * 8192, [(sHW, n * 8192), (sNB, 128)])
    addr(T[1], None, lds0, [(sHW, n * 1024)])

    def body():
        e("s_mov_b32 m0, %s" % T[1])
        e("s_add_u32 %s, %s, 1024" % (T[1], T[1]))
        dma1(40, T[0])
        e("s_add_u32 %s, %s, 8192" % (T[0], T[0]))
        if pace:
            e("s_waitcnt vmcnt(%d)" % pace)
    dma_loop(n, body)


def dma_w1(n):
    def body():
        for i in range(3):
            e("s_add_u32 m0, %s, %d" % (T[1], 1024 * i))
            e("s_nop 0")
            dma1(44 + i, T[0])
        e("s_add_u32 %s, %s, %d" % (T[0], T[0], 16 * 2752))
        e("s_add_u32 %s, %s, 3072" % (T[1], T[1]))
    dma_loop(n, body)


def wq_begin():
    srd(sTMP, 14, 512 * 3072)
    e("v_lshrrev_b32 v40, 2, v0")
    e("v_mul_u32_u24 v40, 3072, v40")
    e("v_and_b32 v41, 3, v0")
    e("v_lshl_or_b32 v40, v41, 4, v40")
    addr(T[3], None, 0, [(sHW, 2 * 49152), (sC, 64)])
    e("s_lshl_b32 %s, %s, 11" % (T[4], sHW))


def wq_chunk():
    for dk in range(2):
        for i in range(3):
            e("s_add_u32 m0, %s, %d" % (T[4], i * 31744 + dk * 1024))
            e("s_nop 0")
            e("buffer_load_dwordx4 v40, %s, %s offen offset:%d lds" % (sTMP, T[3], i * 1024))
        e("s_add_u32 %s, %s, %d" % (T[3], T[3], 49152 if dk == 0 else 7 * 49152))
    e("s_add_u32 %s, %s, 8192" % (T[4], T[4]))


def colsum_begin(rowbytes, step, tilestep):
    tr_rows(43, rowbytes)
    for r in range(50, 56):
        e("v_mov_b32 v%d, 0" % r)
    e("s_mul_i32 %s, %s, %d" % (T[6], sHW, tilestep))
    e("s_mov_b32 %s, %d" % (T[5], step))
    e("s_cmp_eq_u32 %s, 3" % sHW)
    e("s_cselect_b32 %s, %d, %s" % (T[5], tilestep, T[5]))
    e("s_cselect_b32 %s, %d, %s" % (T[6], 3 * step, T[6]))


def colsum_quads(n, step, second, last=None):
    lp = newlab("cs")
    e("s_add_u32 %s, %s, %s" % (T[0], T[0], T[6]))
    if last:
        e("s_cmp_eq_u32 %s, 3" % sHW)
        e("s_cselect_b32 %s, %d, %s" % (T[0], last[1], T[0]))
    e("v_add_u32 v42, %s, v43" % T[0])
    e("v_add_u32 v48, %s, v42" % T[5])
    e("v_add_u32 v56, %s, v48" % T[5])
    if last:
        sk = newlab("cs")
        e("s_cbranch_scc1 %s" % sk)
        e("s_add_u32 %s, %s, %d" % (T[0], T[6], last[0]))
        e("v_add_u32 v56, %s, v43" % T[0])
        lab(sk)
    e("s_mov_b32 %s, %d" % (T[0], n))
    e("s_mov_b32 %s, 0xffff0000" % T[1])
    lab(lp)
    for i, a in enumerate((42, 48, 56)):
        for h in range(2):
            e("ds_read_b64_tr_b16 %s, v%d offset:%d" % (v(16 + 4 * i + 2 * h, 2), a, h * second))
        e("v_add_u32 v%d, %d, v%d" % (a, 4 * step, a))
    for i in range(3):
        e("s_waitcnt lgkmcnt(%d)" % (4 - 2 * i))
        for r in range(16 + 4 * i, 20 + 4 * i):
            e("v_lshlrev_b32 v49, 16, %s" % v(r))
            e("v_and_b32 %s, %s, %s" % (v(r), T[1], v(r)))
            e("v_add_f32 v%d, v%d, v49" % (50 + 2 * i, 50 + 2 * i))
            e("v_add_f32 v%d, v%d, %s" % (51 + 2 * i, 51 + 2 * i, v(r)))
    e("s_sub_u32 %s, %s, 1" % (T[0], T[0]))
    e("s_cmp_lg_u32 %s, 0" % T[0])
    e("s_cbranch_scc1 %s" % lp)


def colsum_end(dst_l):
    w3, dn = newlab("ce"), newlab("ce")
    e("v_and_b32 v41, 31, v0")
    e("v_lshlrev_b32 v41, 2, v41")
    e("v_add_u32 v41, %d, v41" % dst_l)
    for i in range(3):
        e("v_add_f32 v%d, v%d, v%d" % (50 + 2 * i, 50 + 2 * i, 51 + 2 * i))
        e("v_mov_b32 v%d, v%d" % (51 + 2 * i, 50 + 2 * i))
        half_sum(50 + 2 * i, 51 + 2 * i)
    e("s_mov_b32 exec_hi, 0")
    e("s_cmp_eq_u32 %s, 3" % sHW)
    e("s_cbranch_scc1 %s" % w3)
    e("v_add_f32 v50, v50, v52")
    e("s_lshl_b32 %s, %s, 7" % (T[0], sHW))
    e("v_add_f32 v50, v50, v54")
    e("v_add_u32 v42, %s, v41" % T[0])
    e("ds_add_f32 v42, v50")
    e("s_branch %s" % dn)
    lab(w3)
    for i in range(3):
        e("ds_add_f32 v41, v%d offset:%d" % (50 + 2 * i, 128 * i))
    lab(dn)
    e("s_mov_b64 exec, -1")


def stats_code(second_ln):
    c = []
    for k in range(1, 16):
        c.append("v_add_f32 %s, %s, %s" % (v(vSTS), v(vSTS), v(vSTS + k)))
    c += ["v_mov_b32 %s, %s" % (v(vSTS + 1), v(vSTS)), "s_nop 1",
          "v_permlane32_swap_b32 %s, %s" % (v(vSTS), v(vSTS + 1)), "s_nop 1",
          "v_mul_f32 %s, %s, %s" % (v(vMU), f32(1.0 / 512), v(vSTS)),
          "v_mul_f32 %s, %s, %s" % (v(vSTS + 1), f32(1.0 / 512), v(vSTS + 1)),
          "v_fma_f32 %s, -%s, %s, %s" % (v(vSTS + 1), v(vMU), v(vMU), v(vSTS + 1)),
          "v_max_f32 %s, 0, %s" % (v(vSTS + 1), v(vSTS + 1)),
          "v_add_f32 %s, %s, %s" % (v(vSTS + 2), f32(1e-5), v(vSTS + 1)),
          "v_rsq_f32 %s, %s" % (v(vR), v(vSTS + 2)), "s_nop 0"]
    if second_ln:
        c += ["v_mul_f32 %s, %s, %s" % (v(vSTS + 2), v(vR), v(vR)),
              "v_mul_f32 %s, %s, %s" % (v(vSTS + 2), v(vSTS + 2), v(vSTS + 1)),
              "v_add_f32 %s, %s, %s" % (v(vSTS + 2), f32(1e-5), v(vSTS + 2)),
              "v_rsq_f32 %s, %s" % (v(vSTS + 2), v(vSTS + 2)), "s_nop 0",
              "v_mul_f32 %s, %s, %s" % (v(vR), v(vR), v(vSTS + 2))]
    return c


def wide_compute_front(fbase, xoff, stoff, qkv_phase, tail_code):
    ph = "q" if qkv_phase else "f"
    e("v_and_b32 %s, 15, v0" % v(vPO))
    e("v_lshlrev_b32 %s, 6, %s" % (v(vPO), v(vPO)))
    slot(T[0], fbase, [(sTBW, 16)])
    addr(T[1], sLB, xoff, [(sTBW, XSTR)])
    addr(T[2], sLB, stoff, [(sTBW, 4096)])
    e("v_add_u32 %s, %d, %s" % (v(vCA), CONST, v(vH16)))
    if qkv_phase:
        tr_rows(vW0, 64)
        e("v_add_u32 %s, 0x10000, %s" % (v(vW1), v(vW0)))
        e("s_barrier")
    else:
        tr_rows(vW2, 192)
        e("v_add_u32 %s, 0x10000, %s" % (v(vW0), v(vW2)))
        e("v_add_u32 %s, %d, %s" % (v(vW1), 21 * 3072, v(vW0)))

    def rd(ks, i):
        d = vWB + (ks % 3) * 12 + 4 * i
        if qkv_phase:
            base, off, sec = ((vW0, i * 32768 + ks * 1024) if i < 2 else (vW1, ks * 1024)) + (512,)
        else:
            base, off = (vW0, ks * 3072) if ks < 21 else (vW1, (ks - 21) * 3072) if ks < 30 else (vW2, 58 * 1024 + (ks - 30) * 3072)
            off, sec = off + 64 * i, 1536
        e("ds_read_b64_tr_b16 %s, %s offset:%d" % (v(d, 2), v(base), off))
        e("ds_read_b64_tr_b16 %s, %s offset:%d" % (v(d + 2, 2), v(base), off + sec))
    for ks in range(2):
        for i in range(3):
            rd(ks, i)
    if qkv_phase:
        l1, l2 = newlab("fx"), newlab("fx")
        e("s_cmp_lg_u32 %s, 0" % sL)
        e("s_cbranch_scc1 %s" % l1)
        mode_poll(True)
        e("s_branch %s" % l2)
        lab(l1)
        poll(T[0])
        lab(l2)
    else:
        poll(T[0])
    stamp()

    def item(n):
        if n < 32:
            load_frags(T[1], n, 1, lambda j: vA + 4 * j, n % 4 == 0)
        elif n < 36:
            e("buffer_load_dwordx4 %s, %s, %s, %s offen offset:%d sc1" % (v(vSTS + 4 * (n - 32), 4), v(vL16), sWS, T[2], 1024 * (n - 32)))
    for n in range(DEPTH):
        item(n)
    if qkv_phase:
        e("s_barrier")
    fine(ph)
    st = stats_code(not qkv_phase)
    per = -(-len(st) // 8)
    for ks in range(32):
        if ks in ((6, 14, 22, 30) if qkv_phase else (6, 26)):
            e("s_barrier")
        e("s_waitcnt vmcnt(%d) lgkmcnt(%d)" % (0 if ks >= 29 else min(36, DEPTH + ks) - ks - 1, 6 if ks < 31 else 0))
        if ks in (0, 8, 16, 31):
            fine(ph)
        for i in range(3):
            w, a = vWB + (ks % 3) * 12 + 4 * i, vA + 4 * ks
            c = "0" if ks == 0 else vACC + 16 * i
            if qkv_phase and i == 2:
                mfma(vACC + 16 * i, a, w, c)
            else:
                mfma(vACC + 16 * i, w, a, c)
            if ks + 2 < 32:
                rd(ks + 2, i)
            if i == 0:
                item(ks + DEPTH)
            if ks >= 29:
                g = (ks - 29) * 3 + i
                for x in st[g * per:(g + 1) * per]:
                    e(x)
            if ks == 31:
                tail_code(i)
    e("s_barrier")
    stamp()


def center(acc, cs, p):
    e("v_pk_fma_f32 %s, %s, %s, %s op_sel_hi:[0,1,1] neg_lo:[1,0,0] neg_hi:[1,0,0]" %
      (v(acc + 2 * p, 2), v(vMU, 2), v(cs + 2 * p, 2), v(acc + 2 * p, 2)))


PKV = 116


def qkv():
    cm("================ QKV projection")
    hl, done = newlab("qkv_h"), newlab("qkv_done")
    e("s_cmp_ge_u32 %s, 4" % sW)
    e("s_cbranch_scc1 %s" % hl)

    def tail(m):
        if m < 2:
            for i in range(4):
                e("ds_read_b128 %s, %s offset:%d" % (v(32 - 16 * m + 4 * i, 4), v(vCA), (1 - m) * 128 + 32 * i))
            return
        e("v_and_b32 v48, 31, v0")
        e("v_lshlrev_b32 v48, 2, v48")
        addr(T[0], None, STAT_L, [(sHW, 256)])
        e("v_add_u32 v49, %s, v48" % T[0])
        e("v_add_u32 v50, %s, %s" % (T[0], v(vH16)))
        e("v_add_u32 v48, %d, v48" % CSQ_L)
        e("ds_write_b32 v49, %s" % v(vMU))
        e("ds_write_b32 v49, %s offset:128" % v(vR))
        e("v_mul_f32 %s, %s, %s" % (v(vRQ), f32(0.25 * 1.4426950408889634), v(vR)))
    wide_compute_front(FX, XF, ST, True, tail)
    e("ds_read_b32 v52, v48 offset:256")
    for i in range(4):
        e("ds_read_b128 %s, v50 offset:%d" % (v(64 + 4 * i, 4), 32 * i))
    for i in range(4):
        e("ds_read_b128 %s, v50 offset:%d" % (v(80 + 4 * i, 4), 128 + 32 * i))
    addr(T[0], sLB, QF, [(sC, 2048), (sTBW, HSTR)])
    e("s_add_u32 %s, %s, 1024" % (T[1], T[0]))
    addr(T[2], sLB, KVL, [(sC, 4096), (sTBW, HSTR)])
    e("s_add_u32 %s, %s, 2048" % (T[3], T[2]))
    addr(T[4], None, KVF, [(sL, KVF_L), (sC, 2 * 131072), (sXCD, 16384), (sTBW, 2048)])
    e("s_add_u32 %s, %s, 0x20000" % (T[5], T[4]))
    e("v_and_b32 v51, 0x1ffff, %s" % v(vVOF))
    e("v_lshrrev_b32 v54, 17, %s" % v(vVOF))
    e("v_lshl_or_b32 v51, v54, 11, v51")
    P = PKV

    def row_tile(t):
        acc = vACC + 16 * t
        for p in range(8):
            center(acc, 16 + 16 * t, p)
        for p in range(8):
            e("v_pk_mul_f32 %s, %s, %s op_sel_hi:[1,0]" % (v(acc + 2 * p, 2), v(acc + 2 * p, 2), v(vRQ if t == 0 else vR, 2)))
        for p in range(8):
            e("v_cvt_pk_bf16_f32 %s, %s, %s" % (v(P + 8 * t + p), v(acc + 2 * p), v(acc + 2 * p + 1)))
    e("s_waitcnt lgkmcnt(15)")
    row_tile(1)
    cm("K and V get a write-through copy for the other dies and a copy for this die group")
    for hh in range(2):
        e("buffer_store_dwordx4 %s, %s, %s, %s offen sc1" % (v(P + 8 + 4 * hh, 4), v(vK16), sWS, T[4 + hh]))
    acc = vACC + 32
    e("s_waitcnt lgkmcnt(0)")
    for p in range(8):
        e("v_pk_fma_f32 %s, %s, v[52:53], %s op_sel_hi:[1,0,1] neg_lo:[1,0,0] neg_hi:[1,0,0]" %
          (v(acc + 2 * p, 2), v(64 + 2 * p, 2), v(acc + 2 * p, 2)))
    for p in range(8):
        e("v_pk_mul_f32 %s, %s, %s" % (v(acc + 2 * p, 2), v(acc + 2 * p, 2), v(80 + 2 * p, 2)))
    for p in range(8):
        e("v_cvt_pk_bf16_f32 %s, %s, %s" % (v(P + 16 + p), v(acc + 2 * p), v(acc + 2 * p + 1)))
    for t in range(2):
        e("buffer_store_dwordx4 %s, %s, %s, %s offen offset:%d sc1" % (v(P + 16 + 4 * t, 4), v(vVOF), sWS, T[4], 1024 + 256 * t))
    row_tile(0)
    lstores(["buffer_store_dwordx4 %s, %s, %s, %s offen" % (v(P + 8 + 4 * hh, 4), v(vK16), sWS, T[2 + hh]) for hh in range(2)] +
            ["buffer_store_dwordx4 %s, v51, %s, %s offen offset:%d" % (v(P + 16 + 4 * t, 4), sWS, T[2], 1024 + 256 * t) for t in range(2)] +
            ["buffer_store_dwordx4 %s, %s, %s, %s offen" % (v(P + 4 * hh, 4), v(vL16), sWS, T[hh]) for hh in range(2)])
    fine("q")
    slot(T[0], FQ, [(sC, 8), (sTBW, 1)])
    addr(T[1], None, FLG + FQG * 64, [(sL, FQG_L * 64), (sC, 4096), (sXCD, 512), (sTBW, 64)])
    flag(T[0], 0, local=True)
    flag(T[1], None)
    e("s_branch %s" % done)
    lab(hl)
    h1, lp = newlab("qh1"), newlab("qhl")
    e("s_cmp_lg_u32 %s, 0" % sL)
    e("s_cbranch_scc1 %s" % h1)
    wq_begin()
    make_tag()
    e("s_waitcnt vmcnt(0)")
    dma_loop(2, wq_chunk)
    e("v_lshlrev_b32 v42, 4, v0")
    e("v_add_u32 v42, %d, v42" % CONST)
    colsum_begin(64, 1024, 32768)
    e("ds_write_b128 v42, v[50:53]")
    e("s_mov_b32 %s, 0" % sIT)
    lab(lp)
    b1, b2, b3 = newlab("qw"), newlab("qw"), newlab("qw")
    e("s_waitcnt vmcnt(6) lgkmcnt(0)")
    e("s_cmp_lt_u32 %s, 3" % sIT)
    e("s_cbranch_scc1 %s" % b1)
    e("s_waitcnt vmcnt(0)")
    lab(b1)
    e("s_barrier")
    e("s_cmp_lg_u32 %s, 0" % sIT)
    e("s_cbranch_scc1 %s" % b2)
    e("s_barrier")
    lab(b2)
    e("s_cmp_ge_u32 %s, 2" % sIT)
    e("s_cbranch_scc1 %s" % b3)
    wq_chunk()
    lab(b3)
    e("s_lshl_b32 %s, %s, 13" % (T[0], sIT))
    colsum_quads(2, 1024, 512)
    e("s_add_u32 %s, %s, 1" % (sIT, sIT))
    e("s_cmp_lt_u32 %s, 4" % sIT)
    e("s_cbranch_scc1 %s" % lp)
    colsum_end(CSQ_L)
    e("s_waitcnt lgkmcnt(0)")
    e("s_barrier")
    cm("park the weight tile in registers for the second layer pair")
    e("s_mul_i32 %s, %s, 24576" % (T[0], sHW))
    e("v_add_u32 v42, %s, %s" % (T[0], v(vL16)))
    for k in range(24):
        e("ds_read_b128 %s, v42 offset:%d" % (v(vSTASH + 4 * k, 4), 1024 * k))
    e("s_waitcnt lgkmcnt(0)")
    e("s_barrier")
    mode_poll()
    e("s_branch %s" % done)
    lab(h1)
    e("s_waitcnt lgkmcnt(0)")
    for _ in range(7):
        e("s_barrier")
    lab(done)
    stamp()


def attention():
    cm("================ attention: S^T = K Q^T, P = exp2(S^T), O^T += V^T P via sparse MFMA")
    S, O, Q, KB, VB, IDX, AD, VO, CN = (16, 32), 48, 64, (68, 72), (76, 84), 92, 93, 94, 100
    PF = 100
    KVG, LP, CH, GF, ISS = T[2], T[3], T[4], T[5], T[6]
    for i in range(16):
        e("v_mov_b32 %s, 0" % v(O + i))
        e("v_mov_b32 %s, 0x3f803f80" % v(VB[0] + i))
    for i in range(8):
        e("v_mov_b32 %s, 0" % v(S[1] + 8 + i))
    e("v_mov_b32 %s, 0xdddddddd" % v(IDX))
    e("v_mov_b32 %s, %s" % (v(AD), v(vL16)))
    voff_128(VO)
    voff_192(VO + 1)
    e("s_mov_b32 %s, 1" % ISS)
    a1 = newlab("a1")
    e("s_cmp_lt_u32 %s, 4" % sW)
    e("s_cbranch_scc1 %s" % a1)
    cm("waves 4-7 fetch Q and this die's K/V, and later the other dies' K/V")
    e("v_and_b32 %s, 7, v0" % v(vPO))
    e("v_lshlrev_b32 %s, 6, %s" % (v(vPO), v(vPO)))
    e("s_lshr_b32 %s, %s, 1" % (T[1], sHEAD))
    addr(GF, None, FLG + FQG * 64, [(sL, FQG_L * 64), (T[1], 4096)])
    slot(T[0], FQ, [(T[1], 8)])
    addr(T[1], sLB, QF, [(sHEAD, 1024), (sHW, 2 * HSTR)])
    addr(KVG, None, KVF, [(sL, KVF_L), (sHEAD, 131072), (sHW, 4096)])
    addr(T[8], sLB, KVL, [(sHEAD, 2048), (sHW, 2 * HSTR)])
    addr(T[7], None, QL, [(sHW, 2048)])
    e("s_lshl_b32 %s, %s, 12" % (LP, sHW))
    e("s_add_u32 %s, %s, 1" % (CH, sXCD))
    e("s_mov_b32 %s, 0" % ISS)
    poll(T[0])
    for b in range(2):
        e("s_add_u32 m0, %s, %d" % (LP, 2048 * b))
        e("v_lshlrev_b32 %s, 6, v0" % v(vPO))
        for i in range(2):
            e("buffer_load_dwordx4 %s, %s, %s offen offset:%d sc1 lds" % (v(vL16), sWS, T[8], 1024 * i))
        e("s_add_u32 m0, %s, %d" % (T[7], 1024 * b))
        e("s_add_u32 %s, %s, %d" % (T[8], T[8], HSTR))
        e("buffer_load_dwordx4 %s, %s, %s offen sc1 lds" % (v(vL16), sWS, T[1]))
        e("s_add_u32 %s, %s, %d" % (T[1], T[1], HSTR))

    def gflag_load():
        e("buffer_load_dwordx2 %s, %s, %s, %s offen sc1" % (v(vPD, 2), v(vPO), sWS, GF))

    def kv_issue():
        e("s_and_b32 %s, %s, 7" % (CH, CH))
        e("s_lshl_b32 %s, %s, 14" % (T[9], CH))
        e("s_add_u32 %s, %s, 16384" % (LP, LP))
        e("s_add_u32 %s, %s, %s" % (T[9], T[9], KVG))
        e("s_mov_b32 m0, %s" % LP)
        e("s_add_u32 %s, %s, 1" % (CH, CH))
        for i in range(4):
            e("buffer_load_dwordx4 %s, %s, %s offen offset:%d sc1 lds" % (v(vL16), sWS, T[9], 1024 * i))

    def kv_issue_helpers():
        sk, cw = newlab("kvs"), newlab("kvc")
        e("s_cmp_lt_u32 %s, 4" % sW)
        e("s_cbranch_scc1 %s" % cw)
        kv_issue()
        lab(sk)
        ft = newlab("ft")
        TAIL.extend([ft + ":", "    s_cmp_lg_u32 %s, %s" % (sIT, T[8]), "    s_cbranch_scc1 %s" % sk,
                     "    buffer_load_dword %s, %s, s[64:67], %s offen" % (v(PF + 2), v(PF), T[1]), "    s_branch %s" % sk])
        TAIL.extend([cw + ":", "    s_cmp_lt_u32 %s, 4" % sIT, "    s_cbranch_scc1 %s" % ft, "    s_mov_b32 exec_hi, 0",
                     "    buffer_load_dword %s, %s, %s, %s offen" % (v(PF + 2), v(PF + 1), sTMP, T[7]),
                     "    s_mov_b64 exec, -1", "    s_add_u32 %s, %s, %d" % (T[7], T[7], 16 * 2752),
                     "    s_branch %s" % sk])
    e("s_waitcnt vmcnt(0)")
    gflag_load()
    lab(a1)
    addr(T[0], None, QL, [(sW, 1024)])
    e("v_add_u32 v16, %s, %s" % (T[0], v(vL16)))
    e("s_barrier")
    stamp()

    def rdk(t):
        e("ds_read_b128 %s, %s offset:%d" % (v(KB[t & 1], 4), v(AD), t * 2048))

    def rdv(t):
        e("s_mov_b64 exec, %s" % sMV)
        e("ds_read_b128 %s, %s offset:%d" % (v(VB[t & 1], 4), v(AD), t * 2048 + 1024))
        e("ds_read_b128 %s, %s offset:%d" % (v(VB[t & 1] + 4, 4), v(AD), t * 2048 + 1280))
        e("s_mov_b64 exec, -1")

    def smf(vb, p):
        e("v_smfmac_f32_32x32x32_bf16 %s, %s, %s, %s" % (v(O, 16), v(vb, 4), v(p, 8), v(IDX)))

    def ex(cur, a, b):
        for i in range(a, b):
            e("v_exp_f32 %s, %s" % (v(S[cur] + i), v(S[cur] + i)))

    def tile(t, extra=None):
        cur, nxt = t & 1, (t + 1) & 1
        ex(cur, 0, 2)
        smf(VB[nxt] + 4, S[nxt] + 8)
        rdv(t + 1)
        ex(cur, 2, 6)
        e("s_waitcnt lgkmcnt(2)")
        mfma(S[nxt], KB[nxt], Q, "0")
        rdk(t + 2)
        if extra:
            extra()
        ex(cur, 6, 12)
        smf(VB[cur], S[cur])
        ex(cur, 12, 16)
    e("ds_read_b128 %s, v16" % v(Q, 4))
    rdk(0)
    rdv(0)
    rdk(1)
    e("s_waitcnt lgkmcnt(3)")
    mfma(S[0], KB[0], Q, "0")
    e("s_mov_b32 %s, 0" % sIT)
    e("s_mov_b32 %s, %d" % (sCNT, POLL_LIMIT))
    e("s_nop 7")
    cm("keys of this die first; the other dies' K/V are requested as soon as their flags arrive")
    loc, go, retry, issue, chk3 = (newlab(x) for x in ("loc", "go", "retry", "issue", "chk3"))
    lab(loc)
    e("s_cmp_eq_u32 %s, 0" % sIT)
    e("s_cbranch_scc1 %s" % go)
    e("s_cmp_lg_u32 %s, 0" % ISS)
    e("s_cbranch_scc1 %s" % chk3)
    lab(retry)
    e("s_waitcnt vmcnt(0)")
    e("v_cmp_eq_u64 vcc, %s, %s" % (v(vPD, 2), v(vFV, 2)))
    e("s_nop 1")
    e("s_cmp_eq_u64 vcc, -1")
    e("s_cbranch_scc1 %s" % issue)
    gflag_load()
    e("s_cmp_lt_u32 %s, 3" % sIT)
    e("s_cbranch_scc1 %s" % go)
    e("s_sub_u32 %s, %s, 1" % (sCNT, sCNT))
    e("s_cbranch_scc0 %s" % retry)
    e("s_endpgm")
    lab(issue)
    kv_issue()
    kv_issue()
    e("s_mov_b32 %s, 1" % ISS)
    lab(chk3)
    e("s_cmp_lt_u32 %s, 3" % sIT)
    e("s_cbranch_scc1 %s" % go)
    e("s_waitcnt vmcnt(4)")
    e("s_barrier")
    lab(go)
    tile(0)
    tile(1)
    e("v_add_u32 %s, 4096, %s" % (v(AD), v(AD)))
    e("s_add_u32 %s, %s, 1" % (sIT, sIT))
    e("s_cmp_lt_u32 %s, 4" % sIT)
    e("s_cbranch_scc1 %s" % loc)
    fine("a")
    cm("first layer pair, waves 1-3: first touch of Wo / W1 / W2 (one line per lane, spread over all workgroups)")
    e("s_mov_b32 s66, %d" % (1376 * 1024))
    e("s_mov_b32 %s, %d" % (T[1], 43 * 128))
    e("s_cmp_eq_u32 %s, 2" % sW)
    e("s_cselect_b64 s[64:65], s[20:21], s[24:25]")
    e("s_cmp_eq_u32 %s, 1" % sW)
    e("s_cselect_b64 s[64:65], s[16:17], s[64:65]")
    e("s_cselect_b32 s66, %d, s66" % (512 * 1024))
    e("s_cselect_b32 %s, %d, %s" % (T[1], 16 * 128, T[1]))
    e("s_and_b32 s65, s65, 0xffff")
    e("s_mov_b32 s67, 0x20000")
    e("s_mul_i32 %s, %s, s2" % (T[1], T[1]))
    e("v_lshlrev_b32 %s, 7, v0" % v(PF))
    e("s_cmp_eq_u32 %s, 0" % sL)
    e("s_cselect_b32 %s, 1, 99" % T[8])
    e("s_cmp_eq_u32 %s, 0" % sW)
    e("s_cselect_b32 %s, 99, %s" % (T[8], T[8]))
    cm("lines of the W1 rows that are loaded after attention (128-351, 480-511): half per workgroup of a pair")
    srd(sTMP, 20, 512 * 2752)
    e("s_lshr_b32 %s, %s, 4" % (T[0], sJ))
    addr(T[7], None, 128, [(T[0], 128), (sHW, 32)])
    e("s_cmp_eq_u32 %s, 352" % T[7])
    e("s_cselect_b32 %s, 480, %s" % (T[7], T[7]))
    e("s_mul_i32 %s, %s, 2752" % (T[7], T[7]))
    e("s_mul_i32 %s, %s, 192" % (T[0], sC))
    e("s_add_u32 %s, %s, %s" % (T[7], T[7], T[0]))
    e("v_lshrrev_b32 %s, 1, v0" % v(PF + 1))
    e("v_mul_u32_u24 %s, 2752, %s" % (v(PF + 1), v(PF + 1)))
    e("v_and_b32 %s, 1, v0" % v(PF + 2))
    e("v_lshl_add_u32 %s, %s, 7, %s" % (v(PF + 1), v(PF + 2), v(PF + 1)))
    e("s_mov_b32 %s, 1" % sIT)
    loop = newlab("att")
    L.append(".p2align 6")
    lab(loop)
    for t in range(8):
        if t % 2 == 0:
            e("s_setprio %d" % (3 - t // 2))
        if t == 6:
            e("s_waitcnt vmcnt(4)")
            e("s_barrier")
        tile(t, kv_issue_helpers if t == 1 else None)
    e("v_add_u32 %s, 16384, %s" % (v(AD), v(AD)))
    e("s_add_u32 %s, %s, 1" % (sIT, sIT))
    e("s_cmp_lt_u32 %s, 6" % sIT)
    e("s_cbranch_scc1 %s" % loop)
    fine("a")
    cm("last two chunks: stream Wo and part of W1 into the dead K/V space, one piece per tile")
    srd(sTMP, 16, 512 * 1024)
    addr(T[0], None, 0, [(sW, 65536), (sNB, 128)])
    e("s_lshl_b32 %s, %s, 13" % (T[1], sW))

    srd("s[64:67]", 24, 1376 * 1024)
    e("s_lshr_b32 %s, %s, 3" % (T[4], sJ))
    addr(T[2], None, 0, [(T[4], 344 * 1024), (sW, 43 * 1024), (sNB, 128)])
    e("v_lshlrev_b32 %s, 10, v0" % v(PF))

    def w2_lines(trip):
        cm("one line per lane: pull this workgroup's share of W2 into the die's L2")
        e("s_mov_b64 exec, 0x3fffff")
        e("buffer_load_dword %s, %s, s[64:67], %s offen" % (v(PF + 2), v(PF), T[2]))
        e("s_mov_b64 exec, -1")
        e("s_add_u32 %s, %s, %d" % (T[2], T[2], 22 * 1024))

    def wo_piece(t):
        e("s_add_u32 m0, %s, %d" % (T[1], 1024 * t))
        e("s_nop 0")
        dma1(VO, T[0])
        e("s_add_u32 %s, %s, 8192" % (T[0], T[0]))
        if t == 3:
            w2_lines(0)

    def w1_piece(t):
        if t == 1:
            w2_lines(1)
        if t >= 6:
            return
        e("s_add_u32 m0, %s, %d" % (T[1], (t // 3) * 22 * 3072 + (t % 3) * 1024))
        e("s_nop 0")
        dma1(VO + 1 + t % 3, T[0])
        if t == 2:
            e("s_add_u32 %s, %s, %d" % (T[0], T[0], 22 * 16 * 2752))
    for trip in range(2):
        for t in range(8):
            if t % 2 == 0:
                e("s_setprio %d" % (3 - t // 2))
            if t == 6 and trip == 0:
                e("s_waitcnt vmcnt(6)")
                e("s_barrier")
            tile(t + 8 * trip, (lambda t=t: wo_piece(t)) if trip == 0 else (lambda t=t: w1_piece(t)))
        if trip == 0:
            srd(sTMP, 20, 512 * 2752)
            addr(T[0], None, 0, [(sW, 16 * 2752), (sC, 192)])
            addr(T[1], None, 65536, [(sW, 3072)])
    smf(VB[1] + 4, S[1] + 8)
    e("s_setprio 0")
    e("s_waitcnt lgkmcnt(0)")
    e("s_nop 10")
    stamp()
    cm("Softmax guard. The loops above used 0 as a stand-in for the row max. That is exact while the row sum")
    cm("stays in [2^-64, 2^64] and the accumulators are finite; otherwise redo this tile with the true max.")
    fin, slow = newlab("att_fin"), newlab("att_slow")
    e("v_mul_f32 v16, 0, %s" % v(O))
    for i in range(1, 8):
        e("v_fma_f32 v16, %s, 0, v16" % v(O + i))
    e("v_cmp_le_f32 vcc, %s, %s" % (f32(2.0 ** (64 if FORCE_SLOW else -64)), v(O + 8)))
    e("s_mov_b64 %s, vcc" % sM0)
    e("v_cmp_ge_f32 vcc, %s, %s" % (f32(2.0 ** 64), v(O + 8)))
    e("s_and_b64 %s, %s, vcc" % (sM0, sM0))
    e("v_cmp_eq_f32 vcc, 0, v16")
    e("s_and_b64 %s, %s, vcc" % (sM0, sM0))
    e("s_cmp_eq_u64 %s, -1" % sM0)
    e("s_cbranch_scc0 %s" % slow)
    lab(fin)
    e("v_rcp_f32 v16, %s" % v(O + 8))
    addr(T[0], sLB, OF, [(sW, XSTR), (sHEAD, 1024)])
    for p in range(4):
        e("v_pk_mul_f32 %s, %s, v[16:17] op_sel_hi:[1,0]" % (v(O + 2 * p, 2), v(O + 2 * p, 2)))
    for p in range(4):
        e("v_cvt_pk_bf16_f32 %s, %s, %s" % (v(20 + p), v(O + 2 * p), v(O + 2 * p + 1)))
    lstores(["buffer_store_dwordx4 v[20:23], %s, %s, %s offen" % (v(vL16), sWS, T[0])])
    slot(T[2], FA, [(sW, 32), (sHEAD, 1)])
    flag(T[2], 0, local=True)
    e("s_barrier")
    keep = L[:]
    del L[:]
    lab(slow)
    l1, l2 = newlab("slow1"), newlab("slow2")
    addr(T[2], None, KVF, [(sL, KVF_L), (sHEAD, 131072)])
    e("v_mov_b32 %s, 0xff800000" % v(CN))
    e("s_mov_b32 %s, 0" % sIT)
    lab(l1)
    e("buffer_load_dwordx4 %s, %s, %s, %s offen sc1" % (v(KB[0], 4), v(vL16), sWS, T[2]))
    e("s_waitcnt vmcnt(0)")
    mfma(S[0], KB[0], Q, "0")
    e("s_nop 15")
    for i in range(8):
        e("v_max3_f32 %s, %s, %s, %s" % (v(CN), v(S[0] + 2 * i), v(S[0] + 2 * i + 1), v(CN)))
    e("s_add_u32 %s, %s, 2048" % (T[2], T[2]))
    e("s_add_u32 %s, %s, 1" % (sIT, sIT))
    e("s_cmp_lt_u32 %s, 64" % sIT)
    e("s_cbranch_scc1 %s" % l1)
    e("v_mov_b32 %s, %s" % (v(CN + 1), v(CN)))
    e("s_nop 1")
    e("v_permlane32_swap_b32 %s, %s" % (v(CN), v(CN + 1)))
    e("s_nop 1")
    e("v_max_f32 %s, %s, %s" % (v(CN), v(CN), v(CN + 1)))
    e("v_sub_f32 %s, 0, %s" % (v(CN), v(CN)))
    for i in range(1, 16):
        e("v_mov_b32 %s, %s" % (v(CN + i), v(CN)))
    for i in range(16):
        e("v_mov_b32 %s, 0" % v(O + i))
    addr(T[2], None, KVF, [(sL, KVF_L), (sHEAD, 131072)])
    e("s_mov_b32 %s, 0" % sIT)
    lab(l2)
    e("buffer_load_dwordx4 %s, %s, %s, %s offen sc1" % (v(KB[0], 4), v(vL16), sWS, T[2]))
    e("s_mov_b64 exec, %s" % sMV)
    e("buffer_load_dwordx4 %s, %s, %s, %s offen offset:1024 sc1" % (v(VB[0], 4), v(vL16), sWS, T[2]))
    e("buffer_load_dwordx4 %s, %s, %s, %s offen offset:1280 sc1" % (v(VB[0] + 4, 4), v(vL16), sWS, T[2]))
    e("s_mov_b64 exec, -1")
    e("s_waitcnt vmcnt(0)")
    mfma(S[0], KB[0], Q, CN)
    e("s_nop 15")
    for i in range(16):
        e("v_exp_f32 %s, %s" % (v(S[0] + i), v(S[0] + i)))
    e("s_nop 1")
    smf(VB[0], S[0])
    smf(VB[0] + 4, S[0] + 8)
    e("s_nop 15")
    e("s_add_u32 %s, %s, 2048" % (T[2], T[2]))
    e("s_add_u32 %s, %s, 1" % (sIT, sIT))
    e("s_cmp_lt_u32 %s, 64" % sIT)
    e("s_cbranch_scc1 %s" % l2)
    e("s_branch %s" % fin)
    TAIL.extend(L)
    L[:] = keep
    stamp()


def n512(kind):
    wo = kind == "wo"
    ph = "o" if wo else "g"
    cm("================ %s" % ("output projection + residual" if wo else "MLP down projection + residual"))
    NS, J = (16, 16) if wo else (43, 39)
    AK, AS = vACC, vACC + 16
    hl, done = newlab("n_h"), newlab("n_done")
    e("s_cmp_ge_u32 %s, 4" % sW)
    e("s_cbranch_scc1 %s" % hl)
    if not wo:
        srd(sTMP, 26, 1024)
        e("v_lshrrev_b32 %s, 1, %s" % (v(vPO), v(vH16)))
        e("s_lshl_b32 %s, %s, 6" % (T[0], sNT))
        for i in range(4):
            e("buffer_load_dwordx2 %s, %s, %s, %s offen offset:%d" % (v(176 + 2 * i, 2), v(vPO), sTMP, T[0], 16 * i))
    unpack(AK, vRES, 8)
    tr_rows(vW0, 128)
    e("v_bfe_u32 %s, v0, 3, 1" % v(vPD))
    e("v_xor_b32 %s, %s, %s" % (v(vPD), sKH, v(vPD)))
    e("v_lshl_or_b32 %s, %s, 6, %s" % (v(vW0), v(vPD), v(vW0)))
    e("s_mul_i32 %s, %s, %d" % (T[0], sKH, J * 2048))
    e("v_add_u32 %s, %s, %s" % (v(vW0), T[0], v(vW0)))
    e("v_xor_b32 %s, 64, %s" % (v(vW1), v(vW0)))
    if not wo:
        e("v_add_u32 %s, 0x10000, %s" % (v(vW2), v(vW0)))
        e("v_add_u32 %s, 0x10000, %s" % (v(vW3), v(vW1)))
    if wo:
        e("v_and_b32 %s, 15, v0" % v(vPO))
        slot(T[0], FA, [(sTBN, 32), (sKH, 16)])
        addr(T[1], sLB, OF, [(sTBN, XSTR), (sKH, 16384)])
    else:
        e("v_and_b32 %s, 7, v0" % v(vPO))
        slot(T[0], FH, [(sTBN, 16), (sKH, 7)])
        addr(T[1], sLB, HF, [(sTBN, HSTR), (sKH, 43 * 1024)])
    e("v_lshlrev_b32 %s, 6, %s" % (v(vPO), v(vPO)))
    if not wo:
        e("s_waitcnt vmcnt(0)")
        unpack(AS, 176, 8)
        for p in range(8):
            e("v_pk_add_f32 %s, %s, %s" % (v(AK + 2 * p, 2), v(AK + 2 * p, 2), v(AS + 2 * p, 2)))
        e("s_barrier")

    def rd(j, i):
        jj = j % J
        base, off = ((vW0, vW1)[i], jj * 2048) if jj < 32 else ((vW2, vW3)[i], (jj - 32) * 2048)
        d = vWB + (j % 3) * 8 + 4 * i
        e("ds_read_b64_tr_b16 %s, %s offset:%d" % (v(d, 2), v(base), off))
        e("ds_read_b64_tr_b16 %s, %s offset:%d" % (v(d + 2, 2), v(base), off + 1024))
    for j in range(2):
        for i in range(2):
            rd(j, i)
    poll(T[0])
    stamp()
    areg = lambda j: vA + 4 * (j % 32)
    load_frags(T[1], 0, DEPTH, areg)
    fine(ph)
    for j in range(NS):
        issued = min(NS, DEPTH + j)
        if not wo and j == J - 2:
            e("s_barrier")
        e("s_waitcnt vmcnt(%d) lgkmcnt(%d)" % (issued - j - 1, 4 if j + 1 < NS else 0))
        if j in ((0, 4, 8, 15) if wo else (0, 11, 22, 42)):
            fine(ph)
        for i in range(2):
            acc = AK + 16 * i
            mfma(acc, vWB + (j % 3) * 8 + 4 * i, areg(j), "0" if (j == 0 and i == 1) else acc)
            if j + 2 < NS:
                rd(j + 2, i)
            if i == 0 and DEPTH + j < NS:
                load_frags(T[1], DEPTH + j, 1, areg, False)
        if j == (8 if wo else NS - J - 1):
            e("s_barrier")
    e("s_and_b32 %s, %s, 1" % (T[2], sW))
    if wo:
        addr(T[0], None, 0, [(T[2], 4096), (sKH, 32768)])
        e("s_xor_b32 %s, %s, 32768" % (T[1], T[0]))
    else:
        addr(T[0], None, 98304, [(T[2], 4096), (sKH, 8192)])
        e("s_xor_b32 %s, %s, 8192" % (T[1], T[0]))
    e("v_add_u32 v16, %s, %s" % (T[0], v(vL16)))
    e("v_add_u32 v17, %s, %s" % (T[1], v(vL16)))
    e("s_nop 3")
    for i in range(4):
        e("ds_write_b128 v16, %s offset:%d" % (v(AS + 4 * i, 4), 1024 * i))
    e("s_waitcnt lgkmcnt(0)")
    e("s_barrier")
    stamp()
    for i in range(4):
        e("ds_read_b128 %s, v17 offset:%d" % (v(AS + 4 * i, 4), 1024 * i))
    for i in range(4):
        e("s_waitcnt lgkmcnt(%d)" % (3 - i))
        for p in (2 * i, 2 * i + 1):
            e("v_pk_add_f32 %s, %s, %s" % (v(AK + 2 * p, 2), v(AK + 2 * p, 2), v(AS + 2 * p, 2)))
    for p in range(8):
        e("v_cvt_pk_bf16_f32 %s, %s, %s" % (v(vRES + p), v(AK + 2 * p), v(AK + 2 * p + 1)))
    if wo:
        tile_stats(AK, 20)
        publish_x(sLB, X1F, ST1, 0, FO, 20)
    else:
        last = newlab("last")
        e("s_cmp_lg_u32 %s, 0" % sL)
        e("s_cbranch_scc1 %s" % last)
        tile_stats(AK, 20)
        publish_x(sLB, XF, ST, LFL_L * 64, FX, 20)
        e("s_branch %s" % done)
        lab(last)
        srd(sTMP, 28, 2048 * 1024)
        e("v_and_b32 v16, 31, v0")
        e("v_lshlrev_b32 v16, 10, v16")
        e("v_add_u32 v16, v16, %s" % v(vH16))
        addr(T[0], None, 0, [(sXCD, 262144), (sTBN, 32768), (sNT, 64)])
        for g in range(2):
            e("v_permlane32_swap_b32 %s, %s" % (v(vRES + 4 * g), v(vRES + 4 * g + 2)))
            e("v_permlane32_swap_b32 %s, %s" % (v(vRES + 4 * g + 1), v(vRES + 4 * g + 3)))
        for g in range(2):
            e("buffer_store_dwordx4 %s, v16, %s, %s offen offset:%d" % (v(vRES + 4 * g, 4), sTMP, T[0], 32 * g))
    e("s_branch %s" % done)
    lab(hl)
    if wo:
        voff_192(44)
        w0 = newlab("wcs")
        e("s_cmp_lg_u32 %s, 0" % sL)
        e("s_cbranch_scc1 %s" % w0)
        colsum_begin(192, 3072, 64)
        e("s_mov_b32 %s, 65536" % T[0])
        colsum_quads(2, 3072, 1536)
        e("s_mov_b32 %s, %d" % (T[0], 65536 + 22 * 3072))
        colsum_quads(2, 3072, 1536)
        lab(w0)
        e("s_lshl_b32 %s, %s, 2" % (T[3], sHW))
        e("s_min_u32 %s, %s, 10" % (T[3], T[3]))
        addr(T[0], None, 8 * 16 * 2752, [(T[3], 16 * 2752), (sC, 192)])
        addr(T[1], None, 65536 + 8 * 3072, [(T[3], 3072)])
        e("s_barrier")
        dma_w1(2)
        e("s_barrier")
        dma_w1(2)
        e("s_lshr_b32 %s, %s, 1" % (T[3], sHW))
        e("s_and_b32 %s, %s, %s" % (T[3], T[3], sHW))
        addr(T[0], None, 30 * 16 * 2752, [(T[3], 16 * 2752), (sC, 192)])
        addr(T[1], None, 58 * 1024, [(T[3], 3072)])
        dma_w1(1)
    else:
        e("s_waitcnt vmcnt(0)")
        e("s_barrier")
        e("s_lshr_b32 %s, %s, 1" % (T[3], sHW))
        e("s_and_b32 %s, %s, 1" % (T[4], sHW))
        addr(T[0], None, 78 * 8192, [(T[3], 86 * 8192), (T[4], 4 * 8192), (sNB, 128)])
        addr(T[1], None, 0, [(T[3], 78 * 1024), (T[4], 4096)])
        e("s_barrier")
        for k in range(4):
            e("s_add_u32 m0, %s, %d" % (T[1], 1024 * k))
            e("s_nop 0")
            dma1(40, T[0])
            e("s_add_u32 %s, %s, 8192" % (T[0], T[0]))
        e("s_waitcnt vmcnt(0)")
        e("s_barrier")
        e("s_mul_i32 %s, %s, 24576" % (T[0], sHW))
        e("v_add_u32 v42, %s, %s" % (T[0], v(vL16)))
        e("s_barrier")
        e("s_cmp_lg_u32 %s, 0" % sL)
        e("s_cbranch_scc1 %s" % done)
        for k in range(24):
            e("ds_write_b128 v42, %s offset:%d" % (v(vSTASH + 4 * k, 4), 1024 * k))
    lab(done)
    stamp()


def ffn1():
    cm("================ MLP up projection + GELU")
    hl, done = newlab("f1_h"), newlab("f1_done")
    e("s_cmp_ge_u32 %s, 4" % sW)
    e("s_cbranch_scc1 %s" % hl)
    idle = newlab("f1_idle")
    e("s_cmp_eq_u32 %s, 15" % sC)
    e("s_cbranch_scc1 %s" % idle)
    TAIL.extend([idle + ":"] + ["    s_barrier"] * 3 + ["    s_branch " + done])

    def consts(t, part):
        for i in range(4):
            e("ds_read_b128 %s, %s offset:%d" % (v(16 + 32 * t + 16 * part + 4 * i, 4), v(vCA), 512 + 512 * part + t * 128 + 32 * i))
    wide_compute_front(FO, X1F, ST1, False, lambda m: consts(m // 2, m % 2))
    consts(1, 1)
    c0 = -2.0 * 1.4426950408889634 * 0.7978845608028654
    e("v_mov_b32 v112, %s" % f32(c0))
    e("v_mov_b32 v113, %s" % f32(c0 * 0.044715))
    e("v_mov_b32 v114, 1.0")
    addr(T[0], sLB, HF, [(sTBW, HSTR), (sC, 6144)])
    e("s_add_u32 %s, %s, 4096" % (T[1], T[0]))
    Z, P = 120, vWB
    for t in range(3):
        acc, cs, b1 = vACC + 16 * t, 16 + 32 * t, 32 + 32 * t
        e("s_waitcnt lgkmcnt(%d)" % (8 if t < 2 else 0))
        if t == 0:
            consts(2, 0)
            consts(2, 1)
        for p in range(8):
            center(acc, cs, p)
        for p in range(8):
            e("v_pk_fma_f32 %s, %s, %s, %s op_sel_hi:[1,0,1]" %
              (v(acc + 2 * p, 2), v(acc + 2 * p, 2), v(vR, 2), v(b1 + 2 * p, 2)))
        for p in range(8):
            e("v_pk_mul_f32 %s, %s, %s" % (v(Z + 2 * p, 2), v(acc + 2 * p, 2), v(acc + 2 * p, 2)))
        for p in range(8):
            e("v_pk_fma_f32 %s, %s, v[112:113], v[112:113] op_sel:[0,1,0] op_sel_hi:[1,1,0]" %
              (v(Z + 2 * p, 2), v(Z + 2 * p, 2)))
        for p in range(8):
            e("v_pk_mul_f32 %s, %s, %s" % (v(Z + 2 * p, 2), v(Z + 2 * p, 2), v(acc + 2 * p, 2)))
        for i in range(16):
            e("v_exp_f32 %s, %s" % (v(Z + i), v(Z + i)))
        for p in range(8):
            e("v_pk_add_f32 %s, %s, v[114:115] op_sel_hi:[1,0]" % (v(Z + 2 * p, 2), v(Z + 2 * p, 2)))
        for i in range(16):
            e("v_rcp_f32 %s, %s" % (v(Z + i), v(Z + i)))
        for p in range(8):
            e("v_pk_mul_f32 %s, %s, %s" % (v(acc + 2 * p, 2), v(acc + 2 * p, 2), v(Z + 2 * p, 2)))
        for p in range(8):
            e("v_cvt_pk_bf16_f32 %s, %s, %s" % (v(P + 8 * t + p), v(acc + 2 * p), v(acc + 2 * p + 1)))
        lstores(["buffer_store_dwordx4 %s, %s, %s, %s offen offset:%d" %
                 (v(P + 8 * t + 4 * hh, 4), v(vL16), sWS, T[(2 * t + hh) // 4], ((2 * t + hh) % 4) * 1024) for hh in range(2)])
        if t != 1:
            fine("f")
    slot(T[0], FH, [(sTBW, 16), (sC, 1)])
    flag(T[0], 0, local=True)
    e("s_branch %s" % done)
    lab(hl)
    h1 = newlab("fh1")
    voff_128(40)
    e("s_waitcnt vmcnt(3)")
    e("s_barrier")
    e("s_cmp_lg_u32 %s, 0" % sL)
    e("s_cbranch_scc1 %s" % h1)
    cm("first layer pair: column sums of W1 and the bias, kept in LDS")
    srd(sTMP, 22, 2752)
    e("v_and_b32 %s, 31, v0" % v(vPO))
    e("v_lshlrev_b32 %s, 1, %s" % (v(vPO), v(vPO)))
    addr(T[0], None, 0, [(sHW, 64), (sC, 192)])
    e("buffer_load_ushort v47, %s, %s, %s offen" % (v(vPO), sTMP, T[0]))
    e("s_mov_b32 %s, %d" % (T[0], 65536 + 8 * 3072))
    colsum_quads(3, 3072, 1536)
    e("s_mov_b32 %s, %d" % (T[0], 65536 + 20 * 3072))
    e("s_waitcnt vmcnt(0)")
    colsum_quads(1, 3072, 1536, (58 * 1024, 58 * 1024 + 3072))
    colsum_end(CS1_L)
    e("v_lshlrev_b32 v47, 16, v47")
    e("s_lshl_b32 %s, %s, 7" % (T[0], sHW))
    e("v_add_u32 v41, %s, v41" % T[0])
    e("ds_write_b32 v41, v47 offset:%d" % (B1_L - CS1_L))
    lab(h1)
    srd(sTMP, 24, 1376 * 1024)
    e("s_waitcnt vmcnt(0) lgkmcnt(0)")
    e("s_barrier")
    dma_w2(0, 0, 6, None)
    e("s_barrier")
    dma_w2(86, 78 * 1024, 10)
    dma_w2(22, 22 * 1024, 14)
    dma_w2(86 + 38, (78 + 38) * 1024, 10)
    lab(done)
    stamp()


def epilogue():
    e("s_add_u32 %s, %s, 1" % (sL, sL))
    e("s_add_u32 %s, %s, %d" % (sFB, sFB, LFL_L * 64))
    e("s_cmp_lt_u32 %s, 2" % sL)
    e("s_cbranch_scc1 L_layer")
    if PROFILE:
        e("s_memrealtime s[22:23]")
        e("s_waitcnt lgkmcnt(0)")
        stamp("s23")
        e("s_lshl_b32 %s, s2, 3" % T[0])
        e("s_add_u32 %s, %s, %s" % (T[0], T[0], sW))
        e("s_lshl_b32 %s, %s, 8" % (T[0], T[0]))
        e("s_add_u32 %s, %s, 0x%x" % (T[0], T[0], TSB))
        e("s_mov_b64 exec, 1")
        for i, r in enumerate([68, 18, 19] + list(range(STAMP0, STAMP0 + 30)) + [22, 23, 0, 1]):
            e("v_mov_b32 v16, s%d" % r)
            e("buffer_store_dword v16, off, %s, %s offset:%d" % (sWS, T[0], 4 * i))
        e("s_mov_b64 exec, 0xff")
        e("v_lshlrev_b32 v16, 2, v0")
        e("buffer_store_dword v5, v16, %s, %s offen offset:148" % (sWS, T[0]))
        e("s_mov_b64 exec, -1")
    cm("advance the hand-off tag for the next launch")
    e("s_or_b32 %s, s2, %s" % (T[0], sW))
    e("s_cmp_lg_u32 %s, 0" % T[0])
    e("s_cbranch_scc1 L_end")
    e("s_mov_b64 exec, 1")
    e("buffer_store_dword %s, off, %s, 0" % (v(vFV), sWS))
    lab("L_end")
    e("s_endpgm")
    L.extend(TAIL)


HEADER = open(f"cdna_kernels/{NAME}.s.ref").read().split("; Override launch")[0]


def main():
    prologue()
    p0()
    lab("L_layer")
    qkv()
    attention()
    n512("wo")
    ffn1()
    n512("f2")
    epilogue()
    k = NAME + "_kernel"
    out = HEADER
    out += "; @launch grid=(256,1,1) block=(512,1,1) lds=%d\n" % LDS_BYTES
    out += '.amdgcn_target "amdgcn-amd-amdhsa--gfx950"\n.text\n.globl %s\n.p2align 8\n.type %s,@function\n%s:\n' % (k, k, k)
    out += "\n".join(L) + "\n"
    out += """.section .rodata,"a"
.p2align 6
.amdhsa_kernel %s
  .amdhsa_next_free_vgpr 256
  .amdhsa_next_free_sgpr 102
  .amdhsa_accum_offset 256
  .amdhsa_group_segment_fixed_size 0
  .amdhsa_kernarg_size 88
  .amdhsa_user_sgpr_count 2
  .amdhsa_user_sgpr_kernarg_segment_ptr 1
  .amdhsa_system_sgpr_workgroup_id_x 1
.end_amdhsa_kernel
""" % k
    open(OUT, "w").write(out)


main()
```

```python
import struct
import sys

NAME = "interleave_layers__softmax_full_mha__mixer_channel_mlp__prompt"
PROFILE = "--prof" in sys.argv
CLK = "s_memrealtime" if "--rt" in sys.argv else "s_memtime"
FORCE_SLOW = "--slow" in sys.argv
FORCE_GLOBAL = "--global" in sys.argv
OUT = [a for a in sys.argv[1:] if not a.startswith("--")]
OUT = OUT[0] if OUT else f"cdna_kernels/{NAME}.s"


def OPT(name, default):
    a = [x.split("=")[1] for x in sys.argv if x.startswith("--%s=" % name)]
    return int(a[0]) if a else default


def f32(x):
    return "0x%08x" % struct.unpack("<I", struct.pack("<f", x))[0]


WS_SIZE = 0x10000000
FLG = 0x100000
FQG, FQG_L, FI = 0, 1024, 2048
KVF, KVF_L = 0x200000, 0x400000
ARENA, ARENA_X = 0x1000000, 0x200000
XSTR, HSTR = 33 * 1024, 97 * 1024
XF, OF, BLK, ST, LFL = 0, 0x48000, 0x90000, 0x158000, 0x160000
X1F, ST1, HF, QF, KVL = XF, ST, BLK, BLK, BLK + 32768
FX, FQ, FA, FO, FH, LFL_L = 0, 128, 256, 512, 640, 768
TSB = 0x4000000
DEPTH = OPT("depth", 10)
PACE = OPT("pace", 5)
QPACE = OPT("qpace", 2)
RED = 140 * 1024
CONST = 156 * 1024
CSQ_L, CS1_L, B1_L, STAT_L = CONST, CONST + 512, CONST + 1024, CONST + 1536
LDS_BYTES = 160 * 1024
sWS, sTMP = "s[4:7]", "s[8:11]"
sW, sNONCE, sL, sLB, sFB = "s34", "s35", "s36", "s37", "s38"
sXCD, sJ, sTBW, sC, sTBN, sNB, sKH, sNT, sHEAD, sQB = ("s%d" % i for i in range(39, 49))
sHW = "s49"
T = ["s%d" % i for i in range(50, 60)]
sCNT, sIT = "s60", "s61"
sMV = "s[62:63]"
sM0, sM1 = "s[64:65]", "s[66:67]"
sMODE = "s3"
STAMP0 = 72
vLANE, vL16, vFV, vPO, vT5, vPD = 0, 1, 2, 4, 5, 6
vRES = 8
vA, vACC, vWB, vSTS = 16, 144, 192, 228
vW0, vW1, vMU, vW2, vR, vW3, vRQ, vCA, vTR, vK16, vVOF, vH16 = 244, 245, 246, 247, 248, 249, 250, 251, 252, 253, 254, 255
vSTASH = 128
QL = 128 * 1024
POLL_LIMIT = 1 << 16

L = []
TAIL = []
uid = [0]
nstamp = [0]


def e(s):
    L.append("    " + s)


def lab(n):
    L.append(n + ":")


def cm(s):
    L.append("    ; " + s)


def v(i, n=1):
    return "v%d" % i if n == 1 else "v[%d:%d]" % (i, i + n - 1)


def newlab(p):
    uid[0] += 1
    return "L_%s_%d" % (p, uid[0])


def stamp(fixed=None):
    if not PROFILE:
        return
    e(CLK + " s[70:71]")
    e("s_waitcnt lgkmcnt(0)")
    if fixed:
        e("s_mov_b32 %s, s70" % fixed)
        return
    e("s_mul_i32 s69, %s, 15" % sL)
    e("s_add_u32 m0, s69, %d" % nstamp[0])
    e("s_nop 1")
    e("s_movreld_b32 s%d, s70" % STAMP0)
    nstamp[0] += 1
    assert nstamp[0] <= 15


FINE = [a.split("=")[1] for a in sys.argv if a.startswith("--fine=")]
FINE = FINE[0] if FINE else None
nfine = [0]
FINEKS = eval([a.split('=')[1] for a in sys.argv if a.startswith('--ks=')][0]) if any(a.startswith('--ks=') for a in sys.argv) else (0, 8, 16, 31)


def fine(phase):
    if not PROFILE or FINE != phase:
        return
    e(CLK + " s[70:71]")
    e("s_waitcnt lgkmcnt(0)")
    sk = newlab("fs")
    e("s_cmp_lg_u32 %s, %d" % (sL, 0 if "--l0" in sys.argv else 1))
    e("s_cbranch_scc1 %s" % sk)
    e("v_writelane_b32 v5, s70, %d" % nfine[0])
    lab(sk)
    nfine[0] += 1


def srd(dst, lo, size):
    b = int(dst[2:dst.index(":")])
    e("s_mov_b32 s%d, s%d" % (b, lo))
    e("s_and_b32 s%d, s%d, 0xffff" % (b + 1, lo + 1))
    e("s_mov_b32 s%d, %s" % (b + 2, size if isinstance(size, str) else hex(size)))
    e("s_mov_b32 s%d, 0x20000" % (b + 3))


def poll(soff):
    a, b = newlab("poll"), newlab("pok")
    e("s_mov_b32 %s, %d" % (sCNT, POLL_LIMIT))
    lab(a)
    e("buffer_load_dwordx2 %s, %s, %s, %s offen sc1" % (v(vPD, 2), v(vPO), sWS, soff))
    e("s_waitcnt vmcnt(0)")
    e("v_cmp_eq_u64 vcc, %s, %s" % (v(vPD, 2), v(vFV, 2)))
    e("s_nop 1")
    e("s_cmp_eq_u64 vcc, -1")
    e("s_cbranch_scc1 %s" % b)
    e("s_sub_u32 %s, %s, 1" % (sCNT, sCNT))
    e("s_cbranch_scc0 %s" % a)
    e("s_endpgm")
    lab(b)


def lstores(lines):
    g, d = newlab("wt"), newlab("wtd")
    e("s_cmp_eq_u32 %s, 0" % sMODE)
    e("s_cbranch_scc1 %s" % g)
    for x in lines:
        e(x)
    lab(d)
    TAIL.append(g + ":")
    for x in lines:
        TAIL.append("    " + x + (" sc1" if x.startswith("buffer_store") else ""))
    TAIL.append("    s_branch " + d)


def flag(soff, n=0, local=False):
    if n is not None:
        e("s_waitcnt vmcnt(%d)" % n)
    e("s_mov_b64 exec, 1")
    x = "buffer_store_dwordx2 %s, off, %s, %s" % (v(vFV, 2), sWS, soff)
    if local:
        lstores([x])
    else:
        e(x + " sc1")
    e("s_mov_b64 exec, -1")


def mode_poll(first=False):
    a, b, glob, out = newlab("mp"), newlab("mpok"), newlab("mpg"), newlab("mpo")
    e("v_and_b32 %s, 31, v0" % v(vPD))
    e("v_lshlrev_b32 %s, 9, %s" % (v(vPD), v(vPD)))
    addr(T[3], None, FLG + FI * 64, [(sXCD, 64)])
    e("v_add_u32 %s, %s, %s" % (v(vPD), T[3], v(vPD)))
    if first:
        e("v_add_u32 %s, %s, %s" % (v(vPD + 1), T[0], v(vPO)))
        e("v_cmp_gt_u32 vcc, 32, v0")
        e("s_mov_b32 %s, %s" % (T[5], T[0]))
        e("v_cndmask_b32 v60, %s, %s, vcc" % (v(vPD), v(vPD + 1)))
    else:
        e("v_mov_b32 v60, %s" % v(vPD))
    e("s_getreg_b32 %s, hwreg(HW_REG_XCC_ID, 0, 4)" % T[3])
    e("s_mov_b32 %s, %d" % (sCNT, POLL_LIMIT))
    e("s_mov_b32 %s, 1" % sMODE)
    lab(a)
    e("buffer_load_dwordx2 %s, v60, %s, 0 offen sc1" % (v(vPD, 2), sWS))
    e("s_waitcnt vmcnt(0)")
    e("v_xor_b32 %s, %s, %s" % (v(vPD + 1), v(vPD + 1), v(vFV + 1)))
    e("v_cmp_eq_u32 %s, %s, %s" % (sM0, v(vPD), v(vFV)))
    e("v_cmp_eq_u32 %s, %s, %s" % (sM1, T[3], v(vPD + 1)))
    e("v_cmp_gt_u32 vcc, 16, %s" % v(vPD + 1))
    e("s_nop 1")
    e("s_and_b64 %s, %s, %s" % (sM1, sM1, sM0))
    e("s_and_b64 vcc, vcc, %s" % sM0)
    if not FORCE_GLOBAL:
        e("s_cmp_eq_u64 %s, -1" % sM1)
        e("s_cbranch_scc1 %s" % out)
    e("s_cmp_eq_u32 vcc_hi, -1")
    e("s_cbranch_scc0 %s" % b)
    if not FORCE_GLOBAL:
        e("s_cmp_eq_u32 s67, -1")
        e("s_cbranch_scc0 %s" % glob)
    else:
        e("s_branch %s" % glob)
    lab(b)
    e("s_sub_u32 %s, %s, 1" % (sCNT, sCNT))
    e("s_cbranch_scc0 %s" % a)
    e("s_endpgm")
    lab(glob)
    e("s_mov_b32 %s, 0" % sMODE)
    if first:
        e("s_mov_b32 %s, %s" % (T[6], T[1]))
        e("s_mov_b32 %s, %s" % (T[7], T[2]))
        e("v_xor_b32 %s, 31, %s" % (v(vFV + 1), v(vFV + 1)))
        publish_x(sLB, XF, ST, 0, FX, 84)
        poll(T[5])
        e("v_xor_b32 %s, 31, %s" % (v(vFV + 1), v(vFV + 1)))
        e("s_mov_b32 %s, %s" % (T[1], T[6]))
        e("s_mov_b32 %s, %s" % (T[2], T[7]))
    lab(out)


def slot(dst, base, terms):
    e("s_add_u32 %s, %s, %d" % (dst, sFB, base * 64))
    for r, m in terms:
        e("s_mul_i32 %s, %s, %d" % (T[9], r, m * 64))
        e("s_add_u32 %s, %s, %s" % (dst, dst, T[9]))


def addr(dst, base_reg, const, terms):
    if base_reg is None:
        e("s_mov_b32 %s, 0x%x" % (dst, const))
    else:
        e("s_add_u32 %s, %s, 0x%x" % (dst, base_reg, const))
    for r, m in terms:
        e("s_mul_i32 %s, %s, %d" % (T[9], r, m))
        e("s_add_u32 %s, %s, %s" % (dst, dst, T[9]))


def load_frags(sg, first, n, reg_of, rebase=True):
    for j in range(first, first + n):
        if j % 4 == 0 or (j == first and rebase):
            e("s_add_u32 %s, %s, %d" % (T[8], sg, (j // 4) * 4096))
        e("buffer_load_dwordx4 %s, %s, %s, %s offen offset:%d sc1" %
          (v(reg_of(j), 4), v(vL16), sWS, T[8], (j % 4) * 1024))


def mfma(d, a, b, c):
    e("v_mfma_f32_32x32x16_bf16 %s, %s, %s, %s" % (v(d, 16), v(a, 4), v(b, 4), c if isinstance(c, str) else v(c, 16)))


def half_sum(a, b):
    e("s_nop 1")
    e("v_permlane32_swap_b32 %s, %s" % (v(a), v(b)))
    e("s_nop 1")
    e("v_add_f32 %s, %s, %s" % (v(a), v(a), v(b)))


def tile_stats(y, t):
    e("v_pk_add_f32 %s, %s, %s" % (v(t, 2), v(y, 2), v(y + 2, 2)))
    e("v_pk_mul_f32 %s, %s, %s" % (v(t + 2, 2), v(y, 2), v(y, 2)))
    for p in range(1, 8):
        if p > 1:
            e("v_pk_add_f32 %s, %s, %s" % (v(t, 2), v(t, 2), v(y + 2 * p, 2)))
        e("v_pk_fma_f32 %s, %s, %s, %s" % (v(t + 2, 2), v(y + 2 * p, 2), v(y + 2 * p, 2), v(t + 2, 2)))
    e("v_add_f32 %s, %s, %s" % (v(t), v(t), v(t + 1)))
    e("v_add_f32 %s, %s, %s" % (v(t + 2), v(t + 2), v(t + 3)))
    half_sum(t, t + 2)


def unpack(dst, src, n):
    for i in range(n):
        e("v_lshlrev_b32 %s, 16, %s" % (v(dst + 2 * i), v(src + i)))
        e("v_and_b32 %s, 0xffff0000, %s" % (v(dst + 2 * i + 1), v(src + i)))


def publish_x(lb, xoff, stoff, fbase_add, fbase, ystat, between=None):
    addr(T[0], lb, xoff, [(sTBN, XSTR), (sNT, 2048)])
    e("s_lshr_b32 %s, %s, 2" % (T[2], sNT))
    e("s_and_b32 %s, %s, 3" % (T[8], sNT))
    addr(T[1], lb, stoff, [(sTBN, 4096), (T[2], 1024), (T[8], 4)])
    lstores(["buffer_store_dwordx4 %s, %s, %s, %s offen" % (v(vRES, 4), v(vL16), sWS, T[0]),
             "buffer_store_dwordx4 %s, %s, %s, %s offen offset:1024" % (v(vRES + 4, 4), v(vL16), sWS, T[0]),
             "buffer_store_dword %s, %s, %s, %s offen" % (v(ystat), v(vL16), sWS, T[1])])
    slot(T[2], fbase, [(sTBN, 16), (sNT, 1)])
    if fbase_add:
        e("s_add_u32 %s, %s, %d" % (T[2], T[2], fbase_add))
    if between:
        between()
    flag(T[2], local=True)


def prologue():
    e("s_cmp_ge_u32 s2, 256")
    e("s_cbranch_scc1 L_end")
    e("s_load_dwordx16 s[12:27], s[0:1], 0")
    e("s_load_dwordx4 s[28:31], s[0:1], 64")
    e("s_load_dwordx2 s[32:33], s[0:1], 80")
    e("v_lshrrev_b32 v1, 6, v0")
    e("v_and_b32 v0, 63, v0")
    e("v_readfirstlane_b32 %s, v1" % sW)
    e("v_lshlrev_b32 %s, 4, v0" % v(vL16))
    cm("column part of a transposing-read address: (lane&3)*8 + ((lane>>4)&1)*32")
    e("v_and_b32 %s, 3, v0" % v(vTR))
    e("v_lshlrev_b32 %s, 3, %s" % (v(vTR), v(vTR)))
    e("v_bfe_u32 %s, v0, 4, 1" % v(vT5))
    e("v_lshl_or_b32 %s, %s, 5, %s" % (v(vTR), v(vT5), v(vTR)))
    e("v_lshrrev_b32 %s, 5, v0" % v(vT5))
    e("v_lshlrev_b32 %s, 4, %s" % (v(vH16), v(vT5)))
    cm("K fragments are stored with token bits 2 and 3 swapped (matches the sparse-MFMA key order)")
    e("v_and_b32 %s, 0x33, v0" % v(vK16))
    e("v_and_b32 %s, 4, v0" % v(vPO))
    e("v_lshl_or_b32 %s, %s, 1, %s" % (v(vK16), v(vPO), v(vK16)))
    e("v_and_b32 %s, 8, v0" % v(vPO))
    e("v_lshrrev_b32 %s, 1, %s" % (v(vPO), v(vPO)))
    e("v_or_b32 %s, %s, %s" % (v(vK16), v(vK16), v(vPO)))
    e("v_lshlrev_b32 %s, 4, %s" % (v(vK16), v(vK16)))
    cm("V store offset: head parity*128K + half*512 + d*16")
    e("v_and_b32 %s, 15, v0" % v(vVOF))
    e("v_lshlrev_b32 %s, 4, %s" % (v(vVOF), v(vVOF)))
    e("v_lshl_or_b32 %s, %s, 9, %s" % (v(vVOF), v(vT5), v(vVOF)))
    e("v_bfe_u32 %s, v0, 4, 1" % v(vPO))
    e("v_lshl_or_b32 %s, %s, 17, %s" % (v(vVOF), v(vPO), v(vVOF)))
    e("s_and_b32 %s, s2, 7" % sXCD)
    e("s_lshr_b32 %s, s2, 3" % sJ)
    e("s_and_b32 %s, %s, 3" % (sHW, sW))
    e("s_and_b32 %s, %s, 15" % (sC, sJ))
    e("s_lshr_b32 %s, %s, 4" % (T[0], sJ))
    e("s_lshl_b32 %s, %s, 2" % (T[0], T[0]))
    e("s_add_u32 %s, %s, %s" % (sTBW, T[0], sHW))
    e("s_and_b32 %s, %s, 7" % (sNB, sJ))
    e("s_lshr_b32 %s, %s, 3" % (T[0], sJ))
    e("s_mov_b32 %s, %s" % (sHEAD, sJ))
    e("s_lshl_b32 %s, %s, 1" % (sTBN, T[0]))
    e("s_and_b32 %s, %s, 1" % (T[0], sW))
    e("s_add_u32 %s, %s, %s" % (sTBN, sTBN, T[0]))
    e("s_lshr_b32 %s, %s, 1" % (sKH, sHW))
    e("s_lshl_b32 %s, %s, 1" % (sNT, sNB))
    e("s_add_u32 %s, %s, %s" % (sNT, sNT, sKH))
    e("s_mov_b32 s62, 0xffff")
    e("s_mov_b32 s63, 0xffff")
    e("s_mov_b32 %s, 0" % sL)
    addr(sLB, None, ARENA, [(sXCD, ARENA_X)])
    e("s_add_u32 %s, %s, 0x%x" % (sFB, sLB, LFL))
    e("s_waitcnt lgkmcnt(0)")
    srd(sWS, 32, WS_SIZE)
    srd(sTMP, 12, 2048 * 1024)
    cm("hand-off tag: ws[0] only tells this launch's flags from an earlier launch's")
    e("s_load_dword %s, s[32:33], 0" % sNONCE)
    if PROFILE:
        e("s_memrealtime s[70:71]")
        e("s_waitcnt lgkmcnt(0)")
        e("s_mov_b32 s68, s70")
        stamp("s18")


def make_tag():
    e("s_waitcnt lgkmcnt(0)")
    e("s_add_u32 %s, %s, 16" % (sNONCE, sNONCE))
    e("v_mov_b32 %s, %s" % (v(vFV), sNONCE))
    e("v_not_b32 %s, %s" % (v(vFV + 1), v(vFV)))


def p0():
    cm("================ P0 (waves 0-3): x tile -> residual registers, fragments and row statistics")
    p0end, noid, nox = newlab("p0end"), newlab("noid"), newlab("nox")
    e("s_cmp_ge_u32 %s, 4" % sW)
    e("s_cbranch_scc1 %s" % nox)
    e("v_and_b32 %s, 31, v0" % v(vPO))
    e("v_lshlrev_b32 %s, 10, %s" % (v(vPO), v(vPO)))
    e("v_lshl_or_b32 %s, %s, 3, %s" % (v(vPO), v(vT5), v(vPO)))
    addr(T[0], None, 0, [(sXCD, 262144), (sTBN, 32768), (sNT, 64)])
    for i in range(4):
        e("buffer_load_dwordx2 %s, %s, %s, %s offen offset:%d" % (v(vRES + 2 * i, 2), v(vPO), sTMP, T[0], 16 * i))
    lab(nox)
    cm("one line per lane: the 32 workgroups of a group pull Wqkv into their L2")
    srd(sTMP, 14, 512 * 3072)
    e("v_lshlrev_b32 v17, 7, v0")
    addr(T[0], None, 0, [(sJ, 384 * 128), (sW, 48 * 128)])
    e("s_mov_b32 exec_hi, 0xffff")
    e("buffer_load_dword v16, v17, %s, %s offen" % (sTMP, T[0]))
    e("s_mov_b64 exec, -1")
    e("s_cmp_ge_u32 %s, 4" % sW)
    e("s_cbranch_scc1 %s" % p0end)
    stamp("s0")
    make_tag()
    e("s_getreg_b32 %s, hwreg(HW_REG_XCC_ID, 0, 4)" % T[7])
    e("s_mov_b32 %s, 1" % sMODE)
    e("v_xor_b32 %s, %s, %s" % (v(vFV + 1), T[7], v(vFV + 1)))
    nid = newlab("nid")
    e("s_cmp_lg_u32 %s, 0" % sW)
    e("s_cbranch_scc1 %s" % nid)
    e("s_lshl_b32 %s, s2, 6" % T[8])
    e("s_add_u32 %s, %s, 0x%x" % (T[8], T[8], FLG + FI * 64))
    flag(T[8], None)
    e("s_waitcnt vmcnt(2)")
    e("s_branch %s" % noid)
    lab(nid)
    e("s_waitcnt vmcnt(1)")
    lab(noid)
    stamp("s1")
    unpack(66, vRES, 8)
    tile_stats(66, 84)
    publish_x(sLB, XF, ST, 0, FX, 84)
    e("s_nop 0")
    e("v_not_b32 %s, %s" % (v(vFV + 1), v(vFV)))
    lab(p0end)
    stamp("s19")


def tr_rows(dst, rowbytes):
    e("v_bfe_u32 %s, v0, 2, 2" % v(dst))
    e("v_lshrrev_b32 %s, 2, %s" % (v(vPD), v(vH16)))
    e("v_add_u32 %s, %s, %s" % (v(dst), v(dst), v(vPD)))
    e("v_mul_u32_u24 %s, %d, %s" % (v(dst), rowbytes, v(dst)))
    e("v_add_u32 %s, %s, %s" % (v(dst), v(dst), v(vTR)))


def voff_128(dst):
    e("v_lshrrev_b32 %s, 3, v0" % v(dst))
    e("v_lshlrev_b32 %s, 10, %s" % (v(dst), v(dst)))
    e("v_and_b32 %s, 7, v0" % v(vPD))
    e("v_lshrrev_b32 %s, 2, v0" % v(vPD + 1))
    e("v_and_b32 %s, 4, %s" % (v(vPD + 1), v(vPD + 1)))
    e("v_xor_b32 %s, %s, %s" % (v(vPD), v(vPD), v(vPD + 1)))
    e("v_lshl_or_b32 %s, %s, 4, %s" % (v(dst), v(vPD), v(dst)))


def voff_192(dst):
    for i in range(3):
        e("v_add_u32 %s, %d, v0" % (v(vPD), 64 * i))
        e("v_mul_u32_u24 %s, 5462, %s" % (v(vPD + 1), v(vPD)))
        e("v_lshrrev_b32 %s, 16, %s" % (v(vPD + 1), v(vPD + 1)))
        e("v_mul_u32_u24 %s, %d, %s" % (v(dst + i), 2752 - 192, v(vPD + 1)))
        e("v_lshl_add_u32 %s, %s, 4, %s" % (v(dst + i), v(vPD), v(dst + i)))


def dma1(vo, sg):
    e("buffer_load_dwordx4 %s, %s, %s offen lds" % (v(vo), sTMP, sg))


def dma_loop(n, body):
    lp = newlab("dl")
    e("s_mov_b32 %s, %d" % (T[2], n))
    lab(lp)
    body()
    e("s_sub_u32 %s, %s, 1" % (T[2], T[2]))
    e("s_cmp_lg_u32 %s, 0" % T[2])
    e("s_cbranch_scc1 %s" % lp)


def dma_w2(piece0, lds0, n, pace=PACE):
    addr(T[0], None, piece0 * 8192, [(sHW, n * 8192), (sNB, 128)])
    addr(T[1], None, lds0, [(sHW, n * 1024)])

    def body():
        e("s_mov_b32 m0, %s" % T[1])
        e("s_add_u32 %s, %s, 1024" % (T[1], T[1]))
        dma1(40, T[0])
        e("s_add_u32 %s, %s, 8192" % (T[0], T[0]))
        if pace:
            e("s_waitcnt vmcnt(%d)" % pace)
    dma_loop(n, body)


def dma_w1(n):
    def body():
        for i in range(3):
            e("s_add_u32 m0, %s, %d" % (T[1], 1024 * i))
            e("s_nop 0")
            dma1(44 + i, T[0])
        e("s_add_u32 %s, %s, %d" % (T[0], T[0], 16 * 2752))
        e("s_add_u32 %s, %s, 3072" % (T[1], T[1]))
    dma_loop(n, body)


def wq_begin():
    srd(sTMP, 14, 512 * 3072)
    e("v_lshrrev_b32 v40, 2, v0")
    e("v_mul_u32_u24 v40, 3072, v40")
    e("v_and_b32 v41, 3, v0")
    e("v_lshl_or_b32 v40, v41, 4, v40")
    addr(T[3], None, 0, [(sHW, 2 * 49152), (sC, 64)])
    e("s_lshl_b32 %s, %s, 11" % (T[4], sHW))


def wq_chunk(pace=None):
    for dk in range(2):
        for i in range(3):
            e("s_add_u32 m0, %s, %d" % (T[4], i * 31744 + dk * 1024))
            e("s_nop 0")
            e("buffer_load_dwordx4 v40, %s, %s offen offset:%d lds" % (sTMP, T[3], i * 1024))
            if pace is not None:
                e("s_waitcnt vmcnt(%d)" % pace)
        e("s_add_u32 %s, %s, %d" % (T[3], T[3], 49152 if dk == 0 else 7 * 49152))
    e("s_add_u32 %s, %s, 8192" % (T[4], T[4]))


CSA = 64


def colsum_begin(rowbytes, step, tilestep):
    tr_rows(43, rowbytes)
    for r in range(48):
        e("v_mov_b32 v%d, 0" % (CSA + r))
    for r in range(4):
        e("v_mov_b32 v%d, 0x3f803f80" % (52 + r))
    e("s_mul_i32 %s, %s, %d" % (T[6], sHW, tilestep))
    e("s_mov_b32 %s, %d" % (T[5], step))
    e("s_cmp_eq_u32 %s, 3" % sHW)
    e("s_cselect_b32 %s, %d, %s" % (T[5], tilestep, T[5]))
    e("s_cselect_b32 %s, %d, %s" % (T[6], 3 * step, T[6]))


def colsum_quads(n, step, second, last=None):
    lp = newlab("cs")
    e("s_add_u32 %s, %s, %s" % (T[0], T[0], T[6]))
    if last:
        e("s_cmp_eq_u32 %s, 3" % sHW)
        e("s_cselect_b32 %s, %d, %s" % (T[0], last[1], T[0]))
    e("v_add_u32 v42, %s, v43" % T[0])
    e("v_add_u32 v48, %s, v42" % T[5])
    e("v_add_u32 v56, %s, v48" % T[5])
    if last:
        sk = newlab("cs")
        e("s_cbranch_scc1 %s" % sk)
        e("s_add_u32 %s, %s, %d" % (T[0], T[6], last[0]))
        e("v_add_u32 v56, %s, v43" % T[0])
        lab(sk)
    e("s_mov_b32 %s, %d" % (T[0], n))
    lab(lp)
    for i, a in enumerate((42, 48, 56)):
        for h in range(2):
            e("ds_read_b64_tr_b16 %s, v%d offset:%d" % (v(16 + 4 * i + 2 * h, 2), a, h * second))
        e("v_add_u32 v%d, %d, v%d" % (a, 4 * step, a))
    for i in range(3):
        e("s_waitcnt lgkmcnt(%d)" % (4 - 2 * i))
        mfma(CSA + 16 * i, 52, 16 + 4 * i, CSA + 16 * i)
    e("s_sub_u32 %s, %s, 1" % (T[0], T[0]))
    e("s_cmp_lg_u32 %s, 0" % T[0])
    e("s_cbranch_scc1 %s" % lp)


def colsum_end(dst_l):
    w3, dn = newlab("ce"), newlab("ce")
    e("v_and_b32 v41, 31, v0")
    e("v_lshlrev_b32 v41, 2, v41")
    e("v_add_u32 v41, %d, v41" % dst_l)
    e("s_nop 7")
    e("s_mov_b32 exec_hi, 0")
    e("s_cmp_eq_u32 %s, 3" % sHW)
    e("s_cbranch_scc1 %s" % w3)
    e("v_add_f32 v50, v%d, v%d" % (CSA, CSA + 16))
    e("s_lshl_b32 %s, %s, 7" % (T[0], sHW))
    e("v_add_f32 v50, v50, v%d" % (CSA + 32))
    e("v_add_u32 v42, %s, v41" % T[0])
    e("ds_add_f32 v42, v50")
    e("s_branch %s" % dn)
    lab(w3)
    for i in range(3):
        e("ds_add_f32 v41, v%d offset:%d" % (CSA + 16 * i, 128 * i))
    lab(dn)
    e("s_mov_b64 exec, -1")


def stats_code(second_ln):
    c = []
    for k in range(1, 16):
        c.append("v_add_f32 %s, %s, %s" % (v(vSTS), v(vSTS), v(vSTS + k)))
    c += ["v_mov_b32 %s, %s" % (v(vSTS + 1), v(vSTS)), "s_nop 1",
          "v_permlane32_swap_b32 %s, %s" % (v(vSTS), v(vSTS + 1)), "s_nop 1",
          "v_mul_f32 %s, %s, %s" % (v(vMU), f32(1.0 / 512), v(vSTS)),
          "v_mul_f32 %s, %s, %s" % (v(vSTS + 1), f32(1.0 / 512), v(vSTS + 1)),
          "v_fma_f32 %s, -%s, %s, %s" % (v(vSTS + 1), v(vMU), v(vMU), v(vSTS + 1)),
          "v_max_f32 %s, 0, %s" % (v(vSTS + 1), v(vSTS + 1)),
          "v_add_f32 %s, %s, %s" % (v(vSTS + 2), f32(1e-5), v(vSTS + 1)),
          "v_rsq_f32 %s, %s" % (v(vR), v(vSTS + 2)), "s_nop 0"]
    if second_ln:
        c += ["v_mul_f32 %s, %s, %s" % (v(vSTS + 2), v(vR), v(vR)),
              "v_mul_f32 %s, %s, %s" % (v(vSTS + 2), v(vSTS + 2), v(vSTS + 1)),
              "v_add_f32 %s, %s, %s" % (v(vSTS + 2), f32(1e-5), v(vSTS + 2)),
              "v_rsq_f32 %s, %s" % (v(vSTS + 2), v(vSTS + 2)), "s_nop 0",
              "v_mul_f32 %s, %s, %s" % (v(vR), v(vR), v(vSTS + 2))]
    return c


def wide_compute_front(fbase, xoff, stoff, qkv_phase, tail_code):
    ph = "q" if qkv_phase else "f"
    e("v_and_b32 %s, 15, v0" % v(vPO))
    e("v_lshlrev_b32 %s, 6, %s" % (v(vPO), v(vPO)))
    slot(T[0], fbase, [(sTBW, 16)])
    addr(T[1], sLB, xoff, [(sTBW, XSTR)])
    addr(T[2], sLB, stoff, [(sTBW, 4096)])
    e("v_add_u32 %s, %d, %s" % (v(vCA), CONST, v(vH16)))
    if qkv_phase:
        tr_rows(vW0, 64)
        e("v_add_u32 %s, 0x10000, %s" % (v(vW1), v(vW0)))
        e("s_barrier")
    else:
        tr_rows(vW2, 192)
        e("v_add_u32 %s, 0x10000, %s" % (v(vW0), v(vW2)))
        e("v_add_u32 %s, %d, %s" % (v(vW1), 21 * 3072, v(vW0)))

    def rd(ks, i):
        d = vWB + (ks % 3) * 12 + 4 * i
        if qkv_phase:
            base, off, sec = ((vW0, i * 32768 + ks * 1024) if i < 2 else (vW1, ks * 1024)) + (512,)
        else:
            base, off = (vW0, ks * 3072) if ks < 21 else (vW1, (ks - 21) * 3072) if ks < 30 else (vW2, 58 * 1024 + (ks - 30) * 3072)
            off, sec = off + 64 * i, 1536
        e("ds_read_b64_tr_b16 %s, %s offset:%d" % (v(d, 2), v(base), off))
        e("ds_read_b64_tr_b16 %s, %s offset:%d" % (v(d + 2, 2), v(base), off + sec))
    for ks in range(2):
        for i in range(3):
            rd(ks, i)
    if qkv_phase:
        l1, l2 = newlab("fx"), newlab("fx")
        e("s_cmp_lg_u32 %s, 0" % sL)
        e("s_cbranch_scc1 %s" % l1)
        mode_poll(True)
        e("s_branch %s" % l2)
        lab(l1)
        poll(T[0])
        lab(l2)
    else:
        poll(T[0])
    stamp()

    def item(n):
        if n < 32:
            load_frags(T[1], n, 1, lambda j: vA + 4 * j, n % 4 == 0)
        elif n < 36:
            e("buffer_load_dwordx4 %s, %s, %s, %s offen offset:%d sc1" % (v(vSTS + 4 * (n - 32), 4), v(vL16), sWS, T[2], 1024 * (n - 32)))
    for n in range(DEPTH):
        item(n)
    if qkv_phase:
        e("s_barrier")
    fine(ph)
    st = stats_code(not qkv_phase)
    per = -(-len(st) // 8)
    for ks in range(32):
        if ks in ((6, 14, 22, 30) if qkv_phase else (6, 26)):
            e("s_barrier")
        e("s_waitcnt vmcnt(%d) lgkmcnt(%d)" % (0 if ks >= 29 else min(36, DEPTH + ks) - ks - 1, 6 if ks < 31 else 0))
        if ks in FINEKS:
            fine(ph)
        for i in range(3):
            w, a = vWB + (ks % 3) * 12 + 4 * i, vA + 4 * ks
            c = "0" if ks == 0 else vACC + 16 * i
            if qkv_phase and i == 2:
                mfma(vACC + 16 * i, a, w, c)
            else:
                mfma(vACC + 16 * i, w, a, c)
            if ks + 2 < 32:
                rd(ks + 2, i)
            if i == 0:
                item(ks + DEPTH)
            if ks >= 29:
                g = (ks - 29) * 3 + i
                for x in st[g * per:(g + 1) * per]:
                    e(x)
            if ks == 31:
                tail_code(i)
    e("s_barrier")
    stamp()


def center(acc, cs, p):
    e("v_pk_fma_f32 %s, %s, %s, %s op_sel_hi:[0,1,1] neg_lo:[1,0,0] neg_hi:[1,0,0]" %
      (v(acc + 2 * p, 2), v(vMU, 2), v(cs + 2 * p, 2), v(acc + 2 * p, 2)))


PKV = 116


def qkv():
    cm("================ QKV projection")
    hl, done = newlab("qkv_h"), newlab("qkv_done")
    e("s_cmp_ge_u32 %s, 4" % sW)
    e("s_cbranch_scc1 %s" % hl)

    def tail(m):
        if m < 2:
            for i in range(4):
                e("ds_read_b128 %s, %s offset:%d" % (v(32 - 16 * m + 4 * i, 4), v(vCA), (1 - m) * 128 + 32 * i))
            return
        e("v_and_b32 v48, 31, v0")
        e("v_lshlrev_b32 v48, 2, v48")
        addr(T[0], None, STAT_L, [(sHW, 256)])
        e("v_add_u32 v49, %s, v48" % T[0])
        e("v_add_u32 v50, %s, %s" % (T[0], v(vH16)))
        e("v_add_u32 v48, %d, v48" % CSQ_L)
        e("ds_write_b32 v49, %s" % v(vMU))
        e("ds_write_b32 v49, %s offset:128" % v(vR))
        e("v_mul_f32 %s, %s, %s" % (v(vRQ), f32(0.25 * 1.4426950408889634), v(vR)))
    wide_compute_front(FX, XF, ST, True, tail)
    e("ds_read_b32 v52, v48 offset:256")
    for i in range(4):
        e("ds_read_b128 %s, v50 offset:%d" % (v(64 + 4 * i, 4), 32 * i))
    for i in range(4):
        e("ds_read_b128 %s, v50 offset:%d" % (v(80 + 4 * i, 4), 128 + 32 * i))
    addr(T[0], sLB, QF, [(sC, 2048), (sTBW, HSTR)])
    e("s_add_u32 %s, %s, 1024" % (T[1], T[0]))
    addr(T[2], sLB, KVL, [(sC, 4096), (sTBW, HSTR)])
    e("s_add_u32 %s, %s, 2048" % (T[3], T[2]))
    addr(T[4], None, KVF, [(sL, KVF_L), (sC, 2 * 131072), (sXCD, 16384), (sTBW, 2048)])
    e("s_add_u32 %s, %s, 0x20000" % (T[5], T[4]))
    e("v_and_b32 v51, 0x1ffff, %s" % v(vVOF))
    e("v_lshrrev_b32 v54, 17, %s" % v(vVOF))
    e("v_lshl_or_b32 v51, v54, 11, v51")
    P = PKV

    def row_tile(t):
        acc = vACC + 16 * t
        for p in range(8):
            center(acc, 16 + 16 * t, p)
        for p in range(8):
            e("v_pk_mul_f32 %s, %s, %s op_sel_hi:[1,0]" % (v(acc + 2 * p, 2), v(acc + 2 * p, 2), v(vRQ if t == 0 else vR, 2)))
        for p in range(8):
            e("v_cvt_pk_bf16_f32 %s, %s, %s" % (v(P + 8 * t + p), v(acc + 2 * p), v(acc + 2 * p + 1)))
    e("s_waitcnt lgkmcnt(15)")
    row_tile(1)
    cm("K and V get a write-through copy for the other dies and a copy for this die group")
    for hh in range(2):
        e("buffer_store_dwordx4 %s, %s, %s, %s offen sc1" % (v(P + 8 + 4 * hh, 4), v(vK16), sWS, T[4 + hh]))
    acc = vACC + 32
    e("s_waitcnt lgkmcnt(0)")
    for p in range(8):
        e("v_pk_fma_f32 %s, %s, v[52:53], %s op_sel_hi:[1,0,1] neg_lo:[1,0,0] neg_hi:[1,0,0]" %
          (v(acc + 2 * p, 2), v(64 + 2 * p, 2), v(acc + 2 * p, 2)))
    for p in range(8):
        e("v_pk_mul_f32 %s, %s, %s" % (v(acc + 2 * p, 2), v(acc + 2 * p, 2), v(80 + 2 * p, 2)))
    for p in range(8):
        e("v_cvt_pk_bf16_f32 %s, %s, %s" % (v(P + 16 + p), v(acc + 2 * p), v(acc + 2 * p + 1)))
    for t in range(2):
        e("buffer_store_dwordx4 %s, %s, %s, %s offen offset:%d sc1" % (v(P + 16 + 4 * t, 4), v(vVOF), sWS, T[4], 1024 + 256 * t))
    row_tile(0)
    lstores(["buffer_store_dwordx4 %s, %s, %s, %s offen" % (v(P + 8 + 4 * hh, 4), v(vK16), sWS, T[2 + hh]) for hh in range(2)] +
            ["buffer_store_dwordx4 %s, v51, %s, %s offen offset:%d" % (v(P + 16 + 4 * t, 4), sWS, T[2], 1024 + 256 * t) for t in range(2)] +
            ["buffer_store_dwordx4 %s, %s, %s, %s offen" % (v(P + 4 * hh, 4), v(vL16), sWS, T[hh]) for hh in range(2)])
    fine("q")
    slot(T[0], FQ, [(sC, 8), (sTBW, 1)])
    addr(T[1], None, FLG + FQG * 64, [(sL, FQG_L * 64), (sC, 4096), (sXCD, 512), (sTBW, 64)])
    flag(T[0], 0, local=True)
    flag(T[1], None)
    e("s_branch %s" % done)
    lab(hl)
    h1, lp = newlab("qh1"), newlab("qhl")
    e("s_cmp_lg_u32 %s, 0" % sL)
    e("s_cbranch_scc1 %s" % h1)
    wq_begin()
    make_tag()
    e("s_waitcnt vmcnt(0)")
    dma_loop(2, lambda: wq_chunk(QPACE))
    e("v_lshlrev_b32 v42, 4, v0")
    e("v_add_u32 v42, %d, v42" % CONST)
    colsum_begin(64, 1024, 32768)
    e("ds_write_b128 v42, %s" % v(CSA, 4))
    e("s_mov_b32 %s, 0" % sIT)
    lab(lp)
    b1, b2, b3 = newlab("qw"), newlab("qw"), newlab("qw")
    e("s_waitcnt vmcnt(6) lgkmcnt(0)")
    e("s_cmp_lt_u32 %s, 3" % sIT)
    e("s_cbranch_scc1 %s" % b1)
    e("s_waitcnt vmcnt(0)")
    lab(b1)
    e("s_barrier")
    e("s_cmp_lg_u32 %s, 0" % sIT)
    e("s_cbranch_scc1 %s" % b2)
    e("s_barrier")
    lab(b2)
    e("s_cmp_ge_u32 %s, 2" % sIT)
    e("s_cbranch_scc1 %s" % b3)
    wq_chunk()
    lab(b3)
    e("s_lshl_b32 %s, %s, 13" % (T[0], sIT))
    colsum_quads(2, 1024, 512)
    e("s_add_u32 %s, %s, 1" % (sIT, sIT))
    e("s_cmp_lt_u32 %s, 4" % sIT)
    e("s_cbranch_scc1 %s" % lp)
    colsum_end(CSQ_L)
    e("s_waitcnt lgkmcnt(0)")
    e("s_barrier")
    cm("park the weight tile in registers for the second layer pair")
    e("s_mul_i32 %s, %s, 24576" % (T[0], sHW))
    e("v_add_u32 v42, %s, %s" % (T[0], v(vL16)))
    for k in range(24):
        e("ds_read_b128 %s, v42 offset:%d" % (v(vSTASH + 4 * k, 4), 1024 * k))
    e("s_waitcnt lgkmcnt(0)")
    e("s_barrier")
    mode_poll()
    e("s_branch %s" % done)
    lab(h1)
    e("s_waitcnt lgkmcnt(0)")
    for _ in range(7):
        e("s_barrier")
    lab(done)
    stamp()


def attention():
    cm("================ attention: S^T = K Q^T, P = exp2(S^T), O^T += V^T P via sparse MFMA")
    S, O, Q, KB, VB, IDX, AD, VO, CN = (16, 32), 48, 64, (68, 72), (76, 84), 92, 93, 94, 100
    PF = 100
    KVG, LP, CH, GF, ISS = T[2], T[3], T[4], T[5], T[6]
    for i in range(16):
        e("v_mov_b32 %s, 0" % v(O + i))
        e("v_mov_b32 %s, 0x3f803f80" % v(VB[0] + i))
    for i in range(8):
        e("v_mov_b32 %s, 0" % v(S[1] + 8 + i))
    e("v_mov_b32 %s, 0xdddddddd" % v(IDX))
    e("v_mov_b32 %s, %s" % (v(AD), v(vL16)))
    voff_128(VO)
    voff_192(VO + 1)
    e("s_mov_b32 %s, 1" % ISS)
    a1 = newlab("a1")
    e("s_cmp_lt_u32 %s, 4" % sW)
    e("s_cbranch_scc1 %s" % a1)
    cm("waves 4-7 fetch Q and this die's K/V, and later the other dies' K/V")
    e("v_and_b32 %s, 7, v0" % v(vPO))
    e("v_lshlrev_b32 %s, 6, %s" % (v(vPO), v(vPO)))
    e("s_lshr_b32 %s, %s, 1" % (T[1], sHEAD))
    addr(GF, None, FLG + FQG * 64, [(sL, FQG_L * 64), (T[1], 4096)])
    slot(T[0], FQ, [(T[1], 8)])
    addr(T[1], sLB, QF, [(sHEAD, 1024), (sHW, 2 * HSTR)])
    addr(KVG, None, KVF, [(sL, KVF_L), (sHEAD, 131072), (sHW, 4096)])
    addr(T[8], sLB, KVL, [(sHEAD, 2048), (sHW, 2 * HSTR)])
    addr(T[7], None, QL, [(sHW, 2048)])
    e("s_lshl_b32 %s, %s, 12" % (LP, sHW))
    e("s_add_u32 %s, %s, 1" % (CH, sXCD))
    e("s_mov_b32 %s, 0" % ISS)
    poll(T[0])
    for b in range(2):
        e("s_add_u32 m0, %s, %d" % (LP, 2048 * b))
        e("v_lshlrev_b32 %s, 6, v0" % v(vPO))
        for i in range(2):
            e("buffer_load_dwordx4 %s, %s, %s offen offset:%d sc1 lds" % (v(vL16), sWS, T[8], 1024 * i))
        e("s_add_u32 m0, %s, %d" % (T[7], 1024 * b))
        e("s_add_u32 %s, %s, %d" % (T[8], T[8], HSTR))
        e("buffer_load_dwordx4 %s, %s, %s offen sc1 lds" % (v(vL16), sWS, T[1]))
        e("s_add_u32 %s, %s, %d" % (T[1], T[1], HSTR))

    def gflag_load():
        e("buffer_load_dwordx2 %s, %s, %s, %s offen sc1" % (v(vPD, 2), v(vPO), sWS, GF))

    def kv_issue():
        e("s_and_b32 %s, %s, 7" % (CH, CH))
        e("s_lshl_b32 %s, %s, 14" % (T[9], CH))
        e("s_add_u32 %s, %s, 16384" % (LP, LP))
        e("s_add_u32 %s, %s, %s" % (T[9], T[9], KVG))
        e("s_mov_b32 m0, %s" % LP)
        e("s_add_u32 %s, %s, 1" % (CH, CH))
        for i in range(4):
            e("buffer_load_dwordx4 %s, %s, %s offen offset:%d sc1 lds" % (v(vL16), sWS, T[9], 1024 * i))

    def kv_issue_helpers():
        sk, cw = newlab("kvs"), newlab("kvc")
        e("s_cmp_lt_u32 %s, 4" % sW)
        e("s_cbranch_scc1 %s" % cw)
        kv_issue()
        lab(sk)
        ft = newlab("ft")
        TAIL.extend([ft + ":", "    s_cmp_lg_u32 %s, %s" % (sIT, T[8]), "    s_cbranch_scc1 %s" % sk,
                     "    buffer_load_dword %s, %s, s[64:67], %s offen" % (v(PF + 2), v(PF), T[1]), "    s_branch %s" % sk])
        TAIL.extend([cw + ":", "    s_cmp_lt_u32 %s, 4" % sIT, "    s_cbranch_scc1 %s" % ft, "    s_mov_b32 exec_hi, 0",
                     "    buffer_load_dword %s, %s, %s, %s offen" % (v(PF + 2), v(PF + 1), sTMP, T[7]),
                     "    s_mov_b64 exec, -1", "    s_add_u32 %s, %s, %d" % (T[7], T[7], 16 * 2752),
                     "    s_branch %s" % sk])
    e("s_waitcnt vmcnt(0)")
    gflag_load()
    lab(a1)
    addr(T[0], None, QL, [(sW, 1024)])
    e("v_add_u32 v16, %s, %s" % (T[0], v(vL16)))
    e("s_barrier")
    stamp()

    def rdk(t):
        e("ds_read_b128 %s, %s offset:%d" % (v(KB[t & 1], 4), v(AD), t * 2048))

    def rdv(t):
        e("s_mov_b64 exec, %s" % sMV)
        e("ds_read_b128 %s, %s offset:%d" % (v(VB[t & 1], 4), v(AD), t * 2048 + 1024))
        e("ds_read_b128 %s, %s offset:%d" % (v(VB[t & 1] + 4, 4), v(AD), t * 2048 + 1280))
        e("s_mov_b64 exec, -1")

    def smf(vb, p):
        e("v_smfmac_f32_32x32x32_bf16 %s, %s, %s, %s" % (v(O, 16), v(vb, 4), v(p, 8), v(IDX)))

    def ex(cur, a, b):
        for i in range(a, b):
            e("v_exp_f32 %s, %s" % (v(S[cur] + i), v(S[cur] + i)))

    def tile(t, extra=None):
        cur, nxt = t & 1, (t + 1) & 1
        ex(cur, 0, 2)
        smf(VB[nxt] + 4, S[nxt] + 8)
        rdv(t + 1)
        ex(cur, 2, 6)
        e("s_waitcnt lgkmcnt(2)")
        mfma(S[nxt], KB[nxt], Q, "0")
        rdk(t + 2)
        if extra:
            extra()
        ex(cur, 6, 12)
        smf(VB[cur], S[cur])
        ex(cur, 12, 16)
    e("ds_read_b128 %s, v16" % v(Q, 4))
    rdk(0)
    rdv(0)
    rdk(1)
    e("s_waitcnt lgkmcnt(3)")
    mfma(S[0], KB[0], Q, "0")
    e("s_mov_b32 %s, 0" % sIT)
    e("s_mov_b32 %s, %d" % (sCNT, POLL_LIMIT))
    e("s_nop 7")
    cm("keys of this die first; the other dies' K/V are requested as soon as their flags arrive")
    loc, go, retry, issue, chk3 = (newlab(x) for x in ("loc", "go", "retry", "issue", "chk3"))
    lab(loc)
    e("s_cmp_eq_u32 %s, 0" % sIT)
    e("s_cbranch_scc1 %s" % go)
    e("s_cmp_lg_u32 %s, 0" % ISS)
    e("s_cbranch_scc1 %s" % chk3)
    lab(retry)
    e("s_waitcnt vmcnt(0)")
    e("v_cmp_eq_u64 vcc, %s, %s" % (v(vPD, 2), v(vFV, 2)))
    e("s_nop 1")
    e("s_cmp_eq_u64 vcc, -1")
    e("s_cbranch_scc1 %s" % issue)
    gflag_load()
    e("s_cmp_lt_u32 %s, 3" % sIT)
    e("s_cbranch_scc1 %s" % go)
    e("s_sub_u32 %s, %s, 1" % (sCNT, sCNT))
    e("s_cbranch_scc0 %s" % retry)
    e("s_endpgm")
    lab(issue)
    kv_issue()
    kv_issue()
    e("s_mov_b32 %s, 1" % ISS)
    lab(chk3)
    e("s_cmp_lt_u32 %s, 3" % sIT)
    e("s_cbranch_scc1 %s" % go)
    e("s_waitcnt vmcnt(4)")
    e("s_barrier")
    lab(go)
    tile(0)
    tile(1)
    e("v_add_u32 %s, 4096, %s" % (v(AD), v(AD)))
    e("s_add_u32 %s, %s, 1" % (sIT, sIT))
    e("s_cmp_lt_u32 %s, 4" % sIT)
    e("s_cbranch_scc1 %s" % loc)
    fine("a")
    cm("first layer pair, waves 1-3: first touch of Wo / W1 / W2 (one line per lane, spread over all workgroups)")
    e("s_mov_b32 s66, %d" % (1376 * 1024))
    e("s_mov_b32 %s, %d" % (T[1], 43 * 128))
    e("s_cmp_eq_u32 %s, 2" % sW)
    e("s_cselect_b64 s[64:65], s[20:21], s[24:25]")
    e("s_cmp_eq_u32 %s, 1" % sW)
    e("s_cselect_b64 s[64:65], s[16:17], s[64:65]")
    e("s_cselect_b32 s66, %d, s66" % (512 * 1024))
    e("s_cselect_b32 %s, %d, %s" % (T[1], 16 * 128, T[1]))
    e("s_and_b32 s65, s65, 0xffff")
    e("s_mov_b32 s67, 0x20000")
    e("s_mul_i32 %s, %s, s2" % (T[1], T[1]))
    e("v_lshlrev_b32 %s, 7, v0" % v(PF))
    e("s_cmp_eq_u32 %s, 0" % sL)
    e("s_cselect_b32 %s, 1, 99" % T[8])
    e("s_cmp_eq_u32 %s, 0" % sW)
    e("s_cselect_b32 %s, 99, %s" % (T[8], T[8]))
    cm("lines of the W1 rows that are loaded after attention (128-351, 480-511): half per workgroup of a pair")
    srd(sTMP, 20, 512 * 2752)
    e("s_lshr_b32 %s, %s, 4" % (T[0], sJ))
    addr(T[7], None, 128, [(T[0], 128), (sHW, 32)])
    e("s_cmp_eq_u32 %s, 352" % T[7])
    e("s_cselect_b32 %s, 480, %s" % (T[7], T[7]))
    e("s_mul_i32 %s, %s, 2752" % (T[7], T[7]))
    e("s_mul_i32 %s, %s, 192" % (T[0], sC))
    e("s_add_u32 %s, %s, %s" % (T[7], T[7], T[0]))
    e("v_lshrrev_b32 %s, 1, v0" % v(PF + 1))
    e("v_mul_u32_u24 %s, 2752, %s" % (v(PF + 1), v(PF + 1)))
    e("v_and_b32 %s, 1, v0" % v(PF + 2))
    e("v_lshl_add_u32 %s, %s, 7, %s" % (v(PF + 1), v(PF + 2), v(PF + 1)))
    e("s_mov_b32 %s, 1" % sIT)
    loop = newlab("att")
    L.append(".p2align 6")
    lab(loop)
    for t in range(8):
        if t % 2 == 0:
            e("s_setprio %d" % (3 - t // 2))
        if t == 6:
            e("s_waitcnt vmcnt(4)")
            e("s_barrier")
        tile(t, kv_issue_helpers if t == 1 else None)
    e("v_add_u32 %s, 16384, %s" % (v(AD), v(AD)))
    e("s_add_u32 %s, %s, 1" % (sIT, sIT))
    e("s_cmp_lt_u32 %s, 6" % sIT)
    e("s_cbranch_scc1 %s" % loop)
    fine("a")
    cm("last two chunks: stream Wo and part of W1 into the dead K/V space, one piece per tile")
    srd(sTMP, 16, 512 * 1024)
    addr(T[0], None, 0, [(sW, 65536), (sNB, 128)])
    e("s_lshl_b32 %s, %s, 13" % (T[1], sW))

    srd("s[64:67]", 24, 1376 * 1024)
    e("s_lshr_b32 %s, %s, 3" % (T[4], sJ))
    addr(T[2], None, 0, [(T[4], 344 * 1024), (sW, 43 * 1024), (sNB, 128)])
    e("v_lshlrev_b32 %s, 10, v0" % v(PF))

    def w2_lines(trip):
        cm("one line per lane: pull this workgroup's share of W2 into the die's L2")
        e("s_mov_b64 exec, 0x3fffff")
        e("buffer_load_dword %s, %s, s[64:67], %s offen" % (v(PF + 2), v(PF), T[2]))
        e("s_mov_b64 exec, -1")
        e("s_add_u32 %s, %s, %d" % (T[2], T[2], 22 * 1024))

    def wo_piece(t):
        e("s_add_u32 m0, %s, %d" % (T[1], 1024 * t))
        e("s_nop 0")
        dma1(VO, T[0])
        e("s_add_u32 %s, %s, 8192" % (T[0], T[0]))
        if t == 3:
            w2_lines(0)

    def w1_piece(t):
        if t == 1:
            w2_lines(1)
        if t >= 6:
            return
        e("s_add_u32 m0, %s, %d" % (T[1], (t // 3) * 22 * 3072 + (t % 3) * 1024))
        e("s_nop 0")
        dma1(VO + 1 + t % 3, T[0])
        if t == 2:
            e("s_add_u32 %s, %s, %d" % (T[0], T[0], 22 * 16 * 2752))
    for trip in range(2):
        for t in range(8):
            if t % 2 == 0:
                e("s_setprio %d" % (3 - t // 2))
            if t == 6 and trip == 0:
                e("s_waitcnt vmcnt(6)")
                e("s_barrier")
            tile(t + 8 * trip, (lambda t=t: wo_piece(t)) if trip == 0 else (lambda t=t: w1_piece(t)))
        if trip == 0:
            srd(sTMP, 20, 512 * 2752)
            addr(T[0], None, 0, [(sW, 16 * 2752), (sC, 192)])
            addr(T[1], None, 65536, [(sW, 3072)])
    smf(VB[1] + 4, S[1] + 8)
    e("s_setprio 0")
    e("s_waitcnt lgkmcnt(0)")
    e("s_nop 10")
    stamp()
    cm("Softmax guard. The loops above used 0 as a stand-in for the row max. That is exact while the row sum")
    cm("stays in [2^-64, 2^64] and the accumulators are finite; otherwise redo this tile with the true max.")
    fin, slow = newlab("att_fin"), newlab("att_slow")
    e("v_mul_f32 v16, 0, %s" % v(O))
    for i in range(1, 8):
        e("v_fma_f32 v16, %s, 0, v16" % v(O + i))
    e("v_cmp_le_f32 vcc, %s, %s" % (f32(2.0 ** (64 if FORCE_SLOW else -64)), v(O + 8)))
    e("s_mov_b64 %s, vcc" % sM0)
    e("v_cmp_ge_f32 vcc, %s, %s" % (f32(2.0 ** 64), v(O + 8)))
    e("s_and_b64 %s, %s, vcc" % (sM0, sM0))
    e("v_cmp_eq_f32 vcc, 0, v16")
    e("s_and_b64 %s, %s, vcc" % (sM0, sM0))
    e("s_cmp_eq_u64 %s, -1" % sM0)
    e("s_cbranch_scc0 %s" % slow)
    lab(fin)
    e("v_rcp_f32 v16, %s" % v(O + 8))
    addr(T[0], sLB, OF, [(sW, XSTR), (sHEAD, 1024)])
    for p in range(4):
        e("v_pk_mul_f32 %s, %s, v[16:17] op_sel_hi:[1,0]" % (v(O + 2 * p, 2), v(O + 2 * p, 2)))
    for p in range(4):
        e("v_cvt_pk_bf16_f32 %s, %s, %s" % (v(20 + p), v(O + 2 * p), v(O + 2 * p + 1)))
    lstores(["buffer_store_dwordx4 v[20:23], %s, %s, %s offen" % (v(vL16), sWS, T[0])])
    slot(T[2], FA, [(sW, 32), (sHEAD, 1)])
    flag(T[2], 0, local=True)
    e("s_barrier")
    keep = L[:]
    del L[:]
    lab(slow)
    l1, l2 = newlab("slow1"), newlab("slow2")
    addr(T[2], None, KVF, [(sL, KVF_L), (sHEAD, 131072)])
    e("v_mov_b32 %s, 0xff800000" % v(CN))
    e("s_mov_b32 %s, 0" % sIT)
    lab(l1)
    e("buffer_load_dwordx4 %s, %s, %s, %s offen sc1" % (v(KB[0], 4), v(vL16), sWS, T[2]))
    e("s_waitcnt vmcnt(0)")
    mfma(S[0], KB[0], Q, "0")
    e("s_nop 15")
    for i in range(8):
        e("v_max3_f32 %s, %s, %s, %s" % (v(CN), v(S[0] + 2 * i), v(S[0] + 2 * i + 1), v(CN)))
    e("s_add_u32 %s, %s, 2048" % (T[2], T[2]))
    e("s_add_u32 %s, %s, 1" % (sIT, sIT))
    e("s_cmp_lt_u32 %s, 64" % sIT)
    e("s_cbranch_scc1 %s" % l1)
    e("v_mov_b32 %s, %s" % (v(CN + 1), v(CN)))
    e("s_nop 1")
    e("v_permlane32_swap_b32 %s, %s" % (v(CN), v(CN + 1)))
    e("s_nop 1")
    e("v_max_f32 %s, %s, %s" % (v(CN), v(CN), v(CN + 1)))
    e("v_sub_f32 %s, 0, %s" % (v(CN), v(CN)))
    for i in range(1, 16):
        e("v_mov_b32 %s, %s" % (v(CN + i), v(CN)))
    for i in range(16):
        e("v_mov_b32 %s, 0" % v(O + i))
    addr(T[2], None, KVF, [(sL, KVF_L), (sHEAD, 131072)])
    e("s_mov_b32 %s, 0" % sIT)
    lab(l2)
    e("buffer_load_dwordx4 %s, %s, %s, %s offen sc1" % (v(KB[0], 4), v(vL16), sWS, T[2]))
    e("s_mov_b64 exec, %s" % sMV)
    e("buffer_load_dwordx4 %s, %s, %s, %s offen offset:1024 sc1" % (v(VB[0], 4), v(vL16), sWS, T[2]))
    e("buffer_load_dwordx4 %s, %s, %s, %s offen offset:1280 sc1" % (v(VB[0] + 4, 4), v(vL16), sWS, T[2]))
    e("s_mov_b64 exec, -1")
    e("s_waitcnt vmcnt(0)")
    mfma(S[0], KB[0], Q, CN)
    e("s_nop 15")
    for i in range(16):
        e("v_exp_f32 %s, %s" % (v(S[0] + i), v(S[0] + i)))
    e("s_nop 1")
    smf(VB[0], S[0])
    smf(VB[0] + 4, S[0] + 8)
    e("s_nop 15")
    e("s_add_u32 %s, %s, 2048" % (T[2], T[2]))
    e("s_add_u32 %s, %s, 1" % (sIT, sIT))
    e("s_cmp_lt_u32 %s, 64" % sIT)
    e("s_cbranch_scc1 %s" % l2)
    e("s_branch %s" % fin)
    TAIL.extend(L)
    L[:] = keep
    stamp()


def n512(kind):
    wo = kind == "wo"
    ph = "o" if wo else "g"
    cm("================ %s" % ("output projection + residual" if wo else "MLP down projection + residual"))
    NS, J = (16, 16) if wo else (43, 39)
    AK, AS = vACC, vACC + 16
    hl, done = newlab("n_h"), newlab("n_done")
    e("s_cmp_ge_u32 %s, 4" % sW)
    e("s_cbranch_scc1 %s" % hl)
    if not wo:
        srd(sTMP, 26, 1024)
        e("v_lshrrev_b32 %s, 1, %s" % (v(vPO), v(vH16)))
        e("s_lshl_b32 %s, %s, 6" % (T[0], sNT))
        for i in range(4):
            e("buffer_load_dwordx2 %s, %s, %s, %s offen offset:%d" % (v(176 + 2 * i, 2), v(vPO), sTMP, T[0], 16 * i))
    unpack(AK, vRES, 8)
    tr_rows(vW0, 128)
    e("v_bfe_u32 %s, v0, 3, 1" % v(vPD))
    e("v_xor_b32 %s, %s, %s" % (v(vPD), sKH, v(vPD)))
    e("v_lshl_or_b32 %s, %s, 6, %s" % (v(vW0), v(vPD), v(vW0)))
    e("s_mul_i32 %s, %s, %d" % (T[0], sKH, J * 2048))
    e("v_add_u32 %s, %s, %s" % (v(vW0), T[0], v(vW0)))
    e("v_xor_b32 %s, 64, %s" % (v(vW1), v(vW0)))
    if not wo:
        e("v_add_u32 %s, 0x10000, %s" % (v(vW2), v(vW0)))
        e("v_add_u32 %s, 0x10000, %s" % (v(vW3), v(vW1)))
    if wo:
        e("v_and_b32 %s, 15, v0" % v(vPO))
        slot(T[0], FA, [(sTBN, 32), (sKH, 16)])
        addr(T[1], sLB, OF, [(sTBN, XSTR), (sKH, 16384)])
    else:
        e("v_and_b32 %s, 7, v0" % v(vPO))
        slot(T[0], FH, [(sTBN, 16), (sKH, 7)])
        addr(T[1], sLB, HF, [(sTBN, HSTR), (sKH, 43 * 1024)])
    e("v_lshlrev_b32 %s, 6, %s" % (v(vPO), v(vPO)))
    if not wo:
        e("s_waitcnt vmcnt(0)")
        unpack(AS, 176, 8)
        for p in range(8):
            e("v_pk_add_f32 %s, %s, %s" % (v(AK + 2 * p, 2), v(AK + 2 * p, 2), v(AS + 2 * p, 2)))
        e("s_barrier")

    def rd(j, i):
        jj = j % J
        base, off = ((vW0, vW1)[i], jj * 2048) if jj < 32 else ((vW2, vW3)[i], (jj - 32) * 2048)
        d = vWB + (j % 3) * 8 + 4 * i
        e("ds_read_b64_tr_b16 %s, %s offset:%d" % (v(d, 2), v(base), off))
        e("ds_read_b64_tr_b16 %s, %s offset:%d" % (v(d + 2, 2), v(base), off + 1024))
    for j in range(2):
        for i in range(2):
            rd(j, i)
    poll(T[0])
    stamp()
    areg = lambda j: vA + 4 * (j % 32)
    load_frags(T[1], 0, DEPTH, areg)
    fine(ph)
    for j in range(NS):
        issued = min(NS, DEPTH + j)
        if not wo and j == J - 2:
            e("s_barrier")
        e("s_waitcnt vmcnt(%d) lgkmcnt(%d)" % (issued - j - 1, 4 if j + 1 < NS else 0))
        if j in ((0, 4, 8, 15) if wo else (0, 11, 22, 42)):
            fine(ph)
        for i in range(2):
            acc = AK + 16 * i
            mfma(acc, vWB + (j % 3) * 8 + 4 * i, areg(j), "0" if (j == 0 and i == 1) else acc)
            if j + 2 < NS:
                rd(j + 2, i)
            if i == 0 and DEPTH + j < NS:
                load_frags(T[1], DEPTH + j, 1, areg, False)
        if j == (8 if wo else NS - J - 1):
            e("s_barrier")
    e("s_and_b32 %s, %s, 1" % (T[2], sW))
    if wo:
        addr(T[0], None, 0, [(T[2], 4096), (sKH, 32768)])
        e("s_xor_b32 %s, %s, 32768" % (T[1], T[0]))
    else:
        addr(T[0], None, 98304, [(T[2], 4096), (sKH, 8192)])
        e("s_xor_b32 %s, %s, 8192" % (T[1], T[0]))
    e("v_add_u32 v16, %s, %s" % (T[0], v(vL16)))
    e("v_add_u32 v17, %s, %s" % (T[1], v(vL16)))
    e("s_nop 3")
    for i in range(4):
        e("ds_write_b128 v16, %s offset:%d" % (v(AS + 4 * i, 4), 1024 * i))
    e("s_waitcnt lgkmcnt(0)")
    e("s_barrier")
    stamp()
    for i in range(4):
        e("ds_read_b128 %s, v17 offset:%d" % (v(AS + 4 * i, 4), 1024 * i))
    for i in range(4):
        e("s_waitcnt lgkmcnt(%d)" % (3 - i))
        for p in (2 * i, 2 * i + 1):
            e("v_pk_add_f32 %s, %s, %s" % (v(AK + 2 * p, 2), v(AK + 2 * p, 2), v(AS + 2 * p, 2)))
    for p in range(8):
        e("v_cvt_pk_bf16_f32 %s, %s, %s" % (v(vRES + p), v(AK + 2 * p), v(AK + 2 * p + 1)))
    if wo:
        tile_stats(AK, 20)
        publish_x(sLB, X1F, ST1, 0, FO, 20)
    else:
        last = newlab("last")
        e("s_cmp_lg_u32 %s, 0" % sL)
        e("s_cbranch_scc1 %s" % last)
        tile_stats(AK, 20)
        publish_x(sLB, XF, ST, LFL_L * 64, FX, 20)
        e("s_branch %s" % done)
        lab(last)
        srd(sTMP, 28, 2048 * 1024)
        e("v_and_b32 v16, 31, v0")
        e("v_lshlrev_b32 v16, 10, v16")
        e("v_add_u32 v16, v16, %s" % v(vH16))
        addr(T[0], None, 0, [(sXCD, 262144), (sTBN, 32768), (sNT, 64)])
        for g in range(2):
            e("v_permlane32_swap_b32 %s, %s" % (v(vRES + 4 * g), v(vRES + 4 * g + 2)))
            e("v_permlane32_swap_b32 %s, %s" % (v(vRES + 4 * g + 1), v(vRES + 4 * g + 3)))
        for g in range(2):
            e("buffer_store_dwordx4 %s, v16, %s, %s offen offset:%d" % (v(vRES + 4 * g, 4), sTMP, T[0], 32 * g))
    e("s_branch %s" % done)
    lab(hl)
    if wo:
        voff_192(44)
        w0 = newlab("wcs")
        e("s_cmp_lg_u32 %s, 0" % sL)
        e("s_cbranch_scc1 %s" % w0)
        colsum_begin(192, 3072, 64)
        e("s_mov_b32 %s, 65536" % T[0])
        colsum_quads(2, 3072, 1536)
        e("s_mov_b32 %s, %d" % (T[0], 65536 + 22 * 3072))
        colsum_quads(2, 3072, 1536)
        lab(w0)
        e("s_lshl_b32 %s, %s, 2" % (T[3], sHW))
        e("s_min_u32 %s, %s, 10" % (T[3], T[3]))
        addr(T[0], None, 8 * 16 * 2752, [(T[3], 16 * 2752), (sC, 192)])
        addr(T[1], None, 65536 + 8 * 3072, [(T[3], 3072)])
        e("s_barrier")
        dma_w1(2)
        e("s_barrier")
        dma_w1(2)
        e("s_lshr_b32 %s, %s, 1" % (T[3], sHW))
        e("s_and_b32 %s, %s, %s" % (T[3], T[3], sHW))
        addr(T[0], None, 30 * 16 * 2752, [(T[3], 16 * 2752), (sC, 192)])
        addr(T[1], None, 58 * 1024, [(T[3], 3072)])
        dma_w1(1)
    else:
        e("s_waitcnt vmcnt(0)")
        e("s_barrier")
        e("s_lshr_b32 %s, %s, 1" % (T[3], sHW))
        e("s_and_b32 %s, %s, 1" % (T[4], sHW))
        addr(T[0], None, 78 * 8192, [(T[3], 86 * 8192), (T[4], 4 * 8192), (sNB, 128)])
        addr(T[1], None, 0, [(T[3], 78 * 1024), (T[4], 4096)])
        e("s_barrier")
        for k in range(4):
            e("s_add_u32 m0, %s, %d" % (T[1], 1024 * k))
            e("s_nop 0")
            dma1(40, T[0])
            e("s_add_u32 %s, %s, 8192" % (T[0], T[0]))
        e("s_waitcnt vmcnt(0)")
        e("s_barrier")
        e("s_mul_i32 %s, %s, 24576" % (T[0], sHW))
        e("v_add_u32 v42, %s, %s" % (T[0], v(vL16)))
        e("s_barrier")
        e("s_cmp_lg_u32 %s, 0" % sL)
        e("s_cbranch_scc1 %s" % done)
        for k in range(24):
            e("ds_write_b128 v42, %s offset:%d" % (v(vSTASH + 4 * k, 4), 1024 * k))
    lab(done)
    stamp()


def ffn1():
    cm("================ MLP up projection + GELU")
    hl, done = newlab("f1_h"), newlab("f1_done")
    e("s_cmp_ge_u32 %s, 4" % sW)
    e("s_cbranch_scc1 %s" % hl)
    idle = newlab("f1_idle")
    e("s_cmp_eq_u32 %s, 15" % sC)
    e("s_cbranch_scc1 %s" % idle)
    TAIL.extend([idle + ":"] + ["    s_barrier"] * 3 + ["    s_branch " + done])

    def consts(t, part):
        for i in range(4):
            e("ds_read_b128 %s, %s offset:%d" % (v(16 + 32 * t + 16 * part + 4 * i, 4), v(vCA), 512 + 512 * part + t * 128 + 32 * i))
    wide_compute_front(FO, X1F, ST1, False, lambda m: consts(m // 2, m % 2))
    consts(1, 1)
    c0 = -2.0 * 1.4426950408889634 * 0.7978845608028654
    e("v_mov_b32 v112, %s" % f32(c0))
    e("v_mov_b32 v113, %s" % f32(c0 * 0.044715))
    e("v_mov_b32 v114, 1.0")
    addr(T[0], sLB, HF, [(sTBW, HSTR), (sC, 6144)])
    e("s_add_u32 %s, %s, 4096" % (T[1], T[0]))
    Z, P = 120, vWB
    for t in range(3):
        acc, cs, b1 = vACC + 16 * t, 16 + 32 * t, 32 + 32 * t
        e("s_waitcnt lgkmcnt(%d)" % (8 if t < 2 else 0))
        if t == 0:
            consts(2, 0)
            consts(2, 1)
        for p in range(8):
            center(acc, cs, p)
        for p in range(8):
            e("v_pk_fma_f32 %s, %s, %s, %s op_sel_hi:[1,0,1]" %
              (v(acc + 2 * p, 2), v(acc + 2 * p, 2), v(vR, 2), v(b1 + 2 * p, 2)))
        for p in range(8):
            e("v_pk_mul_f32 %s, %s, %s" % (v(Z + 2 * p, 2), v(acc + 2 * p, 2), v(acc + 2 * p, 2)))
        for p in range(8):
            e("v_pk_fma_f32 %s, %s, v[112:113], v[112:113] op_sel:[0,1,0] op_sel_hi:[1,1,0]" %
              (v(Z + 2 * p, 2), v(Z + 2 * p, 2)))
        for p in range(8):
            e("v_pk_mul_f32 %s, %s, %s" % (v(Z + 2 * p, 2), v(Z + 2 * p, 2), v(acc + 2 * p, 2)))
        for i in range(16):
            e("v_exp_f32 %s, %s" % (v(Z + i), v(Z + i)))
        for p in range(8):
            e("v_pk_add_f32 %s, %s, v[114:115] op_sel_hi:[1,0]" % (v(Z + 2 * p, 2), v(Z + 2 * p, 2)))
        for i in range(16):
            e("v_rcp_f32 %s, %s" % (v(Z + i), v(Z + i)))
        for p in range(8):
            e("v_pk_mul_f32 %s, %s, %s" % (v(acc + 2 * p, 2), v(acc + 2 * p, 2), v(Z + 2 * p, 2)))
        for p in range(8):
            e("v_cvt_pk_bf16_f32 %s, %s, %s" % (v(P + 8 * t + p), v(acc + 2 * p), v(acc + 2 * p + 1)))
        lstores(["buffer_store_dwordx4 %s, %s, %s, %s offen offset:%d" %
                 (v(P + 8 * t + 4 * hh, 4), v(vL16), sWS, T[(2 * t + hh) // 4], ((2 * t + hh) % 4) * 1024) for hh in range(2)])
        if t != 1:
            fine("f")
    slot(T[0], FH, [(sTBW, 16), (sC, 1)])
    flag(T[0], 0, local=True)
    e("s_branch %s" % done)
    lab(hl)
    h1 = newlab("fh1")
    voff_128(40)
    e("s_waitcnt vmcnt(3)")
    e("s_barrier")
    e("s_cmp_lg_u32 %s, 0" % sL)
    e("s_cbranch_scc1 %s" % h1)
    cm("first layer pair: column sums of W1 and the bias, kept in LDS")
    srd(sTMP, 22, 2752)
    e("v_and_b32 %s, 31, v0" % v(vPO))
    e("v_lshlrev_b32 %s, 1, %s" % (v(vPO), v(vPO)))
    addr(T[0], None, 0, [(sHW, 64), (sC, 192)])
    e("buffer_load_ushort v47, %s, %s, %s offen" % (v(vPO), sTMP, T[0]))
    e("s_mov_b32 %s, %d" % (T[0], 65536 + 8 * 3072))
    colsum_quads(3, 3072, 1536)
    e("s_mov_b32 %s, %d" % (T[0], 65536 + 20 * 3072))
    e("s_waitcnt vmcnt(0)")
    colsum_quads(1, 3072, 1536, (58 * 1024, 58 * 1024 + 3072))
    colsum_end(CS1_L)
    e("v_lshlrev_b32 v47, 16, v47")
    e("s_lshl_b32 %s, %s, 7" % (T[0], sHW))
    e("v_add_u32 v41, %s, v41" % T[0])
    e("ds_write_b32 v41, v47 offset:%d" % (B1_L - CS1_L))
    lab(h1)
    srd(sTMP, 24, 1376 * 1024)
    e("s_waitcnt vmcnt(0) lgkmcnt(0)")
    e("s_barrier")
    dma_w2(0, 0, 6, None)
    e("s_barrier")
    dma_w2(86, 78 * 1024, 10)
    dma_w2(22, 22 * 1024, 14)
    dma_w2(86 + 38, (78 + 38) * 1024, 10)
    lab(done)
    stamp()


def epilogue():
    e("s_add_u32 %s, %s, 1" % (sL, sL))
    e("s_add_u32 %s, %s, %d" % (sFB, sFB, LFL_L * 64))
    e("s_cmp_lt_u32 %s, 2" % sL)
    e("s_cbranch_scc1 L_layer")
    if PROFILE:
        e("s_memrealtime s[22:23]")
        e("s_waitcnt lgkmcnt(0)")
        stamp("s23")
        e("s_lshl_b32 %s, s2, 3" % T[0])
        e("s_add_u32 %s, %s, %s" % (T[0], T[0], sW))
        e("s_lshl_b32 %s, %s, 8" % (T[0], T[0]))
        e("s_add_u32 %s, %s, 0x%x" % (T[0], T[0], TSB))
        e("s_mov_b64 exec, 1")
        for i, r in enumerate([68, 18, 19] + list(range(STAMP0, STAMP0 + 30)) + [22, 23, 0, 1]):
            e("v_mov_b32 v16, s%d" % r)
            e("buffer_store_dword v16, off, %s, %s offset:%d" % (sWS, T[0], 4 * i))
        e("s_mov_b64 exec, 0xff")
        e("v_lshlrev_b32 v16, 2, v0")
        e("buffer_store_dword v5, v16, %s, %s offen offset:148" % (sWS, T[0]))
        e("s_mov_b64 exec, -1")
    if "--dbg" in sys.argv:
        sk = newlab("dbg")
        e("s_or_b32 %s, s2, %s" % (T[0], sW))
        e("s_cmp_lg_u32 %s, 0" % T[0])
        e("s_cbranch_scc1 %s" % sk)
        srd(sTMP, 30, 256)
        e("s_mov_b64 exec, 1")
        for i, r in enumerate([19, 72, 73, 74, 75, 76, 77, 80, 83, 86, 89, 90, 91, 95, 98, 101]):
            e("s_sub_u32 %s, s%d, s18" % (T[0], r))
            e("v_mov_b32 v16, %s" % T[0])
            e("buffer_store_dword v16, off, %s, 0 offset:%d" % (sTMP, 4 * i))
        e("s_mov_b64 exec, -1")
        lab(sk)
    cm("advance the hand-off tag for the next launch")
    e("s_or_b32 %s, s2, %s" % (T[0], sW))
    e("s_cmp_lg_u32 %s, 0" % T[0])
    e("s_cbranch_scc1 L_end")
    e("s_mov_b64 exec, 1")
    e("buffer_store_dword %s, off, %s, 0" % (v(vFV), sWS))
    lab("L_end")
    e("s_endpgm")
    L.extend(TAIL)


HEADER = open(f"cdna_kernels/{NAME}.s.ref").read().split("; Override launch")[0]


def main():
    prologue()
    p0()
    lab("L_layer")
    qkv()
    attention()
    n512("wo")
    ffn1()
    n512("f2")
    epilogue()
    k = NAME + "_kernel"
    out = HEADER
    out += "; @launch grid=(256,1,1) block=(512,1,1) lds=%d\n" % LDS_BYTES
    out += '.amdgcn_target "amdgcn-amd-amdhsa--gfx950"\n.text\n.globl %s\n.p2align 8\n.type %s,@function\n%s:\n' % (k, k, k)
    out += "\n".join(L) + "\n"
    out += """.section .rodata,"a"
.p2align 6
.amdhsa_kernel %s
  .amdhsa_next_free_vgpr 256
  .amdhsa_next_free_sgpr 102
  .amdhsa_accum_offset 256
  .amdhsa_group_segment_fixed_size 0
  .amdhsa_kernarg_size 88
  .amdhsa_user_sgpr_count 2
  .amdhsa_user_sgpr_kernarg_segment_ptr 1
  .amdhsa_system_sgpr_workgroup_id_x 1
.end_amdhsa_kernel
""" % k
    open(OUT, "w").write(out)


main()
```

```python
import struct
import sys

NAME = "interleave_layers__softmax_full_mha__mixer_channel_mlp__prompt"
PROFILE = "--prof" in sys.argv
CLK = "s_memrealtime" if "--rt" in sys.argv else "s_memtime"
FORCE_SLOW = "--slow" in sys.argv
FORCE_GLOBAL = "--global" in sys.argv
OUT = [a for a in sys.argv[1:] if not a.startswith("--")]
OUT = OUT[0] if OUT else f"cdna_kernels/{NAME}.s"


def OPT(name, default):
    a = [x.split("=")[1] for x in sys.argv if x.startswith("--%s=" % name)]
    return int(a[0]) if a else default


def f32(x):
    return "0x%08x" % struct.unpack("<I", struct.pack("<f", x))[0]


WS_SIZE = 0x10000000
FLG = 0x100000
FQG, FQG_L, FI = 0, 1024, 2048
KVF, KVF_L = 0x200000, 0x400000
ARENA, ARENA_X = 0x1000000, 0x200000
XSTR, HSTR = 33 * 1024, 97 * 1024
XF, OF, BLK, ST, LFL = 0, 0x48000, 0x90000, 0x158000, 0x160000
X1F, ST1, HF, QF, KVL = XF, ST, BLK, BLK, BLK + 32768
FX, FQ, FA, FO, FH, LFL_L = 0, 128, 256, 512, 640, 768
TSB = 0x4000000
DEPTH = OPT("depth", 10)
PACE = OPT("pace", 5)
QPACE = OPT("qpace", 3)
RED = 140 * 1024
CONST = 156 * 1024
CSQ_L, CS1_L, B1_L, STAT_L = CONST, CONST + 512, CONST + 1024, CONST + 1536
LDS_BYTES = 160 * 1024
sWS, sTMP = "s[4:7]", "s[8:11]"
sW, sNONCE, sL, sLB, sFB = "s34", "s35", "s36", "s37", "s38"
sXCD, sJ, sTBW, sC, sTBN, sNB, sKH, sNT, sHEAD, sQB = ("s%d" % i for i in range(39, 49))
sHW = "s49"
T = ["s%d" % i for i in range(50, 60)]
sCNT, sIT = "s60", "s61"
sMV = "s[62:63]"
sM0, sM1 = "s[64:65]", "s[66:67]"
sMODE = "s3"
STAMP0 = 72
vLANE, vL16, vFV, vPO, vT5, vPD = 0, 1, 2, 4, 5, 6
vRES = 8
vA, vACC, vWB, vSTS = 16, 144, 192, 228
vW0, vW1, vMU, vW2, vR, vW3, vRQ, vCA, vTR, vK16, vVOF, vH16 = 244, 245, 246, 247, 248, 249, 250, 251, 252, 253, 254, 255
vSTASH = 128
QL = 128 * 1024
POLL_LIMIT = 1 << 16

L = []
TAIL = []
uid = [0]
nstamp = [0]


def e(s):
    L.append("    " + s)


def lab(n):
    L.append(n + ":")


def cm(s):
    L.append("    ; " + s)


def v(i, n=1):
    return "v%d" % i if n == 1 else "v[%d:%d]" % (i, i + n - 1)


def newlab(p):
    uid[0] += 1
    return "L_%s_%d" % (p, uid[0])


def stamp(fixed=None):
    if not PROFILE:
        return
    e(CLK + " s[70:71]")
    e("s_waitcnt lgkmcnt(0)")
    if fixed:
        e("s_mov_b32 %s, s70" % fixed)
        return
    e("s_mul_i32 s69, %s, 15" % sL)
    e("s_add_u32 m0, s69, %d" % nstamp[0])
    e("s_nop 1")
    e("s_movreld_b32 s%d, s70" % STAMP0)
    nstamp[0] += 1
    assert nstamp[0] <= 15


FINE = [a.split("=")[1] for a in sys.argv if a.startswith("--fine=")]
FINE = FINE[0] if FINE else None
nfine = [0]
FINEKS = eval([a.split('=')[1] for a in sys.argv if a.startswith('--ks=')][0]) if any(a.startswith('--ks=') for a in sys.argv) else (0, 8, 16, 31)


def fine(phase):
    if not PROFILE or FINE != phase:
        return
    e(CLK + " s[70:71]")
    e("s_waitcnt lgkmcnt(0)")
    sk = newlab("fs")
    e("s_cmp_lg_u32 %s, %d" % (sL, 0 if "--l0" in sys.argv else 1))
    e("s_cbranch_scc1 %s" % sk)
    e("v_writelane_b32 v5, s70, %d" % nfine[0])
    lab(sk)
    nfine[0] += 1


def srd(dst, lo, size):
    b = int(dst[2:dst.index(":")])
    e("s_mov_b32 s%d, s%d" % (b, lo))
    e("s_and_b32 s%d, s%d, 0xffff" % (b + 1, lo + 1))
    e("s_mov_b32 s%d, %s" % (b + 2, size if isinstance(size, str) else hex(size)))
    e("s_mov_b32 s%d, 0x20000" % (b + 3))


def poll(soff):
    a, b = newlab("poll"), newlab("pok")
    e("s_mov_b32 %s, %d" % (sCNT, POLL_LIMIT))
    lab(a)
    e("buffer_load_dwordx2 %s, %s, %s, %s offen sc1" % (v(vPD, 2), v(vPO), sWS, soff))
    e("s_waitcnt vmcnt(0)")
    e("v_cmp_eq_u64 vcc, %s, %s" % (v(vPD, 2), v(vFV, 2)))
    e("s_nop 1")
    e("s_cmp_eq_u64 vcc, -1")
    e("s_cbranch_scc1 %s" % b)
    e("s_sub_u32 %s, %s, 1" % (sCNT, sCNT))
    e("s_cbranch_scc0 %s" % a)
    e("s_endpgm")
    lab(b)


def lstores(lines):
    g, d = newlab("wt"), newlab("wtd")
    e("s_cmp_eq_u32 %s, 0" % sMODE)
    e("s_cbranch_scc1 %s" % g)
    for x in lines:
        e(x + (" nt" if "--nt" in sys.argv and x.startswith("buffer_store_dwordx4") else ""))
    lab(d)
    TAIL.append(g + ":")
    for x in lines:
        TAIL.append("    " + x + (" sc1" if x.startswith("buffer_store") else ""))
    TAIL.append("    s_branch " + d)


def flag(soff, n=0, local=False):
    if n is not None and not (OPT("nodrain", 0) and local == 2):
        e("s_waitcnt vmcnt(%d)" % n)
    if local:
        e("s_mov_b64 exec, 1")
        lstores(["buffer_store_dwordx2 %s, off, %s, %s" % (v(vFV, 2), sWS, soff)])
    else:
        e("v_lshlrev_b32 %s, 3, v0" % v(vPD))
        e("s_mov_b64 exec, 0xffff")
        e("buffer_store_dwordx2 %s, %s, %s, %s offen sc1" % (v(vFV, 2), v(vPD), sWS, soff))
    e("s_mov_b64 exec, -1")


def mode_poll(first=False):
    a, b, glob, out = newlab("mp"), newlab("mpok"), newlab("mpg"), newlab("mpo")
    e("v_and_b32 %s, 31, v0" % v(vPD))
    e("v_lshlrev_b32 %s, 10, %s" % (v(vPD), v(vPD)))
    addr(T[3], None, FLG + FI * 128, [(sXCD, 128)])
    e("v_add_u32 %s, %s, %s" % (v(vPD), T[3], v(vPD)))
    if first:
        e("v_add_u32 %s, %s, %s" % (v(vPD + 1), T[0], v(vPO)))
        e("v_cmp_gt_u32 vcc, 32, v0")
        e("s_mov_b32 %s, %s" % (T[5], T[0]))
        e("v_cndmask_b32 v60, %s, %s, vcc" % (v(vPD), v(vPD + 1)))
    else:
        e("v_mov_b32 v60, %s" % v(vPD))
    e("s_getreg_b32 %s, hwreg(HW_REG_XCC_ID, 0, 4)" % T[3])
    e("s_mov_b32 %s, %d" % (sCNT, POLL_LIMIT))
    e("s_mov_b32 %s, 1" % sMODE)
    lab(a)
    e("buffer_load_dwordx2 %s, v60, %s, 0 offen sc1" % (v(vPD, 2), sWS))
    e("s_waitcnt vmcnt(0)")
    e("v_xor_b32 %s, %s, %s" % (v(vPD + 1), v(vPD + 1), v(vFV + 1)))
    e("v_cmp_eq_u32 %s, %s, %s" % (sM0, v(vPD), v(vFV)))
    e("v_cmp_eq_u32 %s, %s, %s" % (sM1, T[3], v(vPD + 1)))
    e("v_cmp_gt_u32 vcc, 16, %s" % v(vPD + 1))
    e("s_nop 1")
    e("s_and_b64 %s, %s, %s" % (sM1, sM1, sM0))
    e("s_and_b64 vcc, vcc, %s" % sM0)
    if not FORCE_GLOBAL:
        e("s_cmp_eq_u64 %s, -1" % sM1)
        e("s_cbranch_scc1 %s" % out)
    e("s_cmp_eq_u32 vcc_hi, -1")
    e("s_cbranch_scc0 %s" % b)
    if not FORCE_GLOBAL:
        e("s_cmp_eq_u32 s67, -1")
        e("s_cbranch_scc0 %s" % glob)
    else:
        e("s_branch %s" % glob)
    lab(b)
    e("s_sub_u32 %s, %s, 1" % (sCNT, sCNT))
    e("s_cbranch_scc0 %s" % a)
    e("s_endpgm")
    lab(glob)
    e("s_mov_b32 %s, 0" % sMODE)
    if first:
        e("s_mov_b32 %s, %s" % (T[6], T[1]))
        e("s_mov_b32 %s, %s" % (T[7], T[2]))
        e("v_xor_b32 %s, 31, %s" % (v(vFV + 1), v(vFV + 1)))
        publish_x(sLB, XF, ST, 0, FX, 84)
        poll(T[5])
        e("v_xor_b32 %s, 31, %s" % (v(vFV + 1), v(vFV + 1)))
        e("s_mov_b32 %s, %s" % (T[1], T[6]))
        e("s_mov_b32 %s, %s" % (T[2], T[7]))
    lab(out)


def slot(dst, base, terms):
    e("s_add_u32 %s, %s, %d" % (dst, sFB, base * 8))
    for r, m in terms:
        e("s_mul_i32 %s, %s, %d" % (T[9], r, m * 8))
        e("s_add_u32 %s, %s, %s" % (dst, dst, T[9]))


def addr(dst, base_reg, const, terms):
    if base_reg is None:
        e("s_mov_b32 %s, 0x%x" % (dst, const))
    else:
        e("s_add_u32 %s, %s, 0x%x" % (dst, base_reg, const))
    for r, m in terms:
        e("s_mul_i32 %s, %s, %d" % (T[9], r, m))
        e("s_add_u32 %s, %s, %s" % (dst, dst, T[9]))


def load_frags(sg, first, n, reg_of, rebase=True):
    for j in range(first, first + n):
        if j % 4 == 0 or (j == first and rebase):
            e("s_add_u32 %s, %s, %d" % (T[8], sg, (j // 4) * 4096))
        e("buffer_load_dwordx4 %s, %s, %s, %s offen offset:%d sc1" %
          (v(reg_of(j), 4), v(vL16), sWS, T[8], (j % 4) * 1024))


def mfma(d, a, b, c):
    e("v_mfma_f32_32x32x16_bf16 %s, %s, %s, %s" % (v(d, 16), v(a, 4), v(b, 4), c if isinstance(c, str) else v(c, 16)))


def half_sum(a, b):
    e("s_nop 1")
    e("v_permlane32_swap_b32 %s, %s" % (v(a), v(b)))
    e("s_nop 1")
    e("v_add_f32 %s, %s, %s" % (v(a), v(a), v(b)))


def tile_stats(y, t):
    e("v_pk_add_f32 %s, %s, %s" % (v(t, 2), v(y, 2), v(y + 2, 2)))
    e("v_pk_mul_f32 %s, %s, %s" % (v(t + 2, 2), v(y, 2), v(y, 2)))
    for p in range(1, 8):
        if p > 1:
            e("v_pk_add_f32 %s, %s, %s" % (v(t, 2), v(t, 2), v(y + 2 * p, 2)))
        e("v_pk_fma_f32 %s, %s, %s, %s" % (v(t + 2, 2), v(y + 2 * p, 2), v(y + 2 * p, 2), v(t + 2, 2)))
    e("v_add_f32 %s, %s, %s" % (v(t), v(t), v(t + 1)))
    e("v_add_f32 %s, %s, %s" % (v(t + 2), v(t + 2), v(t + 3)))
    half_sum(t, t + 2)


def unpack(dst, src, n):
    for i in range(n):
        e("v_lshlrev_b32 %s, 16, %s" % (v(dst + 2 * i), v(src + i)))
        e("v_and_b32 %s, 0xffff0000, %s" % (v(dst + 2 * i + 1), v(src + i)))


def publish_x(lb, xoff, stoff, fbase_add, fbase, ystat, between=None):
    addr(T[0], lb, xoff, [(sTBN, XSTR), (sNT, 2048)])
    e("s_lshr_b32 %s, %s, 2" % (T[2], sNT))
    e("s_and_b32 %s, %s, 3" % (T[8], sNT))
    addr(T[1], lb, stoff, [(sTBN, 4096), (T[2], 1024), (T[8], 4)])
    lstores(["buffer_store_dwordx4 %s, %s, %s, %s offen" % (v(vRES, 4), v(vL16), sWS, T[0]),
             "buffer_store_dwordx4 %s, %s, %s, %s offen offset:1024" % (v(vRES + 4, 4), v(vL16), sWS, T[0]),
             "buffer_store_dword %s, %s, %s, %s offen" % (v(ystat), v(vL16), sWS, T[1])])
    slot(T[2], fbase, [(sTBN, 16), (sNT, 1)])
    if fbase_add:
        e("s_add_u32 %s, %s, %d" % (T[2], T[2], fbase_add))
    if between:
        between()
    flag(T[2], local=2)


def prologue():
    e("s_cmp_ge_u32 s2, 256")
    e("s_cbranch_scc1 L_end")
    e("s_load_dwordx16 s[12:27], s[0:1], 0")
    e("s_load_dwordx4 s[28:31], s[0:1], 64")
    e("s_load_dwordx2 s[32:33], s[0:1], 80")
    e("v_lshrrev_b32 v1, 6, v0")
    e("v_and_b32 v0, 63, v0")
    e("v_readfirstlane_b32 %s, v1" % sW)
    e("v_lshlrev_b32 %s, 4, v0" % v(vL16))
    cm("column part of a transposing-read address: (lane&3)*8 + ((lane>>4)&1)*32")
    e("v_and_b32 %s, 3, v0" % v(vTR))
    e("v_lshlrev_b32 %s, 3, %s" % (v(vTR), v(vTR)))
    e("v_bfe_u32 %s, v0, 4, 1" % v(vT5))
    e("v_lshl_or_b32 %s, %s, 5, %s" % (v(vTR), v(vT5), v(vTR)))
    e("v_lshrrev_b32 %s, 5, v0" % v(vT5))
    e("v_lshlrev_b32 %s, 4, %s" % (v(vH16), v(vT5)))
    cm("K fragments are stored with token bits 2 and 3 swapped (matches the sparse-MFMA key order)")
    e("v_and_b32 %s, 0x33, v0" % v(vK16))
    e("v_and_b32 %s, 4, v0" % v(vPO))
    e("v_lshl_or_b32 %s, %s, 1, %s" % (v(vK16), v(vPO), v(vK16)))
    e("v_and_b32 %s, 8, v0" % v(vPO))
    e("v_lshrrev_b32 %s, 1, %s" % (v(vPO), v(vPO)))
    e("v_or_b32 %s, %s, %s" % (v(vK16), v(vK16), v(vPO)))
    e("v_lshlrev_b32 %s, 4, %s" % (v(vK16), v(vK16)))
    cm("V store offset: head parity*128K + half*512 + d*16")
    e("v_and_b32 %s, 15, v0" % v(vVOF))
    e("v_lshlrev_b32 %s, 4, %s" % (v(vVOF), v(vVOF)))
    e("v_lshl_or_b32 %s, %s, 9, %s" % (v(vVOF), v(vT5), v(vVOF)))
    e("v_bfe_u32 %s, v0, 4, 1" % v(vPO))
    e("v_lshl_or_b32 %s, %s, 17, %s" % (v(vVOF), v(vPO), v(vVOF)))
    e("s_and_b32 %s, s2, 7" % sXCD)
    e("s_lshr_b32 %s, s2, 3" % sJ)
    e("s_and_b32 %s, %s, 3" % (sHW, sW))
    e("s_and_b32 %s, %s, 15" % (sC, sJ))
    e("s_lshr_b32 %s, %s, 4" % (T[0], sJ))
    e("s_lshl_b32 %s, %s, 2" % (T[0], T[0]))
    e("s_add_u32 %s, %s, %s" % (sTBW, T[0], sHW))
    e("s_and_b32 %s, %s, 7" % (sNB, sJ))
    e("s_lshr_b32 %s, %s, 3" % (T[0], sJ))
    e("s_mov_b32 %s, %s" % (sHEAD, sJ))
    e("s_lshl_b32 %s, %s, 1" % (sTBN, T[0]))
    e("s_and_b32 %s, %s, 1" % (T[0], sW))
    e("s_add_u32 %s, %s, %s" % (sTBN, sTBN, T[0]))
    e("s_lshr_b32 %s, %s, 1" % (sKH, sHW))
    e("s_lshl_b32 %s, %s, 1" % (sNT, sNB))
    e("s_add_u32 %s, %s, %s" % (sNT, sNT, sKH))
    e("s_mov_b32 s62, 0xffff")
    e("s_mov_b32 s63, 0xffff")
    e("s_mov_b32 %s, 0" % sL)
    addr(sLB, None, ARENA, [(sXCD, ARENA_X)])
    e("s_add_u32 %s, %s, 0x%x" % (sFB, sLB, LFL))
    e("s_waitcnt lgkmcnt(0)")
    srd(sWS, 32, WS_SIZE)
    srd(sTMP, 12, 2048 * 1024)
    cm("hand-off tag: ws[0] only tells this launch's flags from an earlier launch's")
    e("s_load_dword %s, s[32:33], 0" % sNONCE)
    if PROFILE:
        e("s_memrealtime s[70:71]")
        e("s_waitcnt lgkmcnt(0)")
        e("s_mov_b32 s68, s70")
        stamp("s18")


def make_tag():
    e("s_waitcnt lgkmcnt(0)")
    e("s_add_u32 %s, %s, 16" % (sNONCE, sNONCE))
    e("v_mov_b32 %s, %s" % (v(vFV), sNONCE))
    e("v_not_b32 %s, %s" % (v(vFV + 1), v(vFV)))


def p0():
    cm("================ P0 (waves 0-3): x tile -> residual registers, fragments and row statistics")
    p0end, noid, nox, npt = newlab("p0end"), newlab("noid"), newlab("nox"), newlab("npt")
    e("s_cmp_ge_u32 %s, 4" % sW)
    e("s_cbranch_scc1 %s" % nox)
    e("v_and_b32 %s, 31, v0" % v(vPO))
    e("v_lshlrev_b32 %s, 10, %s" % (v(vPO), v(vPO)))
    e("v_add_u32 %s, %s, %s" % (v(vPO), v(vPO), v(vH16)))
    addr(T[0], None, 0, [(sXCD, 262144), (sTBN, 32768), (sNT, 64)])
    for g in range(2):
        e("buffer_load_dwordx4 %s, %s, %s, %s offen offset:%d" % (v(vRES + 4 * g, 4), v(vPO), sTMP, T[0], 32 * g))
    lab(nox)
    cm("one line per lane: the 32 workgroups of a group pull Wqkv into their L2")
    srd(sTMP, 14, 512 * 3072)
    e("v_lshlrev_b32 v17, 7, v0")
    addr(T[0], None, 0, [(sJ, 384 * 128), (sW, 48 * 128)])
    e("s_mov_b32 exec_hi, 0xffff")
    e("buffer_load_dword v16, v17, %s, %s offen" % (sTMP, T[0]))
    e("s_mov_b64 exec, -1")
    e("s_cmp_lg_u32 %s, 4" % sW)
    e("s_cbranch_scc1 %s" % npt)
    cm("statistics and flag lines receive partial writes: bring them into L2 first")
    addr(T[0], sLB, ST, [(sJ, 11 * 128)])
    e("s_mov_b64 exec, 0x7ff")
    e("buffer_load_dword v18, v17, %s, %s offen sc1" % (sWS, T[0]))
    e("s_mov_b64 exec, -1")
    lab(npt)
    if OPT("cpf", 0):
        ncp = newlab("ncp")
        e("s_cmp_lg_u32 %s, 6" % sW)
        e("s_cbranch_scc1 %s" % ncp)
        cm("pull this kernel's instruction lines into the die's L2 (8 lines per workgroup)")
        e("s_getpc_b64 s[64:65]")
        lab("L_pc")
        e("s_lshl_b32 %s, %s, 10" % (T[0], sJ))
        e("v_add_u32 v20, %s, v17" % T[0])
        e("v_min_u32 v20, L_code_end-L_pc-4, v20")
        e("v_mov_b32 v21, s65")
        e("v_add_co_u32 v20, vcc, s64, v20")
        e("s_nop 1")
        e("v_addc_co_u32 v21, vcc, 0, v21, vcc")
        e("s_mov_b64 exec, 0xff")
        e("global_load_dword v18, v[20:21], off")
        e("s_mov_b64 exec, -1")
        lab(ncp)
    if OPT("tlb", 0):
        ntl = newlab("ntl")
        e("s_cmp_lg_u32 %s, 5" % sW)
        e("s_cbranch_scc1 %s" % ntl)
        cm("touch this die's slice of every K/V head block early (address translation)")
        e("v_lshlrev_b32 v19, 17, v0")
        addr(T[0], None, KVF, [(sXCD, 16384)])
        e("buffer_load_dword v18, v19, %s, %s offen sc1" % (sWS, T[0]))
        lab(ntl)
    e("s_cmp_ge_u32 %s, 4" % sW)
    e("s_cbranch_scc1 %s" % p0end)
    stamp("s0")
    make_tag()
    e("s_getreg_b32 %s, hwreg(HW_REG_XCC_ID, 0, 4)" % T[7])
    e("s_mov_b32 %s, 1" % sMODE)
    e("v_xor_b32 %s, %s, %s" % (v(vFV + 1), T[7], v(vFV + 1)))
    nid = newlab("nid")
    e("s_cmp_lg_u32 %s, 0" % sW)
    e("s_cbranch_scc1 %s" % nid)
    e("s_lshl_b32 %s, s2, 7" % T[8])
    e("s_add_u32 %s, %s, 0x%x" % (T[8], T[8], FLG + FI * 128))
    flag(T[8], None)
    e("s_waitcnt vmcnt(2)")
    e("s_branch %s" % noid)
    lab(nid)
    e("s_waitcnt vmcnt(1)")
    lab(noid)
    stamp("s1")
    for g in range(2):
        e("v_permlane32_swap_b32 %s, %s" % (v(vRES + 4 * g), v(vRES + 4 * g + 2)))
        e("v_permlane32_swap_b32 %s, %s" % (v(vRES + 4 * g + 1), v(vRES + 4 * g + 3)))
    e("s_nop 0")
    unpack(66, vRES, 8)
    tile_stats(66, 84)
    publish_x(sLB, XF, ST, 0, FX, 84)
    e("s_nop 0")
    e("v_not_b32 %s, %s" % (v(vFV + 1), v(vFV)))
    lab(p0end)
    stamp("s19")


def tr_rows(dst, rowbytes):
    e("v_bfe_u32 %s, v0, 2, 2" % v(dst))
    e("v_lshrrev_b32 %s, 2, %s" % (v(vPD), v(vH16)))
    e("v_add_u32 %s, %s, %s" % (v(dst), v(dst), v(vPD)))
    e("v_mul_u32_u24 %s, %d, %s" % (v(dst), rowbytes, v(dst)))
    e("v_add_u32 %s, %s, %s" % (v(dst), v(dst), v(vTR)))


def voff_128(dst):
    e("v_lshrrev_b32 %s, 3, v0" % v(dst))
    e("v_lshlrev_b32 %s, 10, %s" % (v(dst), v(dst)))
    e("v_and_b32 %s, 7, v0" % v(vPD))
    e("v_lshrrev_b32 %s, 2, v0" % v(vPD + 1))
    e("v_and_b32 %s, 4, %s" % (v(vPD + 1), v(vPD + 1)))
    e("v_xor_b32 %s, %s, %s" % (v(vPD), v(vPD), v(vPD + 1)))
    e("v_lshl_or_b32 %s, %s, 4, %s" % (v(dst), v(vPD), v(dst)))


def voff_192(dst):
    for i in range(3):
        e("v_add_u32 %s, %d, v0" % (v(vPD), 64 * i))
        e("v_mul_u32_u24 %s, 5462, %s" % (v(vPD + 1), v(vPD)))
        e("v_lshrrev_b32 %s, 16, %s" % (v(vPD + 1), v(vPD + 1)))
        e("v_mul_u32_u24 %s, %d, %s" % (v(dst + i), 2752 - 192, v(vPD + 1)))
        e("v_lshl_add_u32 %s, %s, 4, %s" % (v(dst + i), v(vPD), v(dst + i)))


def dma1(vo, sg):
    e("buffer_load_dwordx4 %s, %s, %s offen lds" % (v(vo), sTMP, sg))


def dma_loop(n, body):
    lp = newlab("dl")
    e("s_mov_b32 %s, %d" % (T[2], n))
    lab(lp)
    body()
    e("s_sub_u32 %s, %s, 1" % (T[2], T[2]))
    e("s_cmp_lg_u32 %s, 0" % T[2])
    e("s_cbranch_scc1 %s" % lp)


def dma_w2(piece0, lds0, n, pace=PACE):
    addr(T[0], None, piece0 * 8192, [(sHW, n * 8192), (sNB, 128)])
    addr(T[1], None, lds0, [(sHW, n * 1024)])

    def body():
        e("s_mov_b32 m0, %s" % T[1])
        e("s_add_u32 %s, %s, 1024" % (T[1], T[1]))
        dma1(40, T[0])
        e("s_add_u32 %s, %s, 8192" % (T[0], T[0]))
        if pace:
            e("s_waitcnt vmcnt(%d)" % pace)
    dma_loop(n, body)


def dma_w1(n):
    def body():
        for i in range(3):
            e("s_add_u32 m0, %s, %d" % (T[1], 1024 * i))
            e("s_nop 0")
            dma1(44 + i, T[0])
        e("s_add_u32 %s, %s, %d" % (T[0], T[0], 16 * 2752))
        e("s_add_u32 %s, %s, 3072" % (T[1], T[1]))
    dma_loop(n, body)


def wq_begin():
    srd(sTMP, 14, 512 * 3072)
    e("v_lshrrev_b32 v40, 2, v0")
    e("v_mul_u32_u24 v40, 3072, v40")
    e("v_and_b32 v41, 3, v0")
    e("v_lshl_or_b32 v40, v41, 4, v40")
    addr(T[3], None, 0, [(sHW, 2 * 49152), (sC, 64)])
    e("s_lshl_b32 %s, %s, 11" % (T[4], sHW))


def wq_chunk(pace=None):
    for dk in range(2):
        for i in range(3):
            e("s_add_u32 m0, %s, %d" % (T[4], i * 31744 + dk * 1024))
            e("s_nop 0")
            e("buffer_load_dwordx4 v40, %s, %s offen offset:%d lds" % (sTMP, T[3], i * 1024))
            if pace is not None:
                e("s_waitcnt vmcnt(%d)" % pace)
        e("s_add_u32 %s, %s, %d" % (T[3], T[3], 49152 if dk == 0 else 7 * 49152))
    e("s_add_u32 %s, %s, 8192" % (T[4], T[4]))


CSA = 64


def colsum_begin(rowbytes, step, tilestep):
    tr_rows(43, rowbytes)
    for r in range(48):
        e("v_mov_b32 v%d, 0" % (CSA + r))
    for r in range(4):
        e("v_mov_b32 v%d, 0x3f803f80" % (52 + r))
    e("s_mul_i32 %s, %s, %d" % (T[6], sHW, tilestep))
    e("s_mov_b32 %s, %d" % (T[5], step))
    e("s_cmp_eq_u32 %s, 3" % sHW)
    e("s_cselect_b32 %s, %d, %s" % (T[5], tilestep, T[5]))
    e("s_cselect_b32 %s, %d, %s" % (T[6], 3 * step, T[6]))


def colsum_quads(n, step, second, last=None):
    lp = newlab("cs")
    e("s_add_u32 %s, %s, %s" % (T[0], T[0], T[6]))
    if last:
        e("s_cmp_eq_u32 %s, 3" % sHW)
        e("s_cselect_b32 %s, %d, %s" % (T[0], last[1], T[0]))
    e("v_add_u32 v42, %s, v43" % T[0])
    e("v_add_u32 v48, %s, v42" % T[5])
    e("v_add_u32 v56, %s, v48" % T[5])
    if last:
        sk = newlab("cs")
        e("s_cbranch_scc1 %s" % sk)
        e("s_add_u32 %s, %s, %d" % (T[0], T[6], last[0]))
        e("v_add_u32 v56, %s, v43" % T[0])
        lab(sk)
    e("s_mov_b32 %s, %d" % (T[0], n))
    lab(lp)
    for i, a in enumerate((42, 48, 56)):
        for h in range(2):
            e("ds_read_b64_tr_b16 %s, v%d offset:%d" % (v(16 + 4 * i + 2 * h, 2), a, h * second))
        e("v_add_u32 v%d, %d, v%d" % (a, 4 * step, a))
    for i in range(3):
        e("s_waitcnt lgkmcnt(%d)" % (4 - 2 * i))
        if not OPT("nocs", 0):
            mfma(CSA + 16 * i, 52, 16 + 4 * i, CSA + 16 * i)
    e("s_sub_u32 %s, %s, 1" % (T[0], T[0]))
    e("s_cmp_lg_u32 %s, 0" % T[0])
    e("s_cbranch_scc1 %s" % lp)


def colsum_end(dst_l):
    w3, dn = newlab("ce"), newlab("ce")
    e("v_and_b32 v41, 31, v0")
    e("v_lshlrev_b32 v41, 2, v41")
    e("v_add_u32 v41, %d, v41" % dst_l)
    e("s_nop 7")
    e("s_mov_b32 exec_hi, 0")
    e("s_cmp_eq_u32 %s, 3" % sHW)
    e("s_cbranch_scc1 %s" % w3)
    e("v_add_f32 v50, v%d, v%d" % (CSA, CSA + 16))
    e("s_lshl_b32 %s, %s, 7" % (T[0], sHW))
    e("v_add_f32 v50, v50, v%d" % (CSA + 32))
    e("v_add_u32 v42, %s, v41" % T[0])
    e("ds_add_f32 v42, v50")
    e("s_branch %s" % dn)
    lab(w3)
    for i in range(3):
        e("ds_add_f32 v41, v%d offset:%d" % (CSA + 16 * i, 128 * i))
    lab(dn)
    e("s_mov_b64 exec, -1")


def stats_code(second_ln):
    c = []
    for k in range(1, 16):
        c.append("v_add_f32 %s, %s, %s" % (v(vSTS), v(vSTS), v(vSTS + k)))
    c += ["v_mov_b32 %s, %s" % (v(vSTS + 1), v(vSTS)), "s_nop 1",
          "v_permlane32_swap_b32 %s, %s" % (v(vSTS), v(vSTS + 1)), "s_nop 1",
          "v_mul_f32 %s, %s, %s" % (v(vMU), f32(1.0 / 512), v(vSTS)),
          "v_mul_f32 %s, %s, %s" % (v(vSTS + 1), f32(1.0 / 512), v(vSTS + 1)),
          "v_fma_f32 %s, -%s, %s, %s" % (v(vSTS + 1), v(vMU), v(vMU), v(vSTS + 1)),
          "v_max_f32 %s, 0, %s" % (v(vSTS + 1), v(vSTS + 1)),
          "v_add_f32 %s, %s, %s" % (v(vSTS + 2), f32(1e-5), v(vSTS + 1)),
          "v_rsq_f32 %s, %s" % (v(vR), v(vSTS + 2)), "s_nop 0"]
    if second_ln:
        c += ["v_mul_f32 %s, %s, %s" % (v(vSTS + 2), v(vR), v(vR)),
              "v_mul_f32 %s, %s, %s" % (v(vSTS + 2), v(vSTS + 2), v(vSTS + 1)),
              "v_add_f32 %s, %s, %s" % (v(vSTS + 2), f32(1e-5), v(vSTS + 2)),
              "v_rsq_f32 %s, %s" % (v(vSTS + 2), v(vSTS + 2)), "s_nop 0",
              "v_mul_f32 %s, %s, %s" % (v(vR), v(vR), v(vSTS + 2))]
    return c


def wide_compute_front(fbase, xoff, stoff, qkv_phase, tail_code):
    ph = "q" if qkv_phase else "f"
    e("v_and_b32 %s, 15, v0" % v(vPO))
    e("v_lshlrev_b32 %s, 3, %s" % (v(vPO), v(vPO)))
    slot(T[0], fbase, [(sTBW, 16)])
    addr(T[1], sLB, xoff, [(sTBW, XSTR)])
    addr(T[2], sLB, stoff, [(sTBW, 4096)])
    e("v_add_u32 %s, %d, %s" % (v(vCA), CONST, v(vH16)))
    if qkv_phase:
        tr_rows(vW0, 64)
        e("v_add_u32 %s, 0x10000, %s" % (v(vW1), v(vW0)))
    else:
        tr_rows(vW2, 192)
        e("v_add_u32 %s, 0x10000, %s" % (v(vW0), v(vW2)))
        e("v_add_u32 %s, %d, %s" % (v(vW1), 21 * 3072, v(vW0)))

    def rd(ks, i):
        d = vWB + (ks % 3) * 12 + 4 * i
        if qkv_phase:
            base, off, sec = ((vW0, i * 32768 + ks * 1024) if i < 2 else (vW1, ks * 1024)) + (512,)
        else:
            base, off = (vW0, ks * 3072) if ks < 21 else (vW1, (ks - 21) * 3072) if ks < 30 else (vW2, 58 * 1024 + (ks - 30) * 3072)
            off, sec = off + 64 * i, 1536
        e("ds_read_b64_tr_b16 %s, %s offset:%d" % (v(d, 2), v(base), off))
        e("ds_read_b64_tr_b16 %s, %s offset:%d" % (v(d + 2, 2), v(base), off + sec))

    def first_reads():
        for ks in range(2):
            for i in range(3):
                rd(ks, i)
    if not qkv_phase:
        first_reads()
    if qkv_phase:
        l1, l2 = newlab("fx"), newlab("fx")
        e("s_cmp_lg_u32 %s, 0" % sL)
        e("s_cbranch_scc1 %s" % l1)
        mode_poll(True)
        e("s_branch %s" % l2)
        lab(l1)
        poll(T[0])
        lab(l2)
    else:
        poll(T[0])
    stamp()

    def item(n):
        if n < 32:
            load_frags(T[1], n, 1, lambda j: vA + 4 * j, n % 4 == 0)
        elif n < 36:
            e("buffer_load_dwordx4 %s, %s, %s, %s offen offset:%d sc1" % (v(vSTS + 4 * (n - 32), 4), v(vL16), sWS, T[2], 1024 * (n - 32)))
    sched = [[ks + DEPTH] if ks + DEPTH < 32 else [] for ks in range(32)]
    for k in range(4):
        sched[4 + 2 * k].append(32 + k)
    order = list(range(DEPTH))
    for n in range(DEPTH):
        item(n)
    if qkv_phase:
        e("s_barrier")
        first_reads()
    fine(ph)
    st = stats_code(not qkv_phase)
    per = -(-len(st) // 8)
    for ks in range(32):
        if ks in ((6, 14, 22, 30) if qkv_phase else (6, 22)):
            e("s_barrier")
        e("s_waitcnt vmcnt(%d) lgkmcnt(%d)" % (len(order) - 1 - order.index(ks), 6 if ks < 31 else 0))
        if ks in FINEKS:
            fine(ph)
        for i in range(3):
            w, a = vWB + (ks % 3) * 12 + 4 * i, vA + 4 * ks
            c = "0" if ks == 0 else vACC + 16 * i
            if qkv_phase and i == 2:
                mfma(vACC + 16 * i, a, w, c)
            else:
                mfma(vACC + 16 * i, w, a, c)
            if ks + 2 < 32:
                rd(ks + 2, i)
            if i < len(sched[ks]):
                item(sched[ks][i])
                order.append(sched[ks][i])
            if ks >= 29:
                g = (ks - 29) * 3 + i
                for x in st[g * per:(g + 1) * per]:
                    e(x)
            if ks == 31:
                tail_code(i)
    if qkv_phase:
        e("s_barrier")
    stamp()


def center(acc, cs, p):
    e("v_pk_fma_f32 %s, %s, %s, %s op_sel_hi:[0,1,1] neg_lo:[1,0,0] neg_hi:[1,0,0]" %
      (v(acc + 2 * p, 2), v(vMU, 2), v(cs + 2 * p, 2), v(acc + 2 * p, 2)))


PKV = 116


def stash_addr():
    e("s_lshl_b32 %s, %s, 12" % (T[0], sHW))
    e("v_add_u32 v42, %s, %s" % (T[0], v(vL16)))
    addr(T[0], None, 16384, [(sHW, 20480)])
    e("v_add_u32 v41, %s, %s" % (T[0], v(vL16)))


def qkv():
    cm("================ QKV projection")
    hl, done = newlab("qkv_h"), newlab("qkv_done")
    e("s_cmp_ge_u32 %s, 4" % sW)
    e("s_cbranch_scc1 %s" % hl)

    def tail(m):
        if m < 2:
            for i in range(4):
                e("ds_read_b128 %s, %s offset:%d" % (v(32 - 16 * m + 4 * i, 4), v(vCA), (1 - m) * 128 + 32 * i))
            return
        e("v_and_b32 v48, 31, v0")
        e("v_lshlrev_b32 v48, 2, v48")
        addr(T[0], None, STAT_L, [(sHW, 256)])
        e("v_add_u32 v49, %s, v48" % T[0])
        e("v_add_u32 v50, %s, %s" % (T[0], v(vH16)))
        e("v_add_u32 v48, %d, v48" % CSQ_L)
        e("ds_write_b32 v49, %s" % v(vMU))
        e("ds_write_b32 v49, %s offset:128" % v(vR))
        e("v_mul_f32 %s, %s, %s" % (v(vRQ), f32(0.25 * 1.4426950408889634), v(vR)))
    wide_compute_front(FX, XF, ST, True, tail)
    e("ds_read_b32 v52, v48 offset:256")
    for i in range(4):
        e("ds_read_b128 %s, v50 offset:%d" % (v(64 + 4 * i, 4), 32 * i))
    for i in range(4):
        e("ds_read_b128 %s, v50 offset:%d" % (v(80 + 4 * i, 4), 128 + 32 * i))
    addr(T[0], sLB, QF, [(sC, 2048), (sTBW, HSTR)])
    e("s_add_u32 %s, %s, 1024" % (T[1], T[0]))
    addr(T[2], sLB, KVL, [(sC, 4096), (sTBW, HSTR)])
    e("s_add_u32 %s, %s, 2048" % (T[3], T[2]))
    addr(T[4], None, KVF, [(sL, KVF_L), (sC, 2 * 131072), (sXCD, 16384), (sTBW, 2048)])
    e("s_add_u32 %s, %s, 0x20000" % (T[5], T[4]))
    e("v_and_b32 v51, 0x1ffff, %s" % v(vVOF))
    e("v_lshrrev_b32 v54, 17, %s" % v(vVOF))
    e("v_lshl_or_b32 v51, v54, 11, v51")
    P = PKV

    def row_tile(t):
        acc = vACC + 16 * t
        for p in range(8):
            center(acc, 16 + 16 * t, p)
        for p in range(8):
            e("v_pk_mul_f32 %s, %s, %s op_sel_hi:[1,0]" % (v(acc + 2 * p, 2), v(acc + 2 * p, 2), v(vRQ if t == 0 else vR, 2)))
        for p in range(8):
            e("v_cvt_pk_bf16_f32 %s, %s, %s" % (v(P + 8 * t + p), v(acc + 2 * p), v(acc + 2 * p + 1)))
    e("s_waitcnt lgkmcnt(15)")
    row_tile(1)
    cm("K and V get a write-through copy for the other dies and a copy for this die group")
    for hh in range(2):
        e("buffer_store_dwordx4 %s, %s, %s, %s offen sc1" % (v(P + 8 + 4 * hh, 4), v(vK16), sWS, T[4 + hh]))
    acc = vACC + 32
    e("s_waitcnt lgkmcnt(0)")
    for p in range(8):
        e("v_pk_fma_f32 %s, %s, v[52:53], %s op_sel_hi:[1,0,1] neg_lo:[1,0,0] neg_hi:[1,0,0]" %
          (v(acc + 2 * p, 2), v(64 + 2 * p, 2), v(acc + 2 * p, 2)))
    for p in range(8):
        e("v_pk_mul_f32 %s, %s, %s" % (v(acc + 2 * p, 2), v(acc + 2 * p, 2), v(80 + 2 * p, 2)))
    for p in range(8):
        e("v_cvt_pk_bf16_f32 %s, %s, %s" % (v(P + 16 + p), v(acc + 2 * p), v(acc + 2 * p + 1)))
    for t in range(2):
        e("buffer_store_dwordx4 %s, %s, %s, %s offen offset:%d sc1" % (v(P + 16 + 4 * t, 4), v(vVOF), sWS, T[4], 1024 + 256 * t))
    row_tile(0)
    lstores(["buffer_store_dwordx4 %s, %s, %s, %s offen" % (v(P + 8 + 4 * hh, 4), v(vK16), sWS, T[2 + hh]) for hh in range(2)] +
            ["buffer_store_dwordx4 %s, v51, %s, %s offen offset:%d" % (v(P + 16 + 4 * t, 4), sWS, T[2], 1024 + 256 * t) for t in range(2)] +
            ["buffer_store_dwordx4 %s, %s, %s, %s offen" % (v(P + 4 * hh, 4), v(vL16), sWS, T[hh]) for hh in range(2)])
    fine("q")
    slot(T[0], FQ, [(sC, 8), (sTBW, 1)])
    addr(T[1], None, FLG + FQG * 128, [(sL, FQG_L * 128), (sC, 8192), (sXCD, 1024), (sTBW, 128)])
    flag(T[0], 0, local=True)
    flag(T[1], None)
    e("s_branch %s" % done)
    lab(hl)
    h1, lp = newlab("qh1"), newlab("qhl")
    e("s_cmp_lg_u32 %s, 0" % sL)
    e("s_cbranch_scc1 %s" % h1)
    wq_begin()
    make_tag()
    e("v_lshlrev_b32 v42, 4, v0")
    e("v_add_u32 v42, %d, v42" % CONST)
    colsum_begin(64, 1024, 32768)
    e("ds_write_b128 v42, %s" % v(CSA, 4))
    e("s_waitcnt vmcnt(0)")
    dma_loop(2, lambda: wq_chunk(QPACE))
    e("s_mov_b32 %s, 0" % sIT)
    e("s_setprio %d" % OPT("hprio", 1))
    lab(lp)
    b1, b2, b3 = newlab("qw"), newlab("qw"), newlab("qw")
    e("s_waitcnt vmcnt(6) lgkmcnt(0)")
    e("s_cmp_lt_u32 %s, 3" % sIT)
    e("s_cbranch_scc1 %s" % b1)
    e("s_waitcnt vmcnt(0)")
    lab(b1)
    fine("h")
    e("s_barrier")
    fine("h")
    e("s_cmp_ge_u32 %s, 2" % sIT)
    e("s_cbranch_scc1 %s" % b3)
    wq_chunk()
    lab(b3)
    e("s_lshl_b32 %s, %s, 13" % (T[0], sIT))
    colsum_quads(2, 1024, 512)
    fine("h")
    e("s_add_u32 %s, %s, 1" % (sIT, sIT))
    e("s_cmp_lt_u32 %s, 4" % sIT)
    e("s_cbranch_scc1 %s" % lp)
    fine("h")
    colsum_end(CSQ_L)
    fine("h")
    e("s_waitcnt lgkmcnt(0)")
    e("s_barrier")
    fine("h")
    e("s_setprio 0")
    e("s_barrier")
    cm("park the weight tile in registers for the second layer pair")
    stash_addr()
    for k in range(24):
        e("ds_read_b128 %s, v%d offset:%d" % (v(vSTASH + 4 * k, 4), 42 if k < 4 else 41, 1024 * (k if k < 4 else k - 4)))
    mode_poll()
    e("s_waitcnt lgkmcnt(0)")
    e("s_branch %s" % done)
    lab(h1)
    e("s_waitcnt lgkmcnt(0)")
    for _ in range(6):
        e("s_barrier")
    lab(done)
    stamp()


def attention():
    cm("================ attention: S^T = K Q^T, P = exp2(S^T), O^T += V^T P via sparse MFMA")
    S, O, Q, KB, VB, IDX, AD, VO, CN = (16, 32), 48, 64, (68, 72), (76, 84), 92, 93, 94, 100
    PF = 100
    KVG, LP, CH, GF, ISS = T[2], T[3], T[4], T[5], T[6]
    cm("rows 16 and 20 of the V operand are ones (row sums for both lane halves); the other spare rows are zero")
    e("v_and_b32 %s, 27, v0" % v(IDX))
    e("v_cmp_eq_u32 vcc, 16, %s" % v(IDX))
    e("v_mov_b32 %s, 0x3f803f80" % v(AD))
    e("s_nop 0")
    for i in range(16):
        e("v_mov_b32 %s, 0" % v(O + i))
        e("v_cndmask_b32 %s, 0, %s, vcc" % (v(VB[0] + i), v(AD)))
    for i in range(8):
        e("v_mov_b32 %s, 0" % v(S[1] + 8 + i))
    e("v_mov_b32 %s, 0xdddddddd" % v(IDX))
    e("v_mov_b32 %s, %s" % (v(AD), v(vL16)))
    voff_128(VO)
    voff_192(VO + 1)
    e("s_mov_b32 %s, 1" % ISS)
    a1 = newlab("a1")
    e("s_cmp_lt_u32 %s, 4" % sW)
    e("s_cbranch_scc1 %s" % a1)
    cm("waves 4-7 fetch Q and this die's K/V, and later the other dies' K/V")
    e("v_and_b32 %s, 7, v0" % v(vPO))
    e("v_lshlrev_b32 %s, 3, %s" % (v(vPO), v(vPO)))
    e("s_lshr_b32 %s, %s, 1" % (T[1], sHEAD))
    addr(GF, None, FLG + FQG * 128, [(sL, FQG_L * 128), (T[1], 8192)])
    slot(T[0], FQ, [(T[1], 8)])
    addr(T[1], sLB, QF, [(sHEAD, 1024), (sHW, 2 * HSTR)])
    addr(KVG, None, KVF, [(sL, KVF_L), (sHEAD, 131072), (sHW, 4096)])
    addr(T[8], sLB, KVL, [(sHEAD, 2048), (sHW, 2 * HSTR)])
    addr(T[7], None, QL, [(sHW, 2048)])
    e("s_lshl_b32 %s, %s, 12" % (LP, sHW))
    e("s_add_u32 %s, %s, 1" % (CH, sXCD))
    e("s_mov_b32 %s, 0" % ISS)
    poll(T[0])
    for b in range(2):
        e("s_add_u32 m0, %s, %d" % (LP, 2048 * b))
        e("v_lshlrev_b32 %s, 7, v0" % v(vPO))
        for i in range(2):
            e("buffer_load_dwordx4 %s, %s, %s offen offset:%d sc1 lds" % (v(vL16), sWS, T[8], 1024 * i))
        e("s_add_u32 m0, %s, %d" % (T[7], 1024 * b))
        e("s_add_u32 %s, %s, %d" % (T[8], T[8], HSTR))
        e("buffer_load_dwordx4 %s, %s, %s offen sc1 lds" % (v(vL16), sWS, T[1]))
        e("s_add_u32 %s, %s, %d" % (T[1], T[1], HSTR))

    def gflag_load():
        e("buffer_load_dwordx2 %s, %s, %s, %s offen sc1" % (v(vPD, 2), v(vPO), sWS, GF))

    def kv_issue():
        e("s_and_b32 %s, %s, 7" % (CH, CH))
        e("s_lshl_b32 %s, %s, 14" % (T[9], CH))
        e("s_add_u32 %s, %s, 16384" % (LP, LP))
        e("s_add_u32 %s, %s, %s" % (T[9], T[9], KVG))
        e("s_mov_b32 m0, %s" % LP)
        e("s_add_u32 %s, %s, 1" % (CH, CH))
        for i in range(4):
            e("buffer_load_dwordx4 %s, %s, %s offen offset:%d sc1 lds" % (v(vL16), sWS, T[9], 1024 * i))

    def kv_issue_helpers():
        sk, cw = newlab("kvs"), newlab("kvc")
        e("s_cmp_lt_u32 %s, 4" % sW)
        e("s_cbranch_scc1 %s" % cw)
        kv_issue()
        lab(sk)
        ft = newlab("ft")
        TAIL.extend([ft + ":", "    s_cmp_lg_u32 %s, %s" % (sIT, T[8]), "    s_cbranch_scc1 %s" % sk,
                     "    buffer_load_dword %s, %s, s[64:67], %s offen" % (v(PF + 2), v(PF), T[1]), "    s_branch %s" % sk])
        TAIL.extend([cw + ":", "    s_cmp_lt_u32 %s, 4" % sIT, "    s_cbranch_scc1 %s" % ft, "    s_mov_b32 exec_hi, 0",
                     "    buffer_load_dword %s, %s, %s, %s offen" % (v(PF + 2), v(PF + 1), sTMP, T[7]),
                     "    s_mov_b64 exec, -1", "    s_add_u32 %s, %s, %d" % (T[7], T[7], 16 * 2752),
                     "    s_branch %s" % sk])
    e("s_waitcnt vmcnt(0)")
    gflag_load()
    lab(a1)
    addr(T[0], None, QL, [(sW, 1024)])
    e("v_add_u32 v16, %s, %s" % (T[0], v(vL16)))
    e("s_barrier")
    stamp()

    def rdk(t):
        e("ds_read_b128 %s, %s offset:%d" % (v(KB[t & 1], 4), v(AD), t * 2048))

    def rdv(t):
        e("s_mov_b64 exec, %s" % sMV)
        e("ds_read_b128 %s, %s offset:%d" % (v(VB[t & 1], 4), v(AD), t * 2048 + 1024))
        e("ds_read_b128 %s, %s offset:%d" % (v(VB[t & 1] + 4, 4), v(AD), t * 2048 + 1280))
        e("s_mov_b64 exec, -1")

    def smf(vb, p):
        e("v_smfmac_f32_32x32x32_bf16 %s, %s, %s, %s" % (v(O, 16), v(vb, 4), v(p, 8), v(IDX)))

    def ex(cur, a, b):
        for i in range(a, b):
            e("v_exp_f32 %s, %s" % (v(S[cur] + i), v(S[cur] + i)))

    def tile(t, extra=None):
        cur, nxt = t & 1, (t + 1) & 1
        ex(cur, 0, 2)
        smf(VB[nxt] + 4, S[nxt] + 8)
        rdv(t + 1)
        ex(cur, 2, 6)
        e("s_waitcnt lgkmcnt(2)")
        mfma(S[nxt], KB[nxt], Q, "0")
        rdk(t + 2)
        if extra:
            extra()
        ex(cur, 6, 12)
        smf(VB[cur], S[cur])
        ex(cur, 12, 16)
    e("ds_read_b128 %s, v16" % v(Q, 4))
    rdk(0)
    rdv(0)
    rdk(1)
    e("s_waitcnt lgkmcnt(3)")
    mfma(S[0], KB[0], Q, "0")
    e("s_mov_b32 %s, 0" % sIT)
    e("s_mov_b32 %s, %d" % (sCNT, POLL_LIMIT))
    e("s_nop 7")
    cm("keys of this die first; the other dies' K/V are requested as soon as their flags arrive")
    loc, go, retry, issue, chk3 = (newlab(x) for x in ("loc", "go", "retry", "issue", "chk3"))
    lab(loc)
    e("s_cmp_eq_u32 %s, 0" % sIT)
    e("s_cbranch_scc1 %s" % go)
    e("s_cmp_lg_u32 %s, 0" % ISS)
    e("s_cbranch_scc1 %s" % chk3)
    lab(retry)
    e("s_waitcnt vmcnt(0)")
    e("v_cmp_eq_u64 vcc, %s, %s" % (v(vPD, 2), v(vFV, 2)))
    e("s_nop 1")
    e("s_cmp_eq_u64 vcc, -1")
    e("s_cbranch_scc1 %s" % issue)
    gflag_load()
    e("s_cmp_lt_u32 %s, 3" % sIT)
    e("s_cbranch_scc1 %s" % go)
    e("s_sub_u32 %s, %s, 1" % (sCNT, sCNT))
    e("s_cbranch_scc0 %s" % retry)
    e("s_endpgm")
    lab(issue)
    kv_issue()
    kv_issue()
    e("s_mov_b32 %s, 1" % ISS)
    lab(chk3)
    e("s_cmp_lt_u32 %s, 3" % sIT)
    e("s_cbranch_scc1 %s" % go)
    e("s_waitcnt vmcnt(4)")
    e("s_barrier")
    lab(go)
    tile(0)
    tile(1)
    e("v_add_u32 %s, 4096, %s" % (v(AD), v(AD)))
    e("s_add_u32 %s, %s, 1" % (sIT, sIT))
    e("s_cmp_lt_u32 %s, 4" % sIT)
    e("s_cbranch_scc1 %s" % loc)
    fine("a")
    cm("first layer pair, waves 1-3: first touch of Wo / W1 / W2 (one line per lane, spread over all workgroups)")
    e("s_mov_b32 s66, %d" % (1376 * 1024))
    e("s_mov_b32 %s, %d" % (T[1], 43 * 128))
    e("s_cmp_eq_u32 %s, 2" % sW)
    e("s_cselect_b64 s[64:65], s[20:21], s[24:25]")
    e("s_cmp_eq_u32 %s, 1" % sW)
    e("s_cselect_b64 s[64:65], s[16:17], s[64:65]")
    e("s_cselect_b32 s66, %d, s66" % (512 * 1024))
    e("s_cselect_b32 %s, %d, %s" % (T[1], 16 * 128, T[1]))
    e("s_and_b32 s65, s65, 0xffff")
    e("s_mov_b32 s67, 0x20000")
    e("s_mul_i32 %s, %s, s2" % (T[1], T[1]))
    e("v_lshlrev_b32 %s, 7, v0" % v(PF))
    e("s_cmp_eq_u32 %s, 0" % sL)
    e("s_cselect_b32 %s, 1, 99" % T[8])
    e("s_cmp_eq_u32 %s, 0" % sW)
    e("s_cselect_b32 %s, 99, %s" % (T[8], T[8]))
    cm("lines of the W1 rows that are loaded after attention (128-351, 480-511): half per workgroup of a pair")
    srd(sTMP, 20, 512 * 2752)
    e("s_lshr_b32 %s, %s, 4" % (T[0], sJ))
    addr(T[7], None, 128, [(T[0], 128), (sHW, 32)])
    e("s_cmp_eq_u32 %s, 352" % T[7])
    e("s_cselect_b32 %s, 480, %s" % (T[7], T[7]))
    e("s_mul_i32 %s, %s, 2752" % (T[7], T[7]))
    e("s_mul_i32 %s, %s, 192" % (T[0], sC))
    e("s_add_u32 %s, %s, %s" % (T[7], T[7], T[0]))
    e("v_lshrrev_b32 %s, 1, v0" % v(PF + 1))
    e("v_mul_u32_u24 %s, 2752, %s" % (v(PF + 1), v(PF + 1)))
    e("v_and_b32 %s, 1, v0" % v(PF + 2))
    e("v_lshl_add_u32 %s, %s, 7, %s" % (v(PF + 1), v(PF + 2), v(PF + 1)))
    e("s_mov_b32 %s, 1" % sIT)
    loop = newlab("att")
    L.append(".p2align 6")
    lab(loop)
    for t in range(8):
        if t % 2 == 0:
            e("s_setprio %d" % (3 - t // 2))
        if t == 6:
            e("s_waitcnt vmcnt(4)")
            e("s_barrier")
        tile(t, kv_issue_helpers if t == 1 else None)
    e("v_add_u32 %s, 16384, %s" % (v(AD), v(AD)))
    e("s_add_u32 %s, %s, 1" % (sIT, sIT))
    e("s_cmp_lt_u32 %s, 6" % sIT)
    e("s_cbranch_scc1 %s" % loop)
    fine("a")
    cm("last two chunks: stream Wo and part of W1 into the dead K/V space, one piece per tile")
    srd(sTMP, 16, 512 * 1024)
    addr(T[0], None, 0, [(sW, 65536), (sNB, 128)])
    e("s_lshl_b32 %s, %s, 13" % (T[1], sW))

    srd("s[64:67]", 24, 1376 * 1024)
    e("s_lshr_b32 %s, %s, 3" % (T[4], sJ))
    addr(T[2], None, 0, [(T[4], 344 * 1024), (sW, 43 * 1024), (sNB, 128)])
    e("v_lshlrev_b32 %s, 10, v0" % v(PF))

    def w2_lines(trip):
        cm("one line per lane: pull this workgroup's share of W2 into the die's L2")
        e("s_mov_b64 exec, 0x3fffff")
        e("buffer_load_dword %s, %s, s[64:67], %s offen" % (v(PF + 2), v(PF), T[2]))
        e("s_mov_b64 exec, -1")
        e("s_add_u32 %s, %s, %d" % (T[2], T[2], 22 * 1024))

    def wo_piece(t):
        e("s_add_u32 m0, %s, %d" % (T[1], 1024 * t))
        e("s_nop 0")
        dma1(VO, T[0])
        e("s_add_u32 %s, %s, 8192" % (T[0], T[0]))
        if t in (2, 5) and not OPT("nopf", 0):
            w2_lines(0)

    def w1_piece(t):
        for u in ([2 * t, 2 * t + 1] if t < 2 else [t + 2] if t < 4 else []):
            e("s_add_u32 m0, %s, %d" % (T[1], (u // 3) * 22 * 3072 + (u % 3) * 1024))
            e("s_nop 0")
            dma1(VO + 1 + u % 3, T[0])
            if u == 2:
                e("s_add_u32 %s, %s, %d" % (T[0], T[0], 22 * 16 * 2752))
    for trip in range(2):
        for t in range(8):
            if t % 2 == 0:
                e("s_setprio %d" % (3 - t // 2))
            if t == 6 and trip == 0:
                e("s_waitcnt vmcnt(%d)" % (6 if OPT("nopf", 0) else 8))
                e("s_barrier")
            tile(t + 8 * trip, (lambda t=t: wo_piece(t)) if trip == 0 else (lambda t=t: w1_piece(t)))
        if trip == 0:
            srd(sTMP, 20, 512 * 2752)
            addr(T[0], None, 0, [(sW, 16 * 2752), (sC, 192)])
            addr(T[1], None, 65536, [(sW, 3072)])
    smf(VB[1] + 4, S[1] + 8)
    e("s_setprio 0")
    e("s_waitcnt lgkmcnt(0)")
    e("s_nop 10")
    stamp()
    cm("Softmax guard. The loops above used 0 as a stand-in for the row max. That is exact while the row sum")
    cm("stays in [2^-64, 2^64] and the accumulators are finite; otherwise redo this tile with the true max.")
    fin, slow = newlab("att_fin"), newlab("att_slow")
    e("v_mul_f32 v16, 0, %s" % v(O))
    for i in range(1, 8):
        e("v_fma_f32 v16, %s, 0, v16" % v(O + i))
    e("v_cmp_le_f32 vcc, %s, %s" % (f32(2.0 ** (64 if FORCE_SLOW else -64)), v(O + 8)))
    e("s_mov_b64 %s, vcc" % sM0)
    e("v_cmp_ge_f32 vcc, %s, %s" % (f32(2.0 ** 64), v(O + 8)))
    e("s_and_b64 %s, %s, vcc" % (sM0, sM0))
    e("v_cmp_eq_f32 vcc, 0, v16")
    e("s_and_b64 %s, %s, vcc" % (sM0, sM0))
    e("s_cmp_eq_u64 %s, -1" % sM0)
    e("s_cbranch_scc0 %s" % slow)
    lab(fin)
    e("v_rcp_f32 v16, %s" % v(O + 8))
    addr(T[0], sLB, OF, [(sW, XSTR), (sHEAD, 1024)])
    for p in range(4):
        e("v_pk_mul_f32 %s, %s, v[16:17] op_sel_hi:[1,0]" % (v(O + 2 * p, 2), v(O + 2 * p, 2)))
    for p in range(4):
        e("v_cvt_pk_bf16_f32 %s, %s, %s" % (v(20 + p), v(O + 2 * p), v(O + 2 * p + 1)))
    lstores(["buffer_store_dwordx4 v[20:23], %s, %s, %s offen" % (v(vL16), sWS, T[0])])
    slot(T[2], FA, [(sW, 32), (sHEAD, 1)])
    flag(T[2], 0, local=2)
    e("s_waitcnt vmcnt(1)")
    e("s_barrier")
    keep = L[:]
    del L[:]
    lab(slow)
    l1, l2 = newlab("slow1"), newlab("slow2")
    addr(T[2], None, KVF, [(sL, KVF_L), (sHEAD, 131072)])
    e("v_mov_b32 %s, 0xff800000" % v(CN))
    e("s_mov_b32 %s, 0" % sIT)
    lab(l1)
    e("buffer_load_dwordx4 %s, %s, %s, %s offen sc1" % (v(KB[0], 4), v(vL16), sWS, T[2]))
    e("s_waitcnt vmcnt(0)")
    mfma(S[0], KB[0], Q, "0")
    e("s_nop 15")
    for i in range(8):
        e("v_max3_f32 %s, %s, %s, %s" % (v(CN), v(S[0] + 2 * i), v(S[0] + 2 * i + 1), v(CN)))
    e("s_add_u32 %s, %s, 2048" % (T[2], T[2]))
    e("s_add_u32 %s, %s, 1" % (sIT, sIT))
    e("s_cmp_lt_u32 %s, 64" % sIT)
    e("s_cbranch_scc1 %s" % l1)
    e("v_mov_b32 %s, %s" % (v(CN + 1), v(CN)))
    e("s_nop 1")
    e("v_permlane32_swap_b32 %s, %s" % (v(CN), v(CN + 1)))
    e("s_nop 1")
    e("v_max_f32 %s, %s, %s" % (v(CN), v(CN), v(CN + 1)))
    e("v_sub_f32 %s, 0, %s" % (v(CN), v(CN)))
    for i in range(1, 16):
        e("v_mov_b32 %s, %s" % (v(CN + i), v(CN)))
    for i in range(16):
        e("v_mov_b32 %s, 0" % v(O + i))
    addr(T[2], None, KVF, [(sL, KVF_L), (sHEAD, 131072)])
    e("s_mov_b32 %s, 0" % sIT)
    lab(l2)
    e("buffer_load_dwordx4 %s, %s, %s, %s offen sc1" % (v(KB[0], 4), v(vL16), sWS, T[2]))
    e("s_mov_b64 exec, %s" % sMV)
    e("buffer_load_dwordx4 %s, %s, %s, %s offen offset:1024 sc1" % (v(VB[0], 4), v(vL16), sWS, T[2]))
    e("buffer_load_dwordx4 %s, %s, %s, %s offen offset:1280 sc1" % (v(VB[0] + 4, 4), v(vL16), sWS, T[2]))
    e("s_mov_b64 exec, -1")
    e("s_waitcnt vmcnt(0)")
    mfma(S[0], KB[0], Q, CN)
    e("s_nop 15")
    for i in range(16):
        e("v_exp_f32 %s, %s" % (v(S[0] + i), v(S[0] + i)))
    e("s_nop 1")
    smf(VB[0], S[0])
    smf(VB[0] + 4, S[0] + 8)
    e("s_nop 15")
    e("s_add_u32 %s, %s, 2048" % (T[2], T[2]))
    e("s_add_u32 %s, %s, 1" % (sIT, sIT))
    e("s_cmp_lt_u32 %s, 64" % sIT)
    e("s_cbranch_scc1 %s" % l2)
    e("s_branch %s" % fin)
    TAIL.extend(L)
    L[:] = keep
    stamp()


def n512(kind):
    wo = kind == "wo"
    ph = "o" if wo else "g"
    cm("================ %s" % ("output projection + residual" if wo else "MLP down projection + residual"))
    NS, J = (16, 16) if wo else (43, 39)
    AK, AS = vACC, vACC + 16
    hl, done = newlab("n_h"), newlab("n_done")
    e("s_cmp_ge_u32 %s, 4" % sW)
    e("s_cbranch_scc1 %s" % hl)
    if not wo:
        srd(sTMP, 26, 1024)
        e("v_lshrrev_b32 %s, 1, %s" % (v(vPO), v(vH16)))
        e("s_lshl_b32 %s, %s, 6" % (T[0], sNT))
        for i in range(4):
            e("buffer_load_dwordx2 %s, %s, %s, %s offen offset:%d" % (v(176 + 2 * i, 2), v(vPO), sTMP, T[0], 16 * i))
    unpack(AK, vRES, 8)
    tr_rows(vW0, 128)
    e("v_bfe_u32 %s, v0, 3, 1" % v(vPD))
    e("v_xor_b32 %s, %s, %s" % (v(vPD), sKH, v(vPD)))
    e("v_lshl_or_b32 %s, %s, 6, %s" % (v(vW0), v(vPD), v(vW0)))
    e("s_mul_i32 %s, %s, %d" % (T[0], sKH, J * 2048))
    e("v_add_u32 %s, %s, %s" % (v(vW0), T[0], v(vW0)))
    e("v_xor_b32 %s, 64, %s" % (v(vW1), v(vW0)))
    if not wo:
        e("v_add_u32 %s, 0x10000, %s" % (v(vW2), v(vW0)))
        e("v_add_u32 %s, 0x10000, %s" % (v(vW3), v(vW1)))
    if wo:
        e("v_and_b32 %s, 15, v0" % v(vPO))
        slot(T[0], FA, [(sTBN, 32), (sKH, 16)])
        addr(T[1], sLB, OF, [(sTBN, XSTR), (sKH, 16384)])
    else:
        e("v_and_b32 %s, 7, v0" % v(vPO))
        slot(T[0], FH, [(sTBN, 16), (sKH, 7)])
        addr(T[1], sLB, HF, [(sTBN, HSTR), (sKH, 43 * 1024)])
    e("v_lshlrev_b32 %s, 3, %s" % (v(vPO), v(vPO)))
    if not wo:
        e("s_waitcnt vmcnt(0)")
        unpack(AS, 176, 8)
        for p in range(8):
            e("v_pk_add_f32 %s, %s, %s" % (v(AK + 2 * p, 2), v(AK + 2 * p, 2), v(AS + 2 * p, 2)))
        e("s_barrier")

    def rd(j, i):
        jj = j % J
        base, off = ((vW0, vW1)[i], jj * 2048) if jj < 32 else ((vW2, vW3)[i], (jj - 32) * 2048)
        d = vWB + (j % 3) * 8 + 4 * i
        e("ds_read_b64_tr_b16 %s, %s offset:%d" % (v(d, 2), v(base), off))
        e("ds_read_b64_tr_b16 %s, %s offset:%d" % (v(d + 2, 2), v(base), off + 1024))
    for j in range(2):
        for i in range(2):
            rd(j, i)
    poll(T[0])
    stamp()
    areg = lambda j: vA + 4 * (j % 32)
    load_frags(T[1], 0, DEPTH, areg)
    fine(ph)
    for j in range(NS):
        issued = min(NS, DEPTH + j)
        if not wo and j == J - 2:
            e("s_barrier")
        e("s_waitcnt vmcnt(%d) lgkmcnt(%d)" % (issued - j - 1, 4 if j + 1 < NS else 0))
        if j in ((0, 4, 8, 15) if wo else (0, 11, 22, 42)):
            fine(ph)
        for i in range(2):
            acc = AK + 16 * i
            mfma(acc, vWB + (j % 3) * 8 + 4 * i, areg(j), "0" if (j == 0 and i == 1) else acc)
            if j + 2 < NS:
                rd(j + 2, i)
            if i == 0 and DEPTH + j < NS:
                load_frags(T[1], DEPTH + j, 1, areg, False)
        if j == (8 if wo else NS - J - 1):
            e("s_barrier")
    e("s_and_b32 %s, %s, 1" % (T[2], sW))
    if wo:
        addr(T[0], None, 0, [(T[2], 4096), (sKH, 32768)])
        e("s_xor_b32 %s, %s, 32768" % (T[1], T[0]))
    else:
        addr(T[0], None, 98304, [(T[2], 4096), (sKH, 8192)])
        e("s_xor_b32 %s, %s, 8192" % (T[1], T[0]))
    e("v_add_u32 v16, %s, %s" % (T[0], v(vL16)))
    e("v_add_u32 v17, %s, %s" % (T[1], v(vL16)))
    e("s_nop 3")
    for i in range(4):
        e("ds_write_b128 v16, %s offset:%d" % (v(AS + 4 * i, 4), 1024 * i))
    e("s_waitcnt lgkmcnt(0)")
    e("s_barrier")
    stamp()
    for i in range(4):
        e("ds_read_b128 %s, v17 offset:%d" % (v(AS + 4 * i, 4), 1024 * i))
    for i in range(4):
        e("s_waitcnt lgkmcnt(%d)" % (3 - i))
        for p in (2 * i, 2 * i + 1):
            e("v_pk_add_f32 %s, %s, %s" % (v(AK + 2 * p, 2), v(AK + 2 * p, 2), v(AS + 2 * p, 2)))
    for p in range(8):
        e("v_cvt_pk_bf16_f32 %s, %s, %s" % (v(vRES + p), v(AK + 2 * p), v(AK + 2 * p + 1)))
    if wo:
        tile_stats(AK, 20)
        publish_x(sLB, X1F, ST1, 0, FO, 20)
    else:
        last = newlab("last")
        e("s_cmp_lg_u32 %s, 0" % sL)
        e("s_cbranch_scc1 %s" % last)
        tile_stats(AK, 20)
        publish_x(sLB, XF, ST, LFL_L * 8, FX, 20)
        e("s_branch %s" % done)
        lab(last)
        srd(sTMP, 28, 2048 * 1024)
        e("v_and_b32 v16, 31, v0")
        e("v_lshlrev_b32 v16, 10, v16")
        e("v_add_u32 v16, v16, %s" % v(vH16))
        addr(T[0], None, 0, [(sXCD, 262144), (sTBN, 32768), (sNT, 64)])
        for g in range(2):
            e("v_permlane32_swap_b32 %s, %s" % (v(vRES + 4 * g), v(vRES + 4 * g + 2)))
            e("v_permlane32_swap_b32 %s, %s" % (v(vRES + 4 * g + 1), v(vRES + 4 * g + 3)))
        for g in range(2):
            e("buffer_store_dwordx4 %s, v16, %s, %s offen offset:%d" % (v(vRES + 4 * g, 4), sTMP, T[0], 32 * g))
    e("s_branch %s" % done)
    lab(hl)
    if wo:
        voff_192(44)
        e("s_lshl_b32 %s, %s, 2" % (T[3], sHW))
        e("s_min_u32 %s, %s, 10" % (T[3], T[3]))
        addr(T[0], None, 8 * 16 * 2752, [(T[3], 16 * 2752), (sC, 192)])
        addr(T[1], None, 65536 + 8 * 3072, [(T[3], 3072)])
        dma_w1(2)
        e("s_mov_b32 %s, %s" % (T[3], T[0]))
        e("s_mov_b32 %s, %s" % (T[4], T[1]))
        w0 = newlab("wcs")
        e("s_cmp_lg_u32 %s, 0" % sL)
        e("s_cbranch_scc1 %s" % w0)
        colsum_begin(192, 3072, 64)
        e("s_mov_b32 %s, 65536" % T[0])
        colsum_quads(2, 3072, 1536)
        e("s_mov_b32 %s, %d" % (T[0], 65536 + 22 * 3072))
        colsum_quads(2, 3072, 1536)
        lab(w0)
        e("s_mov_b32 %s, %s" % (T[0], T[3]))
        e("s_mov_b32 %s, %s" % (T[1], T[4]))
        e("s_barrier")
        dma_w1(2)
        e("s_barrier")
    else:
        e("s_waitcnt vmcnt(0)")
        fine("w")
        e("s_barrier")
        fine("w")
        e("s_lshr_b32 %s, %s, 1" % (T[3], sHW))
        e("s_and_b32 %s, %s, 1" % (T[4], sHW))
        addr(T[0], None, 78 * 8192, [(T[3], 86 * 8192), (T[4], 4 * 8192), (sNB, 128)])
        addr(T[1], None, 0, [(T[3], 78 * 1024), (T[4], 4096)])
        e("s_barrier")
        for k in range(4):
            e("s_add_u32 m0, %s, %d" % (T[1], 1024 * k))
            e("s_nop 0")
            dma1(40, T[0])
            e("s_add_u32 %s, %s, 8192" % (T[0], T[0]))
        e("s_waitcnt vmcnt(0)")
        e("s_barrier")
        stash_addr()
        e("s_barrier")
        e("s_cmp_lg_u32 %s, 0" % sL)
        e("s_cbranch_scc1 %s" % done)
        for k in range(24):
            e("ds_write_b128 v%d, %s offset:%d" % (42 if k < 4 else 41, v(vSTASH + 4 * k, 4), 1024 * (k if k < 4 else k - 4)))
    lab(done)
    stamp()


def ffn1():
    cm("================ MLP up projection + GELU")
    hl, done = newlab("f1_h"), newlab("f1_done")
    e("s_cmp_ge_u32 %s, 4" % sW)
    e("s_cbranch_scc1 %s" % hl)
    idle = newlab("f1_idle")
    e("s_cmp_eq_u32 %s, 15" % sC)
    e("s_cbranch_scc1 %s" % idle)
    TAIL.extend([idle + ":"] + ["    s_barrier"] * 3 + ["    s_branch " + done])

    def consts(t, part):
        for i in range(4):
            e("ds_read_b128 %s, %s offset:%d" % (v(16 + 32 * t + 16 * part + 4 * i, 4), v(vCA), 512 + 512 * part + t * 128 + 32 * i))
    wide_compute_front(FO, X1F, ST1, False, lambda m: consts(m // 2, m % 2))
    consts(1, 1)
    c0 = -2.0 * 1.4426950408889634 * 0.7978845608028654
    e("v_mov_b32 v112, %s" % f32(c0))
    e("v_mov_b32 v113, %s" % f32(c0 * 0.044715))
    e("v_mov_b32 v114, 1.0")
    addr(T[0], sLB, HF, [(sTBW, HSTR), (sC, 6144)])
    e("s_add_u32 %s, %s, 4096" % (T[1], T[0]))
    Z, P = 120, vWB
    for t in range(3):
        acc, cs, b1 = vACC + 16 * t, 16 + 32 * t, 32 + 32 * t
        e("s_waitcnt lgkmcnt(%d)" % (8 if t < 2 else 0))
        if t == 0:
            consts(2, 0)
            consts(2, 1)
        for p in range(8):
            center(acc, cs, p)
        for p in range(8):
            e("v_pk_fma_f32 %s, %s, %s, %s op_sel_hi:[1,0,1]" %
              (v(acc + 2 * p, 2), v(acc + 2 * p, 2), v(vR, 2), v(b1 + 2 * p, 2)))
        for p in range(8):
            e("v_pk_mul_f32 %s, %s, %s" % (v(Z + 2 * p, 2), v(acc + 2 * p, 2), v(acc + 2 * p, 2)))
        for p in range(8):
            e("v_pk_fma_f32 %s, %s, v[112:113], v[112:113] op_sel:[0,1,0] op_sel_hi:[1,1,0]" %
              (v(Z + 2 * p, 2), v(Z + 2 * p, 2)))
        for p in range(8):
            e("v_pk_mul_f32 %s, %s, %s" % (v(Z + 2 * p, 2), v(Z + 2 * p, 2), v(acc + 2 * p, 2)))
        for i in range(16):
            e("v_exp_f32 %s, %s" % (v(Z + i), v(Z + i)))
        for p in range(8):
            e("v_pk_add_f32 %s, %s, v[114:115] op_sel_hi:[1,0]" % (v(Z + 2 * p, 2), v(Z + 2 * p, 2)))
        for i in range(16):
            e("v_rcp_f32 %s, %s" % (v(Z + i), v(Z + i)))
        for p in range(8):
            e("v_pk_mul_f32 %s, %s, %s" % (v(acc + 2 * p, 2), v(acc + 2 * p, 2), v(Z + 2 * p, 2)))
        for p in range(8):
            e("v_cvt_pk_bf16_f32 %s, %s, %s" % (v(P + 8 * t + p), v(acc + 2 * p), v(acc + 2 * p + 1)))
        lstores(["buffer_store_dwordx4 %s, %s, %s, %s offen offset:%d" %
                 (v(P + 8 * t + 4 * hh, 4), v(vL16), sWS, T[(2 * t + hh) // 4], ((2 * t + hh) % 4) * 1024) for hh in range(2)])
        if t == 0:
            e("s_barrier")
        if t != 1:
            fine("f")
    slot(T[0], FH, [(sTBW, 16), (sC, 1)])
    flag(T[0], 0, local=2)
    e("s_branch %s" % done)
    lab(hl)
    h1 = newlab("fh1")
    voff_128(40)
    e("s_lshr_b32 %s, %s, 1" % (T[3], sHW))
    e("s_and_b32 %s, %s, %s" % (T[3], T[3], sHW))
    addr(T[0], None, 30 * 16 * 2752, [(T[3], 16 * 2752), (sC, 192)])
    addr(T[1], None, 58 * 1024, [(T[3], 3072)])
    e("s_waitcnt vmcnt(0)")
    e("s_barrier")
    dma_w1(1)
    e("s_cmp_lg_u32 %s, 0" % sL)
    e("s_cbranch_scc1 %s" % h1)
    cm("first layer pair: column sums of W1 and the bias, kept in LDS")
    srd(sTMP, 22, 2752)
    e("v_and_b32 %s, 31, v0" % v(vPO))
    e("v_lshlrev_b32 %s, 1, %s" % (v(vPO), v(vPO)))
    addr(T[0], None, 0, [(sHW, 64), (sC, 192)])
    e("buffer_load_ushort v47, %s, %s, %s offen" % (v(vPO), sTMP, T[0]))
    e("s_setprio 1")
    e("s_mov_b32 %s, %d" % (T[0], 65536 + 8 * 3072))
    colsum_quads(3, 3072, 1536)
    e("s_mov_b32 %s, %d" % (T[0], 65536 + 20 * 3072))
    e("s_waitcnt vmcnt(0)")
    colsum_quads(1, 3072, 1536, (58 * 1024, 58 * 1024 + 3072))
    e("s_setprio 0")
    colsum_end(CS1_L)
    e("v_lshlrev_b32 v47, 16, v47")
    e("s_lshl_b32 %s, %s, 7" % (T[0], sHW))
    e("v_add_u32 v41, %s, v41" % T[0])
    e("ds_write_b32 v41, v47 offset:%d" % (B1_L - CS1_L))
    lab(h1)
    srd(sTMP, 24, 1376 * 1024)
    e("s_waitcnt vmcnt(0) lgkmcnt(0)")
    e("s_barrier")
    fine("w")
    dma_w2(0, 0, 8, None)
    dma_w2(86, 78 * 1024, 8, None)
    dma_w2(32, 32 * 1024, 6, None)
    fine("w")
    e("s_barrier")
    fine("w")
    dma_w2(86 + 30, (78 + 30) * 1024, 12)
    dma_w2(54, 54 * 1024, 6)
    fine("w")
    lab(done)
    stamp()


def epilogue():
    e("s_add_u32 %s, %s, 1" % (sL, sL))
    e("s_add_u32 %s, %s, %d" % (sFB, sFB, LFL_L * 8))
    e("s_cmp_lt_u32 %s, 2" % sL)
    e("s_cbranch_scc1 L_layer")
    if PROFILE:
        e("s_memrealtime s[22:23]")
        e("s_waitcnt lgkmcnt(0)")
        stamp("s23")
        e("s_lshl_b32 %s, s2, 3" % T[0])
        e("s_add_u32 %s, %s, %s" % (T[0], T[0], sW))
        e("s_lshl_b32 %s, %s, 8" % (T[0], T[0]))
        e("s_add_u32 %s, %s, 0x%x" % (T[0], T[0], TSB))
        e("s_mov_b64 exec, 1")
        for i, r in enumerate([68, 18, 19] + list(range(STAMP0, STAMP0 + 30)) + [22, 23, 0, 1]):
            e("v_mov_b32 v16, s%d" % r)
            e("buffer_store_dword v16, off, %s, %s offset:%d" % (sWS, T[0], 4 * i))
        e("s_mov_b64 exec, 0xff")
        e("v_lshlrev_b32 v16, 2, v0")
        e("buffer_store_dword v5, v16, %s, %s offen offset:148" % (sWS, T[0]))
        e("s_mov_b64 exec, -1")
    if "--dbg" in sys.argv:
        sk = newlab("dbg")
        e("s_or_b32 %s, s2, %s" % (T[0], sW))
        e("s_cmp_lg_u32 %s, 0" % T[0])
        e("s_cbranch_scc1 %s" % sk)
        srd(sTMP, 30, 256)
        e("s_mov_b64 exec, 1")
        for i, r in enumerate([19, 72, 73, 74, 75, 76, 77, 80, 83, 86, 89, 90, 91, 95, 98, 101]):
            e("s_sub_u32 %s, s%d, s18" % (T[0], r))
            e("v_mov_b32 v16, %s" % T[0])
            e("buffer_store_dword v16, off, %s, 0 offset:%d" % (sTMP, 4 * i))
        e("s_mov_b64 exec, -1")
        lab(sk)
    cm("advance the hand-off tag for the next launch")
    e("s_or_b32 %s, s2, %s" % (T[0], sW))
    e("s_cmp_lg_u32 %s, 0" % T[0])
    e("s_cbranch_scc1 L_end")
    e("s_mov_b64 exec, 1")
    e("buffer_store_dword %s, off, %s, 0" % (v(vFV), sWS))
    lab("L_end")
    e("s_endpgm")
    L.extend(TAIL)
    lab("L_code_end")


HEADER = open(f"cdna_kernels/{NAME}.s.ref").read().split("; Override launch")[0]


def main():
    prologue()
    p0()
    lab("L_layer")
    qkv()
    attention()
    n512("wo")
    ffn1()
    n512("f2")
    epilogue()
    k = NAME + "_kernel"
    out = HEADER
    out += "; @launch grid=(256,1,1) block=(512,1,1) lds=%d\n" % LDS_BYTES
    out += '.amdgcn_target "amdgcn-amd-amdhsa--gfx950"\n.text\n.globl %s\n.p2align 8\n.type %s,@function\n%s:\n' % (k, k, k)
    out += "\n".join(L) + "\n"
    out += """.section .rodata,"a"
.p2align 6
.amdhsa_kernel %s
  .amdhsa_next_free_vgpr 256
  .amdhsa_next_free_sgpr 102
  .amdhsa_accum_offset 256
  .amdhsa_group_segment_fixed_size 0
  .amdhsa_kernarg_size 88
  .amdhsa_user_sgpr_count 2
  .amdhsa_user_sgpr_kernarg_segment_ptr 1
  .amdhsa_system_sgpr_workgroup_id_x 1
.end_amdhsa_kernel
""" % k
    open(OUT, "w").write(out)


main()
```

```python
import struct
import sys

NAME = "interleave_layers__softmax_full_mha__mixer_channel_mlp__prompt"
PROFILE = "--prof" in sys.argv
CLK = "s_memrealtime" if "--rt" in sys.argv else "s_memtime"
FORCE_SLOW = "--slow" in sys.argv
FORCE_GLOBAL = "--global" in sys.argv
OUT = [a for a in sys.argv[1:] if not a.startswith("--")]
OUT = OUT[0] if OUT else f"cdna_kernels/{NAME}.s"


def OPT(name, default):
    a = [x.split("=")[1] for x in sys.argv if x.startswith("--%s=" % name)]
    return int(a[0]) if a else default


def f32(x):
    return "0x%08x" % struct.unpack("<I", struct.pack("<f", x))[0]


WS_SIZE = 0x10000000
FLG = 0x100000
FQG, FQG_L, FI = 0, 1024, 2048
KVF, KVF_L = 0x200000, 0x400000
ARENA, ARENA_X = 0x1000000, 0x200000
XSTR, HSTR = 33 * 1024, 97 * 1024
XF, OF, BLK, ST, LFL = 0, 0x48000, 0x90000, 0x158000, 0x160000
X1F, ST1, HF, QF, KVL = XF, ST, BLK, BLK, BLK + 32768
FX, FQ, FA, FO, FH, LFL_L = 0, 128, 256, 512, 640, 768
TSB = 0x4000000
DEPTH = OPT("depth", 10)
PACE = OPT("pace", 5)
QPACE = OPT("qpace", 10)
RED = 140 * 1024
CONST = 156 * 1024
CSQ_L, CS1_L, B1_L, STAT_L, PART_L = CONST, CONST + 512, CONST + 1024, CONST + 1536, CONST + 2560
LDS_BYTES = 160 * 1024
sWS, sTMP = "s[4:7]", "s[8:11]"
sW, sNONCE, sL, sLB, sFB = "s34", "s35", "s36", "s37", "s38"
sXCD, sJ, sTBW, sC, sTBN, sNB, sKH, sNT, sHEAD, sQB = ("s%d" % i for i in range(39, 49))
sHW = "s49"
T = ["s%d" % i for i in range(50, 60)]
sCNT, sIT = "s60", "s61"
sMV = "s[62:63]"
sM0, sM1 = "s[64:65]", "s[66:67]"
sMODE = "s3"
STAMP0 = 72
vLANE, vL16, vFV, vPO, vT5, vPD = 0, 1, 2, 4, 5, 6
vRES = 8
vA, vACC, vWB, vSTS = 16, 144, 192, 228
vW0, vW1, vMU, vW2, vR, vW3, vRQ, vCA, vTR, vK16, vVOF, vH16 = 244, 245, 246, 247, 248, 249, 250, 251, 252, 253, 254, 255
vSTASH = 128
QL = 128 * 1024
POLL_LIMIT = 1 << 16

L = []
TAIL = []
uid = [0]
nstamp = [0]


def e(s):
    L.append("    " + s)


def lab(n):
    L.append(n + ":")


def cm(s):
    L.append("    ; " + s)


def v(i, n=1):
    return "v%d" % i if n == 1 else "v[%d:%d]" % (i, i + n - 1)


def capture(f):
    n = len(L)
    f()
    out = [x.strip() for x in L[n:]]
    del L[n:]
    return out


def newlab(p):
    uid[0] += 1
    return "L_%s_%d" % (p, uid[0])


def stamp(fixed=None):
    if not PROFILE:
        return
    e(CLK + " s[70:71]")
    e("s_waitcnt lgkmcnt(0)")
    if fixed:
        e("s_mov_b32 %s, s70" % fixed)
        return
    e("s_mul_i32 s69, %s, 15" % sL)
    e("s_add_u32 m0, s69, %d" % nstamp[0])
    e("s_nop 1")
    e("s_movreld_b32 s%d, s70" % STAMP0)
    nstamp[0] += 1
    assert nstamp[0] <= 15


FINE = [a.split("=")[1] for a in sys.argv if a.startswith("--fine=")]
FINE = FINE[0] if FINE else None
nfine = [0]
FINEKS = eval([a.split('=')[1] for a in sys.argv if a.startswith('--ks=')][0]) if any(a.startswith('--ks=') for a in sys.argv) else (0, 8, 16, 31)


def fine(phase):
    if not PROFILE or FINE != phase:
        return
    e(CLK + " s[70:71]")
    e("s_waitcnt lgkmcnt(0)")
    sk = newlab("fs")
    e("s_cmp_lg_u32 %s, %d" % (sL, 0 if "--l0" in sys.argv else 1))
    e("s_cbranch_scc1 %s" % sk)
    e("v_writelane_b32 v5, s70, %d" % nfine[0])
    lab(sk)
    nfine[0] += 1


def srd(dst, lo, size):
    b = int(dst[2:dst.index(":")])
    e("s_mov_b32 s%d, s%d" % (b, lo))
    e("s_and_b32 s%d, s%d, 0xffff" % (b + 1, lo + 1))
    e("s_mov_b32 s%d, %s" % (b + 2, size if isinstance(size, str) else hex(size)))
    e("s_mov_b32 s%d, 0x20000" % (b + 3))


def poll(soff):
    a, b = newlab("poll"), newlab("pok")
    e("s_mov_b32 %s, %d" % (sCNT, POLL_LIMIT))
    lab(a)
    e("buffer_load_dwordx2 %s, %s, %s, %s offen sc1" % (v(vPD, 2), v(vPO), sWS, soff))
    e("s_waitcnt vmcnt(0)")
    e("v_cmp_eq_u64 vcc, %s, %s" % (v(vPD, 2), v(vFV, 2)))
    e("s_nop 1")
    e("s_cmp_eq_u64 vcc, -1")
    e("s_cbranch_scc1 %s" % b)
    e("s_sub_u32 %s, %s, 1" % (sCNT, sCNT))
    e("s_cbranch_scc0 %s" % a)
    e("s_endpgm")
    lab(b)


def lstores(lines):
    g, d = newlab("wt"), newlab("wtd")
    e("s_cmp_eq_u32 %s, 0" % sMODE)
    e("s_cbranch_scc1 %s" % g)
    for x in lines:
        e(x + (" nt" if "--nt" in sys.argv and x.startswith("buffer_store_dwordx4") else ""))
    lab(d)
    TAIL.append(g + ":")
    for x in lines:
        TAIL.append("    " + x + (" sc1" if x.startswith("buffer_store") else ""))
    TAIL.append("    s_branch " + d)


def flag(soff, n=0, local=False):
    if n is not None and not (OPT("nodrain", 0) and local == 2):
        e("s_waitcnt vmcnt(%d)" % n)
    if local:
        e("s_mov_b64 exec, 1")
        lstores(["buffer_store_dwordx2 %s, off, %s, %s" % (v(vFV, 2), sWS, soff)])
    else:
        e("v_lshlrev_b32 %s, 3, v0" % v(vPD))
        e("s_mov_b64 exec, 0xffff")
        e("buffer_store_dwordx2 %s, %s, %s, %s offen sc1" % (v(vFV, 2), v(vPD), sWS, soff))
    e("s_mov_b64 exec, -1")


def mode_poll(first=False):
    a, b, glob, out = newlab("mp"), newlab("mpok"), newlab("mpg"), newlab("mpo")
    e("v_and_b32 %s, 31, v0" % v(vPD))
    e("v_lshlrev_b32 %s, 10, %s" % (v(vPD), v(vPD)))
    addr(T[3], None, FLG + FI * 128, [(sXCD, 128)])
    e("v_add_u32 %s, %s, %s" % (v(vPD), T[3], v(vPD)))
    if first:
        e("v_add_u32 %s, %s, %s" % (v(vPD + 1), T[0], v(vPO)))
        e("v_cmp_gt_u32 vcc, 32, v0")
        e("v_cndmask_b32 v60, %s, %s, vcc" % (v(vPD), v(vPD + 1)))
    else:
        e("v_mov_b32 v60, %s" % v(vPD))
    e("s_getreg_b32 %s, hwreg(HW_REG_XCC_ID, 0, 4)" % T[3])
    e("s_mov_b32 %s, %d" % (sCNT, POLL_LIMIT))
    e("s_mov_b32 %s, 1" % sMODE)
    lab(a)
    e("buffer_load_dwordx2 %s, v60, %s, 0 offen sc1" % (v(vPD, 2), sWS))
    e("s_waitcnt vmcnt(0)")
    e("v_xor_b32 %s, %s, %s" % (v(vPD + 1), v(vPD + 1), v(vFV + 1)))
    e("v_cmp_eq_u32 %s, %s, %s" % (sM0, v(vPD), v(vFV)))
    e("v_cmp_eq_u32 %s, %s, %s" % (sM1, T[3], v(vPD + 1)))
    e("v_cmp_gt_u32 vcc, 16, %s" % v(vPD + 1))
    e("s_nop 1")
    e("s_and_b64 %s, %s, %s" % (sM1, sM1, sM0))
    e("s_and_b64 vcc, vcc, %s" % sM0)
    if not FORCE_GLOBAL:
        e("s_cmp_eq_u64 %s, -1" % sM1)
        e("s_cbranch_scc1 %s" % out)
    e("s_cmp_eq_u32 vcc_hi, -1")
    e("s_cbranch_scc0 %s" % b)
    if not FORCE_GLOBAL:
        e("s_cmp_eq_u32 s67, -1")
        e("s_cbranch_scc0 %s" % glob)
    else:
        e("s_branch %s" % glob)
    lab(b)
    e("s_sub_u32 %s, %s, 1" % (sCNT, sCNT))
    e("s_cbranch_scc0 %s" % a)
    e("s_endpgm")
    lab(glob)
    e("s_mov_b32 %s, 0" % sMODE)
    if first:
        e("v_xor_b32 %s, 31, %s" % (v(vFV + 1), v(vFV + 1)))
        publish_addr(XF, ST, 0, FX)
        publish_x(None, 84)
        poll(T[0])
        e("v_xor_b32 %s, 31, %s" % (v(vFV + 1), v(vFV + 1)))
    lab(out)


def slot(dst, base, terms):
    e("s_add_u32 %s, %s, %d" % (dst, sFB, base * 8))
    for r, m in terms:
        e("s_mul_i32 %s, %s, %d" % (T[9], r, m * 8))
        e("s_add_u32 %s, %s, %s" % (dst, dst, T[9]))


def addr(dst, base_reg, const, terms):
    if base_reg is None:
        e("s_mov_b32 %s, 0x%x" % (dst, const))
    else:
        e("s_add_u32 %s, %s, 0x%x" % (dst, base_reg, const))
    for r, m in terms:
        e("s_mul_i32 %s, %s, %d" % (T[9], r, m))
        e("s_add_u32 %s, %s, %s" % (dst, dst, T[9]))


def load_frags(sg, first, n, reg_of, rebase=True):
    for j in range(first, first + n):
        if j % 4 == 0 or (j == first and rebase):
            e("s_add_u32 %s, %s, %d" % (T[8], sg, (j // 4) * 4096))
        e("buffer_load_dwordx4 %s, %s, %s, %s offen offset:%d sc1" %
          (v(reg_of(j), 4), v(vL16), sWS, T[8], (j % 4) * 1024))


def mfma(d, a, b, c):
    e("v_mfma_f32_32x32x16_bf16 %s, %s, %s, %s" % (v(d, 16), v(a, 4), v(b, 4), c if isinstance(c, str) else v(c, 16)))


def half_sum(a, b):
    e("s_nop 1")
    e("v_permlane32_swap_b32 %s, %s" % (v(a), v(b)))
    e("s_nop 1")
    e("v_add_f32 %s, %s, %s" % (v(a), v(a), v(b)))


def tile_stats(y, t):
    e("v_pk_add_f32 %s, %s, %s" % (v(t, 2), v(y, 2), v(y + 2, 2)))
    e("v_pk_mul_f32 %s, %s, %s" % (v(t + 2, 2), v(y, 2), v(y, 2)))
    for p in range(1, 8):
        if p > 1:
            e("v_pk_add_f32 %s, %s, %s" % (v(t, 2), v(t, 2), v(y + 2 * p, 2)))
        e("v_pk_fma_f32 %s, %s, %s, %s" % (v(t + 2, 2), v(y + 2 * p, 2), v(y + 2 * p, 2), v(t + 2, 2)))
    e("v_add_f32 %s, %s, %s" % (v(t), v(t), v(t + 1)))
    e("v_add_f32 %s, %s, %s" % (v(t + 2), v(t + 2), v(t + 3)))
    half_sum(t, t + 2)


def unpack(dst, src, n):
    for i in range(n):
        e("v_lshlrev_b32 %s, 16, %s" % (v(dst + 2 * i), v(src + i)))
        e("v_and_b32 %s, 0xffff0000, %s" % (v(dst + 2 * i + 1), v(src + i)))


def publish_addr(xoff, stoff, fbase_add, fbase):
    addr(T[4], sLB, xoff, [(sTBN, XSTR), (sNT, 2048)])
    e("s_lshr_b32 %s, %s, 2" % (T[6], sNT))
    e("s_and_b32 %s, %s, 3" % (T[7], sNT))
    addr(T[5], sLB, stoff, [(sTBN, 4096), (T[6], 1024), (T[7], 4)])
    slot(T[6], fbase, [(sTBN, 16), (sNT, 1)])
    if fbase_add:
        e("s_add_u32 %s, %s, %d" % (T[6], T[6], fbase_add))


def publish_x(y, t):
    lstores(["buffer_store_dwordx4 %s, %s, %s, %s offen" % (v(vRES, 4), v(vL16), sWS, T[4]),
             "buffer_store_dwordx4 %s, %s, %s, %s offen offset:1024" % (v(vRES + 4, 4), v(vL16), sWS, T[4])])
    if y is not None:
        tile_stats(y, t)
    lstores(["buffer_store_dword %s, %s, %s, %s offen" % (v(t), v(vL16), sWS, T[5])])
    flag(T[6], local=2)


def prologue():
    e("s_cmp_ge_u32 s2, 256")
    e("s_cbranch_scc1 L_end")
    e("s_load_dwordx16 s[12:27], s[0:1], 0")
    e("s_load_dwordx4 s[28:31], s[0:1], 64")
    e("s_load_dwordx2 s[32:33], s[0:1], 80")
    e("v_lshrrev_b32 v1, 6, v0")
    e("v_and_b32 v0, 63, v0")
    e("v_readfirstlane_b32 %s, v1" % sW)
    e("v_lshlrev_b32 %s, 4, v0" % v(vL16))
    cm("column part of a transposing-read address: (lane&3)*8 + ((lane>>4)&1)*32")
    e("v_and_b32 %s, 3, v0" % v(vTR))
    e("v_lshlrev_b32 %s, 3, %s" % (v(vTR), v(vTR)))
    e("v_bfe_u32 %s, v0, 4, 1" % v(vT5))
    e("v_lshl_or_b32 %s, %s, 5, %s" % (v(vTR), v(vT5), v(vTR)))
    e("v_lshrrev_b32 %s, 5, v0" % v(vT5))
    e("v_lshlrev_b32 %s, 4, %s" % (v(vH16), v(vT5)))
    cm("K fragments are stored with token bits 2 and 3 swapped (matches the sparse-MFMA key order)")
    e("v_and_b32 %s, 0x33, v0" % v(vK16))
    e("v_and_b32 %s, 4, v0" % v(vPO))
    e("v_lshl_or_b32 %s, %s, 1, %s" % (v(vK16), v(vPO), v(vK16)))
    e("v_and_b32 %s, 8, v0" % v(vPO))
    e("v_lshrrev_b32 %s, 1, %s" % (v(vPO), v(vPO)))
    e("v_or_b32 %s, %s, %s" % (v(vK16), v(vK16), v(vPO)))
    e("v_lshlrev_b32 %s, 4, %s" % (v(vK16), v(vK16)))
    cm("V store offset: head parity*128K + half*512 + d*16")
    e("v_and_b32 %s, 15, v0" % v(vVOF))
    e("v_lshlrev_b32 %s, 4, %s" % (v(vVOF), v(vVOF)))
    e("v_lshl_or_b32 %s, %s, 9, %s" % (v(vVOF), v(vT5), v(vVOF)))
    e("v_bfe_u32 %s, v0, 4, 1" % v(vPO))
    e("v_lshl_or_b32 %s, %s, 17, %s" % (v(vVOF), v(vPO), v(vVOF)))
    e("s_and_b32 %s, s2, 7" % sXCD)
    e("s_lshr_b32 %s, s2, 3" % sJ)
    e("s_and_b32 %s, %s, 3" % (sHW, sW))
    e("s_and_b32 %s, %s, 15" % (sC, sJ))
    e("s_lshr_b32 %s, %s, 4" % (T[0], sJ))
    e("s_lshl_b32 %s, %s, 2" % (T[0], T[0]))
    e("s_add_u32 %s, %s, %s" % (sTBW, T[0], sHW))
    e("s_and_b32 %s, %s, 7" % (sNB, sJ))
    e("s_lshr_b32 %s, %s, 3" % (T[0], sJ))
    e("s_mov_b32 %s, %s" % (sHEAD, sJ))
    e("s_lshl_b32 %s, %s, 1" % (sTBN, T[0]))
    e("s_and_b32 %s, %s, 1" % (T[0], sW))
    e("s_add_u32 %s, %s, %s" % (sTBN, sTBN, T[0]))
    e("s_lshr_b32 %s, %s, 1" % (sKH, sHW))
    e("s_lshl_b32 %s, %s, 1" % (sNT, sNB))
    e("s_add_u32 %s, %s, %s" % (sNT, sNT, sKH))
    e("s_mov_b32 s62, 0xffff")
    e("s_mov_b32 s63, 0xffff")
    e("s_mov_b32 %s, 0" % sL)
    addr(sLB, None, ARENA, [(sXCD, ARENA_X)])
    e("s_add_u32 %s, %s, 0x%x" % (sFB, sLB, LFL))
    e("s_waitcnt lgkmcnt(0)")
    srd(sWS, 32, WS_SIZE)
    srd(sTMP, 12, 2048 * 1024)
    cm("hand-off tag: ws[0] only tells this launch's flags from an earlier launch's")
    e("s_load_dword %s, s[32:33], 0" % sNONCE)
    if OPT("hold", 0) and not PROFILE:
        e("s_memrealtime s[70:71]")
        e("s_waitcnt lgkmcnt(0)")
        e("s_mov_b32 s68, s70")
    if PROFILE:
        e("s_memrealtime s[70:71]")
        e("s_waitcnt lgkmcnt(0)")
        e("s_mov_b32 s68, s70")
        stamp("s18")


def make_tag():
    e("s_waitcnt lgkmcnt(0)")
    e("s_add_u32 %s, %s, 16" % (sNONCE, sNONCE))
    e("v_mov_b32 %s, %s" % (v(vFV), sNONCE))
    e("v_not_b32 %s, %s" % (v(vFV + 1), v(vFV)))


def p0():
    cm("================ P0 (waves 0-3): x tile -> residual registers, fragments and row statistics")
    p0end, noid, nox, npt = newlab("p0end"), newlab("noid"), newlab("nox"), newlab("npt")
    e("s_cmp_ge_u32 %s, 4" % sW)
    e("s_cbranch_scc1 %s" % nox)
    e("v_and_b32 %s, 31, v0" % v(vPO))
    e("v_lshlrev_b32 %s, 10, %s" % (v(vPO), v(vPO)))
    e("v_add_u32 %s, %s, %s" % (v(vPO), v(vPO), v(vH16)))
    addr(T[0], None, 0, [(sXCD, 262144), (sTBN, 32768), (sNT, 64)])
    for g in range(2):
        e("buffer_load_dwordx4 %s, %s, %s, %s offen offset:%d" % (v(vRES + 4 * g, 4), v(vPO), sTMP, T[0], 32 * g))
    lab(nox)
    cm("one line per lane: the 32 workgroups of a group pull Wqkv into their L2")
    srd(sTMP, 14, 512 * 3072)
    e("v_lshlrev_b32 v17, 7, v0")
    addr(T[0], None, 0, [(sJ, 384 * 128), (sW, 48 * 128)])
    e("s_mov_b32 exec_hi, 0xffff")
    e("buffer_load_dword v16, v17, %s, %s offen" % (sTMP, T[0]))
    e("s_mov_b64 exec, -1")
    e("s_cmp_lg_u32 %s, 4" % sW)
    e("s_cbranch_scc1 %s" % npt)
    cm("statistics and flag lines receive partial writes: bring them into L2 first")
    addr(T[0], sLB, ST, [(sJ, 11 * 128)])
    e("s_mov_b64 exec, 0x7ff")
    e("buffer_load_dword v18, v17, %s, %s offen sc1" % (sWS, T[0]))
    e("s_mov_b64 exec, -1")
    lab(npt)
    if OPT("cpf", 0):
        ncp = newlab("ncp")
        e("s_cmp_lg_u32 %s, 6" % sW)
        e("s_cbranch_scc1 %s" % ncp)
        cm("pull this kernel's instruction lines into the die's L2 (8 lines per workgroup)")
        e("s_getpc_b64 s[64:65]")
        lab("L_pc")
        e("s_lshl_b32 %s, %s, 10" % (T[0], sJ))
        e("v_add_u32 v20, %s, v17" % T[0])
        e("v_min_u32 v20, L_code_end-L_pc-4, v20")
        e("v_mov_b32 v21, s65")
        e("v_add_co_u32 v20, vcc, s64, v20")
        e("s_nop 1")
        e("v_addc_co_u32 v21, vcc, 0, v21, vcc")
        e("s_mov_b64 exec, 0xff")
        e("global_load_dword v18, v[20:21], off")
        e("s_mov_b64 exec, -1")
        lab(ncp)
    if OPT("tlb", 0):
        ntl = newlab("ntl")
        e("s_cmp_lg_u32 %s, 5" % sW)
        e("s_cbranch_scc1 %s" % ntl)
        cm("touch this die's slice of every K/V head block early (address translation)")
        e("v_lshlrev_b32 v19, 17, v0")
        addr(T[0], None, KVF, [(sXCD, 16384)])
        e("buffer_load_dword v18, v19, %s, %s offen sc1" % (sWS, T[0]))
        lab(ntl)
    e("s_cmp_ge_u32 %s, 4" % sW)
    e("s_cbranch_scc1 %s" % p0end)
    stamp("s0")
    make_tag()
    e("s_getreg_b32 %s, hwreg(HW_REG_XCC_ID, 0, 4)" % T[7])
    e("s_mov_b32 %s, 1" % sMODE)
    e("v_xor_b32 %s, %s, %s" % (v(vFV + 1), T[7], v(vFV + 1)))
    publish_addr(XF, ST, 0, FX)
    nid = newlab("nid")
    e("s_cmp_lg_u32 %s, 0" % sW)
    e("s_cbranch_scc1 %s" % nid)
    e("s_lshl_b32 %s, s2, 7" % T[8])
    e("s_add_u32 %s, %s, 0x%x" % (T[8], T[8], FLG + FI * 128))
    flag(T[8], None)
    e("s_waitcnt vmcnt(2)")
    e("s_branch %s" % noid)
    lab(nid)
    e("s_waitcnt vmcnt(1)")
    lab(noid)
    stamp("s1")
    for g in range(2):
        e("v_permlane32_swap_b32 %s, %s" % (v(vRES + 4 * g), v(vRES + 4 * g + 2)))
        e("v_permlane32_swap_b32 %s, %s" % (v(vRES + 4 * g + 1), v(vRES + 4 * g + 3)))
    e("s_nop 0")
    unpack(66, vRES, 8)
    publish_x(66, 84)
    e("s_nop 0")
    e("v_not_b32 %s, %s" % (v(vFV + 1), v(vFV)))
    lab(p0end)
    stamp("s19")


def tr_rows(dst, rowbytes):
    e("v_bfe_u32 %s, v0, 2, 2" % v(dst))
    e("v_lshrrev_b32 %s, 2, %s" % (v(vPD), v(vH16)))
    e("v_add_u32 %s, %s, %s" % (v(dst), v(dst), v(vPD)))
    e("v_mul_u32_u24 %s, %d, %s" % (v(dst), rowbytes, v(dst)))
    e("v_add_u32 %s, %s, %s" % (v(dst), v(dst), v(vTR)))


def voff_128(dst):
    e("v_lshrrev_b32 %s, 3, v0" % v(dst))
    e("v_lshlrev_b32 %s, 10, %s" % (v(dst), v(dst)))
    e("v_and_b32 %s, 7, v0" % v(vPD))
    e("v_lshrrev_b32 %s, 2, v0" % v(vPD + 1))
    e("v_and_b32 %s, 4, %s" % (v(vPD + 1), v(vPD + 1)))
    e("v_xor_b32 %s, %s, %s" % (v(vPD), v(vPD), v(vPD + 1)))
    e("v_lshl_or_b32 %s, %s, 4, %s" % (v(dst), v(vPD), v(dst)))


def voff_192(dst):
    for i in range(3):
        e("v_add_u32 %s, %d, v0" % (v(vPD), 64 * i))
        e("v_mul_u32_u24 %s, 5462, %s" % (v(vPD + 1), v(vPD)))
        e("v_lshrrev_b32 %s, 16, %s" % (v(vPD + 1), v(vPD + 1)))
        e("v_mul_u32_u24 %s, %d, %s" % (v(dst + i), 2752 - 192, v(vPD + 1)))
        e("v_lshl_add_u32 %s, %s, 4, %s" % (v(dst + i), v(vPD), v(dst + i)))


def dma1(vo, sg):
    e("buffer_load_dwordx4 %s, %s, %s offen lds" % (v(vo), sTMP, sg))


def dma_loop(n, body):
    lp = newlab("dl")
    e("s_mov_b32 %s, %d" % (T[2], n))
    lab(lp)
    body()
    e("s_sub_u32 %s, %s, 1" % (T[2], T[2]))
    e("s_cmp_lg_u32 %s, 0" % T[2])
    e("s_cbranch_scc1 %s" % lp)


def dma_w2(piece0, lds0, n, pace=PACE):
    addr(T[0], None, piece0 * 8192, [(sHW, n * 8192), (sNB, 128)])
    addr(T[1], None, lds0, [(sHW, n * 1024)])

    def body():
        e("s_mov_b32 m0, %s" % T[1])
        e("s_add_u32 %s, %s, 1024" % (T[1], T[1]))
        dma1(40, T[0])
        e("s_add_u32 %s, %s, 8192" % (T[0], T[0]))
        if pace:
            e("s_waitcnt vmcnt(%d)" % pace)
    dma_loop(n, body)


def dma_w1(n):
    def body():
        for i in range(3):
            e("s_add_u32 m0, %s, %d" % (T[1], 1024 * i))
            e("s_nop 0")
            dma1(44 + i, T[0])
        e("s_add_u32 %s, %s, %d" % (T[0], T[0], 16 * 2752))
        e("s_add_u32 %s, %s, 3072" % (T[1], T[1]))
    dma_loop(n, body)


def wq_begin():
    srd(sTMP, 14, 512 * 3072)
    e("v_lshrrev_b32 v40, 2, v0")
    e("v_mul_u32_u24 v40, 3072, v40")
    e("v_and_b32 v41, 3, v0")
    e("v_lshl_or_b32 v40, v41, 4, v40")
    addr(T[3], None, 0, [(sHW, 2 * 49152), (sC, 64)])
    e("s_lshl_b32 %s, %s, 11" % (T[4], sHW))


def wq_chunk(pace=None):
    for dk in range(2):
        for i in range(3):
            e("s_add_u32 m0, %s, %d" % (T[4], i * 31744 + dk * 1024))
            e("s_nop 0")
            e("buffer_load_dwordx4 v40, %s, %s offen offset:%d lds" % (sTMP, T[3], i * 1024))
            if pace is not None:
                e("s_waitcnt vmcnt(%d)" % pace)
        e("s_add_u32 %s, %s, %d" % (T[3], T[3], 49152 if dk == 0 else 7 * 49152))
    e("s_add_u32 %s, %s, 8192" % (T[4], T[4]))


CSA = 64


def colsum_begin(rowbytes):
    tr_rows(43, rowbytes)
    for r in range(48):
        e("v_mov_b32 v%d, 0" % (CSA + r))
    for r in range(4):
        e("v_mov_b32 v%d, 0x3f803f80" % (52 + r))


def colsum_steps(n, step, tilestep, second):
    assert n == 2
    e("v_add_u32 v42, %s, v43" % T[0])
    e("v_add_u32 v48, %d, v42" % (2 * tilestep))
    for k in range(2):
        for i in range(3):
            for h in range(2):
                e("ds_read_b64_tr_b16 %s, v%d offset:%d" % (v(16 + 12 * k + 4 * i + 2 * h, 2), 48 if i == 2 else 42,
                                                            k * step + (0 if i == 2 else i * tilestep) + h * second))
    for k in range(6):
        e("s_waitcnt lgkmcnt(%d)" % (10 - 2 * k))
        mfma(CSA + 16 * (k % 3), 52, 16 + 4 * k, CSA + 16 * (k % 3))


def colsum_partial():
    e("v_and_b32 v41, 31, v0")
    e("v_lshlrev_b32 v41, 2, v41")
    addr(T[0], None, PART_L, [(sHW, 384)])
    e("v_add_u32 v42, %s, v41" % T[0])
    e("s_nop 7")
    for i in range(3):
        e("ds_write_b32 v42, v%d offset:%d" % (CSA + 16 * i, 128 * i))


def colsum_combine(dst_l):
    e("s_min_u32 %s, %s, 2" % (T[0], sHW))
    e("s_lshl_b32 %s, %s, 7" % (T[0], T[0]))
    e("v_add_u32 v41, %s, v41" % T[0])
    e("v_add_u32 v42, %d, v41" % PART_L)
    for k in range(4):
        e("ds_read_b32 v%d, v42 offset:%d" % (16 + k, 384 * k))
    e("v_add_u32 v41, %d, v41" % dst_l)
    e("s_waitcnt lgkmcnt(0)")
    e("v_add_f32 v16, v16, v17")
    e("v_add_f32 v18, v18, v19")
    e("v_add_f32 v16, v16, v18")
    e("ds_write_b32 v41, v16")


def stats_code(second_ln):
    c = []
    for k in range(1, 16):
        c.append("v_add_f32 %s, %s, %s" % (v(vSTS), v(vSTS), v(vSTS + k)))
    c += ["v_mov_b32 %s, %s" % (v(vSTS + 1), v(vSTS)), "s_nop 1",
          "v_permlane32_swap_b32 %s, %s" % (v(vSTS), v(vSTS + 1)), "s_nop 1",
          "v_mul_f32 %s, %s, %s" % (v(vMU), f32(1.0 / 512), v(vSTS)),
          "v_mul_f32 %s, %s, %s" % (v(vSTS + 1), f32(1.0 / 512), v(vSTS + 1)),
          "v_fma_f32 %s, -%s, %s, %s" % (v(vSTS + 1), v(vMU), v(vMU), v(vSTS + 1)),
          "v_max_f32 %s, 0, %s" % (v(vSTS + 1), v(vSTS + 1)),
          "v_add_f32 %s, %s, %s" % (v(vSTS + 2), f32(1e-5), v(vSTS + 1)),
          "v_rsq_f32 %s, %s" % (v(vR), v(vSTS + 2)), "s_nop 0"]
    if second_ln:
        c += ["v_mul_f32 %s, %s, %s" % (v(vSTS + 2), v(vR), v(vR)),
              "v_mul_f32 %s, %s, %s" % (v(vSTS + 2), v(vSTS + 2), v(vSTS + 1)),
              "v_add_f32 %s, %s, %s" % (v(vSTS + 2), f32(1e-5), v(vSTS + 2)),
              "v_rsq_f32 %s, %s" % (v(vSTS + 2), v(vSTS + 2)), "s_nop 0",
              "v_mul_f32 %s, %s, %s" % (v(vR), v(vR), v(vSTS + 2))]
    return c


def center(acc, cs, p):
    e("v_pk_fma_f32 %s, %s, %s, %s op_sel_hi:[0,1,1] neg_lo:[1,0,0] neg_hi:[1,0,0]" %
      (v(acc + 2 * p, 2), v(vMU, 2), v(cs + 2 * p, 2), v(acc + 2 * p, 2)))


PKV = 116


def stash_addr():
    e("s_lshl_b32 %s, %s, 12" % (T[0], sHW))
    e("v_add_u32 v42, %s, %s" % (T[0], v(vL16)))
    addr(T[0], None, 16384, [(sHW, 20480)])
    e("v_add_u32 v41, %s, %s" % (T[0], v(vL16)))


class Lds:
    def __init__(self):
        self.ops, self.done = [], 0

    def op(self, name, text):
        e(text)
        self.ops.append(name)

    def need(self, name):
        last = max(i for i, n in enumerate(self.ops) if n == name)
        if last < self.done:
            return None
        self.done = last + 1
        return min(15, len(self.ops) - 1 - last)


def qkv():
    cm("================ QKV projection: K and V tiles first, their epilogue runs under the Q tile's MFMAs")
    hl, done = newlab("qkv_h"), newlab("qkv_done")
    e("s_cmp_ge_u32 %s, 4" % sW)
    e("s_cbranch_scc1 %s" % hl)
    e("v_and_b32 %s, 15, v0" % v(vPO))
    e("v_lshlrev_b32 %s, 3, %s" % (v(vPO), v(vPO)))
    slot(T[0], FX, [(sTBW, 16)])
    addr(T[1], sLB, XF, [(sTBW, XSTR)])
    addr(T[2], sLB, ST, [(sTBW, 4096)])
    e("v_add_u32 %s, %d, %s" % (v(vCA), CONST, v(vH16)))
    tr_rows(vW0, 64)
    e("v_add_u32 %s, 0x10000, %s" % (v(vW1), v(vW0)))
    l1, l2 = newlab("fx"), newlab("fx")
    e("s_cmp_lg_u32 %s, 0" % sL)
    e("s_cbranch_scc1 %s" % l1)
    mode_poll(True)
    e("s_branch %s" % l2)
    lab(l1)
    poll(T[0])
    lab(l2)
    stamp()

    def item(n):
        if n < 32:
            load_frags(T[1], n, 1, lambda j: vA + 4 * j, n % 4 == 0)
        else:
            e("buffer_load_dwordx4 %s, %s, %s, %s offen offset:%d sc1" % (v(vSTS + 4 * (n - 32), 4), v(vL16), sWS, T[2], 1024 * (n - 32)))
    H = 16
    sched = [[ks + DEPTH] if ks + DEPTH < 32 else [] for ks in range(32)]
    for k in range(4):
        sched[3 + 2 * k].append(32 + k)
    order = list(range(DEPTH))
    for n in range(DEPTH):
        item(n)
    e("s_barrier")
    lds = Lds()

    def rd(ks, i, d):
        base, off = (vW0, i * 32768 + ks * 1024) if i < 2 else (vW1, ks * 1024)
        lds.op(("w", i, ks), "ds_read_b64_tr_b16 %s, %s offset:%d" % (v(d, 2), v(base), off))
        lds.op(("w", i, ks), "ds_read_b64_tr_b16 %s, %s offset:%d" % (v(d + 2, 2), v(base), off + 512))

    def wait(name):
        n = lds.need(name)
        if n is not None:
            e("s_waitcnt lgkmcnt(%d)" % n)
    wb1 = lambda ks, i: vWB + (ks % 3) * 12 + 4 * i
    wb2 = lambda ks: vWB + (12 * (ks - H) if ks < H + 3 else [4, 8, 16, 20, 28, 32, 0, 12, 24][(ks - H - 3) % 9])
    tiles = lambda ks: (0, 1, 2) if ks < H else (1, 2)
    for ks in range(2):
        for i in tiles(ks):
            rd(ks, i, wb1(ks, i))
    fine("q")
    SA, SB, SC = vPO, vPD, vPD + 1
    KC, VM, VR, VC, QC = vA, vA + 16, vA + 32, vA + 48, vSTS

    def addresses():
        addr(T[4], None, KVF, [(sL, KVF_L), (sC, 2 * 131072), (sXCD, 16384), (sTBW, 2048)])
        e("s_add_u32 %s, %s, 0x20000" % (T[5], T[4]))
        slot(T[6], FQ, [(sC, 8), (sTBW, 1)])
        addr(T[7], None, FLG + FQG * 128, [(sL, FQG_L * 128), (sC, 8192), (sXCD, 1024), (sTBW, 128)])
        addr(T[3], sLB, QF, [(sC, 2048), (sTBW, HSTR)])
        addr(T[2], sLB, KVL, [(sC, 4096), (sTBW, HSTR)])
        e("v_and_b32 %s, 31, v0" % v(SA))
        e("v_lshlrev_b32 %s, 2, %s" % (v(SA), v(SA)))
        addr(T[0], None, STAT_L, [(sHW, 256)])
        e("v_add_u32 %s, %s, %s" % (v(SB), T[0], v(SA)))
        e("v_add_u32 %s, %s, %s" % (v(SC), T[0], v(vH16)))
        e("v_add_u32 %s, %d, %s" % (v(SA), CSQ_L, v(SA)))
    sh = [lambda x=x: e(x) for x in capture(addresses) + stats_code(False)]
    sh.append(lambda: lds.op("sw", "ds_write_b32 %s, %s" % (v(SB), v(vMU))))
    sh.append(lambda: lds.op("sw", "ds_write_b32 %s, %s offset:128" % (v(SB), v(vR))))
    sh.append(lambda: e("v_mul_f32 %s, %s, %s" % (v(vRQ), f32(0.25 * 1.4426950408889634), v(vR))))
    for i in range(4):
        sh.append(lambda i=i: lds.op("kc", "ds_read_b128 %s, %s offset:%d" % (v(KC + 4 * i, 4), v(vCA), 128 + 32 * i)))
    for i in range(4):
        sh.append(lambda i=i: lds.op("vc", "ds_read_b128 %s, %s offset:%d" % (v(VM + 4 * i, 4), v(SC), 32 * i)))
        sh.append(lambda i=i: lds.op("vc", "ds_read_b128 %s, %s offset:%d" % (v(VR + 4 * i, 4), v(SC), 128 + 32 * i)))
    sh.append(lambda: lds.op("vc", "ds_read_b32 %s, %s offset:256" % (v(VC), v(SA))))
    nslot = sum(len(tiles(ks)) for ks in range(10, 32))
    nsal = len(capture(addresses))
    pos = 0
    for ks in range(32):
        if ks == 16:
            e("s_barrier")
        newest = max(order.index(n) for n in ([ks, 35] if ks >= 18 else [ks]))
        e("s_waitcnt vmcnt(%d) lgkmcnt(%d)" % (len(order) - 1 - newest, lds.need(("w", 2, ks))))
        if ks in FINEKS:
            fine("q")
        for m, i in enumerate(tiles(ks)):
            c = "0" if ks == 0 else vACC + 16 * i
            if i == 2:
                mfma(vACC + 32, vA + 4 * ks, wb1(ks, i), c)
            else:
                mfma(vACC + 16 * i, wb1(ks, i), vA + 4 * ks, c)
            if ks + 2 < 32 and i in tiles(ks + 2):
                rd(ks + 2, i, wb1(ks + 2, i))
            elif ks >= 30 and (i == 1 or ks == 30):
                k2 = H + (ks - 30) * 2 + i - 1
                rd(k2, 0, wb2(k2))
            if m < len(sched[ks]):
                item(sched[ks][m])
                order.append(sched[ks][m])
            if ks >= 10:
                for _ in range(2):
                    if pos < len(sh) and (pos < nsal or ks >= 18):
                        sh[pos]()
                        pos += 1
    assert pos == len(sh), (pos, len(sh))
    cm("remaining Q k-steps with the K and V epilogues underneath")
    fill = [lambda: wait("kc")]
    aK, aV = vACC + 16, vACC + 32
    for i in range(4):
        fill.append(lambda i=i: lds.op("qc", "ds_read_b128 %s, %s offset:%d" % (v(QC + 4 * i, 4), v(vCA), 32 * i)))
    fill.append(lambda: e("v_and_b32 %s, 0x1ffff, %s" % (v(SC), v(vVOF))))
    fill.append(lambda: e("v_lshrrev_b32 %s, 17, %s" % (v(SB), v(vVOF))))
    fill.append(lambda: e("v_lshl_or_b32 %s, %s, 11, %s" % (v(SC), v(SB), v(SC))))
    for r in range(16):
        fill.append(lambda r=r: e("v_fma_f32 %s, -%s, %s, %s" % (v(aK + r), v(vMU), v(KC + r), v(aK + r))))
    for r in range(16):
        fill.append(lambda r=r: e("v_mul_f32 %s, %s, %s" % (v(aK + r), v(vR), v(aK + r))))
    for p in range(8):
        fill.append(lambda p=p: e("v_cvt_pk_bf16_f32 %s, %s, %s" % (v(KC + p), v(aK + 2 * p), v(aK + 2 * p + 1))))
    for hh in range(2):
        fill.append(lambda hh=hh: e("buffer_store_dwordx4 %s, %s, %s, %s offen sc1" % (v(KC + 4 * hh, 4), v(vK16), sWS, T[4 + hh])))
    fill.append(lambda: wait("vc"))
    for r in range(16):
        fill.append(lambda r=r: e("v_fma_f32 %s, -%s, %s, %s" % (v(aV + r), v(VM + r), v(VC), v(aV + r))))
    for r in range(16):
        fill.append(lambda r=r: e("v_mul_f32 %s, %s, %s" % (v(aV + r), v(VR + r), v(aV + r))))
    for p in range(8):
        fill.append(lambda p=p: e("v_cvt_pk_bf16_f32 %s, %s, %s" % (v(KC + 8 + p), v(aV + 2 * p), v(aV + 2 * p + 1))))
    for t in range(2):
        fill.append(lambda t=t: e("buffer_store_dwordx4 %s, %s, %s, %s offen offset:%d sc1" %
                                  (v(KC + 8 + 4 * t, 4), v(vVOF), sWS, T[4], 1024 + 256 * t)))
    fill.append(lambda: lstores(
        ["buffer_store_dwordx4 %s, %s, %s, %s offen offset:%d" % (v(KC + 4 * hh, 4), v(vK16), sWS, T[2], 2048 * hh) for hh in range(2)] +
        ["buffer_store_dwordx4 %s, %s, %s, %s offen offset:%d" % (v(KC + 8 + 4 * t, 4), v(SC), sWS, T[2], 1024 + 256 * t) for t in range(2)]))
    per = -(-len(fill) // (32 - H))
    for ks in range(H, 32):
        wait(("w", 0, ks + 1 if ks % 2 == 0 and H + 2 < ks < 31 else ks))
        mfma(vACC, wb2(ks), vA + 4 * ks, vACC)
        if ks == H:
            fine("q")
        for n in ([H + 3, H + 4] if ks == H else [H + 5, H + 6] if ks == H + 1 else [ks + 5] if ks + 5 < 32 else []):
            rd(n, 0, wb2(n))
        for f in fill[(ks - H) * per:(ks + 1 - H) * per]:
            f()
    e("s_barrier")
    stamp()
    wait("qc")
    e("s_nop %d" % max(0, 10 - len(fill[(31 - H) * per:])))
    for p in range(8):
        center(vACC, QC, p)
    for p in range(8):
        e("v_pk_mul_f32 %s, %s, %s op_sel_hi:[1,0]" % (v(vACC + 2 * p, 2), v(vACC + 2 * p, 2), v(vRQ, 2)))
    for p in range(8):
        e("v_cvt_pk_bf16_f32 %s, %s, %s" % (v(VR + p), v(vACC + 2 * p), v(vACC + 2 * p + 1)))
    lstores(["buffer_store_dwordx4 %s, %s, %s, %s offen offset:%d" % (v(VR + 4 * hh, 4), v(vL16), sWS, T[3], 1024 * hh) for hh in range(2)])
    fine("q")
    flag(T[6], 0, local=True)
    flag(T[7], None)
    e("s_branch %s" % done)
    lab(hl)
    h1, lp = newlab("qh1"), newlab("qhl")
    e("s_cmp_lg_u32 %s, 0" % sL)
    e("s_cbranch_scc1 %s" % h1)
    wq_begin()
    make_tag()
    colsum_begin(64)
    e("s_waitcnt vmcnt(0)")
    dma_loop(2, lambda: wq_chunk(QPACE))
    e("s_mov_b32 %s, 0" % sIT)
    lab(lp)
    b1, b2 = newlab("qw"), newlab("qw")
    e("s_cmp_ge_u32 %s, 2" % sIT)
    e("s_cbranch_scc1 %s" % b1)
    wq_chunk(QPACE)
    e("s_waitcnt vmcnt(12)")
    e("s_branch %s" % b2)
    lab(b1)
    e("s_waitcnt vmcnt(6)")
    e("s_cmp_eq_u32 %s, 2" % sIT)
    e("s_cbranch_scc1 %s" % b2)
    e("s_waitcnt vmcnt(0)")
    lab(b2)
    addr(T[0], None, 0, [(sIT, 8192), (sHW, 2048)])
    colsum_steps(2, 1024, 32768, 512)
    e("s_add_u32 %s, %s, 1" % (sIT, sIT))
    e("s_cmp_lt_u32 %s, 4" % sIT)
    e("s_cbranch_scc1 %s" % lp)
    colsum_partial()
    e("s_waitcnt lgkmcnt(0)")
    e("s_barrier")
    colsum_combine(CSQ_L)
    e("s_waitcnt lgkmcnt(0)")
    e("s_barrier")
    e("s_barrier")
    cm("park the weight tile in registers for the second layer pair")
    stash_addr()
    for k in range(24):
        e("ds_read_b128 %s, v%d offset:%d" % (v(vSTASH + 4 * k, 4), 42 if k < 4 else 41, 1024 * (k if k < 4 else k - 4)))
    mode_poll()
    e("s_waitcnt lgkmcnt(0)")
    e("s_branch %s" % done)
    lab(h1)
    e("s_waitcnt lgkmcnt(0)")
    for _ in range(3):
        e("s_barrier")
    lab(done)
    stamp()


def attention():
    cm("================ attention: S^T = K Q^T, P = exp2(S^T), O^T += V^T P via sparse MFMA")
    S, O, Q, KB, VB, IDX, AD, VO, CN = (16, 32), 48, 64, (68, 72), (76, 84), 92, 93, 94, 100
    PF = 100
    KVG, LP, CH, GF, ISS = T[2], T[3], T[4], T[5], T[6]
    cm("rows 16 and 20 of the V operand are ones (row sums for both lane halves); the other spare rows are zero")
    e("v_and_b32 %s, 27, v0" % v(IDX))
    e("v_cmp_eq_u32 vcc, 16, %s" % v(IDX))
    e("v_mov_b32 %s, 0x3f803f80" % v(AD))
    e("s_nop 0")
    for i in range(16):
        e("v_mov_b32 %s, 0" % v(O + i))
        e("v_cndmask_b32 %s, 0, %s, vcc" % (v(VB[0] + i), v(AD)))
    for i in range(8):
        e("v_mov_b32 %s, 0" % v(S[1] + 8 + i))
    e("v_mov_b32 %s, 0xdddddddd" % v(IDX))
    e("v_mov_b32 %s, %s" % (v(AD), v(vL16)))
    voff_128(VO)
    voff_192(VO + 1)
    e("s_mov_b32 %s, 1" % ISS)
    a1 = newlab("a1")
    e("s_cmp_lt_u32 %s, 4" % sW)
    e("s_cbranch_scc1 %s" % a1)
    cm("waves 4-7 fetch Q and this die's K/V, and later the other dies' K/V")
    e("v_and_b32 %s, 7, v0" % v(vPO))
    e("v_lshlrev_b32 %s, 3, %s" % (v(vPO), v(vPO)))
    e("s_lshr_b32 %s, %s, 1" % (T[1], sHEAD))
    addr(GF, None, FLG + FQG * 128, [(sL, FQG_L * 128), (T[1], 8192)])
    slot(T[0], FQ, [(T[1], 8)])
    addr(T[1], sLB, QF, [(sHEAD, 1024), (sHW, 2 * HSTR)])
    addr(KVG, None, KVF, [(sL, KVF_L), (sHEAD, 131072), (sHW, 4096)])
    addr(T[8], sLB, KVL, [(sHEAD, 2048), (sHW, 2 * HSTR)])
    addr(T[7], None, QL, [(sHW, 2048)])
    e("s_lshl_b32 %s, %s, 12" % (LP, sHW))
    e("s_add_u32 %s, %s, 1" % (CH, sXCD))
    e("s_mov_b32 %s, 0" % ISS)
    poll(T[0])
    for b in range(2):
        e("s_add_u32 m0, %s, %d" % (LP, 2048 * b))
        e("v_lshlrev_b32 %s, 7, v0" % v(vPO))
        for i in range(2):
            e("buffer_load_dwordx4 %s, %s, %s offen offset:%d sc1 lds" % (v(vL16), sWS, T[8], 1024 * i))
        e("s_add_u32 m0, %s, %d" % (T[7], 1024 * b))
        e("s_add_u32 %s, %s, %d" % (T[8], T[8], HSTR))
        e("buffer_load_dwordx4 %s, %s, %s offen sc1 lds" % (v(vL16), sWS, T[1]))
        e("s_add_u32 %s, %s, %d" % (T[1], T[1], HSTR))

    def gflag_load():
        e("buffer_load_dwordx2 %s, %s, %s, %s offen sc1" % (v(vPD, 2), v(vPO), sWS, GF))

    def kv_issue():
        e("s_and_b32 %s, %s, 7" % (CH, CH))
        e("s_lshl_b32 %s, %s, 14" % (T[9], CH))
        e("s_add_u32 %s, %s, 16384" % (LP, LP))
        e("s_add_u32 %s, %s, %s" % (T[9], T[9], KVG))
        e("s_mov_b32 m0, %s" % LP)
        e("s_add_u32 %s, %s, 1" % (CH, CH))
        for i in range(4):
            e("buffer_load_dwordx4 %s, %s, %s offen offset:%d sc1 lds" % (v(vL16), sWS, T[9], 1024 * i))

    def kv_issue_helpers():
        sk, cw = newlab("kvs"), newlab("kvc")
        e("s_cmp_lt_u32 %s, 4" % sW)
        e("s_cbranch_scc1 %s" % cw)
        kv_issue()
        lab(sk)
        ft = newlab("ft")
        TAIL.extend([ft + ":", "    s_cmp_lg_u32 %s, %s" % (sIT, T[8]), "    s_cbranch_scc1 %s" % sk,
                     "    buffer_load_dword %s, %s, s[64:67], %s offen" % (v(PF + 2), v(PF), T[1]), "    s_branch %s" % sk])
        TAIL.extend([cw + ":", "    s_cmp_lt_u32 %s, 4" % sIT, "    s_cbranch_scc1 %s" % ft, "    s_mov_b32 exec_hi, 0",
                     "    buffer_load_dword %s, %s, %s, %s offen" % (v(PF + 2), v(PF + 1), sTMP, T[7]),
                     "    s_mov_b64 exec, -1", "    s_add_u32 %s, %s, %d" % (T[7], T[7], 16 * 2752),
                     "    s_branch %s" % sk])
    e("s_waitcnt vmcnt(0)")
    gflag_load()
    lab(a1)
    addr(T[0], None, QL, [(sW, 1024)])
    e("v_add_u32 v16, %s, %s" % (T[0], v(vL16)))
    e("s_barrier")
    stamp()

    def rdk(t):
        e("ds_read_b128 %s, %s offset:%d" % (v(KB[t & 1], 4), v(AD), t * 2048))

    def rdv(t):
        e("s_mov_b64 exec, %s" % sMV)
        e("ds_read_b128 %s, %s offset:%d" % (v(VB[t & 1], 4), v(AD), t * 2048 + 1024))
        e("ds_read_b128 %s, %s offset:%d" % (v(VB[t & 1] + 4, 4), v(AD), t * 2048 + 1280))
        e("s_mov_b64 exec, -1")

    def smf(vb, p):
        e("v_smfmac_f32_32x32x32_bf16 %s, %s, %s, %s" % (v(O, 16), v(vb, 4), v(p, 8), v(IDX)))

    def ex(cur, a, b):
        for i in range(a, b):
            e("v_exp_f32 %s, %s" % (v(S[cur] + i), v(S[cur] + i)))

    def tile(t, extra=None):
        cur, nxt = t & 1, (t + 1) & 1
        ex(cur, 0, 2)
        smf(VB[nxt] + 4, S[nxt] + 8)
        rdv(t + 1)
        ex(cur, 2, 6)
        e("s_waitcnt lgkmcnt(2)")
        mfma(S[nxt], KB[nxt], Q, "0")
        rdk(t + 2)
        if extra:
            extra()
        ex(cur, 6, 12)
        smf(VB[cur], S[cur])
        ex(cur, 12, 16)
    e("ds_read_b128 %s, v16" % v(Q, 4))
    rdk(0)
    rdv(0)
    rdk(1)
    e("s_waitcnt lgkmcnt(3)")
    mfma(S[0], KB[0], Q, "0")
    e("s_mov_b32 %s, 0" % sIT)
    e("s_mov_b32 %s, %d" % (sCNT, POLL_LIMIT))
    e("s_nop 7")
    cm("keys of this die first; the other dies' K/V are requested as soon as their flags arrive")
    loc, go, retry, issue, chk3 = (newlab(x) for x in ("loc", "go", "retry", "issue", "chk3"))
    lab(loc)
    e("s_cmp_eq_u32 %s, 0" % sIT)
    e("s_cbranch_scc1 %s" % go)
    e("s_cmp_lg_u32 %s, 0" % ISS)
    e("s_cbranch_scc1 %s" % chk3)
    lab(retry)
    e("s_waitcnt vmcnt(0)")
    e("v_cmp_eq_u64 vcc, %s, %s" % (v(vPD, 2), v(vFV, 2)))
    e("s_nop 1")
    e("s_cmp_eq_u64 vcc, -1")
    e("s_cbranch_scc1 %s" % issue)
    gflag_load()
    e("s_cmp_lt_u32 %s, 3" % sIT)
    e("s_cbranch_scc1 %s" % go)
    e("s_sub_u32 %s, %s, 1" % (sCNT, sCNT))
    e("s_cbranch_scc0 %s" % retry)
    e("s_endpgm")
    lab(issue)
    kv_issue()
    kv_issue()
    e("s_mov_b32 %s, 1" % ISS)
    lab(chk3)
    e("s_cmp_lt_u32 %s, 3" % sIT)
    e("s_cbranch_scc1 %s" % go)
    e("s_waitcnt vmcnt(4)")
    e("s_barrier")
    lab(go)
    tile(0)
    tile(1)
    e("v_add_u32 %s, 4096, %s" % (v(AD), v(AD)))
    e("s_add_u32 %s, %s, 1" % (sIT, sIT))
    e("s_cmp_lt_u32 %s, 4" % sIT)
    e("s_cbranch_scc1 %s" % loc)
    fine("a")
    cm("first layer pair, waves 1-3: first touch of Wo / W1 / W2 (one line per lane, spread over all workgroups)")
    e("s_mov_b32 s66, %d" % (1376 * 1024))
    e("s_mov_b32 %s, %d" % (T[1], 43 * 128))
    e("s_cmp_eq_u32 %s, 2" % sW)
    e("s_cselect_b64 s[64:65], s[20:21], s[24:25]")
    e("s_cmp_eq_u32 %s, 1" % sW)
    e("s_cselect_b64 s[64:65], s[16:17], s[64:65]")
    e("s_cselect_b32 s66, %d, s66" % (512 * 1024))
    e("s_cselect_b32 %s, %d, %s" % (T[1], 16 * 128, T[1]))
    e("s_and_b32 s65, s65, 0xffff")
    e("s_mov_b32 s67, 0x20000")
    e("s_mul_i32 %s, %s, s2" % (T[1], T[1]))
    e("v_lshlrev_b32 %s, 7, v0" % v(PF))
    e("s_cmp_eq_u32 %s, 0" % sL)
    e("s_cselect_b32 %s, 1, 99" % T[8])
    e("s_cmp_eq_u32 %s, 0" % sW)
    e("s_cselect_b32 %s, 99, %s" % (T[8], T[8]))
    cm("lines of the W1 rows that are loaded after attention (128-351, 480-511): half per workgroup of a pair")
    srd(sTMP, 20, 512 * 2752)
    e("s_lshr_b32 %s, %s, 4" % (T[0], sJ))
    addr(T[7], None, 128, [(T[0], 128), (sHW, 32)])
    e("s_cmp_eq_u32 %s, 352" % T[7])
    e("s_cselect_b32 %s, 480, %s" % (T[7], T[7]))
    e("s_mul_i32 %s, %s, 2752" % (T[7], T[7]))
    e("s_mul_i32 %s, %s, 192" % (T[0], sC))
    e("s_add_u32 %s, %s, %s" % (T[7], T[7], T[0]))
    e("v_lshrrev_b32 %s, 1, v0" % v(PF + 1))
    e("v_mul_u32_u24 %s, 2752, %s" % (v(PF + 1), v(PF + 1)))
    e("v_and_b32 %s, 1, v0" % v(PF + 2))
    e("v_lshl_add_u32 %s, %s, 7, %s" % (v(PF + 1), v(PF + 2), v(PF + 1)))
    e("s_mov_b32 %s, 1" % sIT)
    loop = newlab("att")
    L.append(".p2align 6")
    lab(loop)
    for t in range(8):
        if t % 2 == 0:
            e("s_setprio %d" % (3 - t // 2))
        if t == 6:
            e("s_waitcnt vmcnt(4)")
            e("s_barrier")
        tile(t, kv_issue_helpers if t == 1 else None)
    e("v_add_u32 %s, 16384, %s" % (v(AD), v(AD)))
    e("s_add_u32 %s, %s, 1" % (sIT, sIT))
    e("s_cmp_lt_u32 %s, 6" % sIT)
    e("s_cbranch_scc1 %s" % loop)
    fine("a")
    cm("last two chunks: stream Wo and part of W1 into the dead K/V space, one piece per tile")
    srd(sTMP, 16, 512 * 1024)
    addr(T[0], None, 0, [(sW, 65536), (sNB, 128)])
    e("s_lshl_b32 %s, %s, 13" % (T[1], sW))

    srd("s[64:67]", 24, 1376 * 1024)
    e("s_lshr_b32 %s, %s, 3" % (T[4], sJ))
    addr(T[2], None, 0, [(T[4], 344 * 1024), (sW, 43 * 1024), (sNB, 128)])
    e("v_lshlrev_b32 %s, 10, v0" % v(PF))

    def w2_lines(trip):
        cm("one line per lane: pull this workgroup's share of W2 into the die's L2")
        e("s_mov_b64 exec, 0x3fffff")
        e("buffer_load_dword %s, %s, s[64:67], %s offen" % (v(PF + 2), v(PF), T[2]))
        e("s_mov_b64 exec, -1")
        e("s_add_u32 %s, %s, %d" % (T[2], T[2], 22 * 1024))

    def wo_piece(t):
        e("s_add_u32 m0, %s, %d" % (T[1], 1024 * t))
        e("s_nop 0")
        dma1(VO, T[0])
        e("s_add_u32 %s, %s, 8192" % (T[0], T[0]))
        if t in (2, 5) and not OPT("nopf", 0):
            w2_lines(0)

    def w1_piece(t):
        for u in ([2 * t, 2 * t + 1] if t < 2 else [t + 2] if t < 4 else []):
            e("s_add_u32 m0, %s, %d" % (T[1], (u // 3) * 22 * 3072 + (u % 3) * 1024))
            e("s_nop 0")
            dma1(VO + 1 + u % 3, T[0])
            if u == 2:
                e("s_add_u32 %s, %s, %d" % (T[0], T[0], 22 * 16 * 2752))
    for trip in range(2):
        for t in range(8):
            if t % 2 == 0:
                e("s_setprio %d" % (3 - t // 2))
            if t == 6 and trip == 0:
                e("s_waitcnt vmcnt(%d)" % (6 if OPT("nopf", 0) else 8))
                e("s_barrier")
            tile(t + 8 * trip, (lambda t=t: wo_piece(t)) if trip == 0 else (lambda t=t: w1_piece(t)))
        if trip == 0:
            addr(T[4], sLB, OF, [(sW, XSTR), (sHEAD, 1024)])
            slot(T[5], FA, [(sW, 32), (sHEAD, 1)])
            srd(sTMP, 20, 512 * 2752)
            addr(T[0], None, 0, [(sW, 16 * 2752), (sC, 192)])
            addr(T[1], None, 65536, [(sW, 3072)])
    e("s_nop 1")
    smf(VB[1] + 4, S[1] + 8)
    e("s_setprio 0")
    e("s_mov_b32 %s, %s" % (T[6], f32(2.0 ** (64 if FORCE_SLOW else -64))))
    e("s_mov_b32 %s, %s" % (T[7], f32(2.0 ** 64)))
    e("s_waitcnt lgkmcnt(0)")
    e("s_nop 7")
    stamp()
    cm("Softmax guard. The loops above used 0 as a stand-in for the row max. That is exact while the row sum")
    cm("stays in [2^-64, 2^64] and the accumulators are finite; otherwise redo this tile with the true max.")
    fin, slow = newlab("att_fin"), newlab("att_slow")
    e("v_cmp_le_f32 %s, %s, %s" % (sM0, T[6], v(O + 8)))
    e("v_cmp_ge_f32 %s, %s, %s" % (sM1, T[7], v(O + 8)))
    e("v_pk_mul_f32 v[18:19], %s, 0 op_sel_hi:[1,0]" % v(O, 2))
    for p in range(1, 4):
        e("v_pk_fma_f32 v[18:19], %s, 0, v[18:19] op_sel_hi:[1,0,1]" % v(O + 2 * p, 2))
    e("s_and_b64 %s, %s, %s" % (sM0, sM0, sM1))
    e("v_cmp_eq_f32 vcc, v18, v19")
    e("s_nop 0")
    e("s_and_b64 %s, %s, vcc" % (sM0, sM0))
    e("s_cmp_eq_u64 %s, -1" % sM0)
    e("s_cbranch_scc0 %s" % slow)
    lab(fin)
    e("v_rcp_f32 v16, %s" % v(O + 8))
    e("s_nop 0")
    for p in range(4):
        e("v_pk_mul_f32 %s, %s, v[16:17] op_sel_hi:[1,0]" % (v(O + 2 * p, 2), v(O + 2 * p, 2)))
    for p in range(4):
        e("v_cvt_pk_bf16_f32 %s, %s, %s" % (v(20 + p), v(O + 2 * p), v(O + 2 * p + 1)))
    lstores(["buffer_store_dwordx4 v[20:23], %s, %s, %s offen" % (v(vL16), sWS, T[4])])
    flag(T[5], 0, local=2)
    e("s_waitcnt vmcnt(1)")
    e("s_barrier")
    keep = L[:]
    del L[:]
    lab(slow)
    l1, l2 = newlab("slow1"), newlab("slow2")
    addr(T[2], None, KVF, [(sL, KVF_L), (sHEAD, 131072)])
    e("v_mov_b32 %s, 0xff800000" % v(CN))
    e("s_mov_b32 %s, 0" % sIT)
    lab(l1)
    e("buffer_load_dwordx4 %s, %s, %s, %s offen sc1" % (v(KB[0], 4), v(vL16), sWS, T[2]))
    e("s_waitcnt vmcnt(0)")
    mfma(S[0], KB[0], Q, "0")
    e("s_nop 15")
    for i in range(8):
        e("v_max3_f32 %s, %s, %s, %s" % (v(CN), v(S[0] + 2 * i), v(S[0] + 2 * i + 1), v(CN)))
    e("s_add_u32 %s, %s, 2048" % (T[2], T[2]))
    e("s_add_u32 %s, %s, 1" % (sIT, sIT))
    e("s_cmp_lt_u32 %s, 64" % sIT)
    e("s_cbranch_scc1 %s" % l1)
    e("v_mov_b32 %s, %s" % (v(CN + 1), v(CN)))
    e("s_nop 1")
    e("v_permlane32_swap_b32 %s, %s" % (v(CN), v(CN + 1)))
    e("s_nop 1")
    e("v_max_f32 %s, %s, %s" % (v(CN), v(CN), v(CN + 1)))
    e("v_sub_f32 %s, 0, %s" % (v(CN), v(CN)))
    for i in range(1, 16):
        e("v_mov_b32 %s, %s" % (v(CN + i), v(CN)))
    for i in range(16):
        e("v_mov_b32 %s, 0" % v(O + i))
    addr(T[2], None, KVF, [(sL, KVF_L), (sHEAD, 131072)])
    e("s_mov_b32 %s, 0" % sIT)
    lab(l2)
    e("buffer_load_dwordx4 %s, %s, %s, %s offen sc1" % (v(KB[0], 4), v(vL16), sWS, T[2]))
    e("s_mov_b64 exec, %s" % sMV)
    e("buffer_load_dwordx4 %s, %s, %s, %s offen offset:1024 sc1" % (v(VB[0], 4), v(vL16), sWS, T[2]))
    e("buffer_load_dwordx4 %s, %s, %s, %s offen offset:1280 sc1" % (v(VB[0] + 4, 4), v(vL16), sWS, T[2]))
    e("s_mov_b64 exec, -1")
    e("s_waitcnt vmcnt(0)")
    mfma(S[0], KB[0], Q, CN)
    e("s_nop 15")
    for i in range(16):
        e("v_exp_f32 %s, %s" % (v(S[0] + i), v(S[0] + i)))
    e("s_nop 1")
    smf(VB[0], S[0])
    smf(VB[0] + 4, S[0] + 8)
    e("s_nop 15")
    e("s_add_u32 %s, %s, 2048" % (T[2], T[2]))
    e("s_add_u32 %s, %s, 1" % (sIT, sIT))
    e("s_cmp_lt_u32 %s, 64" % sIT)
    e("s_cbranch_scc1 %s" % l2)
    e("s_branch %s" % fin)
    TAIL.extend(L)
    L[:] = keep
    stamp()


def n512(kind):
    wo = kind == "wo"
    ph = "o" if wo else "g"
    cm("================ %s" % ("output projection + residual" if wo else "MLP down projection + residual"))
    NS, J = (16, 16) if wo else (43, 39)
    AK, AS = vACC, vACC + 16
    hl, done = newlab("n_h"), newlab("n_done")
    e("s_cmp_ge_u32 %s, 4" % sW)
    e("s_cbranch_scc1 %s" % hl)
    if not wo:
        srd(sTMP, 26, 1024)
        e("v_lshrrev_b32 %s, 1, %s" % (v(vPO), v(vH16)))
        e("s_lshl_b32 %s, %s, 6" % (T[0], sNT))
        for i in range(4):
            e("buffer_load_dwordx2 %s, %s, %s, %s offen offset:%d" % (v(176 + 2 * i, 2), v(vPO), sTMP, T[0], 16 * i))
    unpack(AK, vRES, 8)
    tr_rows(vW0, 128)
    e("v_bfe_u32 %s, v0, 3, 1" % v(vPD))
    e("v_xor_b32 %s, %s, %s" % (v(vPD), sKH, v(vPD)))
    e("v_lshl_or_b32 %s, %s, 6, %s" % (v(vW0), v(vPD), v(vW0)))
    e("s_mul_i32 %s, %s, %d" % (T[0], sKH, J * 2048))
    e("v_add_u32 %s, %s, %s" % (v(vW0), T[0], v(vW0)))
    e("v_xor_b32 %s, 64, %s" % (v(vW1), v(vW0)))
    if not wo:
        e("v_add_u32 %s, 0x10000, %s" % (v(vW2), v(vW0)))
        e("v_add_u32 %s, 0x10000, %s" % (v(vW3), v(vW1)))
    if wo:
        e("v_and_b32 %s, 15, v0" % v(vPO))
        slot(T[0], FA, [(sTBN, 32), (sKH, 16)])
        addr(T[1], sLB, OF, [(sTBN, XSTR), (sKH, 16384)])
    else:
        e("v_and_b32 %s, 7, v0" % v(vPO))
        slot(T[0], FH, [(sTBN, 16), (sKH, 7)])
        addr(T[1], sLB, HF, [(sTBN, HSTR), (sKH, 43 * 1024)])
    e("v_lshlrev_b32 %s, 3, %s" % (v(vPO), v(vPO)))
    if not wo:
        e("s_waitcnt vmcnt(0)")
        unpack(AS, 176, 8)
        for p in range(8):
            e("v_pk_add_f32 %s, %s, %s" % (v(AK + 2 * p, 2), v(AK + 2 * p, 2), v(AS + 2 * p, 2)))
        e("s_barrier")

    def rd(j, i):
        jj = j % J
        base, off = ((vW0, vW1)[i], jj * 2048) if jj < 32 else ((vW2, vW3)[i], (jj - 32) * 2048)
        d = vWB + (j % 3) * 8 + 4 * i
        e("ds_read_b64_tr_b16 %s, %s offset:%d" % (v(d, 2), v(base), off))
        e("ds_read_b64_tr_b16 %s, %s offset:%d" % (v(d + 2, 2), v(base), off + 1024))
    for j in range(2):
        for i in range(2):
            rd(j, i)
    poll(T[0])
    stamp()
    areg = lambda j: vA + 4 * (j % 32)
    load_frags(T[1], 0, DEPTH, areg)
    fine(ph)

    def late_addresses():
        e("s_and_b32 %s, %s, 1" % (T[2], sW))
        if wo:
            addr(T[0], None, 0, [(T[2], 4096), (sKH, 32768)])
            e("s_xor_b32 %s, %s, 32768" % (T[3], T[0]))
            publish_addr(X1F, ST1, 0, FO)
        else:
            addr(T[0], None, 98304, [(T[2], 4096), (sKH, 8192)])
            e("s_xor_b32 %s, %s, 8192" % (T[3], T[0]))
            publish_addr(XF, ST, LFL_L * 8, FX)
        e("v_add_u32 %s, %s, %s" % (v(vPO), T[0], v(vL16)))
        e("v_add_u32 %s, %s, %s" % (v(vPD), T[3], v(vL16)))
    sh = capture(late_addresses)
    for j in range(NS):
        issued = min(NS, DEPTH + j)
        if not wo and j == J - 2:
            e("s_barrier")
        e("s_waitcnt vmcnt(%d) lgkmcnt(%d)" % (issued - j - 1, 4 if j + 1 < NS else 0))
        if j in ((0, 4, 8, 15) if wo else (0, 11, 22, 42)):
            fine(ph)
        for i in ((0, 1) if j < NS - 1 else (1, 0)):
            acc = AK + 16 * i
            mfma(acc, vWB + (j % 3) * 8 + 4 * i, areg(j), "0" if (j == 0 and i == 1) else acc)
            if j + 2 < NS:
                rd(j + 2, i)
            if i == 0 and DEPTH + j < NS:
                load_frags(T[1], DEPTH + j, 1, areg, False)
            if j >= 2:
                g = (j - 2) * 2 + i
                for x in sh[2 * g:2 * g + 2]:
                    e(x)
        if j == (8 if wo else NS - J - 1):
            e("s_barrier")
    assert len(sh) <= 4 * (NS - 2)
    e("s_nop 10")
    for i in range(4):
        e("ds_write_b128 %s, %s offset:%d" % (v(vPO), v(AS + 4 * i, 4), 1024 * i))
    e("s_waitcnt lgkmcnt(0)")
    e("s_barrier")
    stamp()
    for i in range(4):
        e("ds_read_b128 %s, %s offset:%d" % (v(AS + 4 * i, 4), v(vPD), 1024 * i))
    for i in range(4):
        e("s_waitcnt lgkmcnt(%d)" % (3 - i))
        for p in (2 * i, 2 * i + 1):
            e("v_pk_add_f32 %s, %s, %s" % (v(AK + 2 * p, 2), v(AK + 2 * p, 2), v(AS + 2 * p, 2)))
    for p in range(8):
        e("v_cvt_pk_bf16_f32 %s, %s, %s" % (v(vRES + p), v(AK + 2 * p), v(AK + 2 * p + 1)))
    if wo:
        publish_x(AK, 20)
    else:
        last = newlab("last")
        e("s_cmp_lg_u32 %s, 0" % sL)
        e("s_cbranch_scc1 %s" % last)
        publish_x(AK, 20)
        e("s_branch %s" % done)
        lab(last)
        srd(sTMP, 28, 2048 * 1024)
        e("v_and_b32 v16, 31, v0")
        e("v_lshlrev_b32 v16, 10, v16")
        e("v_add_u32 v16, v16, %s" % v(vH16))
        addr(T[0], None, 0, [(sXCD, 262144), (sTBN, 32768), (sNT, 64)])
        for g in range(2):
            e("v_permlane32_swap_b32 %s, %s" % (v(vRES + 4 * g), v(vRES + 4 * g + 2)))
            e("v_permlane32_swap_b32 %s, %s" % (v(vRES + 4 * g + 1), v(vRES + 4 * g + 3)))
        for g in range(2):
            e("buffer_store_dwordx4 %s, v16, %s, %s offen offset:%d" % (v(vRES + 4 * g, 4), sTMP, T[0], 32 * g))
    e("s_branch %s" % done)
    lab(hl)
    if wo:
        voff_192(44)
        e("s_lshl_b32 %s, %s, 2" % (T[3], sHW))
        e("s_min_u32 %s, %s, 10" % (T[3], T[3]))
        addr(T[0], None, 8 * 16 * 2752, [(T[3], 16 * 2752), (sC, 192)])
        addr(T[1], None, 65536 + 8 * 3072, [(T[3], 3072)])
        dma_w1(2)
        e("s_mov_b32 %s, %s" % (T[3], T[0]))
        e("s_mov_b32 %s, %s" % (T[4], T[1]))
        w0, w1, w2 = newlab("wcs"), newlab("wcs"), newlab("wcs")
        e("s_cmp_lg_u32 %s, 0" % sL)
        e("s_cbranch_scc1 %s" % w0)
        colsum_begin(192)
        addr(T[0], None, 65536, [(sHW, 2 * 3072)])
        colsum_steps(2, 3072, 64, 1536)
        addr(T[0], None, 65536 + 22 * 3072, [(sHW, 2 * 3072)])
        colsum_steps(2, 3072, 64, 1536)
        lab(w0)
        e("s_mov_b32 %s, %s" % (T[0], T[3]))
        e("s_mov_b32 %s, %s" % (T[1], T[4]))
        e("s_barrier")
        dma_w1(2)
        e("s_barrier")
        e("s_cmp_lg_u32 %s, 3" % sHW)
        e("s_cbranch_scc1 %s" % w1)
        addr(T[0], None, 30 * 16 * 2752, [(sC, 192)])
        e("s_mov_b32 %s, %d" % (T[1], 58 * 1024))
        dma_w1(2)
        lab(w1)
        e("s_cmp_lg_u32 %s, 0" % sL)
        e("s_cbranch_scc1 %s" % done)
        cm("own late k-steps: 8-11 | 12-15 | 16-19 | 20-21 and 30-31")
        srd(sTMP, 22, 2752)
        e("v_and_b32 %s, 31, v0" % v(vPO))
        e("v_lshlrev_b32 %s, 1, %s" % (v(vPO), v(vPO)))
        addr(T[0], None, 0, [(sHW, 64), (sC, 192)])
        e("buffer_load_ushort v47, %s, %s, %s offen" % (v(vPO), sTMP, T[0]))
        addr(T[0], None, 65536 + 8 * 3072, [(sHW, 4 * 3072)])
        e("s_add_u32 %s, %s, %d" % (T[3], T[0], 2 * 3072))
        e("s_cmp_eq_u32 %s, 3" % sHW)
        e("s_cselect_b32 %s, %d, %s" % (T[3], 58 * 1024, T[3]))
        e("s_waitcnt vmcnt(0)")
        colsum_steps(2, 3072, 64, 1536)
        e("s_mov_b32 %s, %s" % (T[0], T[3]))
        colsum_steps(2, 3072, 64, 1536)
        colsum_partial()
        e("v_lshlrev_b32 v47, 16, v47")
        addr(T[0], None, B1_L, [(sHW, 128)])
        e("v_add_u32 v42, %s, v41" % T[0])
        e("ds_write_b32 v42, v47")
    else:
        e("s_waitcnt vmcnt(0)")
        fine("w")
        e("s_barrier")
        fine("w")
        e("s_lshr_b32 %s, %s, 1" % (T[3], sHW))
        e("s_and_b32 %s, %s, 1" % (T[4], sHW))
        addr(T[0], None, 78 * 8192, [(T[3], 86 * 8192), (T[4], 4 * 8192), (sNB, 128)])
        addr(T[1], None, 0, [(T[3], 78 * 1024), (T[4], 4096)])
        e("s_barrier")
        for k in range(4):
            e("s_add_u32 m0, %s, %d" % (T[1], 1024 * k))
            e("s_nop 0")
            dma1(40, T[0])
            e("s_add_u32 %s, %s, 8192" % (T[0], T[0]))
        e("s_waitcnt vmcnt(0)")
        e("s_barrier")
        stash_addr()
        e("s_barrier")
        e("s_cmp_lg_u32 %s, 0" % sL)
        e("s_cbranch_scc1 %s" % done)
        for k in range(24):
            e("ds_write_b128 v%d, %s offset:%d" % (42 if k < 4 else 41, v(vSTASH + 4 * k, 4), 1024 * (k if k < 4 else k - 4)))
    lab(done)
    stamp()


def ffn1():
    cm("================ MLP up projection + GELU")
    hl, done = newlab("f1_h"), newlab("f1_done")
    e("s_cmp_ge_u32 %s, 4" % sW)
    e("s_cbranch_scc1 %s" % hl)
    idle = newlab("f1_idle")
    e("s_cmp_eq_u32 %s, 15" % sC)
    e("s_cbranch_scc1 %s" % idle)
    TAIL.extend([idle + ":"] + ["    s_barrier"] * 3 + ["    s_branch " + done])

    e("v_and_b32 %s, 15, v0" % v(vPO))
    e("v_lshlrev_b32 %s, 3, %s" % (v(vPO), v(vPO)))
    slot(T[0], FO, [(sTBW, 16)])
    addr(T[1], sLB, X1F, [(sTBW, XSTR)])
    addr(T[2], sLB, ST1, [(sTBW, 4096)])
    e("v_add_u32 %s, %d, %s" % (v(vCA), CONST, v(vH16)))
    tr_rows(vW2, 192)
    e("v_add_u32 %s, 0x10000, %s" % (v(vW0), v(vW2)))
    e("v_add_u32 %s, %d, %s" % (v(vW1), 21 * 3072, v(vW0)))
    lds = Lds()

    def rd(ks, i):
        d = vWB + (ks % 3) * 12 + 4 * i
        base, off = (vW0, ks * 3072) if ks < 21 else (vW1, (ks - 21) * 3072) if ks < 30 else (vW2, 58 * 1024 + (ks - 30) * 3072)
        lds.op(("w", ks), "ds_read_b64_tr_b16 %s, %s offset:%d" % (v(d, 2), v(base), off + 64 * i))
        lds.op(("w", ks), "ds_read_b64_tr_b16 %s, %s offset:%d" % (v(d + 2, 2), v(base), off + 64 * i + 1536))

    def wait(name):
        n = lds.need(name)
        if n is not None:
            e("s_waitcnt lgkmcnt(%d)" % n)
    for ks in range(2):
        for i in range(3):
            rd(ks, i)
    poll(T[0])
    stamp()

    def item(n):
        if n < 32:
            load_frags(T[1], n, 1, lambda j: vA + 4 * j, n % 4 == 0)
        else:
            e("buffer_load_dwordx4 %s, %s, %s, %s offen offset:%d sc1" % (v(vSTS + 4 * (n - 32), 4), v(vL16), sWS, T[2], 1024 * (n - 32)))
    sched = [[ks + DEPTH] if ks + DEPTH < 32 else [] for ks in range(32)]
    for k in range(4):
        sched[3 + 2 * k].append(32 + k)
    order = list(range(DEPTH))
    for n in range(DEPTH):
        item(n)
    fine("f")
    c0 = -2.0 * 1.4426950408889634 * 0.7978845608028654
    GC = vSTS + 4

    def early():
        addr(T[4], sLB, HF, [(sTBW, HSTR), (sC, 6144)])
        e("s_add_u32 %s, %s, 4096" % (T[5], T[4]))
        slot(T[6], FH, [(sTBW, 16), (sC, 1)])
    mid = stats_code(True) + ["v_mul_f32 %s, %s, %s" % (v(vMU), v(vMU), v(vR)), "v_mov_b32 %s, %s" % (v(GC), f32(c0)),
                              "v_mov_b32 %s, %s" % (v(GC + 1), f32(c0 * 0.044715)), "v_mov_b32 %s, 1.0" % v(GC + 2)]
    sh = [(10, lambda x=x: e(x)) for x in capture(early)] + [(17, lambda x=x: e(x)) for x in mid]
    cm("bias' = b1 - mean*rstd*colsum is formed under the last MFMAs, in dead activation registers")
    rdc, fmc = [], []
    for t in range(3):
        rdc.append([(22 if t < 2 else 24, lambda t=t, k=k: lds.op(("c", t), "ds_read_b128 %s, %s offset:%d" % (
            v(16 + 32 * t + 4 * k, 4), v(vCA), 512 + 512 * (k // 4) + t * 128 + 32 * (k % 4)))) for k in range(8)])
        fmc.append([(22, lambda t=t: wait(("c", t)))] + [(22, lambda t=t, r=r: e("v_fma_f32 %s, -%s, %s, %s" % (
            v(32 + 32 * t + r), v(vMU), v(16 + 32 * t + r), v(32 + 32 * t + r)))) for r in range(16)])
    mix = lambda a, b: [x for k in range(max(len(a), len(b))) for x in a[2 * k:2 * k + 2] + b[k:k + 1]]
    sh += rdc[0] + rdc[1][:4] + mix(fmc[0], rdc[1][4:]) + mix(fmc[1], rdc[2]) + fmc[2]
    pos = 0
    for ks in range(32):
        if ks in (6, 22):
            e("s_barrier")
        newest = max(order.index(n) for n in ([ks, 35] if ks >= 17 else [ks]))
        lg = lds.need(("w", ks))
        e("s_waitcnt vmcnt(%d)%s" % (len(order) - 1 - newest, "" if lg is None else " lgkmcnt(%d)" % lg))
        if ks in FINEKS:
            fine("f")
        for i in range(3):
            mfma(vACC + 16 * i, vWB + (ks % 3) * 12 + 4 * i, vA + 4 * ks, "0" if ks == 0 else vACC + 16 * i)
            if ks + 2 < 32:
                rd(ks + 2, i)
            if i < len(sched[ks]):
                item(sched[ks][i])
                order.append(sched[ks][i])
            for _ in range(3 if ks < 30 else 5):
                if pos < len(sh) and ks >= sh[pos][0]:
                    sh[pos][1]()
                    pos += 1
    for x in sh[pos:]:
        x[1]()
    stamp()
    e("s_nop %d" % max(0, 9 - len(sh[pos:])))
    Z, P = 120, vWB
    for t in range(3):
        acc, b1 = vACC + 16 * t, 32 + 32 * t
        for p in range(8):
            e("v_pk_fma_f32 %s, %s, %s, %s op_sel_hi:[1,0,1]" %
              (v(acc + 2 * p, 2), v(acc + 2 * p, 2), v(vR, 2), v(b1 + 2 * p, 2)))
        for p in range(8):
            e("v_pk_mul_f32 %s, %s, %s" % (v(Z + 2 * p, 2), v(acc + 2 * p, 2), v(acc + 2 * p, 2)))
        for p in range(8):
            e("v_pk_fma_f32 %s, %s, %s, %s op_sel:[0,1,0] op_sel_hi:[1,1,0]" %
              (v(Z + 2 * p, 2), v(Z + 2 * p, 2), v(GC, 2), v(GC, 2)))
        for p in range(8):
            e("v_pk_mul_f32 %s, %s, %s" % (v(Z + 2 * p, 2), v(Z + 2 * p, 2), v(acc + 2 * p, 2)))
        for i in range(16):
            e("v_exp_f32 %s, %s" % (v(Z + i), v(Z + i)))
        for p in range(8):
            e("v_pk_add_f32 %s, %s, %s op_sel_hi:[1,0]" % (v(Z + 2 * p, 2), v(Z + 2 * p, 2), v(GC + 2, 2)))
        for i in range(16):
            e("v_rcp_f32 %s, %s" % (v(Z + i), v(Z + i)))
        for p in range(8):
            e("v_pk_mul_f32 %s, %s, %s" % (v(acc + 2 * p, 2), v(acc + 2 * p, 2), v(Z + 2 * p, 2)))
        for p in range(8):
            e("v_cvt_pk_bf16_f32 %s, %s, %s" % (v(P + 8 * t + p), v(acc + 2 * p), v(acc + 2 * p + 1)))
        lstores(["buffer_store_dwordx4 %s, %s, %s, %s offen offset:%d" %
                 (v(P + 8 * t + 4 * hh, 4), v(vL16), sWS, T[4 + (2 * t + hh) // 4], ((2 * t + hh) % 4) * 1024) for hh in range(2)])
        if t == 0:
            e("s_barrier")
        if t != 1:
            fine("f")
    flag(T[6], 0, local=2)
    e("s_branch %s" % done)
    lab(hl)
    h1 = newlab("fh1")
    voff_128(40)
    srd(sTMP, 24, 1376 * 1024)
    e("s_waitcnt vmcnt(0) lgkmcnt(0)")
    e("s_barrier")
    e("s_cmp_lg_u32 %s, 0" % sL)
    e("s_cbranch_scc1 %s" % h1)
    colsum_combine(CS1_L)
    e("s_waitcnt lgkmcnt(0)")
    lab(h1)
    e("s_barrier")
    fine("w")
    dma_w2(0, 0, 8, None)
    dma_w2(86, 78 * 1024, 8, None)
    dma_w2(32, 32 * 1024, 6, None)
    fine("w")
    e("s_barrier")
    fine("w")
    dma_w2(86 + 30, (78 + 30) * 1024, 12)
    dma_w2(54, 54 * 1024, 6)
    fine("w")
    lab(done)
    stamp()


def epilogue():
    e("s_add_u32 %s, %s, 1" % (sL, sL))
    e("s_add_u32 %s, %s, %d" % (sFB, sFB, LFL_L * 8))
    e("s_cmp_lt_u32 %s, 2" % sL)
    e("s_cbranch_scc1 L_layer")
    if PROFILE:
        e("s_memrealtime s[22:23]")
        e("s_waitcnt lgkmcnt(0)")
        stamp("s23")
        e("s_lshl_b32 %s, s2, 3" % T[0])
        e("s_add_u32 %s, %s, %s" % (T[0], T[0], sW))
        e("s_lshl_b32 %s, %s, 8" % (T[0], T[0]))
        e("s_add_u32 %s, %s, 0x%x" % (T[0], T[0], TSB))
        e("s_mov_b64 exec, 1")
        for i, r in enumerate([68, 18, 19] + list(range(STAMP0, STAMP0 + 30)) + [22, 23, 0, 1]):
            e("v_mov_b32 v16, s%d" % r)
            e("buffer_store_dword v16, off, %s, %s offset:%d" % (sWS, T[0], 4 * i))
        e("s_mov_b64 exec, 0xff")
        e("v_lshlrev_b32 v16, 2, v0")
        e("buffer_store_dword v5, v16, %s, %s offen offset:148" % (sWS, T[0]))
        e("s_mov_b64 exec, -1")
    if "--dbg" in sys.argv:
        sk = newlab("dbg")
        e("s_or_b32 %s, s2, %s" % (T[0], sW))
        e("s_cmp_lg_u32 %s, 0" % T[0])
        e("s_cbranch_scc1 %s" % sk)
        srd(sTMP, 30, 256)
        e("s_mov_b64 exec, 1")
        for i, r in enumerate([19, 72, 73, 74, 75, 76, 77, 80, 83, 86, 89, 90, 91, 95, 98, 101]):
            e("s_sub_u32 %s, s%d, s18" % (T[0], r))
            e("v_mov_b32 v16, %s" % T[0])
            e("buffer_store_dword v16, off, %s, 0 offset:%d" % (sTMP, 4 * i))
        e("s_mov_b64 exec, -1")
        lab(sk)
    if OPT("hold", 0):
        hl = newlab("hold")
        lab(hl)
        e("s_memrealtime s[70:71]")
        e("s_waitcnt lgkmcnt(0)")
        e("s_sub_u32 s70, s70, s68")
        e("s_cmp_lt_u32 s70, %d" % OPT("hold", 0))
        e("s_cbranch_scc1 %s" % hl)
    cm("advance the hand-off tag for the next launch")
    e("s_or_b32 %s, s2, %s" % (T[0], sW))
    e("s_cmp_lg_u32 %s, 0" % T[0])
    e("s_cbranch_scc1 L_end")
    e("s_mov_b64 exec, 1")
    e("buffer_store_dword %s, off, %s, 0" % (v(vFV), sWS))
    lab("L_end")
    e("s_endpgm")
    L.extend(TAIL)
    lab("L_code_end")


HEADER = open(f"cdna_kernels/{NAME}.s.ref").read().split("; Override launch")[0]


def main():
    prologue()
    p0()
    lab("L_layer")
    qkv()
    attention()
    n512("wo")
    ffn1()
    n512("f2")
    epilogue()
    k = NAME + "_kernel"
    out = HEADER
    out += "; @launch grid=(256,1,1) block=(512,1,1) lds=%d\n" % LDS_BYTES
    out += '.amdgcn_target "amdgcn-amd-amdhsa--gfx950"\n.text\n.globl %s\n.p2align 8\n.type %s,@function\n%s:\n' % (k, k, k)
    out += "\n".join(L) + "\n"
    out += """.section .rodata,"a"
.p2align 6
.amdhsa_kernel %s
  .amdhsa_next_free_vgpr 256
  .amdhsa_next_free_sgpr 102
  .amdhsa_accum_offset 256
  .amdhsa_group_segment_fixed_size 0
  .amdhsa_kernarg_size 88
  .amdhsa_user_sgpr_count 2
  .amdhsa_user_sgpr_kernarg_segment_ptr 1
  .amdhsa_system_sgpr_workgroup_id_x 1
.end_amdhsa_kernel
""" % k
    open(OUT, "w").write(out)


main()
```

```python
import struct
import sys

NAME = "interleave_layers__softmax_full_mha__mixer_channel_mlp__prompt"
PROFILE = "--prof" in sys.argv
CLK = "s_memrealtime" if "--rt" in sys.argv else "s_memtime"
FORCE_SLOW = "--slow" in sys.argv
FORCE_GLOBAL = "--global" in sys.argv
OUT = [a for a in sys.argv[1:] if not a.startswith("--")]
OUT = OUT[0] if OUT else f"cdna_kernels/{NAME}.s"


def OPT(name, default):
    a = [x.split("=")[1] for x in sys.argv if x.startswith("--%s=" % name)]
    return int(a[0]) if a else default


def f32(x):
    return "0x%08x" % struct.unpack("<I", struct.pack("<f", x))[0]


WS_SIZE = 0x10000000
FLG = 0x100000
FQG, FQG_L, FI = 0, 1024, 2048
KVF, KVF_L = 0x200000, 0x400000
ARENA, ARENA_X = 0x1000000, 0x200000
XSTR, HSTR = 33 * 1024, 97 * 1024
XF, OF, BLK, ST, LFL = 0, 0x48000, 0x90000, 0x158000, 0x160000
X1F, ST1, HF, QF, KVL = XF, ST, BLK, BLK, BLK + 32768
FX, FQ, FA, FO, FH, LFL_L = 0, 128, 256, 512, 640, 768
TSB = 0x4000000
DEPTH = OPT("depth", 10)
PACE = OPT("pace", 5)
QPACE = OPT("qpace", 10)
RED = 140 * 1024
CONST = 156 * 1024
CSQ_L, CS1_L, B1_L, STAT_L, PART_L = CONST, CONST + 512, CONST + 1024, CONST + 1536, CONST + 2560
LDS_BYTES = 160 * 1024
sWS, sTMP = "s[4:7]", "s[8:11]"
sW, sNONCE, sL, sLB, sFB = "s34", "s35", "s36", "s37", "s38"
sXCD, sJ, sTBW, sC, sTBN, sNB, sKH, sNT, sHEAD, sQB = ("s%d" % i for i in range(39, 49))
sHW = "s49"
T = ["s%d" % i for i in range(50, 60)]
sCNT, sIT = "s60", "s61"
sMV = "s[62:63]"
sM0, sM1 = "s[64:65]", "s[66:67]"
sMODE = "s3"
STAMP0 = 72
vLANE, vL16, vFV, vPO, vT5, vPD = 0, 1, 2, 4, 5, 6
vRES = 8
vA, vACC, vWB, vSTS = 16, 144, 192, 228
vW0, vW1, vMU, vW2, vR, vW3, vRQ, vCA, vTR, vK16, vVOF, vH16 = 244, 245, 246, 247, 248, 249, 250, 251, 252, 253, 254, 255
vSTASH = 128
QL = 128 * 1024
POLL_LIMIT = 1 << 16

L = []
TAIL = []
uid = [0]
nstamp = [0]


def e(s):
    L.append("    " + s)


def lab(n):
    L.append(n + ":")


def cm(s):
    L.append("    ; " + s)


def v(i, n=1):
    return "v%d" % i if n == 1 else "v[%d:%d]" % (i, i + n - 1)


def capture(f):
    n = len(L)
    f()
    out = [x.strip() for x in L[n:]]
    del L[n:]
    return out


def newlab(p):
    uid[0] += 1
    return "L_%s_%d" % (p, uid[0])


def stamp(fixed=None):
    if not PROFILE:
        return
    e(CLK + " s[70:71]")
    e("s_waitcnt lgkmcnt(0)")
    if fixed:
        e("s_mov_b32 %s, s70" % fixed)
        return
    e("s_mul_i32 s69, %s, 15" % sL)
    e("s_add_u32 m0, s69, %d" % nstamp[0])
    e("s_nop 1")
    e("s_movreld_b32 s%d, s70" % STAMP0)
    nstamp[0] += 1
    assert nstamp[0] <= 15


FINE = [a.split("=")[1] for a in sys.argv if a.startswith("--fine=")]
FINE = FINE[0] if FINE else None
nfine = [0]
FINEKS = eval([a.split('=')[1] for a in sys.argv if a.startswith('--ks=')][0]) if any(a.startswith('--ks=') for a in sys.argv) else (0, 8, 16, 31)


def fine(phase):
    if not PROFILE or FINE != phase:
        return
    e(CLK + " s[70:71]")
    e("s_waitcnt lgkmcnt(0)")
    sk = newlab("fs")
    e("s_cmp_lg_u32 %s, %d" % (sL, 0 if "--l0" in sys.argv else 1))
    e("s_cbranch_scc1 %s" % sk)
    e("v_writelane_b32 v5, s70, %d" % nfine[0])
    lab(sk)
    nfine[0] += 1


def srd(dst, lo, size):
    b = int(dst[2:dst.index(":")])
    e("s_mov_b32 s%d, s%d" % (b, lo))
    e("s_and_b32 s%d, s%d, 0xffff" % (b + 1, lo + 1))
    e("s_mov_b32 s%d, %s" % (b + 2, size if isinstance(size, str) else hex(size)))
    e("s_mov_b32 s%d, 0x20000" % (b + 3))


def poll(soff):
    a, b = newlab("poll"), newlab("pok")
    e("s_mov_b32 %s, %d" % (sCNT, POLL_LIMIT))
    lab(a)
    e("buffer_load_dwordx2 %s, %s, %s, %s offen sc1" % (v(vPD, 2), v(vPO), sWS, soff))
    e("s_waitcnt vmcnt(0)")
    e("v_cmp_eq_u64 vcc, %s, %s" % (v(vPD, 2), v(vFV, 2)))
    e("s_nop 1")
    e("s_cmp_eq_u64 vcc, -1")
    e("s_cbranch_scc1 %s" % b)
    e("s_sub_u32 %s, %s, 1" % (sCNT, sCNT))
    e("s_cbranch_scc0 %s" % a)
    e("s_endpgm")
    lab(b)


def lstores(lines):
    g, d = newlab("wt"), newlab("wtd")
    e("s_cmp_eq_u32 %s, 0" % sMODE)
    e("s_cbranch_scc1 %s" % g)
    for x in lines:
        e(x + (" nt" if "--nt" in sys.argv and x.startswith("buffer_store_dwordx4") else ""))
    lab(d)
    TAIL.append(g + ":")
    for x in lines:
        TAIL.append("    " + x + (" sc1" if x.startswith("buffer_store") else ""))
    TAIL.append("    s_branch " + d)


def flag(soff, n=0, local=False):
    if n is not None and not (OPT("nodrain", 0) and local == 2):
        e("s_waitcnt vmcnt(%d)" % n)
    if local:
        e("s_mov_b64 exec, 1")
        lstores(["buffer_store_dwordx2 %s, off, %s, %s" % (v(vFV, 2), sWS, soff)])
    else:
        e("v_lshlrev_b32 %s, 3, v0" % v(vPD))
        e("s_mov_b64 exec, 0xffff")
        e("buffer_store_dwordx2 %s, %s, %s, %s offen sc1" % (v(vFV, 2), v(vPD), sWS, soff))
    e("s_mov_b64 exec, -1")


def mode_poll(first=False):
    a, b, glob, out = newlab("mp"), newlab("mpok"), newlab("mpg"), newlab("mpo")
    e("v_and_b32 %s, 31, v0" % v(vPD))
    e("v_lshlrev_b32 %s, 10, %s" % (v(vPD), v(vPD)))
    addr(T[3], None, FLG + FI * 128, [(sXCD, 128)])
    e("v_add_u32 %s, %s, %s" % (v(vPD), T[3], v(vPD)))
    if first:
        e("v_add_u32 %s, %s, %s" % (v(vPD + 1), T[0], v(vPO)))
        e("v_cmp_gt_u32 vcc, 32, v0")
        e("s_nop 1")
        e("v_cndmask_b32 v60, %s, %s, vcc" % (v(vPD), v(vPD + 1)))
    else:
        e("v_mov_b32 v60, %s" % v(vPD))
    e("s_getreg_b32 %s, hwreg(HW_REG_XCC_ID, 0, 4)" % T[3])
    e("s_mov_b32 %s, %d" % (sCNT, POLL_LIMIT))
    e("s_mov_b32 %s, 1" % sMODE)
    lab(a)
    e("buffer_load_dwordx2 %s, v60, %s, 0 offen sc1" % (v(vPD, 2), sWS))
    e("s_waitcnt vmcnt(0)")
    e("v_xor_b32 %s, %s, %s" % (v(vPD + 1), v(vPD + 1), v(vFV + 1)))
    e("v_cmp_eq_u32 %s, %s, %s" % (sM0, v(vPD), v(vFV)))
    e("v_cmp_eq_u32 %s, %s, %s" % (sM1, T[3], v(vPD + 1)))
    e("v_cmp_gt_u32 vcc, 16, %s" % v(vPD + 1))
    e("s_nop 1")
    e("s_and_b64 %s, %s, %s" % (sM1, sM1, sM0))
    e("s_and_b64 vcc, vcc, %s" % sM0)
    if not FORCE_GLOBAL:
        e("s_cmp_eq_u64 %s, -1" % sM1)
        e("s_cbranch_scc1 %s" % out)
    e("s_cmp_eq_u32 vcc_hi, -1")
    e("s_cbranch_scc0 %s" % b)
    if not FORCE_GLOBAL:
        e("s_cmp_eq_u32 s67, -1")
        e("s_cbranch_scc0 %s" % glob)
    else:
        e("s_branch %s" % glob)
    lab(b)
    e("s_sub_u32 %s, %s, 1" % (sCNT, sCNT))
    e("s_cbranch_scc0 %s" % a)
    e("s_endpgm")
    lab(glob)
    e("s_mov_b32 %s, 0" % sMODE)
    if first:
        e("v_xor_b32 %s, 31, %s" % (v(vFV + 1), v(vFV + 1)))
        publish_addr(XF, ST, 0, FX)
        publish_x(None, 84)
        poll(T[0])
        e("v_xor_b32 %s, 31, %s" % (v(vFV + 1), v(vFV + 1)))
    lab(out)


def slot(dst, base, terms):
    e("s_add_u32 %s, %s, %d" % (dst, sFB, base * 8))
    for r, m in terms:
        e("s_mul_i32 %s, %s, %d" % (T[9], r, m * 8))
        e("s_add_u32 %s, %s, %s" % (dst, dst, T[9]))


def addr(dst, base_reg, const, terms):
    if base_reg is None:
        e("s_mov_b32 %s, 0x%x" % (dst, const))
    else:
        e("s_add_u32 %s, %s, 0x%x" % (dst, base_reg, const))
    for r, m in terms:
        e("s_mul_i32 %s, %s, %d" % (T[9], r, m))
        e("s_add_u32 %s, %s, %s" % (dst, dst, T[9]))


def load_frags(sg, first, n, reg_of, rebase=True):
    for j in range(first, first + n):
        if j % 4 == 0 or (j == first and rebase):
            e("s_add_u32 %s, %s, %d" % (T[8], sg, (j // 4) * 4096))
        e("buffer_load_dwordx4 %s, %s, %s, %s offen offset:%d sc1" %
          (v(reg_of(j), 4), v(vL16), sWS, T[8], (j % 4) * 1024))


def mfma(d, a, b, c):
    e("v_mfma_f32_32x32x16_bf16 %s, %s, %s, %s" % (v(d, 16), v(a, 4), v(b, 4), c if isinstance(c, str) else v(c, 16)))


def half_sum(a, b):
    e("s_nop 1")
    e("v_permlane32_swap_b32 %s, %s" % (v(a), v(b)))
    e("s_nop 1")
    e("v_add_f32 %s, %s, %s" % (v(a), v(a), v(b)))


def tile_stats(y, t):
    e("v_pk_add_f32 %s, %s, %s" % (v(t, 2), v(y, 2), v(y + 2, 2)))
    e("v_pk_mul_f32 %s, %s, %s" % (v(t + 2, 2), v(y, 2), v(y, 2)))
    for p in range(1, 8):
        if p > 1:
            e("v_pk_add_f32 %s, %s, %s" % (v(t, 2), v(t, 2), v(y + 2 * p, 2)))
        e("v_pk_fma_f32 %s, %s, %s, %s" % (v(t + 2, 2), v(y + 2 * p, 2), v(y + 2 * p, 2), v(t + 2, 2)))
    e("v_add_f32 %s, %s, %s" % (v(t), v(t), v(t + 1)))
    e("v_add_f32 %s, %s, %s" % (v(t + 2), v(t + 2), v(t + 3)))
    half_sum(t, t + 2)


def unpack(dst, src, n):
    for i in range(n):
        e("v_lshlrev_b32 %s, 16, %s" % (v(dst + 2 * i), v(src + i)))
        e("v_and_b32 %s, 0xffff0000, %s" % (v(dst + 2 * i + 1), v(src + i)))


def publish_addr(xoff, stoff, fbase_add, fbase):
    addr(T[4], sLB, xoff, [(sTBN, XSTR), (sNT, 2048)])
    e("s_lshr_b32 %s, %s, 2" % (T[6], sNT))
    e("s_and_b32 %s, %s, 3" % (T[7], sNT))
    addr(T[5], sLB, stoff, [(sTBN, 4096), (T[6], 1024), (T[7], 4)])
    slot(T[6], fbase, [(sTBN, 16), (sNT, 1)])
    if fbase_add:
        e("s_add_u32 %s, %s, %d" % (T[6], T[6], fbase_add))


def publish_x(y, t):
    lstores(["buffer_store_dwordx4 %s, %s, %s, %s offen" % (v(vRES, 4), v(vL16), sWS, T[4]),
             "buffer_store_dwordx4 %s, %s, %s, %s offen offset:1024" % (v(vRES + 4, 4), v(vL16), sWS, T[4])])
    if y is not None:
        tile_stats(y, t)
    lstores(["buffer_store_dword %s, %s, %s, %s offen" % (v(t), v(vL16), sWS, T[5])])
    flag(T[6], local=2)


def prologue():
    e("s_cmp_ge_u32 s2, 256")
    e("s_cbranch_scc1 L_end")
    e("s_load_dwordx16 s[12:27], s[0:1], 0")
    e("s_load_dwordx4 s[28:31], s[0:1], 64")
    e("s_load_dwordx2 s[32:33], s[0:1], 80")
    e("v_lshrrev_b32 v1, 6, v0")
    e("v_and_b32 v0, 63, v0")
    e("v_readfirstlane_b32 %s, v1" % sW)
    e("v_lshlrev_b32 %s, 4, v0" % v(vL16))
    cm("column part of a transposing-read address: (lane&3)*8 + ((lane>>4)&1)*32")
    e("v_and_b32 %s, 3, v0" % v(vTR))
    e("v_lshlrev_b32 %s, 3, %s" % (v(vTR), v(vTR)))
    e("v_bfe_u32 %s, v0, 4, 1" % v(vT5))
    e("v_lshl_or_b32 %s, %s, 5, %s" % (v(vTR), v(vT5), v(vTR)))
    e("v_lshrrev_b32 %s, 5, v0" % v(vT5))
    e("v_lshlrev_b32 %s, 4, %s" % (v(vH16), v(vT5)))
    cm("K fragments are stored with token bits 2 and 3 swapped (matches the sparse-MFMA key order)")
    e("v_and_b32 %s, 0x33, v0" % v(vK16))
    e("v_and_b32 %s, 4, v0" % v(vPO))
    e("v_lshl_or_b32 %s, %s, 1, %s" % (v(vK16), v(vPO), v(vK16)))
    e("v_and_b32 %s, 8, v0" % v(vPO))
    e("v_lshrrev_b32 %s, 1, %s" % (v(vPO), v(vPO)))
    e("v_or_b32 %s, %s, %s" % (v(vK16), v(vK16), v(vPO)))
    e("v_lshlrev_b32 %s, 4, %s" % (v(vK16), v(vK16)))
    cm("V store offset: head parity*128K + half*512 + d*16")
    e("v_and_b32 %s, 15, v0" % v(vVOF))
    e("v_lshlrev_b32 %s, 4, %s" % (v(vVOF), v(vVOF)))
    e("v_lshl_or_b32 %s, %s, 9, %s" % (v(vVOF), v(vT5), v(vVOF)))
    e("v_bfe_u32 %s, v0, 4, 1" % v(vPO))
    e("v_lshl_or_b32 %s, %s, 17, %s" % (v(vVOF), v(vPO), v(vVOF)))
    e("s_and_b32 %s, s2, 7" % sXCD)
    e("s_lshr_b32 %s, s2, 3" % sJ)
    e("s_and_b32 %s, %s, 3" % (sHW, sW))
    e("s_and_b32 %s, %s, 15" % (sC, sJ))
    if OPT("cx", 0):
        e("s_xor_b32 %s, %s, %d" % (sC, sC, OPT("cx", 0)))
    e("s_lshr_b32 %s, %s, 4" % (T[0], sJ))
    e("s_lshl_b32 %s, %s, 2" % (T[0], T[0]))
    e("s_add_u32 %s, %s, %s" % (sTBW, T[0], sHW))
    e("s_and_b32 %s, %s, 7" % (sNB, sJ))
    e("s_lshr_b32 %s, %s, 3" % (T[0], sJ))
    e("s_mov_b32 %s, %s" % (sHEAD, sJ))
    e("s_lshl_b32 %s, %s, 1" % (sTBN, T[0]))
    e("s_and_b32 %s, %s, 1" % (T[0], sW))
    e("s_add_u32 %s, %s, %s" % (sTBN, sTBN, T[0]))
    e("s_lshr_b32 %s, %s, 1" % (sKH, sHW))
    e("s_lshl_b32 %s, %s, 1" % (sNT, sNB))
    e("s_add_u32 %s, %s, %s" % (sNT, sNT, sKH))
    e("s_mov_b32 s62, 0xffff")
    e("s_mov_b32 s63, 0xffff")
    e("s_mov_b32 %s, 0" % sL)
    addr(sLB, None, ARENA, [(sXCD, ARENA_X)])
    e("s_add_u32 %s, %s, 0x%x" % (sFB, sLB, LFL))
    e("s_waitcnt lgkmcnt(0)")
    srd(sWS, 32, WS_SIZE)
    srd(sTMP, 12, 2048 * 1024)
    cm("hand-off tag: ws[0] only tells this launch's flags from an earlier launch's")
    e("s_load_dword %s, s[32:33], 0" % sNONCE)
    if OPT("hold", 0) and not PROFILE:
        e("s_memrealtime s[70:71]")
        e("s_waitcnt lgkmcnt(0)")
        e("s_mov_b32 s68, s70")
    if PROFILE:
        e("s_memrealtime s[70:71]")
        e("s_waitcnt lgkmcnt(0)")
        e("s_mov_b32 s68, s70")
        stamp("s18")


def make_tag():
    e("s_waitcnt lgkmcnt(0)")
    e("s_add_u32 %s, %s, 16" % (sNONCE, sNONCE))
    e("v_mov_b32 %s, %s" % (v(vFV), sNONCE))
    e("v_not_b32 %s, %s" % (v(vFV + 1), v(vFV)))


def p0():
    cm("================ P0 (waves 0-3): x tile -> residual registers, fragments and row statistics")
    p0end, noid, nox, npt = newlab("p0end"), newlab("noid"), newlab("nox"), newlab("npt")
    e("s_cmp_ge_u32 %s, 4" % sW)
    e("s_cbranch_scc1 %s" % nox)
    e("v_and_b32 %s, 31, v0" % v(vPO))
    e("v_lshlrev_b32 %s, 10, %s" % (v(vPO), v(vPO)))
    e("v_add_u32 %s, %s, %s" % (v(vPO), v(vPO), v(vH16)))
    addr(T[0], None, 0, [(sXCD, 262144), (sTBN, 32768), (sNT, 64)])
    for g in range(2):
        e("buffer_load_dwordx4 %s, %s, %s, %s offen offset:%d" % (v(vRES + 4 * g, 4), v(vPO), sTMP, T[0], 32 * g))
    PT = OPT("pt", 6)
    if PT & 1:
        cm("lines this wave is about to write: bring them into L2 now so the stores need no fill")
        e("v_lshlrev_b32 v17, 7, v0")
        addr(T[0], sLB, XF, [(sTBN, XSTR), (sNT, 2048)])
        e("s_mov_b64 exec, 0xffff")
        e("buffer_load_dword v18, v17, %s, %s offen sc1" % (sWS, T[0]))
        e("s_mov_b64 exec, -1")
    lab(nox)
    e("v_lshlrev_b32 v17, 7, v0")
    if OPT("qft", 2):
        nq = newlab("nq")
        e("s_cmp_lg_u32 %s, %d" % (sW, OPT("qftw", 5)))
        e("s_cbranch_scc1 %s" % nq)
        srd(sTMP, 14, 512 * 3072)
        if OPT("qft", 2) == 1:
            cm("first touch of Wqkv, one line per lane, spread over all workgroups")
            e("s_mul_i32 %s, s2, %d" % (T[0], 48 * 128))
            e("v_mov_b32 v19, v17")
        else:
            cm("one 128-byte column class of Wqkv arrives slowest: the die group requests its lines up front")
            addr(T[0], None, 384, [(sJ, 48 * 1024)])
            e("v_lshlrev_b32 v19, 10, v0")
        e("s_mov_b32 exec_hi, 0xffff")
        e("buffer_load_dword v16, v19, %s, %s offen" % (sTMP, T[0]))
        e("s_mov_b64 exec, -1")
        lab(nq)
    e("s_cmp_lg_u32 %s, 4" % sW)
    e("s_cbranch_scc1 %s" % npt)
    cm("statistics and flag lines receive partial writes: bring them into L2 first")
    addr(T[0], sLB, ST, [(sJ, 11 * 128)])
    e("s_mov_b64 exec, 0x7ff")
    e("buffer_load_dword v18, v17, %s, %s offen sc1" % (sWS, T[0]))
    e("s_mov_b64 exec, -1")
    lab(npt)
    if OPT("cpf", 0):
        ncp = newlab("ncp")
        e("s_cmp_lg_u32 %s, 6" % sW)
        e("s_cbranch_scc1 %s" % ncp)
        cm("pull this kernel's instruction lines into the die's L2 (8 lines per workgroup)")
        e("s_getpc_b64 s[64:65]")
        lab("L_pc")
        e("s_lshl_b32 %s, %s, 10" % (T[0], sJ))
        e("v_add_u32 v20, %s, v17" % T[0])
        e("v_min_u32 v20, L_code_end-L_pc-4, v20")
        e("v_mov_b32 v21, s65")
        e("v_add_co_u32 v20, vcc, s64, v20")
        e("s_nop 1")
        e("v_addc_co_u32 v21, vcc, 0, v21, vcc")
        e("s_mov_b64 exec, 0xff")
        e("global_load_dword v18, v[20:21], off")
        e("s_mov_b64 exec, -1")
        lab(ncp)
    if OPT("tlb", 0):
        ntl = newlab("ntl")
        e("s_cmp_lg_u32 %s, 5" % sW)
        e("s_cbranch_scc1 %s" % ntl)
        cm("touch this die's slice of every K/V head block early (address translation)")
        e("v_lshlrev_b32 v19, 17, v0")
        addr(T[0], None, KVF, [(sXCD, 16384)])
        e("buffer_load_dword v18, v19, %s, %s offen sc1" % (sWS, T[0]))
        lab(ntl)
    e("s_cmp_ge_u32 %s, 4" % sW)
    e("s_cbranch_scc1 %s" % p0end)
    stamp("s0")
    make_tag()
    e("s_getreg_b32 %s, hwreg(HW_REG_XCC_ID, 0, 4)" % T[7])
    e("s_mov_b32 %s, 1" % sMODE)
    e("v_xor_b32 %s, %s, %s" % (v(vFV + 1), T[7], v(vFV + 1)))
    publish_addr(XF, ST, 0, FX)
    nid = newlab("nid")
    e("s_cmp_lg_u32 %s, 0" % sW)
    e("s_cbranch_scc1 %s" % nid)
    e("s_lshl_b32 %s, s2, 7" % T[8])
    e("s_add_u32 %s, %s, 0x%x" % (T[8], T[8], FLG + FI * 128))
    flag(T[8], None)
    npf = PT & 1
    e("s_waitcnt vmcnt(%d)" % (1 + npf))
    e("s_branch %s" % noid)
    lab(nid)
    e("s_waitcnt vmcnt(%d)" % npf)
    lab(noid)
    stamp("s1")
    for g in range(2):
        e("v_permlane32_swap_b32 %s, %s" % (v(vRES + 4 * g), v(vRES + 4 * g + 2)))
        e("v_permlane32_swap_b32 %s, %s" % (v(vRES + 4 * g + 1), v(vRES + 4 * g + 3)))
    e("s_nop 0")
    unpack(66, vRES, 8)
    publish_x(66, 84)
    e("s_nop 0")
    e("v_not_b32 %s, %s" % (v(vFV + 1), v(vFV)))
    lab(p0end)
    stamp("s19")


def tr_rows(dst, rowbytes):
    e("v_bfe_u32 %s, v0, 2, 2" % v(dst))
    e("v_lshrrev_b32 %s, 2, %s" % (v(vPD), v(vH16)))
    e("v_add_u32 %s, %s, %s" % (v(dst), v(dst), v(vPD)))
    e("v_mul_u32_u24 %s, %d, %s" % (v(dst), rowbytes, v(dst)))
    e("v_add_u32 %s, %s, %s" % (v(dst), v(dst), v(vTR)))


def voff_128(dst):
    e("v_lshrrev_b32 %s, 3, v0" % v(dst))
    e("v_lshlrev_b32 %s, 10, %s" % (v(dst), v(dst)))
    e("v_and_b32 %s, 7, v0" % v(vPD))
    e("v_lshrrev_b32 %s, 2, v0" % v(vPD + 1))
    e("v_and_b32 %s, 4, %s" % (v(vPD + 1), v(vPD + 1)))
    e("v_xor_b32 %s, %s, %s" % (v(vPD), v(vPD), v(vPD + 1)))
    e("v_lshl_or_b32 %s, %s, 4, %s" % (v(dst), v(vPD), v(dst)))


def voff_192(dst):
    for i in range(3):
        e("v_add_u32 %s, %d, v0" % (v(vPD), 64 * i))
        e("v_mul_u32_u24 %s, 5462, %s" % (v(vPD + 1), v(vPD)))
        e("v_lshrrev_b32 %s, 16, %s" % (v(vPD + 1), v(vPD + 1)))
        e("v_mul_u32_u24 %s, %d, %s" % (v(dst + i), 2752 - 192, v(vPD + 1)))
        e("v_lshl_add_u32 %s, %s, 4, %s" % (v(dst + i), v(vPD), v(dst + i)))


def dma1(vo, sg):
    e("buffer_load_dwordx4 %s, %s, %s offen lds" % (v(vo), sTMP, sg))


def dma_loop(n, body):
    lp = newlab("dl")
    e("s_mov_b32 %s, %d" % (T[2], n))
    lab(lp)
    body()
    e("s_sub_u32 %s, %s, 1" % (T[2], T[2]))
    e("s_cmp_lg_u32 %s, 0" % T[2])
    e("s_cbranch_scc1 %s" % lp)


def dma_w2(piece0, lds0, n, pace=PACE):
    addr(T[0], None, piece0 * 8192, [(sHW, n * 8192), (sNB, 128)])
    addr(T[1], None, lds0, [(sHW, n * 1024)])

    def body():
        e("s_mov_b32 m0, %s" % T[1])
        e("s_add_u32 %s, %s, 1024" % (T[1], T[1]))
        dma1(40, T[0])
        e("s_add_u32 %s, %s, 8192" % (T[0], T[0]))
        if pace:
            e("s_waitcnt vmcnt(%d)" % pace)
    dma_loop(n, body)


def dma_w1(n):
    def body():
        for i in range(3):
            e("s_add_u32 m0, %s, %d" % (T[1], 1024 * i))
            e("s_nop 0")
            dma1(44 + i, T[0])
        e("s_add_u32 %s, %s, %d" % (T[0], T[0], 16 * 2752))
        e("s_add_u32 %s, %s, 3072" % (T[1], T[1]))
    dma_loop(n, body)


def wq_begin():
    srd(sTMP, 14, 512 * 3072)
    e("v_lshrrev_b32 v40, 2, v0")
    e("v_mul_u32_u24 v40, 3072, v40")
    e("v_and_b32 v41, 3, v0")
    e("v_lshl_or_b32 v40, v41, 4, v40")
    addr(T[3], None, 0, [(sHW, 2 * 49152), (sC, 64)])
    e("s_lshl_b32 %s, %s, 11" % (T[4], sHW))


def wq_chunk(pace=None):
    for dk in range(2):
        for i in range(3):
            e("s_add_u32 m0, %s, %d" % (T[4], i * 31744 + dk * 1024))
            e("s_nop 0")
            e("buffer_load_dwordx4 v40, %s, %s offen offset:%d lds" % (sTMP, T[3], i * 1024))
            if pace is not None:
                e("s_waitcnt vmcnt(%d)" % pace)
        e("s_add_u32 %s, %s, %d" % (T[3], T[3], 49152 if dk == 0 else 7 * 49152))
    e("s_add_u32 %s, %s, 8192" % (T[4], T[4]))


CSA = 64


def colsum_begin(rowbytes):
    tr_rows(43, rowbytes)
    for r in range(48):
        e("v_mov_b32 v%d, 0" % (CSA + r))
    for r in range(4):
        e("v_mov_b32 v%d, 0x3f803f80" % (52 + r))


def colsum_steps(n, step, tilestep, second):
    assert n == 2
    e("v_add_u32 v42, %s, v43" % T[0])
    e("v_add_u32 v48, %d, v42" % (2 * tilestep))
    for k in range(2):
        for i in range(3):
            for h in range(2):
                e("ds_read_b64_tr_b16 %s, v%d offset:%d" % (v(16 + 12 * k + 4 * i + 2 * h, 2), 48 if i == 2 else 42,
                                                            k * step + (0 if i == 2 else i * tilestep) + h * second))
    for k in range(6):
        e("s_waitcnt lgkmcnt(%d)" % (10 - 2 * k))
        mfma(CSA + 16 * (k % 3), 52, 16 + 4 * k, CSA + 16 * (k % 3))


def colsum_partial():
    e("v_and_b32 v41, 31, v0")
    e("v_lshlrev_b32 v41, 2, v41")
    addr(T[0], None, PART_L, [(sHW, 384)])
    e("v_add_u32 v42, %s, v41" % T[0])
    e("s_nop 7")
    for i in range(3):
        e("ds_write_b32 v42, v%d offset:%d" % (CSA + 16 * i, 128 * i))


def colsum_combine(dst_l):
    e("s_min_u32 %s, %s, 2" % (T[0], sHW))
    e("s_lshl_b32 %s, %s, 7" % (T[0], T[0]))
    e("v_add_u32 v41, %s, v41" % T[0])
    e("v_add_u32 v42, %d, v41" % PART_L)
    for k in range(4):
        e("ds_read_b32 v%d, v42 offset:%d" % (16 + k, 384 * k))
    e("v_add_u32 v41, %d, v41" % dst_l)
    e("s_waitcnt lgkmcnt(0)")
    e("v_add_f32 v16, v16, v17")
    e("v_add_f32 v18, v18, v19")
    e("v_add_f32 v16, v16, v18")
    e("ds_write_b32 v41, v16")


def stats_code(second_ln):
    c = []
    for k in range(1, 16):
        c.append("v_add_f32 %s, %s, %s" % (v(vSTS), v(vSTS), v(vSTS + k)))
    c += ["v_mov_b32 %s, %s" % (v(vSTS + 1), v(vSTS)), "s_nop 1",
          "v_permlane32_swap_b32 %s, %s" % (v(vSTS), v(vSTS + 1)), "s_nop 1",
          "v_mul_f32 %s, %s, %s" % (v(vMU), f32(1.0 / 512), v(vSTS)),
          "v_mul_f32 %s, %s, %s" % (v(vSTS + 1), f32(1.0 / 512), v(vSTS + 1)),
          "v_fma_f32 %s, -%s, %s, %s" % (v(vSTS + 1), v(vMU), v(vMU), v(vSTS + 1)),
          "v_max_f32 %s, 0, %s" % (v(vSTS + 1), v(vSTS + 1)),
          "v_add_f32 %s, %s, %s" % (v(vSTS + 2), f32(1e-5), v(vSTS + 1)),
          "v_rsq_f32 %s, %s" % (v(vR), v(vSTS + 2)), "s_nop 0"]
    if second_ln:
        c += ["v_mul_f32 %s, %s, %s" % (v(vSTS + 2), v(vR), v(vR)),
              "v_mul_f32 %s, %s, %s" % (v(vSTS + 2), v(vSTS + 2), v(vSTS + 1)),
              "v_add_f32 %s, %s, %s" % (v(vSTS + 2), f32(1e-5), v(vSTS + 2)),
              "v_rsq_f32 %s, %s" % (v(vSTS + 2), v(vSTS + 2)), "s_nop 0",
              "v_mul_f32 %s, %s, %s" % (v(vR), v(vR), v(vSTS + 2))]
    return c


def center(acc, cs, p):
    e("v_pk_fma_f32 %s, %s, %s, %s op_sel_hi:[0,1,1] neg_lo:[1,0,0] neg_hi:[1,0,0]" %
      (v(acc + 2 * p, 2), v(vMU, 2), v(cs + 2 * p, 2), v(acc + 2 * p, 2)))


PKV = 116


def stash_addr():
    e("s_mul_i32 %s, %s, 24576" % (T[0], sHW))
    e("v_add_u32 v42, %s, %s" % (T[0], v(vL16)))


class Lds:
    def __init__(self):
        self.ops, self.done = [], 0

    def op(self, name, text):
        e(text)
        self.ops.append(name)

    def need(self, name):
        last = max(i for i, n in enumerate(self.ops) if n == name)
        if last < self.done:
            return None
        self.done = last + 1
        return min(15, len(self.ops) - 1 - last)


def qkv():
    cm("================ QKV projection: K and V tiles first, their epilogue runs under the Q tile's MFMAs")
    hl, done = newlab("qkv_h"), newlab("qkv_done")
    e("s_cmp_ge_u32 %s, 4" % sW)
    e("s_cbranch_scc1 %s" % hl)
    e("v_and_b32 %s, 15, v0" % v(vPO))
    e("v_lshlrev_b32 %s, 3, %s" % (v(vPO), v(vPO)))
    slot(T[0], FX, [(sTBW, 16)])
    addr(T[1], sLB, XF, [(sTBW, XSTR)])
    addr(T[2], sLB, ST, [(sTBW, 4096)])
    e("v_add_u32 %s, %d, %s" % (v(vCA), CONST, v(vH16)))
    tr_rows(vW0, 64)
    e("v_add_u32 %s, 0x10000, %s" % (v(vW1), v(vW0)))
    l1, l2 = newlab("fx"), newlab("fx")
    e("s_cmp_lg_u32 %s, 0" % sL)
    e("s_cbranch_scc1 %s" % l1)
    mode_poll(True)
    e("s_branch %s" % l2)
    lab(l1)
    poll(T[0])
    lab(l2)
    stamp()

    def item(n):
        if n < 32:
            load_frags(T[1], n, 1, lambda j: vA + 4 * j, n % 4 == 0)
        else:
            e("buffer_load_dwordx4 %s, %s, %s, %s offen offset:%d sc1" % (v(vSTS + 4 * (n - 32), 4), v(vL16), sWS, T[2], 1024 * (n - 32)))
    H = 16
    sched = [[ks + DEPTH] if ks + DEPTH < 32 else [] for ks in range(32)]
    for k in range(4):
        sched[3 + 2 * k].append(32 + k)
    order = list(range(DEPTH))
    for n in range(DEPTH):
        item(n)
    e("s_barrier")
    lds = Lds()

    def rd(ks, i, d):
        base, off = (vW0, i * 32768 + ks * 1024) if i < 2 else (vW1, ks * 1024)
        lds.op(("w", i, ks), "ds_read_b64_tr_b16 %s, %s offset:%d" % (v(d, 2), v(base), off))
        lds.op(("w", i, ks), "ds_read_b64_tr_b16 %s, %s offset:%d" % (v(d + 2, 2), v(base), off + 512))

    def wait(name):
        n = lds.need(name)
        if n is not None:
            e("s_waitcnt lgkmcnt(%d)" % n)
    wb1 = lambda ks, i: vWB + (ks % 3) * 12 + 4 * i
    wb2 = lambda ks: vWB + (12 * (ks - H) if ks < H + 3 else [4, 8, 16, 20, 28, 32, 0, 12, 24][(ks - H - 3) % 9])
    tiles = lambda ks: (0, 1, 2) if ks < H else (1, 2)
    for ks in range(2):
        for i in tiles(ks):
            rd(ks, i, wb1(ks, i))
    fine("q")
    SA, SB, SC = vPO, vPD, vPD + 1
    KC, VM, VR, VC, QC = vA, vA + 16, vA + 32, vA + 48, vSTS

    def addresses():
        addr(T[4], None, KVF, [(sL, KVF_L), (sC, 2 * 131072), (sXCD, 16384), (sTBW, 2048)])
        e("s_add_u32 %s, %s, 0x20000" % (T[5], T[4]))
        slot(T[6], FQ, [(sC, 8), (sTBW, 1)])
        addr(T[7], None, FLG + FQG * 128, [(sL, FQG_L * 128), (sC, 8192), (sXCD, 1024), (sTBW, 128)])
        addr(T[3], sLB, QF, [(sC, 2048), (sTBW, HSTR)])
        addr(T[2], sLB, KVL, [(sC, 4096), (sTBW, HSTR)])
        e("v_and_b32 %s, 31, v0" % v(SA))
        e("v_lshlrev_b32 %s, 2, %s" % (v(SA), v(SA)))
        addr(T[0], None, STAT_L, [(sHW, 256)])
        e("v_add_u32 %s, %s, %s" % (v(SB), T[0], v(SA)))
        e("v_add_u32 %s, %s, %s" % (v(SC), T[0], v(vH16)))
        e("v_add_u32 %s, %d, %s" % (v(SA), CSQ_L, v(SA)))
    sh = [lambda x=x: e(x) for x in capture(addresses) + stats_code(False)]
    sh.append(lambda: lds.op("sw", "ds_write_b32 %s, %s" % (v(SB), v(vMU))))
    sh.append(lambda: lds.op("sw", "ds_write_b32 %s, %s offset:128" % (v(SB), v(vR))))
    sh.append(lambda: e("v_mul_f32 %s, %s, %s" % (v(vRQ), f32(0.25 * 1.4426950408889634), v(vR))))
    for i in range(4):
        sh.append(lambda i=i: lds.op("kc", "ds_read_b128 %s, %s offset:%d" % (v(KC + 4 * i, 4), v(vCA), 128 + 32 * i)))
    for i in range(4):
        sh.append(lambda i=i: lds.op("vc", "ds_read_b128 %s, %s offset:%d" % (v(VM + 4 * i, 4), v(SC), 32 * i)))
        sh.append(lambda i=i: lds.op("vc", "ds_read_b128 %s, %s offset:%d" % (v(VR + 4 * i, 4), v(SC), 128 + 32 * i)))
    sh.append(lambda: lds.op("vc", "ds_read_b32 %s, %s offset:256" % (v(VC), v(SA))))
    nslot = sum(len(tiles(ks)) for ks in range(10, 32))
    nsal = len(capture(addresses))
    pos = 0
    for ks in range(32):
        if ks in (16, OPT("ptk", 22)):
            e("s_barrier")
        newest = max(order.index(n) for n in ([ks, 35] if ks >= 18 else [ks]))
        e("s_waitcnt vmcnt(%d) lgkmcnt(%d)" % (len(order) - 1 - newest, lds.need(("w", 2, ks))))
        if ks in FINEKS:
            fine("q")
        for m, i in enumerate(tiles(ks)):
            c = "0" if ks == 0 else vACC + 16 * i
            if i == 2:
                mfma(vACC + 32, vA + 4 * ks, wb1(ks, i), c)
            else:
                mfma(vACC + 16 * i, wb1(ks, i), vA + 4 * ks, c)
            if ks + 2 < 32 and i in tiles(ks + 2):
                rd(ks + 2, i, wb1(ks + 2, i))
            elif ks >= 30 and (i == 1 or ks == 30):
                k2 = H + (ks - 30) * 2 + i - 1
                rd(k2, 0, wb2(k2))
            if m < len(sched[ks]):
                item(sched[ks][m])
                order.append(sched[ks][m])
            if ks >= 10:
                for _ in range(2):
                    if pos < len(sh) and (pos < nsal or ks >= 18):
                        sh[pos]()
                        pos += 1
    assert pos == len(sh), (pos, len(sh))
    cm("remaining Q k-steps with the K and V epilogues underneath")
    fill = [lambda: wait("kc")]
    aK, aV = vACC + 16, vACC + 32
    for i in range(4):
        fill.append(lambda i=i: lds.op("qc", "ds_read_b128 %s, %s offset:%d" % (v(QC + 4 * i, 4), v(vCA), 32 * i)))
    fill.append(lambda: e("v_and_b32 %s, 0x1ffff, %s" % (v(SC), v(vVOF))))
    fill.append(lambda: e("v_lshrrev_b32 %s, 17, %s" % (v(SB), v(vVOF))))
    fill.append(lambda: e("v_lshl_or_b32 %s, %s, 11, %s" % (v(SC), v(SB), v(SC))))
    for r in range(16):
        fill.append(lambda r=r: e("v_fma_f32 %s, -%s, %s, %s" % (v(aK + r), v(vMU), v(KC + r), v(aK + r))))
    for r in range(16):
        fill.append(lambda r=r: e("v_mul_f32 %s, %s, %s" % (v(aK + r), v(vR), v(aK + r))))
    for p in range(8):
        fill.append(lambda p=p: e("v_cvt_pk_bf16_f32 %s, %s, %s" % (v(KC + p), v(aK + 2 * p), v(aK + 2 * p + 1))))
    for hh in range(2):
        fill.append(lambda hh=hh: e("buffer_store_dwordx4 %s, %s, %s, %s offen sc1" % (v(KC + 4 * hh, 4), v(vK16), sWS, T[4 + hh])))
    fill.append(lambda: wait("vc"))
    for r in range(16):
        fill.append(lambda r=r: e("v_fma_f32 %s, -%s, %s, %s" % (v(aV + r), v(VM + r), v(VC), v(aV + r))))
    for r in range(16):
        fill.append(lambda r=r: e("v_mul_f32 %s, %s, %s" % (v(aV + r), v(VR + r), v(aV + r))))
    for p in range(8):
        fill.append(lambda p=p: e("v_cvt_pk_bf16_f32 %s, %s, %s" % (v(KC + 8 + p), v(aV + 2 * p), v(aV + 2 * p + 1))))
    for t in range(2):
        fill.append(lambda t=t: e("buffer_store_dwordx4 %s, %s, %s, %s offen offset:%d sc1" %
                                  (v(KC + 8 + 4 * t, 4), v(vVOF), sWS, T[4], 1024 + 256 * t)))
    fill.append(lambda: lstores(
        ["buffer_store_dwordx4 %s, %s, %s, %s offen offset:%d" % (v(KC + 4 * hh, 4), v(vK16), sWS, T[2], 2048 * hh) for hh in range(2)] +
        ["buffer_store_dwordx4 %s, %s, %s, %s offen offset:%d" % (v(KC + 8 + 4 * t, 4), v(SC), sWS, T[2], 1024 + 256 * t) for t in range(2)]))
    per = -(-len(fill) // (32 - H))
    for ks in range(H, 32):
        wait(("w", 0, ks + 1 if ks % 2 == 0 and H + 2 < ks < 31 else ks))
        mfma(vACC, wb2(ks), vA + 4 * ks, vACC)
        if ks == H:
            fine("q")
        for n in ([H + 3, H + 4] if ks == H else [H + 5, H + 6] if ks == H + 1 else [ks + 5] if ks + 5 < 32 else []):
            rd(n, 0, wb2(n))
        for f in fill[(ks - H) * per:(ks + 1 - H) * per]:
            f()
    e("s_barrier")
    stamp()
    wait("qc")
    e("s_nop %d" % max(0, 10 - len(fill[(31 - H) * per:])))
    for p in range(8):
        center(vACC, QC, p)
    for p in range(8):
        e("v_pk_mul_f32 %s, %s, %s op_sel_hi:[1,0]" % (v(vACC + 2 * p, 2), v(vACC + 2 * p, 2), v(vRQ, 2)))
    for p in range(8):
        e("v_cvt_pk_bf16_f32 %s, %s, %s" % (v(VR + p), v(vACC + 2 * p), v(vACC + 2 * p + 1)))
    lstores(["buffer_store_dwordx4 %s, %s, %s, %s offen offset:%d" % (v(VR + 4 * hh, 4), v(vL16), sWS, T[3], 1024 * hh) for hh in range(2)])
    fine("q")
    flag(T[6], 0, local=True)
    flag(T[7], None)
    e("s_branch %s" % done)
    lab(hl)
    h1, lp = newlab("qh1"), newlab("qhl")
    e("s_cmp_lg_u32 %s, 0" % sL)
    e("s_cbranch_scc1 %s" % h1)
    wq_begin()
    dma_loop(2, wq_chunk)
    make_tag()
    colsum_begin(64)
    e("s_mov_b32 %s, 0" % sIT)
    lab(lp)
    b1, b2 = newlab("qw"), newlab("qw")
    e("s_cmp_ge_u32 %s, 2" % sIT)
    e("s_cbranch_scc1 %s" % b1)
    wq_chunk()
    e("s_waitcnt vmcnt(12)")
    e("s_branch %s" % b2)
    lab(b1)
    e("s_waitcnt vmcnt(6)")
    e("s_cmp_eq_u32 %s, 2" % sIT)
    e("s_cbranch_scc1 %s" % b2)
    e("s_waitcnt vmcnt(0)")
    lab(b2)
    addr(T[0], None, 0, [(sIT, 8192), (sHW, 2048)])
    colsum_steps(2, 1024, 32768, 512)
    e("s_add_u32 %s, %s, 1" % (sIT, sIT))
    e("s_cmp_lt_u32 %s, 4" % sIT)
    e("s_cbranch_scc1 %s" % lp)
    colsum_partial()
    e("s_waitcnt lgkmcnt(0)")
    e("s_barrier")
    colsum_combine(CSQ_L)
    cm("park the weight tile in registers for the second layer pair")
    stash_addr()
    for k in range(24):
        e("ds_read_b128 %s, v42 offset:%d" % (v(vSTASH + 4 * k, 4), 1024 * k))
    mode_poll()
    e("v_lshlrev_b32 v19, 7, v0")
    e("v_cmp_lt_u32 vcc, 15, v0")
    e("s_lshl_b32 %s, %s, 11" % (T[1], sC))
    e("s_add_u32 %s, %s, %d" % (T[1], T[1], 32768 - 2048))
    e("v_add_u32 v20, %s, v19" % T[1])
    addr(T[0], sLB, BLK, [(sTBW, HSTR), (sC, 2048)])
    e("v_cndmask_b32 v19, v19, v20, vcc")
    e("s_waitcnt lgkmcnt(0)")
    e("s_barrier")
    e("s_barrier")
    if OPT("pt", 6) & 2:
        cm("all activation loads are out: bring in the lines the Q/K/V stores will write, so they need no fill")
        e("s_mov_b32 exec_hi, 0xffff")
        e("buffer_load_dword v21, v19, %s, %s offen sc1" % (sWS, T[0]))
        e("s_mov_b64 exec, -1")
    e("s_branch %s" % done)
    lab(h1)
    e("s_waitcnt lgkmcnt(0)")
    for _ in range(3):
        e("s_barrier")
    lab(done)
    stamp()


def attention():
    cm("================ attention: S^T = K Q^T, P = exp2(S^T), O^T += V^T P via sparse MFMA")
    S, O, Q, KB, VB, IDX, AD, VO, CN = (16, 32), 48, 64, (68, 72), (76, 84), 92, 93, 94, 100
    PF = 100
    KVG, LP, CH, GF, ISS = T[2], T[3], T[4], T[5], T[6]
    cm("rows 16 and 20 of the V operand are ones (row sums for both lane halves); the other spare rows are zero")
    e("v_and_b32 %s, 27, v0" % v(IDX))
    e("v_cmp_eq_u32 vcc, 16, %s" % v(IDX))
    e("v_mov_b32 %s, 0x3f803f80" % v(AD))
    e("s_nop 0")
    for i in range(16):
        e("v_mov_b32 %s, 0" % v(O + i))
        e("v_cndmask_b32 %s, 0, %s, vcc" % (v(VB[0] + i), v(AD)))
    for i in range(8):
        e("v_mov_b32 %s, 0" % v(S[1] + 8 + i))
    e("v_mov_b32 %s, 0xdddddddd" % v(IDX))
    e("v_mov_b32 %s, %s" % (v(AD), v(vL16)))
    voff_128(VO)
    voff_192(VO + 1)
    e("s_mov_b32 %s, 1" % ISS)
    a1 = newlab("a1")
    e("s_cmp_lt_u32 %s, 4" % sW)
    e("s_cbranch_scc1 %s" % a1)
    cm("waves 4-7 fetch Q and this die's K/V, and later the other dies' K/V")
    e("v_and_b32 %s, 7, v0" % v(vPO))
    e("v_lshlrev_b32 %s, 3, %s" % (v(vPO), v(vPO)))
    e("s_lshr_b32 %s, %s, 1" % (T[1], sHEAD))
    addr(GF, None, FLG + FQG * 128, [(sL, FQG_L * 128), (T[1], 8192)])
    slot(T[0], FQ, [(T[1], 8)])
    addr(T[1], sLB, QF, [(sHEAD, 1024), (sHW, 2 * HSTR)])
    addr(KVG, None, KVF, [(sL, KVF_L), (sHEAD, 131072), (sHW, 4096)])
    addr(T[8], sLB, KVL, [(sHEAD, 2048), (sHW, 2 * HSTR)])
    addr(T[7], None, QL, [(sHW, 2048)])
    e("s_lshl_b32 %s, %s, 12" % (LP, sHW))
    e("s_add_u32 %s, %s, 1" % (CH, sXCD))
    e("s_mov_b32 %s, 0" % ISS)
    cm("last barrier of the projection: its weight tile in LDS is dead from here on")
    e("s_barrier")
    poll(T[0])
    for b in range(2):
        e("s_add_u32 m0, %s, %d" % (LP, 2048 * b))
        e("v_lshlrev_b32 %s, 7, v0" % v(vPO))
        for i in range(2):
            e("buffer_load_dwordx4 %s, %s, %s offen offset:%d sc1 lds" % (v(vL16), sWS, T[8], 1024 * i))
        e("s_add_u32 m0, %s, %d" % (T[7], 1024 * b))
        e("s_add_u32 %s, %s, %d" % (T[8], T[8], HSTR))
        e("buffer_load_dwordx4 %s, %s, %s offen sc1 lds" % (v(vL16), sWS, T[1]))
        e("s_add_u32 %s, %s, %d" % (T[1], T[1], HSTR))

    def gflag_load():
        e("buffer_load_dwordx2 %s, %s, %s, %s offen sc1" % (v(vPD, 2), v(vPO), sWS, GF))

    def kv_issue(n=4):
        e("s_and_b32 %s, %s, 7" % (CH, CH))
        e("s_lshl_b32 %s, %s, 14" % (T[9], CH))
        e("s_add_u32 %s, %s, 16384" % (LP, LP))
        e("s_add_u32 %s, %s, %s" % (T[9], T[9], KVG))
        e("s_mov_b32 m0, %s" % LP)
        e("s_add_u32 %s, %s, 1" % (CH, CH))
        for i in range(n):
            e("buffer_load_dwordx4 %s, %s, %s offen offset:%d sc1 lds" % (v(vL16), sWS, T[9], 1024 * i))

    def kv_issue_helpers():
        sk, cw = newlab("kvs"), newlab("kvc")
        kv_issue(2)
        e("s_cmp_lt_u32 %s, 4" % sW)
        e("s_cbranch_scc1 %s" % cw)
        lab(sk)
        ft = newlab("ft")
        wp = newlab("wp")
        TAIL.extend([wp + ":", "    s_cmp_lg_u32 %s, %d" % (sIT, OPT("woit", 3)), "    s_cbranch_scc1 %s" % sk]
                    + ["    " + x for x in capture(lambda: (srd("s[64:67]", 16, 512 * 1024), addr(T[1], None, 0, [(sJ, 128 * 128), (sW, 32 * 128)])))]
                    + (["    " + x for x in capture(lambda: (
                        e("v_lshrrev_b32 %s, 3, v0" % v(PF + 3)), e("v_mul_u32_u24 %s, %d, %s" % (v(PF + 3), XSTR - 1024, v(PF + 3))),
                        e("v_add_u32 %s, %s, %s" % (v(PF + 3), v(PF + 3), v(PF))),
                        addr(T[0], sLB, OF, [(sW, 2 * XSTR), (sHEAD, 1024)]), e("s_mov_b64 exec, 0xffff"),
                        e("buffer_load_dword %s, %s, %s, %s offen sc1" % (v(PF + 2), v(PF + 3), sWS, T[0])), e("s_mov_b64 exec, -1")))]
                       if OPT("pt", 6) & 4 else [])
                    + ["    s_mov_b32 exec_hi, 0", "    buffer_load_dword %s, %s, s[64:67], %s offen" % (v(PF + 2), v(PF), T[1]),
                       "    s_mov_b64 exec, -1", "    s_branch %s" % sk])
        TAIL.extend([ft + ":", "    s_cmp_lg_u32 %s, %s" % (sIT, T[8]), "    s_cbranch_scc1 %s" % wp,
                     "    buffer_load_dword %s, %s, s[64:67], %s offen" % (v(PF + 2), v(PF), T[1]), "    s_branch %s" % sk])
        TAIL.extend([cw + ":", "    s_cmp_lt_u32 %s, 4" % sIT, "    s_cbranch_scc1 %s" % ft, "    s_mov_b32 exec_hi, 0",
                     "    buffer_load_dword %s, %s, %s, %s offen" % (v(PF + 2), v(PF + 1), sTMP, T[7]),
                     "    s_mov_b64 exec, -1", "    s_add_u32 %s, %s, %d" % (T[7], T[7], 16 * 2752),
                     "    s_branch %s" % sk])
    fine("k")
    e("s_waitcnt vmcnt(0)")
    fine("k")
    gflag_load()
    lab(a1)
    addr(T[0], None, QL, [(sW, 1024)])
    e("v_add_u32 v16, %s, %s" % (T[0], v(vL16)))
    e("s_barrier")
    stamp()

    def rdk(t):
        e("ds_read_b128 %s, %s offset:%d" % (v(KB[t & 1], 4), v(AD), t * 2048))

    def rdv(t):
        e("s_mov_b64 exec, %s" % sMV)
        e("ds_read_b128 %s, %s offset:%d" % (v(VB[t & 1], 4), v(AD), t * 2048 + 1024))
        e("ds_read_b128 %s, %s offset:%d" % (v(VB[t & 1] + 4, 4), v(AD), t * 2048 + 1280))
        e("s_mov_b64 exec, -1")

    def smf(vb, p):
        e("v_smfmac_f32_32x32x32_bf16 %s, %s, %s, %s" % (v(O, 16), v(vb, 4), v(p, 8), v(IDX)))

    def ex(cur, a, b):
        for i in range(a, b):
            e("v_exp_f32 %s, %s" % (v(S[cur] + i), v(S[cur] + i)))

    def tile(t, extra=None):
        cur, nxt = t & 1, (t + 1) & 1
        ex(cur, 0, 2)
        smf(VB[nxt] + 4, S[nxt] + 8)
        rdv(t + 1)
        ex(cur, 2, 6)
        e("s_waitcnt lgkmcnt(2)")
        mfma(S[nxt], KB[nxt], Q, "0")
        rdk(t + 2)
        if extra:
            extra()
        ex(cur, 6, 12)
        smf(VB[cur], S[cur])
        ex(cur, 12, 16)
    e("ds_read_b128 %s, v16" % v(Q, 4))
    rdk(0)
    rdv(0)
    rdk(1)
    e("s_waitcnt lgkmcnt(3)")
    mfma(S[0], KB[0], Q, "0")
    e("s_mov_b32 %s, 0" % sIT)
    e("s_mov_b32 %s, %d" % (sCNT, POLL_LIMIT))
    e("s_nop 7")
    cm("keys of this die first; the other dies' K/V are requested as soon as their flags arrive")
    loc, go, retry, issue, chk3 = (newlab(x) for x in ("loc", "go", "retry", "issue", "chk3"))
    lab(loc)
    e("s_cmp_eq_u32 %s, 0" % sIT)
    e("s_cbranch_scc1 %s" % go)
    e("s_cmp_lg_u32 %s, 0" % ISS)
    e("s_cbranch_scc1 %s" % chk3)
    lab(retry)
    e("s_waitcnt vmcnt(0)")
    e("v_cmp_eq_u64 vcc, %s, %s" % (v(vPD, 2), v(vFV, 2)))
    e("s_nop 1")
    e("s_cmp_eq_u64 vcc, -1")
    e("s_cbranch_scc1 %s" % issue)
    gflag_load()
    e("s_cmp_lt_u32 %s, 3" % sIT)
    e("s_cbranch_scc1 %s" % go)
    e("s_sub_u32 %s, %s, 1" % (sCNT, sCNT))
    e("s_cbranch_scc0 %s" % retry)
    e("s_endpgm")
    lab(issue)
    fine("k")
    kv_issue()
    kv_issue()
    e("s_mov_b32 %s, 1" % ISS)
    lab(chk3)
    e("s_cmp_lt_u32 %s, 3" % sIT)
    e("s_cbranch_scc1 %s" % go)
    fine("k")
    e("s_waitcnt vmcnt(4)")
    fine("k")
    e("s_barrier")
    fine("k")
    lab(go)
    tile(0)
    tile(1)
    e("v_add_u32 %s, 4096, %s" % (v(AD), v(AD)))
    e("s_add_u32 %s, %s, 1" % (sIT, sIT))
    e("s_cmp_lt_u32 %s, 4" % sIT)
    e("s_cbranch_scc1 %s" % loc)
    fine("a")
    cm("from here on every wave fetches one token block of each remaining chunk")
    addr(KVG, None, KVF, [(sL, KVF_L), (sHEAD, 131072), (sW, 2048)])
    addr(LP, None, 32768, [(sW, 2048)])
    e("s_add_u32 %s, %s, 3" % (CH, sXCD))
    cm("first layer pair, waves 1-3: first touch of Wo / W1 / W2 (one line per lane, spread over all workgroups)")
    e("s_mov_b32 s66, %d" % (1376 * 1024))
    e("s_mov_b32 %s, %d" % (T[1], 43 * 128))
    e("s_cmp_eq_u32 %s, 2" % sW)
    e("s_cselect_b64 s[64:65], s[20:21], s[24:25]")
    e("s_cmp_eq_u32 %s, 1" % sW)
    e("s_cselect_b64 s[64:65], s[16:17], s[64:65]")
    e("s_cselect_b32 s66, %d, s66" % (512 * 1024))
    e("s_cselect_b32 %s, %d, %s" % (T[1], 16 * 128, T[1]))
    e("s_and_b32 s65, s65, 0xffff")
    e("s_mov_b32 s67, 0x20000")
    e("s_mul_i32 %s, %s, s2" % (T[1], T[1]))
    e("v_lshlrev_b32 %s, 7, v0" % v(PF))
    e("s_cmp_eq_u32 %s, 0" % sL)
    e("s_cselect_b32 %s, %d, 99" % (T[8], OPT("ftit", 2)))
    e("s_cmp_eq_u32 %s, 0" % sW)
    e("s_cselect_b32 %s, 99, %s" % (T[8], T[8]))
    cm("lines of the W1 rows that are loaded after attention (128-351, 480-511): half per workgroup of a pair")
    srd(sTMP, 20, 512 * 2752)
    e("s_lshr_b32 %s, %s, 4" % (T[0], sJ))
    addr(T[7], None, 128, [(T[0], 128), (sHW, 32)])
    e("s_cmp_eq_u32 %s, 352" % T[7])
    e("s_cselect_b32 %s, 480, %s" % (T[7], T[7]))
    e("s_mul_i32 %s, %s, 2752" % (T[7], T[7]))
    e("s_mul_i32 %s, %s, 192" % (T[0], sC))
    e("s_add_u32 %s, %s, %s" % (T[7], T[7], T[0]))
    e("v_lshrrev_b32 %s, 1, v0" % v(PF + 1))
    e("v_mul_u32_u24 %s, 2752, %s" % (v(PF + 1), v(PF + 1)))
    e("v_and_b32 %s, 1, v0" % v(PF + 2))
    e("v_lshl_add_u32 %s, %s, 7, %s" % (v(PF + 1), v(PF + 2), v(PF + 1)))
    e("s_mov_b32 %s, 1" % sIT)
    loop = newlab("att")
    L.append(".p2align 6")
    lab(loop)
    for t in range(8):
        if t % 2 == 0:
            e("s_setprio %d" % (3 - t // 2))
        if t == 6:
            e("s_waitcnt vmcnt(2)")
            e("s_barrier")
        tile(t, kv_issue_helpers if t == 1 else None)
    e("v_add_u32 %s, 16384, %s" % (v(AD), v(AD)))
    e("s_add_u32 %s, %s, 1" % (sIT, sIT))
    e("s_cmp_lt_u32 %s, 6" % sIT)
    e("s_cbranch_scc1 %s" % loop)
    fine("a")
    cm("last two chunks: stream Wo and part of W1 into the dead K/V space, one piece per tile")
    srd(sTMP, 16, 512 * 1024)
    addr(T[0], None, 0, [(sW, 65536), (sNB, 128)])
    e("s_lshl_b32 %s, %s, 13" % (T[1], sW))

    srd("s[64:67]", 24, 1376 * 1024)
    addr(T[2], None, 0, [(sJ, 344 * 128), (sW, 43 * 128)])

    def w2_lines(trip):
        cm("one line per lane: pull this workgroup's share of W2 into the die's L2")
        e("s_mov_b64 exec, 0x3fffff")
        e("buffer_load_dword %s, %s, s[64:67], %s offen" % (v(PF + 2), v(PF), T[2]))
        e("s_mov_b64 exec, -1")
        e("s_add_u32 %s, %s, %d" % (T[2], T[2], 22 * 128))

    def wo_piece(t):
        e("s_add_u32 m0, %s, %d" % (T[1], 1024 * t))
        e("s_nop 0")
        dma1(VO, T[0])
        e("s_add_u32 %s, %s, 8192" % (T[0], T[0]))
        if t in (2, 5) and not OPT("nopf", 0):
            w2_lines(0)

    def w1_piece(t):
        for u in ([2 * t, 2 * t + 1] if t < 2 else [t + 2] if t < 4 else []):
            e("s_add_u32 m0, %s, %d" % (T[1], (u // 3) * 22 * 3072 + (u % 3) * 1024))
            e("s_nop 0")
            dma1(VO + 1 + u % 3, T[0])
            if u == 2:
                e("s_add_u32 %s, %s, %d" % (T[0], T[0], 22 * 16 * 2752))
    for trip in range(2):
        for t in range(8):
            if t % 2 == 0:
                e("s_setprio %d" % (3 - t // 2))
            if t == 6 and trip == 0:
                e("s_waitcnt vmcnt(%d)" % (6 if OPT("nopf", 0) else 8))
                e("s_barrier")
            tile(t + 8 * trip, (lambda t=t: wo_piece(t)) if trip == 0 else (lambda t=t: w1_piece(t)))
        if trip == 0:
            addr(T[4], sLB, OF, [(sW, XSTR), (sHEAD, 1024)])
            slot(T[5], FA, [(sW, 32), (sHEAD, 1)])
            srd(sTMP, 20, 512 * 2752)
            addr(T[0], None, 0, [(sW, 16 * 2752), (sC, 192)])
            addr(T[1], None, 65536, [(sW, 3072)])
    e("s_nop 1")
    smf(VB[1] + 4, S[1] + 8)
    e("s_setprio 0")
    e("s_mov_b32 %s, %s" % (T[6], f32(2.0 ** (64 if FORCE_SLOW else -64))))
    e("s_mov_b32 %s, %s" % (T[7], f32(2.0 ** 64)))
    e("s_waitcnt lgkmcnt(0)")
    e("s_nop 7")
    stamp()
    cm("Softmax guard. The loops above used 0 as a stand-in for the row max. That is exact while the row sum")
    cm("stays in [2^-64, 2^64] and the accumulators are finite; otherwise redo this tile with the true max.")
    fin, slow = newlab("att_fin"), newlab("att_slow")
    e("v_cmp_le_f32 %s, %s, %s" % (sM0, T[6], v(O + 8)))
    e("v_cmp_ge_f32 %s, %s, %s" % (sM1, T[7], v(O + 8)))
    e("v_pk_mul_f32 v[18:19], %s, 0 op_sel_hi:[1,0]" % v(O, 2))
    for p in range(1, 4):
        e("v_pk_fma_f32 v[18:19], %s, 0, v[18:19] op_sel_hi:[1,0,1]" % v(O + 2 * p, 2))
    e("s_and_b64 %s, %s, %s" % (sM0, sM0, sM1))
    e("v_cmp_eq_f32 vcc, v18, v19")
    e("s_nop 0")
    e("s_and_b64 %s, %s, vcc" % (sM0, sM0))
    e("s_cmp_eq_u64 %s, -1" % sM0)
    e("s_cbranch_scc0 %s" % slow)
    lab(fin)
    e("v_rcp_f32 v16, %s" % v(O + 8))
    e("s_nop 0")
    for p in range(4):
        e("v_pk_mul_f32 %s, %s, v[16:17] op_sel_hi:[1,0]" % (v(O + 2 * p, 2), v(O + 2 * p, 2)))
    for p in range(4):
        e("v_cvt_pk_bf16_f32 %s, %s, %s" % (v(20 + p), v(O + 2 * p), v(O + 2 * p + 1)))
    lstores(["buffer_store_dwordx4 v[20:23], %s, %s, %s offen" % (v(vL16), sWS, T[4])])
    flag(T[5], 0, local=2)
    e("s_waitcnt vmcnt(1)")
    e("s_barrier")
    keep = L[:]
    del L[:]
    lab(slow)
    l1, l2 = newlab("slow1"), newlab("slow2")
    addr(T[2], None, KVF, [(sL, KVF_L), (sHEAD, 131072)])
    e("v_mov_b32 %s, 0xff800000" % v(CN))
    e("s_mov_b32 %s, 0" % sIT)
    lab(l1)
    e("buffer_load_dwordx4 %s, %s, %s, %s offen sc1" % (v(KB[0], 4), v(vL16), sWS, T[2]))
    e("s_waitcnt vmcnt(0)")
    mfma(S[0], KB[0], Q, "0")
    e("s_nop 15")
    for i in range(8):
        e("v_max3_f32 %s, %s, %s, %s" % (v(CN), v(S[0] + 2 * i), v(S[0] + 2 * i + 1), v(CN)))
    e("s_add_u32 %s, %s, 2048" % (T[2], T[2]))
    e("s_add_u32 %s, %s, 1" % (sIT, sIT))
    e("s_cmp_lt_u32 %s, 64" % sIT)
    e("s_cbranch_scc1 %s" % l1)
    e("v_mov_b32 %s, %s" % (v(CN + 1), v(CN)))
    e("s_nop 1")
    e("v_permlane32_swap_b32 %s, %s" % (v(CN), v(CN + 1)))
    e("s_nop 1")
    e("v_max_f32 %s, %s, %s" % (v(CN), v(CN), v(CN + 1)))
    e("v_sub_f32 %s, 0, %s" % (v(CN), v(CN)))
    for i in range(1, 16):
        e("v_mov_b32 %s, %s" % (v(CN + i), v(CN)))
    for i in range(16):
        e("v_mov_b32 %s, 0" % v(O + i))
    addr(T[2], None, KVF, [(sL, KVF_L), (sHEAD, 131072)])
    e("s_mov_b32 %s, 0" % sIT)
    lab(l2)
    e("buffer_load_dwordx4 %s, %s, %s, %s offen sc1" % (v(KB[0], 4), v(vL16), sWS, T[2]))
    e("s_mov_b64 exec, %s" % sMV)
    e("buffer_load_dwordx4 %s, %s, %s, %s offen offset:1024 sc1" % (v(VB[0], 4), v(vL16), sWS, T[2]))
    e("buffer_load_dwordx4 %s, %s, %s, %s offen offset:1280 sc1" % (v(VB[0] + 4, 4), v(vL16), sWS, T[2]))
    e("s_mov_b64 exec, -1")
    e("s_waitcnt vmcnt(0)")
    mfma(S[0], KB[0], Q, CN)
    e("s_nop 15")
    for i in range(16):
        e("v_exp_f32 %s, %s" % (v(S[0] + i), v(S[0] + i)))
    e("s_nop 1")
    smf(VB[0], S[0])
    smf(VB[0] + 4, S[0] + 8)
    e("s_nop 15")
    e("s_add_u32 %s, %s, 2048" % (T[2], T[2]))
    e("s_add_u32 %s, %s, 1" % (sIT, sIT))
    e("s_cmp_lt_u32 %s, 64" % sIT)
    e("s_cbranch_scc1 %s" % l2)
    e("s_branch %s" % fin)
    TAIL.extend(L)
    L[:] = keep
    stamp()


def n512(kind):
    wo = kind == "wo"
    ph = "o" if wo else "g"
    cm("================ %s" % ("output projection + residual" if wo else "MLP down projection + residual"))
    NS, J = (16, 16) if wo else (43, 39)
    AK, AS = vACC, vACC + 16
    hl, done = newlab("n_h"), newlab("n_done")
    e("s_cmp_ge_u32 %s, 4" % sW)
    e("s_cbranch_scc1 %s" % hl)
    if not wo:
        srd(sTMP, 26, 1024)
        e("v_lshrrev_b32 %s, 1, %s" % (v(vPO), v(vH16)))
        e("s_lshl_b32 %s, %s, 6" % (T[0], sNT))
        for i in range(4):
            e("buffer_load_dwordx2 %s, %s, %s, %s offen offset:%d" % (v(176 + 2 * i, 2), v(vPO), sTMP, T[0], 16 * i))
    unpack(AK, vRES, 8)
    tr_rows(vW0, 128)
    e("v_bfe_u32 %s, v0, 3, 1" % v(vPD))
    e("v_xor_b32 %s, %s, %s" % (v(vPD), sKH, v(vPD)))
    e("v_lshl_or_b32 %s, %s, 6, %s" % (v(vW0), v(vPD), v(vW0)))
    e("s_mul_i32 %s, %s, %d" % (T[0], sKH, J * 2048))
    e("v_add_u32 %s, %s, %s" % (v(vW0), T[0], v(vW0)))
    e("v_xor_b32 %s, 64, %s" % (v(vW1), v(vW0)))
    if not wo:
        e("v_add_u32 %s, 0x10000, %s" % (v(vW2), v(vW0)))
        e("v_add_u32 %s, 0x10000, %s" % (v(vW3), v(vW1)))
    if wo:
        e("v_and_b32 %s, 15, v0" % v(vPO))
        slot(T[0], FA, [(sTBN, 32), (sKH, 16)])
        addr(T[1], sLB, OF, [(sTBN, XSTR), (sKH, 16384)])
    else:
        e("v_and_b32 %s, 7, v0" % v(vPO))
        slot(T[0], FH, [(sTBN, 16), (sKH, 7)])
        addr(T[1], sLB, HF, [(sTBN, HSTR), (sKH, 43 * 1024)])
    e("v_lshlrev_b32 %s, 3, %s" % (v(vPO), v(vPO)))
    if not wo:
        e("s_waitcnt vmcnt(0)")
        unpack(AS, 176, 8)
        for p in range(8):
            e("v_pk_add_f32 %s, %s, %s" % (v(AK + 2 * p, 2), v(AK + 2 * p, 2), v(AS + 2 * p, 2)))
        e("s_barrier")

    def rd(j, i):
        jj = j % J
        base, off = ((vW0, vW1)[i], jj * 2048) if jj < 32 else ((vW2, vW3)[i], (jj - 32) * 2048)
        d = vWB + (j % 3) * 8 + 4 * i
        e("ds_read_b64_tr_b16 %s, %s offset:%d" % (v(d, 2), v(base), off))
        e("ds_read_b64_tr_b16 %s, %s offset:%d" % (v(d + 2, 2), v(base), off + 1024))
    for j in range(2):
        for i in range(2):
            rd(j, i)
    poll(T[0])
    stamp()
    areg = lambda j: vA + 4 * (j % 32)
    load_frags(T[1], 0, DEPTH, areg)
    fine(ph)

    def late_addresses():
        e("s_and_b32 %s, %s, 1" % (T[2], sW))
        if wo:
            addr(T[0], None, 0, [(T[2], 4096), (sKH, 32768)])
            e("s_xor_b32 %s, %s, 32768" % (T[3], T[0]))
            publish_addr(X1F, ST1, 0, FO)
        else:
            addr(T[0], None, 98304, [(T[2], 4096), (sKH, 8192)])
            e("s_xor_b32 %s, %s, 8192" % (T[3], T[0]))
            publish_addr(XF, ST, LFL_L * 8, FX)
        e("v_add_u32 %s, %s, %s" % (v(vPO), T[0], v(vL16)))
        e("v_add_u32 %s, %s, %s" % (v(vPD), T[3], v(vL16)))
    sh = capture(late_addresses)
    for j in range(NS):
        issued = min(NS, DEPTH + j)
        if not wo and j == J - 2:
            e("s_barrier")
        if j < NS - 1:
            last2 = j == NS - 2
            e("s_waitcnt vmcnt(%d) lgkmcnt(%d)" % (0 if last2 else issued - j - 1, 0 if last2 else 4))
        if j in ((0, 4, 8, 15) if wo else (0, 11, 22, 42)):
            fine(ph)
        seq = [(j, 0), (j, 1)] if j < NS - 2 else [(j, 1), (j + 1, 1)] if j == NS - 2 else [(j - 1, 0), (j, 0)]
        for m, (jj, i) in enumerate(seq):
            acc = AK + 16 * i
            mfma(acc, vWB + (jj % 3) * 8 + 4 * i, areg(jj), "0" if (jj == 0 and i == 1) else acc)
            if j + 2 < NS:
                rd(j + 2, i)
            if m == 0 and DEPTH + j < NS:
                load_frags(T[1], DEPTH + j, 1, areg, False)
            if j >= 2:
                g = (j - 2) * 2 + m
                for x in sh[2 * g:2 * g + 2]:
                    e(x)
        if j == (8 if wo else NS - J - 1):
            e("s_barrier")
    assert len(sh) <= 4 * (NS - 2)
    e("s_nop 9")
    for i in range(4):
        e("ds_write_b128 %s, %s offset:%d" % (v(vPO), v(AS + 4 * i, 4), 1024 * i))
    e("s_waitcnt lgkmcnt(0)")
    e("s_barrier")
    stamp()
    for i in range(4):
        e("ds_read_b128 %s, %s offset:%d" % (v(AS + 4 * i, 4), v(vPD), 1024 * i))
    for i in range(4):
        e("s_waitcnt lgkmcnt(%d)" % (3 - i))
        for p in (2 * i, 2 * i + 1):
            e("v_pk_add_f32 %s, %s, %s" % (v(AK + 2 * p, 2), v(AK + 2 * p, 2), v(AS + 2 * p, 2)))
    for p in range(8):
        e("v_cvt_pk_bf16_f32 %s, %s, %s" % (v(vRES + p), v(AK + 2 * p), v(AK + 2 * p + 1)))
    if wo:
        publish_x(AK, 20)
    else:
        last = newlab("last")
        e("s_cmp_lg_u32 %s, 0" % sL)
        e("s_cbranch_scc1 %s" % last)
        publish_x(AK, 20)
        e("s_branch %s" % done)
        lab(last)
        srd(sTMP, 28, 2048 * 1024)
        e("v_and_b32 v16, 31, v0")
        e("v_lshlrev_b32 v16, 10, v16")
        e("v_add_u32 v16, v16, %s" % v(vH16))
        addr(T[0], None, 0, [(sXCD, 262144), (sTBN, 32768), (sNT, 64)])
        for g in range(2):
            e("v_permlane32_swap_b32 %s, %s" % (v(vRES + 4 * g), v(vRES + 4 * g + 2)))
            e("v_permlane32_swap_b32 %s, %s" % (v(vRES + 4 * g + 1), v(vRES + 4 * g + 3)))
        for g in range(2):
            e("buffer_store_dwordx4 %s, v16, %s, %s offen offset:%d" % (v(vRES + 4 * g, 4), sTMP, T[0], 32 * g))
    e("s_branch %s" % done)
    lab(hl)
    if wo:
        voff_192(44)
        e("s_lshl_b32 %s, %s, 2" % (T[3], sHW))
        e("s_min_u32 %s, %s, 10" % (T[3], T[3]))
        addr(T[0], None, 8 * 16 * 2752, [(T[3], 16 * 2752), (sC, 192)])
        addr(T[1], None, 65536 + 8 * 3072, [(T[3], 3072)])
        dma_w1(2)
        e("s_mov_b32 %s, %s" % (T[3], T[0]))
        e("s_mov_b32 %s, %s" % (T[4], T[1]))
        w0, w1, w2 = newlab("wcs"), newlab("wcs"), newlab("wcs")
        e("s_cmp_lg_u32 %s, 0" % sL)
        e("s_cbranch_scc1 %s" % w0)
        colsum_begin(192)
        addr(T[0], None, 65536, [(sHW, 2 * 3072)])
        colsum_steps(2, 3072, 64, 1536)
        addr(T[0], None, 65536 + 22 * 3072, [(sHW, 2 * 3072)])
        colsum_steps(2, 3072, 64, 1536)
        lab(w0)
        e("s_mov_b32 %s, %s" % (T[0], T[3]))
        e("s_mov_b32 %s, %s" % (T[1], T[4]))
        e("s_barrier")
        dma_w1(2)
        e("s_barrier")
        e("s_cmp_lg_u32 %s, 3" % sHW)
        e("s_cbranch_scc1 %s" % w1)
        addr(T[0], None, 30 * 16 * 2752, [(sC, 192)])
        e("s_mov_b32 %s, %d" % (T[1], 58 * 1024))
        dma_w1(2)
        lab(w1)
        e("s_cmp_lg_u32 %s, 0" % sL)
        e("s_cbranch_scc1 %s" % done)
        cm("own late k-steps: 8-11 | 12-15 | 16-19 | 20-21 and 30-31")
        srd(sTMP, 22, 2752)
        e("v_and_b32 %s, 31, v0" % v(vPO))
        e("v_lshlrev_b32 %s, 1, %s" % (v(vPO), v(vPO)))
        addr(T[0], None, 0, [(sHW, 64), (sC, 192)])
        e("buffer_load_ushort v47, %s, %s, %s offen" % (v(vPO), sTMP, T[0]))
        addr(T[0], None, 65536 + 8 * 3072, [(sHW, 4 * 3072)])
        e("s_add_u32 %s, %s, %d" % (T[3], T[0], 2 * 3072))
        e("s_cmp_eq_u32 %s, 3" % sHW)
        e("s_cselect_b32 %s, %d, %s" % (T[3], 58 * 1024, T[3]))
        e("s_waitcnt vmcnt(0)")
        colsum_steps(2, 3072, 64, 1536)
        e("s_mov_b32 %s, %s" % (T[0], T[3]))
        colsum_steps(2, 3072, 64, 1536)
        colsum_partial()
        e("v_lshlrev_b32 v47, 16, v47")
        addr(T[0], None, B1_L, [(sHW, 128)])
        e("v_add_u32 v42, %s, v41" % T[0])
        e("ds_write_b32 v42, v47")
    else:
        e("s_waitcnt vmcnt(0)")
        fine("w")
        e("s_barrier")
        fine("w")
        e("s_lshr_b32 %s, %s, 1" % (T[3], sHW))
        e("s_and_b32 %s, %s, 1" % (T[4], sHW))
        addr(T[0], None, 78 * 8192, [(T[3], 86 * 8192), (T[4], 4 * 8192), (sNB, 128)])
        addr(T[1], None, 0, [(T[3], 78 * 1024), (T[4], 4096)])
        e("s_barrier")
        for k in range(4):
            e("s_add_u32 m0, %s, %d" % (T[1], 1024 * k))
            e("s_nop 0")
            dma1(40, T[0])
            e("s_add_u32 %s, %s, 8192" % (T[0], T[0]))
        e("s_waitcnt vmcnt(0)")
        e("s_barrier")
        stash_addr()
        e("s_barrier")
        e("s_cmp_lg_u32 %s, 0" % sL)
        e("s_cbranch_scc1 %s" % done)
        for k in range(24):
            e("ds_write_b128 v42, %s offset:%d" % (v(vSTASH + 4 * k, 4), 1024 * k))
    lab(done)
    stamp()


def ffn1():
    cm("================ MLP up projection + GELU")
    hl, done = newlab("f1_h"), newlab("f1_done")
    e("s_cmp_ge_u32 %s, 4" % sW)
    e("s_cbranch_scc1 %s" % hl)
    idle = newlab("f1_idle")
    e("s_cmp_eq_u32 %s, 15" % sC)
    e("s_cbranch_scc1 %s" % idle)
    TAIL.extend([idle + ":"] + ["    s_barrier"] * 3 + ["    s_branch " + done])

    e("v_and_b32 %s, 15, v0" % v(vPO))
    e("v_lshlrev_b32 %s, 3, %s" % (v(vPO), v(vPO)))
    slot(T[0], FO, [(sTBW, 16)])
    addr(T[1], sLB, X1F, [(sTBW, XSTR)])
    addr(T[2], sLB, ST1, [(sTBW, 4096)])
    e("v_add_u32 %s, %d, %s" % (v(vCA), CONST, v(vH16)))
    tr_rows(vW2, 192)
    e("v_add_u32 %s, 0x10000, %s" % (v(vW0), v(vW2)))
    e("v_add_u32 %s, %d, %s" % (v(vW1), 21 * 3072, v(vW0)))
    lds = Lds()

    def rd(ks, i):
        d = vWB + (ks % 3) * 12 + 4 * i
        base, off = (vW0, ks * 3072) if ks < 21 else (vW1, (ks - 21) * 3072) if ks < 30 else (vW2, 58 * 1024 + (ks - 30) * 3072)
        lds.op(("w", ks), "ds_read_b64_tr_b16 %s, %s offset:%d" % (v(d, 2), v(base), off + 64 * i))
        lds.op(("w", ks), "ds_read_b64_tr_b16 %s, %s offset:%d" % (v(d + 2, 2), v(base), off + 64 * i + 1536))

    def wait(name):
        n = lds.need(name)
        if n is not None:
            e("s_waitcnt lgkmcnt(%d)" % n)
    for ks in range(2):
        for i in range(3):
            rd(ks, i)
    poll(T[0])
    stamp()

    def item(n):
        if n < 32:
            load_frags(T[1], n, 1, lambda j: vA + 4 * j, n % 4 == 0)
        else:
            e("buffer_load_dwordx4 %s, %s, %s, %s offen offset:%d sc1" % (v(vSTS + 4 * (n - 32), 4), v(vL16), sWS, T[2], 1024 * (n - 32)))
    sched = [[ks + DEPTH] if ks + DEPTH < 32 else [] for ks in range(32)]
    for k in range(4):
        sched[3 + 2 * k].append(32 + k)
    order = list(range(DEPTH))
    for n in range(DEPTH):
        item(n)
    fine("f")
    c0 = -2.0 * 1.4426950408889634 * 0.7978845608028654
    GC = vSTS + 4

    def early():
        addr(T[4], sLB, HF, [(sTBW, HSTR), (sC, 6144)])
        e("s_add_u32 %s, %s, 4096" % (T[5], T[4]))
        slot(T[6], FH, [(sTBW, 16), (sC, 1)])
    mid = stats_code(True) + ["v_mul_f32 %s, %s, %s" % (v(vMU), v(vMU), v(vR)), "v_mov_b32 %s, %s" % (v(GC), f32(c0)),
                              "v_mov_b32 %s, %s" % (v(GC + 1), f32(c0 * 0.044715)), "v_mov_b32 %s, 1.0" % v(GC + 2)]
    sh = [(10, lambda x=x: e(x)) for x in capture(early)] + [(17, lambda x=x: e(x)) for x in mid]
    cm("bias' = b1 - mean*rstd*colsum is formed under the last MFMAs, in dead activation registers")
    rdc, fmc = [], []
    for t in range(3):
        rdc.append([(22 if t < 2 else 24, lambda t=t, k=k: lds.op(("c", t), "ds_read_b128 %s, %s offset:%d" % (
            v(16 + 32 * t + 4 * k, 4), v(vCA), 512 + 512 * (k // 4) + t * 128 + 32 * (k % 4)))) for k in range(8)])
        fmc.append([(22, lambda t=t: wait(("c", t)))] + [(22, lambda t=t, r=r: e("v_fma_f32 %s, -%s, %s, %s" % (
            v(32 + 32 * t + r), v(vMU), v(16 + 32 * t + r), v(32 + 32 * t + r)))) for r in range(16)])
    mix = lambda a, b: [x for k in range(max(len(a), len(b))) for x in a[2 * k:2 * k + 2] + b[k:k + 1]]
    sh += rdc[0] + rdc[1][:4] + mix(fmc[0], rdc[1][4:]) + mix(fmc[1], rdc[2]) + fmc[2]
    pos = 0
    for ks in range(32):
        if ks in (6, 22):
            e("s_barrier")
        newest = max(order.index(n) for n in ([ks, 35] if ks >= 17 else [ks]))
        lg = lds.need(("w", ks))
        e("s_waitcnt vmcnt(%d)%s" % (len(order) - 1 - newest, "" if lg is None else " lgkmcnt(%d)" % lg))
        if ks in FINEKS:
            fine("f")
        for i in range(3):
            mfma(vACC + 16 * i, vWB + (ks % 3) * 12 + 4 * i, vA + 4 * ks, "0" if ks == 0 else vACC + 16 * i)
            if ks + 2 < 32:
                rd(ks + 2, i)
            if i < len(sched[ks]):
                item(sched[ks][i])
                order.append(sched[ks][i])
            for _ in range(3 if ks < 30 else 5):
                if pos < len(sh) and ks >= sh[pos][0]:
                    sh[pos][1]()
                    pos += 1
    for x in sh[pos:]:
        x[1]()
    stamp()
    e("s_nop %d" % max(0, 9 - len(sh[pos:])))
    Z, P = 120, vWB
    for t in range(3):
        acc, b1 = vACC + 16 * t, 32 + 32 * t
        for p in range(8):
            e("v_pk_fma_f32 %s, %s, %s, %s op_sel_hi:[1,0,1]" %
              (v(acc + 2 * p, 2), v(acc + 2 * p, 2), v(vR, 2), v(b1 + 2 * p, 2)))
        for p in range(8):
            e("v_pk_mul_f32 %s, %s, %s" % (v(Z + 2 * p, 2), v(acc + 2 * p, 2), v(acc + 2 * p, 2)))
        for p in range(8):
            e("v_pk_fma_f32 %s, %s, %s, %s op_sel:[0,1,0] op_sel_hi:[1,1,0]" %
              (v(Z + 2 * p, 2), v(Z + 2 * p, 2), v(GC, 2), v(GC, 2)))
        for p in range(8):
            e("v_pk_mul_f32 %s, %s, %s" % (v(Z + 2 * p, 2), v(Z + 2 * p, 2), v(acc + 2 * p, 2)))
        for i in range(16):
            e("v_exp_f32 %s, %s" % (v(Z + i), v(Z + i)))
        for p in range(8):
            e("v_pk_add_f32 %s, %s, %s op_sel_hi:[1,0]" % (v(Z + 2 * p, 2), v(Z + 2 * p, 2), v(GC + 2, 2)))
        for i in range(16):
            e("v_rcp_f32 %s, %s" % (v(Z + i), v(Z + i)))
        for p in range(8):
            e("v_pk_mul_f32 %s, %s, %s" % (v(acc + 2 * p, 2), v(acc + 2 * p, 2), v(Z + 2 * p, 2)))
        for p in range(8):
            e("v_cvt_pk_bf16_f32 %s, %s, %s" % (v(P + 8 * t + p), v(acc + 2 * p), v(acc + 2 * p + 1)))
        lstores(["buffer_store_dwordx4 %s, %s, %s, %s offen offset:%d" %
                 (v(P + 8 * t + 4 * hh, 4), v(vL16), sWS, T[4 + (2 * t + hh) // 4], ((2 * t + hh) % 4) * 1024) for hh in range(2)])
        if t == 0:
            e("s_barrier")
        if t != 1:
            fine("f")
    flag(T[6], 0, local=2)
    e("s_branch %s" % done)
    lab(hl)
    h1 = newlab("fh1")
    voff_128(40)
    srd(sTMP, 24, 1376 * 1024)
    e("s_waitcnt vmcnt(0) lgkmcnt(0)")
    e("s_barrier")
    e("s_cmp_lg_u32 %s, 0" % sL)
    e("s_cbranch_scc1 %s" % h1)
    colsum_combine(CS1_L)
    e("s_waitcnt lgkmcnt(0)")
    lab(h1)
    e("s_barrier")
    fine("w")
    dma_w2(0, 0, 8, None)
    dma_w2(86, 78 * 1024, 8, None)
    dma_w2(32, 32 * 1024, 6, None)
    fine("w")
    e("s_barrier")
    fine("w")
    dma_w2(86 + 30, (78 + 30) * 1024, 12)
    dma_w2(54, 54 * 1024, 6)
    fine("w")
    lab(done)
    stamp()


def epilogue():
    e("s_add_u32 %s, %s, 1" % (sL, sL))
    e("s_add_u32 %s, %s, %d" % (sFB, sFB, LFL_L * 8))
    e("s_cmp_lt_u32 %s, 2" % sL)
    e("s_cbranch_scc1 L_layer")
    if PROFILE:
        e("s_memrealtime s[22:23]")
        e("s_waitcnt lgkmcnt(0)")
        stamp("s23")
        e("s_lshl_b32 %s, s2, 3" % T[0])
        e("s_add_u32 %s, %s, %s" % (T[0], T[0], sW))
        e("s_lshl_b32 %s, %s, 8" % (T[0], T[0]))
        e("s_add_u32 %s, %s, 0x%x" % (T[0], T[0], TSB))
        e("s_mov_b64 exec, 1")
        for i, r in enumerate([68, 18, 19] + list(range(STAMP0, STAMP0 + 30)) + [22, 23, 0, 1]):
            e("v_mov_b32 v16, s%d" % r)
            e("buffer_store_dword v16, off, %s, %s offset:%d" % (sWS, T[0], 4 * i))
        e("s_mov_b64 exec, 0xff")
        e("v_lshlrev_b32 v16, 2, v0")
        e("buffer_store_dword v5, v16, %s, %s offen offset:148" % (sWS, T[0]))
        e("s_mov_b64 exec, -1")
    if "--dbg" in sys.argv:
        sk = newlab("dbg")
        e("s_or_b32 %s, s2, %s" % (T[0], sW))
        e("s_cmp_lg_u32 %s, 0" % T[0])
        e("s_cbranch_scc1 %s" % sk)
        srd(sTMP, 30, 256)
        e("s_mov_b64 exec, 1")
        for i, r in enumerate([19, 72, 73, 74, 75, 76, 77, 80, 83, 86, 89, 90, 91, 95, 98, 101]):
            e("s_sub_u32 %s, s%d, s18" % (T[0], r))
            e("v_mov_b32 v16, %s" % T[0])
            e("buffer_store_dword v16, off, %s, 0 offset:%d" % (sTMP, 4 * i))
        e("s_mov_b64 exec, -1")
        lab(sk)
    if OPT("hold", 0):
        hl = newlab("hold")
        lab(hl)
        e("s_memrealtime s[70:71]")
        e("s_waitcnt lgkmcnt(0)")
        e("s_sub_u32 s70, s70, s68")
        e("s_cmp_lt_u32 s70, %d" % OPT("hold", 0))
        e("s_cbranch_scc1 %s" % hl)
    cm("advance the hand-off tag for the next launch")
    e("s_or_b32 %s, s2, %s" % (T[0], sW))
    e("s_cmp_lg_u32 %s, 0" % T[0])
    e("s_cbranch_scc1 L_end")
    e("s_mov_b64 exec, 1")
    e("buffer_store_dword %s, off, %s, 0" % (v(vFV), sWS))
    lab("L_end")
    e("s_endpgm")
    L.extend(TAIL)
    lab("L_code_end")


HEADER = open(f"cdna_kernels/{NAME}.s.ref").read().split("; Override launch")[0]


def main():
    prologue()
    p0()
    lab("L_layer")
    qkv()
    attention()
    n512("wo")
    ffn1()
    n512("f2")
    epilogue()
    k = NAME + "_kernel"
    out = HEADER
    out += "; @launch grid=(256,1,1) block=(512,1,1) lds=%d\n" % LDS_BYTES
    out += '.amdgcn_target "amdgcn-amd-amdhsa--gfx950"\n.text\n.globl %s\n.p2align 8\n.type %s,@function\n%s:\n' % (k, k, k)
    out += "\n".join(L) + "\n"
    out += """.section .rodata,"a"
.p2align 6
.amdhsa_kernel %s
  .amdhsa_next_free_vgpr 256
  .amdhsa_next_free_sgpr 102
  .amdhsa_accum_offset 256
  .amdhsa_group_segment_fixed_size 0
  .amdhsa_kernarg_size 88
  .amdhsa_user_sgpr_count 2
  .amdhsa_user_sgpr_kernarg_segment_ptr 1
  .amdhsa_system_sgpr_workgroup_id_x 1
.end_amdhsa_kernel
""" % k
    open(OUT, "w").write(out)
    import subprocess
    r = subprocess.run([sys.executable, "hazard.py", OUT], capture_output=True, text=True).stdout
    if not r.strip().endswith("violations 0"):
        print(r)


main()
```

```python
import struct
import sys

NAME = "interleave_layers__softmax_full_mha__mixer_channel_mlp__prompt"
PROFILE = "--prof" in sys.argv
CLK = "s_memrealtime" if "--rt" in sys.argv else "s_memtime"
FORCE_SLOW = "--slow" in sys.argv
FORCE_GLOBAL = "--global" in sys.argv
OUT = [a for a in sys.argv[1:] if not a.startswith("--")]
OUT = OUT[0] if OUT else f"cdna_kernels/{NAME}.s"


def OPT(name, default):
    a = [x.split("=")[1] for x in sys.argv if x.startswith("--%s=" % name)]
    return int(a[0]) if a else default


def f32(x):
    return "0x%08x" % struct.unpack("<I", struct.pack("<f", x))[0]


WS_SIZE = 0x10000000
FLG = 0x100000
FQG, FQG_L, FI = 0, 1024, 2048
GFL, GFL_L = 0xA00000, 0x100000
KVF, KVF_L = 0x200000, 0x400000
ARENA, ARENA_X = 0x1000000, 0x200000
XSTR, HSTR = 33 * 1024, 97 * 1024
XF, OF, BLK, ST, LFL = 0, 0x48000, 0x90000, 0x158000, 0x160000
X1F, ST1, HF, QF, KVL = XF, ST, BLK, BLK, BLK + 32768
FX, FQ, FA, FO, FH, LFL_L = 0, 128, 256, 512, 640, 768
TSB = 0x4000000
DEPTH = OPT("depth", 10)
PACE = OPT("pace", 5)
QPACE = OPT("qpace", 10)
RED = 140 * 1024
CONST = 156 * 1024
CSQ_L, CS1_L, B1_L, STAT_L, PART_L = CONST, CONST + 512, CONST + 1024, CONST + 1536, CONST + 2560
MODE_L = B1_L + 400
LDS_BYTES = 160 * 1024
sWS, sTMP = "s[4:7]", "s[8:11]"
sW, sNONCE, sL, sLB, sFB = "s34", "s35", "s36", "s37", "s38"
sXCD, sJ, sTBW, sC, sTBN, sNB, sKH, sNT, sHEAD, sQB = ("s%d" % i for i in range(39, 49))
sHW = "s49"
T = ["s%d" % i for i in range(50, 60)]
sCNT, sIT = "s60", "s61"
sMV = "s[62:63]"
sM0, sM1 = "s[64:65]", "s[66:67]"
sMODE = "s3"
STAMP0 = 72
vLANE, vL16, vFV, vPO, vT5, vPD = 0, 1, 2, 4, 5, 6
vRES = 8
vA, vACC, vWB, vSTS = 16, 144, 192, 228
vW0, vW1, vMU, vW2, vR, vW3, vRQ, vCA, vTR, vK16, vVOF, vH16 = 244, 245, 246, 247, 248, 249, 250, 251, 252, 253, 254, 255
vSTASH = 128
QL = 128 * 1024
POLL_LIMIT = 1 << 16

L = []
TAIL = []
uid = [0]
nstamp = [0]


def e(s):
    L.append("    " + s)


def lab(n):
    L.append(n + ":")


def cm(s):
    L.append("    ; " + s)


def v(i, n=1):
    return "v%d" % i if n == 1 else "v[%d:%d]" % (i, i + n - 1)


def capture(f):
    n = len(L)
    f()
    out = [x.strip() for x in L[n:]]
    del L[n:]
    return out


def newlab(p):
    uid[0] += 1
    return "L_%s_%d" % (p, uid[0])


def stamp(fixed=None):
    if not PROFILE:
        return
    e(CLK + " s[70:71]")
    e("s_waitcnt lgkmcnt(0)")
    if fixed:
        e("s_mov_b32 %s, s70" % fixed)
        return
    e("s_mul_i32 s69, %s, 15" % sL)
    e("s_add_u32 m0, s69, %d" % nstamp[0])
    e("s_nop 1")
    e("s_movreld_b32 s%d, s70" % STAMP0)
    nstamp[0] += 1
    assert nstamp[0] <= 15


FINE = [a.split("=")[1] for a in sys.argv if a.startswith("--fine=")]
FINE = FINE[0] if FINE else None
nfine = [0]
FINEKS = eval([a.split('=')[1] for a in sys.argv if a.startswith('--ks=')][0]) if any(a.startswith('--ks=') for a in sys.argv) else (0, 8, 16, 31)


def fine(phase):
    if not PROFILE or FINE != phase:
        return
    e(CLK + " s[70:71]")
    e("s_waitcnt lgkmcnt(0)")
    sk = newlab("fs")
    e("s_cmp_lg_u32 %s, %d" % (sL, 0 if "--l0" in sys.argv else 1))
    e("s_cbranch_scc1 %s" % sk)
    e("v_writelane_b32 v5, s70, %d" % nfine[0])
    lab(sk)
    nfine[0] += 1


def srd(dst, lo, size):
    b = int(dst[2:dst.index(":")])
    e("s_mov_b32 s%d, s%d" % (b, lo))
    e("s_and_b32 s%d, s%d, 0xffff" % (b + 1, lo + 1))
    e("s_mov_b32 s%d, %s" % (b + 2, size if isinstance(size, str) else hex(size)))
    e("s_mov_b32 s%d, 0x20000" % (b + 3))


def poll(soff):
    a, b = newlab("poll"), newlab("pok")
    e("s_mov_b32 %s, %d" % (sCNT, POLL_LIMIT))
    lab(a)
    e("buffer_load_dwordx2 %s, %s, %s, %s offen sc1" % (v(vPD, 2), v(vPO), sWS, soff))
    e("s_waitcnt vmcnt(0)")
    e("v_cmp_eq_u64 vcc, %s, %s" % (v(vPD, 2), v(vFV, 2)))
    e("s_nop 1")
    e("s_cmp_eq_u64 vcc, -1")
    e("s_cbranch_scc1 %s" % b)
    e("s_sub_u32 %s, %s, 1" % (sCNT, sCNT))
    e("s_cbranch_scc0 %s" % a)
    e("s_endpgm")
    lab(b)


def lstores(lines):
    g, d = newlab("wt"), newlab("wtd")
    e("s_cmp_eq_u32 %s, 0" % sMODE)
    e("s_cbranch_scc1 %s" % g)
    for x in lines:
        e(x + (" nt" if "--nt" in sys.argv and x.startswith("buffer_store_dwordx4") else ""))
    lab(d)
    TAIL.append(g + ":")
    for x in lines:
        TAIL.append("    " + x + (" sc1" if x.startswith("buffer_store") else ""))
    TAIL.append("    s_branch " + d)


def flag(soff, n=0, local=False):
    if n is not None and not (OPT("nodrain", 0) and local == 2):
        e("s_waitcnt vmcnt(%d)" % n)
    if local:
        e("s_mov_b64 exec, 1")
        lstores(["buffer_store_dwordx2 %s, off, %s, %s" % (v(vFV, 2), sWS, soff)])
    else:
        e("v_lshlrev_b32 %s, 3, v0" % v(vPD))
        e("s_mov_b64 exec, 0xffff")
        e("buffer_store_dwordx2 %s, %s, %s, %s offen sc1" % (v(vFV, 2), v(vPD), sWS, soff))
    e("s_mov_b64 exec, -1")


def mode_poll(first=False):
    a, b, glob, out = newlab("mp"), newlab("mpok"), newlab("mpg"), newlab("mpo")
    e("v_and_b32 %s, 31, v0" % v(vPD))
    e("v_lshlrev_b32 %s, 10, %s" % (v(vPD), v(vPD)))
    addr(T[3], None, FLG + FI * 128, [(sXCD, 128)])
    e("v_add_u32 %s, %s, %s" % (v(vPD), T[3], v(vPD)))
    if first:
        e("v_add_u32 %s, %s, %s" % (v(vPD + 1), T[0], v(vPO)))
        e("v_cmp_gt_u32 vcc, 32, v0")
        e("s_nop 1")
        e("v_cndmask_b32 v60, %s, %s, vcc" % (v(vPD), v(vPD + 1)))
    e("s_getreg_b32 %s, hwreg(HW_REG_XCC_ID, 0, 4)" % T[3])
    e("s_mov_b32 %s, %d" % (sCNT, POLL_LIMIT))
    e("s_mov_b32 %s, 1" % sMODE)
    lab(a)
    e("buffer_load_dwordx2 %s, v60, %s, 0 offen sc1" % (v(vPD, 2), sWS))
    e("s_waitcnt vmcnt(0)")
    e("v_xor_b32 %s, %s, %s" % (v(vPD + 1), v(vPD + 1), v(vFV + 1)))
    e("v_cmp_eq_u32 %s, %s, %s" % (sM0, v(vPD), v(vFV)))
    e("v_cmp_eq_u32 %s, %s, %s" % (sM1, T[3], v(vPD + 1)))
    e("v_cmp_gt_u32 vcc, 16, %s" % v(vPD + 1))
    e("s_nop 1")
    e("s_and_b64 %s, %s, %s" % (sM1, sM1, sM0))
    e("s_and_b64 vcc, vcc, %s" % sM0)
    if not FORCE_GLOBAL:
        e("s_cmp_eq_u64 %s, -1" % sM1)
        e("s_cbranch_scc1 %s" % out)
    e("s_cmp_eq_u32 vcc_hi, -1")
    e("s_cbranch_scc0 %s" % b)
    if not FORCE_GLOBAL:
        e("s_cmp_eq_u32 s67, -1")
        e("s_cbranch_scc0 %s" % glob)
    else:
        e("s_branch %s" % glob)
    lab(b)
    e("s_sub_u32 %s, %s, 1" % (sCNT, sCNT))
    e("s_cbranch_scc0 %s" % a)
    e("s_endpgm")
    lab(glob)
    e("s_mov_b32 %s, 0" % sMODE)
    if first:
        e("v_xor_b32 %s, 31, %s" % (v(vFV + 1), v(vFV + 1)))
        publish_addr(XF, ST, 0, FX)
        publish_x(None, 84)
        poll(T[0])
        e("v_xor_b32 %s, 31, %s" % (v(vFV + 1), v(vFV + 1)))
    lab(out)


def slot(dst, base, terms):
    e("s_add_u32 %s, %s, %d" % (dst, sFB, base * 8))
    for r, m in terms:
        e("s_mul_i32 %s, %s, %d" % (T[9], r, m * 8))
        e("s_add_u32 %s, %s, %s" % (dst, dst, T[9]))


def addr(dst, base_reg, const, terms):
    if base_reg is None:
        e("s_mov_b32 %s, 0x%x" % (dst, const))
    else:
        e("s_add_u32 %s, %s, 0x%x" % (dst, base_reg, const))
    for r, m in terms:
        e("s_mul_i32 %s, %s, %d" % (T[9], r, m))
        e("s_add_u32 %s, %s, %s" % (dst, dst, T[9]))


def load_frags(sg, first, n, reg_of, rebase=True):
    for j in range(first, first + n):
        if j % 4 == 0 or (j == first and rebase):
            e("s_add_u32 %s, %s, %d" % (T[8], sg, (j // 4) * 4096))
        e("buffer_load_dwordx4 %s, %s, %s, %s offen offset:%d sc1" %
          (v(reg_of(j), 4), v(vL16), sWS, T[8], (j % 4) * 1024))


def mfma(d, a, b, c):
    e("v_mfma_f32_32x32x16_bf16 %s, %s, %s, %s" % (v(d, 16), v(a, 4), v(b, 4), c if isinstance(c, str) else v(c, 16)))


def half_sum(a, b):
    e("s_nop 1")
    e("v_permlane32_swap_b32 %s, %s" % (v(a), v(b)))
    e("s_nop 1")
    e("v_add_f32 %s, %s, %s" % (v(a), v(a), v(b)))


def tile_stats(y, t):
    e("v_pk_add_f32 %s, %s, %s" % (v(t, 2), v(y, 2), v(y + 2, 2)))
    e("v_pk_mul_f32 %s, %s, %s" % (v(t + 2, 2), v(y, 2), v(y, 2)))
    for p in range(1, 8):
        if p > 1:
            e("v_pk_add_f32 %s, %s, %s" % (v(t, 2), v(t, 2), v(y + 2 * p, 2)))
        e("v_pk_fma_f32 %s, %s, %s, %s" % (v(t + 2, 2), v(y + 2 * p, 2), v(y + 2 * p, 2), v(t + 2, 2)))
    e("v_add_f32 %s, %s, %s" % (v(t), v(t), v(t + 1)))
    e("v_add_f32 %s, %s, %s" % (v(t + 2), v(t + 2), v(t + 3)))
    half_sum(t, t + 2)


def unpack(dst, src, n):
    for i in range(n):
        e("v_lshlrev_b32 %s, 16, %s" % (v(dst + 2 * i), v(src + i)))
        e("v_and_b32 %s, 0xffff0000, %s" % (v(dst + 2 * i + 1), v(src + i)))


def publish_addr(xoff, stoff, fbase_add, fbase):
    addr(T[4], sLB, xoff, [(sTBN, XSTR), (sNT, 2048)])
    e("s_lshr_b32 %s, %s, 2" % (T[6], sNT))
    e("s_and_b32 %s, %s, 3" % (T[7], sNT))
    addr(T[5], sLB, stoff, [(sTBN, 4096), (T[6], 1024), (T[7], 4)])
    slot(T[6], fbase, [(sTBN, 16), (sNT, 1)])
    if fbase_add:
        e("s_add_u32 %s, %s, %d" % (T[6], T[6], fbase_add))


def publish_x(y, t):
    lstores(["buffer_store_dwordx4 %s, %s, %s, %s offen" % (v(vRES, 4), v(vL16), sWS, T[4]),
             "buffer_store_dwordx4 %s, %s, %s, %s offen offset:1024" % (v(vRES + 4, 4), v(vL16), sWS, T[4])])
    if y is not None:
        tile_stats(y, t)
    lstores(["buffer_store_dword %s, %s, %s, %s offen" % (v(t), v(vL16), sWS, T[5])])
    flag(T[6], local=2)


def prologue():
    e("s_cmp_ge_u32 s2, 256")
    e("s_cbranch_scc1 L_end")
    e("s_load_dwordx16 s[12:27], s[0:1], 0")
    e("s_load_dwordx4 s[28:31], s[0:1], 64")
    e("s_load_dwordx2 s[32:33], s[0:1], 80")
    e("v_lshrrev_b32 v1, 6, v0")
    e("v_and_b32 v0, 63, v0")
    e("v_readfirstlane_b32 %s, v1" % sW)
    e("v_lshlrev_b32 %s, 4, v0" % v(vL16))
    cm("column part of a transposing-read address: (lane&3)*8 + ((lane>>4)&1)*32")
    e("v_and_b32 %s, 3, v0" % v(vTR))
    e("v_lshlrev_b32 %s, 3, %s" % (v(vTR), v(vTR)))
    e("v_bfe_u32 %s, v0, 4, 1" % v(vT5))
    e("v_lshl_or_b32 %s, %s, 5, %s" % (v(vTR), v(vT5), v(vTR)))
    e("v_lshrrev_b32 %s, 5, v0" % v(vT5))
    e("v_lshlrev_b32 %s, 4, %s" % (v(vH16), v(vT5)))
    cm("K fragments are stored with token bits 2 and 3 swapped (matches the sparse-MFMA key order)")
    e("v_and_b32 %s, 0x33, v0" % v(vK16))
    e("v_and_b32 %s, 4, v0" % v(vPO))
    e("v_lshl_or_b32 %s, %s, 1, %s" % (v(vK16), v(vPO), v(vK16)))
    e("v_and_b32 %s, 8, v0" % v(vPO))
    e("v_lshrrev_b32 %s, 1, %s" % (v(vPO), v(vPO)))
    e("v_or_b32 %s, %s, %s" % (v(vK16), v(vK16), v(vPO)))
    e("v_lshlrev_b32 %s, 4, %s" % (v(vK16), v(vK16)))
    cm("V store offset: head parity*128K + half*512 + d*16")
    e("v_and_b32 %s, 15, v0" % v(vVOF))
    e("v_lshlrev_b32 %s, 4, %s" % (v(vVOF), v(vVOF)))
    e("v_lshl_or_b32 %s, %s, 9, %s" % (v(vVOF), v(vT5), v(vVOF)))
    e("v_bfe_u32 %s, v0, 4, 1" % v(vPO))
    e("v_lshl_or_b32 %s, %s, 17, %s" % (v(vVOF), v(vPO), v(vVOF)))
    e("s_and_b32 %s, s2, 7" % sXCD)
    e("s_lshr_b32 %s, s2, 3" % sJ)
    e("s_and_b32 %s, %s, 3" % (sHW, sW))
    e("s_and_b32 %s, %s, 15" % (sC, sJ))
    if OPT("cx", 0):
        e("s_xor_b32 %s, %s, %d" % (sC, sC, OPT("cx", 0)))
    e("s_lshr_b32 %s, %s, 4" % (T[0], sJ))
    e("s_lshl_b32 %s, %s, 2" % (T[0], T[0]))
    e("s_add_u32 %s, %s, %s" % (sTBW, T[0], sHW))
    e("s_and_b32 %s, %s, 7" % (sNB, sJ))
    e("s_lshr_b32 %s, %s, 3" % (T[0], sJ))
    e("s_mov_b32 %s, %s" % (sHEAD, sJ))
    e("s_lshl_b32 %s, %s, 1" % (sTBN, T[0]))
    e("s_and_b32 %s, %s, 1" % (T[0], sW))
    e("s_add_u32 %s, %s, %s" % (sTBN, sTBN, T[0]))
    e("s_lshr_b32 %s, %s, 1" % (sKH, sHW))
    e("s_lshl_b32 %s, %s, 1" % (sNT, sNB))
    e("s_add_u32 %s, %s, %s" % (sNT, sNT, sKH))
    e("s_mov_b32 s62, 0xffff")
    e("s_mov_b32 s63, 0xffff")
    e("s_mov_b32 %s, 0" % sL)
    addr(sLB, None, ARENA, [(sXCD, ARENA_X)])
    e("s_add_u32 %s, %s, 0x%x" % (sFB, sLB, LFL))
    e("s_waitcnt lgkmcnt(0)")
    srd(sWS, 32, WS_SIZE)
    srd(sTMP, 12, 2048 * 1024)
    cm("hand-off tag: ws[0] only tells this launch's flags from an earlier launch's")
    e("s_load_dword %s, s[32:33], 0" % sNONCE)
    if OPT("hold", 0) and not PROFILE:
        e("s_memrealtime s[70:71]")
        e("s_waitcnt lgkmcnt(0)")
        e("s_mov_b32 s68, s70")
    if PROFILE:
        e("s_memrealtime s[70:71]")
        e("s_waitcnt lgkmcnt(0)")
        e("s_mov_b32 s68, s70")
        stamp("s18")


def make_tag():
    e("s_waitcnt lgkmcnt(0)")
    e("s_add_u32 %s, %s, 16" % (sNONCE, sNONCE))
    e("v_mov_b32 %s, %s" % (v(vFV), sNONCE))
    e("v_not_b32 %s, %s" % (v(vFV + 1), v(vFV)))


def p0():
    cm("================ P0 (waves 0-3): x tile -> residual registers, fragments and row statistics")
    p0end, noid, nox, npt = newlab("p0end"), newlab("noid"), newlab("nox"), newlab("npt")
    e("s_cmp_ge_u32 %s, 4" % sW)
    e("s_cbranch_scc1 %s" % nox)
    e("v_and_b32 %s, 31, v0" % v(vPO))
    e("v_lshlrev_b32 %s, 10, %s" % (v(vPO), v(vPO)))
    e("v_add_u32 %s, %s, %s" % (v(vPO), v(vPO), v(vH16)))
    addr(T[0], None, 0, [(sXCD, 262144), (sTBN, 32768), (sNT, 64)])
    for g in range(2):
        e("buffer_load_dwordx4 %s, %s, %s, %s offen offset:%d" % (v(vRES + 4 * g, 4), v(vPO), sTMP, T[0], 32 * g))
    PT = OPT("pt", 6)
    if PT & 1:
        cm("lines this wave is about to write: bring them into L2 now so the stores need no fill")
        e("v_lshlrev_b32 v17, 7, v0")
        addr(T[0], sLB, XF, [(sTBN, XSTR), (sNT, 2048)])
        e("s_mov_b64 exec, 0xffff")
        e("buffer_load_dword v18, v17, %s, %s offen sc1" % (sWS, T[0]))
        e("s_mov_b64 exec, -1")
    lab(nox)
    e("v_lshlrev_b32 v17, 7, v0")
    for bit, wave in ((1, OPT("w1", 6)), (2, OPT("w2", 5))):
        if not OPT("qft", 3) & bit:
            continue
        nq = newlab("nq")
        e("s_cmp_lg_u32 %s, %d" % (sW, wave))
        e("s_cbranch_scc1 %s" % nq)
        srd(sTMP, 14, 512 * 3072)
        if bit == 1:
            cm("first touch of Wqkv, one line per lane, spread over all workgroups")
            e("s_mul_i32 %s, s2, %d" % (T[0], 48 * 128))
            e("v_mov_b32 v19, v17")
        else:
            cm("one 128-byte column class of Wqkv arrives slowest: the die group requests its lines up front")
            addr(T[0], None, 384, [(sJ, 48 * 1024)])
            e("v_lshlrev_b32 v19, 10, v0")
        e("s_mov_b32 exec_hi, 0xffff")
        e("buffer_load_dword v16, v19, %s, %s offen" % (sTMP, T[0]))
        e("s_mov_b64 exec, -1")
        lab(nq)
    e("s_cmp_lg_u32 %s, 4" % sW)
    e("s_cbranch_scc1 %s" % npt)
    cm("statistics and flag lines receive partial writes: bring them into L2 first")
    addr(T[0], sLB, ST, [(sJ, 11 * 128)])
    e("s_mov_b64 exec, 0x7ff")
    e("buffer_load_dword v18, v17, %s, %s offen sc1" % (sWS, T[0]))
    e("s_mov_b64 exec, -1")
    lab(npt)
    if OPT("cpf", 0):
        ncp = newlab("ncp")
        e("s_cmp_lg_u32 %s, 6" % sW)
        e("s_cbranch_scc1 %s" % ncp)
        cm("pull this kernel's instruction lines into the die's L2 (8 lines per workgroup)")
        e("s_getpc_b64 s[64:65]")
        lab("L_pc")
        e("s_lshl_b32 %s, %s, 10" % (T[0], sJ))
        e("v_add_u32 v20, %s, v17" % T[0])
        e("v_min_u32 v20, L_code_end-L_pc-4, v20")
        e("v_mov_b32 v21, s65")
        e("v_add_co_u32 v20, vcc, s64, v20")
        e("s_nop 1")
        e("v_addc_co_u32 v21, vcc, 0, v21, vcc")
        e("s_mov_b64 exec, 0xff")
        e("global_load_dword v18, v[20:21], off")
        e("s_mov_b64 exec, -1")
        lab(ncp)
    if OPT("tlb", 0):
        ntl = newlab("ntl")
        e("s_cmp_lg_u32 %s, 5" % sW)
        e("s_cbranch_scc1 %s" % ntl)
        cm("touch this die's slice of every K/V head block early (address translation)")
        e("v_lshlrev_b32 v19, 17, v0")
        addr(T[0], None, KVF, [(sXCD, 16384)])
        e("buffer_load_dword v18, v19, %s, %s offen sc1" % (sWS, T[0]))
        lab(ntl)
    e("s_cmp_ge_u32 %s, 4" % sW)
    e("s_cbranch_scc1 %s" % p0end)
    stamp("s0")
    make_tag()
    e("s_getreg_b32 %s, hwreg(HW_REG_XCC_ID, 0, 4)" % T[7])
    e("s_mov_b32 %s, 1" % sMODE)
    e("v_xor_b32 %s, %s, %s" % (v(vFV + 1), T[7], v(vFV + 1)))
    publish_addr(XF, ST, 0, FX)
    nid = newlab("nid")
    e("s_cmp_lg_u32 %s, 0" % sW)
    e("s_cbranch_scc1 %s" % nid)
    e("s_lshl_b32 %s, s2, 7" % T[8])
    e("s_add_u32 %s, %s, 0x%x" % (T[8], T[8], FLG + FI * 128))
    flag(T[8], None)
    npf = PT & 1
    e("s_waitcnt vmcnt(%d)" % (1 + npf))
    e("s_branch %s" % noid)
    lab(nid)
    e("s_waitcnt vmcnt(%d)" % npf)
    lab(noid)
    stamp("s1")
    for g in range(2):
        e("v_permlane32_swap_b32 %s, %s" % (v(vRES + 4 * g), v(vRES + 4 * g + 2)))
        e("v_permlane32_swap_b32 %s, %s" % (v(vRES + 4 * g + 1), v(vRES + 4 * g + 3)))
    e("s_nop 0")
    unpack(66, vRES, 8)
    publish_x(66, 84)
    e("s_nop 0")
    e("v_not_b32 %s, %s" % (v(vFV + 1), v(vFV)))
    lab(p0end)
    stamp("s19")


def tr_pair(dst):
    tr_rows(dst, 128)
    e("v_bfe_u32 %s, v0, 3, 1" % v(vPD))
    e("v_lshl_or_b32 %s, %s, 6, %s" % (v(dst), v(vPD), v(dst)))


def tr_rows(dst, rowbytes):
    e("v_bfe_u32 %s, v0, 2, 2" % v(dst))
    e("v_lshrrev_b32 %s, 2, %s" % (v(vPD), v(vH16)))
    e("v_add_u32 %s, %s, %s" % (v(dst), v(dst), v(vPD)))
    e("v_mul_u32_u24 %s, %d, %s" % (v(dst), rowbytes, v(dst)))
    e("v_add_u32 %s, %s, %s" % (v(dst), v(dst), v(vTR)))


def voff_128(dst, row=1024):
    e("v_lshrrev_b32 %s, 3, v0" % v(dst))
    e("v_mul_u32_u24 %s, %d, %s" % (v(dst), row, v(dst)))
    e("v_and_b32 %s, 7, v0" % v(vPD))
    e("v_lshrrev_b32 %s, 2, v0" % v(vPD + 1))
    e("v_and_b32 %s, 4, %s" % (v(vPD + 1), v(vPD + 1)))
    e("v_xor_b32 %s, %s, %s" % (v(vPD), v(vPD), v(vPD + 1)))
    e("v_lshl_or_b32 %s, %s, 4, %s" % (v(dst), v(vPD), v(dst)))


def voff_192(dst):
    for i in range(3):
        e("v_add_u32 %s, %d, v0" % (v(vPD), 64 * i))
        e("v_mul_u32_u24 %s, 5462, %s" % (v(vPD + 1), v(vPD)))
        e("v_lshrrev_b32 %s, 16, %s" % (v(vPD + 1), v(vPD + 1)))
        e("v_mul_u32_u24 %s, %d, %s" % (v(dst + i), 2752 - 192, v(vPD + 1)))
        e("v_lshl_add_u32 %s, %s, 4, %s" % (v(dst + i), v(vPD), v(dst + i)))


def dma1(vo, sg, cls):
    e("buffer_load_dwordx4 %s, %s, %s offen%s lds" % (v(vo), sTMP, sg, " nt" if OPT("wnt", 0) & cls else ""))


def dma_loop(n, body):
    lp = newlab("dl")
    e("s_mov_b32 %s, %d" % (T[2], n))
    lab(lp)
    body()
    e("s_sub_u32 %s, %s, 1" % (T[2], T[2]))
    e("s_cmp_lg_u32 %s, 0" % T[2])
    e("s_cbranch_scc1 %s" % lp)


def dma_w2(piece0, lds0, n, pace=PACE):
    addr(T[0], None, piece0 * 8192, [(sHW, n * 8192), (sNB, 128)])
    addr(T[1], None, lds0, [(sHW, n * 1024)])

    def body():
        e("s_mov_b32 m0, %s" % T[1])
        e("s_add_u32 %s, %s, 1024" % (T[1], T[1]))
        dma1(40, T[0], 4)
        e("s_add_u32 %s, %s, 8192" % (T[0], T[0]))
        if pace:
            e("s_waitcnt vmcnt(%d)" % max(pace, 0))
    dma_loop(n, body)


def dma_w1(n):
    def body():
        for i in range(3):
            e("s_add_u32 m0, %s, %d" % (T[1], 1024 * i))
            e("s_nop 0")
            dma1(44 + i, T[0], 2)
        e("s_add_u32 %s, %s, %d" % (T[0], T[0], 16 * 2752))
        e("s_add_u32 %s, %s, 3072" % (T[1], T[1]))
    dma_loop(n, body)


def wq_begin():
    srd(sTMP, 14, 512 * 3072)
    voff_128(44, 3072)
    e("v_lshrrev_b32 v40, 2, v0")
    e("v_mul_u32_u24 v40, 3072, v40")
    e("v_and_b32 v41, 3, v0")
    e("v_lshl_or_b32 v40, v41, 4, v40")
    cm("odd groups take a K column pair, even groups a V column pair; every group takes one Q tile")
    e("s_and_b32 %s, %s, 1" % (T[0], sC))
    e("s_lshr_b32 %s, %s, 1" % (T[1], sC))
    e("s_mul_i32 %s, %s, -1024" % (T[0], T[0]))
    addr(T[3], T[0], 2048, [(sHW, 2 * 49152), (T[1], 128)])
    addr(T[5], None, 0, [(sHW, 2 * 49152), (sC, 64)])
    e("s_lshl_b32 %s, %s, 12" % (T[4], sHW))
    addr(T[6], None, 65536, [(sHW, 2048)])


def wq_chunk():
    for k in range(4):
        e("s_add_u32 m0, %s, %d" % (T[4], 1024 * k))
        e("s_nop 0")
        e("buffer_load_dwordx4 v44, %s, %s offen lds" % (sTMP, T[3]))
        e("s_add_u32 %s, %s, %d" % (T[3], T[3], 24576 if k < 3 else 24576 + 6 * 49152))
        if k % 2:
            e("s_add_u32 m0, %s, %d" % (T[6], 1024 * (k // 2)))
            e("s_nop 0")
            e("buffer_load_dwordx4 v40, %s, %s offen lds" % (sTMP, T[5]))
            e("s_add_u32 %s, %s, %d" % (T[5], T[5], 49152 if k == 1 else 7 * 49152))
    e("s_add_u32 %s, %s, 16384" % (T[4], T[4]))
    e("s_add_u32 %s, %s, 8192" % (T[6], T[6]))


CSA = 64


def colsum_begin():
    for r in range(48):
        e("v_mov_b32 v%d, 0" % (CSA + r))
    for r in range(4):
        e("v_mov_b32 v%d, 0x3f803f80" % (52 + r))


def colsum2(regs, steps, seconds):
    for k in range(2):
        for i in range(3):
            for h in range(2):
                e("ds_read_b64_tr_b16 %s, v%d offset:%d" % (v(16 + 12 * k + 4 * i + 2 * h, 2), regs[i], k * steps[i] + h * seconds[i]))
    for k in range(6):
        e("s_waitcnt lgkmcnt(%d)" % (10 - 2 * k))
        mfma(CSA + 16 * (k % 3), 52, 16 + 4 * k, CSA + 16 * (k % 3))


def colsum_w1():
    e("v_add_u32 v42, %s, v43" % T[0])
    e("v_add_u32 v48, 64, v42")
    e("v_add_u32 v50, 128, v42")
    colsum2((42, 48, 50), (3072,) * 3, (1536,) * 3)


def colsum_partial():
    e("v_and_b32 v41, 31, v0")
    e("v_lshlrev_b32 v41, 2, v41")
    addr(T[0], None, PART_L, [(sHW, 384)])
    e("v_add_u32 v42, %s, v41" % T[0])
    e("s_nop 7")
    for i in range(3):
        e("ds_write_b32 v42, v%d offset:%d" % (CSA + 16 * i, 128 * i))


def colsum_combine(dst_l):
    e("s_min_u32 %s, %s, 2" % (T[0], sHW))
    e("s_lshl_b32 %s, %s, 7" % (T[0], T[0]))
    e("v_add_u32 v41, %s, v41" % T[0])
    e("v_add_u32 v42, %d, v41" % PART_L)
    for k in range(4):
        e("ds_read_b32 v%d, v42 offset:%d" % (16 + k, 384 * k))
    e("v_add_u32 v41, %d, v41" % dst_l)
    e("s_waitcnt lgkmcnt(0)")
    e("v_add_f32 v16, v16, v17")
    e("v_add_f32 v18, v18, v19")
    e("v_add_f32 v16, v16, v18")
    e("ds_write_b32 v41, v16")


def stats_code(second_ln):
    c = []
    for k in range(1, 16):
        c.append("v_add_f32 %s, %s, %s" % (v(vSTS), v(vSTS), v(vSTS + k)))
    c += ["v_mov_b32 %s, %s" % (v(vSTS + 1), v(vSTS)), "s_nop 1",
          "v_permlane32_swap_b32 %s, %s" % (v(vSTS), v(vSTS + 1)), "s_nop 1",
          "v_mul_f32 %s, %s, %s" % (v(vMU), f32(1.0 / 512), v(vSTS)),
          "v_mul_f32 %s, %s, %s" % (v(vSTS + 1), f32(1.0 / 512), v(vSTS + 1)),
          "v_fma_f32 %s, -%s, %s, %s" % (v(vSTS + 1), v(vMU), v(vMU), v(vSTS + 1)),
          "v_max_f32 %s, 0, %s" % (v(vSTS + 1), v(vSTS + 1)),
          "v_add_f32 %s, %s, %s" % (v(vSTS + 2), f32(1e-5), v(vSTS + 1)),
          "v_rsq_f32 %s, %s" % (v(vR), v(vSTS + 2)), "s_nop 0"]
    if second_ln:
        c += ["v_mul_f32 %s, %s, %s" % (v(vSTS + 2), v(vR), v(vR)),
              "v_mul_f32 %s, %s, %s" % (v(vSTS + 2), v(vSTS + 2), v(vSTS + 1)),
              "v_add_f32 %s, %s, %s" % (v(vSTS + 2), f32(1e-5), v(vSTS + 2)),
              "v_rsq_f32 %s, %s" % (v(vSTS + 2), v(vSTS + 2)), "s_nop 0",
              "v_mul_f32 %s, %s, %s" % (v(vR), v(vR), v(vSTS + 2))]
    return c


def center(acc, cs, p):
    e("v_pk_fma_f32 %s, %s, %s, %s op_sel_hi:[0,1,1] neg_lo:[1,0,0] neg_hi:[1,0,0]" %
      (v(acc + 2 * p, 2), v(vMU, 2), v(cs + 2 * p, 2), v(acc + 2 * p, 2)))


PKV = 116


def stash_addr():
    e("s_mul_i32 %s, %s, 24576" % (T[0], sHW))
    e("v_add_u32 v42, %s, %s" % (T[0], v(vL16)))


class Lds:
    def __init__(self):
        self.ops, self.done = [], 0

    def op(self, name, text):
        e(text)
        self.ops.append(name)

    def need(self, name):
        last = max(i for i, n in enumerate(self.ops) if n == name)
        if last < self.done:
            return None
        self.done = last + 1
        return min(15, len(self.ops) - 1 - last)


def qkv_body(isk, done):
    H = 16

    def item(n):
        if n < 32:
            load_frags(T[1], n, 1, lambda j: vA + 4 * j, n % 4 == 0)
        else:
            e("buffer_load_dwordx4 %s, %s, %s, %s offen offset:%d sc1" % (v(vSTS + 4 * (n - 32), 4), v(vL16), sWS, T[2], 1024 * (n - 32)))
    sched = [[ks + DEPTH] if ks + DEPTH < 32 else [] for ks in range(32)]
    for k in range(4):
        sched[3 + 2 * k].append(32 + k)
    order = list(range(DEPTH))
    lds = Lds()

    def rd(ks, i, d):
        base, off, sec = ((vW0, vW2)[i], ks * 2048, 1024) if i < 2 else (vW1, ks * 1024, 512)
        lds.op(("w", i, ks), "ds_read_b64_tr_b16 %s, %s offset:%d" % (v(d, 2), v(base), off))
        lds.op(("w", i, ks), "ds_read_b64_tr_b16 %s, %s offset:%d" % (v(d + 2, 2), v(base), off + sec))

    def wait(name):
        n = lds.need(name)
        if n is not None:
            e("s_waitcnt lgkmcnt(%d)" % n)
    wb1 = lambda ks, i: vWB + (ks % 3) * 12 + 4 * i
    wb2 = lambda ks: vWB + (12 * (ks - H) + 8 if ks < H + 3 else [0, 4, 12, 16, 24, 28, 8, 20, 32][(ks - H - 3) % 9])
    tiles = lambda ks: (2, 0, 1) if ks < H else (0, 1)
    for ks in range(2):
        for i in tiles(ks):
            rd(ks, i, wb1(ks, i))
    fine("q")
    SA, SB, SC = vPO, vPD, vPD + 1
    PK, C0, C1, VC, QC = vA, vA + 16, vA + 32, vA + 48, vSTS

    def addresses():
        e("s_lshr_b32 %s, %s, 1" % (T[0], sC))
        addr(T[4], None, KVF, [(sL, KVF_L), (T[0], 4 * 131072), (sXCD, 16384), (sTBW, 2048)])
        addr(T[2], sLB, KVL, [(T[0], 8192), (sTBW, HSTR)])
        slot(T[6], FQ, [(sC, 8), (sTBW, 1)])
        addr(T[7], None, GFL, [(sL, GFL_L), (sC, 65536), (sXCD, 8192), (sTBW, 1024)])
        addr(T[3], sLB, QF, [(sC, 2048), (sTBW, HSTR)])
        if not isk:
            e("v_and_b32 %s, 31, v0" % v(SA))
            e("v_lshlrev_b32 %s, 2, %s" % (v(SA), v(SA)))
            addr(T[0], None, STAT_L, [(sHW, 256)])
            e("v_add_u32 %s, %s, %s" % (v(SB), T[0], v(SA)))
            e("v_add_u32 %s, %s, %s" % (v(SC), T[0], v(vH16)))
            e("v_add_u32 %s, %d, %s" % (v(SA), CSQ_L, v(SA)))
    sh = [lambda x=x: e(x) for x in capture(addresses) + stats_code(False)]
    sh.append(lambda: e("v_mul_f32 %s, %s, %s" % (v(vRQ), f32(0.25 * 1.4426950408889634), v(vR))))
    if isk:
        for k in range(8):
            sh.append(lambda k=k: lds.op("c", "ds_read_b128 %s, %s offset:%d" % (v(C0 + 4 * k, 4), v(vCA), 32 * k)))
    else:
        sh.append(lambda: lds.op("sw", "ds_write_b32 %s, %s" % (v(SB), v(vMU))))
        sh.append(lambda: lds.op("sw", "ds_write_b32 %s, %s offset:128" % (v(SB), v(vR))))
        for k in range(8):
            sh.append(lambda k=k: lds.op("c", "ds_read_b128 %s, %s offset:%d" % (v(C0 + 4 * k, 4), v(SC), 32 * k)))
        for t in range(2):
            sh.append(lambda t=t: lds.op("c", "ds_read_b32 %s, %s offset:%d" % (v(VC + t), v(SA), 128 * t)))
    nsal = len(capture(addresses))
    pos = 0
    for ks in range(32):
        if ks in (16, 22):
            e("s_barrier")
        newest = max(order.index(n) for n in ([ks, 35] if ks >= 18 else [ks]))
        e("s_waitcnt vmcnt(%d) lgkmcnt(%d)" % (len(order) - 1 - newest, lds.need(("w", 1, ks))))
        if ks in FINEKS:
            fine("q")
        for m, i in enumerate(tiles(ks)):
            c = "0" if ks == 0 else vACC + 16 * i
            if i < 2 and not isk:
                mfma(vACC + 16 * i, vA + 4 * ks, wb1(ks, i), c)
            else:
                mfma(vACC + 16 * i, wb1(ks, i), vA + 4 * ks, c)
            if ks + 2 < 32 and i in tiles(ks + 2):
                rd(ks + 2, i, wb1(ks + 2, i))
            elif ks >= 30 and (i == 0 or ks == 30):
                k2 = H + (ks - 30) * 2 + i
                rd(k2, 2, wb2(k2))
            if m < len(sched[ks]):
                item(sched[ks][m])
                order.append(sched[ks][m])
            if ks >= 10:
                for _ in range(2):
                    if pos < len(sh) and (pos < nsal or ks >= 18):
                        sh[pos]()
                        pos += 1
    assert pos == len(sh), (pos, len(sh))
    cm("remaining Q k-steps with the pair's epilogue underneath")
    fill = [lambda: wait("c")]
    for i in range(4):
        fill.append(lambda i=i: lds.op("qc", "ds_read_b128 %s, %s offset:%d" % (v(QC + 4 * i, 4), v(vCA), 256 + 32 * i)))
    fill.append(lambda: e("s_add_u32 %s, %s, 0x%x" % (T[5], T[4], 0x20000 if isk else 0x40000)))
    fill.append(lambda: e("s_add_u32 %s, %s, 4096" % (T[0], T[2])))
    if isk:
        fill.append(lambda: e("s_add_u32 %s, %s, 0x40000" % (T[8], T[4])))
        fill.append(lambda: e("s_add_u32 %s, %s, 0x60000" % (T[1], T[4])))
    else:
        fill.append(lambda: e("v_and_b32 %s, 0x1ffff, %s" % (v(SC), v(vVOF))))
        fill.append(lambda: e("v_lshrrev_b32 %s, 17, %s" % (v(SB), v(vVOF))))
        fill.append(lambda: e("v_lshl_or_b32 %s, %s, 11, %s" % (v(SC), v(SB), v(SC))))
    local = []
    for t in range(2):
        a = vACC + 16 * t
        for r in range(16):
            if isk:
                fill.append(lambda a=a, t=t, r=r: e("v_fma_f32 %s, -%s, %s, %s" % (v(a + r), v(vMU), v(C0 + 16 * t + r), v(a + r))))
            else:
                fill.append(lambda a=a, t=t, r=r: e("v_fma_f32 %s, -%s, %s, %s" % (v(a + r), v(C0 + r), v(VC + t), v(a + r))))
        for r in range(16):
            fill.append(lambda a=a, r=r: e("v_mul_f32 %s, %s, %s" % (v(a + r), v(vR if isk else C1 + r), v(a + r))))
        for p in range(8):
            fill.append(lambda a=a, t=t, p=p: e("v_cvt_pk_bf16_f32 %s, %s, %s" % (v(PK + 8 * t + p), v(a + 2 * p), v(a + 2 * p + 1))))
        for hh in range(2):
            d = v(PK + 8 * t + 4 * hh, 4)
            if isk:
                g = "%s, %s, %s, %s offen" % (d, v(vK16), sWS, (T[4], T[5], T[8], T[1])[2 * t + hh])
                local.append("buffer_store_dwordx4 %s, %s, %s, %s offen offset:%d" % (d, v(vK16), sWS, (T[2], T[0])[t], 2048 * hh))
            else:
                g = "%s, %s, %s, %s offen offset:%d" % (d, v(vVOF), sWS, (T[4], T[5])[t], 1024 + 256 * hh)
                local.append("buffer_store_dwordx4 %s, %s, %s, %s offen offset:%d" % (d, v(SC), sWS, (T[2], T[0])[t], 1024 + 256 * hh))
            fill.append(lambda g=g: e("buffer_store_dwordx4 " + g + " sc1"))
    fill.append(lambda: lstores(local))
    per = -(-len(fill) // (32 - H))
    aQ = vACC + 32
    for ks in range(H, 32):
        wait(("w", 2, ks + 1 if ks % 2 == 0 and H + 2 < ks < 31 else ks))
        mfma(aQ, wb2(ks), vA + 4 * ks, aQ)
        if ks == H:
            fine("q")
        for n in ([H + 3, H + 4] if ks == H else [H + 5, H + 6] if ks == H + 1 else [ks + 5] if ks + 5 < 32 else []):
            rd(n, 2, wb2(n))
        for f in fill[(ks - H) * per:(ks + 1 - H) * per]:
            f()
    e("s_barrier")
    stamp()
    wait("qc")
    e("s_nop %d" % max(0, 10 - len(fill[(31 - H) * per:])))
    for p in range(8):
        center(aQ, QC, p)
    for p in range(8):
        e("v_pk_mul_f32 %s, %s, %s op_sel_hi:[1,0]" % (v(aQ + 2 * p, 2), v(aQ + 2 * p, 2), v(vRQ, 2)))
    for p in range(8):
        e("v_cvt_pk_bf16_f32 %s, %s, %s" % (v(C1 + p), v(aQ + 2 * p), v(aQ + 2 * p + 1)))
    lstores(["buffer_store_dwordx4 %s, %s, %s, %s offen offset:%d" % (v(C1 + 4 * hh, 4), v(vL16), sWS, T[3], 1024 * hh) for hh in range(2)])
    fine("q")
    for k in range(4):
        e("v_mov_b32 %s, %s" % (v(vSTS + k), v(vFV + k % 2)))
    flag(T[6], 0, local=True)
    e("buffer_store_dwordx4 %s, %s, %s, %s offen sc1" % (v(vSTS, 4), v(vL16), sWS, T[7]))
    e("s_branch %s" % done)


def qkv():
    cm("================ QKV projection")
    hl, done, kb = newlab("qkv_h"), newlab("qkv_done"), newlab("qkv_k")
    e("s_cmp_ge_u32 %s, 4" % sW)
    e("s_cbranch_scc1 %s" % hl)
    e("v_and_b32 %s, 15, v0" % v(vPO))
    e("v_lshlrev_b32 %s, 3, %s" % (v(vPO), v(vPO)))
    slot(T[0], FX, [(sTBW, 16)])
    addr(T[1], sLB, XF, [(sTBW, XSTR)])
    addr(T[2], sLB, ST, [(sTBW, 4096)])
    e("v_add_u32 %s, %d, %s" % (v(vCA), CONST, v(vH16)))
    tr_pair(vW0)
    e("v_xor_b32 %s, 64, %s" % (v(vW2), v(vW0)))
    tr_rows(vW1, 64)
    e("v_add_u32 %s, 0x10000, %s" % (v(vW1), v(vW1)))
    l1, l2 = newlab("fx"), newlab("fx")
    e("s_cmp_lg_u32 %s, 0" % sL)
    e("s_cbranch_scc1 %s" % l1)
    mode_poll(True)
    e("v_mov_b32 v60, %s" % sMODE)
    e("v_mov_b32 v61, %d" % MODE_L)
    e("ds_write_b32 v61, v60")
    e("s_waitcnt lgkmcnt(0)")
    e("s_branch %s" % l2)
    lab(l1)
    poll(T[0])
    lab(l2)
    stamp()
    load_frags(T[1], 0, DEPTH, lambda j: vA + 4 * j)
    fine("q")
    e("s_barrier")
    e("s_bitcmp1_b32 %s, 0" % sC)
    e("s_cbranch_scc1 %s" % kb)
    n0, f0 = nstamp[0], nfine[0]
    qkv_body(False, done)
    lab(kb)
    nstamp[0], nfine[0] = n0, f0
    qkv_body(True, done)
    lab(hl)
    h1, h2, lp = newlab("qh1"), newlab("qh2"), newlab("qhl")
    e("s_cmp_lg_u32 %s, 0" % sL)
    e("s_cbranch_scc1 %s" % h1)
    wq_begin()
    if FINE == "h":
        make_tag()
        fine("h")
    dma_loop(2, wq_chunk)
    fine("h")
    if FINE != "h":
        make_tag()
    colsum_begin()
    tr_pair(42)
    e("s_lshl_b32 %s, %s, 12" % (T[0], sHW))
    e("v_add_u32 v42, %s, v42" % T[0])
    e("v_xor_b32 v48, 64, v42")
    tr_rows(50, 64)
    addr(T[0], None, 65536, [(sHW, 2048)])
    e("v_add_u32 v50, %s, v50" % T[0])
    e("s_mov_b32 %s, 0" % sIT)
    lab(lp)
    b1, b2 = newlab("qw"), newlab("qw")
    e("s_cmp_ge_u32 %s, 2" % sIT)
    e("s_cbranch_scc1 %s" % b1)
    wq_chunk()
    e("s_waitcnt vmcnt(12)")
    e("s_branch %s" % b2)
    lab(b1)
    e("s_waitcnt vmcnt(6)")
    e("s_cmp_eq_u32 %s, 2" % sIT)
    e("s_cbranch_scc1 %s" % b2)
    e("s_waitcnt vmcnt(0)")
    lab(b2)
    fine("h")
    colsum2((42, 48, 50), (2048, 2048, 1024), (1024, 1024, 512))
    e("v_add_u32 v42, 16384, v42")
    e("v_add_u32 v48, 16384, v48")
    e("v_add_u32 v50, 8192, v50")
    e("s_add_u32 %s, %s, 1" % (sIT, sIT))
    e("s_cmp_lt_u32 %s, 4" % sIT)
    e("s_cbranch_scc1 %s" % lp)
    colsum_partial()
    fine("h")
    e("s_waitcnt lgkmcnt(0)")
    e("s_barrier")
    fine("h")
    colsum_combine(CSQ_L)
    e("v_mov_b32 v61, %d" % MODE_L)
    e("ds_read_b32 v60, v61")
    cm("park the weight tile in registers for the second layer pair")
    stash_addr()
    for k in range(24):
        e("ds_read_b128 %s, v42 offset:%d" % (v(vSTASH + 4 * k, 4), 1024 * k))
    e("s_waitcnt lgkmcnt(15)")
    e("v_readfirstlane_b32 %s, v60" % sMODE)
    e("s_branch %s" % h2)
    lab(h1)
    e("s_waitcnt lgkmcnt(0)")
    e("s_barrier")
    lab(h2)
    cm("lanes 0-15: Q lines; lanes 16-47: the K or V kilobyte of four head blocks")
    e("v_subrev_u32 v20, 16, v0")
    e("v_lshrrev_b32 v21, 3, v20")
    e("v_lshlrev_b32 v21, 10, v21")
    e("v_lshl_add_u32 v20, v20, 7, v21")
    e("s_lshr_b32 %s, %s, 1" % (T[1], sC))
    e("s_and_b32 %s, %s, 1" % (T[2], sC))
    addr(T[3], None, 32768 + 1024, [(T[1], 8192), (T[2], -1024), (sC, -2048)])
    e("v_add_u32 v20, %s, v20" % T[3])
    e("v_lshlrev_b32 v19, 7, v0")
    e("v_cmp_lt_u32 vcc, 15, v0")
    addr(T[0], sLB, BLK, [(sTBW, HSTR), (sC, 2048)])
    e("v_cndmask_b32 v19, v19, v20, vcc")
    e("s_waitcnt lgkmcnt(0)")
    e("s_barrier")
    e("s_barrier")
    cm("all activation loads are out: bring in the lines the Q/K/V stores will write, so they need no fill")
    e("s_mov_b32 exec_hi, 0xffff")
    e("buffer_load_dword v21, v19, %s, %s offen sc1" % (sWS, T[0]))
    e("s_mov_b64 exec, -1")
    e("s_cmp_lg_u32 %s, 0" % sL)
    e("s_cbranch_scc1 %s" % done)
    cm("this workgroup's slices of b1 and b2; they are staged in LDS after attention")
    srd(sTMP, 22, 2752)
    e("v_and_b32 v19, 31, v0")
    e("v_lshlrev_b32 v19, 1, v19")
    addr(T[0], None, 0, [(sHW, 64), (sC, 192)])
    e("buffer_load_ushort v224, v19, %s, %s offen" % (sTMP, T[0]))
    srd(sTMP, 26, 1024)
    e("s_and_b32 %s, %s, 1" % (T[4], sHW))
    addr(T[0], None, 0, [(T[4], 64), (sNB, 128)])
    e("buffer_load_ushort v225, v19, %s, %s offen" % (sTMP, T[0]))
    lab(done)
    stamp()


def attention():
    cm("================ attention: S^T = K Q^T, P = exp2(S^T), O^T += V^T P via sparse MFMA")
    S, O, Q, KB, VB, IDX, AD, VO, CN = (16, 32), 48, 64, (68, 72), (76, 84), 92, 93, 94, 100
    PF = 100
    KVG, LP, CH, GF, ISS = T[2], T[3], T[4], T[5], T[6]
    cm("rows 16 and 20 of the V operand are ones (row sums for both lane halves); the other spare rows are zero")
    e("v_and_b32 %s, 27, v0" % v(IDX))
    e("v_cmp_eq_u32 vcc, 16, %s" % v(IDX))
    e("v_mov_b32 %s, 0x3f803f80" % v(AD))
    e("s_nop 0")
    for i in range(16):
        e("v_mov_b32 %s, 0" % v(O + i))
        e("v_cndmask_b32 %s, 0, %s, vcc" % (v(VB[0] + i), v(AD)))
    for i in range(8):
        e("v_mov_b32 %s, 0" % v(S[1] + 8 + i))
    e("v_mov_b32 %s, 0xdddddddd" % v(IDX))
    e("v_mov_b32 %s, 0" % v(PF + 6))
    e("v_mov_b32 %s, %s" % (v(AD), v(vL16)))
    voff_128(VO)
    voff_192(VO + 1)
    e("s_mov_b32 %s, 1" % ISS)
    a1 = newlab("a1")
    e("s_cmp_lt_u32 %s, 4" % sW)
    e("s_cbranch_scc1 %s" % a1)
    cm("waves 4-7 fetch Q and this die's K/V, and later the other dies' K/V")
    e("v_and_b32 %s, 15, v0" % v(vPO))
    e("v_lshlrev_b32 %s, 3, %s" % (v(vPO), v(vPO)))
    e("s_lshr_b32 %s, %s, 2" % (T[1], sHEAD))
    e("s_lshl_b32 %s, %s, 1" % (T[1], T[1]))
    addr(GF, None, GFL, [(sL, GFL_L), (T[1], 65536), (sXCD, 128)])
    slot(T[0], FQ, [(T[1], 8)])
    addr(T[1], sLB, QF, [(sHEAD, 1024), (sHW, 2 * HSTR)])
    addr(KVG, None, KVF, [(sL, KVF_L), (sHEAD, 131072), (sHW, 4096)])
    addr(T[8], sLB, KVL, [(sHEAD, 2048), (sHW, 2 * HSTR)])
    addr(T[7], None, QL, [(sHW, 2048)])
    e("s_lshl_b32 %s, %s, 12" % (LP, sHW))
    e("s_add_u32 %s, %s, 1" % (CH, sXCD))
    e("s_mov_b32 %s, 0" % ISS)
    cm("last barrier of the projection: its weight tile in LDS is dead from here on")
    e("s_barrier")
    poll(T[0])
    for b in range(2):
        e("s_add_u32 m0, %s, %d" % (LP, 2048 * b))
        e("v_lshlrev_b32 %s, 10, v0" % v(vPO))
        for i in range(2):
            e("buffer_load_dwordx4 %s, %s, %s offen offset:%d sc1 lds" % (v(vL16), sWS, T[8], 1024 * i))
        e("s_add_u32 m0, %s, %d" % (T[7], 1024 * b))
        e("s_add_u32 %s, %s, %d" % (T[8], T[8], HSTR))
        e("buffer_load_dwordx4 %s, %s, %s offen sc1 lds" % (v(vL16), sWS, T[1]))
        e("s_add_u32 %s, %s, %d" % (T[1], T[1], HSTR))

    def gflag_load():
        e("buffer_load_dwordx2 %s, %s, %s, %s offen sc1" % (v(vPD, 2), v(vPO), sWS, GF))
        e("buffer_load_dwordx2 %s, %s, %s, %s offen sc1" % (v(PF + 4, 2), v(PF + 6), sWS, GF))

    def kv_issue(n=4):
        e("s_and_b32 %s, %s, 7" % (CH, CH))
        e("s_lshl_b32 %s, %s, 14" % (T[9], CH))
        e("s_add_u32 %s, %s, 16384" % (LP, LP))
        e("s_add_u32 %s, %s, %s" % (T[9], T[9], KVG))
        e("s_mov_b32 m0, %s" % LP)
        e("s_add_u32 %s, %s, 1" % (CH, CH))
        for i in range(n):
            e("buffer_load_dwordx4 %s, %s, %s offen offset:%d sc1%s lds" % (v(vL16), sWS, T[9], 1024 * i, " nt" if OPT("kvnt", 0) else ""))

    def kv_issue_helpers():
        sk, cw = newlab("kvs"), newlab("kvc")
        if OPT("kvall", 0):
            kv_issue(2)
        e("s_cmp_lt_u32 %s, 4" % sW)
        e("s_cbranch_scc1 %s" % cw)
        if not OPT("kvall", 0):
            kv_issue()
        lab(sk)
        ft = newlab("ft")
        wp = newlab("wp")
        TAIL.extend([wp + ":", "    s_cmp_lg_u32 %s, %d" % (sIT, OPT("woit", 3)), "    s_cbranch_scc1 %s" % sk]
                    + ["    " + x for x in capture(lambda: (srd("s[64:67]", 16, 512 * 1024), addr(T[1], None, 0, [(sJ, 128 * 128), (sW, 32 * 128)])))]
                    + (["    " + x for x in capture(lambda: (
                        e("v_lshrrev_b32 %s, 3, v0" % v(PF + 3)), e("v_mul_u32_u24 %s, %d, %s" % (v(PF + 3), XSTR - 1024, v(PF + 3))),
                        e("v_add_u32 %s, %s, %s" % (v(PF + 3), v(PF + 3), v(PF))),
                        addr(T[0], sLB, OF, [(sW, 2 * XSTR), (sHEAD, 1024)]), e("s_mov_b64 exec, 0xffff"),
                        e("buffer_load_dword %s, %s, %s, %s offen sc1" % (v(PF + 2), v(PF + 3), sWS, T[0])), e("s_mov_b64 exec, -1")))]
                       if OPT("pt", 6) & 4 else [])
                    + ["    s_mov_b32 exec_hi, 0", "    buffer_load_dword %s, %s, s[64:67], %s offen" % (v(PF + 2), v(PF), T[1]),
                       "    s_mov_b64 exec, -1", "    s_branch %s" % sk])
        TAIL.extend([ft + ":", "    s_cmp_lg_u32 %s, %s" % (sIT, T[8]), "    s_cbranch_scc1 %s" % wp,
                     "    buffer_load_dword %s, %s, s[64:67], %s offen" % (v(PF + 2), v(PF), T[1]), "    s_branch %s" % sk])
        TAIL.extend([cw + ":", "    s_cmp_lt_u32 %s, 4" % sIT, "    s_cbranch_scc1 %s" % ft, "    s_mov_b32 exec_hi, 0",
                     "    buffer_load_dword %s, %s, %s, %s offen" % (v(PF + 2), v(PF + 1), sTMP, T[7]),
                     "    s_mov_b64 exec, -1", "    s_add_u32 %s, %s, %d" % (T[7], T[7], 16 * 2752),
                     "    s_branch %s" % sk])
    e("v_add_u32 %s, 0x10000, %s" % (v(PF + 6), v(vPO)))
    fine("k")
    e("s_waitcnt vmcnt(0)")
    fine("k")
    gflag_load()
    lab(a1)
    addr(T[0], None, QL, [(sW, 1024)])
    e("v_add_u32 v16, %s, %s" % (T[0], v(vL16)))
    e("s_barrier")
    stamp()

    def rdk(t):
        e("ds_read_b128 %s, %s offset:%d" % (v(KB[t & 1], 4), v(AD), t * 2048))

    def rdv(t):
        e("s_mov_b64 exec, %s" % sMV)
        e("ds_read_b128 %s, %s offset:%d" % (v(VB[t & 1], 4), v(AD), t * 2048 + 1024))
        e("ds_read_b128 %s, %s offset:%d" % (v(VB[t & 1] + 4, 4), v(AD), t * 2048 + 1280))
        e("s_mov_b64 exec, -1")

    def smf(vb, p):
        e("v_smfmac_f32_32x32x32_bf16 %s, %s, %s, %s" % (v(O, 16), v(vb, 4), v(p, 8), v(IDX)))

    def ex(cur, a, b):
        for i in range(a, b):
            e("v_exp_f32 %s, %s" % (v(S[cur] + i), v(S[cur] + i)))

    def tile(t, extra=None):
        cur, nxt = t & 1, (t + 1) & 1
        ex(cur, 0, 2)
        smf(VB[nxt] + 4, S[nxt] + 8)
        rdv(t + 1)
        ex(cur, 2, 6)
        e("s_waitcnt lgkmcnt(2)")
        mfma(S[nxt], KB[nxt], Q, "0")
        rdk(t + 2)
        if extra:
            extra()
        ex(cur, 6, 12)
        smf(VB[cur], S[cur])
        ex(cur, 12, 16)
    e("ds_read_b128 %s, v16" % v(Q, 4))
    rdk(0)
    rdv(0)
    rdk(1)
    e("s_waitcnt lgkmcnt(3)")
    mfma(S[0], KB[0], Q, "0")
    e("s_mov_b32 %s, 0" % sIT)
    e("s_mov_b32 %s, %d" % (sCNT, POLL_LIMIT))
    e("s_nop 7")
    cm("keys of this die first; the other dies' K/V are requested as soon as their flags arrive")
    loc, go, retry, issue, chk3 = (newlab(x) for x in ("loc", "go", "retry", "issue", "chk3"))
    lab(loc)
    e("s_cmp_eq_u32 %s, 0" % sIT)
    e("s_cbranch_scc1 %s" % go)
    e("s_cmp_lg_u32 %s, 0" % ISS)
    e("s_cbranch_scc1 %s" % chk3)
    lab(retry)
    e("s_waitcnt vmcnt(0)")
    e("v_cmp_eq_u64 %s, %s, %s" % (sM0, v(PF + 4, 2), v(vFV, 2)))
    e("v_cmp_eq_u64 vcc, %s, %s" % (v(vPD, 2), v(vFV, 2)))
    e("s_nop 1")
    e("s_and_b64 vcc, vcc, %s" % sM0)
    e("s_cmp_eq_u64 vcc, -1")
    e("s_cbranch_scc1 %s" % issue)
    gflag_load()
    e("s_cmp_lt_u32 %s, 3" % sIT)
    e("s_cbranch_scc1 %s" % go)
    e("s_sub_u32 %s, %s, 1" % (sCNT, sCNT))
    e("s_cbranch_scc0 %s" % retry)
    e("s_endpgm")
    lab(issue)
    fine("k")
    kv_issue()
    kv_issue()
    e("s_mov_b32 %s, 1" % ISS)
    lab(chk3)
    e("s_cmp_lt_u32 %s, 3" % sIT)
    e("s_cbranch_scc1 %s" % go)
    fine("k")
    e("s_waitcnt vmcnt(4)")
    fine("k")
    e("s_barrier")
    fine("k")
    lab(go)
    tile(0)
    tile(1)
    e("v_add_u32 %s, 4096, %s" % (v(AD), v(AD)))
    e("s_add_u32 %s, %s, 1" % (sIT, sIT))
    e("s_cmp_lt_u32 %s, 4" % sIT)
    e("s_cbranch_scc1 %s" % loc)
    fine("a")
    if OPT("kvall", 0):
        addr(KVG, None, KVF, [(sL, KVF_L), (sHEAD, 131072), (sW, 2048)])
        addr(LP, None, 32768, [(sW, 2048)])
        e("s_add_u32 %s, %s, 3" % (CH, sXCD))
    cm("first layer pair, waves 1-3: first touch of Wo / W1 / W2 (one line per lane, spread over all workgroups)")
    e("s_mov_b32 s66, %d" % (1376 * 1024))
    e("s_mov_b32 %s, %d" % (T[1], 43 * 128))
    e("s_cmp_eq_u32 %s, 2" % sW)
    e("s_cselect_b64 s[64:65], s[20:21], s[24:25]")
    e("s_cmp_eq_u32 %s, 1" % sW)
    e("s_cselect_b64 s[64:65], s[16:17], s[64:65]")
    e("s_cselect_b32 s66, %d, s66" % (512 * 1024))
    e("s_cselect_b32 %s, %d, %s" % (T[1], 16 * 128, T[1]))
    e("s_and_b32 s65, s65, 0xffff")
    e("s_mov_b32 s67, 0x20000")
    e("s_mul_i32 %s, %s, s2" % (T[1], T[1]))
    e("v_lshlrev_b32 %s, 7, v0" % v(PF))
    e("s_cmp_eq_u32 %s, 0" % sL)
    e("s_cselect_b32 %s, %d, 99" % (T[8], OPT("ftit", 2)))
    e("s_cmp_eq_u32 %s, 0" % sW)
    e("s_cselect_b32 %s, 99, %s" % (T[8], T[8]))
    cm("lines of the W1 rows that are loaded after attention (128-351, 480-511): half per workgroup of a pair")
    srd(sTMP, 20, 512 * 2752)
    e("s_lshr_b32 %s, %s, 4" % (T[0], sJ))
    addr(T[7], None, 128, [(T[0], 128), (sHW, 32)])
    e("s_cmp_eq_u32 %s, 352" % T[7])
    e("s_cselect_b32 %s, 480, %s" % (T[7], T[7]))
    e("s_mul_i32 %s, %s, 2752" % (T[7], T[7]))
    e("s_mul_i32 %s, %s, 192" % (T[0], sC))
    e("s_add_u32 %s, %s, %s" % (T[7], T[7], T[0]))
    e("v_lshrrev_b32 %s, 1, v0" % v(PF + 1))
    e("v_mul_u32_u24 %s, 2752, %s" % (v(PF + 1), v(PF + 1)))
    e("v_and_b32 %s, 1, v0" % v(PF + 2))
    e("v_lshl_add_u32 %s, %s, 7, %s" % (v(PF + 1), v(PF + 2), v(PF + 1)))
    e("s_mov_b32 %s, 1" % sIT)
    loop = newlab("att")
    L.append(".p2align 6")
    lab(loop)
    for t in range(8):
        if t % 2 == 0:
            e("s_setprio %d" % (3 - t // 2))
        if t == 6:
            e("s_waitcnt vmcnt(%d)" % (2 if OPT("kvall", 0) else 4))
            e("s_barrier")
        tile(t, kv_issue_helpers if t == 1 else None)
    e("v_add_u32 %s, 16384, %s" % (v(AD), v(AD)))
    e("s_add_u32 %s, %s, 1" % (sIT, sIT))
    e("s_cmp_lt_u32 %s, 6" % sIT)
    e("s_cbranch_scc1 %s" % loop)
    fine("a")
    cm("last two chunks: stream Wo and part of W1 into the dead K/V space, one piece per tile")
    srd(sTMP, 16, 512 * 1024)
    addr(T[0], None, 0, [(sW, 65536), (sNB, 128)])
    e("s_lshl_b32 %s, %s, 13" % (T[1], sW))

    srd("s[64:67]", 24, 1376 * 1024)
    addr(T[2], None, 0, [(sJ, 344 * 128), (sW, 43 * 128)])

    def w2_lines(trip):
        cm("one line per lane: pull this workgroup's share of W2 into the die's L2")
        e("s_mov_b64 exec, 0x3fffff")
        e("buffer_load_dword %s, %s, s[64:67], %s offen" % (v(PF + 2), v(PF), T[2]))
        e("s_mov_b64 exec, -1")
        e("s_add_u32 %s, %s, %d" % (T[2], T[2], 22 * 128))

    def wo_piece(t):
        e("s_add_u32 m0, %s, %d" % (T[1], 1024 * t))
        e("s_nop 0")
        dma1(VO, T[0], 1)
        e("s_add_u32 %s, %s, 8192" % (T[0], T[0]))
        if t in {0: (2, 5), 2: (6, 7), 3: (7,)}.get(OPT("w2t", 1), ()):
            w2_lines(0)

    def w1_piece(t):
        if t in {1: (1, 3), 3: (0,), 4: (0, 1)}.get(OPT("w2t", 1), ()):
            w2_lines(1)
        for u in ([2 * t, 2 * t + 1] if t < 2 else [t + 2] if t < 4 else []):
            e("s_add_u32 m0, %s, %d" % (T[1], (u // 3) * 22 * 3072 + (u % 3) * 1024))
            e("s_nop 0")
            dma1(VO + 1 + u % 3, T[0], 8)
            if u == 2:
                e("s_add_u32 %s, %s, %d" % (T[0], T[0], 22 * 16 * 2752))
    for trip in range(2):
        for t in range(8):
            if t % 2 == 0:
                e("s_setprio %d" % (3 - t // 2))
            if t == 6 and trip == 0:
                e("s_waitcnt vmcnt(%d)" % (6 if OPT("w2t", 1) else 8))
                e("s_barrier")
            tile(t + 8 * trip, (lambda t=t: wo_piece(t)) if trip == 0 else (lambda t=t: w1_piece(t)))
        if trip == 0:
            addr(T[4], sLB, OF, [(sW, XSTR), (sHEAD, 1024)])
            slot(T[5], FA, [(sW, 32), (sHEAD, 1)])
            srd(sTMP, 20, 512 * 2752)
            addr(T[0], None, 0, [(sW, 16 * 2752), (sC, 192)])
            addr(T[1], None, 65536, [(sW, 3072)])
    e("s_nop 1")
    smf(VB[1] + 4, S[1] + 8)
    e("s_setprio 0")
    e("s_mov_b32 %s, %s" % (T[6], f32(2.0 ** (64 if FORCE_SLOW else -64))))
    e("s_mov_b32 %s, %s" % (T[7], f32(2.0 ** 64)))
    e("s_waitcnt lgkmcnt(0)")
    e("s_nop 7")
    stamp()
    cm("Softmax guard. The loops above used 0 as a stand-in for the row max. That is exact while the row sum")
    cm("stays in [2^-64, 2^64] and the accumulators are finite; otherwise redo this tile with the true max.")
    fin, slow = newlab("att_fin"), newlab("att_slow")
    e("v_cmp_le_f32 %s, %s, %s" % (sM0, T[6], v(O + 8)))
    e("v_cmp_ge_f32 %s, %s, %s" % (sM1, T[7], v(O + 8)))
    e("v_pk_mul_f32 v[18:19], %s, 0 op_sel_hi:[1,0]" % v(O, 2))
    for p in range(1, 4):
        e("v_pk_fma_f32 v[18:19], %s, 0, v[18:19] op_sel_hi:[1,0,1]" % v(O + 2 * p, 2))
    e("s_and_b64 %s, %s, %s" % (sM0, sM0, sM1))
    e("v_cmp_eq_f32 vcc, v18, v19")
    e("s_nop 0")
    e("s_and_b64 %s, %s, vcc" % (sM0, sM0))
    e("s_cmp_eq_u64 %s, -1" % sM0)
    e("s_cbranch_scc0 %s" % slow)
    lab(fin)
    e("v_rcp_f32 v16, %s" % v(O + 8))
    e("s_nop 0")
    for p in range(4):
        e("v_pk_mul_f32 %s, %s, v[16:17] op_sel_hi:[1,0]" % (v(O + 2 * p, 2), v(O + 2 * p, 2)))
    for p in range(4):
        e("v_cvt_pk_bf16_f32 %s, %s, %s" % (v(20 + p), v(O + 2 * p), v(O + 2 * p + 1)))
    lstores(["buffer_store_dwordx4 v[20:23], %s, %s, %s offen" % (v(vL16), sWS, T[4])])
    flag(T[5], 0, local=2)
    e("s_waitcnt vmcnt(1)")
    e("s_barrier")
    keep = L[:]
    del L[:]
    lab(slow)
    l1, l2 = newlab("slow1"), newlab("slow2")
    addr(T[2], None, KVF, [(sL, KVF_L), (sHEAD, 131072)])
    e("v_mov_b32 %s, 0xff800000" % v(CN))
    e("s_mov_b32 %s, 0" % sIT)
    lab(l1)
    e("buffer_load_dwordx4 %s, %s, %s, %s offen sc1" % (v(KB[0], 4), v(vL16), sWS, T[2]))
    e("s_waitcnt vmcnt(0)")
    mfma(S[0], KB[0], Q, "0")
    e("s_nop 15")
    for i in range(8):
        e("v_max3_f32 %s, %s, %s, %s" % (v(CN), v(S[0] + 2 * i), v(S[0] + 2 * i + 1), v(CN)))
    e("s_add_u32 %s, %s, 2048" % (T[2], T[2]))
    e("s_add_u32 %s, %s, 1" % (sIT, sIT))
    e("s_cmp_lt_u32 %s, 64" % sIT)
    e("s_cbranch_scc1 %s" % l1)
    e("v_mov_b32 %s, %s" % (v(CN + 1), v(CN)))
    e("s_nop 1")
    e("v_permlane32_swap_b32 %s, %s" % (v(CN), v(CN + 1)))
    e("s_nop 1")
    e("v_max_f32 %s, %s, %s" % (v(CN), v(CN), v(CN + 1)))
    e("v_sub_f32 %s, 0, %s" % (v(CN), v(CN)))
    for i in range(1, 16):
        e("v_mov_b32 %s, %s" % (v(CN + i), v(CN)))
    for i in range(16):
        e("v_mov_b32 %s, 0" % v(O + i))
    addr(T[2], None, KVF, [(sL, KVF_L), (sHEAD, 131072)])
    e("s_mov_b32 %s, 0" % sIT)
    lab(l2)
    e("buffer_load_dwordx4 %s, %s, %s, %s offen sc1" % (v(KB[0], 4), v(vL16), sWS, T[2]))
    e("s_mov_b64 exec, %s" % sMV)
    e("buffer_load_dwordx4 %s, %s, %s, %s offen offset:1024 sc1" % (v(VB[0], 4), v(vL16), sWS, T[2]))
    e("buffer_load_dwordx4 %s, %s, %s, %s offen offset:1280 sc1" % (v(VB[0] + 4, 4), v(vL16), sWS, T[2]))
    e("s_mov_b64 exec, -1")
    e("s_waitcnt vmcnt(0)")
    mfma(S[0], KB[0], Q, CN)
    e("s_nop 15")
    for i in range(16):
        e("v_exp_f32 %s, %s" % (v(S[0] + i), v(S[0] + i)))
    e("s_nop 1")
    smf(VB[0], S[0])
    smf(VB[0] + 4, S[0] + 8)
    e("s_nop 15")
    e("s_add_u32 %s, %s, 2048" % (T[2], T[2]))
    e("s_add_u32 %s, %s, 1" % (sIT, sIT))
    e("s_cmp_lt_u32 %s, 64" % sIT)
    e("s_cbranch_scc1 %s" % l2)
    e("s_branch %s" % fin)
    TAIL.extend(L)
    L[:] = keep
    stamp()


def n512(kind):
    wo = kind == "wo"
    ph = "o" if wo else "g"
    cm("================ %s" % ("output projection + residual" if wo else "MLP down projection + residual"))
    NS, J = (16, 16) if wo else (43, 39)
    AK, AS = vACC, vACC + 16
    hl, done = newlab("n_h"), newlab("n_done")
    e("s_cmp_ge_u32 %s, 4" % sW)
    e("s_cbranch_scc1 %s" % hl)
    if not wo:
        addr(T[0], None, CONST + 384, [(sKH, 512)])
        e("v_add_u32 %s, %s, %s" % (v(vPO), T[0], v(vH16)))
        for i in range(4):
            e("ds_read_b128 %s, %s offset:%d" % (v(AS + 4 * i, 4), v(vPO), 32 * i))
    unpack(AK, vRES, 8)
    tr_rows(vW0, 128)
    e("v_bfe_u32 %s, v0, 3, 1" % v(vPD))
    e("v_xor_b32 %s, %s, %s" % (v(vPD), sKH, v(vPD)))
    e("v_lshl_or_b32 %s, %s, 6, %s" % (v(vW0), v(vPD), v(vW0)))
    e("s_mul_i32 %s, %s, %d" % (T[0], sKH, J * 2048))
    e("v_add_u32 %s, %s, %s" % (v(vW0), T[0], v(vW0)))
    e("v_xor_b32 %s, 64, %s" % (v(vW1), v(vW0)))
    if not wo:
        e("v_add_u32 %s, 0x10000, %s" % (v(vW2), v(vW0)))
        e("v_add_u32 %s, 0x10000, %s" % (v(vW3), v(vW1)))
    if wo:
        e("v_and_b32 %s, 15, v0" % v(vPO))
        slot(T[0], FA, [(sTBN, 32), (sKH, 16)])
        addr(T[1], sLB, OF, [(sTBN, XSTR), (sKH, 16384)])
    else:
        e("v_and_b32 %s, 7, v0" % v(vPO))
        slot(T[0], FH, [(sTBN, 16), (sKH, 7)])
        addr(T[1], sLB, HF, [(sTBN, HSTR), (sKH, 43 * 1024)])
    e("v_lshlrev_b32 %s, 3, %s" % (v(vPO), v(vPO)))
    if not wo:
        e("s_waitcnt lgkmcnt(0)")
        for p in range(8):
            e("v_pk_add_f32 %s, %s, %s" % (v(AK + 2 * p, 2), v(AK + 2 * p, 2), v(AS + 2 * p, 2)))
        e("s_barrier")

    def rd(j, i):
        jj = j % J
        base, off = ((vW0, vW1)[i], jj * 2048) if jj < 32 else ((vW2, vW3)[i], (jj - 32) * 2048)
        d = vWB + (j % 3) * 8 + 4 * i
        e("ds_read_b64_tr_b16 %s, %s offset:%d" % (v(d, 2), v(base), off))
        e("ds_read_b64_tr_b16 %s, %s offset:%d" % (v(d + 2, 2), v(base), off + 1024))
    for j in range(2):
        for i in range(2):
            rd(j, i)
    poll(T[0])
    stamp()
    areg = lambda j: vA + 4 * (j % 32)
    load_frags(T[1], 0, DEPTH, areg)
    fine(ph)

    def late_addresses():
        e("s_and_b32 %s, %s, 1" % (T[2], sW))
        if wo:
            addr(T[0], None, 0, [(T[2], 4096), (sKH, 32768)])
            e("s_xor_b32 %s, %s, 32768" % (T[3], T[0]))
            publish_addr(X1F, ST1, 0, FO)
        else:
            addr(T[0], None, 98304, [(T[2], 4096), (sKH, 8192)])
            e("s_xor_b32 %s, %s, 8192" % (T[3], T[0]))
            publish_addr(XF, ST, LFL_L * 8, FX)
        e("v_add_u32 %s, %s, %s" % (v(vPO), T[0], v(vL16)))
        e("v_add_u32 %s, %s, %s" % (v(vPD), T[3], v(vL16)))
    sh = capture(late_addresses)
    for j in range(NS):
        issued = min(NS, DEPTH + j)
        if not wo and j == J - 2:
            e("s_barrier")
        if j < NS - 1:
            last2 = j == NS - 2
            e("s_waitcnt vmcnt(%d) lgkmcnt(%d)" % (0 if last2 else issued - j - 1, 0 if last2 else 4))
        if j in ((0, 4, 8, 15) if wo else (0, 11, 22, 42)):
            fine(ph)
        seq = [(j, 0), (j, 1)] if j < NS - 2 else [(j, 1), (j + 1, 1)] if j == NS - 2 else [(j - 1, 0), (j, 0)]
        for m, (jj, i) in enumerate(seq):
            acc = AK + 16 * i
            mfma(acc, vWB + (jj % 3) * 8 + 4 * i, areg(jj), "0" if (jj == 0 and i == 1) else acc)
            if j + 2 < NS:
                rd(j + 2, i)
            if m == 0 and DEPTH + j < NS:
                load_frags(T[1], DEPTH + j, 1, areg, False)
            if j >= 2:
                g = (j - 2) * 2 + m
                for x in sh[2 * g:2 * g + 2]:
                    e(x)
        if j == (8 if wo else NS - J - 1):
            e("s_barrier")
    assert len(sh) <= 4 * (NS - 2)
    e("s_nop 9")
    for i in range(4):
        e("ds_write_b128 %s, %s offset:%d" % (v(vPO), v(AS + 4 * i, 4), 1024 * i))
    e("s_waitcnt lgkmcnt(0)")
    e("s_barrier")
    stamp()
    for i in range(4):
        e("ds_read_b128 %s, %s offset:%d" % (v(AS + 4 * i, 4), v(vPD), 1024 * i))
    for i in range(4):
        e("s_waitcnt lgkmcnt(%d)" % (3 - i))
        for p in (2 * i, 2 * i + 1):
            e("v_pk_add_f32 %s, %s, %s" % (v(AK + 2 * p, 2), v(AK + 2 * p, 2), v(AS + 2 * p, 2)))
    for p in range(8):
        e("v_cvt_pk_bf16_f32 %s, %s, %s" % (v(vRES + p), v(AK + 2 * p), v(AK + 2 * p + 1)))
    if wo:
        publish_x(AK, 20)
    else:
        last = newlab("last")
        e("s_cmp_lg_u32 %s, 0" % sL)
        e("s_cbranch_scc1 %s" % last)
        publish_x(AK, 20)
        e("s_branch %s" % done)
        lab(last)
        srd(sTMP, 28, 2048 * 1024)
        e("v_and_b32 v16, 31, v0")
        e("v_lshlrev_b32 v16, 10, v16")
        e("v_add_u32 v16, v16, %s" % v(vH16))
        addr(T[0], None, 0, [(sXCD, 262144), (sTBN, 32768), (sNT, 64)])
        for g in range(2):
            e("v_permlane32_swap_b32 %s, %s" % (v(vRES + 4 * g), v(vRES + 4 * g + 2)))
            e("v_permlane32_swap_b32 %s, %s" % (v(vRES + 4 * g + 1), v(vRES + 4 * g + 3)))
        for g in range(2):
            e("buffer_store_dwordx4 %s, v16, %s, %s offen offset:%d" % (v(vRES + 4 * g, 4), sTMP, T[0], 32 * g))
    e("s_branch %s" % done)
    lab(hl)
    if wo:
        voff_192(44)
        e("s_lshl_b32 %s, %s, 2" % (T[3], sHW))
        e("s_min_u32 %s, %s, 10" % (T[3], T[3]))
        addr(T[0], None, 8 * 16 * 2752, [(T[3], 16 * 2752), (sC, 192)])
        addr(T[1], None, 65536 + 8 * 3072, [(T[3], 3072)])
        dma_w1(2)
        e("s_mov_b32 %s, %s" % (T[3], T[0]))
        e("s_mov_b32 %s, %s" % (T[4], T[1]))
        w0, w1, w2 = newlab("wcs"), newlab("wcs"), newlab("wcs")
        e("s_cmp_lg_u32 %s, 0" % sL)
        e("s_cbranch_scc1 %s" % w0)
        tr_rows(43, 192)
        colsum_begin()
        addr(T[0], None, 65536, [(sHW, 2 * 3072)])
        colsum_w1()
        addr(T[0], None, 65536 + 22 * 3072, [(sHW, 2 * 3072)])
        colsum_w1()
        lab(w0)
        e("s_mov_b32 %s, %s" % (T[0], T[3]))
        e("s_mov_b32 %s, %s" % (T[1], T[4]))
        e("s_barrier")
        dma_w1(2)
        e("s_barrier")
        e("s_cmp_lg_u32 %s, 3" % sHW)
        e("s_cbranch_scc1 %s" % w1)
        addr(T[0], None, 30 * 16 * 2752, [(sC, 192)])
        e("s_mov_b32 %s, %d" % (T[1], 58 * 1024))
        dma_w1(2)
        lab(w1)
        e("s_cmp_lg_u32 %s, 0" % sL)
        e("s_cbranch_scc1 %s" % done)
        cm("own late k-steps: 8-11 | 12-15 | 16-19 | 20-21 and 30-31")
        e("s_and_b32 %s, %s, 1" % (T[4], sHW))
        addr(T[0], None, 65536 + 8 * 3072, [(sHW, 4 * 3072)])
        e("s_add_u32 %s, %s, %d" % (T[3], T[0], 2 * 3072))
        e("s_cmp_eq_u32 %s, 3" % sHW)
        e("s_cselect_b32 %s, %d, %s" % (T[3], 58 * 1024, T[3]))
        e("s_waitcnt vmcnt(0)")
        colsum_w1()
        e("s_mov_b32 %s, %s" % (T[0], T[3]))
        colsum_w1()
        colsum_partial()
        e("v_lshlrev_b32 v47, 16, v224")
        addr(T[0], None, B1_L, [(sHW, 128)])
        e("v_add_u32 v42, %s, v41" % T[0])
        e("ds_write_b32 v42, v47")
        e("v_lshlrev_b32 v49, 16, v225")
        addr(T[0], None, CONST + 384, [(T[4], 512)])
        e("v_add_u32 v42, %s, v41" % T[0])
        e("ds_write_b32 v42, v49")
    else:
        e("s_waitcnt vmcnt(0)")
        fine("w")
        e("s_barrier")
        fine("w")
        e("s_lshr_b32 %s, %s, 1" % (T[3], sHW))
        e("s_and_b32 %s, %s, 1" % (T[4], sHW))
        addr(T[0], None, 78 * 8192, [(T[3], 86 * 8192), (T[4], 4 * 8192), (sNB, 128)])
        addr(T[1], None, 0, [(T[3], 78 * 1024), (T[4], 4096)])
        e("s_barrier")
        for k in range(4):
            e("s_add_u32 m0, %s, %d" % (T[1], 1024 * k))
            e("s_nop 0")
            dma1(40, T[0], 4)
            e("s_add_u32 %s, %s, 8192" % (T[0], T[0]))
        e("s_waitcnt vmcnt(0)")
        e("s_barrier")
        stash_addr()
        e("s_barrier")
        e("s_cmp_lg_u32 %s, 0" % sL)
        e("s_cbranch_scc1 %s" % done)
        for k in range(24):
            e("ds_write_b128 v42, %s offset:%d" % (v(vSTASH + 4 * k, 4), 1024 * k))
    lab(done)
    stamp()


def ffn1():
    cm("================ MLP up projection + GELU")
    hl, done = newlab("f1_h"), newlab("f1_done")
    e("s_cmp_ge_u32 %s, 4" % sW)
    e("s_cbranch_scc1 %s" % hl)
    idle = newlab("f1_idle")
    e("s_cmp_eq_u32 %s, 15" % sC)
    e("s_cbranch_scc1 %s" % idle)
    TAIL.extend([idle + ":"] + ["    s_barrier"] * 3 + ["    s_branch " + done])

    e("v_and_b32 %s, 15, v0" % v(vPO))
    e("v_lshlrev_b32 %s, 3, %s" % (v(vPO), v(vPO)))
    slot(T[0], FO, [(sTBW, 16)])
    addr(T[1], sLB, X1F, [(sTBW, XSTR)])
    addr(T[2], sLB, ST1, [(sTBW, 4096)])
    e("v_add_u32 %s, %d, %s" % (v(vCA), CONST, v(vH16)))
    tr_rows(vW2, 192)
    e("v_add_u32 %s, 0x10000, %s" % (v(vW0), v(vW2)))
    e("v_add_u32 %s, %d, %s" % (v(vW1), 21 * 3072, v(vW0)))
    lds = Lds()

    def rd(ks, i):
        d = vWB + (ks % 3) * 12 + 4 * i
        base, off = (vW0, ks * 3072) if ks < 21 else (vW1, (ks - 21) * 3072) if ks < 30 else (vW2, 58 * 1024 + (ks - 30) * 3072)
        lds.op(("w", ks), "ds_read_b64_tr_b16 %s, %s offset:%d" % (v(d, 2), v(base), off + 64 * i))
        lds.op(("w", ks), "ds_read_b64_tr_b16 %s, %s offset:%d" % (v(d + 2, 2), v(base), off + 64 * i + 1536))

    def wait(name):
        n = lds.need(name)
        if n is not None:
            e("s_waitcnt lgkmcnt(%d)" % n)
    for ks in range(2):
        for i in range(3):
            rd(ks, i)
    poll(T[0])
    stamp()

    def item(n):
        if n < 32:
            load_frags(T[1], n, 1, lambda j: vA + 4 * j, n % 4 == 0)
        else:
            e("buffer_load_dwordx4 %s, %s, %s, %s offen offset:%d sc1" % (v(vSTS + 4 * (n - 32), 4), v(vL16), sWS, T[2], 1024 * (n - 32)))
    sched = [[ks + DEPTH] if ks + DEPTH < 32 else [] for ks in range(32)]
    for k in range(4):
        sched[3 + 2 * k].append(32 + k)
    order = list(range(DEPTH))
    for n in range(DEPTH):
        item(n)
    fine("f")
    c0 = -2.0 * 1.4426950408889634 * 0.7978845608028654
    GC = vSTS + 4

    def early():
        addr(T[4], sLB, HF, [(sTBW, HSTR), (sC, 6144)])
        e("s_add_u32 %s, %s, 4096" % (T[5], T[4]))
        slot(T[6], FH, [(sTBW, 16), (sC, 1)])
    mid = stats_code(True) + ["v_mul_f32 %s, %s, %s" % (v(vMU), v(vMU), v(vR)), "v_mov_b32 %s, %s" % (v(GC), f32(c0)),
                              "v_mov_b32 %s, %s" % (v(GC + 1), f32(c0 * 0.044715)), "v_mov_b32 %s, 1.0" % v(GC + 2)]
    sh = [(10, lambda x=x: e(x)) for x in capture(early)] + [(17, lambda x=x: e(x)) for x in mid]
    cm("bias' = b1 - mean*rstd*colsum is formed under the last MFMAs, in dead activation registers")
    rdc, fmc = [], []
    for t in range(3):
        rdc.append([(22 if t < 2 else 24, lambda t=t, k=k: lds.op(("c", t), "ds_read_b128 %s, %s offset:%d" % (
            v(16 + 32 * t + 4 * k, 4), v(vCA), 512 + 512 * (k // 4) + t * 128 + 32 * (k % 4)))) for k in range(8)])
        fmc.append([(22, lambda t=t: wait(("c", t)))] + [(22, lambda t=t, r=r: e("v_fma_f32 %s, -%s, %s, %s" % (
            v(32 + 32 * t + r), v(vMU), v(16 + 32 * t + r), v(32 + 32 * t + r)))) for r in range(16)])
    mix = lambda a, b: [x for k in range(max(len(a), len(b))) for x in a[2 * k:2 * k + 2] + b[k:k + 1]]
    sh += rdc[0] + rdc[1][:4] + mix(fmc[0], rdc[1][4:]) + mix(fmc[1], rdc[2]) + fmc[2]
    pos = 0
    for ks in range(32):
        if ks in (6, 22):
            e("s_barrier")
        newest = max(order.index(n) for n in ([ks, 35] if ks >= 17 else [ks]))
        lg = lds.need(("w", ks))
        e("s_waitcnt vmcnt(%d)%s" % (len(order) - 1 - newest, "" if lg is None else " lgkmcnt(%d)" % lg))
        if ks in FINEKS:
            fine("f")
        for i in range(3):
            mfma(vACC + 16 * i, vWB + (ks % 3) * 12 + 4 * i, vA + 4 * ks, "0" if ks == 0 else vACC + 16 * i)
            if ks + 2 < 32:
                rd(ks + 2, i)
            if i < len(sched[ks]):
                item(sched[ks][i])
                order.append(sched[ks][i])
            for _ in range(3 if ks < 30 else 5):
                if pos < len(sh) and ks >= sh[pos][0]:
                    sh[pos][1]()
                    pos += 1
    for x in sh[pos:]:
        x[1]()
    stamp()
    e("s_nop %d" % max(0, 9 - len(sh[pos:])))
    Z, P = 120, vWB
    for t in range(3):
        acc, b1 = vACC + 16 * t, 32 + 32 * t
        for p in range(8):
            e("v_pk_fma_f32 %s, %s, %s, %s op_sel_hi:[1,0,1]" %
              (v(acc + 2 * p, 2), v(acc + 2 * p, 2), v(vR, 2), v(b1 + 2 * p, 2)))
        for p in range(8):
            e("v_pk_mul_f32 %s, %s, %s" % (v(Z + 2 * p, 2), v(acc + 2 * p, 2), v(acc + 2 * p, 2)))
        for p in range(8):
            e("v_pk_fma_f32 %s, %s, %s, %s op_sel:[0,1,0] op_sel_hi:[1,1,0]" %
              (v(Z + 2 * p, 2), v(Z + 2 * p, 2), v(GC, 2), v(GC, 2)))
        for p in range(8):
            e("v_pk_mul_f32 %s, %s, %s" % (v(Z + 2 * p, 2), v(Z + 2 * p, 2), v(acc + 2 * p, 2)))
        for i in range(16):
            e("v_exp_f32 %s, %s" % (v(Z + i), v(Z + i)))
        for p in range(8):
            e("v_pk_add_f32 %s, %s, %s op_sel_hi:[1,0]" % (v(Z + 2 * p, 2), v(Z + 2 * p, 2), v(GC + 2, 2)))
        for i in range(16):
            e("v_rcp_f32 %s, %s" % (v(Z + i), v(Z + i)))
        for p in range(8):
            e("v_pk_mul_f32 %s, %s, %s" % (v(acc + 2 * p, 2), v(acc + 2 * p, 2), v(Z + 2 * p, 2)))
        for p in range(8):
            e("v_cvt_pk_bf16_f32 %s, %s, %s" % (v(P + 8 * t + p), v(acc + 2 * p), v(acc + 2 * p + 1)))
        lstores(["buffer_store_dwordx4 %s, %s, %s, %s offen offset:%d" %
                 (v(P + 8 * t + 4 * hh, 4), v(vL16), sWS, T[4 + (2 * t + hh) // 4], ((2 * t + hh) % 4) * 1024) for hh in range(2)])
        if t == 0:
            e("s_barrier")
        if t != 1:
            fine("f")
    flag(T[6], 0, local=2)
    e("s_branch %s" % done)
    lab(hl)
    h1 = newlab("fh1")
    voff_128(40)
    srd(sTMP, 24, 1376 * 1024)
    e("s_waitcnt vmcnt(0) lgkmcnt(0)")
    e("s_barrier")
    e("s_cmp_lg_u32 %s, 0" % sL)
    e("s_cbranch_scc1 %s" % h1)
    colsum_combine(CS1_L)
    e("s_waitcnt lgkmcnt(0)")
    lab(h1)
    E0 = OPT("e0", 4)
    if E0:
        dma_w2(0, 0, E0, OPT("e0p", 1) or -1)
    e("s_barrier")
    fine("w")
    if OPT("nolate", 0) < 2:
        dma_w2(86, 78 * 1024, 7, OPT("ep", 0))
        dma_w2(4 * E0, 4 * E0 * 1024, 14 - E0, OPT("ep", 0))
        dma_w2(86 + 28, (78 + 28) * 1024, 6, OPT("ep", 0))
    fine("w")
    e("s_barrier")
    fine("w")
    if not OPT("nolate", 0):
        dma_w2(54, 54 * 1024, 6)
        dma_w2(86 + 50, (78 + 50) * 1024, 7)
    fine("w")
    lab(done)
    stamp()


def epilogue():
    e("s_add_u32 %s, %s, 1" % (sL, sL))
    e("s_add_u32 %s, %s, %d" % (sFB, sFB, LFL_L * 8))
    e("s_cmp_lt_u32 %s, 2" % sL)
    e("s_cbranch_scc1 L_layer")
    if PROFILE:
        e("s_memrealtime s[22:23]")
        e("s_waitcnt lgkmcnt(0)")
        stamp("s23")
        e("s_lshl_b32 %s, s2, 3" % T[0])
        e("s_add_u32 %s, %s, %s" % (T[0], T[0], sW))
        e("s_lshl_b32 %s, %s, 8" % (T[0], T[0]))
        e("s_add_u32 %s, %s, 0x%x" % (T[0], T[0], TSB))
        e("s_mov_b64 exec, 1")
        for i, r in enumerate([68, 18, 19] + list(range(STAMP0, STAMP0 + 30)) + [22, 23, 0, 1]):
            e("v_mov_b32 v16, s%d" % r)
            e("buffer_store_dword v16, off, %s, %s offset:%d" % (sWS, T[0], 4 * i))
        e("s_mov_b64 exec, 0xff")
        e("v_lshlrev_b32 v16, 2, v0")
        e("buffer_store_dword v5, v16, %s, %s offen offset:148" % (sWS, T[0]))
        e("s_mov_b64 exec, -1")
    if "--dbg" in sys.argv:
        sk = newlab("dbg")
        e("s_or_b32 %s, s2, %s" % (T[0], sW))
        e("s_cmp_lg_u32 %s, 0" % T[0])
        e("s_cbranch_scc1 %s" % sk)
        srd(sTMP, 30, 256)
        e("s_mov_b64 exec, 1")
        for i, r in enumerate([19, 72, 73, 74, 75, 76, 77, 80, 83, 86, 89, 90, 91, 95, 98, 101]):
            e("s_sub_u32 %s, s%d, s18" % (T[0], r))
            e("v_mov_b32 v16, %s" % T[0])
            e("buffer_store_dword v16, off, %s, 0 offset:%d" % (sTMP, 4 * i))
        e("s_mov_b64 exec, -1")
        lab(sk)
    if OPT("hold", 0):
        hl = newlab("hold")
        lab(hl)
        e("s_memrealtime s[70:71]")
        e("s_waitcnt lgkmcnt(0)")
        e("s_sub_u32 s70, s70, s68")
        e("s_cmp_lt_u32 s70, %d" % OPT("hold", 0))
        e("s_cbranch_scc1 %s" % hl)
    cm("advance the hand-off tag for the next launch")
    e("s_or_b32 %s, s2, %s" % (T[0], sW))
    e("s_cmp_lg_u32 %s, 0" % T[0])
    e("s_cbranch_scc1 L_end")
    e("s_mov_b64 exec, 1")
    e("buffer_store_dword %s, off, %s, 0" % (v(vFV), sWS))
    lab("L_end")
    e("s_endpgm")
    L.extend(TAIL)
    lab("L_code_end")


HEADER = open(f"cdna_kernels/{NAME}.s.ref").read().split("; Override launch")[0]


def main():
    prologue()
    p0()
    lab("L_layer")
    qkv()
    attention()
    n512("wo")
    ffn1()
    n512("f2")
    epilogue()
    k = NAME + "_kernel"
    out = HEADER
    out += "; @launch grid=(256,1,1) block=(512,1,1) lds=%d\n" % LDS_BYTES
    out += '.amdgcn_target "amdgcn-amd-amdhsa--gfx950"\n.text\n.globl %s\n.p2align 8\n.type %s,@function\n%s:\n' % (k, k, k)
    out += "\n".join(L) + "\n"
    out += """.section .rodata,"a"
.p2align 6
.amdhsa_kernel %s
  .amdhsa_next_free_vgpr 256
  .amdhsa_next_free_sgpr 102
  .amdhsa_accum_offset 256
  .amdhsa_group_segment_fixed_size 0
  .amdhsa_kernarg_size 88
  .amdhsa_user_sgpr_count 2
  .amdhsa_user_sgpr_kernarg_segment_ptr 1
  .amdhsa_system_sgpr_workgroup_id_x 1
.end_amdhsa_kernel
""" % k
    open(OUT, "w").write(out)
    import subprocess
    r = subprocess.run([sys.executable, "hazard.py", OUT], capture_output=True, text=True).stdout
    if not r.strip().endswith("violations 0"):
        print(r)


main()
```

```python
import struct
import sys

NAME = "interleave_layers__softmax_full_mha__mixer_channel_mlp__prompt"
PROFILE = "--prof" in sys.argv
CLK = "s_memrealtime" if "--rt" in sys.argv else "s_memtime"
FORCE_SLOW = "--slow" in sys.argv
FORCE_GLOBAL = "--global" in sys.argv
OUT = [a for a in sys.argv[1:] if not a.startswith("--")]
OUT = OUT[0] if OUT else f"cdna_kernels/{NAME}.s"


def OPT(name, default):
    a = [x.split("=")[1] for x in sys.argv if x.startswith("--%s=" % name)]
    return int(a[0]) if a else default


def f32(x):
    return "0x%08x" % struct.unpack("<I", struct.pack("<f", x))[0]


WS_SIZE = 0x10000000
FLG = 0x100000
FI = 0
GFL, GFL_L = 0xA00000, 0x100000
KVF, KVF_L = 0x200000, 0x400000
ARENA, ARENA_X = 0x1000000, 0x200000
XSTR, HSTR = 33 * 1024, 97 * 1024
XF, OF, BLK, ST, LFL = 0, 0x48000, 0x90000, 0x158000, 0x160000
X1F, ST1, HF, QF, KVL = XF, ST, BLK, BLK, BLK + 32768
FX, FQ, FA, FO, FH, LFL_L = 0, 128, 256, 512, 640, 768
TSB = 0x4000000
DEPTH = OPT("depth", 10)
PACE = OPT("pace", 5)
RED = 140 * 1024
CONST = 156 * 1024
CSQ_L, CS1_L, B1_L, STAT_L, PART_L = CONST, CONST + 512, CONST + 1024, CONST + 1536, CONST + 2560
MODE_L = B1_L + 400
LDS_BYTES = 160 * 1024
sWS, sTMP = "s[4:7]", "s[8:11]"
sW, sNONCE, sL, sLB, sFB = "s34", "s35", "s36", "s37", "s38"
sXCD, sJ, sTBW, sC, sTBN, sNB, sKH, sNT, sHEAD, sQB = ("s%d" % i for i in range(39, 49))
sHW = "s49"
T = ["s%d" % i for i in range(50, 60)]
sCNT, sIT = "s60", "s61"
sMV = "s[62:63]"
sM0, sM1 = "s[64:65]", "s[66:67]"
sMODE = "s3"
STAMP0 = 72
vLANE, vL16, vFV, vPO, vT5, vPD = 0, 1, 2, 4, 5, 6
vRES = 8
vA, vACC, vWB, vSTS = 16, 144, 192, 228
vW0, vW1, vMU, vW2, vR, vW3, vRQ, vCA, vTR, vK16, vVOF, vH16 = 244, 245, 246, 247, 248, 249, 250, 251, 252, 253, 254, 255
vSTASH = 128
QL = 128 * 1024
POLL_LIMIT = 1 << 16

L = []
TAIL = []
uid = [0]
nstamp = [0]


def e(s):
    L.append("    " + s)


def lab(n):
    L.append(n + ":")


def cm(s):
    L.append("    ; " + s)


def v(i, n=1):
    return "v%d" % i if n == 1 else "v[%d:%d]" % (i, i + n - 1)


def capture(f):
    n = len(L)
    f()
    out = [x.strip() for x in L[n:]]
    del L[n:]
    return out


def newlab(p):
    uid[0] += 1
    return "L_%s_%d" % (p, uid[0])


def stamp(fixed=None):
    if not PROFILE:
        return
    e(CLK + " s[70:71]")
    e("s_waitcnt lgkmcnt(0)")
    if fixed:
        e("s_mov_b32 %s, s70" % fixed)
        return
    e("s_mul_i32 s69, %s, 15" % sL)
    e("s_add_u32 m0, s69, %d" % nstamp[0])
    e("s_nop 1")
    e("s_movreld_b32 s%d, s70" % STAMP0)
    nstamp[0] += 1
    assert nstamp[0] <= 15


FINE = [a.split("=")[1] for a in sys.argv if a.startswith("--fine=")]
FINE = FINE[0] if FINE else None
nfine = [0]
FINEKS = eval([a.split('=')[1] for a in sys.argv if a.startswith('--ks=')][0]) if any(a.startswith('--ks=') for a in sys.argv) else (0, 8, 16, 31)


def fine(phase):
    if not PROFILE or FINE != phase:
        return
    e(CLK + " s[70:71]")
    e("s_waitcnt lgkmcnt(0)")
    sk = newlab("fs")
    e("s_cmp_lg_u32 %s, %d" % (sL, 0 if "--l0" in sys.argv else 1))
    e("s_cbranch_scc1 %s" % sk)
    e("v_writelane_b32 v5, s70, %d" % nfine[0])
    lab(sk)
    nfine[0] += 1


def srd(dst, lo, size):
    b = int(dst[2:dst.index(":")])
    e("s_mov_b32 s%d, s%d" % (b, lo))
    e("s_and_b32 s%d, s%d, 0xffff" % (b + 1, lo + 1))
    e("s_mov_b32 s%d, %s" % (b + 2, size if isinstance(size, str) else hex(size)))
    e("s_mov_b32 s%d, 0x20000" % (b + 3))


def poll(soff):
    a, b = newlab("poll"), newlab("pok")
    e("s_mov_b32 %s, %d" % (sCNT, POLL_LIMIT))
    lab(a)
    e("buffer_load_dwordx2 %s, %s, %s, %s offen sc1" % (v(vPD, 2), v(vPO), sWS, soff))
    e("s_waitcnt vmcnt(0)")
    e("v_cmp_eq_u64 vcc, %s, %s" % (v(vPD, 2), v(vFV, 2)))
    e("s_nop 1")
    e("s_cmp_eq_u64 vcc, -1")
    e("s_cbranch_scc1 %s" % b)
    e("s_sub_u32 %s, %s, 1" % (sCNT, sCNT))
    e("s_cbranch_scc0 %s" % a)
    e("s_endpgm")
    lab(b)


def lstores(lines):
    g, d = newlab("wt"), newlab("wtd")
    e("s_cmp_eq_u32 %s, 0" % sMODE)
    e("s_cbranch_scc1 %s" % g)
    for x in lines:
        e(x)
    lab(d)
    TAIL.append(g + ":")
    for x in lines:
        TAIL.append("    " + x + (" sc1" if x.startswith("buffer_store") else ""))
    TAIL.append("    s_branch " + d)


def flag(soff, n=0, local=False):
    if n is not None:
        e("s_waitcnt vmcnt(%d)" % n)
    if local:
        e("s_mov_b64 exec, 1")
        lstores(["buffer_store_dwordx2 %s, off, %s, %s" % (v(vFV, 2), sWS, soff)])
    else:
        e("v_lshlrev_b32 %s, 3, v0" % v(vPD))
        e("s_mov_b64 exec, 0xffff")
        e("buffer_store_dwordx2 %s, %s, %s, %s offen sc1" % (v(vFV, 2), v(vPD), sWS, soff))
    e("s_mov_b64 exec, -1")


def mode_poll(first=False):
    a, b, glob, out = newlab("mp"), newlab("mpok"), newlab("mpg"), newlab("mpo")
    e("v_and_b32 %s, 31, v0" % v(vPD))
    e("v_lshlrev_b32 %s, 10, %s" % (v(vPD), v(vPD)))
    addr(T[3], None, FLG + FI * 128, [(sXCD, 128)])
    e("v_add_u32 %s, %s, %s" % (v(vPD), T[3], v(vPD)))
    if first:
        e("v_add_u32 %s, %s, %s" % (v(vPD + 1), T[0], v(vPO)))
        e("v_cmp_gt_u32 vcc, 32, v0")
        e("s_nop 1")
        e("v_cndmask_b32 v60, %s, %s, vcc" % (v(vPD), v(vPD + 1)))
    e("s_getreg_b32 %s, hwreg(HW_REG_XCC_ID, 0, 4)" % T[3])
    e("s_mov_b32 %s, %d" % (sCNT, POLL_LIMIT))
    e("s_mov_b32 %s, 1" % sMODE)
    lab(a)
    e("buffer_load_dwordx2 %s, v60, %s, 0 offen sc1" % (v(vPD, 2), sWS))
    e("s_waitcnt vmcnt(0)")
    e("v_xor_b32 %s, %s, %s" % (v(vPD + 1), v(vPD + 1), v(vFV + 1)))
    e("v_cmp_eq_u32 %s, %s, %s" % (sM0, v(vPD), v(vFV)))
    e("v_cmp_eq_u32 %s, %s, %s" % (sM1, T[3], v(vPD + 1)))
    e("v_cmp_gt_u32 vcc, 16, %s" % v(vPD + 1))
    e("s_nop 1")
    e("s_and_b64 %s, %s, %s" % (sM1, sM1, sM0))
    e("s_and_b64 vcc, vcc, %s" % sM0)
    if not FORCE_GLOBAL:
        e("s_cmp_eq_u64 %s, -1" % sM1)
        e("s_cbranch_scc1 %s" % out)
    e("s_cmp_eq_u32 vcc_hi, -1")
    e("s_cbranch_scc0 %s" % b)
    if not FORCE_GLOBAL:
        e("s_cmp_eq_u32 s67, -1")
        e("s_cbranch_scc0 %s" % glob)
    else:
        e("s_branch %s" % glob)
    lab(b)
    e("s_sub_u32 %s, %s, 1" % (sCNT, sCNT))
    e("s_cbranch_scc0 %s" % a)
    e("s_endpgm")
    lab(glob)
    e("s_mov_b32 %s, 0" % sMODE)
    if first:
        e("v_xor_b32 %s, 31, %s" % (v(vFV + 1), v(vFV + 1)))
        publish_addr(XF, ST, 0, FX)
        publish_x(None, 84)
        poll(T[0])
        e("v_xor_b32 %s, 31, %s" % (v(vFV + 1), v(vFV + 1)))
    lab(out)


def slot(dst, base, terms):
    e("s_add_u32 %s, %s, %d" % (dst, sFB, base * 8))
    for r, m in terms:
        e("s_mul_i32 %s, %s, %d" % (T[9], r, m * 8))
        e("s_add_u32 %s, %s, %s" % (dst, dst, T[9]))


def addr(dst, base_reg, const, terms):
    if base_reg is None:
        e("s_mov_b32 %s, 0x%x" % (dst, const))
    else:
        e("s_add_u32 %s, %s, 0x%x" % (dst, base_reg, const))
    for r, m in terms:
        e("s_mul_i32 %s, %s, %d" % (T[9], r, m))
        e("s_add_u32 %s, %s, %s" % (dst, dst, T[9]))


def load_frags(sg, first, n, reg_of, rebase=True):
    for j in range(first, first + n):
        if j % 4 == 0 or (j == first and rebase):
            e("s_add_u32 %s, %s, %d" % (T[8], sg, (j // 4) * 4096))
        e("buffer_load_dwordx4 %s, %s, %s, %s offen offset:%d sc1" %
          (v(reg_of(j), 4), v(vL16), sWS, T[8], (j % 4) * 1024))


def mfma(d, a, b, c):
    e("v_mfma_f32_32x32x16_bf16 %s, %s, %s, %s" % (v(d, 16), v(a, 4), v(b, 4), c if isinstance(c, str) else v(c, 16)))


def half_sum(a, b):
    e("s_nop 1")
    e("v_permlane32_swap_b32 %s, %s" % (v(a), v(b)))
    e("s_nop 1")
    e("v_add_f32 %s, %s, %s" % (v(a), v(a), v(b)))


def tile_stats(y, t):
    e("v_pk_add_f32 %s, %s, %s" % (v(t, 2), v(y, 2), v(y + 2, 2)))
    e("v_pk_mul_f32 %s, %s, %s" % (v(t + 2, 2), v(y, 2), v(y, 2)))
    for p in range(1, 8):
        if p > 1:
            e("v_pk_add_f32 %s, %s, %s" % (v(t, 2), v(t, 2), v(y + 2 * p, 2)))
        e("v_pk_fma_f32 %s, %s, %s, %s" % (v(t + 2, 2), v(y + 2 * p, 2), v(y + 2 * p, 2), v(t + 2, 2)))
    e("v_add_f32 %s, %s, %s" % (v(t), v(t), v(t + 1)))
    e("v_add_f32 %s, %s, %s" % (v(t + 2), v(t + 2), v(t + 3)))
    half_sum(t, t + 2)


def unpack(dst, src, n):
    for i in range(n):
        e("v_lshlrev_b32 %s, 16, %s" % (v(dst + 2 * i), v(src + i)))
        e("v_and_b32 %s, 0xffff0000, %s" % (v(dst + 2 * i + 1), v(src + i)))


def publish_addr(xoff, stoff, fbase_add, fbase):
    addr(T[4], sLB, xoff, [(sTBN, XSTR), (sNT, 2048)])
    e("s_lshr_b32 %s, %s, 2" % (T[6], sNT))
    e("s_and_b32 %s, %s, 3" % (T[7], sNT))
    addr(T[5], sLB, stoff, [(sTBN, 4096), (T[6], 1024), (T[7], 4)])
    slot(T[6], fbase, [(sTBN, 16), (sNT, 1)])
    if fbase_add:
        e("s_add_u32 %s, %s, %d" % (T[6], T[6], fbase_add))


def publish_x(y, t):
    lstores(["buffer_store_dwordx4 %s, %s, %s, %s offen" % (v(vRES, 4), v(vL16), sWS, T[4]),
             "buffer_store_dwordx4 %s, %s, %s, %s offen offset:1024" % (v(vRES + 4, 4), v(vL16), sWS, T[4])])
    if y is not None:
        tile_stats(y, t)
    lstores(["buffer_store_dword %s, %s, %s, %s offen" % (v(t), v(vL16), sWS, T[5])])
    flag(T[6], local=True)


def prologue():
    e("s_cmp_ge_u32 s2, 256")
    e("s_cbranch_scc1 L_end")
    e("s_load_dwordx16 s[12:27], s[0:1], 0")
    e("s_load_dwordx4 s[28:31], s[0:1], 64")
    e("s_load_dwordx2 s[32:33], s[0:1], 80")
    e("v_lshrrev_b32 v1, 6, v0")
    e("v_and_b32 v0, 63, v0")
    e("v_readfirstlane_b32 %s, v1" % sW)
    e("v_lshlrev_b32 %s, 4, v0" % v(vL16))
    cm("column part of a transposing-read address: (lane&3)*8 + ((lane>>4)&1)*32")
    e("v_and_b32 %s, 3, v0" % v(vTR))
    e("v_lshlrev_b32 %s, 3, %s" % (v(vTR), v(vTR)))
    e("v_bfe_u32 %s, v0, 4, 1" % v(vT5))
    e("v_lshl_or_b32 %s, %s, 5, %s" % (v(vTR), v(vT5), v(vTR)))
    e("v_lshrrev_b32 %s, 5, v0" % v(vT5))
    e("v_lshlrev_b32 %s, 4, %s" % (v(vH16), v(vT5)))
    cm("K fragments are stored with token bits 2 and 3 swapped (matches the sparse-MFMA key order)")
    e("v_and_b32 %s, 0x33, v0" % v(vK16))
    e("v_and_b32 %s, 4, v0" % v(vPO))
    e("v_lshl_or_b32 %s, %s, 1, %s" % (v(vK16), v(vPO), v(vK16)))
    e("v_and_b32 %s, 8, v0" % v(vPO))
    e("v_lshrrev_b32 %s, 1, %s" % (v(vPO), v(vPO)))
    e("v_or_b32 %s, %s, %s" % (v(vK16), v(vK16), v(vPO)))
    e("v_lshlrev_b32 %s, 4, %s" % (v(vK16), v(vK16)))
    cm("V store offset: head parity*128K + half*512 + d*16")
    e("v_and_b32 %s, 15, v0" % v(vVOF))
    e("v_lshlrev_b32 %s, 4, %s" % (v(vVOF), v(vVOF)))
    e("v_lshl_or_b32 %s, %s, 9, %s" % (v(vVOF), v(vT5), v(vVOF)))
    e("v_bfe_u32 %s, v0, 4, 1" % v(vPO))
    e("v_lshl_or_b32 %s, %s, 17, %s" % (v(vVOF), v(vPO), v(vVOF)))
    e("s_and_b32 %s, s2, 7" % sXCD)
    e("s_lshr_b32 %s, s2, 3" % sJ)
    e("s_and_b32 %s, %s, 3" % (sHW, sW))
    e("s_and_b32 %s, %s, 15" % (sC, sJ))
    e("s_lshr_b32 %s, %s, 4" % (T[0], sJ))
    e("s_lshl_b32 %s, %s, 2" % (T[0], T[0]))
    e("s_add_u32 %s, %s, %s" % (sTBW, T[0], sHW))
    e("s_and_b32 %s, %s, 7" % (sNB, sJ))
    e("s_lshr_b32 %s, %s, 3" % (T[0], sJ))
    e("s_mov_b32 %s, %s" % (sHEAD, sJ))
    e("s_lshl_b32 %s, %s, 1" % (sTBN, T[0]))
    e("s_and_b32 %s, %s, 1" % (T[0], sW))
    e("s_add_u32 %s, %s, %s" % (sTBN, sTBN, T[0]))
    e("s_lshr_b32 %s, %s, 1" % (sKH, sHW))
    e("s_lshl_b32 %s, %s, 1" % (sNT, sNB))
    e("s_add_u32 %s, %s, %s" % (sNT, sNT, sKH))
    e("s_mov_b32 s62, 0xffff")
    e("s_mov_b32 s63, 0xffff")
    e("s_mov_b32 %s, 0" % sL)
    addr(sLB, None, ARENA, [(sXCD, ARENA_X)])
    e("s_add_u32 %s, %s, 0x%x" % (sFB, sLB, LFL))
    e("s_waitcnt lgkmcnt(0)")
    srd(sWS, 32, WS_SIZE)
    srd(sTMP, 12, 2048 * 1024)
    cm("hand-off tag: ws[0] only tells this launch's flags from an earlier launch's")
    e("s_load_dword %s, s[32:33], 0" % sNONCE)
    if OPT("hold", 0) and not PROFILE:
        e("s_memrealtime s[70:71]")
        e("s_waitcnt lgkmcnt(0)")
        e("s_mov_b32 s68, s70")
    if PROFILE:
        e("s_memrealtime s[70:71]")
        e("s_waitcnt lgkmcnt(0)")
        e("s_mov_b32 s68, s70")
        stamp("s18")


def make_tag():
    e("s_waitcnt lgkmcnt(0)")
    e("s_add_u32 %s, %s, 16" % (sNONCE, sNONCE))
    e("v_mov_b32 %s, %s" % (v(vFV), sNONCE))
    e("v_not_b32 %s, %s" % (v(vFV + 1), v(vFV)))


def p0():
    cm("================ P0 (waves 0-3): x tile -> residual registers, fragments and row statistics")
    p0end, noid, nox, npt = newlab("p0end"), newlab("noid"), newlab("nox"), newlab("npt")
    e("s_cmp_ge_u32 %s, 4" % sW)
    e("s_cbranch_scc1 %s" % nox)
    e("v_and_b32 %s, 31, v0" % v(vPO))
    e("v_lshlrev_b32 %s, 10, %s" % (v(vPO), v(vPO)))
    e("v_add_u32 %s, %s, %s" % (v(vPO), v(vPO), v(vH16)))
    addr(T[0], None, 0, [(sXCD, 262144), (sTBN, 32768), (sNT, 64)])
    for g in range(2):
        e("buffer_load_dwordx4 %s, %s, %s, %s offen offset:%d" % (v(vRES + 4 * g, 4), v(vPO), sTMP, T[0], 32 * g))
    lab(nox)
    e("v_lshlrev_b32 v17, 7, v0")
    for bit, wave in ((1, OPT("w1", 6)), (2, OPT("w2", 5))):
        if not OPT("qft", 3) & bit:
            continue
        nq = newlab("nq")
        e("s_cmp_lg_u32 %s, %d" % (sW, wave))
        e("s_cbranch_scc1 %s" % nq)
        srd(sTMP, 14, 512 * 3072)
        if bit == 1:
            cm("first touch of Wqkv, one line per lane, spread over all workgroups")
            e("s_mul_i32 %s, s2, %d" % (T[0], 48 * 128))
            e("v_mov_b32 v19, v17")
        else:
            cm("one 128-byte column class of Wqkv arrives slowest: the die group requests its lines up front")
            addr(T[0], None, 384, [(sJ, 48 * 1024)])
            e("v_lshlrev_b32 v19, 10, v0")
        e("s_mov_b32 exec_hi, 0xffff")
        e("buffer_load_dword v16, v19, %s, %s offen" % (sTMP, T[0]))
        e("s_mov_b64 exec, -1")
        lab(nq)
    e("s_cmp_lg_u32 %s, 4" % sW)
    e("s_cbranch_scc1 %s" % npt)
    cm("statistics and flag lines receive partial writes: bring them into L2 first")
    addr(T[0], sLB, ST, [(sJ, 11 * 128)])
    e("s_mov_b64 exec, 0x7ff")
    e("buffer_load_dword v18, v17, %s, %s offen sc1" % (sWS, T[0]))
    e("s_mov_b64 exec, -1")
    lab(npt)
    e("s_cmp_ge_u32 %s, 4" % sW)
    e("s_cbranch_scc1 %s" % p0end)
    stamp("s0")
    make_tag()
    e("s_getreg_b32 %s, hwreg(HW_REG_XCC_ID, 0, 4)" % T[7])
    e("s_mov_b32 %s, 1" % sMODE)
    e("v_xor_b32 %s, %s, %s" % (v(vFV + 1), T[7], v(vFV + 1)))
    publish_addr(XF, ST, 0, FX)
    nid = newlab("nid")
    e("s_cmp_lg_u32 %s, 0" % sW)
    e("s_cbranch_scc1 %s" % nid)
    e("s_lshl_b32 %s, s2, 7" % T[8])
    e("s_add_u32 %s, %s, 0x%x" % (T[8], T[8], FLG + FI * 128))
    flag(T[8], None)
    e("s_waitcnt vmcnt(1)")
    e("s_branch %s" % noid)
    lab(nid)
    e("s_waitcnt vmcnt(0)")
    lab(noid)
    stamp("s1")
    for g in range(2):
        e("v_permlane32_swap_b32 %s, %s" % (v(vRES + 4 * g), v(vRES + 4 * g + 2)))
        e("v_permlane32_swap_b32 %s, %s" % (v(vRES + 4 * g + 1), v(vRES + 4 * g + 3)))
    e("s_nop 0")
    unpack(66, vRES, 8)
    publish_x(66, 84)
    e("s_nop 0")
    e("v_not_b32 %s, %s" % (v(vFV + 1), v(vFV)))
    lab(p0end)
    stamp("s19")


def tr_pair(dst):
    tr_rows(dst, 128)
    e("v_bfe_u32 %s, v0, 3, 1" % v(vPD))
    e("v_lshl_or_b32 %s, %s, 6, %s" % (v(dst), v(vPD), v(dst)))


def tr_rows(dst, rowbytes):
    e("v_bfe_u32 %s, v0, 2, 2" % v(dst))
    e("v_lshrrev_b32 %s, 2, %s" % (v(vPD), v(vH16)))
    e("v_add_u32 %s, %s, %s" % (v(dst), v(dst), v(vPD)))
    e("v_mul_u32_u24 %s, %d, %s" % (v(dst), rowbytes, v(dst)))
    e("v_add_u32 %s, %s, %s" % (v(dst), v(dst), v(vTR)))


def voff_128(dst, row=1024):
    e("v_lshrrev_b32 %s, 3, v0" % v(dst))
    e("v_mul_u32_u24 %s, %d, %s" % (v(dst), row, v(dst)))
    e("v_and_b32 %s, 7, v0" % v(vPD))
    e("v_lshrrev_b32 %s, 2, v0" % v(vPD + 1))
    e("v_and_b32 %s, 4, %s" % (v(vPD + 1), v(vPD + 1)))
    e("v_xor_b32 %s, %s, %s" % (v(vPD), v(vPD), v(vPD + 1)))
    e("v_lshl_or_b32 %s, %s, 4, %s" % (v(dst), v(vPD), v(dst)))


def voff_192(dst):
    for i in range(3):
        e("v_add_u32 %s, %d, v0" % (v(vPD), 64 * i))
        e("v_mul_u32_u24 %s, 5462, %s" % (v(vPD + 1), v(vPD)))
        e("v_lshrrev_b32 %s, 16, %s" % (v(vPD + 1), v(vPD + 1)))
        e("v_mul_u32_u24 %s, %d, %s" % (v(dst + i), 2752 - 192, v(vPD + 1)))
        e("v_lshl_add_u32 %s, %s, 4, %s" % (v(dst + i), v(vPD), v(dst + i)))


def dma1(vo, sg, cls):
    e("buffer_load_dwordx4 %s, %s, %s offen%s lds" % (v(vo), sTMP, sg, " nt" if OPT("wnt", 0) & cls else ""))


def dma_loop(n, body):
    lp = newlab("dl")
    e("s_mov_b32 %s, %d" % (T[2], n))
    lab(lp)
    body()
    e("s_sub_u32 %s, %s, 1" % (T[2], T[2]))
    e("s_cmp_lg_u32 %s, 0" % T[2])
    e("s_cbranch_scc1 %s" % lp)


def dma_w2(piece0, lds0, n, pace=PACE):
    addr(T[0], None, piece0 * 8192, [(sHW, n * 8192), (sNB, 128)])
    addr(T[1], None, lds0, [(sHW, n * 1024)])

    def body():
        e("s_mov_b32 m0, %s" % T[1])
        e("s_add_u32 %s, %s, 1024" % (T[1], T[1]))
        dma1(40, T[0], 4)
        e("s_add_u32 %s, %s, 8192" % (T[0], T[0]))
        if pace:
            e("s_waitcnt vmcnt(%d)" % max(pace, 0))
    dma_loop(n, body)


def dma_w1(n):
    def body():
        for i in range(3):
            e("s_add_u32 m0, %s, %d" % (T[1], 1024 * i))
            e("s_nop 0")
            dma1(44 + i, T[0], 2)
        e("s_add_u32 %s, %s, %d" % (T[0], T[0], 16 * 2752))
        e("s_add_u32 %s, %s, 3072" % (T[1], T[1]))
    dma_loop(n, body)


def wq_begin():
    srd(sTMP, 14, 512 * 3072)
    voff_128(44, 3072)
    e("v_lshrrev_b32 v40, 2, v0")
    e("v_mul_u32_u24 v40, 3072, v40")
    e("v_and_b32 v41, 3, v0")
    e("v_lshl_or_b32 v40, v41, 4, v40")
    cm("odd groups take a K column pair, even groups a V column pair; every group takes one Q tile")
    e("s_and_b32 %s, %s, 1" % (T[0], sC))
    e("s_lshr_b32 %s, %s, 1" % (T[1], sC))
    e("s_mul_i32 %s, %s, -1024" % (T[0], T[0]))
    addr(T[3], T[0], 2048, [(sHW, 2 * 49152), (T[1], 128)])
    addr(T[5], None, 0, [(sHW, 2 * 49152), (sC, 64)])
    e("s_lshl_b32 %s, %s, 12" % (T[4], sHW))
    addr(T[6], None, 65536, [(sHW, 2048)])


def wq_chunk():
    for k in range(4):
        e("s_add_u32 m0, %s, %d" % (T[4], 1024 * k))
        e("s_nop 0")
        e("buffer_load_dwordx4 v44, %s, %s offen lds" % (sTMP, T[3]))
        e("s_add_u32 %s, %s, %d" % (T[3], T[3], 24576 if k < 3 else 24576 + 6 * 49152))
        if k % 2:
            e("s_add_u32 m0, %s, %d" % (T[6], 1024 * (k // 2)))
            e("s_nop 0")
            e("buffer_load_dwordx4 v40, %s, %s offen lds" % (sTMP, T[5]))
            e("s_add_u32 %s, %s, %d" % (T[5], T[5], 49152 if k == 1 else 7 * 49152))
    e("s_add_u32 %s, %s, 16384" % (T[4], T[4]))
    e("s_add_u32 %s, %s, 8192" % (T[6], T[6]))


CSA = 64


def colsum_begin():
    for r in range(48):
        e("v_mov_b32 v%d, 0" % (CSA + r))
    for r in range(4):
        e("v_mov_b32 v%d, 0x3f803f80" % (52 + r))


def colsum2(regs, steps, seconds):
    for k in range(2):
        for i in range(3):
            for h in range(2):
                e("ds_read_b64_tr_b16 %s, v%d offset:%d" % (v(16 + 12 * k + 4 * i + 2 * h, 2), regs[i], k * steps[i] + h * seconds[i]))
    for k in range(6):
        e("s_waitcnt lgkmcnt(%d)" % (10 - 2 * k))
        mfma(CSA + 16 * (k % 3), 52, 16 + 4 * k, CSA + 16 * (k % 3))


def colsum_w1():
    e("v_add_u32 v42, %s, v43" % T[0])
    e("v_add_u32 v48, 64, v42")
    e("v_add_u32 v50, 128, v42")
    colsum2((42, 48, 50), (3072,) * 3, (1536,) * 3)


def colsum_partial():
    e("v_and_b32 v41, 31, v0")
    e("v_lshlrev_b32 v41, 2, v41")
    addr(T[0], None, PART_L, [(sHW, 384)])
    e("v_add_u32 v42, %s, v41" % T[0])
    e("s_nop 7")
    for i in range(3):
        e("ds_write_b32 v42, v%d offset:%d" % (CSA + 16 * i, 128 * i))


def colsum_combine(dst_l):
    e("s_min_u32 %s, %s, 2" % (T[0], sHW))
    e("s_lshl_b32 %s, %s, 7" % (T[0], T[0]))
    e("v_add_u32 v41, %s, v41" % T[0])
    e("v_add_u32 v42, %d, v41" % PART_L)
    for k in range(4):
        e("ds_read_b32 v%d, v42 offset:%d" % (16 + k, 384 * k))
    e("v_add_u32 v41, %d, v41" % dst_l)
    e("s_waitcnt lgkmcnt(0)")
    e("v_add_f32 v16, v16, v17")
    e("v_add_f32 v18, v18, v19")
    e("v_add_f32 v16, v16, v18")
    e("ds_write_b32 v41, v16")


def stats_code(second_ln):
    c = []
    for k in range(1, 16):
        c.append("v_add_f32 %s, %s, %s" % (v(vSTS), v(vSTS), v(vSTS + k)))
    c += ["v_mov_b32 %s, %s" % (v(vSTS + 1), v(vSTS)), "s_nop 1",
          "v_permlane32_swap_b32 %s, %s" % (v(vSTS), v(vSTS + 1)), "s_nop 1",
          "v_mul_f32 %s, %s, %s" % (v(vMU), f32(1.0 / 512), v(vSTS)),
          "v_mul_f32 %s, %s, %s" % (v(vSTS + 1), f32(1.0 / 512), v(vSTS + 1)),
          "v_fma_f32 %s, -%s, %s, %s" % (v(vSTS + 1), v(vMU), v(vMU), v(vSTS + 1)),
          "v_max_f32 %s, 0, %s" % (v(vSTS + 1), v(vSTS + 1)),
          "v_add_f32 %s, %s, %s" % (v(vSTS + 2), f32(1e-5), v(vSTS + 1)),
          "v_rsq_f32 %s, %s" % (v(vR), v(vSTS + 2)), "s_nop 0"]
    if second_ln:
        c += ["v_mul_f32 %s, %s, %s" % (v(vSTS + 2), v(vR), v(vR)),
              "v_mul_f32 %s, %s, %s" % (v(vSTS + 2), v(vSTS + 2), v(vSTS + 1)),
              "v_add_f32 %s, %s, %s" % (v(vSTS + 2), f32(1e-5), v(vSTS + 2)),
              "v_rsq_f32 %s, %s" % (v(vSTS + 2), v(vSTS + 2)), "s_nop 0",
              "v_mul_f32 %s, %s, %s" % (v(vR), v(vR), v(vSTS + 2))]
    return c


def center(acc, cs, p):
    e("v_pk_fma_f32 %s, %s, %s, %s op_sel_hi:[0,1,1] neg_lo:[1,0,0] neg_hi:[1,0,0]" %
      (v(acc + 2 * p, 2), v(vMU, 2), v(cs + 2 * p, 2), v(acc + 2 * p, 2)))


def stash_addr():
    e("s_mul_i32 %s, %s, 24576" % (T[0], sHW))
    e("v_add_u32 v42, %s, %s" % (T[0], v(vL16)))


class Lds:
    def __init__(self):
        self.ops, self.done = [], 0

    def op(self, name, text):
        e(text)
        self.ops.append(name)

    def need(self, name):
        last = max(i for i, n in enumerate(self.ops) if n == name)
        if last < self.done:
            return None
        self.done = last + 1
        return min(15, len(self.ops) - 1 - last)


def qkv_body(isk, done):
    H = 16

    def item(n):
        if n < 32:
            load_frags(T[1], n, 1, lambda j: vA + 4 * j, n % 4 == 0)
        else:
            e("buffer_load_dwordx4 %s, %s, %s, %s offen offset:%d sc1" % (v(vSTS + 4 * (n - 32), 4), v(vL16), sWS, T[2], 1024 * (n - 32)))
    sched = [[ks + DEPTH] if ks + DEPTH < 32 else [] for ks in range(32)]
    for k in range(4):
        sched[3 + 2 * k].append(32 + k)
    order = list(range(DEPTH))
    lds = Lds()

    def rd(ks, i, d):
        base, off, sec = ((vW0, vW2)[i], ks * 2048, 1024) if i < 2 else (vW1, ks * 1024, 512)
        lds.op(("w", i, ks), "ds_read_b64_tr_b16 %s, %s offset:%d" % (v(d, 2), v(base), off))
        lds.op(("w", i, ks), "ds_read_b64_tr_b16 %s, %s offset:%d" % (v(d + 2, 2), v(base), off + sec))

    def wait(name):
        n = lds.need(name)
        if n is not None:
            e("s_waitcnt lgkmcnt(%d)" % n)
    wb1 = lambda ks, i: vWB + (ks % 3) * 12 + 4 * i
    wb2 = lambda ks: vWB + (12 * (ks - H) + 8 if ks < H + 3 else [0, 4, 12, 16, 24, 28, 8, 20, 32][(ks - H - 3) % 9])
    tiles = lambda ks: (2, 0, 1) if ks < H else (0, 1)
    for ks in range(2):
        for i in tiles(ks):
            rd(ks, i, wb1(ks, i))
    fine("q")
    SA, SB, SC = vPO, vPD, vPD + 1
    PK, C0, C1, VC, QC = vA, vA + 16, vA + 32, vA + 48, vSTS

    def addresses():
        e("s_lshr_b32 %s, %s, 1" % (T[0], sC))
        addr(T[4], None, KVF, [(sL, KVF_L), (T[0], 4 * 131072), (sXCD, 16384), (sTBW, 2048)])
        addr(T[2], sLB, KVL, [(T[0], 8192), (sTBW, HSTR)])
        slot(T[6], FQ, [(sC, 8), (sTBW, 1)])
        addr(T[7], None, GFL, [(sL, GFL_L), (sC, 65536), (sXCD, 8192), (sTBW, 1024)])
        addr(T[3], sLB, QF, [(sC, 2048), (sTBW, HSTR)])
        if not isk:
            e("v_and_b32 %s, 31, v0" % v(SA))
            e("v_lshlrev_b32 %s, 2, %s" % (v(SA), v(SA)))
            addr(T[0], None, STAT_L, [(sHW, 256)])
            e("v_add_u32 %s, %s, %s" % (v(SB), T[0], v(SA)))
            e("v_add_u32 %s, %s, %s" % (v(SC), T[0], v(vH16)))
            e("v_add_u32 %s, %d, %s" % (v(SA), CSQ_L, v(SA)))
    sh = [lambda x=x: e(x) for x in capture(addresses) + stats_code(False)]
    sh.append(lambda: e("v_mul_f32 %s, %s, %s" % (v(vRQ), f32(0.25 * 1.4426950408889634), v(vR))))
    if isk:
        for k in range(8):
            sh.append(lambda k=k: lds.op("c", "ds_read_b128 %s, %s offset:%d" % (v(C0 + 4 * k, 4), v(vCA), 32 * k)))
    else:
        sh.append(lambda: lds.op("sw", "ds_write_b32 %s, %s" % (v(SB), v(vMU))))
        sh.append(lambda: lds.op("sw", "ds_write_b32 %s, %s offset:128" % (v(SB), v(vR))))
        for k in range(8):
            sh.append(lambda k=k: lds.op("c", "ds_read_b128 %s, %s offset:%d" % (v(C0 + 4 * k, 4), v(SC), 32 * k)))
        for t in range(2):
            sh.append(lambda t=t: lds.op("c", "ds_read_b32 %s, %s offset:%d" % (v(VC + t), v(SA), 128 * t)))
    nsal = len(capture(addresses))
    pos = 0
    for ks in range(32):
        if ks in (16, 22):
            e("s_barrier")
        newest = max(order.index(n) for n in ([ks, 35] if ks >= 18 else [ks]))
        e("s_waitcnt vmcnt(%d) lgkmcnt(%d)" % (len(order) - 1 - newest, lds.need(("w", 1, ks))))
        if ks in FINEKS:
            fine("q")
        for m, i in enumerate(tiles(ks)):
            c = "0" if ks == 0 else vACC + 16 * i
            if i < 2 and not isk:
                mfma(vACC + 16 * i, vA + 4 * ks, wb1(ks, i), c)
            else:
                mfma(vACC + 16 * i, wb1(ks, i), vA + 4 * ks, c)
            if ks + 2 < 32 and i in tiles(ks + 2):
                rd(ks + 2, i, wb1(ks + 2, i))
            elif ks >= 30 and (i == 0 or ks == 30):
                k2 = H + (ks - 30) * 2 + i
                rd(k2, 2, wb2(k2))
            if m < len(sched[ks]):
                item(sched[ks][m])
                order.append(sched[ks][m])
            if ks >= 10:
                for _ in range(2):
                    if pos < len(sh) and (pos < nsal or ks >= 18):
                        sh[pos]()
                        pos += 1
    assert pos == len(sh), (pos, len(sh))
    cm("remaining Q k-steps with the pair's epilogue underneath")
    fill = [lambda: wait("c")]
    for i in range(4):
        fill.append(lambda i=i: lds.op("qc", "ds_read_b128 %s, %s offset:%d" % (v(QC + 4 * i, 4), v(vCA), 256 + 32 * i)))
    fill.append(lambda: e("s_add_u32 %s, %s, 0x%x" % (T[5], T[4], 0x20000 if isk else 0x40000)))
    fill.append(lambda: e("s_add_u32 %s, %s, 4096" % (T[0], T[2])))
    if isk:
        fill.append(lambda: e("s_add_u32 %s, %s, 0x40000" % (T[8], T[4])))
        fill.append(lambda: e("s_add_u32 %s, %s, 0x60000" % (T[1], T[4])))
    else:
        fill.append(lambda: e("v_and_b32 %s, 0x1ffff, %s" % (v(SC), v(vVOF))))
        fill.append(lambda: e("v_lshrrev_b32 %s, 17, %s" % (v(SB), v(vVOF))))
        fill.append(lambda: e("v_lshl_or_b32 %s, %s, 11, %s" % (v(SC), v(SB), v(SC))))
    local = []
    for t in range(2):
        a = vACC + 16 * t
        for r in range(16):
            if isk:
                fill.append(lambda a=a, t=t, r=r: e("v_fma_f32 %s, -%s, %s, %s" % (v(a + r), v(vMU), v(C0 + 16 * t + r), v(a + r))))
            else:
                fill.append(lambda a=a, t=t, r=r: e("v_fma_f32 %s, -%s, %s, %s" % (v(a + r), v(C0 + r), v(VC + t), v(a + r))))
        for r in range(16):
            fill.append(lambda a=a, r=r: e("v_mul_f32 %s, %s, %s" % (v(a + r), v(vR if isk else C1 + r), v(a + r))))
        for p in range(8):
            fill.append(lambda a=a, t=t, p=p: e("v_cvt_pk_bf16_f32 %s, %s, %s" % (v(PK + 8 * t + p), v(a + 2 * p), v(a + 2 * p + 1))))
        for hh in range(2):
            d = v(PK + 8 * t + 4 * hh, 4)
            if isk:
                g = "%s, %s, %s, %s offen" % (d, v(vK16), sWS, (T[4], T[5], T[8], T[1])[2 * t + hh])
                local.append("buffer_store_dwordx4 %s, %s, %s, %s offen offset:%d" % (d, v(vK16), sWS, (T[2], T[0])[t], 2048 * hh))
            else:
                g = "%s, %s, %s, %s offen offset:%d" % (d, v(vVOF), sWS, (T[4], T[5])[t], 1024 + 256 * hh)
                local.append("buffer_store_dwordx4 %s, %s, %s, %s offen offset:%d" % (d, v(SC), sWS, (T[2], T[0])[t], 1024 + 256 * hh))
            fill.append(lambda g=g: e("buffer_store_dwordx4 " + g + " sc1"))
    fill.append(lambda: lstores(local))
    per = -(-len(fill) // (32 - H))
    aQ = vACC + 32
    for ks in range(H, 32):
        wait(("w", 2, ks + 1 if ks % 2 == 0 and H + 2 < ks < 31 else ks))
        mfma(aQ, wb2(ks), vA + 4 * ks, aQ)
        if ks == H:
            fine("q")
        for n in ([H + 3, H + 4] if ks == H else [H + 5, H + 6] if ks == H + 1 else [ks + 5] if ks + 5 < 32 else []):
            rd(n, 2, wb2(n))
        for f in fill[(ks - H) * per:(ks + 1 - H) * per]:
            f()
    e("s_barrier")
    stamp()
    wait("qc")
    e("s_nop %d" % max(0, 10 - len(fill[(31 - H) * per:])))
    for p in range(8):
        center(aQ, QC, p)
    for p in range(8):
        e("v_pk_mul_f32 %s, %s, %s op_sel_hi:[1,0]" % (v(aQ + 2 * p, 2), v(aQ + 2 * p, 2), v(vRQ, 2)))
    for p in range(8):
        e("v_cvt_pk_bf16_f32 %s, %s, %s" % (v(C1 + p), v(aQ + 2 * p), v(aQ + 2 * p + 1)))
    lstores(["buffer_store_dwordx4 %s, %s, %s, %s offen offset:%d" % (v(C1 + 4 * hh, 4), v(vL16), sWS, T[3], 1024 * hh) for hh in range(2)])
    fine("q")
    for k in range(4):
        e("v_mov_b32 %s, %s" % (v(vSTS + k), v(vFV + k % 2)))
    flag(T[6], 0, local=True)
    e("buffer_store_dwordx4 %s, %s, %s, %s offen sc1" % (v(vSTS, 4), v(vL16), sWS, T[7]))
    e("s_branch %s" % done)


def qkv():
    cm("================ QKV projection")
    hl, done, kb = newlab("qkv_h"), newlab("qkv_done"), newlab("qkv_k")
    e("s_cmp_ge_u32 %s, 4" % sW)
    e("s_cbranch_scc1 %s" % hl)
    e("v_and_b32 %s, 15, v0" % v(vPO))
    e("v_lshlrev_b32 %s, 3, %s" % (v(vPO), v(vPO)))
    slot(T[0], FX, [(sTBW, 16)])
    addr(T[1], sLB, XF, [(sTBW, XSTR)])
    addr(T[2], sLB, ST, [(sTBW, 4096)])
    e("v_add_u32 %s, %d, %s" % (v(vCA), CONST, v(vH16)))
    tr_pair(vW0)
    e("v_xor_b32 %s, 64, %s" % (v(vW2), v(vW0)))
    tr_rows(vW1, 64)
    e("v_add_u32 %s, 0x10000, %s" % (v(vW1), v(vW1)))
    l1, l2 = newlab("fx"), newlab("fx")
    e("s_cmp_lg_u32 %s, 0" % sL)
    e("s_cbranch_scc1 %s" % l1)
    mode_poll(True)
    e("v_mov_b32 v60, %s" % sMODE)
    e("v_mov_b32 v61, %d" % MODE_L)
    e("ds_write_b32 v61, v60")
    e("s_waitcnt lgkmcnt(0)")
    e("s_branch %s" % l2)
    lab(l1)
    poll(T[0])
    lab(l2)
    stamp()
    load_frags(T[1], 0, DEPTH, lambda j: vA + 4 * j)
    fine("q")
    e("s_barrier")
    e("s_bitcmp1_b32 %s, 0" % sC)
    e("s_cbranch_scc1 %s" % kb)
    n0, f0 = nstamp[0], nfine[0]
    qkv_body(False, done)
    lab(kb)
    nstamp[0], nfine[0] = n0, f0
    qkv_body(True, done)
    lab(hl)
    h1, h2, lp = newlab("qh1"), newlab("qh2"), newlab("qhl")
    e("s_cmp_lg_u32 %s, 0" % sL)
    e("s_cbranch_scc1 %s" % h1)
    wq_begin()
    if FINE == "h":
        make_tag()
        fine("h")
    dma_loop(2, wq_chunk)
    fine("h")
    if FINE != "h":
        make_tag()
    colsum_begin()
    tr_pair(42)
    e("s_lshl_b32 %s, %s, 12" % (T[0], sHW))
    e("v_add_u32 v42, %s, v42" % T[0])
    e("v_xor_b32 v48, 64, v42")
    tr_rows(50, 64)
    addr(T[0], None, 65536, [(sHW, 2048)])
    e("v_add_u32 v50, %s, v50" % T[0])
    e("s_mov_b32 %s, 0" % sIT)
    lab(lp)
    b1, b2 = newlab("qw"), newlab("qw")
    e("s_cmp_ge_u32 %s, 2" % sIT)
    e("s_cbranch_scc1 %s" % b1)
    wq_chunk()
    e("s_waitcnt vmcnt(12)")
    e("s_branch %s" % b2)
    lab(b1)
    e("s_waitcnt vmcnt(6)")
    e("s_cmp_eq_u32 %s, 2" % sIT)
    e("s_cbranch_scc1 %s" % b2)
    e("s_waitcnt vmcnt(0)")
    lab(b2)
    fine("h")
    colsum2((42, 48, 50), (2048, 2048, 1024), (1024, 1024, 512))
    e("v_add_u32 v42, 16384, v42")
    e("v_add_u32 v48, 16384, v48")
    e("v_add_u32 v50, 8192, v50")
    e("s_add_u32 %s, %s, 1" % (sIT, sIT))
    e("s_cmp_lt_u32 %s, 4" % sIT)
    e("s_cbranch_scc1 %s" % lp)
    colsum_partial()
    fine("h")
    e("s_waitcnt lgkmcnt(0)")
    e("s_barrier")
    fine("h")
    colsum_combine(CSQ_L)
    e("v_mov_b32 v61, %d" % MODE_L)
    e("ds_read_b32 v60, v61")
    cm("park the weight tile in registers for the second layer pair")
    stash_addr()
    for k in range(24):
        e("ds_read_b128 %s, v42 offset:%d" % (v(vSTASH + 4 * k, 4), 1024 * k))
    e("s_waitcnt lgkmcnt(15)")
    e("v_readfirstlane_b32 %s, v60" % sMODE)
    e("s_branch %s" % h2)
    lab(h1)
    e("s_waitcnt lgkmcnt(0)")
    e("s_barrier")
    lab(h2)
    cm("lanes 0-15: Q lines; lanes 16-47: the K or V kilobyte of four head blocks")
    e("v_subrev_u32 v20, 16, v0")
    e("v_lshrrev_b32 v21, 3, v20")
    e("v_lshlrev_b32 v21, 10, v21")
    e("v_lshl_add_u32 v20, v20, 7, v21")
    e("s_lshr_b32 %s, %s, 1" % (T[1], sC))
    e("s_and_b32 %s, %s, 1" % (T[2], sC))
    addr(T[3], None, 32768 + 1024, [(T[1], 8192), (T[2], -1024), (sC, -2048)])
    e("v_add_u32 v20, %s, v20" % T[3])
    e("v_lshlrev_b32 v19, 7, v0")
    e("v_cmp_lt_u32 vcc, 15, v0")
    addr(T[0], sLB, BLK, [(sTBW, HSTR), (sC, 2048)])
    e("v_cndmask_b32 v19, v19, v20, vcc")
    e("s_waitcnt lgkmcnt(0)")
    e("s_barrier")
    e("s_barrier")
    cm("all activation loads are out: bring in the lines the Q/K/V stores will write, so they need no fill")
    e("s_mov_b32 exec_hi, 0xffff")
    e("buffer_load_dword v21, v19, %s, %s offen sc1" % (sWS, T[0]))
    e("s_mov_b64 exec, -1")
    e("s_cmp_lg_u32 %s, 0" % sL)
    e("s_cbranch_scc1 %s" % done)
    cm("this workgroup's slices of b1 and b2; they are staged in LDS after attention")
    srd(sTMP, 22, 2752)
    e("v_and_b32 v19, 31, v0")
    e("v_lshlrev_b32 v19, 1, v19")
    addr(T[0], None, 0, [(sHW, 64), (sC, 192)])
    e("buffer_load_ushort v224, v19, %s, %s offen" % (sTMP, T[0]))
    srd(sTMP, 26, 1024)
    e("s_and_b32 %s, %s, 1" % (T[4], sHW))
    addr(T[0], None, 0, [(T[4], 64), (sNB, 128)])
    e("buffer_load_ushort v225, v19, %s, %s offen" % (sTMP, T[0]))
    lab(done)
    stamp()


def attention():
    cm("================ attention: S^T = K Q^T, P = exp2(S^T), O^T += V^T P via sparse MFMA")
    S, O, Q, KB, VB, IDX, AD, VO, CN = (16, 32), 48, 64, (68, 72), (76, 84), 92, 93, 94, 100
    PF = 100
    KVG, LP, CH, GF, ISS = T[2], T[3], T[4], T[5], T[6]
    cm("rows 16 and 20 of the V operand are ones (row sums for both lane halves); the other spare rows are zero")
    e("v_and_b32 %s, 27, v0" % v(IDX))
    e("v_cmp_eq_u32 vcc, 16, %s" % v(IDX))
    e("v_mov_b32 %s, 0x3f803f80" % v(AD))
    e("s_nop 0")
    for i in range(16):
        e("v_mov_b32 %s, 0" % v(O + i))
        e("v_cndmask_b32 %s, 0, %s, vcc" % (v(VB[0] + i), v(AD)))
    for i in range(8):
        e("v_mov_b32 %s, 0" % v(S[1] + 8 + i))
    e("v_mov_b32 %s, 0xdddddddd" % v(IDX))
    e("v_mov_b32 %s, 0" % v(PF + 6))
    e("v_mov_b32 %s, %s" % (v(AD), v(vL16)))
    voff_128(VO)
    voff_192(VO + 1)
    e("s_mov_b32 %s, 1" % ISS)
    a1 = newlab("a1")
    e("s_cmp_lt_u32 %s, 4" % sW)
    e("s_cbranch_scc1 %s" % a1)
    cm("waves 4-7 fetch Q and this die's K/V, and later the other dies' K/V")
    e("v_and_b32 %s, 15, v0" % v(vPO))
    e("v_lshlrev_b32 %s, 3, %s" % (v(vPO), v(vPO)))
    e("s_lshr_b32 %s, %s, 2" % (T[1], sHEAD))
    e("s_lshl_b32 %s, %s, 1" % (T[1], T[1]))
    addr(GF, None, GFL, [(sL, GFL_L), (T[1], 65536), (sXCD, 128)])
    slot(T[0], FQ, [(T[1], 8)])
    addr(T[1], sLB, QF, [(sHEAD, 1024), (sHW, 2 * HSTR)])
    addr(KVG, None, KVF, [(sL, KVF_L), (sHEAD, 131072), (sHW, 4096)])
    addr(T[8], sLB, KVL, [(sHEAD, 2048), (sHW, 2 * HSTR)])
    addr(T[7], None, QL, [(sHW, 2048)])
    e("s_lshl_b32 %s, %s, 12" % (LP, sHW))
    e("s_add_u32 %s, %s, 1" % (CH, sXCD))
    e("s_mov_b32 %s, 0" % ISS)
    cm("last barrier of the projection: its weight tile in LDS is dead from here on")
    e("s_barrier")
    poll(T[0])
    for b in range(2):
        e("s_add_u32 m0, %s, %d" % (LP, 2048 * b))
        e("v_lshlrev_b32 %s, 10, v0" % v(vPO))
        for i in range(2):
            e("buffer_load_dwordx4 %s, %s, %s offen offset:%d sc1 lds" % (v(vL16), sWS, T[8], 1024 * i))
        e("s_add_u32 m0, %s, %d" % (T[7], 1024 * b))
        e("s_add_u32 %s, %s, %d" % (T[8], T[8], HSTR))
        e("buffer_load_dwordx4 %s, %s, %s offen sc1 lds" % (v(vL16), sWS, T[1]))
        e("s_add_u32 %s, %s, %d" % (T[1], T[1], HSTR))

    def gflag_load():
        e("buffer_load_dwordx2 %s, %s, %s, %s offen sc1" % (v(vPD, 2), v(vPO), sWS, GF))
        e("buffer_load_dwordx2 %s, %s, %s, %s offen sc1" % (v(PF + 4, 2), v(PF + 6), sWS, GF))

    def kv_issue(n=4):
        e("s_and_b32 %s, %s, 7" % (CH, CH))
        e("s_lshl_b32 %s, %s, 14" % (T[9], CH))
        e("s_add_u32 %s, %s, 16384" % (LP, LP))
        e("s_add_u32 %s, %s, %s" % (T[9], T[9], KVG))
        e("s_mov_b32 m0, %s" % LP)
        e("s_add_u32 %s, %s, 1" % (CH, CH))
        for i in range(n):
            e("buffer_load_dwordx4 %s, %s, %s offen offset:%d sc1%s lds" % (v(vL16), sWS, T[9], 1024 * i, " nt" if OPT("kvnt", 1) else ""))

    def kv_issue_helpers():
        sk, cw = newlab("kvs"), newlab("kvc")
        e("s_cmp_lt_u32 %s, 4" % sW)
        e("s_cbranch_scc1 %s" % cw)
        kv_issue()
        lab(sk)
        ft = newlab("ft")
        wp = newlab("wp")
        TAIL.extend([wp + ":", "    s_cmp_lg_u32 %s, %d" % (sIT, OPT("woit", 3)), "    s_cbranch_scc1 %s" % sk]
                    + ["    " + x for x in capture(lambda: (srd("s[64:67]", 16, 512 * 1024), addr(T[1], None, 0, [(sJ, 128 * 128), (sW, 32 * 128)])))]
                    + (["    " + x for x in capture(lambda: (
                        e("v_lshrrev_b32 %s, 3, v0" % v(PF + 3)), e("v_mul_u32_u24 %s, %d, %s" % (v(PF + 3), XSTR - 1024, v(PF + 3))),
                        e("v_add_u32 %s, %s, %s" % (v(PF + 3), v(PF + 3), v(PF))),
                        addr(T[0], sLB, OF, [(sW, 2 * XSTR), (sHEAD, 1024)]), e("s_mov_b64 exec, 0xffff"),
                        e("buffer_load_dword %s, %s, %s, %s offen sc1" % (v(PF + 2), v(PF + 3), sWS, T[0])), e("s_mov_b64 exec, -1")))])
                    + ["    s_mov_b32 exec_hi, 0", "    buffer_load_dword %s, %s, s[64:67], %s offen" % (v(PF + 2), v(PF), T[1]),
                       "    s_mov_b64 exec, -1", "    s_branch %s" % sk])
        TAIL.extend([ft + ":", "    s_cmp_lg_u32 %s, %s" % (sIT, T[8]), "    s_cbranch_scc1 %s" % wp,
                     "    buffer_load_dword %s, %s, s[64:67], %s offen" % (v(PF + 2), v(PF), T[1]), "    s_branch %s" % sk])
        TAIL.extend([cw + ":", "    s_cmp_lt_u32 %s, 4" % sIT, "    s_cbranch_scc1 %s" % ft, "    s_mov_b32 exec_hi, 0",
                     "    buffer_load_dword %s, %s, %s, %s offen" % (v(PF + 2), v(PF + 1), sTMP, T[7]),
                     "    s_mov_b64 exec, -1", "    s_add_u32 %s, %s, %d" % (T[7], T[7], 16 * 2752),
                     "    s_branch %s" % sk])
    e("v_add_u32 %s, 0x10000, %s" % (v(PF + 6), v(vPO)))
    fine("k")
    e("s_waitcnt vmcnt(0)")
    fine("k")
    gflag_load()
    lab(a1)
    addr(T[0], None, QL, [(sW, 1024)])
    e("v_add_u32 v16, %s, %s" % (T[0], v(vL16)))
    e("s_barrier")
    stamp()

    def rdk(t):
        e("ds_read_b128 %s, %s offset:%d" % (v(KB[t & 1], 4), v(AD), t * 2048))

    def rdv(t):
        e("s_mov_b64 exec, %s" % sMV)
        e("ds_read_b128 %s, %s offset:%d" % (v(VB[t & 1], 4), v(AD), t * 2048 + 1024))
        e("ds_read_b128 %s, %s offset:%d" % (v(VB[t & 1] + 4, 4), v(AD), t * 2048 + 1280))
        e("s_mov_b64 exec, -1")

    def smf(vb, p):
        e("v_smfmac_f32_32x32x32_bf16 %s, %s, %s, %s" % (v(O, 16), v(vb, 4), v(p, 8), v(IDX)))

    def ex(cur, a, b):
        for i in range(a, b):
            e("v_exp_f32 %s, %s" % (v(S[cur] + i), v(S[cur] + i)))

    def tile(t, extra=None):
        cur, nxt = t & 1, (t + 1) & 1
        ex(cur, 0, 2)
        smf(VB[nxt] + 4, S[nxt] + 8)
        rdv(t + 1)
        ex(cur, 2, 6)
        e("s_waitcnt lgkmcnt(2)")
        mfma(S[nxt], KB[nxt], Q, "0")
        rdk(t + 2)
        if extra:
            extra()
        ex(cur, 6, 12)
        smf(VB[cur], S[cur])
        ex(cur, 12, 16)
    e("ds_read_b128 %s, v16" % v(Q, 4))
    rdk(0)
    rdv(0)
    rdk(1)
    e("s_waitcnt lgkmcnt(3)")
    mfma(S[0], KB[0], Q, "0")
    e("s_mov_b32 %s, 0" % sIT)
    e("s_mov_b32 %s, %d" % (sCNT, POLL_LIMIT))
    e("s_nop 7")
    cm("keys of this die first; the other dies' K/V are requested as soon as their flags arrive")
    loc, go, retry, issue, chk3 = (newlab(x) for x in ("loc", "go", "retry", "issue", "chk3"))
    lab(loc)
    e("s_cmp_eq_u32 %s, 0" % sIT)
    e("s_cbranch_scc1 %s" % go)
    e("s_cmp_lg_u32 %s, 0" % ISS)
    e("s_cbranch_scc1 %s" % chk3)
    lab(retry)
    e("s_waitcnt vmcnt(0)")
    e("v_cmp_eq_u64 %s, %s, %s" % (sM0, v(PF + 4, 2), v(vFV, 2)))
    e("v_cmp_eq_u64 vcc, %s, %s" % (v(vPD, 2), v(vFV, 2)))
    e("s_nop 1")
    e("s_and_b64 vcc, vcc, %s" % sM0)
    e("s_cmp_eq_u64 vcc, -1")
    e("s_cbranch_scc1 %s" % issue)
    gflag_load()
    e("s_cmp_lt_u32 %s, 3" % sIT)
    e("s_cbranch_scc1 %s" % go)
    e("s_sub_u32 %s, %s, 1" % (sCNT, sCNT))
    e("s_cbranch_scc0 %s" % retry)
    e("s_endpgm")
    lab(issue)
    fine("k")
    kv_issue()
    kv_issue()
    e("s_mov_b32 %s, 1" % ISS)
    lab(chk3)
    e("s_cmp_lt_u32 %s, 3" % sIT)
    e("s_cbranch_scc1 %s" % go)
    fine("k")
    e("s_waitcnt vmcnt(4)")
    fine("k")
    e("s_barrier")
    fine("k")
    lab(go)
    tile(0)
    tile(1)
    e("v_add_u32 %s, 4096, %s" % (v(AD), v(AD)))
    e("s_add_u32 %s, %s, 1" % (sIT, sIT))
    e("s_cmp_lt_u32 %s, 4" % sIT)
    e("s_cbranch_scc1 %s" % loc)
    fine("a")
    cm("first layer pair, waves 1-3: first touch of Wo / W1 / W2 (one line per lane, spread over all workgroups)")
    e("s_mov_b32 s66, %d" % (1376 * 1024))
    e("s_mov_b32 %s, %d" % (T[1], 43 * 128))
    e("s_cmp_eq_u32 %s, 2" % sW)
    e("s_cselect_b64 s[64:65], s[20:21], s[24:25]")
    e("s_cmp_eq_u32 %s, 1" % sW)
    e("s_cselect_b64 s[64:65], s[16:17], s[64:65]")
    e("s_cselect_b32 s66, %d, s66" % (512 * 1024))
    e("s_cselect_b32 %s, %d, %s" % (T[1], 16 * 128, T[1]))
    e("s_and_b32 s65, s65, 0xffff")
    e("s_mov_b32 s67, 0x20000")
    e("s_mul_i32 %s, %s, s2" % (T[1], T[1]))
    e("v_lshlrev_b32 %s, 7, v0" % v(PF))
    e("s_cmp_eq_u32 %s, 0" % sL)
    e("s_cselect_b32 %s, %d, 99" % (T[8], OPT("ftit", 2)))
    e("s_cmp_eq_u32 %s, 0" % sW)
    e("s_cselect_b32 %s, 99, %s" % (T[8], T[8]))
    cm("lines of the W1 rows that are loaded after attention (128-351, 480-511): half per workgroup of a pair")
    srd(sTMP, 20, 512 * 2752)
    e("s_lshr_b32 %s, %s, 4" % (T[0], sJ))
    addr(T[7], None, 128, [(T[0], 128), (sHW, 32)])
    e("s_cmp_eq_u32 %s, 352" % T[7])
    e("s_cselect_b32 %s, 480, %s" % (T[7], T[7]))
    e("s_mul_i32 %s, %s, 2752" % (T[7], T[7]))
    e("s_mul_i32 %s, %s, 192" % (T[0], sC))
    e("s_add_u32 %s, %s, %s" % (T[7], T[7], T[0]))
    e("v_lshrrev_b32 %s, 1, v0" % v(PF + 1))
    e("v_mul_u32_u24 %s, 2752, %s" % (v(PF + 1), v(PF + 1)))
    e("v_and_b32 %s, 1, v0" % v(PF + 2))
    e("v_lshl_add_u32 %s, %s, 7, %s" % (v(PF + 1), v(PF + 2), v(PF + 1)))
    e("s_mov_b32 %s, 1" % sIT)
    loop = newlab("att")
    L.append(".p2align 6")
    lab(loop)
    for t in range(8):
        if t % 2 == 0:
            e("s_setprio %d" % (3 - t // 2))
        if t == 6:
            e("s_waitcnt vmcnt(%d)" % 4)
            e("s_barrier")
        tile(t, kv_issue_helpers if t == 1 else None)
    e("v_add_u32 %s, 16384, %s" % (v(AD), v(AD)))
    e("s_add_u32 %s, %s, 1" % (sIT, sIT))
    e("s_cmp_lt_u32 %s, 6" % sIT)
    e("s_cbranch_scc1 %s" % loop)
    fine("a")
    cm("last two chunks: stream Wo and part of W1 into the dead K/V space, one piece per tile")
    srd(sTMP, 16, 512 * 1024)
    addr(T[0], None, 0, [(sW, 65536), (sNB, 128)])
    e("s_lshl_b32 %s, %s, 13" % (T[1], sW))

    srd("s[64:67]", 24, 1376 * 1024)
    addr(T[2], None, 0, [(sJ, 344 * 128), (sW, 43 * 128)])

    def w2_lines(trip):
        cm("one line per lane: pull this workgroup's share of W2 into the die's L2")
        e("s_mov_b64 exec, 0x3fffff")
        e("buffer_load_dword %s, %s, s[64:67], %s offen" % (v(PF + 2), v(PF), T[2]))
        e("s_mov_b64 exec, -1")
        e("s_add_u32 %s, %s, %d" % (T[2], T[2], 22 * 128))

    def wo_piece(t):
        e("s_add_u32 m0, %s, %d" % (T[1], 1024 * t))
        e("s_nop 0")
        dma1(VO, T[0], 1)
        e("s_add_u32 %s, %s, 8192" % (T[0], T[0]))
        if t in {0: (2, 5), 2: (6, 7), 3: (7,)}.get(OPT("w2t", 1), ()):
            w2_lines(0)

    def w1_piece(t):
        if t in {1: (1, 3), 3: (0,), 4: (0, 1)}.get(OPT("w2t", 1), ()):
            w2_lines(1)
        for u in ([2 * t, 2 * t + 1] if t < 2 else [t + 2] if t < 4 else []):
            e("s_add_u32 m0, %s, %d" % (T[1], (u // 3) * 22 * 3072 + (u % 3) * 1024))
            e("s_nop 0")
            dma1(VO + 1 + u % 3, T[0], 8)
            if u == 2:
                e("s_add_u32 %s, %s, %d" % (T[0], T[0], 22 * 16 * 2752))
    for trip in range(2):
        for t in range(8):
            if t % 2 == 0:
                e("s_setprio %d" % (3 - t // 2))
            if t == 6 and trip == 0:
                e("s_waitcnt vmcnt(%d)" % (6 if OPT("w2t", 1) else 8))
                e("s_barrier")
            tile(t + 8 * trip, (lambda t=t: wo_piece(t)) if trip == 0 else (lambda t=t: w1_piece(t)))
        if trip == 0:
            addr(T[4], sLB, OF, [(sW, XSTR), (sHEAD, 1024)])
            slot(T[5], FA, [(sW, 32), (sHEAD, 1)])
            srd(sTMP, 20, 512 * 2752)
            addr(T[0], None, 0, [(sW, 16 * 2752), (sC, 192)])
            addr(T[1], None, 65536, [(sW, 3072)])
    e("s_nop 1")
    smf(VB[1] + 4, S[1] + 8)
    e("s_setprio 0")
    e("s_mov_b32 %s, %s" % (T[6], f32(2.0 ** (64 if FORCE_SLOW else -64))))
    e("s_mov_b32 %s, %s" % (T[7], f32(2.0 ** 64)))
    e("s_waitcnt lgkmcnt(0)")
    e("s_nop 7")
    stamp()
    cm("Softmax guard. The loops above used 0 as a stand-in for the row max. That is exact while the row sum")
    cm("stays in [2^-64, 2^64] and the accumulators are finite; otherwise redo this tile with the true max.")
    fin, slow = newlab("att_fin"), newlab("att_slow")
    e("v_cmp_le_f32 %s, %s, %s" % (sM0, T[6], v(O + 8)))
    e("v_cmp_ge_f32 %s, %s, %s" % (sM1, T[7], v(O + 8)))
    e("v_pk_mul_f32 v[18:19], %s, 0 op_sel_hi:[1,0]" % v(O, 2))
    for p in range(1, 4):
        e("v_pk_fma_f32 v[18:19], %s, 0, v[18:19] op_sel_hi:[1,0,1]" % v(O + 2 * p, 2))
    e("s_and_b64 %s, %s, %s" % (sM0, sM0, sM1))
    e("v_cmp_eq_f32 vcc, v18, v19")
    e("s_nop 0")
    e("s_and_b64 %s, %s, vcc" % (sM0, sM0))
    e("s_cmp_eq_u64 %s, -1" % sM0)
    e("s_cbranch_scc0 %s" % slow)
    lab(fin)
    e("v_rcp_f32 v16, %s" % v(O + 8))
    e("s_nop 0")
    for p in range(4):
        e("v_pk_mul_f32 %s, %s, v[16:17] op_sel_hi:[1,0]" % (v(O + 2 * p, 2), v(O + 2 * p, 2)))
    for p in range(4):
        e("v_cvt_pk_bf16_f32 %s, %s, %s" % (v(20 + p), v(O + 2 * p), v(O + 2 * p + 1)))
    lstores(["buffer_store_dwordx4 v[20:23], %s, %s, %s offen" % (v(vL16), sWS, T[4])])
    flag(T[5], 0, local=True)
    e("s_waitcnt vmcnt(1)")
    e("s_barrier")
    keep = L[:]
    del L[:]
    lab(slow)
    l1, l2 = newlab("slow1"), newlab("slow2")
    addr(T[2], None, KVF, [(sL, KVF_L), (sHEAD, 131072)])
    e("v_mov_b32 %s, 0xff800000" % v(CN))
    e("s_mov_b32 %s, 0" % sIT)
    lab(l1)
    e("buffer_load_dwordx4 %s, %s, %s, %s offen sc1" % (v(KB[0], 4), v(vL16), sWS, T[2]))
    e("s_waitcnt vmcnt(0)")
    mfma(S[0], KB[0], Q, "0")
    e("s_nop 15")
    for i in range(8):
        e("v_max3_f32 %s, %s, %s, %s" % (v(CN), v(S[0] + 2 * i), v(S[0] + 2 * i + 1), v(CN)))
    e("s_add_u32 %s, %s, 2048" % (T[2], T[2]))
    e("s_add_u32 %s, %s, 1" % (sIT, sIT))
    e("s_cmp_lt_u32 %s, 64" % sIT)
    e("s_cbranch_scc1 %s" % l1)
    e("v_mov_b32 %s, %s" % (v(CN + 1), v(CN)))
    e("s_nop 1")
    e("v_permlane32_swap_b32 %s, %s" % (v(CN), v(CN + 1)))
    e("s_nop 1")
    e("v_max_f32 %s, %s, %s" % (v(CN), v(CN), v(CN + 1)))
    e("v_sub_f32 %s, 0, %s" % (v(CN), v(CN)))
    for i in range(1, 16):
        e("v_mov_b32 %s, %s" % (v(CN + i), v(CN)))
    for i in range(16):
        e("v_mov_b32 %s, 0" % v(O + i))
    addr(T[2], None, KVF, [(sL, KVF_L), (sHEAD, 131072)])
    e("s_mov_b32 %s, 0" % sIT)
    lab(l2)
    e("buffer_load_dwordx4 %s, %s, %s, %s offen sc1" % (v(KB[0], 4), v(vL16), sWS, T[2]))
    e("s_mov_b64 exec, %s" % sMV)
    e("buffer_load_dwordx4 %s, %s, %s, %s offen offset:1024 sc1" % (v(VB[0], 4), v(vL16), sWS, T[2]))
    e("buffer_load_dwordx4 %s, %s, %s, %s offen offset:1280 sc1" % (v(VB[0] + 4, 4), v(vL16), sWS, T[2]))
    e("s_mov_b64 exec, -1")
    e("s_waitcnt vmcnt(0)")
    mfma(S[0], KB[0], Q, CN)
    e("s_nop 15")
    for i in range(16):
        e("v_exp_f32 %s, %s" % (v(S[0] + i), v(S[0] + i)))
    e("s_nop 1")
    smf(VB[0], S[0])
    smf(VB[0] + 4, S[0] + 8)
    e("s_nop 15")
    e("s_add_u32 %s, %s, 2048" % (T[2], T[2]))
    e("s_add_u32 %s, %s, 1" % (sIT, sIT))
    e("s_cmp_lt_u32 %s, 64" % sIT)
    e("s_cbranch_scc1 %s" % l2)
    e("s_branch %s" % fin)
    TAIL.extend(L)
    L[:] = keep
    stamp()


def n512(kind):
    wo = kind == "wo"
    ph = "o" if wo else "g"
    cm("================ %s" % ("output projection + residual" if wo else "MLP down projection + residual"))
    NS, J = (16, 16) if wo else (43, 39)
    AK, AS = vACC, vACC + 16
    hl, done = newlab("n_h"), newlab("n_done")
    e("s_cmp_ge_u32 %s, 4" % sW)
    e("s_cbranch_scc1 %s" % hl)
    if not wo:
        addr(T[0], None, CONST + 384, [(sKH, 512)])
        e("v_add_u32 %s, %s, %s" % (v(vPO), T[0], v(vH16)))
        for i in range(4):
            e("ds_read_b128 %s, %s offset:%d" % (v(AS + 4 * i, 4), v(vPO), 32 * i))
    unpack(AK, vRES, 8)
    tr_rows(vW0, 128)
    e("v_bfe_u32 %s, v0, 3, 1" % v(vPD))
    e("v_xor_b32 %s, %s, %s" % (v(vPD), sKH, v(vPD)))
    e("v_lshl_or_b32 %s, %s, 6, %s" % (v(vW0), v(vPD), v(vW0)))
    e("s_mul_i32 %s, %s, %d" % (T[0], sKH, J * 2048))
    e("v_add_u32 %s, %s, %s" % (v(vW0), T[0], v(vW0)))
    e("v_xor_b32 %s, 64, %s" % (v(vW1), v(vW0)))
    if not wo:
        e("v_add_u32 %s, 0x10000, %s" % (v(vW2), v(vW0)))
        e("v_add_u32 %s, 0x10000, %s" % (v(vW3), v(vW1)))
    if wo:
        e("v_and_b32 %s, 15, v0" % v(vPO))
        slot(T[0], FA, [(sTBN, 32), (sKH, 16)])
        addr(T[1], sLB, OF, [(sTBN, XSTR), (sKH, 16384)])
    else:
        e("v_and_b32 %s, 7, v0" % v(vPO))
        slot(T[0], FH, [(sTBN, 16), (sKH, 7)])
        addr(T[1], sLB, HF, [(sTBN, HSTR), (sKH, 43 * 1024)])
    e("v_lshlrev_b32 %s, 3, %s" % (v(vPO), v(vPO)))
    if not wo:
        e("s_waitcnt lgkmcnt(0)")
        for p in range(8):
            e("v_pk_add_f32 %s, %s, %s" % (v(AK + 2 * p, 2), v(AK + 2 * p, 2), v(AS + 2 * p, 2)))
        e("s_barrier")

    def rd(j, i):
        jj = j % J
        base, off = ((vW0, vW1)[i], jj * 2048) if jj < 32 else ((vW2, vW3)[i], (jj - 32) * 2048)
        d = vWB + (j % 3) * 8 + 4 * i
        e("ds_read_b64_tr_b16 %s, %s offset:%d" % (v(d, 2), v(base), off))
        e("ds_read_b64_tr_b16 %s, %s offset:%d" % (v(d + 2, 2), v(base), off + 1024))
    for j in range(2):
        for i in range(2):
            rd(j, i)
    poll(T[0])
    stamp()
    areg = lambda j: vA + 4 * (j % 32)
    load_frags(T[1], 0, DEPTH, areg)
    fine(ph)

    def late_addresses():
        e("s_and_b32 %s, %s, 1" % (T[2], sW))
        if wo:
            addr(T[0], None, 0, [(T[2], 4096), (sKH, 32768)])
            e("s_xor_b32 %s, %s, 32768" % (T[3], T[0]))
            publish_addr(X1F, ST1, 0, FO)
        else:
            addr(T[0], None, 98304, [(T[2], 4096), (sKH, 8192)])
            e("s_xor_b32 %s, %s, 8192" % (T[3], T[0]))
            publish_addr(XF, ST, LFL_L * 8, FX)
        e("v_add_u32 %s, %s, %s" % (v(vPO), T[0], v(vL16)))
        e("v_add_u32 %s, %s, %s" % (v(vPD), T[3], v(vL16)))
    sh = capture(late_addresses)
    for j in range(NS):
        issued = min(NS, DEPTH + j)
        if not wo and j == J - 2:
            e("s_barrier")
        if j < NS - 1:
            last2 = j == NS - 2
            e("s_waitcnt vmcnt(%d) lgkmcnt(%d)" % (0 if last2 else issued - j - 1, 0 if last2 else 4))
        if j in ((0, 4, 8, 15) if wo else (0, 11, 22, 42)):
            fine(ph)
        seq = [(j, 0), (j, 1)] if j < NS - 2 else [(j, 1), (j + 1, 1)] if j == NS - 2 else [(j - 1, 0), (j, 0)]
        for m, (jj, i) in enumerate(seq):
            acc = AK + 16 * i
            mfma(acc, vWB + (jj % 3) * 8 + 4 * i, areg(jj), "0" if (jj == 0 and i == 1) else acc)
            if j + 2 < NS:
                rd(j + 2, i)
            if m == 0 and DEPTH + j < NS:
                load_frags(T[1], DEPTH + j, 1, areg, False)
            if j >= 2:
                g = (j - 2) * 2 + m
                for x in sh[2 * g:2 * g + 2]:
                    e(x)
        if j == (8 if wo else NS - J - 1):
            e("s_barrier")
    assert len(sh) <= 4 * (NS - 2)
    e("s_nop 9")
    for i in range(4):
        e("ds_write_b128 %s, %s offset:%d" % (v(vPO), v(AS + 4 * i, 4), 1024 * i))
    e("s_waitcnt lgkmcnt(0)")
    e("s_barrier")
    stamp()
    for i in range(4):
        e("ds_read_b128 %s, %s offset:%d" % (v(AS + 4 * i, 4), v(vPD), 1024 * i))
    for i in range(4):
        e("s_waitcnt lgkmcnt(%d)" % (3 - i))
        for p in (2 * i, 2 * i + 1):
            e("v_pk_add_f32 %s, %s, %s" % (v(AK + 2 * p, 2), v(AK + 2 * p, 2), v(AS + 2 * p, 2)))
    for p in range(8):
        e("v_cvt_pk_bf16_f32 %s, %s, %s" % (v(vRES + p), v(AK + 2 * p), v(AK + 2 * p + 1)))
    if wo:
        publish_x(AK, 20)
    else:
        last = newlab("last")
        e("s_cmp_lg_u32 %s, 0" % sL)
        e("s_cbranch_scc1 %s" % last)
        publish_x(AK, 20)
        e("s_branch %s" % done)
        lab(last)
        srd(sTMP, 28, 2048 * 1024)
        e("v_and_b32 v16, 31, v0")
        e("v_lshlrev_b32 v16, 10, v16")
        e("v_add_u32 v16, v16, %s" % v(vH16))
        addr(T[0], None, 0, [(sXCD, 262144), (sTBN, 32768), (sNT, 64)])
        for g in range(2):
            e("v_permlane32_swap_b32 %s, %s" % (v(vRES + 4 * g), v(vRES + 4 * g + 2)))
            e("v_permlane32_swap_b32 %s, %s" % (v(vRES + 4 * g + 1), v(vRES + 4 * g + 3)))
        for g in range(2):
            e("buffer_store_dwordx4 %s, v16, %s, %s offen offset:%d%s" % (v(vRES + 4 * g, 4), sTMP, T[0], 32 * g, ("", " sc1", " nt", "", " sc0 sc1")[OPT("ost", 0)]))
    e("s_branch %s" % done)
    lab(hl)
    if wo:
        voff_192(44)
        e("s_lshl_b32 %s, %s, 2" % (T[3], sHW))
        e("s_min_u32 %s, %s, 10" % (T[3], T[3]))
        addr(T[0], None, 8 * 16 * 2752, [(T[3], 16 * 2752), (sC, 192)])
        addr(T[1], None, 65536 + 8 * 3072, [(T[3], 3072)])
        dma_w1(2)
        e("s_mov_b32 %s, %s" % (T[3], T[0]))
        e("s_mov_b32 %s, %s" % (T[4], T[1]))
        w0, w1, w2 = newlab("wcs"), newlab("wcs"), newlab("wcs")
        e("s_cmp_lg_u32 %s, 0" % sL)
        e("s_cbranch_scc1 %s" % w0)
        tr_rows(43, 192)
        colsum_begin()
        addr(T[0], None, 65536, [(sHW, 2 * 3072)])
        colsum_w1()
        addr(T[0], None, 65536 + 22 * 3072, [(sHW, 2 * 3072)])
        colsum_w1()
        lab(w0)
        e("s_mov_b32 %s, %s" % (T[0], T[3]))
        e("s_mov_b32 %s, %s" % (T[1], T[4]))
        e("s_barrier")
        dma_w1(2)
        e("s_barrier")
        e("s_cmp_lg_u32 %s, 3" % sHW)
        e("s_cbranch_scc1 %s" % w1)
        addr(T[0], None, 30 * 16 * 2752, [(sC, 192)])
        e("s_mov_b32 %s, %d" % (T[1], 58 * 1024))
        dma_w1(2)
        lab(w1)
        e("s_cmp_lg_u32 %s, 0" % sL)
        e("s_cbranch_scc1 %s" % done)
        cm("own late k-steps: 8-11 | 12-15 | 16-19 | 20-21 and 30-31")
        e("s_and_b32 %s, %s, 1" % (T[4], sHW))
        addr(T[0], None, 65536 + 8 * 3072, [(sHW, 4 * 3072)])
        e("s_add_u32 %s, %s, %d" % (T[3], T[0], 2 * 3072))
        e("s_cmp_eq_u32 %s, 3" % sHW)
        e("s_cselect_b32 %s, %d, %s" % (T[3], 58 * 1024, T[3]))
        e("s_waitcnt vmcnt(0)")
        colsum_w1()
        e("s_mov_b32 %s, %s" % (T[0], T[3]))
        colsum_w1()
        colsum_partial()
        e("v_lshlrev_b32 v47, 16, v224")
        addr(T[0], None, B1_L, [(sHW, 128)])
        e("v_add_u32 v42, %s, v41" % T[0])
        e("ds_write_b32 v42, v47")
        e("v_lshlrev_b32 v49, 16, v225")
        addr(T[0], None, CONST + 384, [(T[4], 512)])
        e("v_add_u32 v42, %s, v41" % T[0])
        e("ds_write_b32 v42, v49")
    else:
        e("s_waitcnt vmcnt(0)")
        fine("w")
        e("s_barrier")
        fine("w")
        e("s_lshr_b32 %s, %s, 1" % (T[3], sHW))
        e("s_and_b32 %s, %s, 1" % (T[4], sHW))
        addr(T[0], None, 78 * 8192, [(T[3], 86 * 8192), (T[4], 4 * 8192), (sNB, 128)])
        addr(T[1], None, 0, [(T[3], 78 * 1024), (T[4], 4096)])
        e("s_barrier")
        for k in range(4):
            e("s_add_u32 m0, %s, %d" % (T[1], 1024 * k))
            e("s_nop 0")
            dma1(40, T[0], 4)
            e("s_add_u32 %s, %s, 8192" % (T[0], T[0]))
        e("s_waitcnt vmcnt(0)")
        e("s_barrier")
        if OPT("ost", 0) == 3:
            no = newlab("no")
            e("s_cmp_eq_u32 %s, 0" % sL)
            e("s_cbranch_scc1 %s" % no)
            e("s_cmp_lg_u32 %s, 0" % sHW)
            e("s_cbranch_scc1 %s" % no)
            srd(sTMP, 28, 2048 * 1024)
            e("v_lshlrev_b32 v16, 10, v0")
            addr(T[0], None, 0, [(sXCD, 262144), (sTBN, 32768), (sNB, 128)])
            e("buffer_load_dword v17, v16, %s, %s offen" % (sTMP, T[0]))
            lab(no)
        stash_addr()
        e("s_barrier")
        e("s_cmp_lg_u32 %s, 0" % sL)
        e("s_cbranch_scc1 %s" % done)
        for k in range(24):
            e("ds_write_b128 v42, %s offset:%d" % (v(vSTASH + 4 * k, 4), 1024 * k))
    lab(done)
    stamp()


def ffn1():
    cm("================ MLP up projection + GELU")
    hl, done = newlab("f1_h"), newlab("f1_done")
    e("s_cmp_ge_u32 %s, 4" % sW)
    e("s_cbranch_scc1 %s" % hl)
    idle = newlab("f1_idle")
    e("s_cmp_eq_u32 %s, 15" % sC)
    e("s_cbranch_scc1 %s" % idle)
    TAIL.extend([idle + ":"] + ["    s_barrier"] * 3 + ["    s_branch " + done])

    e("v_and_b32 %s, 15, v0" % v(vPO))
    e("v_lshlrev_b32 %s, 3, %s" % (v(vPO), v(vPO)))
    slot(T[0], FO, [(sTBW, 16)])
    addr(T[1], sLB, X1F, [(sTBW, XSTR)])
    addr(T[2], sLB, ST1, [(sTBW, 4096)])
    e("v_add_u32 %s, %d, %s" % (v(vCA), CONST, v(vH16)))
    tr_rows(vW2, 192)
    e("v_add_u32 %s, 0x10000, %s" % (v(vW0), v(vW2)))
    e("v_add_u32 %s, %d, %s" % (v(vW1), 21 * 3072, v(vW0)))
    lds = Lds()

    def rd(ks, i):
        d = vWB + (ks % 3) * 12 + 4 * i
        base, off = (vW0, ks * 3072) if ks < 21 else (vW1, (ks - 21) * 3072) if ks < 30 else (vW2, 58 * 1024 + (ks - 30) * 3072)
        lds.op(("w", ks), "ds_read_b64_tr_b16 %s, %s offset:%d" % (v(d, 2), v(base), off + 64 * i))
        lds.op(("w", ks), "ds_read_b64_tr_b16 %s, %s offset:%d" % (v(d + 2, 2), v(base), off + 64 * i + 1536))

    def wait(name):
        n = lds.need(name)
        if n is not None:
            e("s_waitcnt lgkmcnt(%d)" % n)
    for ks in range(2):
        for i in range(3):
            rd(ks, i)
    poll(T[0])
    stamp()

    def item(n):
        if n < 32:
            load_frags(T[1], n, 1, lambda j: vA + 4 * j, n % 4 == 0)
        else:
            e("buffer_load_dwordx4 %s, %s, %s, %s offen offset:%d sc1" % (v(vSTS + 4 * (n - 32), 4), v(vL16), sWS, T[2], 1024 * (n - 32)))
    sched = [[ks + DEPTH] if ks + DEPTH < 32 else [] for ks in range(32)]
    for k in range(4):
        sched[3 + 2 * k].append(32 + k)
    order = list(range(DEPTH))
    for n in range(DEPTH):
        item(n)
    fine("f")
    c0 = -2.0 * 1.4426950408889634 * 0.7978845608028654
    GC = vSTS + 4

    def early():
        addr(T[4], sLB, HF, [(sTBW, HSTR), (sC, 6144)])
        e("s_add_u32 %s, %s, 4096" % (T[5], T[4]))
        slot(T[6], FH, [(sTBW, 16), (sC, 1)])
    mid = stats_code(True) + ["v_mul_f32 %s, %s, %s" % (v(vMU), v(vMU), v(vR)), "v_mov_b32 %s, %s" % (v(GC), f32(c0)),
                              "v_mov_b32 %s, %s" % (v(GC + 1), f32(c0 * 0.044715)), "v_mov_b32 %s, 1.0" % v(GC + 2)]
    sh = [(10, lambda x=x: e(x)) for x in capture(early)] + [(17, lambda x=x: e(x)) for x in mid]
    cm("bias' = b1 - mean*rstd*colsum is formed under the last MFMAs, in dead activation registers")
    rdc, fmc = [], []
    for t in range(3):
        rdc.append([(22 if t < 2 else 24, lambda t=t, k=k: lds.op(("c", t), "ds_read_b128 %s, %s offset:%d" % (
            v(16 + 32 * t + 4 * k, 4), v(vCA), 512 + 512 * (k // 4) + t * 128 + 32 * (k % 4)))) for k in range(8)])
        fmc.append([(22, lambda t=t: wait(("c", t)))] + [(22, lambda t=t, r=r: e("v_fma_f32 %s, -%s, %s, %s" % (
            v(32 + 32 * t + r), v(vMU), v(16 + 32 * t + r), v(32 + 32 * t + r)))) for r in range(16)])
    mix = lambda a, b: [x for k in range(max(len(a), len(b))) for x in a[2 * k:2 * k + 2] + b[k:k + 1]]
    sh += rdc[0] + rdc[1][:4] + mix(fmc[0], rdc[1][4:]) + mix(fmc[1], rdc[2]) + fmc[2]
    pos = 0
    for ks in range(32):
        if ks in (6, 22):
            e("s_barrier")
        newest = max(order.index(n) for n in ([ks, 35] if ks >= 17 else [ks]))
        lg = lds.need(("w", ks))
        e("s_waitcnt vmcnt(%d)%s" % (len(order) - 1 - newest, "" if lg is None else " lgkmcnt(%d)" % lg))
        if ks in FINEKS:
            fine("f")
        for i in range(3):
            mfma(vACC + 16 * i, vWB + (ks % 3) * 12 + 4 * i, vA + 4 * ks, "0" if ks == 0 else vACC + 16 * i)
            if ks + 2 < 32:
                rd(ks + 2, i)
            if i < len(sched[ks]):
                item(sched[ks][i])
                order.append(sched[ks][i])
            for _ in range(3 if ks < 30 else 5):
                if pos < len(sh) and ks >= sh[pos][0]:
                    sh[pos][1]()
                    pos += 1
    for x in sh[pos:]:
        x[1]()
    stamp()
    e("s_nop %d" % max(0, 9 - len(sh[pos:])))
    Z, P = 120, vWB
    for t in range(3):
        acc, b1 = vACC + 16 * t, 32 + 32 * t
        for p in range(8):
            e("v_pk_fma_f32 %s, %s, %s, %s op_sel_hi:[1,0,1]" %
              (v(acc + 2 * p, 2), v(acc + 2 * p, 2), v(vR, 2), v(b1 + 2 * p, 2)))
        for p in range(8):
            e("v_pk_mul_f32 %s, %s, %s" % (v(Z + 2 * p, 2), v(acc + 2 * p, 2), v(acc + 2 * p, 2)))
        for p in range(8):
            e("v_pk_fma_f32 %s, %s, %s, %s op_sel:[0,1,0] op_sel_hi:[1,1,0]" %
              (v(Z + 2 * p, 2), v(Z + 2 * p, 2), v(GC, 2), v(GC, 2)))
        for p in range(8):
            e("v_pk_mul_f32 %s, %s, %s" % (v(Z + 2 * p, 2), v(Z + 2 * p, 2), v(acc + 2 * p, 2)))
        for i in range(16):
            e("v_exp_f32 %s, %s" % (v(Z + i), v(Z + i)))
        for p in range(8):
            e("v_pk_add_f32 %s, %s, %s op_sel_hi:[1,0]" % (v(Z + 2 * p, 2), v(Z + 2 * p, 2), v(GC + 2, 2)))
        for i in range(16):
            e("v_rcp_f32 %s, %s" % (v(Z + i), v(Z + i)))
        for p in range(8):
            e("v_pk_mul_f32 %s, %s, %s" % (v(acc + 2 * p, 2), v(acc + 2 * p, 2), v(Z + 2 * p, 2)))
        for p in range(8):
            e("v_cvt_pk_bf16_f32 %s, %s, %s" % (v(P + 8 * t + p), v(acc + 2 * p), v(acc + 2 * p + 1)))
        lstores(["buffer_store_dwordx4 %s, %s, %s, %s offen offset:%d" %
                 (v(P + 8 * t + 4 * hh, 4), v(vL16), sWS, T[4 + (2 * t + hh) // 4], ((2 * t + hh) % 4) * 1024) for hh in range(2)])
        if t == 0:
            e("s_barrier")
        if t != 1:
            fine("f")
    flag(T[6], 0, local=True)
    e("s_branch %s" % done)
    lab(hl)
    h1 = newlab("fh1")
    voff_128(40)
    srd(sTMP, 24, 1376 * 1024)
    e("s_waitcnt vmcnt(0) lgkmcnt(0)")
    e("s_barrier")
    e("s_cmp_lg_u32 %s, 0" % sL)
    e("s_cbranch_scc1 %s" % h1)
    colsum_combine(CS1_L)
    e("s_waitcnt lgkmcnt(0)")
    lab(h1)
    E0 = OPT("e0", 4)
    if E0:
        dma_w2(0, 0, E0, OPT("e0p", 1) or -1)
    e("s_barrier")
    fine("w")
    dma_w2(86, 78 * 1024, 7, None)
    dma_w2(4 * E0, 4 * E0 * 1024, 14 - E0, None)
    dma_w2(86 + 28, (78 + 28) * 1024, 6, None)
    fine("w")
    e("s_barrier")
    fine("w")
    dma_w2(54, 54 * 1024, 6)
    dma_w2(86 + 50, (78 + 50) * 1024, 7)
    fine("w")
    lab(done)
    stamp()


def epilogue():
    e("s_add_u32 %s, %s, 1" % (sL, sL))
    e("s_add_u32 %s, %s, %d" % (sFB, sFB, LFL_L * 8))
    e("s_cmp_lt_u32 %s, 2" % sL)
    e("s_cbranch_scc1 L_layer")
    if PROFILE:
        e("s_memrealtime s[22:23]")
        e("s_waitcnt lgkmcnt(0)")
        stamp("s23")
        e("s_lshl_b32 %s, s2, 3" % T[0])
        e("s_add_u32 %s, %s, %s" % (T[0], T[0], sW))
        e("s_lshl_b32 %s, %s, 8" % (T[0], T[0]))
        e("s_add_u32 %s, %s, 0x%x" % (T[0], T[0], TSB))
        e("s_mov_b64 exec, 1")
        for i, r in enumerate([68, 18, 19] + list(range(STAMP0, STAMP0 + 30)) + [22, 23, 0, 1]):
            e("v_mov_b32 v16, s%d" % r)
            e("buffer_store_dword v16, off, %s, %s offset:%d" % (sWS, T[0], 4 * i))
        e("s_mov_b64 exec, 0xff")
        e("v_lshlrev_b32 v16, 2, v0")
        e("buffer_store_dword v5, v16, %s, %s offen offset:148" % (sWS, T[0]))
        e("s_mov_b64 exec, -1")
    if "--dbg" in sys.argv:
        sk = newlab("dbg")
        e("s_or_b32 %s, s2, %s" % (T[0], sW))
        e("s_cmp_lg_u32 %s, 0" % T[0])
        e("s_cbranch_scc1 %s" % sk)
        srd(sTMP, 30, 256)
        e("s_mov_b64 exec, 1")
        for i, r in enumerate([19, 72, 73, 74, 75, 76, 77, 80, 83, 86, 89, 90, 91, 95, 98, 101]):
            e("s_sub_u32 %s, s%d, s18" % (T[0], r))
            e("v_mov_b32 v16, %s" % T[0])
            e("buffer_store_dword v16, off, %s, 0 offset:%d" % (sTMP, 4 * i))
        e("s_mov_b64 exec, -1")
        lab(sk)
    if OPT("hold", 0):
        hl = newlab("hold")
        lab(hl)
        e("s_memrealtime s[70:71]")
        e("s_waitcnt lgkmcnt(0)")
        e("s_sub_u32 s70, s70, s68")
        e("s_cmp_lt_u32 s70, %d" % OPT("hold", 0))
        e("s_cbranch_scc1 %s" % hl)
    cm("advance the hand-off tag for the next launch")
    e("s_or_b32 %s, s2, %s" % (T[0], sW))
    e("s_cmp_lg_u32 %s, 0" % T[0])
    e("s_cbranch_scc1 L_end")
    e("s_mov_b64 exec, 1")
    e("buffer_store_dword %s, off, %s, 0" % (v(vFV), sWS))
    lab("L_end")
    e("s_endpgm")
    L.extend(TAIL)


HEADER = open(f"cdna_kernels/{NAME}.s.ref").read().split("; Override launch")[0]


OVERVIEW = """;
; Generated by gen/gen.py (hand-written generator). One persistent launch, one 8-wave workgroup per CU.
; Hand-offs: payload stores, vmcnt wait, then an 8-byte flag {tag, ~tag}; tag = ws[0] + 16 differs per launch.
;   Every workgroup reports the die it runs on. If a die group shares one die its hand-offs use plain stores
"""


def main():
    prologue()
    p0()
    lab("L_layer")
    qkv()
    attention()
    n512("wo")
    ffn1()
    n512("f2")
    epilogue()
    k = NAME + "_kernel"
    out = HEADER
    out += "; @launch grid=(256,1,1) block=(512,1,1) lds=%d\n" % LDS_BYTES
    out += OVERVIEW
    out += '.amdgcn_target "amdgcn-amd-amdhsa--gfx950"\n.text\n.globl %s\n.p2align 8\n.type %s,@function\n%s:\n' % (k, k, k)
    out += "\n".join(L) + "\n"
    out += """.section .rodata,"a"
.p2align 6
.amdhsa_kernel %s
  .amdhsa_next_free_vgpr 256
  .amdhsa_next_free_sgpr 102
  .amdhsa_accum_offset 256
  .amdhsa_group_segment_fixed_size 0
  .amdhsa_kernarg_size 88
  .amdhsa_user_sgpr_count 2
  .amdhsa_user_sgpr_kernarg_segment_ptr 1
  .amdhsa_system_sgpr_workgroup_id_x 1
.end_amdhsa_kernel
""" % k
    open(OUT, "w").write(out)
    import subprocess
    r = subprocess.run([sys.executable, "hazard.py", OUT], capture_output=True, text=True).stdout
    if not r.strip().endswith("violations 0"):
        print(r)


main()
```

```python
import struct
import sys

NAME = "interleave_layers__softmax_full_mha__mixer_channel_mlp__prompt"
PROFILE = "--prof" in sys.argv
CLK = "s_memrealtime" if "--rt" in sys.argv else "s_memtime"
FORCE_SLOW = "--slow" in sys.argv
FORCE_GLOBAL = "--global" in sys.argv
OUT = [a for a in sys.argv[1:] if not a.startswith("--")]
OUT = OUT[0] if OUT else f"cdna_kernels/{NAME}.s"


def OPT(name, default):
    a = [x.split("=")[1] for x in sys.argv if x.startswith("--%s=" % name)]
    return int(a[0]) if a else default


def f32(x):
    return "0x%08x" % struct.unpack("<I", struct.pack("<f", x))[0]


WS_SIZE = 0x10000000
FLG = 0x100000
FI = 0
GFL, GFL_L = 0xA00000, 0x100000
KVF, KVF_L = 0x200000, 0x400000
ARENA, ARENA_X = 0x1000000, 0x200000
XSTR, HSTR = 33 * 1024, 97 * 1024
XF, OF, BLK, ST, LFL = 0, 0x48000, 0x90000, 0x158000, 0x160000
X1F, ST1, HF, QF, KVL = XF, ST, BLK, BLK, BLK + 32768
FX, FQ, FA, FO, FH, LFL_L = 0, 128, 256, 512, 640, 768
TSB = 0x4000000
DEPTH = OPT("depth", 10)
PACE = OPT("pace", 5)
RED = 140 * 1024
CONST = 156 * 1024
CSQ_L, CS1_L, B1_L, STAT_L, PART_L = CONST, CONST + 512, CONST + 1024, CONST + 1536, CONST + 2560
MODE_L = B1_L + 400
LDS_BYTES = 160 * 1024
sWS, sTMP = "s[4:7]", "s[8:11]"
sW, sNONCE, sL, sLB, sFB = "s34", "s35", "s36", "s37", "s38"
sXCD, sJ, sTBW, sC, sTBN, sNB, sKH, sNT, sHEAD, sQB = ("s%d" % i for i in range(39, 49))
sHW = "s49"
T = ["s%d" % i for i in range(50, 60)]
sCNT, sIT = "s60", "s61"
sMV = "s[62:63]"
sM0, sM1 = "s[64:65]", "s[66:67]"
sMODE = "s3"
STAMP0 = 72
vLANE, vL16, vFV, vPO, vT5, vPD = 0, 1, 2, 4, 5, 6
vRES = 8
vA, vACC, vWB, vSTS = 16, 144, 192, 228
vW0, vW1, vMU, vW2, vR, vW3, vRQ, vCA, vTR, vK16, vVOF, vH16 = 244, 245, 246, 247, 248, 249, 250, 251, 252, 253, 254, 255
vSTASH = 128
QL = 128 * 1024
POLL_LIMIT = 1 << 16

L = []
TAIL = []
uid = [0]
nstamp = [0]


def e(s):
    L.append("    " + s)


def lab(n):
    L.append(n + ":")


def cm(s):
    L.append("    ; " + s)


def v(i, n=1):
    return "v%d" % i if n == 1 else "v[%d:%d]" % (i, i + n - 1)


def capture(f):
    n = len(L)
    f()
    out = [x.strip() for x in L[n:]]
    del L[n:]
    return out


def newlab(p):
    uid[0] += 1
    return "L_%s_%d" % (p, uid[0])


def stamp(fixed=None):
    if not PROFILE:
        return
    e(CLK + " s[70:71]")
    e("s_waitcnt lgkmcnt(0)")
    if fixed:
        e("s_mov_b32 %s, s70" % fixed)
        return
    e("s_mul_i32 s69, %s, 15" % sL)
    e("s_add_u32 m0, s69, %d" % nstamp[0])
    e("s_nop 1")
    e("s_movreld_b32 s%d, s70" % STAMP0)
    nstamp[0] += 1
    assert nstamp[0] <= 15


FINE = [a.split("=")[1] for a in sys.argv if a.startswith("--fine=")]
FINE = FINE[0] if FINE else None
nfine = [0]
FINEKS = eval([a.split('=')[1] for a in sys.argv if a.startswith('--ks=')][0]) if any(a.startswith('--ks=') for a in sys.argv) else (0, 8, 16, 31)


def fine(phase):
    if not PROFILE or FINE != phase:
        return
    e(CLK + " s[70:71]")
    e("s_waitcnt lgkmcnt(0)")
    sk = newlab("fs")
    e("s_cmp_lg_u32 %s, %d" % (sL, 0 if "--l0" in sys.argv else 1))
    e("s_cbranch_scc1 %s" % sk)
    e("v_writelane_b32 v5, s70, %d" % nfine[0])
    lab(sk)
    nfine[0] += 1


def srd(dst, lo, size):
    b = int(dst[2:dst.index(":")])
    e("s_mov_b32 s%d, s%d" % (b, lo))
    e("s_and_b32 s%d, s%d, 0xffff" % (b + 1, lo + 1))
    e("s_mov_b32 s%d, %s" % (b + 2, size if isinstance(size, str) else hex(size)))
    e("s_mov_b32 s%d, 0x20000" % (b + 3))


def poll(soff):
    a, b = newlab("poll"), newlab("pok")
    regs = (vPD, 16) if OPT("p2", 1) else (vPD,)
    ld = lambda r: e("buffer_load_dwordx2 %s, %s, %s, %s offen sc1" % (v(r, 2), v(vPO), sWS, soff))
    e("s_mov_b32 %s, %d" % (sCNT, POLL_LIMIT))
    if len(regs) == 2:
        ld(regs[0])
    lab(a)
    for k, r in enumerate(regs):
        ld(regs[(k + 1) % len(regs)])
        e("s_waitcnt vmcnt(%d)" % (len(regs) - 1))
        e("v_cmp_eq_u64 vcc, %s, %s" % (v(r, 2), v(vFV, 2)))
        e("s_nop 0")
        e("s_cmp_eq_u64 vcc, -1")
        e("s_cbranch_scc1 %s" % b)
    e("s_sub_u32 %s, %s, 1" % (sCNT, sCNT))
    e("s_cbranch_scc0 %s" % a)
    e("s_endpgm")
    lab(b)


def lstores(lines):
    g, d = newlab("wt"), newlab("wtd")
    e("s_cmp_eq_u32 %s, 0" % sMODE)
    e("s_cbranch_scc1 %s" % g)
    for x in lines:
        e(x)
    lab(d)
    TAIL.append(g + ":")
    for x in lines:
        TAIL.append("    " + x + (" sc1" if x.startswith("buffer_store") else ""))
    TAIL.append("    s_branch " + d)


def flag(soff, n=0, local=False):
    if n is not None:
        e("s_waitcnt vmcnt(%d)" % n)
    if local:
        e("s_mov_b64 exec, 1")
        lstores(["buffer_store_dwordx2 %s, off, %s, %s" % (v(vFV, 2), sWS, soff)])
    else:
        e("v_lshlrev_b32 %s, 3, v0" % v(vPD))
        e("s_mov_b64 exec, 0xffff")
        e("buffer_store_dwordx2 %s, %s, %s, %s offen sc1" % (v(vFV, 2), v(vPD), sWS, soff))
    e("s_mov_b64 exec, -1")


def mode_poll(first=False):
    a, b, glob, out = newlab("mp"), newlab("mpok"), newlab("mpg"), newlab("mpo")
    e("v_and_b32 %s, 31, v0" % v(vPD))
    e("v_lshlrev_b32 %s, 10, %s" % (v(vPD), v(vPD)))
    addr(T[3], None, FLG + FI * 128, [(sXCD, 128)])
    e("v_add_u32 %s, %s, %s" % (v(vPD), T[3], v(vPD)))
    if first:
        e("v_add_u32 %s, %s, %s" % (v(vPD + 1), T[0], v(vPO)))
        e("v_cmp_gt_u32 vcc, 32, v0")
        e("s_nop 1")
        e("v_cndmask_b32 v60, %s, %s, vcc" % (v(vPD), v(vPD + 1)))
    e("s_getreg_b32 %s, hwreg(HW_REG_XCC_ID, 0, 4)" % T[3])
    e("s_mov_b32 %s, %d" % (sCNT, POLL_LIMIT))
    e("s_mov_b32 %s, 1" % sMODE)
    lab(a)
    e("buffer_load_dwordx2 %s, v60, %s, 0 offen sc1" % (v(vPD, 2), sWS))
    e("s_waitcnt vmcnt(0)")
    e("v_xor_b32 %s, %s, %s" % (v(vPD + 1), v(vPD + 1), v(vFV + 1)))
    e("v_cmp_eq_u32 %s, %s, %s" % (sM0, v(vPD), v(vFV)))
    e("v_cmp_eq_u32 %s, %s, %s" % (sM1, T[3], v(vPD + 1)))
    e("v_cmp_gt_u32 vcc, 16, %s" % v(vPD + 1))
    e("s_nop 1")
    e("s_and_b64 %s, %s, %s" % (sM1, sM1, sM0))
    e("s_and_b64 vcc, vcc, %s" % sM0)
    if not FORCE_GLOBAL:
        e("s_cmp_eq_u64 %s, -1" % sM1)
        e("s_cbranch_scc1 %s" % out)
    e("s_cmp_eq_u32 vcc_hi, -1")
    e("s_cbranch_scc0 %s" % b)
    if not FORCE_GLOBAL:
        e("s_cmp_eq_u32 s67, -1")
        e("s_cbranch_scc0 %s" % glob)
    else:
        e("s_branch %s" % glob)
    lab(b)
    e("s_sub_u32 %s, %s, 1" % (sCNT, sCNT))
    e("s_cbranch_scc0 %s" % a)
    e("s_endpgm")
    lab(glob)
    e("s_mov_b32 %s, 0" % sMODE)
    if first:
        e("v_xor_b32 %s, 31, %s" % (v(vFV + 1), v(vFV + 1)))
        publish_addr(XF, ST, 0, FX)
        publish_x(None, 84)
        poll(T[0])
        e("v_xor_b32 %s, 31, %s" % (v(vFV + 1), v(vFV + 1)))
    lab(out)


def slot(dst, base, terms):
    e("s_add_u32 %s, %s, %d" % (dst, sFB, base * 8))
    for r, m in terms:
        e("s_mul_i32 %s, %s, %d" % (T[9], r, m * 8))
        e("s_add_u32 %s, %s, %s" % (dst, dst, T[9]))


def addr(dst, base_reg, const, terms):
    if base_reg is None:
        e("s_mov_b32 %s, 0x%x" % (dst, const))
    else:
        e("s_add_u32 %s, %s, 0x%x" % (dst, base_reg, const))
    for r, m in terms:
        e("s_mul_i32 %s, %s, %d" % (T[9], r, m))
        e("s_add_u32 %s, %s, %s" % (dst, dst, T[9]))


def load_frags(sg, first, n, reg_of, rebase=True):
    for j in range(first, first + n):
        if j % 4 == 0 or (j == first and rebase):
            e("s_add_u32 %s, %s, %d" % (T[8], sg, (j // 4) * 4096))
        e("buffer_load_dwordx4 %s, %s, %s, %s offen offset:%d sc1" %
          (v(reg_of(j), 4), v(vL16), sWS, T[8], (j % 4) * 1024))


def mfma(d, a, b, c):
    e("v_mfma_f32_32x32x16_bf16 %s, %s, %s, %s" % (v(d, 16), v(a, 4), v(b, 4), c if isinstance(c, str) else v(c, 16)))


def half_sum(a, b):
    e("s_nop 1")
    e("v_permlane32_swap_b32 %s, %s" % (v(a), v(b)))
    e("s_nop 1")
    e("v_add_f32 %s, %s, %s" % (v(a), v(a), v(b)))


def tile_stats(y, t):
    e("v_pk_add_f32 %s, %s, %s" % (v(t, 2), v(y, 2), v(y + 2, 2)))
    e("v_pk_mul_f32 %s, %s, %s" % (v(t + 2, 2), v(y, 2), v(y, 2)))
    for p in range(1, 8):
        if p > 1:
            e("v_pk_add_f32 %s, %s, %s" % (v(t, 2), v(t, 2), v(y + 2 * p, 2)))
        e("v_pk_fma_f32 %s, %s, %s, %s" % (v(t + 2, 2), v(y + 2 * p, 2), v(y + 2 * p, 2), v(t + 2, 2)))
    e("v_add_f32 %s, %s, %s" % (v(t), v(t), v(t + 1)))
    e("v_add_f32 %s, %s, %s" % (v(t + 2), v(t + 2), v(t + 3)))
    half_sum(t, t + 2)


def unpack(dst, src, n):
    for i in range(n):
        e("v_lshlrev_b32 %s, 16, %s" % (v(dst + 2 * i), v(src + i)))
        e("v_and_b32 %s, 0xffff0000, %s" % (v(dst + 2 * i + 1), v(src + i)))


def publish_addr(xoff, stoff, fbase_add, fbase):
    addr(T[4], sLB, xoff, [(sTBN, XSTR), (sNT, 2048)])
    e("s_lshr_b32 %s, %s, 2" % (T[6], sNT))
    e("s_and_b32 %s, %s, 3" % (T[7], sNT))
    addr(T[5], sLB, stoff, [(sTBN, 4096), (T[6], 1024), (T[7], 4)])
    slot(T[6], fbase, [(sTBN, 16), (sNT, 1)])
    if fbase_add:
        e("s_add_u32 %s, %s, %d" % (T[6], T[6], fbase_add))


def publish_x(y, t, meanwhile=None):
    lstores(["buffer_store_dwordx4 %s, %s, %s, %s offen" % (v(vRES, 4), v(vL16), sWS, T[4]),
             "buffer_store_dwordx4 %s, %s, %s, %s offen offset:1024" % (v(vRES + 4, 4), v(vL16), sWS, T[4])])
    if y is not None:
        tile_stats(y, t)
    lstores(["buffer_store_dword %s, %s, %s, %s offen" % (v(t), v(vL16), sWS, T[5])])
    if meanwhile:
        meanwhile()
    flag(T[6], local=True)


def prologue():
    e("s_cmp_ge_u32 s2, 256")
    e("s_cbranch_scc1 L_end")
    e("s_load_dwordx16 s[12:27], s[0:1], 0")
    e("s_load_dwordx4 s[28:31], s[0:1], 64")
    e("s_load_dwordx2 s[32:33], s[0:1], 80")
    e("v_lshrrev_b32 v1, 6, v0")
    e("v_and_b32 v0, 63, v0")
    e("v_readfirstlane_b32 %s, v1" % sW)
    e("v_lshlrev_b32 %s, 4, v0" % v(vL16))
    cm("column part of a transposing-read address: (lane&3)*8 + ((lane>>4)&1)*32")
    e("v_and_b32 %s, 3, v0" % v(vTR))
    e("v_lshlrev_b32 %s, 3, %s" % (v(vTR), v(vTR)))
    e("v_bfe_u32 %s, v0, 4, 1" % v(vT5))
    e("v_lshl_or_b32 %s, %s, 5, %s" % (v(vTR), v(vT5), v(vTR)))
    e("v_lshrrev_b32 %s, 5, v0" % v(vT5))
    e("v_lshlrev_b32 %s, 4, %s" % (v(vH16), v(vT5)))
    cm("K fragments are stored with token bits 2 and 3 swapped (matches the sparse-MFMA key order)")
    e("v_and_b32 %s, 0x33, v0" % v(vK16))
    e("v_and_b32 %s, 4, v0" % v(vPO))
    e("v_lshl_or_b32 %s, %s, 1, %s" % (v(vK16), v(vPO), v(vK16)))
    e("v_and_b32 %s, 8, v0" % v(vPO))
    e("v_lshrrev_b32 %s, 1, %s" % (v(vPO), v(vPO)))
    e("v_or_b32 %s, %s, %s" % (v(vK16), v(vK16), v(vPO)))
    e("v_lshlrev_b32 %s, 4, %s" % (v(vK16), v(vK16)))
    cm("V store offset: head parity*128K + half*512 + d*16")
    e("v_and_b32 %s, 15, v0" % v(vVOF))
    e("v_lshlrev_b32 %s, 4, %s" % (v(vVOF), v(vVOF)))
    e("v_lshl_or_b32 %s, %s, 9, %s" % (v(vVOF), v(vT5), v(vVOF)))
    e("v_bfe_u32 %s, v0, 4, 1" % v(vPO))
    e("v_lshl_or_b32 %s, %s, 17, %s" % (v(vVOF), v(vPO), v(vVOF)))
    e("s_and_b32 %s, s2, 7" % sXCD)
    e("s_lshr_b32 %s, s2, 3" % sJ)
    e("s_and_b32 %s, %s, 3" % (sHW, sW))
    e("s_and_b32 %s, %s, 15" % (sC, sJ))
    e("s_lshr_b32 %s, %s, 4" % (T[0], sJ))
    e("s_lshl_b32 %s, %s, 2" % (T[0], T[0]))
    e("s_add_u32 %s, %s, %s" % (sTBW, T[0], sHW))
    e("s_and_b32 %s, %s, 7" % (sNB, sJ))
    e("s_lshr_b32 %s, %s, 3" % (T[0], sJ))
    e("s_mov_b32 %s, %s" % (sHEAD, sJ))
    e("s_lshl_b32 %s, %s, 1" % (sTBN, T[0]))
    e("s_and_b32 %s, %s, 1" % (T[0], sW))
    e("s_add_u32 %s, %s, %s" % (sTBN, sTBN, T[0]))
    e("s_lshr_b32 %s, %s, 1" % (sKH, sHW))
    e("s_lshl_b32 %s, %s, 1" % (sNT, sNB))
    e("s_add_u32 %s, %s, %s" % (sNT, sNT, sKH))
    e("s_mov_b32 s62, 0xffff")
    e("s_mov_b32 s63, 0xffff")
    e("s_mov_b32 %s, 0" % sL)
    addr(sLB, None, ARENA, [(sXCD, ARENA_X)])
    e("s_add_u32 %s, %s, 0x%x" % (sFB, sLB, LFL))
    e("s_waitcnt lgkmcnt(0)")
    srd(sWS, 32, WS_SIZE)
    srd(sTMP, 12, 2048 * 1024)
    cm("hand-off tag: ws[0] only tells this launch's flags from an earlier launch's")
    e("s_load_dword %s, s[32:33], 0" % sNONCE)
    if OPT("hold", 0) and not PROFILE:
        e("s_memrealtime s[70:71]")
        e("s_waitcnt lgkmcnt(0)")
        e("s_mov_b32 s68, s70")
    if PROFILE:
        e("s_memrealtime s[70:71]")
        e("s_waitcnt lgkmcnt(0)")
        e("s_mov_b32 s68, s70")
        stamp("s18")


def make_tag():
    e("s_waitcnt lgkmcnt(0)")
    e("s_add_u32 %s, %s, 16" % (sNONCE, sNONCE))
    e("v_mov_b32 %s, %s" % (v(vFV), sNONCE))
    e("v_not_b32 %s, %s" % (v(vFV + 1), v(vFV)))


def qkv_setup(next_layer):
    e("v_and_b32 %s, 15, v0" % v(vPO))
    e("v_lshlrev_b32 %s, 3, %s" % (v(vPO), v(vPO)))
    slot(T[0], FX + (LFL_L if next_layer else 0), [(sTBW, 16)])
    addr(T[1], sLB, XF, [(sTBW, XSTR)])
    addr(T[2], sLB, ST, [(sTBW, 4096)])
    e("v_add_u32 %s, %d, %s" % (v(vCA), CONST, v(vH16)))
    tr_pair(vW0)
    e("v_xor_b32 %s, 64, %s" % (v(vW2), v(vW0)))
    tr_rows(vW1, 64)
    e("v_add_u32 %s, 0x10000, %s" % (v(vW1), v(vW1)))


def p0():
    cm("================ P0 (waves 0-3): x tile -> residual registers, fragments and row statistics")
    p0end, noid, nox, npt = newlab("p0end"), newlab("noid"), newlab("nox"), newlab("npt")
    e("s_cmp_ge_u32 %s, 4" % sW)
    e("s_cbranch_scc1 %s" % nox)
    e("v_and_b32 %s, 31, v0" % v(vPO))
    e("v_lshlrev_b32 %s, 10, %s" % (v(vPO), v(vPO)))
    e("v_add_u32 %s, %s, %s" % (v(vPO), v(vPO), v(vH16)))
    addr(T[0], None, 0, [(sXCD, 262144), (sTBN, 32768), (sNT, 64)])
    for g in range(2):
        e("buffer_load_dwordx4 %s, %s, %s, %s offen offset:%d" % (v(vRES + 4 * g, 4), v(vPO), sTMP, T[0], 32 * g))
    lab(nox)
    e("v_lshlrev_b32 v17, 7, v0")
    for bit, wave in ((1, OPT("w1", 6)), (2, OPT("w2", 5))):
        if not OPT("qft", 3) & bit:
            continue
        nq = newlab("nq")
        e("s_cmp_lg_u32 %s, %d" % (sW, wave))
        e("s_cbranch_scc1 %s" % nq)
        srd(sTMP, 14, 512 * 3072)
        if bit == 1:
            cm("first touch of Wqkv, one line per lane, spread over all workgroups")
            e("s_mul_i32 %s, s2, %d" % (T[0], 48 * 128))
            e("v_mov_b32 v19, v17")
        else:
            cm("one 128-byte column class of Wqkv arrives slowest: the die group requests its lines up front")
            addr(T[0], None, 384, [(sJ, 48 * 1024)])
            e("v_lshlrev_b32 v19, 10, v0")
        e("s_mov_b32 exec_hi, 0xffff")
        e("buffer_load_dword v16, v19, %s, %s offen" % (sTMP, T[0]))
        e("s_mov_b64 exec, -1")
        lab(nq)
    e("s_cmp_lg_u32 %s, 4" % sW)
    e("s_cbranch_scc1 %s" % npt)
    cm("statistics and flag lines receive partial writes: bring them into L2 first")
    addr(T[0], sLB, ST, [(sJ, 11 * 128)])
    e("s_mov_b64 exec, 0x7ff")
    e("buffer_load_dword v18, v17, %s, %s offen sc1" % (sWS, T[0]))
    e("s_mov_b64 exec, -1")
    lab(npt)
    e("s_cmp_ge_u32 %s, 4" % sW)
    e("s_cbranch_scc1 %s" % p0end)
    stamp("s0")
    make_tag()
    e("s_getreg_b32 %s, hwreg(HW_REG_XCC_ID, 0, 4)" % T[7])
    e("s_mov_b32 %s, 1" % sMODE)
    e("v_xor_b32 %s, %s, %s" % (v(vFV + 1), T[7], v(vFV + 1)))
    publish_addr(XF, ST, 0, FX)
    nid = newlab("nid")
    e("s_cmp_lg_u32 %s, 0" % sW)
    e("s_cbranch_scc1 %s" % nid)
    e("s_lshl_b32 %s, s2, 7" % T[8])
    e("s_add_u32 %s, %s, 0x%x" % (T[8], T[8], FLG + FI * 128))
    flag(T[8], None)
    e("s_waitcnt vmcnt(1)")
    e("s_branch %s" % noid)
    lab(nid)
    e("s_waitcnt vmcnt(0)")
    lab(noid)
    stamp("s1")
    for g in range(2):
        e("v_permlane32_swap_b32 %s, %s" % (v(vRES + 4 * g), v(vRES + 4 * g + 2)))
        e("v_permlane32_swap_b32 %s, %s" % (v(vRES + 4 * g + 1), v(vRES + 4 * g + 3)))
    e("s_nop 0")
    unpack(66, vRES, 8)
    publish_x(66, 84, lambda: qkv_setup(False))
    e("s_nop 0")
    e("v_not_b32 %s, %s" % (v(vFV + 1), v(vFV)))
    lab(p0end)
    stamp("s19")


def tr_pair(dst):
    tr_rows(dst, 128)
    e("v_bfe_u32 %s, v0, 3, 1" % v(vPD))
    e("v_lshl_or_b32 %s, %s, 6, %s" % (v(dst), v(vPD), v(dst)))


def tr_rows(dst, rowbytes):
    e("v_bfe_u32 %s, v0, 2, 2" % v(dst))
    e("v_lshrrev_b32 %s, 2, %s" % (v(vPD), v(vH16)))
    e("v_add_u32 %s, %s, %s" % (v(dst), v(dst), v(vPD)))
    e("v_mul_u32_u24 %s, %d, %s" % (v(dst), rowbytes, v(dst)))
    e("v_add_u32 %s, %s, %s" % (v(dst), v(dst), v(vTR)))


def voff_128(dst, row=1024):
    e("v_lshrrev_b32 %s, 3, v0" % v(dst))
    e("v_mul_u32_u24 %s, %d, %s" % (v(dst), row, v(dst)))
    e("v_and_b32 %s, 7, v0" % v(vPD))
    e("v_lshrrev_b32 %s, 2, v0" % v(vPD + 1))
    e("v_and_b32 %s, 4, %s" % (v(vPD + 1), v(vPD + 1)))
    e("v_xor_b32 %s, %s, %s" % (v(vPD), v(vPD), v(vPD + 1)))
    e("v_lshl_or_b32 %s, %s, 4, %s" % (v(dst), v(vPD), v(dst)))


def voff_192(dst):
    for i in range(3):
        e("v_add_u32 %s, %d, v0" % (v(vPD), 64 * i))
        e("v_mul_u32_u24 %s, 5462, %s" % (v(vPD + 1), v(vPD)))
        e("v_lshrrev_b32 %s, 16, %s" % (v(vPD + 1), v(vPD + 1)))
        e("v_mul_u32_u24 %s, %d, %s" % (v(dst + i), 2752 - 192, v(vPD + 1)))
        e("v_lshl_add_u32 %s, %s, 4, %s" % (v(dst + i), v(vPD), v(dst + i)))


def dma1(vo, sg, cls):
    e("buffer_load_dwordx4 %s, %s, %s offen%s lds" % (v(vo), sTMP, sg, " nt" if OPT("wnt", 0) & cls else ""))


def dma_loop(n, body):
    lp = newlab("dl")
    e("s_mov_b32 %s, %d" % (T[2], n))
    lab(lp)
    body()
    e("s_sub_u32 %s, %s, 1" % (T[2], T[2]))
    e("s_cmp_lg_u32 %s, 0" % T[2])
    e("s_cbranch_scc1 %s" % lp)


def dma_w2(piece0, lds0, n, pace=PACE):
    addr(T[0], None, piece0 * 8192, [(sHW, n * 8192), (sNB, 128)])
    addr(T[1], None, lds0, [(sHW, n * 1024)])

    def body():
        e("s_mov_b32 m0, %s" % T[1])
        e("s_add_u32 %s, %s, 1024" % (T[1], T[1]))
        dma1(40, T[0], 4)
        e("s_add_u32 %s, %s, 8192" % (T[0], T[0]))
        if pace:
            e("s_waitcnt vmcnt(%d)" % max(pace, 0))
    dma_loop(n, body)


def dma_w1(n):
    def body():
        for i in range(3):
            e("s_add_u32 m0, %s, %d" % (T[1], 1024 * i))
            e("s_nop 0")
            dma1(44 + i, T[0], 2)
        e("s_add_u32 %s, %s, %d" % (T[0], T[0], 16 * 2752))
        e("s_add_u32 %s, %s, 3072" % (T[1], T[1]))
    dma_loop(n, body)


def wq_begin():
    srd(sTMP, 14, 512 * 3072)
    voff_128(44, 3072)
    e("v_lshrrev_b32 v40, 2, v0")
    e("v_mul_u32_u24 v40, 3072, v40")
    e("v_and_b32 v41, 3, v0")
    e("v_lshl_or_b32 v40, v41, 4, v40")
    cm("odd groups take a K column pair, even groups a V column pair; every group takes one Q tile")
    e("s_and_b32 %s, %s, 1" % (T[0], sC))
    e("s_lshr_b32 %s, %s, 1" % (T[1], sC))
    e("s_mul_i32 %s, %s, -1024" % (T[0], T[0]))
    addr(T[3], T[0], 2048, [(sHW, 2 * 49152), (T[1], 128)])
    addr(T[5], None, 0, [(sHW, 2 * 49152), (sC, 64)])
    e("s_lshl_b32 %s, %s, 12" % (T[4], sHW))
    addr(T[6], None, 65536, [(sHW, 2048)])


def wq_chunk():
    for k in range(4):
        e("s_add_u32 m0, %s, %d" % (T[4], 1024 * k))
        e("s_nop 0")
        e("buffer_load_dwordx4 v44, %s, %s offen lds" % (sTMP, T[3]))
        e("s_add_u32 %s, %s, %d" % (T[3], T[3], 24576 if k < 3 else 24576 + 6 * 49152))
        if k % 2:
            e("s_add_u32 m0, %s, %d" % (T[6], 1024 * (k // 2)))
            e("s_nop 0")
            e("buffer_load_dwordx4 v40, %s, %s offen lds" % (sTMP, T[5]))
            e("s_add_u32 %s, %s, %d" % (T[5], T[5], 49152 if k == 1 else 7 * 49152))
    e("s_add_u32 %s, %s, 16384" % (T[4], T[4]))
    e("s_add_u32 %s, %s, 8192" % (T[6], T[6]))


CSA = 64


def colsum_begin():
    for r in range(48):
        e("v_mov_b32 v%d, 0" % (CSA + r))
    for r in range(4):
        e("v_mov_b32 v%d, 0x3f803f80" % (52 + r))


def colsum2(regs, steps, seconds):
    for k in range(2):
        for i in range(3):
            for h in range(2):
                e("ds_read_b64_tr_b16 %s, v%d offset:%d" % (v(16 + 12 * k + 4 * i + 2 * h, 2), regs[i], k * steps[i] + h * seconds[i]))
    for k in range(6):
        e("s_waitcnt lgkmcnt(%d)" % (10 - 2 * k))
        mfma(CSA + 16 * (k % 3), 52, 16 + 4 * k, CSA + 16 * (k % 3))


def colsum_w1():
    e("v_add_u32 v42, %s, v43" % T[0])
    e("v_add_u32 v48, 64, v42")
    e("v_add_u32 v50, 128, v42")
    colsum2((42, 48, 50), (3072,) * 3, (1536,) * 3)


def colsum_partial():
    e("v_and_b32 v41, 31, v0")
    e("v_lshlrev_b32 v41, 2, v41")
    addr(T[0], None, PART_L, [(sHW, 384)])
    e("v_add_u32 v42, %s, v41" % T[0])
    e("s_nop 7")
    for i in range(3):
        e("ds_write_b32 v42, v%d offset:%d" % (CSA + 16 * i, 128 * i))


def colsum_combine(dst_l):
    e("s_min_u32 %s, %s, 2" % (T[0], sHW))
    e("s_lshl_b32 %s, %s, 7" % (T[0], T[0]))
    e("v_add_u32 v41, %s, v41" % T[0])
    e("v_add_u32 v42, %d, v41" % PART_L)
    for k in range(4):
        e("ds_read_b32 v%d, v42 offset:%d" % (16 + k, 384 * k))
    e("v_add_u32 v41, %d, v41" % dst_l)
    e("s_waitcnt lgkmcnt(0)")
    e("v_add_f32 v16, v16, v17")
    e("v_add_f32 v18, v18, v19")
    e("v_add_f32 v16, v16, v18")
    e("ds_write_b32 v41, v16")


def stats_code(second_ln):
    c = []
    for k in range(1, 16):
        c.append("v_add_f32 %s, %s, %s" % (v(vSTS), v(vSTS), v(vSTS + k)))
    c += ["v_mov_b32 %s, %s" % (v(vSTS + 1), v(vSTS)), "s_nop 1",
          "v_permlane32_swap_b32 %s, %s" % (v(vSTS), v(vSTS + 1)), "s_nop 1",
          "v_mul_f32 %s, %s, %s" % (v(vMU), f32(1.0 / 512), v(vSTS)),
          "v_mul_f32 %s, %s, %s" % (v(vSTS + 1), f32(1.0 / 512), v(vSTS + 1)),
          "v_fma_f32 %s, -%s, %s, %s" % (v(vSTS + 1), v(vMU), v(vMU), v(vSTS + 1)),
          "v_max_f32 %s, 0, %s" % (v(vSTS + 1), v(vSTS + 1)),
          "v_add_f32 %s, %s, %s" % (v(vSTS + 2), f32(1e-5), v(vSTS + 1)),
          "v_rsq_f32 %s, %s" % (v(vR), v(vSTS + 2)), "s_nop 0"]
    if second_ln:
        c += ["v_mul_f32 %s, %s, %s" % (v(vSTS + 2), v(vR), v(vR)),
              "v_mul_f32 %s, %s, %s" % (v(vSTS + 2), v(vSTS + 2), v(vSTS + 1)),
              "v_add_f32 %s, %s, %s" % (v(vSTS + 2), f32(1e-5), v(vSTS + 2)),
              "v_rsq_f32 %s, %s" % (v(vSTS + 2), v(vSTS + 2)), "s_nop 0",
              "v_mul_f32 %s, %s, %s" % (v(vR), v(vR), v(vSTS + 2))]
    return c


def center(acc, cs, p):
    e("v_pk_fma_f32 %s, %s, %s, %s op_sel_hi:[0,1,1] neg_lo:[1,0,0] neg_hi:[1,0,0]" %
      (v(acc + 2 * p, 2), v(vMU, 2), v(cs + 2 * p, 2), v(acc + 2 * p, 2)))


def stash_addr():
    e("s_mul_i32 %s, %s, 24576" % (T[0], sHW))
    e("v_add_u32 v42, %s, %s" % (T[0], v(vL16)))


class Lds:
    def __init__(self):
        self.ops, self.done = [], 0

    def op(self, name, text):
        e(text)
        self.ops.append(name)

    def need(self, name):
        last = max(i for i, n in enumerate(self.ops) if n == name)
        if last < self.done:
            return None
        self.done = last + 1
        return min(15, len(self.ops) - 1 - last)


def qkv_body(isk, done):
    H = 16

    def item(n):
        if n < 32:
            load_frags(T[1], n, 1, lambda j: vA + 4 * j, n % 4 == 0)
        else:
            e("buffer_load_dwordx4 %s, %s, %s, %s offen offset:%d sc1" % (v(vSTS + 4 * (n - 32), 4), v(vL16), sWS, T[2], 1024 * (n - 32)))
    sched = [[ks + DEPTH] if ks + DEPTH < 32 else [] for ks in range(32)]
    for k in range(4):
        sched[3 + 2 * k].append(32 + k)
    order = list(range(DEPTH))
    lds = Lds()

    def rd(ks, i, d):
        base, off, sec = ((vW0, vW2)[i], ks * 2048, 1024) if i < 2 else (vW1, ks * 1024, 512)
        lds.op(("w", i, ks), "ds_read_b64_tr_b16 %s, %s offset:%d" % (v(d, 2), v(base), off))
        lds.op(("w", i, ks), "ds_read_b64_tr_b16 %s, %s offset:%d" % (v(d + 2, 2), v(base), off + sec))

    def wait(name):
        n = lds.need(name)
        if n is not None:
            e("s_waitcnt lgkmcnt(%d)" % n)
    wb1 = lambda ks, i: vWB + (ks % 3) * 12 + 4 * i
    wb2 = lambda ks: vWB + (12 * (ks - H) + 8 if ks < H + 3 else [0, 4, 12, 16, 24, 28, 8, 20, 32][(ks - H - 3) % 9])
    tiles = lambda ks: (2, 0, 1) if ks < H else (0, 1)
    for ks in range(2):
        for i in tiles(ks):
            rd(ks, i, wb1(ks, i))
    fine("q")
    SA, SB, SC = vPO, vPD, vPD + 1
    PK, C0, C1, VC, QC = vA, vA + 16, vA + 32, vA + 48, vSTS

    def addresses():
        e("s_lshr_b32 %s, %s, 1" % (T[0], sC))
        addr(T[4], None, KVF, [(sL, KVF_L), (T[0], 4 * 131072), (sXCD, 16384), (sTBW, 2048)])
        addr(T[2], sLB, KVL, [(T[0], 8192), (sTBW, HSTR)])
        slot(T[6], FQ, [(sC, 8), (sTBW, 1)])
        addr(T[7], None, GFL, [(sL, GFL_L), (sC, 65536), (sXCD, 8192), (sTBW, 1024)])
        addr(T[3], sLB, QF, [(sC, 2048), (sTBW, HSTR)])
        if not isk:
            e("v_and_b32 %s, 31, v0" % v(SA))
            e("v_lshlrev_b32 %s, 2, %s" % (v(SA), v(SA)))
            addr(T[0], None, STAT_L, [(sHW, 256)])
            e("v_add_u32 %s, %s, %s" % (v(SB), T[0], v(SA)))
            e("v_add_u32 %s, %s, %s" % (v(SC), T[0], v(vH16)))
            e("v_add_u32 %s, %d, %s" % (v(SA), CSQ_L, v(SA)))
    sh = [lambda x=x: e(x) for x in capture(addresses) + stats_code(False)]
    sh.append(lambda: e("v_mul_f32 %s, %s, %s" % (v(vRQ), f32(0.25 * 1.4426950408889634), v(vR))))
    if isk:
        for k in range(8):
            sh.append(lambda k=k: lds.op("c", "ds_read_b128 %s, %s offset:%d" % (v(C0 + 4 * k, 4), v(vCA), 32 * k)))
    else:
        sh.append(lambda: lds.op("sw", "ds_write_b32 %s, %s" % (v(SB), v(vMU))))
        sh.append(lambda: lds.op("sw", "ds_write_b32 %s, %s offset:128" % (v(SB), v(vR))))
        for k in range(8):
            sh.append(lambda k=k: lds.op("c", "ds_read_b128 %s, %s offset:%d" % (v(C0 + 4 * k, 4), v(SC), 32 * k)))
        for t in range(2):
            sh.append(lambda t=t: lds.op("c", "ds_read_b32 %s, %s offset:%d" % (v(VC + t), v(SA), 128 * t)))
    nsal = len(capture(addresses))
    pos = 0
    for ks in range(32):
        if ks in (16, 22):
            e("s_barrier")
        newest = max(order.index(n) for n in ([ks, 35] if ks >= 18 else [ks]))
        e("s_waitcnt vmcnt(%d) lgkmcnt(%d)" % (len(order) - 1 - newest, lds.need(("w", 1, ks))))
        if ks in FINEKS:
            fine("q")
        for m, i in enumerate(tiles(ks)):
            c = "0" if ks == 0 else vACC + 16 * i
            if i < 2 and not isk:
                mfma(vACC + 16 * i, vA + 4 * ks, wb1(ks, i), c)
            else:
                mfma(vACC + 16 * i, wb1(ks, i), vA + 4 * ks, c)
            if ks + 2 < 32 and i in tiles(ks + 2):
                rd(ks + 2, i, wb1(ks + 2, i))
            elif ks >= 30 and (i == 0 or ks == 30):
                k2 = H + (ks - 30) * 2 + i
                rd(k2, 2, wb2(k2))
            if m < len(sched[ks]):
                item(sched[ks][m])
                order.append(sched[ks][m])
            if ks >= 10:
                for _ in range(2):
                    if pos < len(sh) and (pos < nsal or ks >= 18):
                        sh[pos]()
                        pos += 1
    assert pos == len(sh), (pos, len(sh))
    cm("remaining Q k-steps with the pair's epilogue underneath")
    fill = [lambda: wait("c")]
    for i in range(4):
        fill.append(lambda i=i: lds.op("qc", "ds_read_b128 %s, %s offset:%d" % (v(QC + 4 * i, 4), v(vCA), 256 + 32 * i)))
    fill.append(lambda: e("s_add_u32 %s, %s, 0x%x" % (T[5], T[4], 0x20000 if isk else 0x40000)))
    fill.append(lambda: e("s_add_u32 %s, %s, 4096" % (T[0], T[2])))
    if isk:
        fill.append(lambda: e("s_add_u32 %s, %s, 0x40000" % (T[8], T[4])))
        fill.append(lambda: e("s_add_u32 %s, %s, 0x60000" % (T[1], T[4])))
    else:
        fill.append(lambda: e("v_and_b32 %s, 0x1ffff, %s" % (v(SC), v(vVOF))))
        fill.append(lambda: e("v_lshrrev_b32 %s, 17, %s" % (v(SB), v(vVOF))))
        fill.append(lambda: e("v_lshl_or_b32 %s, %s, 11, %s" % (v(SC), v(SB), v(SC))))
    local = []
    for t in range(2):
        a = vACC + 16 * t
        for r in range(16):
            if isk:
                fill.append(lambda a=a, t=t, r=r: e("v_fma_f32 %s, -%s, %s, %s" % (v(a + r), v(vMU), v(C0 + 16 * t + r), v(a + r))))
            else:
                fill.append(lambda a=a, t=t, r=r: e("v_fma_f32 %s, -%s, %s, %s" % (v(a + r), v(C0 + r), v(VC + t), v(a + r))))
        for r in range(16):
            fill.append(lambda a=a, r=r: e("v_mul_f32 %s, %s, %s" % (v(a + r), v(vR if isk else C1 + r), v(a + r))))
        for p in range(8):
            fill.append(lambda a=a, t=t, p=p: e("v_cvt_pk_bf16_f32 %s, %s, %s" % (v(PK + 8 * t + p), v(a + 2 * p), v(a + 2 * p + 1))))
        for hh in range(2):
            d = v(PK + 8 * t + 4 * hh, 4)
            if isk:
                g = "%s, %s, %s, %s offen" % (d, v(vK16), sWS, (T[4], T[5], T[8], T[1])[2 * t + hh])
                local.append("buffer_store_dwordx4 %s, %s, %s, %s offen offset:%d" % (d, v(vK16), sWS, (T[2], T[0])[t], 2048 * hh))
            else:
                g = "%s, %s, %s, %s offen offset:%d" % (d, v(vVOF), sWS, (T[4], T[5])[t], 1024 + 256 * hh)
                local.append("buffer_store_dwordx4 %s, %s, %s, %s offen offset:%d" % (d, v(SC), sWS, (T[2], T[0])[t], 1024 + 256 * hh))
            fill.append(lambda g=g: e("buffer_store_dwordx4 " + g + " sc1"))
    fill.append(lambda: lstores(local))
    per = -(-len(fill) // (32 - H))
    aQ = vACC + 32
    for ks in range(H, 32):
        wait(("w", 2, ks + 1 if ks % 2 == 0 and H + 2 < ks < 31 else ks))
        mfma(aQ, wb2(ks), vA + 4 * ks, aQ)
        if ks == H:
            fine("q")
        for n in ([H + 3, H + 4] if ks == H else [H + 5, H + 6] if ks == H + 1 else [ks + 5] if ks + 5 < 32 else []):
            rd(n, 2, wb2(n))
        for f in fill[(ks - H) * per:(ks + 1 - H) * per]:
            f()
    e("s_barrier")
    stamp()
    wait("qc")
    e("s_nop %d" % max(0, 10 - len(fill[(31 - H) * per:])))
    for p in range(8):
        center(aQ, QC, p)
    for p in range(8):
        e("v_pk_mul_f32 %s, %s, %s op_sel_hi:[1,0]" % (v(aQ + 2 * p, 2), v(aQ + 2 * p, 2), v(vRQ, 2)))
    for p in range(8):
        e("v_cvt_pk_bf16_f32 %s, %s, %s" % (v(C1 + p), v(aQ + 2 * p), v(aQ + 2 * p + 1)))
    lstores(["buffer_store_dwordx4 %s, %s, %s, %s offen offset:%d" % (v(C1 + 4 * hh, 4), v(vL16), sWS, T[3], 1024 * hh) for hh in range(2)])
    fine("q")
    for k in range(4):
        e("v_mov_b32 %s, %s" % (v(vSTS + k), v(vFV + k % 2)))
    flag(T[6], 0, local=True)
    e("buffer_store_dwordx4 %s, %s, %s, %s offen sc1" % (v(vSTS, 4), v(vL16), sWS, T[7]))
    e("s_branch %s" % done)


def qkv():
    cm("================ QKV projection")
    hl, done, kb = newlab("qkv_h"), newlab("qkv_done"), newlab("qkv_k")
    e("s_cmp_ge_u32 %s, 4" % sW)
    e("s_cbranch_scc1 %s" % hl)
    l1, l2 = newlab("fx"), newlab("fx")
    e("s_cmp_lg_u32 %s, 0" % sL)
    e("s_cbranch_scc1 %s" % l1)
    mode_poll(True)
    e("v_mov_b32 v60, %s" % sMODE)
    e("v_mov_b32 v61, %d" % MODE_L)
    e("ds_write_b32 v61, v60")
    e("s_waitcnt lgkmcnt(0)")
    e("s_branch %s" % l2)
    lab(l1)
    poll(T[0])
    lab(l2)
    stamp()
    load_frags(T[1], 0, DEPTH, lambda j: vA + 4 * j)
    fine("q")
    e("s_barrier")
    e("s_bitcmp1_b32 %s, 0" % sC)
    e("s_cbranch_scc1 %s" % kb)
    n0, f0 = nstamp[0], nfine[0]
    qkv_body(False, done)
    lab(kb)
    nstamp[0], nfine[0] = n0, f0
    qkv_body(True, done)
    lab(hl)
    h1, h2, lp = newlab("qh1"), newlab("qh2"), newlab("qhl")
    e("s_cmp_lg_u32 %s, 0" % sL)
    e("s_cbranch_scc1 %s" % h1)
    wq_begin()
    if FINE == "h":
        make_tag()
        fine("h")
    dma_loop(2, wq_chunk)
    fine("h")
    if FINE != "h":
        make_tag()
    colsum_begin()
    tr_pair(42)
    e("s_lshl_b32 %s, %s, 12" % (T[0], sHW))
    e("v_add_u32 v42, %s, v42" % T[0])
    e("v_xor_b32 v48, 64, v42")
    tr_rows(50, 64)
    addr(T[0], None, 65536, [(sHW, 2048)])
    e("v_add_u32 v50, %s, v50" % T[0])
    e("s_mov_b32 %s, 0" % sIT)
    lab(lp)
    b1, b2 = newlab("qw"), newlab("qw")
    e("s_cmp_ge_u32 %s, 2" % sIT)
    e("s_cbranch_scc1 %s" % b1)
    wq_chunk()
    e("s_waitcnt vmcnt(12)")
    e("s_branch %s" % b2)
    lab(b1)
    e("s_waitcnt vmcnt(6)")
    e("s_cmp_eq_u32 %s, 2" % sIT)
    e("s_cbranch_scc1 %s" % b2)
    e("s_waitcnt vmcnt(0)")
    lab(b2)
    fine("h")
    colsum2((42, 48, 50), (2048, 2048, 1024), (1024, 1024, 512))
    e("v_add_u32 v42, 16384, v42")
    e("v_add_u32 v48, 16384, v48")
    e("v_add_u32 v50, 8192, v50")
    e("s_add_u32 %s, %s, 1" % (sIT, sIT))
    e("s_cmp_lt_u32 %s, 4" % sIT)
    e("s_cbranch_scc1 %s" % lp)
    colsum_partial()
    fine("h")
    e("s_waitcnt lgkmcnt(0)")
    e("s_barrier")
    fine("h")
    colsum_combine(CSQ_L)
    e("v_mov_b32 v61, %d" % MODE_L)
    e("ds_read_b32 v60, v61")
    cm("park the weight tile in registers for the second layer pair")
    stash_addr()
    for k in range(24):
        e("ds_read_b128 %s, v42 offset:%d" % (v(vSTASH + 4 * k, 4), 1024 * k))
    e("s_waitcnt lgkmcnt(15)")
    e("v_readfirstlane_b32 %s, v60" % sMODE)
    e("s_branch %s" % h2)
    lab(h1)
    e("s_waitcnt lgkmcnt(0)")
    e("s_barrier")
    lab(h2)
    cm("lanes 0-15: Q lines; lanes 16-47: the K or V kilobyte of four head blocks")
    e("v_subrev_u32 v20, 16, v0")
    e("v_lshrrev_b32 v21, 3, v20")
    e("v_lshlrev_b32 v21, 10, v21")
    e("v_lshl_add_u32 v20, v20, 7, v21")
    e("s_lshr_b32 %s, %s, 1" % (T[1], sC))
    e("s_and_b32 %s, %s, 1" % (T[2], sC))
    addr(T[3], None, 32768 + 1024, [(T[1], 8192), (T[2], -1024), (sC, -2048)])
    e("v_add_u32 v20, %s, v20" % T[3])
    e("v_lshlrev_b32 v19, 7, v0")
    e("v_cmp_lt_u32 vcc, 15, v0")
    addr(T[0], sLB, BLK, [(sTBW, HSTR), (sC, 2048)])
    e("v_cndmask_b32 v19, v19, v20, vcc")
    e("s_waitcnt lgkmcnt(0)")
    e("s_barrier")
    e("s_barrier")
    cm("all activation loads are out: bring in the lines the Q/K/V stores will write, so they need no fill")
    e("s_mov_b32 exec_hi, 0xffff")
    e("buffer_load_dword v21, v19, %s, %s offen sc1" % (sWS, T[0]))
    e("s_mov_b64 exec, -1")
    e("s_cmp_lg_u32 %s, 0" % sL)
    e("s_cbranch_scc1 %s" % done)
    cm("this workgroup's slices of b1 and b2; they are staged in LDS after attention")
    srd(sTMP, 22, 2752)
    e("v_and_b32 v19, 31, v0")
    e("v_lshlrev_b32 v19, 1, v19")
    addr(T[0], None, 0, [(sHW, 64), (sC, 192)])
    e("buffer_load_ushort v224, v19, %s, %s offen" % (sTMP, T[0]))
    srd(sTMP, 26, 1024)
    e("s_and_b32 %s, %s, 1" % (T[4], sHW))
    addr(T[0], None, 0, [(T[4], 64), (sNB, 128)])
    e("buffer_load_ushort v225, v19, %s, %s offen" % (sTMP, T[0]))
    lab(done)
    stamp()


def attention():
    cm("================ attention: S^T = K Q^T, P = exp2(S^T), O^T += V^T P via sparse MFMA")
    S, O, Q, KB, VB, IDX, AD, VO, CN = (16, 32), 48, 64, (68, 72), (76, 84), 92, 93, 94, 100
    PF = 100
    KVG, LP, CH, GF, ISS = T[2], T[3], T[4], T[5], T[6]
    cm("rows 16 and 20 of the V operand are ones (row sums for both lane halves); the other spare rows are zero")
    e("v_and_b32 %s, 27, v0" % v(IDX))
    e("v_cmp_eq_u32 vcc, 16, %s" % v(IDX))
    e("v_mov_b32 %s, 0x3f803f80" % v(AD))
    e("s_nop 0")
    for i in range(16):
        e("v_mov_b32 %s, 0" % v(O + i))
        e("v_cndmask_b32 %s, 0, %s, vcc" % (v(VB[0] + i), v(AD)))
    for i in range(8):
        e("v_mov_b32 %s, 0" % v(S[1] + 8 + i))
    e("v_mov_b32 %s, 0xdddddddd" % v(IDX))
    e("v_mov_b32 %s, 0" % v(PF + 6))
    e("v_mov_b32 %s, %s" % (v(AD), v(vL16)))
    voff_128(VO)
    voff_192(VO + 1)
    e("s_mov_b32 %s, 1" % ISS)
    a1 = newlab("a1")
    e("s_cmp_lt_u32 %s, 4" % sW)
    e("s_cbranch_scc1 %s" % a1)
    cm("waves 4-7 fetch Q and this die's K/V, and later the other dies' K/V")
    e("v_and_b32 %s, 15, v0" % v(vPO))
    e("v_lshlrev_b32 %s, 3, %s" % (v(vPO), v(vPO)))
    e("s_lshr_b32 %s, %s, 2" % (T[1], sHEAD))
    e("s_lshl_b32 %s, %s, 1" % (T[1], T[1]))
    addr(GF, None, GFL, [(sL, GFL_L), (T[1], 65536), (sXCD, 128)])
    slot(T[0], FQ, [(T[1], 8)])
    addr(T[1], sLB, QF, [(sHEAD, 1024), (sHW, 2 * HSTR)])
    addr(KVG, None, KVF, [(sL, KVF_L), (sHEAD, 131072), (sHW, 4096)])
    addr(T[8], sLB, KVL, [(sHEAD, 2048), (sHW, 2 * HSTR)])
    addr(T[7], None, QL, [(sHW, 2048)])
    e("s_lshl_b32 %s, %s, 12" % (LP, sHW))
    e("s_add_u32 %s, %s, 1" % (CH, sXCD))
    e("s_mov_b32 %s, 0" % ISS)
    cm("last barrier of the projection: its weight tile in LDS is dead from here on")
    e("s_barrier")
    poll(T[0])
    for b in range(2):
        e("s_add_u32 m0, %s, %d" % (LP, 2048 * b))
        e("v_lshlrev_b32 %s, 10, v0" % v(vPO))
        for i in range(2):
            e("buffer_load_dwordx4 %s, %s, %s offen offset:%d sc1 lds" % (v(vL16), sWS, T[8], 1024 * i))
        e("s_add_u32 m0, %s, %d" % (T[7], 1024 * b))
        e("s_add_u32 %s, %s, %d" % (T[8], T[8], HSTR))
        e("buffer_load_dwordx4 %s, %s, %s offen sc1 lds" % (v(vL16), sWS, T[1]))
        e("s_add_u32 %s, %s, %d" % (T[1], T[1], HSTR))

    def gflag_load():
        e("buffer_load_dwordx2 %s, %s, %s, %s offen sc1" % (v(vPD, 2), v(vPO), sWS, GF))
        e("buffer_load_dwordx2 %s, %s, %s, %s offen sc1" % (v(PF + 4, 2), v(PF + 6), sWS, GF))

    def kv_issue(n=4):
        e("s_and_b32 %s, %s, 7" % (CH, CH))
        e("s_lshl_b32 %s, %s, 14" % (T[9], CH))
        e("s_add_u32 %s, %s, 16384" % (LP, LP))
        e("s_add_u32 %s, %s, %s" % (T[9], T[9], KVG))
        e("s_mov_b32 m0, %s" % LP)
        e("s_add_u32 %s, %s, 1" % (CH, CH))
        for i in range(n):
            e("buffer_load_dwordx4 %s, %s, %s offen offset:%d sc1%s lds" % (v(vL16), sWS, T[9], 1024 * i, " nt" if OPT("kvnt", 1) else ""))

    def kv_issue_helpers():
        sk, cw = newlab("kvs"), newlab("kvc")
        e("s_cmp_lt_u32 %s, 4" % sW)
        e("s_cbranch_scc1 %s" % cw)
        kv_issue()
        lab(sk)
        ft = newlab("ft")
        wp = newlab("wp")
        TAIL.extend([wp + ":", "    s_cmp_lg_u32 %s, %d" % (sIT, OPT("woit", 3)), "    s_cbranch_scc1 %s" % sk]
                    + ["    " + x for x in capture(lambda: (srd("s[64:67]", 16, 512 * 1024), addr(T[1], None, 0, [(sJ, 128 * 128), (sW, 32 * 128)])))]
                    + (["    " + x for x in capture(lambda: (
                        e("v_lshrrev_b32 %s, 3, v0" % v(PF + 3)), e("v_mul_u32_u24 %s, %d, %s" % (v(PF + 3), XSTR - 1024, v(PF + 3))),
                        e("v_add_u32 %s, %s, %s" % (v(PF + 3), v(PF + 3), v(PF))),
                        addr(T[0], sLB, OF, [(sW, 2 * XSTR), (sHEAD, 1024)]), e("s_mov_b64 exec, 0xffff"),
                        e("buffer_load_dword %s, %s, %s, %s offen sc1" % (v(PF + 2), v(PF + 3), sWS, T[0])), e("s_mov_b64 exec, -1")))])
                    + ["    s_mov_b32 exec_hi, 0", "    buffer_load_dword %s, %s, s[64:67], %s offen" % (v(PF + 2), v(PF), T[1]),
                       "    s_mov_b64 exec, -1", "    s_branch %s" % sk])
        TAIL.extend([ft + ":", "    s_cmp_lg_u32 %s, %s" % (sIT, T[8]), "    s_cbranch_scc1 %s" % wp,
                     "    buffer_load_dword %s, %s, s[64:67], %s offen" % (v(PF + 2), v(PF), T[1]), "    s_branch %s" % sk])
        TAIL.extend([cw + ":", "    s_cmp_lt_u32 %s, 4" % sIT, "    s_cbranch_scc1 %s" % ft, "    s_mov_b32 exec_hi, 0",
                     "    buffer_load_dword %s, %s, %s, %s offen" % (v(PF + 2), v(PF + 1), sTMP, T[7]),
                     "    s_mov_b64 exec, -1", "    s_add_u32 %s, %s, %d" % (T[7], T[7], 16 * 2752),
                     "    s_branch %s" % sk])
    e("v_add_u32 %s, 0x10000, %s" % (v(PF + 6), v(vPO)))
    fine("k")
    e("s_waitcnt vmcnt(0)")
    fine("k")
    gflag_load()
    lab(a1)
    addr(T[0], None, QL, [(sW, 1024)])
    e("v_add_u32 v16, %s, %s" % (T[0], v(vL16)))
    e("s_barrier")
    stamp()

    def rdk(t):
        e("ds_read_b128 %s, %s offset:%d" % (v(KB[t & 1], 4), v(AD), t * 2048))

    def rdv(t):
        e("s_mov_b64 exec, %s" % sMV)
        e("ds_read_b128 %s, %s offset:%d" % (v(VB[t & 1], 4), v(AD), t * 2048 + 1024))
        e("ds_read_b128 %s, %s offset:%d" % (v(VB[t & 1] + 4, 4), v(AD), t * 2048 + 1280))
        e("s_mov_b64 exec, -1")

    def smf(vb, p):
        e("v_smfmac_f32_32x32x32_bf16 %s, %s, %s, %s" % (v(O, 16), v(vb, 4), v(p, 8), v(IDX)))

    def ex(cur, a, b):
        for i in range(a, b):
            e("v_exp_f32 %s, %s" % (v(S[cur] + i), v(S[cur] + i)))

    def tile(t, extra=None):
        cur, nxt = t & 1, (t + 1) & 1
        ex(cur, 0, 2)
        smf(VB[nxt] + 4, S[nxt] + 8)
        rdv(t + 1)
        ex(cur, 2, 6)
        e("s_waitcnt lgkmcnt(2)")
        mfma(S[nxt], KB[nxt], Q, "0")
        rdk(t + 2)
        if extra:
            extra()
        ex(cur, 6, 12)
        smf(VB[cur], S[cur])
        ex(cur, 12, 16)
    e("ds_read_b128 %s, v16" % v(Q, 4))
    rdk(0)
    rdv(0)
    rdk(1)
    e("s_waitcnt lgkmcnt(3)")
    mfma(S[0], KB[0], Q, "0")
    e("s_mov_b32 %s, 0" % sIT)
    e("s_mov_b32 %s, %d" % (sCNT, POLL_LIMIT))
    e("s_nop 7")
    cm("keys of this die first; the other dies' K/V are requested as soon as their flags arrive")
    loc, go, retry, issue, chk3 = (newlab(x) for x in ("loc", "go", "retry", "issue", "chk3"))
    lab(loc)
    e("s_cmp_eq_u32 %s, 0" % sIT)
    e("s_cbranch_scc1 %s" % go)
    e("s_cmp_lg_u32 %s, 0" % ISS)
    e("s_cbranch_scc1 %s" % chk3)
    lab(retry)
    e("s_waitcnt vmcnt(0)")
    e("v_cmp_eq_u64 %s, %s, %s" % (sM0, v(PF + 4, 2), v(vFV, 2)))
    e("v_cmp_eq_u64 vcc, %s, %s" % (v(vPD, 2), v(vFV, 2)))
    e("s_nop 1")
    e("s_and_b64 vcc, vcc, %s" % sM0)
    e("s_cmp_eq_u64 vcc, -1")
    e("s_cbranch_scc1 %s" % issue)
    gflag_load()
    e("s_cmp_lt_u32 %s, 3" % sIT)
    e("s_cbranch_scc1 %s" % go)
    e("s_sub_u32 %s, %s, 1" % (sCNT, sCNT))
    e("s_cbranch_scc0 %s" % retry)
    e("s_endpgm")
    lab(issue)
    fine("k")
    kv_issue()
    kv_issue()
    e("s_mov_b32 %s, 1" % ISS)
    lab(chk3)
    e("s_cmp_lt_u32 %s, 3" % sIT)
    e("s_cbranch_scc1 %s" % go)
    fine("k")
    e("s_waitcnt vmcnt(4)")
    fine("k")
    e("s_barrier")
    fine("k")
    lab(go)
    tile(0)
    tile(1)
    e("v_add_u32 %s, 4096, %s" % (v(AD), v(AD)))
    e("s_add_u32 %s, %s, 1" % (sIT, sIT))
    e("s_cmp_lt_u32 %s, 4" % sIT)
    e("s_cbranch_scc1 %s" % loc)
    fine("a")
    cm("first layer pair, waves 1-3: first touch of Wo / W1 / W2 (one line per lane, spread over all workgroups)")
    e("s_mov_b32 s66, %d" % (1376 * 1024))
    e("s_mov_b32 %s, %d" % (T[1], 43 * 128))
    e("s_cmp_eq_u32 %s, 2" % sW)
    e("s_cselect_b64 s[64:65], s[20:21], s[24:25]")
    e("s_cmp_eq_u32 %s, 1" % sW)
    e("s_cselect_b64 s[64:65], s[16:17], s[64:65]")
    e("s_cselect_b32 s66, %d, s66" % (512 * 1024))
    e("s_cselect_b32 %s, %d, %s" % (T[1], 16 * 128, T[1]))
    e("s_and_b32 s65, s65, 0xffff")
    e("s_mov_b32 s67, 0x20000")
    e("s_mul_i32 %s, %s, s2" % (T[1], T[1]))
    e("v_lshlrev_b32 %s, 7, v0" % v(PF))
    e("s_cmp_eq_u32 %s, 0" % sL)
    e("s_cselect_b32 %s, %d, 99" % (T[8], OPT("ftit", 2)))
    e("s_cmp_eq_u32 %s, 0" % sW)
    e("s_cselect_b32 %s, 99, %s" % (T[8], T[8]))
    cm("lines of the W1 rows that are loaded after attention (128-351, 480-511): half per workgroup of a pair")
    srd(sTMP, 20, 512 * 2752)
    e("s_lshr_b32 %s, %s, 4" % (T[0], sJ))
    addr(T[7], None, 128, [(T[0], 128), (sHW, 32)])
    e("s_cmp_eq_u32 %s, 352" % T[7])
    e("s_cselect_b32 %s, 480, %s" % (T[7], T[7]))
    e("s_mul_i32 %s, %s, 2752" % (T[7], T[7]))
    e("s_mul_i32 %s, %s, 192" % (T[0], sC))
    e("s_add_u32 %s, %s, %s" % (T[7], T[7], T[0]))
    e("v_lshrrev_b32 %s, 1, v0" % v(PF + 1))
    e("v_mul_u32_u24 %s, 2752, %s" % (v(PF + 1), v(PF + 1)))
    e("v_and_b32 %s, 1, v0" % v(PF + 2))
    e("v_lshl_add_u32 %s, %s, 7, %s" % (v(PF + 1), v(PF + 2), v(PF + 1)))
    e("s_mov_b32 %s, 1" % sIT)
    loop = newlab("att")
    L.append(".p2align 6")
    lab(loop)
    for t in range(8):
        if t % 2 == 0:
            e("s_setprio %d" % (3 - t // 2))
        if t == 6:
            e("s_waitcnt vmcnt(%d)" % 4)
            e("s_barrier")
        tile(t, kv_issue_helpers if t == 1 else None)
    e("v_add_u32 %s, 16384, %s" % (v(AD), v(AD)))
    e("s_add_u32 %s, %s, 1" % (sIT, sIT))
    e("s_cmp_lt_u32 %s, 6" % sIT)
    e("s_cbranch_scc1 %s" % loop)
    fine("a")
    cm("last two chunks: stream Wo and part of W1 into the dead K/V space, one piece per tile")
    srd(sTMP, 16, 512 * 1024)
    addr(T[0], None, 0, [(sW, 65536), (sNB, 128)])
    e("s_lshl_b32 %s, %s, 13" % (T[1], sW))

    srd("s[64:67]", 24, 1376 * 1024)
    addr(T[2], None, 0, [(sJ, 344 * 128), (sW, 43 * 128)])

    def w2_lines(trip):
        cm("one line per lane: pull this workgroup's share of W2 into the die's L2")
        e("s_mov_b64 exec, 0x3fffff")
        e("buffer_load_dword %s, %s, s[64:67], %s offen" % (v(PF + 2), v(PF), T[2]))
        e("s_mov_b64 exec, -1")
        e("s_add_u32 %s, %s, %d" % (T[2], T[2], 22 * 128))

    def wo_piece(t):
        e("s_add_u32 m0, %s, %d" % (T[1], 1024 * t))
        e("s_nop 0")
        dma1(VO, T[0], 1)
        e("s_add_u32 %s, %s, 8192" % (T[0], T[0]))
        if t in {0: (2, 5), 2: (6, 7), 3: (7,)}.get(OPT("w2t", 1), ()):
            w2_lines(0)

    def w1_piece(t):
        if t in {1: (1, 3), 3: (0,), 4: (0, 1)}.get(OPT("w2t", 1), ()):
            w2_lines(1)
        for u in ([2 * t, 2 * t + 1] if t < 2 else [t + 2] if t < 4 else []):
            e("s_add_u32 m0, %s, %d" % (T[1], (u // 3) * 22 * 3072 + (u % 3) * 1024))
            e("s_nop 0")
            dma1(VO + 1 + u % 3, T[0], 8)
            if u == 2:
                e("s_add_u32 %s, %s, %d" % (T[0], T[0], 22 * 16 * 2752))
    for trip in range(2):
        for t in range(8):
            if t % 2 == 0:
                e("s_setprio %d" % (3 - t // 2))
            if t == 6 and trip == 0:
                e("s_waitcnt vmcnt(%d)" % (6 if OPT("w2t", 1) else 8))
                e("s_barrier")
            tile(t + 8 * trip, (lambda t=t: wo_piece(t)) if trip == 0 else (lambda t=t: w1_piece(t)))
        if trip == 0:
            addr(T[4], sLB, OF, [(sW, XSTR), (sHEAD, 1024)])
            slot(T[5], FA, [(sW, 32), (sHEAD, 1)])
            srd(sTMP, 20, 512 * 2752)
            addr(T[0], None, 0, [(sW, 16 * 2752), (sC, 192)])
            addr(T[1], None, 65536, [(sW, 3072)])
    e("s_nop 1")
    smf(VB[1] + 4, S[1] + 8)
    e("s_setprio 0")
    e("s_mov_b32 %s, %s" % (T[6], f32(2.0 ** (64 if FORCE_SLOW else -64))))
    e("s_mov_b32 %s, %s" % (T[7], f32(2.0 ** 64)))
    e("s_waitcnt lgkmcnt(0)")
    e("s_nop 7")
    stamp()
    cm("Softmax guard. The loops above used 0 as a stand-in for the row max. That is exact while the row sum")
    cm("stays in [2^-64, 2^64] and the accumulators are finite; otherwise redo this tile with the true max.")
    fin, slow = newlab("att_fin"), newlab("att_slow")
    e("v_cmp_le_f32 %s, %s, %s" % (sM0, T[6], v(O + 8)))
    e("v_cmp_ge_f32 %s, %s, %s" % (sM1, T[7], v(O + 8)))
    e("v_pk_mul_f32 v[18:19], %s, 0 op_sel_hi:[1,0]" % v(O, 2))
    for p in range(1, 4):
        e("v_pk_fma_f32 v[18:19], %s, 0, v[18:19] op_sel_hi:[1,0,1]" % v(O + 2 * p, 2))
    e("s_and_b64 %s, %s, %s" % (sM0, sM0, sM1))
    e("v_cmp_eq_f32 vcc, v18, v19")
    e("s_nop 0")
    e("s_and_b64 %s, %s, vcc" % (sM0, sM0))
    e("s_cmp_eq_u64 %s, -1" % sM0)
    e("s_cbranch_scc0 %s" % slow)
    lab(fin)
    e("v_rcp_f32 v16, %s" % v(O + 8))
    e("s_nop 0")
    for p in range(4):
        e("v_pk_mul_f32 %s, %s, v[16:17] op_sel_hi:[1,0]" % (v(O + 2 * p, 2), v(O + 2 * p, 2)))
    for p in range(4):
        e("v_cvt_pk_bf16_f32 %s, %s, %s" % (v(20 + p), v(O + 2 * p), v(O + 2 * p + 1)))
    lstores(["buffer_store_dwordx4 v[20:23], %s, %s, %s offen" % (v(vL16), sWS, T[4])])
    ns = newlab("ns")
    e("s_cmp_ge_u32 %s, 4" % sW)
    e("s_cbranch_scc1 %s" % ns)
    n512_setup(True)
    lab(ns)
    flag(T[5], 0, local=True)
    e("s_waitcnt vmcnt(1)")
    e("s_barrier")
    keep = L[:]
    del L[:]
    lab(slow)
    l1, l2 = newlab("slow1"), newlab("slow2")
    addr(T[2], None, KVF, [(sL, KVF_L), (sHEAD, 131072)])
    e("v_mov_b32 %s, 0xff800000" % v(CN))
    e("s_mov_b32 %s, 0" % sIT)
    lab(l1)
    e("buffer_load_dwordx4 %s, %s, %s, %s offen sc1" % (v(KB[0], 4), v(vL16), sWS, T[2]))
    e("s_waitcnt vmcnt(0)")
    mfma(S[0], KB[0], Q, "0")
    e("s_nop 15")
    for i in range(8):
        e("v_max3_f32 %s, %s, %s, %s" % (v(CN), v(S[0] + 2 * i), v(S[0] + 2 * i + 1), v(CN)))
    e("s_add_u32 %s, %s, 2048" % (T[2], T[2]))
    e("s_add_u32 %s, %s, 1" % (sIT, sIT))
    e("s_cmp_lt_u32 %s, 64" % sIT)
    e("s_cbranch_scc1 %s" % l1)
    e("v_mov_b32 %s, %s" % (v(CN + 1), v(CN)))
    e("s_nop 1")
    e("v_permlane32_swap_b32 %s, %s" % (v(CN), v(CN + 1)))
    e("s_nop 1")
    e("v_max_f32 %s, %s, %s" % (v(CN), v(CN), v(CN + 1)))
    e("v_sub_f32 %s, 0, %s" % (v(CN), v(CN)))
    for i in range(1, 16):
        e("v_mov_b32 %s, %s" % (v(CN + i), v(CN)))
    for i in range(16):
        e("v_mov_b32 %s, 0" % v(O + i))
    addr(T[2], None, KVF, [(sL, KVF_L), (sHEAD, 131072)])
    e("s_mov_b32 %s, 0" % sIT)
    lab(l2)
    e("buffer_load_dwordx4 %s, %s, %s, %s offen sc1" % (v(KB[0], 4), v(vL16), sWS, T[2]))
    e("s_mov_b64 exec, %s" % sMV)
    e("buffer_load_dwordx4 %s, %s, %s, %s offen offset:1024 sc1" % (v(VB[0], 4), v(vL16), sWS, T[2]))
    e("buffer_load_dwordx4 %s, %s, %s, %s offen offset:1280 sc1" % (v(VB[0] + 4, 4), v(vL16), sWS, T[2]))
    e("s_mov_b64 exec, -1")
    e("s_waitcnt vmcnt(0)")
    mfma(S[0], KB[0], Q, CN)
    e("s_nop 15")
    for i in range(16):
        e("v_exp_f32 %s, %s" % (v(S[0] + i), v(S[0] + i)))
    e("s_nop 1")
    smf(VB[0], S[0])
    smf(VB[0] + 4, S[0] + 8)
    e("s_nop 15")
    e("s_add_u32 %s, %s, 2048" % (T[2], T[2]))
    e("s_add_u32 %s, %s, 1" % (sIT, sIT))
    e("s_cmp_lt_u32 %s, 64" % sIT)
    e("s_cbranch_scc1 %s" % l2)
    e("s_branch %s" % fin)
    TAIL.extend(L)
    L[:] = keep
    stamp()


def ffn1_setup():
    e("v_and_b32 %s, 15, v0" % v(vPO))
    e("v_lshlrev_b32 %s, 3, %s" % (v(vPO), v(vPO)))
    slot(T[0], FO, [(sTBW, 16)])
    addr(T[1], sLB, X1F, [(sTBW, XSTR)])
    addr(T[2], sLB, ST1, [(sTBW, 4096)])
    e("v_add_u32 %s, %d, %s" % (v(vCA), CONST, v(vH16)))
    tr_rows(vW2, 192)
    e("v_add_u32 %s, 0x10000, %s" % (v(vW0), v(vW2)))
    e("v_add_u32 %s, %d, %s" % (v(vW1), 21 * 3072, v(vW0)))


def n512_setup(wo):
    J = 16 if wo else 39
    AK, AS = vACC, vACC + 16
    if not wo:
        addr(T[0], None, CONST + 384, [(sKH, 512)])
        e("v_add_u32 %s, %s, %s" % (v(vPO), T[0], v(vH16)))
        for i in range(4):
            e("ds_read_b128 %s, %s offset:%d" % (v(AS + 4 * i, 4), v(vPO), 32 * i))
    unpack(AK, vRES, 8)
    tr_rows(vW0, 128)
    e("v_bfe_u32 %s, v0, 3, 1" % v(vPD))
    e("v_xor_b32 %s, %s, %s" % (v(vPD), sKH, v(vPD)))
    e("v_lshl_or_b32 %s, %s, 6, %s" % (v(vW0), v(vPD), v(vW0)))
    e("s_mul_i32 %s, %s, %d" % (T[0], sKH, J * 2048))
    e("v_add_u32 %s, %s, %s" % (v(vW0), T[0], v(vW0)))
    e("v_xor_b32 %s, 64, %s" % (v(vW1), v(vW0)))
    if not wo:
        e("v_add_u32 %s, 0x10000, %s" % (v(vW2), v(vW0)))
        e("v_add_u32 %s, 0x10000, %s" % (v(vW3), v(vW1)))
    if wo:
        e("v_and_b32 %s, 15, v0" % v(vPO))
        slot(T[0], FA, [(sTBN, 32), (sKH, 16)])
        addr(T[1], sLB, OF, [(sTBN, XSTR), (sKH, 16384)])
    else:
        e("v_and_b32 %s, 7, v0" % v(vPO))
        slot(T[0], FH, [(sTBN, 16), (sKH, 7)])
        addr(T[1], sLB, HF, [(sTBN, HSTR), (sKH, 43 * 1024)])
    e("v_lshlrev_b32 %s, 3, %s" % (v(vPO), v(vPO)))
    if not wo:
        e("s_waitcnt lgkmcnt(0)")
        for p in range(8):
            e("v_pk_add_f32 %s, %s, %s" % (v(AK + 2 * p, 2), v(AK + 2 * p, 2), v(AS + 2 * p, 2)))


def n512(kind):
    wo = kind == "wo"
    ph = "o" if wo else "g"
    cm("================ %s" % ("output projection + residual" if wo else "MLP down projection + residual"))
    NS, J = (16, 16) if wo else (43, 39)
    ND = OPT("nd", 10 if wo else 13)
    AK, AS = vACC, vACC + 16
    hl, done = newlab("n_h"), newlab("n_done")
    e("s_cmp_ge_u32 %s, 4" % sW)
    e("s_cbranch_scc1 %s" % hl)
    if not wo:
        e("s_barrier")

    def rd(j, i):
        jj = j % J
        base, off = ((vW0, vW1)[i], jj * 2048) if jj < 32 else ((vW2, vW3)[i], (jj - 32) * 2048)
        d = vWB + (j % 3) * 8 + 4 * i
        e("ds_read_b64_tr_b16 %s, %s offset:%d" % (v(d, 2), v(base), off))
        e("ds_read_b64_tr_b16 %s, %s offset:%d" % (v(d + 2, 2), v(base), off + 1024))
    for j in range(2):
        for i in range(2):
            rd(j, i)
    poll(T[0])
    stamp()
    areg = lambda j: vA + 4 * (j % 32)
    load_frags(T[1], 0, ND, areg)
    fine(ph)

    def late_addresses():
        e("s_and_b32 %s, %s, 1" % (T[2], sW))
        if wo:
            addr(T[0], None, 0, [(T[2], 4096), (sKH, 32768)])
            e("s_xor_b32 %s, %s, 32768" % (T[3], T[0]))
            publish_addr(X1F, ST1, 0, FO)
        else:
            addr(T[0], None, 98304, [(T[2], 4096), (sKH, 8192)])
            e("s_xor_b32 %s, %s, 8192" % (T[3], T[0]))
            publish_addr(XF, ST, LFL_L * 8, FX)
        e("v_add_u32 %s, %s, %s" % (v(vPO), T[0], v(vL16)))
        e("v_add_u32 %s, %s, %s" % (v(vPD), T[3], v(vL16)))
    sh = capture(late_addresses)
    for j in range(NS):
        issued = min(NS, ND + j)
        if not wo and j == J - 2:
            e("s_barrier")
        if j < NS - 1:
            last2 = j == NS - 2
            e("s_waitcnt vmcnt(%d) lgkmcnt(%d)" % (0 if last2 else issued - j - 1, 0 if last2 else 4))
        if j in ((0, 4, 8, 15) if wo else (0, 11, 22, 42)):
            fine(ph)
        seq = [(j, 0), (j, 1)] if j < NS - 2 else [(j, 1), (j + 1, 1)] if j == NS - 2 else [(j - 1, 0), (j, 0)]
        for m, (jj, i) in enumerate(seq):
            acc = AK + 16 * i
            mfma(acc, vWB + (jj % 3) * 8 + 4 * i, areg(jj), "0" if (jj == 0 and i == 1) else acc)
            if j + 2 < NS:
                rd(j + 2, i)
            if m == 0 and ND + j < NS:
                load_frags(T[1], ND + j, 1, areg, False)
            if j >= 2:
                g = (j - 2) * 2 + m
                for x in sh[2 * g:2 * g + 2]:
                    e(x)
        if j == (8 if wo else NS - J - 1):
            e("s_barrier")
    assert len(sh) <= 4 * (NS - 2)
    e("s_nop 9")
    for i in range(4):
        e("ds_write_b128 %s, %s offset:%d" % (v(vPO), v(AS + 4 * i, 4), 1024 * i))
    e("s_waitcnt lgkmcnt(0)")
    e("s_barrier")
    stamp()
    for i in range(4):
        e("ds_read_b128 %s, %s offset:%d" % (v(AS + 4 * i, 4), v(vPD), 1024 * i))
    for i in range(4):
        e("s_waitcnt lgkmcnt(%d)" % (3 - i))
        for p in (2 * i, 2 * i + 1):
            e("v_pk_add_f32 %s, %s, %s" % (v(AK + 2 * p, 2), v(AK + 2 * p, 2), v(AS + 2 * p, 2)))
    for p in range(8):
        e("v_cvt_pk_bf16_f32 %s, %s, %s" % (v(vRES + p), v(AK + 2 * p), v(AK + 2 * p + 1)))
    if wo:
        publish_x(AK, 20, ffn1_setup)
    else:
        last = newlab("last")
        e("s_cmp_lg_u32 %s, 0" % sL)
        e("s_cbranch_scc1 %s" % last)
        publish_x(AK, 20, lambda: qkv_setup(True))
        e("s_branch %s" % done)
        lab(last)
        srd(sTMP, 28, 2048 * 1024)
        e("v_and_b32 v16, 31, v0")
        e("v_lshlrev_b32 v16, 10, v16")
        e("v_add_u32 v16, v16, %s" % v(vH16))
        addr(T[0], None, 0, [(sXCD, 262144), (sTBN, 32768), (sNT, 64)])
        for g in range(2):
            e("v_permlane32_swap_b32 %s, %s" % (v(vRES + 4 * g), v(vRES + 4 * g + 2)))
            e("v_permlane32_swap_b32 %s, %s" % (v(vRES + 4 * g + 1), v(vRES + 4 * g + 3)))
        for g in range(2):
            e("buffer_store_dwordx4 %s, v16, %s, %s offen offset:%d" % (v(vRES + 4 * g, 4), sTMP, T[0], 32 * g))
    e("s_branch %s" % done)
    lab(hl)
    if wo:
        voff_192(44)
        e("s_lshl_b32 %s, %s, 2" % (T[3], sHW))
        e("s_min_u32 %s, %s, 10" % (T[3], T[3]))
        addr(T[0], None, 8 * 16 * 2752, [(T[3], 16 * 2752), (sC, 192)])
        addr(T[1], None, 65536 + 8 * 3072, [(T[3], 3072)])
        dma_w1(2)
        e("s_mov_b32 %s, %s" % (T[3], T[0]))
        e("s_mov_b32 %s, %s" % (T[4], T[1]))
        w0, w1, w2 = newlab("wcs"), newlab("wcs"), newlab("wcs")
        e("s_cmp_lg_u32 %s, 0" % sL)
        e("s_cbranch_scc1 %s" % w0)
        tr_rows(43, 192)
        colsum_begin()
        addr(T[0], None, 65536, [(sHW, 2 * 3072)])
        colsum_w1()
        addr(T[0], None, 65536 + 22 * 3072, [(sHW, 2 * 3072)])
        colsum_w1()
        lab(w0)
        e("s_mov_b32 %s, %s" % (T[0], T[3]))
        e("s_mov_b32 %s, %s" % (T[1], T[4]))
        e("s_barrier")
        dma_w1(2)
        e("s_barrier")
        e("s_cmp_lg_u32 %s, 3" % sHW)
        e("s_cbranch_scc1 %s" % w1)
        addr(T[0], None, 30 * 16 * 2752, [(sC, 192)])
        e("s_mov_b32 %s, %d" % (T[1], 58 * 1024))
        dma_w1(2)
        lab(w1)
        e("s_cmp_lg_u32 %s, 0" % sL)
        e("s_cbranch_scc1 %s" % done)
        cm("own late k-steps: 8-11 | 12-15 | 16-19 | 20-21 and 30-31")
        e("s_and_b32 %s, %s, 1" % (T[4], sHW))
        addr(T[0], None, 65536 + 8 * 3072, [(sHW, 4 * 3072)])
        e("s_add_u32 %s, %s, %d" % (T[3], T[0], 2 * 3072))
        e("s_cmp_eq_u32 %s, 3" % sHW)
        e("s_cselect_b32 %s, %d, %s" % (T[3], 58 * 1024, T[3]))
        e("s_waitcnt vmcnt(0)")
        colsum_w1()
        e("s_mov_b32 %s, %s" % (T[0], T[3]))
        colsum_w1()
        colsum_partial()
        e("v_lshlrev_b32 v47, 16, v224")
        addr(T[0], None, B1_L, [(sHW, 128)])
        e("v_add_u32 v42, %s, v41" % T[0])
        e("ds_write_b32 v42, v47")
        e("v_lshlrev_b32 v49, 16, v225")
        addr(T[0], None, CONST + 384, [(T[4], 512)])
        e("v_add_u32 v42, %s, v41" % T[0])
        e("ds_write_b32 v42, v49")
    else:
        e("s_waitcnt vmcnt(0)")
        fine("w")
        e("s_barrier")
        fine("w")
        e("s_lshr_b32 %s, %s, 1" % (T[3], sHW))
        e("s_and_b32 %s, %s, 1" % (T[4], sHW))
        addr(T[0], None, 78 * 8192, [(T[3], 86 * 8192), (T[4], 4 * 8192), (sNB, 128)])
        addr(T[1], None, 0, [(T[3], 78 * 1024), (T[4], 4096)])
        e("s_barrier")
        for k in range(4):
            e("s_add_u32 m0, %s, %d" % (T[1], 1024 * k))
            e("s_nop 0")
            dma1(40, T[0], 4)
            e("s_add_u32 %s, %s, 8192" % (T[0], T[0]))
        e("s_waitcnt vmcnt(0)")
        e("s_barrier")
        stash_addr()
        e("s_barrier")
        e("s_cmp_lg_u32 %s, 0" % sL)
        e("s_cbranch_scc1 %s" % done)
        for k in range(24):
            e("ds_write_b128 v42, %s offset:%d" % (v(vSTASH + 4 * k, 4), 1024 * k))
    lab(done)
    stamp()


def ffn1():
    cm("================ MLP up projection + GELU")
    hl, done = newlab("f1_h"), newlab("f1_done")
    e("s_cmp_ge_u32 %s, 4" % sW)
    e("s_cbranch_scc1 %s" % hl)
    idle = newlab("f1_idle")
    e("s_cmp_eq_u32 %s, 15" % sC)
    e("s_cbranch_scc1 %s" % idle)
    setup = newlab("f1_setup")
    TAIL.extend([idle + ":"] + ["    s_barrier"] * 3 + ["    s_branch " + setup])

    lds = Lds()

    def rd(ks, i):
        d = vWB + (ks % 3) * 12 + 4 * i
        base, off = (vW0, ks * 3072) if ks < 21 else (vW1, (ks - 21) * 3072) if ks < 30 else (vW2, 58 * 1024 + (ks - 30) * 3072)
        lds.op(("w", ks), "ds_read_b64_tr_b16 %s, %s offset:%d" % (v(d, 2), v(base), off + 64 * i))
        lds.op(("w", ks), "ds_read_b64_tr_b16 %s, %s offset:%d" % (v(d + 2, 2), v(base), off + 64 * i + 1536))

    def wait(name):
        n = lds.need(name)
        if n is not None:
            e("s_waitcnt lgkmcnt(%d)" % n)
    for ks in range(2):
        for i in range(3):
            rd(ks, i)
    poll(T[0])
    stamp()

    def item(n):
        if n < 32:
            load_frags(T[1], n, 1, lambda j: vA + 4 * j, n % 4 == 0)
        else:
            e("buffer_load_dwordx4 %s, %s, %s, %s offen offset:%d sc1" % (v(vSTS + 4 * (n - 32), 4), v(vL16), sWS, T[2], 1024 * (n - 32)))
    sched = [[ks + DEPTH] if ks + DEPTH < 32 else [] for ks in range(32)]
    for k in range(4):
        sched[3 + 2 * k].append(32 + k)
    order = list(range(DEPTH))
    for n in range(DEPTH):
        item(n)
    fine("f")
    c0 = -2.0 * 1.4426950408889634 * 0.7978845608028654
    GC = vSTS + 4

    def early():
        addr(T[4], sLB, HF, [(sTBW, HSTR), (sC, 6144)])
        e("s_add_u32 %s, %s, 4096" % (T[5], T[4]))
        slot(T[6], FH, [(sTBW, 16), (sC, 1)])
    mid = stats_code(True) + ["v_mul_f32 %s, %s, %s" % (v(vMU), v(vMU), v(vR)), "v_mov_b32 %s, %s" % (v(GC), f32(c0)),
                              "v_mov_b32 %s, %s" % (v(GC + 1), f32(c0 * 0.044715)), "v_mov_b32 %s, 1.0" % v(GC + 2)]
    sh = [(10, lambda x=x: e(x)) for x in capture(early)] + [(17, lambda x=x: e(x)) for x in mid]
    cm("bias' = b1 - mean*rstd*colsum is formed under the last MFMAs, in dead activation registers")
    rdc, fmc = [], []
    for t in range(3):
        rdc.append([(22 if t < 2 else 24, lambda t=t, k=k: lds.op(("c", t), "ds_read_b128 %s, %s offset:%d" % (
            v(16 + 32 * t + 4 * k, 4), v(vCA), 512 + 512 * (k // 4) + t * 128 + 32 * (k % 4)))) for k in range(8)])
        fmc.append([(22, lambda t=t: wait(("c", t)))] + [(22, lambda t=t, r=r: e("v_fma_f32 %s, -%s, %s, %s" % (
            v(32 + 32 * t + r), v(vMU), v(16 + 32 * t + r), v(32 + 32 * t + r)))) for r in range(16)])
    mix = lambda a, b: [x for k in range(max(len(a), len(b))) for x in a[2 * k:2 * k + 2] + b[k:k + 1]]
    sh += rdc[0] + rdc[1][:4] + mix(fmc[0], rdc[1][4:]) + mix(fmc[1], rdc[2]) + fmc[2]
    pos = 0
    for ks in range(32):
        if ks in (6, 22):
            e("s_barrier")
        newest = max(order.index(n) for n in ([ks, 35] if ks >= 17 else [ks]))
        lg = lds.need(("w", ks))
        e("s_waitcnt vmcnt(%d)%s" % (len(order) - 1 - newest, "" if lg is None else " lgkmcnt(%d)" % lg))
        if ks in FINEKS:
            fine("f")
        for i in range(3):
            mfma(vACC + 16 * i, vWB + (ks % 3) * 12 + 4 * i, vA + 4 * ks, "0" if ks == 0 else vACC + 16 * i)
            if ks + 2 < 32:
                rd(ks + 2, i)
            if i < len(sched[ks]):
                item(sched[ks][i])
                order.append(sched[ks][i])
            for _ in range(3 if ks < 30 else 5):
                if pos < len(sh) and ks >= sh[pos][0]:
                    sh[pos][1]()
                    pos += 1
    for x in sh[pos:]:
        x[1]()
    stamp()
    e("s_nop %d" % max(0, 9 - len(sh[pos:])))
    Z, P = 120, vWB
    for t in range(3):
        acc, b1 = vACC + 16 * t, 32 + 32 * t
        for p in range(8):
            e("v_pk_fma_f32 %s, %s, %s, %s op_sel_hi:[1,0,1]" %
              (v(acc + 2 * p, 2), v(acc + 2 * p, 2), v(vR, 2), v(b1 + 2 * p, 2)))
        for p in range(8):
            e("v_pk_mul_f32 %s, %s, %s" % (v(Z + 2 * p, 2), v(acc + 2 * p, 2), v(acc + 2 * p, 2)))
        for p in range(8):
            e("v_pk_fma_f32 %s, %s, %s, %s op_sel:[0,1,0] op_sel_hi:[1,1,0]" %
              (v(Z + 2 * p, 2), v(Z + 2 * p, 2), v(GC, 2), v(GC, 2)))
        for p in range(8):
            e("v_pk_mul_f32 %s, %s, %s" % (v(Z + 2 * p, 2), v(Z + 2 * p, 2), v(acc + 2 * p, 2)))
        for i in range(16):
            e("v_exp_f32 %s, %s" % (v(Z + i), v(Z + i)))
        for p in range(8):
            e("v_pk_add_f32 %s, %s, %s op_sel_hi:[1,0]" % (v(Z + 2 * p, 2), v(Z + 2 * p, 2), v(GC + 2, 2)))
        for i in range(16):
            e("v_rcp_f32 %s, %s" % (v(Z + i), v(Z + i)))
        for p in range(8):
            e("v_pk_mul_f32 %s, %s, %s" % (v(acc + 2 * p, 2), v(acc + 2 * p, 2), v(Z + 2 * p, 2)))
        for p in range(8):
            e("v_cvt_pk_bf16_f32 %s, %s, %s" % (v(P + 8 * t + p), v(acc + 2 * p), v(acc + 2 * p + 1)))
        lstores(["buffer_store_dwordx4 %s, %s, %s, %s offen offset:%d" %
                 (v(P + 8 * t + 4 * hh, 4), v(vL16), sWS, T[4 + (2 * t + hh) // 4], ((2 * t + hh) % 4) * 1024) for hh in range(2)])
        if t == 0:
            e("s_barrier")
        if t != 1:
            fine("f")
    lab(setup)
    n512_setup(False)
    e("s_cmp_eq_u32 %s, 15" % sC)
    e("s_cbranch_scc1 %s" % done)
    flag(T[6], 0, local=True)
    e("s_branch %s" % done)
    lab(hl)
    h1 = newlab("fh1")
    voff_128(40)
    srd(sTMP, 24, 1376 * 1024)
    e("s_waitcnt vmcnt(0) lgkmcnt(0)")
    e("s_barrier")
    e("s_cmp_lg_u32 %s, 0" % sL)
    e("s_cbranch_scc1 %s" % h1)
    colsum_combine(CS1_L)
    e("s_waitcnt lgkmcnt(0)")
    lab(h1)
    E0 = OPT("e0", 4)
    if E0:
        dma_w2(0, 0, E0, OPT("e0p", 1) or -1)
    e("s_barrier")
    fine("w")
    dma_w2(86, 78 * 1024, 7, None)
    dma_w2(4 * E0, 4 * E0 * 1024, 14 - E0, None)
    dma_w2(86 + 28, (78 + 28) * 1024, 6, None)
    fine("w")
    e("s_barrier")
    fine("w")
    dma_w2(54, 54 * 1024, 6)
    dma_w2(86 + 50, (78 + 50) * 1024, 7)
    fine("w")
    lab(done)
    stamp()


def epilogue():
    e("s_add_u32 %s, %s, 1" % (sL, sL))
    e("s_add_u32 %s, %s, %d" % (sFB, sFB, LFL_L * 8))
    e("s_cmp_lt_u32 %s, 2" % sL)
    e("s_cbranch_scc1 L_layer")
    if PROFILE:
        e("s_memrealtime s[22:23]")
        e("s_waitcnt lgkmcnt(0)")
        stamp("s23")
        e("s_lshl_b32 %s, s2, 3" % T[0])
        e("s_add_u32 %s, %s, %s" % (T[0], T[0], sW))
        e("s_lshl_b32 %s, %s, 8" % (T[0], T[0]))
        e("s_add_u32 %s, %s, 0x%x" % (T[0], T[0], TSB))
        e("s_mov_b64 exec, 1")
        for i, r in enumerate([68, 18, 19] + list(range(STAMP0, STAMP0 + 30)) + [22, 23, 0, 1]):
            e("v_mov_b32 v16, s%d" % r)
            e("buffer_store_dword v16, off, %s, %s offset:%d" % (sWS, T[0], 4 * i))
        e("s_mov_b64 exec, 0xff")
        e("v_lshlrev_b32 v16, 2, v0")
        e("buffer_store_dword v5, v16, %s, %s offen offset:148" % (sWS, T[0]))
        e("s_mov_b64 exec, -1")
    if "--dbg" in sys.argv:
        sk = newlab("dbg")
        e("s_or_b32 %s, s2, %s" % (T[0], sW))
        e("s_cmp_lg_u32 %s, 0" % T[0])
        e("s_cbranch_scc1 %s" % sk)
        srd(sTMP, 30, 256)
        e("s_mov_b64 exec, 1")
        for i, r in enumerate([19, 72, 73, 74, 75, 76, 77, 80, 83, 86, 89, 90, 91, 95, 98, 101]):
            e("s_sub_u32 %s, s%d, s18" % (T[0], r))
            e("v_mov_b32 v16, %s" % T[0])
            e("buffer_store_dword v16, off, %s, 0 offset:%d" % (sTMP, 4 * i))
        e("s_mov_b64 exec, -1")
        lab(sk)
    if OPT("hold", 0):
        hl = newlab("hold")
        lab(hl)
        e("s_memrealtime s[70:71]")
        e("s_waitcnt lgkmcnt(0)")
        e("s_sub_u32 s70, s70, s68")
        e("s_cmp_lt_u32 s70, %d" % OPT("hold", 0))
        e("s_cbranch_scc1 %s" % hl)
    cm("advance the hand-off tag for the next launch")
    e("s_or_b32 %s, s2, %s" % (T[0], sW))
    e("s_cmp_lg_u32 %s, 0" % T[0])
    e("s_cbranch_scc1 L_end")
    e("s_mov_b64 exec, 1")
    e("buffer_store_dword %s, off, %s, 0" % (v(vFV), sWS))
    lab("L_end")
    e("s_endpgm")
    L.extend(TAIL)


HEADER = open(f"cdna_kernels/{NAME}.s.ref").read().split("; Override launch")[0]


OVERVIEW = """;
; Generated by gen/gen.py (hand-written generator). One persistent launch, one 8-wave workgroup per CU.
; Hand-offs: payload stores, vmcnt wait, then an 8-byte flag {tag, ~tag}; tag = ws[0] + 16 differs per launch.
;   Every workgroup reports the die it runs on. If a die group shares one die its hand-offs use plain stores
"""


def main():
    prologue()
    p0()
    lab("L_layer")
    qkv()
    attention()
    n512("wo")
    ffn1()
    n512("f2")
    epilogue()
    k = NAME + "_kernel"
    out = HEADER
    out += "; @launch grid=(256,1,1) block=(512,1,1) lds=%d\n" % LDS_BYTES
    out += OVERVIEW
    out += '.amdgcn_target "amdgcn-amd-amdhsa--gfx950"\n.text\n.globl %s\n.p2align 8\n.type %s,@function\n%s:\n' % (k, k, k)
    out += "\n".join(L) + "\n"
    out += """.section .rodata,"a"
.p2align 6
.amdhsa_kernel %s
  .amdhsa_next_free_vgpr 256
  .amdhsa_next_free_sgpr 102
  .amdhsa_accum_offset 256
  .amdhsa_group_segment_fixed_size 0
  .amdhsa_kernarg_size 88
  .amdhsa_user_sgpr_count 2
  .amdhsa_user_sgpr_kernarg_segment_ptr 1
  .amdhsa_system_sgpr_workgroup_id_x 1
.end_amdhsa_kernel
""" % k
    open(OUT, "w").write(out)
    import subprocess
    r = subprocess.run([sys.executable, "hazard.py", OUT], capture_output=True, text=True).stdout
    if not r.strip().endswith("violations 0"):
        print(r)


main()
```

```python
import struct
import sys

NAME = "interleave_layers__softmax_full_mha__mixer_channel_mlp__prompt"
PROFILE = "--prof" in sys.argv
CLK = "s_memrealtime" if "--rt" in sys.argv else "s_memtime"
FORCE_SLOW = "--slow" in sys.argv
FORCE_GLOBAL = "--global" in sys.argv
OUT = [a for a in sys.argv[1:] if not a.startswith("--")]
OUT = OUT[0] if OUT else f"cdna_kernels/{NAME}.s"


def OPT(name, default):
    a = [x.split("=")[1] for x in sys.argv if x.startswith("--%s=" % name)]
    return int(a[0]) if a else default


def f32(x):
    return "0x%08x" % struct.unpack("<I", struct.pack("<f", x))[0]


WS_SIZE = 0x10000000
FLG = 0x100000
FI = 0
GFL, GFL_L = 0xA00000, 0x100000
KVF, KVF_L = 0x200000, 0x400000
ARENA, ARENA_X = 0x1000000, 0x200000
XSTR, HSTR = 33 * 1024, 97 * 1024
XF, OF, BLK, ST, LFL = 0, 0x48000, 0x90000, 0x158000, 0x160000
X1F, ST1, HF, QF, KVL = XF, ST, BLK, BLK, BLK + 32768
FX, FQ, FA, FO, FH, LFL_L = 0, 128, 256, 512, 640, 768
TSB = 0x4000000
DEPTH = OPT("depth", 10)
PACE = OPT("pace", 5)
RED = 140 * 1024
CONST = 156 * 1024
CSQ_L, CS1_L, B1_L, STAT_L, PART_L = CONST, CONST + 512, CONST + 1024, CONST + 1536, CONST + 2560
MODE_L = B1_L + 400
LDS_BYTES = 160 * 1024
sWS, sTMP = "s[4:7]", "s[8:11]"
sW, sNONCE, sL, sLB, sFB = "s34", "s35", "s36", "s37", "s38"
sXCD, sJ, sTBW, sC, sTBN, sNB, sKH, sNT, sHEAD, sQB = ("s%d" % i for i in range(39, 49))
sHW = "s49"
T = ["s%d" % i for i in range(50, 60)]
sCNT, sIT = "s60", "s61"
sMV = "s[62:63]"
sM0, sM1 = "s[64:65]", "s[66:67]"
sMODE = "s3"
STAMP0 = 72
vLANE, vL16, vFV, vPO, vT5, vPD = 0, 1, 2, 4, 5, 6
vRES = 8
vA, vACC, vWB, vSTS = 16, 144, 192, 228
vW0, vW1, vMU, vW2, vR, vW3, vRQ, vCA, vTR, vK16, vVOF, vH16 = 244, 245, 246, 247, 248, 249, 250, 251, 252, 253, 254, 255
vSTASH = 128
QL = 128 * 1024
POLL_LIMIT = 1 << 16

L = []
TAIL = []
uid = [0]
nstamp = [0]


def e(s):
    L.append("    " + s)


def lab(n):
    L.append(n + ":")


def cm(s):
    L.append("    ; " + s)


def v(i, n=1):
    return "v%d" % i if n == 1 else "v[%d:%d]" % (i, i + n - 1)


def capture(f):
    n = len(L)
    f()
    out = [x.strip() for x in L[n:]]
    del L[n:]
    return out


def newlab(p):
    uid[0] += 1
    return "L_%s_%d" % (p, uid[0])


def stamp(fixed=None):
    if not PROFILE:
        return
    e(CLK + " s[70:71]")
    e("s_waitcnt lgkmcnt(0)")
    if fixed:
        e("s_mov_b32 %s, s70" % fixed)
        return
    e("s_mul_i32 s69, %s, 15" % sL)
    e("s_add_u32 m0, s69, %d" % nstamp[0])
    e("s_nop 1")
    e("s_movreld_b32 s%d, s70" % STAMP0)
    nstamp[0] += 1
    assert nstamp[0] <= 15


FINE = [a.split("=")[1] for a in sys.argv if a.startswith("--fine=")]
FINE = FINE[0] if FINE else None
nfine = [0]
FINEKS = eval([a.split('=')[1] for a in sys.argv if a.startswith('--ks=')][0]) if any(a.startswith('--ks=') for a in sys.argv) else (0, 8, 16, 31)


def fine(phase):
    if not PROFILE or FINE != phase:
        return
    e(CLK + " s[70:71]")
    e("s_waitcnt lgkmcnt(0)")
    sk = newlab("fs")
    e("s_cmp_lg_u32 %s, %d" % (sL, 0 if "--l0" in sys.argv else 1))
    e("s_cbranch_scc1 %s" % sk)
    e("v_writelane_b32 v5, s70, %d" % nfine[0])
    lab(sk)
    nfine[0] += 1


def srd(dst, lo, size):
    b = int(dst[2:dst.index(":")])
    e("s_mov_b32 s%d, s%d" % (b, lo))
    e("s_and_b32 s%d, s%d, 0xffff" % (b + 1, lo + 1))
    e("s_mov_b32 s%d, %s" % (b + 2, size if isinstance(size, str) else hex(size)))
    e("s_mov_b32 s%d, 0x20000" % (b + 3))


def poll(soff):
    a, b = newlab("poll"), newlab("pok")
    regs = (vPD, 16) if OPT("p2", 1) else (vPD,)
    ld = lambda r: e("buffer_load_dwordx2 %s, %s, %s, %s offen sc1" % (v(r, 2), v(vPO), sWS, soff))
    e("s_mov_b32 %s, %d" % (sCNT, POLL_LIMIT))
    if len(regs) == 2:
        ld(regs[0])
    lab(a)
    for k, r in enumerate(regs):
        ld(regs[(k + 1) % len(regs)])
        e("s_waitcnt vmcnt(%d)" % (len(regs) - 1))
        e("v_cmp_eq_u64 vcc, %s, %s" % (v(r, 2), v(vFV, 2)))
        e("s_nop 0")
        e("s_cmp_eq_u64 vcc, -1")
        e("s_cbranch_scc1 %s" % b)
    e("s_sub_u32 %s, %s, 1" % (sCNT, sCNT))
    e("s_cbranch_scc0 %s" % a)
    e("s_endpgm")
    lab(b)


def lstores(lines):
    g, d = newlab("wt"), newlab("wtd")
    e("s_cmp_eq_u32 %s, 0" % sMODE)
    e("s_cbranch_scc1 %s" % g)
    for x in lines:
        e(x)
    lab(d)
    TAIL.append(g + ":")
    for x in lines:
        TAIL.append("    " + x + (" sc1" if x.startswith("buffer_store") else ""))
    TAIL.append("    s_branch " + d)


def flag(soff, n=0, local=False):
    if n is not None:
        e("s_waitcnt vmcnt(%d)" % n)
    if local:
        e("s_mov_b64 exec, 1")
        lstores(["buffer_store_dwordx2 %s, off, %s, %s" % (v(vFV, 2), sWS, soff)])
    else:
        e("v_lshlrev_b32 %s, 3, v0" % v(vPD))
        e("s_mov_b64 exec, 0xffff")
        e("buffer_store_dwordx2 %s, %s, %s, %s offen sc1" % (v(vFV, 2), v(vPD), sWS, soff))
    e("s_mov_b64 exec, -1")


def mode_poll(first=False):
    a, b, glob, out = newlab("mp"), newlab("mpok"), newlab("mpg"), newlab("mpo")
    e("v_and_b32 %s, 31, v0" % v(vPD))
    e("v_lshlrev_b32 %s, 10, %s" % (v(vPD), v(vPD)))
    addr(T[3], None, FLG + FI * 128, [(sXCD, 128)])
    e("v_add_u32 %s, %s, %s" % (v(vPD), T[3], v(vPD)))
    if first:
        e("v_add_u32 %s, %s, %s" % (v(vPD + 1), T[0], v(vPO)))
        e("v_cmp_gt_u32 vcc, 32, v0")
        e("s_nop 1")
        e("v_cndmask_b32 v60, %s, %s, vcc" % (v(vPD), v(vPD + 1)))
    e("s_getreg_b32 %s, hwreg(HW_REG_XCC_ID, 0, 4)" % T[3])
    e("s_mov_b32 %s, %d" % (sCNT, POLL_LIMIT))
    e("s_mov_b32 %s, 1" % sMODE)
    lab(a)
    e("buffer_load_dwordx2 %s, v60, %s, 0 offen sc1" % (v(vPD, 2), sWS))
    e("s_waitcnt vmcnt(0)")
    e("v_xor_b32 %s, %s, %s" % (v(vPD + 1), v(vPD + 1), v(vFV + 1)))
    e("v_cmp_eq_u32 %s, %s, %s" % (sM0, v(vPD), v(vFV)))
    e("v_cmp_eq_u32 %s, %s, %s" % (sM1, T[3], v(vPD + 1)))
    e("v_cmp_gt_u32 vcc, 16, %s" % v(vPD + 1))
    e("s_nop 1")
    e("s_and_b64 %s, %s, %s" % (sM1, sM1, sM0))
    e("s_and_b64 vcc, vcc, %s" % sM0)
    if not FORCE_GLOBAL:
        e("s_cmp_eq_u64 %s, -1" % sM1)
        e("s_cbranch_scc1 %s" % out)
    e("s_cmp_eq_u32 vcc_hi, -1")
    e("s_cbranch_scc0 %s" % b)
    if not FORCE_GLOBAL:
        e("s_cmp_eq_u32 s67, -1")
        e("s_cbranch_scc0 %s" % glob)
    else:
        e("s_branch %s" % glob)
    lab(b)
    e("s_sub_u32 %s, %s, 1" % (sCNT, sCNT))
    e("s_cbranch_scc0 %s" % a)
    e("s_endpgm")
    lab(glob)
    e("s_mov_b32 %s, 0" % sMODE)
    if first:
        e("v_xor_b32 %s, 31, %s" % (v(vFV + 1), v(vFV + 1)))
        publish_addr(XF, ST, 0, FX)
        publish_x(None, 84)
        poll(T[0])
        e("v_xor_b32 %s, 31, %s" % (v(vFV + 1), v(vFV + 1)))
    lab(out)


def slot(dst, base, terms):
    e("s_add_u32 %s, %s, %d" % (dst, sFB, base * 8))
    for r, m in terms:
        e("s_mul_i32 %s, %s, %d" % (T[9], r, m * 8))
        e("s_add_u32 %s, %s, %s" % (dst, dst, T[9]))


def addr(dst, base_reg, const, terms):
    if base_reg is None:
        e("s_mov_b32 %s, 0x%x" % (dst, const))
    else:
        e("s_add_u32 %s, %s, 0x%x" % (dst, base_reg, const))
    for r, m in terms:
        e("s_mul_i32 %s, %s, %d" % (T[9], r, m))
        e("s_add_u32 %s, %s, %s" % (dst, dst, T[9]))


def load_frags(sg, first, n, reg_of, rebase=True):
    for j in range(first, first + n):
        if j % 4 == 0 or (j == first and rebase):
            e("s_add_u32 %s, %s, %d" % (T[8], sg, (j // 4) * 4096))
        e("buffer_load_dwordx4 %s, %s, %s, %s offen offset:%d sc1" %
          (v(reg_of(j), 4), v(vL16), sWS, T[8], (j % 4) * 1024))


def mfma(d, a, b, c):
    e("v_mfma_f32_32x32x16_bf16 %s, %s, %s, %s" % (v(d, 16), v(a, 4), v(b, 4), c if isinstance(c, str) else v(c, 16)))


def half_sum(a, b):
    e("s_nop 1")
    e("v_permlane32_swap_b32 %s, %s" % (v(a), v(b)))
    e("s_nop 1")
    e("v_add_f32 %s, %s, %s" % (v(a), v(a), v(b)))


def tile_stats(y, t):
    e("v_pk_add_f32 %s, %s, %s" % (v(t, 2), v(y, 2), v(y + 2, 2)))
    e("v_pk_mul_f32 %s, %s, %s" % (v(t + 2, 2), v(y, 2), v(y, 2)))
    for p in range(1, 8):
        if p > 1:
            e("v_pk_add_f32 %s, %s, %s" % (v(t, 2), v(t, 2), v(y + 2 * p, 2)))
        e("v_pk_fma_f32 %s, %s, %s, %s" % (v(t + 2, 2), v(y + 2 * p, 2), v(y + 2 * p, 2), v(t + 2, 2)))
    e("v_add_f32 %s, %s, %s" % (v(t), v(t), v(t + 1)))
    e("v_add_f32 %s, %s, %s" % (v(t + 2), v(t + 2), v(t + 3)))
    half_sum(t, t + 2)


def unpack(dst, src, n):
    for i in range(n):
        e("v_lshlrev_b32 %s, 16, %s" % (v(dst + 2 * i), v(src + i)))
        e("v_and_b32 %s, 0xffff0000, %s" % (v(dst + 2 * i + 1), v(src + i)))


def publish_addr(xoff, stoff, fbase_add, fbase):
    addr(T[4], sLB, xoff, [(sTBN, XSTR), (sNT, 2048)])
    e("s_lshr_b32 %s, %s, 2" % (T[6], sNT))
    e("s_and_b32 %s, %s, 3" % (T[7], sNT))
    addr(T[5], sLB, stoff, [(sTBN, 4096), (T[6], 1024), (T[7], 4)])
    slot(T[6], fbase, [(sTBN, 16), (sNT, 1)])
    if fbase_add:
        e("s_add_u32 %s, %s, %d" % (T[6], T[6], fbase_add))


def publish_x(y, t, meanwhile=None):
    lstores(["buffer_store_dwordx4 %s, %s, %s, %s offen" % (v(vRES, 4), v(vL16), sWS, T[4]),
             "buffer_store_dwordx4 %s, %s, %s, %s offen offset:1024" % (v(vRES + 4, 4), v(vL16), sWS, T[4])])
    if y is not None:
        tile_stats(y, t)
    lstores(["buffer_store_dword %s, %s, %s, %s offen" % (v(t), v(vL16), sWS, T[5])])
    if meanwhile:
        meanwhile()
    flag(T[6], local=True)


def prologue():
    e("s_cmp_ge_u32 s2, 256")
    e("s_cbranch_scc1 L_end")
    e("s_load_dwordx16 s[12:27], s[0:1], 0")
    e("s_load_dwordx4 s[28:31], s[0:1], 64")
    e("s_load_dwordx2 s[32:33], s[0:1], 80")
    e("v_lshrrev_b32 v1, 6, v0")
    e("v_and_b32 v0, 63, v0")
    e("v_readfirstlane_b32 %s, v1" % sW)
    e("v_lshlrev_b32 %s, 4, v0" % v(vL16))
    cm("column part of a transposing-read address: (lane&3)*8 + ((lane>>4)&1)*32")
    e("v_and_b32 %s, 3, v0" % v(vTR))
    e("v_lshlrev_b32 %s, 3, %s" % (v(vTR), v(vTR)))
    e("v_bfe_u32 %s, v0, 4, 1" % v(vT5))
    e("v_lshl_or_b32 %s, %s, 5, %s" % (v(vTR), v(vT5), v(vTR)))
    e("v_lshrrev_b32 %s, 5, v0" % v(vT5))
    e("v_lshlrev_b32 %s, 4, %s" % (v(vH16), v(vT5)))
    cm("K fragments are stored with token bits 2 and 3 swapped (matches the sparse-MFMA key order)")
    e("v_and_b32 %s, 0x33, v0" % v(vK16))
    e("v_and_b32 %s, 4, v0" % v(vPO))
    e("v_lshl_or_b32 %s, %s, 1, %s" % (v(vK16), v(vPO), v(vK16)))
    e("v_and_b32 %s, 8, v0" % v(vPO))
    e("v_lshrrev_b32 %s, 1, %s" % (v(vPO), v(vPO)))
    e("v_or_b32 %s, %s, %s" % (v(vK16), v(vK16), v(vPO)))
    e("v_lshlrev_b32 %s, 4, %s" % (v(vK16), v(vK16)))
    cm("V store offset: head parity*128K + half*512 + d*16")
    e("v_and_b32 %s, 15, v0" % v(vVOF))
    e("v_lshlrev_b32 %s, 4, %s" % (v(vVOF), v(vVOF)))
    e("v_lshl_or_b32 %s, %s, 9, %s" % (v(vVOF), v(vT5), v(vVOF)))
    e("v_bfe_u32 %s, v0, 4, 1" % v(vPO))
    e("v_lshl_or_b32 %s, %s, 17, %s" % (v(vVOF), v(vPO), v(vVOF)))
    e("s_and_b32 %s, s2, 7" % sXCD)
    e("s_lshr_b32 %s, s2, 3" % sJ)
    e("s_and_b32 %s, %s, 3" % (sHW, sW))
    e("s_and_b32 %s, %s, 15" % (sC, sJ))
    e("s_lshr_b32 %s, %s, 4" % (T[0], sJ))
    e("s_lshl_b32 %s, %s, 2" % (T[0], T[0]))
    e("s_add_u32 %s, %s, %s" % (sTBW, T[0], sHW))
    e("s_and_b32 %s, %s, 7" % (sNB, sJ))
    e("s_lshr_b32 %s, %s, 3" % (T[0], sJ))
    e("s_mov_b32 %s, %s" % (sHEAD, sJ))
    e("s_lshl_b32 %s, %s, 1" % (sTBN, T[0]))
    e("s_and_b32 %s, %s, 1" % (T[0], sW))
    e("s_add_u32 %s, %s, %s" % (sTBN, sTBN, T[0]))
    e("s_lshr_b32 %s, %s, 1" % (sKH, sHW))
    e("s_lshl_b32 %s, %s, 1" % (sNT, sNB))
    e("s_add_u32 %s, %s, %s" % (sNT, sNT, sKH))
    e("s_mov_b32 s62, 0xffff")
    e("s_mov_b32 s63, 0xffff")
    e("s_mov_b32 %s, 0" % sL)
    addr(sLB, None, ARENA, [(sXCD, ARENA_X)])
    e("s_add_u32 %s, %s, 0x%x" % (sFB, sLB, LFL))
    e("s_waitcnt lgkmcnt(0)")
    srd(sWS, 32, WS_SIZE)
    srd(sTMP, 12, 2048 * 1024)
    cm("hand-off tag: ws[0] only tells this launch's flags from an earlier launch's")
    e("s_load_dword %s, s[32:33], 0" % sNONCE)
    if OPT("hold", 0) and not PROFILE:
        e("s_memrealtime s[70:71]")
        e("s_waitcnt lgkmcnt(0)")
        e("s_mov_b32 s68, s70")
    if PROFILE:
        e("s_memrealtime s[70:71]")
        e("s_waitcnt lgkmcnt(0)")
        e("s_mov_b32 s68, s70")
        stamp("s18")


def make_tag():
    e("s_waitcnt lgkmcnt(0)")
    e("s_add_u32 %s, %s, 16" % (sNONCE, sNONCE))
    e("v_mov_b32 %s, %s" % (v(vFV), sNONCE))
    e("v_not_b32 %s, %s" % (v(vFV + 1), v(vFV)))


def qkv_setup(next_layer):
    e("v_and_b32 %s, 15, v0" % v(vPO))
    e("v_lshlrev_b32 %s, 3, %s" % (v(vPO), v(vPO)))
    slot(T[0], FX + (LFL_L if next_layer else 0), [(sTBW, 16)])
    addr(T[1], sLB, XF, [(sTBW, XSTR)])
    addr(T[2], sLB, ST, [(sTBW, 4096)])
    e("v_add_u32 %s, %d, %s" % (v(vCA), CONST, v(vH16)))
    tr_pair(vW0)
    e("v_xor_b32 %s, 64, %s" % (v(vW2), v(vW0)))
    tr_rows(vW1, 64)
    e("v_add_u32 %s, 0x10000, %s" % (v(vW1), v(vW1)))


def p0():
    cm("================ P0 (waves 0-3): x tile -> residual registers, fragments and row statistics")
    p0end, noid, nox, npt = newlab("p0end"), newlab("noid"), newlab("nox"), newlab("npt")
    e("s_cmp_ge_u32 %s, 4" % sW)
    e("s_cbranch_scc1 %s" % nox)
    e("v_and_b32 %s, 31, v0" % v(vPO))
    e("v_lshlrev_b32 %s, 10, %s" % (v(vPO), v(vPO)))
    e("v_add_u32 %s, %s, %s" % (v(vPO), v(vPO), v(vH16)))
    addr(T[0], None, 0, [(sXCD, 262144), (sTBN, 32768), (sNT, 64)])
    for g in range(2):
        e("buffer_load_dwordx4 %s, %s, %s, %s offen offset:%d" % (v(vRES + 4 * g, 4), v(vPO), sTMP, T[0], 32 * g))
    lab(nox)
    e("v_lshlrev_b32 v17, 7, v0")
    for bit, wave in ((1, OPT("w1", 6)), (2, OPT("w2", 5))):
        if not OPT("qft", 3) & bit:
            continue
        nq = newlab("nq")
        e("s_cmp_lg_u32 %s, %d" % (sW, wave))
        e("s_cbranch_scc1 %s" % nq)
        srd(sTMP, 14, 512 * 3072)
        if bit == 1:
            cm("first touch of Wqkv, one line per lane, spread over all workgroups")
            e("s_mul_i32 %s, s2, %d" % (T[0], 48 * 128))
            e("v_mov_b32 v19, v17")
        else:
            cm("one 128-byte column class of Wqkv arrives slowest: the die group requests its lines up front")
            addr(T[0], None, 384, [(sJ, 48 * 1024)])
            e("v_lshlrev_b32 v19, 10, v0")
        e("s_mov_b32 exec_hi, 0xffff")
        e("buffer_load_dword v16, v19, %s, %s offen" % (sTMP, T[0]))
        e("s_mov_b64 exec, -1")
        lab(nq)
    e("s_cmp_lg_u32 %s, 4" % sW)
    e("s_cbranch_scc1 %s" % npt)
    cm("statistics and flag lines receive partial writes: bring them into L2 first")
    addr(T[0], sLB, ST, [(sJ, 11 * 128)])
    e("s_mov_b64 exec, 0x7ff")
    e("buffer_load_dword v18, v17, %s, %s offen sc1" % (sWS, T[0]))
    e("s_mov_b64 exec, -1")
    lab(npt)
    e("s_cmp_ge_u32 %s, 4" % sW)
    e("s_cbranch_scc1 %s" % p0end)
    stamp("s0")
    make_tag()
    e("s_getreg_b32 %s, hwreg(HW_REG_XCC_ID, 0, 4)" % T[7])
    e("s_mov_b32 %s, 1" % sMODE)
    e("v_xor_b32 %s, %s, %s" % (v(vFV + 1), T[7], v(vFV + 1)))
    publish_addr(XF, ST, 0, FX)
    nid = newlab("nid")
    e("s_cmp_lg_u32 %s, 0" % sW)
    e("s_cbranch_scc1 %s" % nid)
    e("s_lshl_b32 %s, s2, 7" % T[8])
    e("s_add_u32 %s, %s, 0x%x" % (T[8], T[8], FLG + FI * 128))
    flag(T[8], None)
    e("s_waitcnt vmcnt(1)")
    e("s_branch %s" % noid)
    lab(nid)
    e("s_waitcnt vmcnt(0)")
    lab(noid)
    stamp("s1")
    for g in range(2):
        e("v_permlane32_swap_b32 %s, %s" % (v(vRES + 4 * g), v(vRES + 4 * g + 2)))
        e("v_permlane32_swap_b32 %s, %s" % (v(vRES + 4 * g + 1), v(vRES + 4 * g + 3)))
    e("s_nop 0")
    unpack(66, vRES, 8)
    publish_x(66, 84, lambda: qkv_setup(False))
    e("s_nop 0")
    e("v_not_b32 %s, %s" % (v(vFV + 1), v(vFV)))
    lab(p0end)
    stamp("s19")


def tr_pair(dst):
    tr_rows(dst, 128)
    e("v_bfe_u32 %s, v0, 3, 1" % v(vPD))
    e("v_lshl_or_b32 %s, %s, 6, %s" % (v(dst), v(vPD), v(dst)))


def tr_rows(dst, rowbytes):
    e("v_bfe_u32 %s, v0, 2, 2" % v(dst))
    e("v_lshrrev_b32 %s, 2, %s" % (v(vPD), v(vH16)))
    e("v_add_u32 %s, %s, %s" % (v(dst), v(dst), v(vPD)))
    e("v_mul_u32_u24 %s, %d, %s" % (v(dst), rowbytes, v(dst)))
    e("v_add_u32 %s, %s, %s" % (v(dst), v(dst), v(vTR)))


def voff_128(dst, row=1024):
    e("v_lshrrev_b32 %s, 3, v0" % v(dst))
    e("v_mul_u32_u24 %s, %d, %s" % (v(dst), row, v(dst)))
    e("v_and_b32 %s, 7, v0" % v(vPD))
    e("v_lshrrev_b32 %s, 2, v0" % v(vPD + 1))
    e("v_and_b32 %s, 4, %s" % (v(vPD + 1), v(vPD + 1)))
    e("v_xor_b32 %s, %s, %s" % (v(vPD), v(vPD), v(vPD + 1)))
    e("v_lshl_or_b32 %s, %s, 4, %s" % (v(dst), v(vPD), v(dst)))


def voff_192(dst):
    for i in range(3):
        e("v_add_u32 %s, %d, v0" % (v(vPD), 64 * i))
        e("v_mul_u32_u24 %s, 5462, %s" % (v(vPD + 1), v(vPD)))
        e("v_lshrrev_b32 %s, 16, %s" % (v(vPD + 1), v(vPD + 1)))
        e("v_mul_u32_u24 %s, %d, %s" % (v(dst + i), 2752 - 192, v(vPD + 1)))
        e("v_lshl_add_u32 %s, %s, 4, %s" % (v(dst + i), v(vPD), v(dst + i)))


def dma1(vo, sg, cls):
    e("buffer_load_dwordx4 %s, %s, %s offen%s lds" % (v(vo), sTMP, sg, " nt" if OPT("wnt", 0) & cls else ""))


def dma_loop(n, body):
    lp = newlab("dl")
    e("s_mov_b32 %s, %d" % (T[2], n))
    lab(lp)
    body()
    e("s_sub_u32 %s, %s, 1" % (T[2], T[2]))
    e("s_cmp_lg_u32 %s, 0" % T[2])
    e("s_cbranch_scc1 %s" % lp)


def dma_w2(piece0, lds0, n, pace=PACE):
    addr(T[0], None, piece0 * 8192, [(sHW, n * 8192), (sNB, 128)])
    addr(T[1], None, lds0, [(sHW, n * 1024)])

    def body():
        e("s_mov_b32 m0, %s" % T[1])
        e("s_add_u32 %s, %s, 1024" % (T[1], T[1]))
        dma1(40, T[0], 4)
        e("s_add_u32 %s, %s, 8192" % (T[0], T[0]))
        if pace:
            e("s_waitcnt vmcnt(%d)" % max(pace, 0))
    dma_loop(n, body)


def dma_w1(n):
    def body():
        for i in range(3):
            e("s_add_u32 m0, %s, %d" % (T[1], 1024 * i))
            e("s_nop 0")
            dma1(44 + i, T[0], 2)
        e("s_add_u32 %s, %s, %d" % (T[0], T[0], 16 * 2752))
        e("s_add_u32 %s, %s, 3072" % (T[1], T[1]))
    dma_loop(n, body)


def wq_begin():
    srd(sTMP, 14, 512 * 3072)
    voff_128(44, 3072)
    e("v_lshrrev_b32 v40, 2, v0")
    e("v_mul_u32_u24 v40, 3072, v40")
    e("v_and_b32 v41, 3, v0")
    e("v_lshl_or_b32 v40, v41, 4, v40")
    cm("odd groups take a K column pair, even groups a V column pair; every group takes one Q tile")
    e("s_and_b32 %s, %s, 1" % (T[0], sC))
    e("s_lshr_b32 %s, %s, 1" % (T[1], sC))
    e("s_mul_i32 %s, %s, -1024" % (T[0], T[0]))
    addr(T[3], T[0], 2048, [(sHW, 2 * 49152), (T[1], 128)])
    addr(T[5], None, 0, [(sHW, 2 * 49152), (sC, 64)])
    e("s_lshl_b32 %s, %s, 12" % (T[4], sHW))
    addr(T[6], None, 65536, [(sHW, 2048)])


def wq_chunk():
    for k in range(4):
        e("s_add_u32 m0, %s, %d" % (T[4], 1024 * k))
        e("s_nop 0")
        e("buffer_load_dwordx4 v44, %s, %s offen lds" % (sTMP, T[3]))
        e("s_add_u32 %s, %s, %d" % (T[3], T[3], 24576 if k < 3 else 24576 + 6 * 49152))
        if k % 2:
            e("s_add_u32 m0, %s, %d" % (T[6], 1024 * (k // 2)))
            e("s_nop 0")
            e("buffer_load_dwordx4 v40, %s, %s offen lds" % (sTMP, T[5]))
            e("s_add_u32 %s, %s, %d" % (T[5], T[5], 49152 if k == 1 else 7 * 49152))
    e("s_add_u32 %s, %s, 16384" % (T[4], T[4]))
    e("s_add_u32 %s, %s, 8192" % (T[6], T[6]))


CSA = 64


def colsum_begin():
    for r in range(48):
        e("v_mov_b32 v%d, 0" % (CSA + r))
    for r in range(4):
        e("v_mov_b32 v%d, 0x3f803f80" % (52 + r))


def colsum2(regs, steps, seconds):
    for k in range(2):
        for i in range(3):
            for h in range(2):
                e("ds_read_b64_tr_b16 %s, v%d offset:%d" % (v(16 + 12 * k + 4 * i + 2 * h, 2), regs[i], k * steps[i] + h * seconds[i]))
    for k in range(6):
        e("s_waitcnt lgkmcnt(%d)" % (10 - 2 * k))
        mfma(CSA + 16 * (k % 3), 52, 16 + 4 * k, CSA + 16 * (k % 3))


def colsum_w1():
    e("v_add_u32 v42, %s, v43" % T[0])
    e("v_add_u32 v48, 64, v42")
    e("v_add_u32 v50, 128, v42")
    colsum2((42, 48, 50), (3072,) * 3, (1536,) * 3)


def colsum_partial():
    e("v_and_b32 v41, 31, v0")
    e("v_lshlrev_b32 v41, 2, v41")
    addr(T[0], None, PART_L, [(sHW, 384)])
    e("v_add_u32 v42, %s, v41" % T[0])
    e("s_nop 7")
    for i in range(3):
        e("ds_write_b32 v42, v%d offset:%d" % (CSA + 16 * i, 128 * i))


def colsum_combine(dst_l):
    e("s_min_u32 %s, %s, 2" % (T[0], sHW))
    e("s_lshl_b32 %s, %s, 7" % (T[0], T[0]))
    e("v_add_u32 v41, %s, v41" % T[0])
    e("v_add_u32 v42, %d, v41" % PART_L)
    for k in range(4):
        e("ds_read_b32 v%d, v42 offset:%d" % (16 + k, 384 * k))
    e("v_add_u32 v41, %d, v41" % dst_l)
    e("s_waitcnt lgkmcnt(0)")
    e("v_add_f32 v16, v16, v17")
    e("v_add_f32 v18, v18, v19")
    e("v_add_f32 v16, v16, v18")
    e("ds_write_b32 v41, v16")


def stats_code(second_ln):
    c = []
    for k in range(1, 16):
        c.append("v_add_f32 %s, %s, %s" % (v(vSTS), v(vSTS), v(vSTS + k)))
    c += ["v_mov_b32 %s, %s" % (v(vSTS + 1), v(vSTS)), "s_nop 1",
          "v_permlane32_swap_b32 %s, %s" % (v(vSTS), v(vSTS + 1)), "s_nop 1",
          "v_mul_f32 %s, %s, %s" % (v(vMU), f32(1.0 / 512), v(vSTS)),
          "v_mul_f32 %s, %s, %s" % (v(vSTS + 1), f32(1.0 / 512), v(vSTS + 1)),
          "v_fma_f32 %s, -%s, %s, %s" % (v(vSTS + 1), v(vMU), v(vMU), v(vSTS + 1)),
          "v_max_f32 %s, 0, %s" % (v(vSTS + 1), v(vSTS + 1)),
          "v_add_f32 %s, %s, %s" % (v(vSTS + 2), f32(1e-5), v(vSTS + 1)),
          "v_rsq_f32 %s, %s" % (v(vR), v(vSTS + 2)), "s_nop 0"]
    if second_ln:
        c += ["v_mul_f32 %s, %s, %s" % (v(vSTS + 2), v(vR), v(vR)),
              "v_mul_f32 %s, %s, %s" % (v(vSTS + 2), v(vSTS + 2), v(vSTS + 1)),
              "v_add_f32 %s, %s, %s" % (v(vSTS + 2), f32(1e-5), v(vSTS + 2)),
              "v_rsq_f32 %s, %s" % (v(vSTS + 2), v(vSTS + 2)), "s_nop 0",
              "v_mul_f32 %s, %s, %s" % (v(vR), v(vR), v(vSTS + 2))]
    return c


def center(acc, cs, p):
    e("v_pk_fma_f32 %s, %s, %s, %s op_sel_hi:[0,1,1] neg_lo:[1,0,0] neg_hi:[1,0,0]" %
      (v(acc + 2 * p, 2), v(vMU, 2), v(cs + 2 * p, 2), v(acc + 2 * p, 2)))


def stash_addr():
    e("s_mul_i32 %s, %s, 24576" % (T[0], sHW))
    e("v_add_u32 v42, %s, %s" % (T[0], v(vL16)))


class Lds:
    def __init__(self):
        self.ops, self.done = [], 0

    def op(self, name, text):
        e(text)
        self.ops.append(name)

    def need(self, name):
        last = max(i for i, n in enumerate(self.ops) if n == name)
        if last < self.done:
            return None
        self.done = last + 1
        return min(15, len(self.ops) - 1 - last)


def qkv_body(isk, done):
    H = 16

    def item(n):
        if n < 32:
            load_frags(T[1], n, 1, lambda j: vA + 4 * j, n % 4 == 0)
        else:
            e("buffer_load_dwordx4 %s, %s, %s, %s offen offset:%d sc1" % (v(vSTS + 4 * (n - 32), 4), v(vL16), sWS, T[2], 1024 * (n - 32)))
    sched = [[ks + DEPTH] if ks + DEPTH < 32 else [] for ks in range(32)]
    for k in range(4):
        sched[3 + 2 * k].append(32 + k)
    order = list(range(DEPTH))
    lds = Lds()

    def rd(ks, i, d):
        base, off, sec = ((vW0, vW2)[i], ks * 2048, 1024) if i < 2 else (vW1, ks * 1024, 512)
        lds.op(("w", i, ks), "ds_read_b64_tr_b16 %s, %s offset:%d" % (v(d, 2), v(base), off))
        lds.op(("w", i, ks), "ds_read_b64_tr_b16 %s, %s offset:%d" % (v(d + 2, 2), v(base), off + sec))

    def wait(name):
        n = lds.need(name)
        if n is not None:
            e("s_waitcnt lgkmcnt(%d)" % n)
    wb1 = lambda ks, i: vWB + (ks % 3) * 12 + 4 * i
    wb2 = lambda ks: vWB + (12 * (ks - H) + 8 if ks < H + 3 else [0, 4, 12, 16, 24, 28, 8, 20, 32][(ks - H - 3) % 9])
    tiles = lambda ks: (2, 0, 1) if ks < H else (0, 1)
    for ks in range(2):
        for i in tiles(ks):
            rd(ks, i, wb1(ks, i))
    fine("q")
    SA, SB, SC = vPO, vPD, vPD + 1
    PK, C0, C1, VC, QC = vA, vA + 16, vA + 32, vA + 48, vSTS

    def addresses():
        e("s_lshr_b32 %s, %s, 1" % (T[0], sC))
        addr(T[4], None, KVF, [(sL, KVF_L), (T[0], 4 * 131072), (sXCD, 16384), (sTBW, 2048)])
        addr(T[2], sLB, KVL, [(T[0], 8192), (sTBW, HSTR)])
        slot(T[6], FQ, [(sC, 8), (sTBW, 1)])
        addr(T[7], None, GFL, [(sL, GFL_L), (sC, 65536), (sXCD, 8192), (sTBW, 1024)])
        addr(T[3], sLB, QF, [(sC, 2048), (sTBW, HSTR)])
        if not isk:
            e("v_and_b32 %s, 31, v0" % v(SA))
            e("v_lshlrev_b32 %s, 2, %s" % (v(SA), v(SA)))
            addr(T[0], None, STAT_L, [(sHW, 256)])
            e("v_add_u32 %s, %s, %s" % (v(SB), T[0], v(SA)))
            e("v_add_u32 %s, %s, %s" % (v(SC), T[0], v(vH16)))
            e("v_add_u32 %s, %d, %s" % (v(SA), CSQ_L, v(SA)))
    sh = [lambda x=x: e(x) for x in capture(addresses) + stats_code(False)]
    sh.append(lambda: e("v_mul_f32 %s, %s, %s" % (v(vRQ), f32(0.25 * 1.4426950408889634), v(vR))))
    if isk:
        for k in range(8):
            sh.append(lambda k=k: lds.op("c", "ds_read_b128 %s, %s offset:%d" % (v(C0 + 4 * k, 4), v(vCA), 32 * k)))
    else:
        sh.append(lambda: lds.op("sw", "ds_write_b32 %s, %s" % (v(SB), v(vMU))))
        sh.append(lambda: lds.op("sw", "ds_write_b32 %s, %s offset:128" % (v(SB), v(vR))))
        for k in range(8):
            sh.append(lambda k=k: lds.op("c", "ds_read_b128 %s, %s offset:%d" % (v(C0 + 4 * k, 4), v(SC), 32 * k)))
        for t in range(2):
            sh.append(lambda t=t: lds.op("c", "ds_read_b32 %s, %s offset:%d" % (v(VC + t), v(SA), 128 * t)))
    nsal = len(capture(addresses))
    pos = 0
    for ks in range(32):
        if ks in (16, 22):
            e("s_barrier")
        newest = max(order.index(n) for n in ([ks, 35] if ks >= 18 else [ks]))
        e("s_waitcnt vmcnt(%d) lgkmcnt(%d)" % (len(order) - 1 - newest, lds.need(("w", 1, ks))))
        if ks in FINEKS:
            fine("q")
        for m, i in enumerate(tiles(ks)):
            c = "0" if ks == 0 else vACC + 16 * i
            if i < 2 and not isk:
                mfma(vACC + 16 * i, vA + 4 * ks, wb1(ks, i), c)
            else:
                mfma(vACC + 16 * i, wb1(ks, i), vA + 4 * ks, c)
            if ks + 2 < 32 and i in tiles(ks + 2):
                rd(ks + 2, i, wb1(ks + 2, i))
            elif ks >= 30 and (i == 0 or ks == 30):
                k2 = H + (ks - 30) * 2 + i
                rd(k2, 2, wb2(k2))
            if m < len(sched[ks]):
                item(sched[ks][m])
                order.append(sched[ks][m])
            if ks >= 10:
                for _ in range(2):
                    if pos < len(sh) and (pos < nsal or ks >= 18):
                        sh[pos]()
                        pos += 1
    assert pos == len(sh), (pos, len(sh))
    cm("remaining Q k-steps with the pair's epilogue underneath")
    fill = [lambda: wait("c")]
    for i in range(4):
        fill.append(lambda i=i: lds.op("qc", "ds_read_b128 %s, %s offset:%d" % (v(QC + 4 * i, 4), v(vCA), 256 + 32 * i)))
    fill.append(lambda: e("s_add_u32 %s, %s, 0x%x" % (T[5], T[4], 0x20000 if isk else 0x40000)))
    fill.append(lambda: e("s_add_u32 %s, %s, 4096" % (T[0], T[2])))
    if isk:
        fill.append(lambda: e("s_add_u32 %s, %s, 0x40000" % (T[8], T[4])))
        fill.append(lambda: e("s_add_u32 %s, %s, 0x60000" % (T[1], T[4])))
    else:
        fill.append(lambda: e("v_and_b32 %s, 0x1ffff, %s" % (v(SC), v(vVOF))))
        fill.append(lambda: e("v_lshrrev_b32 %s, 17, %s" % (v(SB), v(vVOF))))
        fill.append(lambda: e("v_lshl_or_b32 %s, %s, 11, %s" % (v(SC), v(SB), v(SC))))
    local = []
    for t in range(2):
        a = vACC + 16 * t
        for r in range(16):
            if isk:
                fill.append(lambda a=a, t=t, r=r: e("v_fma_f32 %s, -%s, %s, %s" % (v(a + r), v(vMU), v(C0 + 16 * t + r), v(a + r))))
            else:
                fill.append(lambda a=a, t=t, r=r: e("v_fma_f32 %s, -%s, %s, %s" % (v(a + r), v(C0 + r), v(VC + t), v(a + r))))
        for r in range(16):
            fill.append(lambda a=a, r=r: e("v_mul_f32 %s, %s, %s" % (v(a + r), v(vR if isk else C1 + r), v(a + r))))
        for p in range(8):
            fill.append(lambda a=a, t=t, p=p: e("v_cvt_pk_bf16_f32 %s, %s, %s" % (v(PK + 8 * t + p), v(a + 2 * p), v(a + 2 * p + 1))))
        for hh in range(2):
            d = v(PK + 8 * t + 4 * hh, 4)
            if isk:
                g = "%s, %s, %s, %s offen" % (d, v(vK16), sWS, (T[4], T[5], T[8], T[1])[2 * t + hh])
                local.append("buffer_store_dwordx4 %s, %s, %s, %s offen offset:%d" % (d, v(vK16), sWS, (T[2], T[0])[t], 2048 * hh))
            else:
                g = "%s, %s, %s, %s offen offset:%d" % (d, v(vVOF), sWS, (T[4], T[5])[t], 1024 + 256 * hh)
                local.append("buffer_store_dwordx4 %s, %s, %s, %s offen offset:%d" % (d, v(SC), sWS, (T[2], T[0])[t], 1024 + 256 * hh))
            fill.append(lambda g=g: e("buffer_store_dwordx4 " + g + " sc1"))
    fill.append(lambda: lstores(local))
    per = -(-len(fill) // (32 - H))
    aQ = vACC + 32
    for ks in range(H, 32):
        wait(("w", 2, ks + 1 if ks % 2 == 0 and H + 2 < ks < 31 else ks))
        mfma(aQ, wb2(ks), vA + 4 * ks, aQ)
        if ks == H:
            fine("q")
        for n in ([H + 3, H + 4] if ks == H else [H + 5, H + 6] if ks == H + 1 else [ks + 5] if ks + 5 < 32 else []):
            rd(n, 2, wb2(n))
        for f in fill[(ks - H) * per:(ks + 1 - H) * per]:
            f()
    e("s_barrier")
    stamp()
    wait("qc")
    e("s_nop %d" % max(0, 10 - len(fill[(31 - H) * per:])))
    for p in range(8):
        center(aQ, QC, p)
    for p in range(8):
        e("v_pk_mul_f32 %s, %s, %s op_sel_hi:[1,0]" % (v(aQ + 2 * p, 2), v(aQ + 2 * p, 2), v(vRQ, 2)))
    for p in range(8):
        e("v_cvt_pk_bf16_f32 %s, %s, %s" % (v(C1 + p), v(aQ + 2 * p), v(aQ + 2 * p + 1)))
    lstores(["buffer_store_dwordx4 %s, %s, %s, %s offen offset:%d" % (v(C1 + 4 * hh, 4), v(vL16), sWS, T[3], 1024 * hh) for hh in range(2)])
    fine("q")
    for k in range(4):
        e("v_mov_b32 %s, %s" % (v(vSTS + k), v(vFV + k % 2)))
    flag(T[6], 0, local=True)
    e("buffer_store_dwordx4 %s, %s, %s, %s offen sc1" % (v(vSTS, 4), v(vL16), sWS, T[7]))
    e("s_branch %s" % done)


def qkv():
    cm("================ QKV projection")
    hl, done, kb = newlab("qkv_h"), newlab("qkv_done"), newlab("qkv_k")
    e("s_cmp_ge_u32 %s, 4" % sW)
    e("s_cbranch_scc1 %s" % hl)
    l1, l2 = newlab("fx"), newlab("fx")
    e("s_cmp_lg_u32 %s, 0" % sL)
    e("s_cbranch_scc1 %s" % l1)
    mode_poll(True)
    e("v_mov_b32 v60, %s" % sMODE)
    e("v_mov_b32 v61, %d" % MODE_L)
    e("ds_write_b32 v61, v60")
    e("s_waitcnt lgkmcnt(0)")
    e("s_branch %s" % l2)
    lab(l1)
    poll(T[0])
    lab(l2)
    stamp()
    load_frags(T[1], 0, DEPTH, lambda j: vA + 4 * j)
    fine("q")
    e("s_barrier")
    e("s_bitcmp1_b32 %s, 0" % sC)
    e("s_cbranch_scc1 %s" % kb)
    n0, f0 = nstamp[0], nfine[0]
    qkv_body(False, done)
    lab(kb)
    nstamp[0], nfine[0] = n0, f0
    qkv_body(True, done)
    lab(hl)
    h1, h2, lp = newlab("qh1"), newlab("qh2"), newlab("qhl")
    e("s_cmp_lg_u32 %s, 0" % sL)
    e("s_cbranch_scc1 %s" % h1)
    wq_begin()
    if FINE == "h":
        make_tag()
        fine("h")
    dma_loop(2, wq_chunk)
    fine("h")
    if FINE != "h":
        make_tag()
    colsum_begin()
    tr_pair(42)
    e("s_lshl_b32 %s, %s, 12" % (T[0], sHW))
    e("v_add_u32 v42, %s, v42" % T[0])
    e("v_xor_b32 v48, 64, v42")
    tr_rows(50, 64)
    addr(T[0], None, 65536, [(sHW, 2048)])
    e("v_add_u32 v50, %s, v50" % T[0])
    e("s_mov_b32 %s, 0" % sIT)
    lab(lp)
    b1, b2 = newlab("qw"), newlab("qw")
    e("s_cmp_ge_u32 %s, 2" % sIT)
    e("s_cbranch_scc1 %s" % b1)
    wq_chunk()
    e("s_waitcnt vmcnt(12)")
    e("s_branch %s" % b2)
    lab(b1)
    e("s_waitcnt vmcnt(6)")
    e("s_cmp_eq_u32 %s, 2" % sIT)
    e("s_cbranch_scc1 %s" % b2)
    e("s_waitcnt vmcnt(0)")
    lab(b2)
    fine("h")
    colsum2((42, 48, 50), (2048, 2048, 1024), (1024, 1024, 512))
    e("v_add_u32 v42, 16384, v42")
    e("v_add_u32 v48, 16384, v48")
    e("v_add_u32 v50, 8192, v50")
    e("s_add_u32 %s, %s, 1" % (sIT, sIT))
    e("s_cmp_lt_u32 %s, 4" % sIT)
    e("s_cbranch_scc1 %s" % lp)
    colsum_partial()
    fine("h")
    e("s_waitcnt lgkmcnt(0)")
    e("s_barrier")
    fine("h")
    colsum_combine(CSQ_L)
    e("v_mov_b32 v61, %d" % MODE_L)
    e("ds_read_b32 v60, v61")
    cm("park the weight tile in registers for the second layer pair")
    stash_addr()
    for k in range(24):
        e("ds_read_b128 %s, v42 offset:%d" % (v(vSTASH + 4 * k, 4), 1024 * k))
    e("s_waitcnt lgkmcnt(15)")
    e("v_readfirstlane_b32 %s, v60" % sMODE)
    e("s_branch %s" % h2)
    lab(h1)
    e("s_waitcnt lgkmcnt(0)")
    e("s_barrier")
    lab(h2)
    cm("lanes 0-15: Q lines; lanes 16-47: the K or V kilobyte of four head blocks")
    e("v_subrev_u32 v20, 16, v0")
    e("v_lshrrev_b32 v21, 3, v20")
    e("v_lshlrev_b32 v21, 10, v21")
    e("v_lshl_add_u32 v20, v20, 7, v21")
    e("s_lshr_b32 %s, %s, 1" % (T[1], sC))
    e("s_and_b32 %s, %s, 1" % (T[2], sC))
    addr(T[3], None, 32768 + 1024, [(T[1], 8192), (T[2], -1024), (sC, -2048)])
    e("v_add_u32 v20, %s, v20" % T[3])
    e("v_lshlrev_b32 v19, 7, v0")
    e("v_cmp_lt_u32 vcc, 15, v0")
    addr(T[0], sLB, BLK, [(sTBW, HSTR), (sC, 2048)])
    e("v_cndmask_b32 v19, v19, v20, vcc")
    e("s_waitcnt lgkmcnt(0)")
    e("s_barrier")
    e("s_barrier")
    cm("all activation loads are out: bring in the lines the Q/K/V stores will write, so they need no fill")
    e("s_mov_b32 exec_hi, 0xffff")
    e("buffer_load_dword v21, v19, %s, %s offen sc1" % (sWS, T[0]))
    e("s_mov_b64 exec, -1")
    e("s_cmp_lg_u32 %s, 0" % sL)
    e("s_cbranch_scc1 %s" % done)
    cm("this workgroup's slices of b1 and b2; they are staged in LDS after attention")
    srd(sTMP, 22, 2752)
    e("v_and_b32 v19, 31, v0")
    e("v_lshlrev_b32 v19, 1, v19")
    addr(T[0], None, 0, [(sHW, 64), (sC, 192)])
    e("buffer_load_ushort v224, v19, %s, %s offen" % (sTMP, T[0]))
    srd(sTMP, 26, 1024)
    e("s_and_b32 %s, %s, 1" % (T[4], sHW))
    addr(T[0], None, 0, [(T[4], 64), (sNB, 128)])
    e("buffer_load_ushort v225, v19, %s, %s offen" % (sTMP, T[0]))
    lab(done)
    stamp()


def attention():
    cm("================ attention: S^T = K Q^T, P = exp2(S^T), O^T += V^T P via sparse MFMA")
    S, O, Q, KB, VB, IDX, AD, VO, CN = (16, 32), 48, 64, (68, 72), (76, 84), 92, 93, 94, 100
    PF = 100
    KVG, LP, CH, GF, ISS = T[2], T[3], T[4], T[5], T[6]
    cm("rows 16 and 20 of the V operand are ones (row sums for both lane halves); the other spare rows are zero")
    e("v_and_b32 %s, 27, v0" % v(IDX))
    e("v_cmp_eq_u32 vcc, 16, %s" % v(IDX))
    e("v_mov_b32 %s, 0x3f803f80" % v(AD))
    e("s_nop 0")
    for i in range(16):
        e("v_mov_b32 %s, 0" % v(O + i))
        e("v_cndmask_b32 %s, 0, %s, vcc" % (v(VB[0] + i), v(AD)))
    for i in range(8):
        e("v_mov_b32 %s, 0" % v(S[1] + 8 + i))
    e("v_mov_b32 %s, 0xdddddddd" % v(IDX))
    e("v_mov_b32 %s, 0" % v(PF + 6))
    e("v_mov_b32 %s, %s" % (v(AD), v(vL16)))
    voff_128(VO)
    voff_192(VO + 1)
    e("s_mov_b32 %s, 1" % ISS)
    a1 = newlab("a1")
    e("v_lshlrev_b32 %s, 7, v0" % v(PF))
    cm("first layer pair, waves 1-3: first touch of Wo / W1 / W2 (one line per lane, spread over all workgroups)")
    e("s_mov_b32 s66, %d" % (1376 * 1024))
    e("s_mov_b32 %s, %d" % (T[1], 43 * 128))
    e("s_cmp_eq_u32 %s, 2" % sW)
    e("s_cselect_b64 s[64:65], s[20:21], s[24:25]")
    e("s_cmp_eq_u32 %s, 1" % sW)
    e("s_cselect_b64 s[64:65], s[16:17], s[64:65]")
    e("s_cselect_b32 s66, %d, s66" % (512 * 1024))
    e("s_cselect_b32 %s, %d, %s" % (T[1], 16 * 128, T[1]))
    e("s_and_b32 s65, s65, 0xffff")
    e("s_mov_b32 s67, 0x20000")
    e("s_mul_i32 %s, %s, s2" % (T[1], T[1]))
    e("s_cmp_eq_u32 %s, 0" % sL)
    e("s_cselect_b32 %s, %d, 99" % (T[8], OPT("ftit", 2)))
    e("s_cmp_eq_u32 %s, 0" % sW)
    e("s_cselect_b32 %s, 99, %s" % (T[8], T[8]))
    cm("lines of the W1 rows that are loaded after attention (128-351, 480-511): half per workgroup of a pair")
    srd(sTMP, 20, 512 * 2752)
    e("s_lshr_b32 %s, %s, 4" % (T[0], sJ))
    addr(T[7], None, 128, [(T[0], 128), (sHW, 32)])
    e("s_cmp_eq_u32 %s, 352" % T[7])
    e("s_cselect_b32 %s, 480, %s" % (T[7], T[7]))
    e("s_mul_i32 %s, %s, 2752" % (T[7], T[7]))
    e("s_mul_i32 %s, %s, 192" % (T[0], sC))
    e("s_add_u32 %s, %s, %s" % (T[7], T[7], T[0]))
    e("v_lshrrev_b32 %s, 1, v0" % v(PF + 1))
    e("v_mul_u32_u24 %s, 2752, %s" % (v(PF + 1), v(PF + 1)))
    e("v_and_b32 %s, 1, v0" % v(PF + 2))
    e("v_lshl_add_u32 %s, %s, 7, %s" % (v(PF + 1), v(PF + 2), v(PF + 1)))
    e("s_cmp_lt_u32 %s, 4" % sW)
    e("s_cbranch_scc1 %s" % a1)
    cm("waves 4-7 fetch Q and this die's K/V, and later the other dies' K/V")
    e("v_and_b32 %s, 15, v0" % v(vPO))
    e("v_lshlrev_b32 %s, 3, %s" % (v(vPO), v(vPO)))
    e("s_lshr_b32 %s, %s, 2" % (T[1], sHEAD))
    e("s_lshl_b32 %s, %s, 1" % (T[1], T[1]))
    addr(GF, None, GFL, [(sL, GFL_L), (T[1], 65536), (sXCD, 128)])
    slot(T[0], FQ, [(T[1], 8)])
    addr(T[1], sLB, QF, [(sHEAD, 1024), (sHW, 2 * HSTR)])
    addr(KVG, None, KVF, [(sL, KVF_L), (sHEAD, 131072), (sHW, 4096)])
    addr(T[8], sLB, KVL, [(sHEAD, 2048), (sHW, 2 * HSTR)])
    addr(T[7], None, QL, [(sHW, 2048)])
    e("s_lshl_b32 %s, %s, 12" % (LP, sHW))
    e("s_add_u32 %s, %s, 1" % (CH, sXCD))
    e("s_mov_b32 %s, 0" % ISS)
    cm("last barrier of the projection: its weight tile in LDS is dead from here on")
    e("s_barrier")
    poll(T[0])
    for b in range(2):
        e("s_add_u32 m0, %s, %d" % (LP, 2048 * b))
        e("v_lshlrev_b32 %s, 10, v0" % v(vPO))
        for i in range(2):
            e("buffer_load_dwordx4 %s, %s, %s offen offset:%d sc1 lds" % (v(vL16), sWS, T[8], 1024 * i))
        e("s_add_u32 m0, %s, %d" % (T[7], 1024 * b))
        e("s_add_u32 %s, %s, %d" % (T[8], T[8], HSTR))
        e("buffer_load_dwordx4 %s, %s, %s offen sc1 lds" % (v(vL16), sWS, T[1]))
        e("s_add_u32 %s, %s, %d" % (T[1], T[1], HSTR))

    def gflag_load():
        e("buffer_load_dwordx2 %s, %s, %s, %s offen sc1" % (v(vPD, 2), v(vPO), sWS, GF))
        e("buffer_load_dwordx2 %s, %s, %s, %s offen sc1" % (v(PF + 4, 2), v(PF + 6), sWS, GF))

    def kv_issue(n=4):
        e("s_and_b32 %s, %s, 7" % (CH, CH))
        e("s_lshl_b32 %s, %s, 14" % (T[9], CH))
        e("s_add_u32 %s, %s, 16384" % (LP, LP))
        e("s_add_u32 %s, %s, %s" % (T[9], T[9], KVG))
        e("s_mov_b32 m0, %s" % LP)
        e("s_add_u32 %s, %s, 1" % (CH, CH))
        for i in range(n):
            e("buffer_load_dwordx4 %s, %s, %s offen offset:%d sc1%s lds" % (v(vL16), sWS, T[9], 1024 * i, " nt" if OPT("kvnt", 1) else ""))

    def kv_issue_helpers():
        sk, cw = newlab("kvs"), newlab("kvc")
        e("s_cmp_lt_u32 %s, 4" % sW)
        e("s_cbranch_scc1 %s" % cw)
        e("s_cmp_eq_u32 %s, 0" % sIT)
        e("s_cbranch_scc1 %s" % sk)
        kv_issue()
        lab(sk)
        ft = newlab("ft")
        wp = newlab("wp")
        TAIL.extend([wp + ":", "    s_cmp_lg_u32 %s, %d" % (sIT, OPT("woit", 3)), "    s_cbranch_scc1 %s" % sk]
                    + ["    " + x for x in capture(lambda: (srd("s[64:67]", 16, 512 * 1024), addr(T[1], None, 0, [(sJ, 128 * 128), (sW, 32 * 128)])))]
                    + (["    " + x for x in capture(lambda: (
                        e("v_lshrrev_b32 %s, 3, v0" % v(PF + 3)), e("v_mul_u32_u24 %s, %d, %s" % (v(PF + 3), XSTR - 1024, v(PF + 3))),
                        e("v_add_u32 %s, %s, %s" % (v(PF + 3), v(PF + 3), v(PF))),
                        addr(T[0], sLB, OF, [(sW, 2 * XSTR), (sHEAD, 1024)]), e("s_mov_b64 exec, 0xffff"),
                        e("buffer_load_dword %s, %s, %s, %s offen sc1" % (v(PF + 2), v(PF + 3), sWS, T[0])), e("s_mov_b64 exec, -1")))])
                    + ["    s_mov_b32 exec_hi, 0", "    buffer_load_dword %s, %s, s[64:67], %s offen" % (v(PF + 2), v(PF), T[1]),
                       "    s_mov_b64 exec, -1", "    s_branch %s" % sk])
        TAIL.extend([ft + ":", "    s_cmp_lg_u32 %s, %s" % (sIT, T[8]), "    s_cbranch_scc1 %s" % wp,
                     "    buffer_load_dword %s, %s, s[64:67], %s offen" % (v(PF + 2), v(PF), T[1]), "    s_branch %s" % sk])
        TAIL.extend([cw + ":", "    s_cmp_lt_u32 %s, 4" % sIT, "    s_cbranch_scc1 %s" % ft, "    s_mov_b32 exec_hi, 0",
                     "    buffer_load_dword %s, %s, %s, %s offen" % (v(PF + 2), v(PF + 1), sTMP, T[7]),
                     "    s_mov_b64 exec, -1", "    s_add_u32 %s, %s, %d" % (T[7], T[7], 16 * 2752),
                     "    s_branch %s" % sk])
    e("v_add_u32 %s, 0x10000, %s" % (v(PF + 6), v(vPO)))
    fine("k")
    e("s_waitcnt vmcnt(0)")
    fine("k")
    gflag_load()
    lab(a1)
    addr(T[0], None, QL, [(sW, 1024)])
    e("v_add_u32 v16, %s, %s" % (T[0], v(vL16)))
    e("s_barrier")
    stamp()

    def rdk(t):
        e("ds_read_b128 %s, %s offset:%d" % (v(KB[t & 1], 4), v(AD), t * 2048))

    def rdv(t):
        e("s_mov_b64 exec, %s" % sMV)
        e("ds_read_b128 %s, %s offset:%d" % (v(VB[t & 1], 4), v(AD), t * 2048 + 1024))
        e("ds_read_b128 %s, %s offset:%d" % (v(VB[t & 1] + 4, 4), v(AD), t * 2048 + 1280))
        e("s_mov_b64 exec, -1")

    def smf(vb, p):
        e("v_smfmac_f32_32x32x32_bf16 %s, %s, %s, %s" % (v(O, 16), v(vb, 4), v(p, 8), v(IDX)))

    def ex(cur, a, b):
        for i in range(a, b):
            e("v_exp_f32 %s, %s" % (v(S[cur] + i), v(S[cur] + i)))

    def tile(t, extra=None):
        cur, nxt = t & 1, (t + 1) & 1
        ex(cur, 0, 2)
        smf(VB[nxt] + 4, S[nxt] + 8)
        rdv(t + 1)
        ex(cur, 2, 6)
        e("s_waitcnt lgkmcnt(2)")
        mfma(S[nxt], KB[nxt], Q, "0")
        rdk(t + 2)
        if extra:
            extra()
        ex(cur, 6, 12)
        smf(VB[cur], S[cur])
        ex(cur, 12, 16)
    e("ds_read_b128 %s, v16" % v(Q, 4))
    rdk(0)
    rdv(0)
    rdk(1)
    e("s_waitcnt lgkmcnt(3)")
    mfma(S[0], KB[0], Q, "0")
    e("s_mov_b32 %s, 0" % sIT)
    e("s_mov_b32 %s, %d" % (sCNT, POLL_LIMIT))
    e("s_nop 8")
    cm("chunk 0 = keys of this die group; the other groups' K/V are requested as soon as their flags arrive")

    def check(blocking):
        blk, back, issue = newlab("chk"), newlab("chkb"), newlab("iss")
        e("s_cmp_eq_u32 %s, 0" % ISS)
        e("s_cbranch_scc1 %s" % blk)
        lab(back)

        def body():
            e("s_waitcnt vmcnt(0)")
            e("v_cmp_eq_u64 s[12:13], %s, %s" % (v(PF + 4, 2), v(vFV, 2)))
            e("v_cmp_eq_u64 vcc, %s, %s" % (v(vPD, 2), v(vFV, 2)))
            e("s_nop 1")
            e("s_and_b64 vcc, vcc, s[12:13]")
            e("s_cmp_eq_u64 vcc, -1")
            e("s_cbranch_scc1 %s" % issue)
            gflag_load()
            if blocking:
                e("s_sub_u32 %s, %s, 1" % (sCNT, sCNT))
                e("s_cbranch_scc0 %s" % blk)
                e("s_endpgm")
            else:
                e("s_branch %s" % back)

        def go():
            kv_issue()
            kv_issue()
            e("s_mov_b32 %s, 1" % ISS)
            e("s_branch %s" % back)
        NEAR.extend([blk + ":"] + ["    " + x for x in capture(body)] + [issue + ":"] + ["    " + x for x in capture(go)])
    NEAR = []
    loop = newlab("att")
    L.append(".p2align 6")
    lab(loop)
    for t in range(8):
        if t % 2 == 0:
            e("s_setprio %d" % (3 - t // 2))
        if t in (2, 4, 6):
            check(t == 6)
        if t == 6:
            e("s_waitcnt vmcnt(4)")
            e("s_barrier")
        tile(t, kv_issue_helpers if t == 1 else None)
    e("v_add_u32 %s, 16384, %s" % (v(AD), v(AD)))
    e("s_add_u32 %s, %s, 1" % (sIT, sIT))
    e("s_cmp_lt_u32 %s, 6" % sIT)
    e("s_cbranch_scc1 %s" % loop)
    TAIL[:0] = NEAR
    fine("a")
    cm("last two chunks: stream Wo and part of W1 into the dead K/V space, one piece per tile")
    srd(sTMP, 16, 512 * 1024)
    addr(T[0], None, 0, [(sW, 65536), (sNB, 128)])
    e("s_lshl_b32 %s, %s, 13" % (T[1], sW))

    srd("s[64:67]", 24, 1376 * 1024)
    addr(T[2], None, 0, [(sJ, 344 * 128), (sW, 43 * 128)])

    def w2_lines(trip):
        cm("one line per lane: pull this workgroup's share of W2 into the die's L2")
        e("s_mov_b64 exec, 0x3fffff")
        e("buffer_load_dword %s, %s, s[64:67], %s offen" % (v(PF + 2), v(PF), T[2]))
        e("s_mov_b64 exec, -1")
        e("s_add_u32 %s, %s, %d" % (T[2], T[2], 22 * 128))

    def wo_piece(t):
        e("s_add_u32 m0, %s, %d" % (T[1], 1024 * t))
        e("s_nop 0")
        dma1(VO, T[0], 1)
        e("s_add_u32 %s, %s, 8192" % (T[0], T[0]))

    def w1_piece(t):
        if t in (1, 3):
            w2_lines(1)
        for u in ([2 * t, 2 * t + 1] if t < 2 else [t + 2] if t < 4 else []):
            e("s_add_u32 m0, %s, %d" % (T[1], (u // 3) * 22 * 3072 + (u % 3) * 1024))
            e("s_nop 0")
            dma1(VO + 1 + u % 3, T[0], 8)
            if u == 2:
                e("s_add_u32 %s, %s, %d" % (T[0], T[0], 22 * 16 * 2752))
    for trip in range(2):
        for t in range(8):
            if t % 2 == 0:
                e("s_setprio %d" % (3 - t // 2))
            if t == 6 and trip == 0:
                e("s_waitcnt vmcnt(6)")
                e("s_barrier")
            tile(t + 8 * trip, (lambda t=t: wo_piece(t)) if trip == 0 else (lambda t=t: w1_piece(t)))
        if trip == 0:
            addr(T[4], sLB, OF, [(sW, XSTR), (sHEAD, 1024)])
            slot(T[5], FA, [(sW, 32), (sHEAD, 1)])
            srd(sTMP, 20, 512 * 2752)
            addr(T[0], None, 0, [(sW, 16 * 2752), (sC, 192)])
            addr(T[1], None, 65536, [(sW, 3072)])
    e("s_nop 1")
    smf(VB[1] + 4, S[1] + 8)
    e("s_setprio 0")
    e("s_mov_b32 %s, %s" % (T[6], f32(2.0 ** (64 if FORCE_SLOW else -64))))
    e("s_mov_b32 %s, %s" % (T[7], f32(2.0 ** 64)))
    e("s_waitcnt lgkmcnt(0)")
    e("s_nop 7")
    stamp()
    cm("Softmax guard. The loops above used 0 as a stand-in for the row max. That is exact while the row sum")
    cm("stays in [2^-64, 2^64] and the accumulators are finite; otherwise redo this tile with the true max.")
    fin, slow = newlab("att_fin"), newlab("att_slow")
    e("v_cmp_le_f32 %s, %s, %s" % (sM0, T[6], v(O + 8)))
    e("v_cmp_ge_f32 %s, %s, %s" % (sM1, T[7], v(O + 8)))
    e("v_pk_mul_f32 v[18:19], %s, 0 op_sel_hi:[1,0]" % v(O, 2))
    for p in range(1, 4):
        e("v_pk_fma_f32 v[18:19], %s, 0, v[18:19] op_sel_hi:[1,0,1]" % v(O + 2 * p, 2))
    e("s_and_b64 %s, %s, %s" % (sM0, sM0, sM1))
    e("v_cmp_eq_f32 vcc, v18, v19")
    e("s_nop 0")
    e("s_and_b64 %s, %s, vcc" % (sM0, sM0))
    e("s_cmp_eq_u64 %s, -1" % sM0)
    e("s_cbranch_scc0 %s" % slow)
    lab(fin)
    e("v_rcp_f32 v16, %s" % v(O + 8))
    e("s_nop 0")
    for p in range(4):
        e("v_pk_mul_f32 %s, %s, v[16:17] op_sel_hi:[1,0]" % (v(O + 2 * p, 2), v(O + 2 * p, 2)))
    for p in range(4):
        e("v_cvt_pk_bf16_f32 %s, %s, %s" % (v(20 + p), v(O + 2 * p), v(O + 2 * p + 1)))
    lstores(["buffer_store_dwordx4 v[20:23], %s, %s, %s offen" % (v(vL16), sWS, T[4])])
    ns = newlab("ns")
    e("s_cmp_ge_u32 %s, 4" % sW)
    e("s_cbranch_scc1 %s" % ns)
    n512_setup(True)
    lab(ns)
    flag(T[5], 0, local=True)
    e("s_waitcnt vmcnt(1)")
    e("s_barrier")
    keep = L[:]
    del L[:]
    lab(slow)
    l1, l2 = newlab("slow1"), newlab("slow2")
    addr(T[2], None, KVF, [(sL, KVF_L), (sHEAD, 131072)])
    e("v_mov_b32 %s, 0xff800000" % v(CN))
    e("s_mov_b32 %s, 0" % sIT)
    lab(l1)
    e("buffer_load_dwordx4 %s, %s, %s, %s offen sc1" % (v(KB[0], 4), v(vL16), sWS, T[2]))
    e("s_waitcnt vmcnt(0)")
    mfma(S[0], KB[0], Q, "0")
    e("s_nop 15")
    for i in range(8):
        e("v_max3_f32 %s, %s, %s, %s" % (v(CN), v(S[0] + 2 * i), v(S[0] + 2 * i + 1), v(CN)))
    e("s_add_u32 %s, %s, 2048" % (T[2], T[2]))
    e("s_add_u32 %s, %s, 1" % (sIT, sIT))
    e("s_cmp_lt_u32 %s, 64" % sIT)
    e("s_cbranch_scc1 %s" % l1)
    e("v_mov_b32 %s, %s" % (v(CN + 1), v(CN)))
    e("s_nop 1")
    e("v_permlane32_swap_b32 %s, %s" % (v(CN), v(CN + 1)))
    e("s_nop 1")
    e("v_max_f32 %s, %s, %s" % (v(CN), v(CN), v(CN + 1)))
    e("v_sub_f32 %s, 0, %s" % (v(CN), v(CN)))
    for i in range(1, 16):
        e("v_mov_b32 %s, %s" % (v(CN + i), v(CN)))
    for i in range(16):
        e("v_mov_b32 %s, 0" % v(O + i))
    addr(T[2], None, KVF, [(sL, KVF_L), (sHEAD, 131072)])
    e("s_mov_b32 %s, 0" % sIT)
    lab(l2)
    e("buffer_load_dwordx4 %s, %s, %s, %s offen sc1" % (v(KB[0], 4), v(vL16), sWS, T[2]))
    e("s_mov_b64 exec, %s" % sMV)
    e("buffer_load_dwordx4 %s, %s, %s, %s offen offset:1024 sc1" % (v(VB[0], 4), v(vL16), sWS, T[2]))
    e("buffer_load_dwordx4 %s, %s, %s, %s offen offset:1280 sc1" % (v(VB[0] + 4, 4), v(vL16), sWS, T[2]))
    e("s_mov_b64 exec, -1")
    e("s_waitcnt vmcnt(0)")
    mfma(S[0], KB[0], Q, CN)
    e("s_nop 15")
    for i in range(16):
        e("v_exp_f32 %s, %s" % (v(S[0] + i), v(S[0] + i)))
    e("s_nop 1")
    smf(VB[0], S[0])
    smf(VB[0] + 4, S[0] + 8)
    e("s_nop 15")
    e("s_add_u32 %s, %s, 2048" % (T[2], T[2]))
    e("s_add_u32 %s, %s, 1" % (sIT, sIT))
    e("s_cmp_lt_u32 %s, 64" % sIT)
    e("s_cbranch_scc1 %s" % l2)
    e("s_branch %s" % fin)
    TAIL.extend(L)
    L[:] = keep
    stamp()


def ffn1_setup():
    e("v_and_b32 %s, 15, v0" % v(vPO))
    e("v_lshlrev_b32 %s, 3, %s" % (v(vPO), v(vPO)))
    slot(T[0], FO, [(sTBW, 16)])
    addr(T[1], sLB, X1F, [(sTBW, XSTR)])
    addr(T[2], sLB, ST1, [(sTBW, 4096)])
    e("v_add_u32 %s, %d, %s" % (v(vCA), CONST, v(vH16)))
    tr_rows(vW2, 192)
    e("v_add_u32 %s, 0x10000, %s" % (v(vW0), v(vW2)))
    e("v_add_u32 %s, %d, %s" % (v(vW1), 21 * 3072, v(vW0)))


def n512_setup(wo):
    J = 16 if wo else 39
    AK, AS = vACC, vACC + 16
    if not wo:
        addr(T[0], None, CONST + 384, [(sKH, 512)])
        e("v_add_u32 %s, %s, %s" % (v(vPO), T[0], v(vH16)))
        for i in range(4):
            e("ds_read_b128 %s, %s offset:%d" % (v(AS + 4 * i, 4), v(vPO), 32 * i))
    unpack(AK, vRES, 8)
    tr_rows(vW0, 128)
    e("v_bfe_u32 %s, v0, 3, 1" % v(vPD))
    e("v_xor_b32 %s, %s, %s" % (v(vPD), sKH, v(vPD)))
    e("v_lshl_or_b32 %s, %s, 6, %s" % (v(vW0), v(vPD), v(vW0)))
    e("s_mul_i32 %s, %s, %d" % (T[0], sKH, J * 2048))
    e("v_add_u32 %s, %s, %s" % (v(vW0), T[0], v(vW0)))
    e("v_xor_b32 %s, 64, %s" % (v(vW1), v(vW0)))
    if not wo:
        e("v_add_u32 %s, 0x10000, %s" % (v(vW2), v(vW0)))
        e("v_add_u32 %s, 0x10000, %s" % (v(vW3), v(vW1)))
    if wo:
        e("v_and_b32 %s, 15, v0" % v(vPO))
        slot(T[0], FA, [(sTBN, 32), (sKH, 16)])
        addr(T[1], sLB, OF, [(sTBN, XSTR), (sKH, 16384)])
    else:
        e("v_and_b32 %s, 7, v0" % v(vPO))
        slot(T[0], FH, [(sTBN, 16), (sKH, 7)])
        addr(T[1], sLB, HF, [(sTBN, HSTR), (sKH, 43 * 1024)])
    e("v_lshlrev_b32 %s, 3, %s" % (v(vPO), v(vPO)))
    if not wo:
        e("s_waitcnt lgkmcnt(0)")
        for p in range(8):
            e("v_pk_add_f32 %s, %s, %s" % (v(AK + 2 * p, 2), v(AK + 2 * p, 2), v(AS + 2 * p, 2)))


def n512(kind):
    wo = kind == "wo"
    ph = "o" if wo else "g"
    cm("================ %s" % ("output projection + residual" if wo else "MLP down projection + residual"))
    NS, J = (16, 16) if wo else (43, 39)
    ND = OPT("nd", 10 if wo else 13)
    AK, AS = vACC, vACC + 16
    hl, done = newlab("n_h"), newlab("n_done")
    e("s_cmp_ge_u32 %s, 4" % sW)
    e("s_cbranch_scc1 %s" % hl)
    if not wo:
        e("s_barrier")

    def rd(j, i):
        jj = j % J
        base, off = ((vW0, vW1)[i], jj * 2048) if jj < 32 else ((vW2, vW3)[i], (jj - 32) * 2048)
        d = vWB + (j % 3) * 8 + 4 * i
        e("ds_read_b64_tr_b16 %s, %s offset:%d" % (v(d, 2), v(base), off))
        e("ds_read_b64_tr_b16 %s, %s offset:%d" % (v(d + 2, 2), v(base), off + 1024))
    for j in range(2):
        for i in range(2):
            rd(j, i)
    poll(T[0])
    stamp()
    areg = lambda j: vA + 4 * (j % 32)
    load_frags(T[1], 0, ND, areg)
    fine(ph)

    def late_addresses():
        e("s_and_b32 %s, %s, 1" % (T[2], sW))
        if wo:
            addr(T[0], None, 0, [(T[2], 4096), (sKH, 32768)])
            e("s_xor_b32 %s, %s, 32768" % (T[3], T[0]))
            publish_addr(X1F, ST1, 0, FO)
        else:
            addr(T[0], None, 98304, [(T[2], 4096), (sKH, 8192)])
            e("s_xor_b32 %s, %s, 8192" % (T[3], T[0]))
            publish_addr(XF, ST, LFL_L * 8, FX)
        e("v_add_u32 %s, %s, %s" % (v(vPO), T[0], v(vL16)))
        e("v_add_u32 %s, %s, %s" % (v(vPD), T[3], v(vL16)))
    sh = capture(late_addresses)
    for j in range(NS):
        issued = min(NS, ND + j)
        if not wo and j == J - 2:
            e("s_barrier")
        if j < NS - 1:
            last2 = j == NS - 2
            e("s_waitcnt vmcnt(%d) lgkmcnt(%d)" % (0 if last2 else issued - j - 1, 0 if last2 else 4))
        if j in ((0, 4, 8, 15) if wo else (0, 11, 22, 42)):
            fine(ph)
        seq = [(j, 0), (j, 1)] if j < NS - 2 else [(j, 1), (j + 1, 1)] if j == NS - 2 else [(j - 1, 0), (j, 0)]
        for m, (jj, i) in enumerate(seq):
            acc = AK + 16 * i
            mfma(acc, vWB + (jj % 3) * 8 + 4 * i, areg(jj), "0" if (jj == 0 and i == 1) else acc)
            if j + 2 < NS:
                rd(j + 2, i)
            if m == 0 and ND + j < NS:
                load_frags(T[1], ND + j, 1, areg, False)
            if j >= 2:
                g = (j - 2) * 2 + m
                for x in sh[2 * g:2 * g + 2]:
                    e(x)
        if j == (8 if wo else NS - J - 1):
            e("s_barrier")
    assert len(sh) <= 4 * (NS - 2)
    e("s_nop 9")
    for i in range(4):
        e("ds_write_b128 %s, %s offset:%d" % (v(vPO), v(AS + 4 * i, 4), 1024 * i))
    e("s_waitcnt lgkmcnt(0)")
    e("s_barrier")
    stamp()
    for i in range(4):
        e("ds_read_b128 %s, %s offset:%d" % (v(AS + 4 * i, 4), v(vPD), 1024 * i))
    for i in range(4):
        e("s_waitcnt lgkmcnt(%d)" % (3 - i))
        for p in (2 * i, 2 * i + 1):
            e("v_pk_add_f32 %s, %s, %s" % (v(AK + 2 * p, 2), v(AK + 2 * p, 2), v(AS + 2 * p, 2)))
    for p in range(8):
        e("v_cvt_pk_bf16_f32 %s, %s, %s" % (v(vRES + p), v(AK + 2 * p), v(AK + 2 * p + 1)))
    if wo:
        publish_x(AK, 20, ffn1_setup)
    else:
        last = newlab("last")
        e("s_cmp_lg_u32 %s, 0" % sL)
        e("s_cbranch_scc1 %s" % last)
        publish_x(AK, 20, lambda: qkv_setup(True))
        e("s_branch %s" % done)
        lab(last)
        srd(sTMP, 28, 2048 * 1024)
        e("v_and_b32 v16, 31, v0")
        e("v_lshlrev_b32 v16, 10, v16")
        e("v_add_u32 v16, v16, %s" % v(vH16))
        addr(T[0], None, 0, [(sXCD, 262144), (sTBN, 32768), (sNT, 64)])
        for g in range(2):
            e("v_permlane32_swap_b32 %s, %s" % (v(vRES + 4 * g), v(vRES + 4 * g + 2)))
            e("v_permlane32_swap_b32 %s, %s" % (v(vRES + 4 * g + 1), v(vRES + 4 * g + 3)))
        for g in range(2):
            e("buffer_store_dwordx4 %s, v16, %s, %s offen offset:%d" % (v(vRES + 4 * g, 4), sTMP, T[0], 32 * g))
    e("s_branch %s" % done)
    lab(hl)
    if wo:
        voff_192(44)
        e("s_lshl_b32 %s, %s, 2" % (T[3], sHW))
        e("s_min_u32 %s, %s, 10" % (T[3], T[3]))
        addr(T[0], None, 8 * 16 * 2752, [(T[3], 16 * 2752), (sC, 192)])
        addr(T[1], None, 65536 + 8 * 3072, [(T[3], 3072)])
        dma_w1(2)
        e("s_mov_b32 %s, %s" % (T[3], T[0]))
        e("s_mov_b32 %s, %s" % (T[4], T[1]))
        w0, w1, w2 = newlab("wcs"), newlab("wcs"), newlab("wcs")
        e("s_cmp_lg_u32 %s, 0" % sL)
        e("s_cbranch_scc1 %s" % w0)
        tr_rows(43, 192)
        colsum_begin()
        addr(T[0], None, 65536, [(sHW, 2 * 3072)])
        colsum_w1()
        addr(T[0], None, 65536 + 22 * 3072, [(sHW, 2 * 3072)])
        colsum_w1()
        lab(w0)
        e("s_mov_b32 %s, %s" % (T[0], T[3]))
        e("s_mov_b32 %s, %s" % (T[1], T[4]))
        e("s_barrier")
        dma_w1(2)
        e("s_barrier")
        e("s_cmp_lg_u32 %s, 3" % sHW)
        e("s_cbranch_scc1 %s" % w1)
        addr(T[0], None, 30 * 16 * 2752, [(sC, 192)])
        e("s_mov_b32 %s, %d" % (T[1], 58 * 1024))
        dma_w1(2)
        lab(w1)
        e("s_cmp_lg_u32 %s, 0" % sL)
        e("s_cbranch_scc1 %s" % done)
        cm("own late k-steps: 8-11 | 12-15 | 16-19 | 20-21 and 30-31")
        e("s_and_b32 %s, %s, 1" % (T[4], sHW))
        addr(T[0], None, 65536 + 8 * 3072, [(sHW, 4 * 3072)])
        e("s_add_u32 %s, %s, %d" % (T[3], T[0], 2 * 3072))
        e("s_cmp_eq_u32 %s, 3" % sHW)
        e("s_cselect_b32 %s, %d, %s" % (T[3], 58 * 1024, T[3]))
        e("s_waitcnt vmcnt(0)")
        colsum_w1()
        e("s_mov_b32 %s, %s" % (T[0], T[3]))
        colsum_w1()
        colsum_partial()
        e("v_lshlrev_b32 v47, 16, v224")
        addr(T[0], None, B1_L, [(sHW, 128)])
        e("v_add_u32 v42, %s, v41" % T[0])
        e("ds_write_b32 v42, v47")
        e("v_lshlrev_b32 v49, 16, v225")
        addr(T[0], None, CONST + 384, [(T[4], 512)])
        e("v_add_u32 v42, %s, v41" % T[0])
        e("ds_write_b32 v42, v49")
    else:
        e("s_waitcnt vmcnt(0)")
        fine("w")
        e("s_barrier")
        fine("w")
        e("s_lshr_b32 %s, %s, 1" % (T[3], sHW))
        e("s_and_b32 %s, %s, 1" % (T[4], sHW))
        addr(T[0], None, 78 * 8192, [(T[3], 86 * 8192), (T[4], 4 * 8192), (sNB, 128)])
        addr(T[1], None, 0, [(T[3], 78 * 1024), (T[4], 4096)])
        e("s_barrier")
        for k in range(4):
            e("s_add_u32 m0, %s, %d" % (T[1], 1024 * k))
            e("s_nop 0")
            dma1(40, T[0], 4)
            e("s_add_u32 %s, %s, 8192" % (T[0], T[0]))
        e("s_waitcnt vmcnt(0)")
        e("s_barrier")
        stash_addr()
        e("s_barrier")
        e("s_cmp_lg_u32 %s, 0" % sL)
        e("s_cbranch_scc1 %s" % done)
        for k in range(24):
            e("ds_write_b128 v42, %s offset:%d" % (v(vSTASH + 4 * k, 4), 1024 * k))
    lab(done)
    stamp()


def ffn1():
    cm("================ MLP up projection + GELU")
    hl, done = newlab("f1_h"), newlab("f1_done")
    e("s_cmp_ge_u32 %s, 4" % sW)
    e("s_cbranch_scc1 %s" % hl)
    idle = newlab("f1_idle")
    e("s_cmp_eq_u32 %s, 15" % sC)
    e("s_cbranch_scc1 %s" % idle)
    setup = newlab("f1_setup")
    TAIL.extend([idle + ":"] + ["    s_barrier"] * 3 + ["    s_branch " + setup])

    lds = Lds()

    def rd(ks, i):
        d = vWB + (ks % 3) * 12 + 4 * i
        base, off = (vW0, ks * 3072) if ks < 21 else (vW1, (ks - 21) * 3072) if ks < 30 else (vW2, 58 * 1024 + (ks - 30) * 3072)
        lds.op(("w", ks), "ds_read_b64_tr_b16 %s, %s offset:%d" % (v(d, 2), v(base), off + 64 * i))
        lds.op(("w", ks), "ds_read_b64_tr_b16 %s, %s offset:%d" % (v(d + 2, 2), v(base), off + 64 * i + 1536))

    def wait(name):
        n = lds.need(name)
        if n is not None:
            e("s_waitcnt lgkmcnt(%d)" % n)
    for ks in range(2):
        for i in range(3):
            rd(ks, i)
    poll(T[0])
    stamp()

    def item(n):
        if n < 32:
            load_frags(T[1], n, 1, lambda j: vA + 4 * j, n % 4 == 0)
        else:
            e("buffer_load_dwordx4 %s, %s, %s, %s offen offset:%d sc1" % (v(vSTS + 4 * (n - 32), 4), v(vL16), sWS, T[2], 1024 * (n - 32)))
    sched = [[ks + DEPTH] if ks + DEPTH < 32 else [] for ks in range(32)]
    for k in range(4):
        sched[3 + 2 * k].append(32 + k)
    order = list(range(DEPTH))
    for n in range(DEPTH):
        item(n)
    fine("f")
    c0 = -2.0 * 1.4426950408889634 * 0.7978845608028654
    GC = vSTS + 4

    def early():
        addr(T[4], sLB, HF, [(sTBW, HSTR), (sC, 6144)])
        e("s_add_u32 %s, %s, 4096" % (T[5], T[4]))
        slot(T[6], FH, [(sTBW, 16), (sC, 1)])
    mid = stats_code(True) + ["v_mul_f32 %s, %s, %s" % (v(vMU), v(vMU), v(vR)), "v_mov_b32 %s, %s" % (v(GC), f32(c0)),
                              "v_mov_b32 %s, %s" % (v(GC + 1), f32(c0 * 0.044715)), "v_mov_b32 %s, 1.0" % v(GC + 2)]
    sh = [(10, lambda x=x: e(x)) for x in capture(early)] + [(17, lambda x=x: e(x)) for x in mid]
    cm("bias' = b1 - mean*rstd*colsum is formed under the last MFMAs, in dead activation registers")
    rdc, fmc = [], []
    for t in range(3):
        rdc.append([(22 if t < 2 else 24, lambda t=t, k=k: lds.op(("c", t), "ds_read_b128 %s, %s offset:%d" % (
            v(16 + 32 * t + 4 * k, 4), v(vCA), 512 + 512 * (k // 4) + t * 128 + 32 * (k % 4)))) for k in range(8)])
        fmc.append([(22, lambda t=t: wait(("c", t)))] + [(22, lambda t=t, r=r: e("v_fma_f32 %s, -%s, %s, %s" % (
            v(32 + 32 * t + r), v(vMU), v(16 + 32 * t + r), v(32 + 32 * t + r)))) for r in range(16)])
    mix = lambda a, b: [x for k in range(max(len(a), len(b))) for x in a[2 * k:2 * k + 2] + b[k:k + 1]]
    sh += rdc[0] + rdc[1][:4] + mix(fmc[0], rdc[1][4:]) + mix(fmc[1], rdc[2]) + fmc[2]
    pos = 0
    for ks in range(32):
        if ks in (6, 22):
            e("s_barrier")
        newest = max(order.index(n) for n in ([ks, 35] if ks >= 17 else [ks]))
        lg = lds.need(("w", ks))
        e("s_waitcnt vmcnt(%d)%s" % (len(order) - 1 - newest, "" if lg is None else " lgkmcnt(%d)" % lg))
        if ks in FINEKS:
            fine("f")
        for i in range(3):
            mfma(vACC + 16 * i, vWB + (ks % 3) * 12 + 4 * i, vA + 4 * ks, "0" if ks == 0 else vACC + 16 * i)
            if ks + 2 < 32:
                rd(ks + 2, i)
            if i < len(sched[ks]):
                item(sched[ks][i])
                order.append(sched[ks][i])
            for _ in range(3 if ks < 30 else 5):
                if pos < len(sh) and ks >= sh[pos][0]:
                    sh[pos][1]()
                    pos += 1
    for x in sh[pos:]:
        x[1]()
    stamp()
    e("s_nop %d" % max(0, 9 - len(sh[pos:])))
    Z, P = 120, vWB
    for t in range(3):
        acc, b1 = vACC + 16 * t, 32 + 32 * t
        for p in range(8):
            e("v_pk_fma_f32 %s, %s, %s, %s op_sel_hi:[1,0,1]" %
              (v(acc + 2 * p, 2), v(acc + 2 * p, 2), v(vR, 2), v(b1 + 2 * p, 2)))
        for p in range(8):
            e("v_pk_mul_f32 %s, %s, %s" % (v(Z + 2 * p, 2), v(acc + 2 * p, 2), v(acc + 2 * p, 2)))
        for p in range(8):
            e("v_pk_fma_f32 %s, %s, %s, %s op_sel:[0,1,0] op_sel_hi:[1,1,0]" %
              (v(Z + 2 * p, 2), v(Z + 2 * p, 2), v(GC, 2), v(GC, 2)))
        for p in range(8):
            e("v_pk_mul_f32 %s, %s, %s" % (v(Z + 2 * p, 2), v(Z + 2 * p, 2), v(acc + 2 * p, 2)))
        for i in range(16):
            e("v_exp_f32 %s, %s" % (v(Z + i), v(Z + i)))
        for p in range(8):
            e("v_pk_add_f32 %s, %s, %s op_sel_hi:[1,0]" % (v(Z + 2 * p, 2), v(Z + 2 * p, 2), v(GC + 2, 2)))
        for i in range(16):
            e("v_rcp_f32 %s, %s" % (v(Z + i), v(Z + i)))
        for p in range(8):
            e("v_pk_mul_f32 %s, %s, %s" % (v(acc + 2 * p, 2), v(acc + 2 * p, 2), v(Z + 2 * p, 2)))
        for p in range(8):
            e("v_cvt_pk_bf16_f32 %s, %s, %s" % (v(P + 8 * t + p), v(acc + 2 * p), v(acc + 2 * p + 1)))
        lstores(["buffer_store_dwordx4 %s, %s, %s, %s offen offset:%d" %
                 (v(P + 8 * t + 4 * hh, 4), v(vL16), sWS, T[4 + (2 * t + hh) // 4], ((2 * t + hh) % 4) * 1024) for hh in range(2)])
        if t == 0:
            e("s_barrier")
        if t != 1:
            fine("f")
    lab(setup)
    n512_setup(False)
    e("s_cmp_eq_u32 %s, 15" % sC)
    e("s_cbranch_scc1 %s" % done)
    flag(T[6], 0, local=True)
    e("s_branch %s" % done)
    lab(hl)
    h1 = newlab("fh1")
    voff_128(40)
    srd(sTMP, 24, 1376 * 1024)
    e("s_waitcnt vmcnt(0) lgkmcnt(0)")
    e("s_barrier")
    e("s_cmp_lg_u32 %s, 0" % sL)
    e("s_cbranch_scc1 %s" % h1)
    colsum_combine(CS1_L)
    e("s_waitcnt lgkmcnt(0)")
    lab(h1)
    E0 = OPT("e0", 4)
    if E0:
        dma_w2(0, 0, E0, OPT("e0p", 1) or -1)
    e("s_barrier")
    fine("w")
    dma_w2(86, 78 * 1024, 7, None)
    dma_w2(4 * E0, 4 * E0 * 1024, 14 - E0, None)
    dma_w2(86 + 28, (78 + 28) * 1024, 6, None)
    fine("w")
    e("s_barrier")
    fine("w")
    dma_w2(54, 54 * 1024, 6)
    dma_w2(86 + 50, (78 + 50) * 1024, 7)
    fine("w")
    lab(done)
    stamp()


def epilogue():
    e("s_add_u32 %s, %s, 1" % (sL, sL))
    e("s_add_u32 %s, %s, %d" % (sFB, sFB, LFL_L * 8))
    e("s_cmp_lt_u32 %s, 2" % sL)
    e("s_cbranch_scc1 L_layer")
    if PROFILE:
        e("s_memrealtime s[22:23]")
        e("s_waitcnt lgkmcnt(0)")
        stamp("s23")
        e("s_lshl_b32 %s, s2, 3" % T[0])
        e("s_add_u32 %s, %s, %s" % (T[0], T[0], sW))
        e("s_lshl_b32 %s, %s, 8" % (T[0], T[0]))
        e("s_add_u32 %s, %s, 0x%x" % (T[0], T[0], TSB))
        e("s_mov_b64 exec, 1")
        for i, r in enumerate([68, 18, 19] + list(range(STAMP0, STAMP0 + 30)) + [22, 23, 0, 1]):
            e("v_mov_b32 v16, s%d" % r)
            e("buffer_store_dword v16, off, %s, %s offset:%d" % (sWS, T[0], 4 * i))
        e("s_mov_b64 exec, 0xff")
        e("v_lshlrev_b32 v16, 2, v0")
        e("buffer_store_dword v5, v16, %s, %s offen offset:148" % (sWS, T[0]))
        e("s_mov_b64 exec, -1")
    if "--dbg" in sys.argv:
        sk = newlab("dbg")
        e("s_or_b32 %s, s2, %s" % (T[0], sW))
        e("s_cmp_lg_u32 %s, 0" % T[0])
        e("s_cbranch_scc1 %s" % sk)
        srd(sTMP, 30, 256)
        e("s_mov_b64 exec, 1")
        for i, r in enumerate([19, 72, 73, 74, 75, 76, 77, 80, 83, 86, 89, 90, 91, 95, 98, 101]):
            e("s_sub_u32 %s, s%d, s18" % (T[0], r))
            e("v_mov_b32 v16, %s" % T[0])
            e("buffer_store_dword v16, off, %s, 0 offset:%d" % (sTMP, 4 * i))
        e("s_mov_b64 exec, -1")
        lab(sk)
    if OPT("hold", 0):
        hl = newlab("hold")
        lab(hl)
        e("s_memrealtime s[70:71]")
        e("s_waitcnt lgkmcnt(0)")
        e("s_sub_u32 s70, s70, s68")
        e("s_cmp_lt_u32 s70, %d" % OPT("hold", 0))
        e("s_cbranch_scc1 %s" % hl)
    cm("advance the hand-off tag for the next launch")
    e("s_or_b32 %s, s2, %s" % (T[0], sW))
    e("s_cmp_lg_u32 %s, 0" % T[0])
    e("s_cbranch_scc1 L_end")
    e("s_mov_b64 exec, 1")
    e("buffer_store_dword %s, off, %s, 0" % (v(vFV), sWS))
    lab("L_end")
    e("s_endpgm")
    L.extend(TAIL)


HEADER = open(f"cdna_kernels/{NAME}.s.ref").read().split("; Override launch")[0]


OVERVIEW = """;
; Generated by gen/gen.py (hand-written generator). One persistent launch, one 8-wave workgroup per CU.
; Hand-offs: payload stores, vmcnt wait, then an 8-byte flag {tag, ~tag}; tag = ws[0] + 16 differs per launch.
;   Every workgroup reports the die it runs on. If a die group shares one die its hand-offs use plain stores
"""


def main():
    prologue()
    p0()
    lab("L_layer")
    qkv()
    attention()
    n512("wo")
    ffn1()
    n512("f2")
    epilogue()
    k = NAME + "_kernel"
    out = HEADER
    out += "; @launch grid=(256,1,1) block=(512,1,1) lds=%d\n" % LDS_BYTES
    out += OVERVIEW
    out += '.amdgcn_target "amdgcn-amd-amdhsa--gfx950"\n.text\n.globl %s\n.p2align 8\n.type %s,@function\n%s:\n' % (k, k, k)
    out += "\n".join(L) + "\n"
    out += """.section .rodata,"a"
.p2align 6
.amdhsa_kernel %s
  .amdhsa_next_free_vgpr 256
  .amdhsa_next_free_sgpr 102
  .amdhsa_accum_offset 256
  .amdhsa_group_segment_fixed_size 0
  .amdhsa_kernarg_size 88
  .amdhsa_user_sgpr_count 2
  .amdhsa_user_sgpr_kernarg_segment_ptr 1
  .amdhsa_system_sgpr_workgroup_id_x 1
.end_amdhsa_kernel
""" % k
    open(OUT, "w").write(out)
    import subprocess
    r = subprocess.run([sys.executable, "hazard.py", OUT], capture_output=True, text=True).stdout
    if not r.strip().endswith("violations 0"):
        print(r)


main()
```

```python
import struct
import sys

NAME = "interleave_layers__softmax_full_mha__mixer_channel_mlp__prompt"
PROFILE = "--prof" in sys.argv
CLK = "s_memrealtime" if "--rt" in sys.argv else "s_memtime"
FORCE_SLOW = "--slow" in sys.argv
FORCE_GLOBAL = "--global" in sys.argv
OUT = [a for a in sys.argv[1:] if not a.startswith("--")]
OUT = OUT[0] if OUT else f"cdna_kernels/{NAME}.s"


def OPT(name, default):
    a = [x.split("=")[1] for x in sys.argv if x.startswith("--%s=" % name)]
    return int(a[0]) if a else default


def f32(x):
    return "0x%08x" % struct.unpack("<I", struct.pack("<f", x))[0]


WS_SIZE = 0x10000000
FLG = 0x100000
FI = 0
GFL, GFL_L = 0xA00000, 0x100000
KVF, KVF_L = 0x200000, 0x400000
ARENA, ARENA_X = 0x1000000, 0x200000
XSTR, HSTR = 33 * 1024, 97 * 1024
XF, OF, BLK, ST, LFL = 0, 0x48000, 0x90000, 0x158000, 0x160000
X1F, ST1, HF, QF, KVL = XF, ST, BLK, BLK, BLK + 32768
FX, FQ, FA, FO, FH, LFL_L = 0, 128, 256, 512, 640, 768
TSB = 0x4000000
DEPTH = OPT("depth", 10)
PACE = OPT("pace", 5)
RED = 140 * 1024
CONST = 156 * 1024
CSQ_L, CS1_L, B1_L, STAT_L, PART_L = CONST, CONST + 512, CONST + 1024, CONST + 1536, CONST + 2560
MODE_L = B1_L + 400
LDS_BYTES = 160 * 1024
sWS, sTMP = "s[4:7]", "s[8:11]"
sW, sNONCE, sL, sLB, sFB = "s34", "s35", "s36", "s37", "s38"
sXCD, sJ, sTBW, sC, sTBN, sNB, sKH, sNT, sHEAD, sQB = ("s%d" % i for i in range(39, 49))
sHW = "s49"
T = ["s%d" % i for i in range(50, 60)]
sCNT, sIT = "s60", "s61"
sMV = "s[62:63]"
sM0, sM1 = "s[64:65]", "s[66:67]"
sMODE = "s3"
STAMP0 = 72
vLANE, vL16, vFV, vPO, vT5, vPD = 0, 1, 2, 4, 5, 6
vRES = 8
vA, vACC, vWB, vSTS = 16, 144, 192, 228
vW0, vW1, vMU, vW2, vR, vW3, vRQ, vCA, vTR, vK16, vVOF, vH16 = 244, 245, 246, 247, 248, 249, 250, 251, 252, 253, 254, 255
vSTASH = 128
QL = 128 * 1024
POLL_LIMIT = 1 << 16

L = []
TAIL = []
LATE = []
uid = [0]
nstamp = [0]


def e(s):
    L.append("    " + s)


def lab(n):
    L.append(n + ":")


def cm(s):
    L.append("    ; " + s)


def v(i, n=1):
    return "v%d" % i if n == 1 else "v[%d:%d]" % (i, i + n - 1)


def capture(f):
    n = len(L)
    f()
    out = [x.strip() for x in L[n:]]
    del L[n:]
    return out


def newlab(p):
    uid[0] += 1
    return "L_%s_%d" % (p, uid[0])


def stamp(fixed=None):
    if not PROFILE:
        return
    e(CLK + " s[70:71]")
    e("s_waitcnt lgkmcnt(0)")
    if fixed:
        e("s_mov_b32 %s, s70" % fixed)
        return
    e("s_mul_i32 s69, %s, 15" % sL)
    e("s_add_u32 m0, s69, %d" % nstamp[0])
    e("s_nop 1")
    e("s_movreld_b32 s%d, s70" % STAMP0)
    nstamp[0] += 1
    assert nstamp[0] <= 15


FINE = [a.split("=")[1] for a in sys.argv if a.startswith("--fine=")]
FINE = FINE[0] if FINE else None
nfine = [0]
FINEKS = eval([a.split('=')[1] for a in sys.argv if a.startswith('--ks=')][0]) if any(a.startswith('--ks=') for a in sys.argv) else (0, 8, 16, 31)


def fine(phase):
    if not PROFILE or FINE != phase:
        return
    e(CLK + " s[70:71]")
    e("s_waitcnt lgkmcnt(0)")
    sk = newlab("fs")
    e("s_cmp_lg_u32 %s, %d" % (sL, 0 if "--l0" in sys.argv else 1))
    e("s_cbranch_scc1 %s" % sk)
    e("v_writelane_b32 v5, s70, %d" % nfine[0])
    lab(sk)
    nfine[0] += 1


def srd(dst, lo, size):
    b = int(dst[2:dst.index(":")])
    e("s_mov_b32 s%d, s%d" % (b, lo))
    e("s_and_b32 s%d, s%d, 0xffff" % (b + 1, lo + 1))
    e("s_mov_b32 s%d, %s" % (b + 2, size if isinstance(size, str) else hex(size)))
    e("s_mov_b32 s%d, 0x20000" % (b + 3))


def poll(soff):
    a, b = newlab("poll"), newlab("pok")
    regs = (vPD, 16) if OPT("p2", 1) else (vPD,)
    ld = lambda r: e("buffer_load_dwordx2 %s, %s, %s, %s offen sc1" % (v(r, 2), v(vPO), sWS, soff))
    e("s_mov_b32 %s, %d" % (sCNT, POLL_LIMIT))
    if len(regs) == 2:
        ld(regs[0])
    lab(a)
    for k, r in enumerate(regs):
        ld(regs[(k + 1) % len(regs)])
        e("s_waitcnt vmcnt(%d)" % (len(regs) - 1))
        e("v_cmp_eq_u64 vcc, %s, %s" % (v(r, 2), v(vFV, 2)))
        e("s_nop 0")
        e("s_cmp_eq_u64 vcc, -1")
        e("s_cbranch_scc1 %s" % b)
    e("s_sub_u32 %s, %s, 1" % (sCNT, sCNT))
    e("s_cbranch_scc0 %s" % a)
    e("s_endpgm")
    lab(b)


def lstores(lines):
    g, d = newlab("wt"), newlab("wtd")
    e("s_cmp_eq_u32 %s, 0" % sMODE)
    e("s_cbranch_scc1 %s" % g)
    for x in lines:
        e(x)
    lab(d)
    TAIL.append(g + ":")
    for x in lines:
        TAIL.append("    " + x + (" sc1" if x.startswith("buffer_store") else ""))
    TAIL.append("    s_branch " + d)


def flag(soff, n=0, local=False):
    if n is not None:
        e("s_waitcnt vmcnt(%d)" % n)
    if local:
        e("s_mov_b64 exec, 1")
        lstores(["buffer_store_dwordx2 %s, off, %s, %s" % (v(vFV, 2), sWS, soff)])
    else:
        e("v_lshlrev_b32 %s, 3, v0" % v(vPD))
        e("s_mov_b64 exec, 0xffff")
        e("buffer_store_dwordx2 %s, %s, %s, %s offen sc1" % (v(vFV, 2), v(vPD), sWS, soff))
    e("s_mov_b64 exec, -1")


def mode_poll(first=False):
    a, b, glob, out = newlab("mp"), newlab("mpok"), newlab("mpg"), newlab("mpo")
    e("v_and_b32 %s, 31, v0" % v(vPD))
    e("v_lshlrev_b32 %s, 10, %s" % (v(vPD), v(vPD)))
    addr(T[3], None, FLG + FI * 128, [(sXCD, 128)])
    e("v_add_u32 %s, %s, %s" % (v(vPD), T[3], v(vPD)))
    if first:
        e("v_add_u32 %s, %s, %s" % (v(vPD + 1), T[0], v(vPO)))
        e("v_cmp_gt_u32 vcc, 32, v0")
        e("s_nop 1")
        e("v_cndmask_b32 v60, %s, %s, vcc" % (v(vPD), v(vPD + 1)))
    e("s_getreg_b32 %s, hwreg(HW_REG_XCC_ID, 0, 4)" % T[3])
    e("s_mov_b32 %s, %d" % (sCNT, POLL_LIMIT))
    e("s_mov_b32 %s, 1" % sMODE)
    lab(a)
    e("buffer_load_dwordx2 %s, v60, %s, 0 offen sc1" % (v(vPD, 2), sWS))
    e("s_waitcnt vmcnt(0)")
    e("v_xor_b32 %s, %s, %s" % (v(vPD + 1), v(vPD + 1), v(vFV + 1)))
    e("v_cmp_eq_u32 %s, %s, %s" % (sM0, v(vPD), v(vFV)))
    e("v_cmp_eq_u32 %s, %s, %s" % (sM1, T[3], v(vPD + 1)))
    e("v_cmp_gt_u32 vcc, 16, %s" % v(vPD + 1))
    e("s_nop 1")
    e("s_and_b64 %s, %s, %s" % (sM1, sM1, sM0))
    e("s_and_b64 vcc, vcc, %s" % sM0)
    if not FORCE_GLOBAL:
        e("s_cmp_eq_u64 %s, -1" % sM1)
        e("s_cbranch_scc1 %s" % out)
    e("s_cmp_eq_u32 vcc_hi, -1")
    e("s_cbranch_scc0 %s" % b)
    if not FORCE_GLOBAL:
        e("s_cmp_eq_u32 s67, -1")
        e("s_cbranch_scc0 %s" % glob)
    else:
        e("s_branch %s" % glob)
    lab(b)
    e("s_sub_u32 %s, %s, 1" % (sCNT, sCNT))
    e("s_cbranch_scc0 %s" % a)
    e("s_endpgm")
    lab(glob)
    e("s_mov_b32 %s, 0" % sMODE)
    if first:
        e("v_xor_b32 %s, 31, %s" % (v(vFV + 1), v(vFV + 1)))
        publish_addr(XF, ST, 0, FX)
        publish_x(None, 84)
        poll(T[0])
        e("v_xor_b32 %s, 31, %s" % (v(vFV + 1), v(vFV + 1)))
    lab(out)


def slot(dst, base, terms):
    e("s_add_u32 %s, %s, %d" % (dst, sFB, base * 8))
    for r, m in terms:
        e("s_mul_i32 %s, %s, %d" % (T[9], r, m * 8))
        e("s_add_u32 %s, %s, %s" % (dst, dst, T[9]))


def addr(dst, base_reg, const, terms):
    if base_reg is None:
        e("s_mov_b32 %s, 0x%x" % (dst, const))
    else:
        e("s_add_u32 %s, %s, 0x%x" % (dst, base_reg, const))
    for r, m in terms:
        e("s_mul_i32 %s, %s, %d" % (T[9], r, m))
        e("s_add_u32 %s, %s, %s" % (dst, dst, T[9]))


def load_frags(sg, first, n, reg_of, rebase=True):
    for j in range(first, first + n):
        if j % 4 == 0 or (j == first and rebase):
            e("s_add_u32 %s, %s, %d" % (T[8], sg, (j // 4) * 4096))
        e("buffer_load_dwordx4 %s, %s, %s, %s offen offset:%d sc1" %
          (v(reg_of(j), 4), v(vL16), sWS, T[8], (j % 4) * 1024))


def mfma(d, a, b, c):
    e("v_mfma_f32_32x32x16_bf16 %s, %s, %s, %s" % (v(d, 16), v(a, 4), v(b, 4), c if isinstance(c, str) else v(c, 16)))


def half_sum(a, b):
    e("s_nop 1")
    e("v_permlane32_swap_b32 %s, %s" % (v(a), v(b)))
    e("s_nop 1")
    e("v_add_f32 %s, %s, %s" % (v(a), v(a), v(b)))


def tile_stats(y, t):
    e("v_pk_add_f32 %s, %s, %s" % (v(t, 2), v(y, 2), v(y + 2, 2)))
    e("v_pk_mul_f32 %s, %s, %s" % (v(t + 2, 2), v(y, 2), v(y, 2)))
    for p in range(1, 8):
        if p > 1:
            e("v_pk_add_f32 %s, %s, %s" % (v(t, 2), v(t, 2), v(y + 2 * p, 2)))
        e("v_pk_fma_f32 %s, %s, %s, %s" % (v(t + 2, 2), v(y + 2 * p, 2), v(y + 2 * p, 2), v(t + 2, 2)))
    e("v_add_f32 %s, %s, %s" % (v(t), v(t), v(t + 1)))
    e("v_add_f32 %s, %s, %s" % (v(t + 2), v(t + 2), v(t + 3)))
    half_sum(t, t + 2)


def unpack(dst, src, n):
    for i in range(n):
        e("v_lshlrev_b32 %s, 16, %s" % (v(dst + 2 * i), v(src + i)))
        e("v_and_b32 %s, 0xffff0000, %s" % (v(dst + 2 * i + 1), v(src + i)))


def publish_addr(xoff, stoff, fbase_add, fbase):
    addr(T[4], sLB, xoff, [(sTBN, XSTR), (sNT, 2048)])
    e("s_lshr_b32 %s, %s, 2" % (T[6], sNT))
    e("s_and_b32 %s, %s, 3" % (T[7], sNT))
    addr(T[5], sLB, stoff, [(sTBN, 4096), (T[6], 1024), (T[7], 4)])
    slot(T[6], fbase, [(sTBN, 16), (sNT, 1)])
    if fbase_add:
        e("s_add_u32 %s, %s, %d" % (T[6], T[6], fbase_add))


def publish_x(y, t, meanwhile=None):
    lstores(["buffer_store_dwordx4 %s, %s, %s, %s offen" % (v(vRES, 4), v(vL16), sWS, T[4]),
             "buffer_store_dwordx4 %s, %s, %s, %s offen offset:1024" % (v(vRES + 4, 4), v(vL16), sWS, T[4])])
    if y is not None:
        tile_stats(y, t)
    lstores(["buffer_store_dword %s, %s, %s, %s offen" % (v(t), v(vL16), sWS, T[5])])
    if meanwhile:
        meanwhile()
    flag(T[6], local=True)


def prologue():
    e("s_cmp_ge_u32 s2, 256")
    e("s_cbranch_scc1 L_end")
    e("s_load_dwordx16 s[12:27], s[0:1], 0")
    e("s_load_dwordx4 s[28:31], s[0:1], 64")
    e("s_load_dwordx2 s[32:33], s[0:1], 80")
    e("v_lshrrev_b32 v1, 6, v0")
    e("v_and_b32 v0, 63, v0")
    e("v_readfirstlane_b32 %s, v1" % sW)
    e("v_lshlrev_b32 %s, 4, v0" % v(vL16))
    cm("column part of a transposing-read address: (lane&3)*8 + ((lane>>4)&1)*32")
    e("v_and_b32 %s, 3, v0" % v(vTR))
    e("v_lshlrev_b32 %s, 3, %s" % (v(vTR), v(vTR)))
    e("v_bfe_u32 %s, v0, 4, 1" % v(vT5))
    e("v_lshl_or_b32 %s, %s, 5, %s" % (v(vTR), v(vT5), v(vTR)))
    e("v_lshrrev_b32 %s, 5, v0" % v(vT5))
    e("v_lshlrev_b32 %s, 4, %s" % (v(vH16), v(vT5)))
    cm("K fragments are stored with token bits 2 and 3 swapped (matches the sparse-MFMA key order)")
    e("v_and_b32 %s, 0x33, v0" % v(vK16))
    e("v_and_b32 %s, 4, v0" % v(vPO))
    e("v_lshl_or_b32 %s, %s, 1, %s" % (v(vK16), v(vPO), v(vK16)))
    e("v_and_b32 %s, 8, v0" % v(vPO))
    e("v_lshrrev_b32 %s, 1, %s" % (v(vPO), v(vPO)))
    e("v_or_b32 %s, %s, %s" % (v(vK16), v(vK16), v(vPO)))
    e("v_lshlrev_b32 %s, 4, %s" % (v(vK16), v(vK16)))
    cm("V store offset: head parity*128K + half*512 + d*16")
    e("v_and_b32 %s, 15, v0" % v(vVOF))
    e("v_lshlrev_b32 %s, 4, %s" % (v(vVOF), v(vVOF)))
    e("v_lshl_or_b32 %s, %s, 9, %s" % (v(vVOF), v(vT5), v(vVOF)))
    e("v_bfe_u32 %s, v0, 4, 1" % v(vPO))
    e("v_lshl_or_b32 %s, %s, 17, %s" % (v(vVOF), v(vPO), v(vVOF)))
    e("s_and_b32 %s, s2, 7" % sXCD)
    e("s_lshr_b32 %s, s2, 3" % sJ)
    e("s_and_b32 %s, %s, 3" % (sHW, sW))
    e("s_and_b32 %s, %s, 15" % (sC, sJ))
    e("s_lshr_b32 %s, %s, 4" % (T[0], sJ))
    e("s_lshl_b32 %s, %s, 2" % (T[0], T[0]))
    e("s_add_u32 %s, %s, %s" % (sTBW, T[0], sHW))
    e("s_and_b32 %s, %s, 7" % (sNB, sJ))
    e("s_lshr_b32 %s, %s, 3" % (T[0], sJ))
    e("s_mov_b32 %s, %s" % (sHEAD, sJ))
    e("s_lshl_b32 %s, %s, 1" % (sTBN, T[0]))
    e("s_and_b32 %s, %s, 1" % (T[0], sW))
    e("s_add_u32 %s, %s, %s" % (sTBN, sTBN, T[0]))
    e("s_lshr_b32 %s, %s, 1" % (sKH, sHW))
    e("s_lshl_b32 %s, %s, 1" % (sNT, sNB))
    e("s_add_u32 %s, %s, %s" % (sNT, sNT, sKH))
    e("s_mov_b32 s62, 0xffff")
    e("s_mov_b32 s63, 0xffff")
    e("s_mov_b32 %s, 0" % sL)
    addr(sLB, None, ARENA, [(sXCD, ARENA_X)])
    e("s_add_u32 %s, %s, 0x%x" % (sFB, sLB, LFL))
    e("s_waitcnt lgkmcnt(0)")
    srd(sWS, 32, WS_SIZE)
    srd(sTMP, 12, 2048 * 1024)
    cm("hand-off tag: ws[0] only tells this launch's flags from an earlier launch's")
    e("s_load_dword %s, s[32:33], 0" % sNONCE)
    if OPT("hold", 0) and not PROFILE:
        e("s_memrealtime s[70:71]")
        e("s_waitcnt lgkmcnt(0)")
        e("s_mov_b32 s68, s70")
    if PROFILE:
        e("s_memrealtime s[70:71]")
        e("s_waitcnt lgkmcnt(0)")
        e("s_mov_b32 s68, s70")
        stamp("s18")


def make_tag():
    e("s_waitcnt lgkmcnt(0)")
    e("s_add_u32 %s, %s, 16" % (sNONCE, sNONCE))
    e("v_mov_b32 %s, %s" % (v(vFV), sNONCE))
    e("v_not_b32 %s, %s" % (v(vFV + 1), v(vFV)))


def code_lines(first, last, lanes, tmp, behind=False):
    pc = newlab("pc")
    e("s_getpc_b64 s[70:71]")
    lab(pc)
    e("s_mul_i32 %s, %s, %d" % (T[9], sJ, lanes * 128))
    e("v_lshlrev_b32 %s, 7, v0" % v(tmp))
    e("v_add_u32 %s, %s, %s" % (v(tmp), T[9], v(tmp)))
    e("v_min_u32 %s, %s-%s-4, %s" % (v(tmp), last, first, v(tmp)))
    if behind:
        e("s_sub_u32 s70, s70, %s-%s" % (pc, first))
        e("s_subb_u32 s71, s71, 0")
    else:
        e("s_add_u32 s70, s70, %s-%s" % (first, pc))
        e("s_addc_u32 s71, s71, 0")
    e("v_mov_b32 %s, s71" % v(tmp + 1))
    e("v_add_co_u32 %s, vcc, s70, %s" % (v(tmp), v(tmp)))
    e("s_nop 1")
    e("v_addc_co_u32 %s, vcc, 0, %s, vcc" % (v(tmp + 1), v(tmp + 1)))
    e("s_mov_b64 exec, 0x%x" % ((1 << lanes) - 1))
    e("global_load_dword %s, %s, off" % (v(tmp + 2), v(tmp, 2)))
    e("s_mov_b64 exec, -1")


def qkv_setup(next_layer):
    e("v_and_b32 %s, 15, v0" % v(vPO))
    e("v_lshlrev_b32 %s, 3, %s" % (v(vPO), v(vPO)))
    slot(T[0], FX + (LFL_L if next_layer else 0), [(sTBW, 16)])
    addr(T[1], sLB, XF, [(sTBW, XSTR)])
    addr(T[2], sLB, ST, [(sTBW, 4096)])
    e("v_add_u32 %s, %d, %s" % (v(vCA), CONST, v(vH16)))
    tr_pair(vW0)
    e("v_xor_b32 %s, 64, %s" % (v(vW2), v(vW0)))
    tr_rows(vW1, 64)
    e("v_add_u32 %s, 0x10000, %s" % (v(vW1), v(vW1)))


def p0():
    cm("================ P0 (waves 0-3): x tile -> residual registers, fragments and row statistics")
    p0end, noid, nox, npt = newlab("p0end"), newlab("noid"), newlab("nox"), newlab("npt")
    e("s_cmp_ge_u32 %s, 4" % sW)
    e("s_cbranch_scc1 %s" % nox)
    e("v_and_b32 %s, 31, v0" % v(vPO))
    e("v_lshlrev_b32 %s, 10, %s" % (v(vPO), v(vPO)))
    e("v_add_u32 %s, %s, %s" % (v(vPO), v(vPO), v(vH16)))
    addr(T[0], None, 0, [(sXCD, 262144), (sTBN, 32768), (sNT, 64)])
    for g in range(2):
        e("buffer_load_dwordx4 %s, %s, %s, %s offen offset:%d" % (v(vRES + 4 * g, 4), v(vPO), sTMP, T[0], 32 * g))
    lab(nox)
    e("v_lshlrev_b32 v17, 7, v0")
    for bit, wave in ((1, OPT("w1", 6)), (2, OPT("w2", 5))):
        if not OPT("qft", 3) & bit:
            continue
        nq = newlab("nq")
        e("s_cmp_lg_u32 %s, %d" % (sW, wave))
        e("s_cbranch_scc1 %s" % nq)
        srd(sTMP, 14, 512 * 3072)
        if bit == 1:
            cm("first touch of Wqkv, one line per lane, spread over all workgroups")
            e("s_mul_i32 %s, s2, %d" % (T[0], 48 * 128))
            e("v_mov_b32 v19, v17")
        else:
            cm("one 128-byte column class of Wqkv arrives slowest: the die group requests its lines up front")
            addr(T[0], None, 384, [(sJ, 48 * 1024)])
            e("v_lshlrev_b32 v19, 10, v0")
        e("s_mov_b32 exec_hi, 0xffff")
        e("buffer_load_dword v16, v19, %s, %s offen" % (sTMP, T[0]))
        e("s_mov_b64 exec, -1")
        lab(nq)
    if OPT("cpf", 3) & 1:
        nc = newlab("nc")
        e("s_cmp_lg_u32 %s, 7" % sW)
        e("s_cbranch_scc1 %s" % nc)
        code_lines("L_layer", "L_wo", 5, 20)
        lab(nc)
    e("s_cmp_lg_u32 %s, 4" % sW)
    e("s_cbranch_scc1 %s" % npt)
    cm("statistics and flag lines receive partial writes: bring them into L2 first")
    addr(T[0], sLB, ST, [(sJ, 11 * 128)])
    e("s_mov_b64 exec, 0x7ff")
    e("buffer_load_dword v18, v17, %s, %s offen sc1" % (sWS, T[0]))
    e("s_mov_b64 exec, -1")
    lab(npt)
    e("s_cmp_ge_u32 %s, 4" % sW)
    e("s_cbranch_scc1 %s" % p0end)
    stamp("s0")
    make_tag()
    e("s_getreg_b32 %s, hwreg(HW_REG_XCC_ID, 0, 4)" % T[7])
    e("s_mov_b32 %s, 1" % sMODE)
    e("v_xor_b32 %s, %s, %s" % (v(vFV + 1), T[7], v(vFV + 1)))
    publish_addr(XF, ST, 0, FX)
    nid = newlab("nid")
    e("s_cmp_lg_u32 %s, 0" % sW)
    e("s_cbranch_scc1 %s" % nid)
    e("s_lshl_b32 %s, s2, 7" % T[8])
    e("s_add_u32 %s, %s, 0x%x" % (T[8], T[8], FLG + FI * 128))
    flag(T[8], None)
    e("s_waitcnt vmcnt(1)")
    e("s_branch %s" % noid)
    lab(nid)
    e("s_waitcnt vmcnt(0)")
    lab(noid)
    stamp("s1")
    for g in range(2):
        e("v_permlane32_swap_b32 %s, %s" % (v(vRES + 4 * g), v(vRES + 4 * g + 2)))
        e("v_permlane32_swap_b32 %s, %s" % (v(vRES + 4 * g + 1), v(vRES + 4 * g + 3)))
    e("s_nop 0")
    unpack(66, vRES, 8)
    publish_x(66, 84, lambda: qkv_setup(False))
    e("s_nop 0")
    e("v_not_b32 %s, %s" % (v(vFV + 1), v(vFV)))
    lab(p0end)
    stamp("s19")


def tr_pair(dst):
    tr_rows(dst, 128)
    e("v_bfe_u32 %s, v0, 3, 1" % v(vPD))
    e("v_lshl_or_b32 %s, %s, 6, %s" % (v(dst), v(vPD), v(dst)))


def tr_rows(dst, rowbytes):
    e("v_bfe_u32 %s, v0, 2, 2" % v(dst))
    e("v_lshrrev_b32 %s, 2, %s" % (v(vPD), v(vH16)))
    e("v_add_u32 %s, %s, %s" % (v(dst), v(dst), v(vPD)))
    e("v_mul_u32_u24 %s, %d, %s" % (v(dst), rowbytes, v(dst)))
    e("v_add_u32 %s, %s, %s" % (v(dst), v(dst), v(vTR)))


def voff_128(dst, row=1024):
    e("v_lshrrev_b32 %s, 3, v0" % v(dst))
    e("v_mul_u32_u24 %s, %d, %s" % (v(dst), row, v(dst)))
    e("v_and_b32 %s, 7, v0" % v(vPD))
    e("v_lshrrev_b32 %s, 2, v0" % v(vPD + 1))
    e("v_and_b32 %s, 4, %s" % (v(vPD + 1), v(vPD + 1)))
    e("v_xor_b32 %s, %s, %s" % (v(vPD), v(vPD), v(vPD + 1)))
    e("v_lshl_or_b32 %s, %s, 4, %s" % (v(dst), v(vPD), v(dst)))


def voff_192(dst):
    for i in range(3):
        e("v_add_u32 %s, %d, v0" % (v(vPD), 64 * i))
        e("v_mul_u32_u24 %s, 5462, %s" % (v(vPD + 1), v(vPD)))
        e("v_lshrrev_b32 %s, 16, %s" % (v(vPD + 1), v(vPD + 1)))
        e("v_mul_u32_u24 %s, %d, %s" % (v(dst + i), 2752 - 192, v(vPD + 1)))
        e("v_lshl_add_u32 %s, %s, 4, %s" % (v(dst + i), v(vPD), v(dst + i)))


def dma1(vo, sg, cls):
    e("buffer_load_dwordx4 %s, %s, %s offen%s lds" % (v(vo), sTMP, sg, " nt" if OPT("wnt", 0) & cls else ""))


def dma_loop(n, body):
    lp = newlab("dl")
    e("s_mov_b32 %s, %d" % (T[2], n))
    lab(lp)
    body()
    e("s_sub_u32 %s, %s, 1" % (T[2], T[2]))
    e("s_cmp_lg_u32 %s, 0" % T[2])
    e("s_cbranch_scc1 %s" % lp)


def dma_w2(piece0, lds0, n, pace=PACE):
    addr(T[0], None, piece0 * 8192, [(sHW, n * 8192), (sNB, 128)])
    addr(T[1], None, lds0, [(sHW, n * 1024)])

    def body():
        e("s_mov_b32 m0, %s" % T[1])
        e("s_add_u32 %s, %s, 1024" % (T[1], T[1]))
        dma1(40, T[0], 4)
        e("s_add_u32 %s, %s, 8192" % (T[0], T[0]))
        if pace:
            e("s_waitcnt vmcnt(%d)" % max(pace, 0))
    dma_loop(n, body)


def dma_w1(n):
    def body():
        for i in range(3):
            e("s_add_u32 m0, %s, %d" % (T[1], 1024 * i))
            e("s_nop 0")
            dma1(44 + i, T[0], 2)
        e("s_add_u32 %s, %s, %d" % (T[0], T[0], 16 * 2752))
        e("s_add_u32 %s, %s, 3072" % (T[1], T[1]))
    dma_loop(n, body)


def wq_begin():
    srd(sTMP, 14, 512 * 3072)
    voff_128(44, 3072)
    e("v_lshrrev_b32 v40, 2, v0")
    e("v_mul_u32_u24 v40, 3072, v40")
    e("v_and_b32 v41, 3, v0")
    e("v_lshl_or_b32 v40, v41, 4, v40")
    cm("odd groups take a K column pair, even groups a V column pair; every group takes one Q tile")
    e("s_and_b32 %s, %s, 1" % (T[0], sC))
    e("s_lshr_b32 %s, %s, 1" % (T[1], sC))
    e("s_mul_i32 %s, %s, -1024" % (T[0], T[0]))
    addr(T[3], T[0], 2048, [(sHW, 2 * 49152), (T[1], 128)])
    addr(T[5], None, 0, [(sHW, 2 * 49152), (sC, 64)])
    e("s_lshl_b32 %s, %s, 12" % (T[4], sHW))
    addr(T[6], None, 65536, [(sHW, 2048)])


def wq_chunk():
    for k in range(4):
        e("s_add_u32 m0, %s, %d" % (T[4], 1024 * k))
        e("s_nop 0")
        e("buffer_load_dwordx4 v44, %s, %s offen lds" % (sTMP, T[3]))
        e("s_add_u32 %s, %s, %d" % (T[3], T[3], 24576 if k < 3 else 24576 + 6 * 49152))
        if k % 2:
            e("s_add_u32 m0, %s, %d" % (T[6], 1024 * (k // 2)))
            e("s_nop 0")
            e("buffer_load_dwordx4 v40, %s, %s offen lds" % (sTMP, T[5]))
            e("s_add_u32 %s, %s, %d" % (T[5], T[5], 49152 if k == 1 else 7 * 49152))
    e("s_add_u32 %s, %s, 16384" % (T[4], T[4]))
    e("s_add_u32 %s, %s, 8192" % (T[6], T[6]))


CSA = 64


def colsum_begin():
    for r in range(48):
        e("v_mov_b32 v%d, 0" % (CSA + r))
    for r in range(4):
        e("v_mov_b32 v%d, 0x3f803f80" % (52 + r))


def colsum2(regs, steps, seconds):
    for k in range(2):
        for i in range(3):
            for h in range(2):
                e("ds_read_b64_tr_b16 %s, v%d offset:%d" % (v(16 + 12 * k + 4 * i + 2 * h, 2), regs[i], k * steps[i] + h * seconds[i]))
    for k in range(6):
        e("s_waitcnt lgkmcnt(%d)" % (10 - 2 * k))
        mfma(CSA + 16 * (k % 3), 52, 16 + 4 * k, CSA + 16 * (k % 3))


def colsum_w1():
    e("v_add_u32 v42, %s, v43" % T[0])
    e("v_add_u32 v48, 64, v42")
    e("v_add_u32 v50, 128, v42")
    colsum2((42, 48, 50), (3072,) * 3, (1536,) * 3)


def colsum_partial():
    e("v_and_b32 v41, 31, v0")
    e("v_lshlrev_b32 v41, 2, v41")
    addr(T[0], None, PART_L, [(sHW, 384)])
    e("v_add_u32 v42, %s, v41" % T[0])
    e("s_nop 7")
    for i in range(3):
        e("ds_write_b32 v42, v%d offset:%d" % (CSA + 16 * i, 128 * i))


def colsum_combine(dst_l):
    e("s_min_u32 %s, %s, 2" % (T[0], sHW))
    e("s_lshl_b32 %s, %s, 7" % (T[0], T[0]))
    e("v_add_u32 v41, %s, v41" % T[0])
    e("v_add_u32 v42, %d, v41" % PART_L)
    for k in range(4):
        e("ds_read_b32 v%d, v42 offset:%d" % (16 + k, 384 * k))
    e("v_add_u32 v41, %d, v41" % dst_l)
    e("s_waitcnt lgkmcnt(0)")
    e("v_add_f32 v16, v16, v17")
    e("v_add_f32 v18, v18, v19")
    e("v_add_f32 v16, v16, v18")
    e("ds_write_b32 v41, v16")


def stats_code(second_ln):
    c = []
    for k in range(1, 16):
        c.append("v_add_f32 %s, %s, %s" % (v(vSTS), v(vSTS), v(vSTS + k)))
    c += ["v_mov_b32 %s, %s" % (v(vSTS + 1), v(vSTS)), "s_nop 1",
          "v_permlane32_swap_b32 %s, %s" % (v(vSTS), v(vSTS + 1)), "s_nop 1",
          "v_mul_f32 %s, %s, %s" % (v(vMU), f32(1.0 / 512), v(vSTS)),
          "v_mul_f32 %s, %s, %s" % (v(vSTS + 1), f32(1.0 / 512), v(vSTS + 1)),
          "v_fma_f32 %s, -%s, %s, %s" % (v(vSTS + 1), v(vMU), v(vMU), v(vSTS + 1)),
          "v_max_f32 %s, 0, %s" % (v(vSTS + 1), v(vSTS + 1)),
          "v_add_f32 %s, %s, %s" % (v(vSTS + 2), f32(1e-5), v(vSTS + 1)),
          "v_rsq_f32 %s, %s" % (v(vR), v(vSTS + 2)), "s_nop 0"]
    if second_ln:
        c += ["v_mul_f32 %s, %s, %s" % (v(vSTS + 2), v(vR), v(vR)),
              "v_mul_f32 %s, %s, %s" % (v(vSTS + 2), v(vSTS + 2), v(vSTS + 1)),
              "v_add_f32 %s, %s, %s" % (v(vSTS + 2), f32(1e-5), v(vSTS + 2)),
              "v_rsq_f32 %s, %s" % (v(vSTS + 2), v(vSTS + 2)), "s_nop 0",
              "v_mul_f32 %s, %s, %s" % (v(vR), v(vR), v(vSTS + 2))]
    return c


def center(acc, cs, p):
    e("v_pk_fma_f32 %s, %s, %s, %s op_sel_hi:[0,1,1] neg_lo:[1,0,0] neg_hi:[1,0,0]" %
      (v(acc + 2 * p, 2), v(vMU, 2), v(cs + 2 * p, 2), v(acc + 2 * p, 2)))


def stash_addr():
    e("s_mul_i32 %s, %s, 24576" % (T[0], sHW))
    e("v_add_u32 v42, %s, %s" % (T[0], v(vL16)))


class Lds:
    def __init__(self):
        self.ops, self.done = [], 0

    def op(self, name, text):
        e(text)
        self.ops.append(name)

    def need(self, name):
        last = max(i for i, n in enumerate(self.ops) if n == name)
        if last < self.done:
            return None
        self.done = last + 1
        return min(15, len(self.ops) - 1 - last)


def qkv_body(isk, done):
    H = 16

    def item(n):
        if n < 32:
            load_frags(T[1], n, 1, lambda j: vA + 4 * j, n % 4 == 0)
        else:
            e("buffer_load_dwordx4 %s, %s, %s, %s offen offset:%d sc1" % (v(vSTS + 4 * (n - 32), 4), v(vL16), sWS, T[2], 1024 * (n - 32)))
    sched = [[ks + DEPTH] if ks + DEPTH < 32 else [] for ks in range(32)]
    for k in range(4):
        sched[3 + 2 * k].append(32 + k)
    order = list(range(DEPTH))
    lds = Lds()

    def rd(ks, i, d):
        base, off, sec = ((vW0, vW2)[i], ks * 2048, 1024) if i < 2 else (vW1, ks * 1024, 512)
        lds.op(("w", i, ks), "ds_read_b64_tr_b16 %s, %s offset:%d" % (v(d, 2), v(base), off))
        lds.op(("w", i, ks), "ds_read_b64_tr_b16 %s, %s offset:%d" % (v(d + 2, 2), v(base), off + sec))

    def wait(name):
        n = lds.need(name)
        if n is not None:
            e("s_waitcnt lgkmcnt(%d)" % n)
    wb1 = lambda ks, i: vWB + (ks % 3) * 12 + 4 * i
    wb2 = lambda ks: vWB + (12 * (ks - H) + 8 if ks < H + 3 else [0, 4, 12, 16, 24, 28, 8, 20, 32][(ks - H - 3) % 9])
    tiles = lambda ks: (2, 0, 1) if ks < H else (0, 1)
    for ks in range(2):
        for i in tiles(ks):
            rd(ks, i, wb1(ks, i))
    fine("q")
    SA, SB, SC = vPO, vPD, vPD + 1
    PK, C0, C1, VC, QC = vA, vA + 16, vA + 32, vA + 48, vSTS

    def addresses():
        e("s_lshr_b32 %s, %s, 1" % (T[0], sC))
        addr(T[4], None, KVF, [(sL, KVF_L), (T[0], 4 * 131072), (sXCD, 16384), (sTBW, 2048)])
        addr(T[2], sLB, KVL, [(T[0], 8192), (sTBW, HSTR)])
        slot(T[6], FQ, [(sC, 8), (sTBW, 1)])
        addr(T[7], None, GFL, [(sL, GFL_L), (sC, 65536), (sXCD, 8192), (sTBW, 1024)])
        addr(T[3], sLB, QF, [(sC, 2048), (sTBW, HSTR)])
        if not isk:
            e("v_and_b32 %s, 31, v0" % v(SA))
            e("v_lshlrev_b32 %s, 2, %s" % (v(SA), v(SA)))
            addr(T[0], None, STAT_L, [(sHW, 256)])
            e("v_add_u32 %s, %s, %s" % (v(SB), T[0], v(SA)))
            e("v_add_u32 %s, %s, %s" % (v(SC), T[0], v(vH16)))
            e("v_add_u32 %s, %d, %s" % (v(SA), CSQ_L, v(SA)))
    sh = [lambda x=x: e(x) for x in capture(addresses) + stats_code(False)]
    sh.append(lambda: e("v_mul_f32 %s, %s, %s" % (v(vRQ), f32(0.25 * 1.4426950408889634), v(vR))))
    if isk:
        for k in range(8):
            sh.append(lambda k=k: lds.op("c", "ds_read_b128 %s, %s offset:%d" % (v(C0 + 4 * k, 4), v(vCA), 32 * k)))
    else:
        sh.append(lambda: lds.op("sw", "ds_write_b32 %s, %s" % (v(SB), v(vMU))))
        sh.append(lambda: lds.op("sw", "ds_write_b32 %s, %s offset:128" % (v(SB), v(vR))))
        for k in range(8):
            sh.append(lambda k=k: lds.op("c", "ds_read_b128 %s, %s offset:%d" % (v(C0 + 4 * k, 4), v(SC), 32 * k)))
        for t in range(2):
            sh.append(lambda t=t: lds.op("c", "ds_read_b32 %s, %s offset:%d" % (v(VC + t), v(SA), 128 * t)))
    nsal = len(capture(addresses))
    pos = 0
    for ks in range(32):
        if ks in (16, 22):
            e("s_barrier")
        newest = max(order.index(n) for n in ([ks, 35] if ks >= 18 else [ks]))
        e("s_waitcnt vmcnt(%d) lgkmcnt(%d)" % (len(order) - 1 - newest, lds.need(("w", 1, ks))))
        if ks in FINEKS:
            fine("q")
        for m, i in enumerate(tiles(ks)):
            c = "0" if ks == 0 else vACC + 16 * i
            if i < 2 and not isk:
                mfma(vACC + 16 * i, vA + 4 * ks, wb1(ks, i), c)
            else:
                mfma(vACC + 16 * i, wb1(ks, i), vA + 4 * ks, c)
            if ks + 2 < 32 and i in tiles(ks + 2):
                rd(ks + 2, i, wb1(ks + 2, i))
            elif ks >= 30 and (i == 0 or ks == 30):
                k2 = H + (ks - 30) * 2 + i
                rd(k2, 2, wb2(k2))
            if m < len(sched[ks]):
                item(sched[ks][m])
                order.append(sched[ks][m])
            if ks >= 10:
                for _ in range(2):
                    if pos < len(sh) and (pos < nsal or ks >= 18):
                        sh[pos]()
                        pos += 1
    assert pos == len(sh), (pos, len(sh))
    cm("remaining Q k-steps with the pair's epilogue underneath")
    fill = [lambda: wait("c")]
    for i in range(4):
        fill.append(lambda i=i: lds.op("qc", "ds_read_b128 %s, %s offset:%d" % (v(QC + 4 * i, 4), v(vCA), 256 + 32 * i)))
    fill.append(lambda: e("s_add_u32 %s, %s, 0x%x" % (T[5], T[4], 0x20000 if isk else 0x40000)))
    fill.append(lambda: e("s_add_u32 %s, %s, 4096" % (T[0], T[2])))
    if isk:
        fill.append(lambda: e("s_add_u32 %s, %s, 0x40000" % (T[8], T[4])))
        fill.append(lambda: e("s_add_u32 %s, %s, 0x60000" % (T[1], T[4])))
    else:
        fill.append(lambda: e("v_and_b32 %s, 0x1ffff, %s" % (v(SC), v(vVOF))))
        fill.append(lambda: e("v_lshrrev_b32 %s, 17, %s" % (v(SB), v(vVOF))))
        fill.append(lambda: e("v_lshl_or_b32 %s, %s, 11, %s" % (v(SC), v(SB), v(SC))))
    local = []
    for t in range(2):
        a = vACC + 16 * t
        for r in range(16):
            if isk:
                fill.append(lambda a=a, t=t, r=r: e("v_fma_f32 %s, -%s, %s, %s" % (v(a + r), v(vMU), v(C0 + 16 * t + r), v(a + r))))
            else:
                fill.append(lambda a=a, t=t, r=r: e("v_fma_f32 %s, -%s, %s, %s" % (v(a + r), v(C0 + r), v(VC + t), v(a + r))))
        for r in range(16):
            fill.append(lambda a=a, r=r: e("v_mul_f32 %s, %s, %s" % (v(a + r), v(vR if isk else C1 + r), v(a + r))))
        for p in range(8):
            fill.append(lambda a=a, t=t, p=p: e("v_cvt_pk_bf16_f32 %s, %s, %s" % (v(PK + 8 * t + p), v(a + 2 * p), v(a + 2 * p + 1))))
        for hh in range(2):
            d = v(PK + 8 * t + 4 * hh, 4)
            if isk:
                g = "%s, %s, %s, %s offen" % (d, v(vK16), sWS, (T[4], T[5], T[8], T[1])[2 * t + hh])
                local.append("buffer_store_dwordx4 %s, %s, %s, %s offen offset:%d" % (d, v(vK16), sWS, (T[2], T[0])[t], 2048 * hh))
            else:
                g = "%s, %s, %s, %s offen offset:%d" % (d, v(vVOF), sWS, (T[4], T[5])[t], 1024 + 256 * hh)
                local.append("buffer_store_dwordx4 %s, %s, %s, %s offen offset:%d" % (d, v(SC), sWS, (T[2], T[0])[t], 1024 + 256 * hh))
            fill.append(lambda g=g: e("buffer_store_dwordx4 " + g + " sc1"))
    fill.append(lambda: lstores(local))
    per = -(-len(fill) // (32 - H))
    aQ = vACC + 32
    for ks in range(H, 32):
        wait(("w", 2, ks + 1 if ks % 2 == 0 and H + 2 < ks < 31 else ks))
        mfma(aQ, wb2(ks), vA + 4 * ks, aQ)
        if ks == H:
            fine("q")
        for n in ([H + 3, H + 4] if ks == H else [H + 5, H + 6] if ks == H + 1 else [ks + 5] if ks + 5 < 32 else []):
            rd(n, 2, wb2(n))
        for f in fill[(ks - H) * per:(ks + 1 - H) * per]:
            f()
    e("s_barrier")
    stamp()
    wait("qc")
    e("s_nop %d" % max(0, 10 - len(fill[(31 - H) * per:])))
    for p in range(8):
        center(aQ, QC, p)
    for p in range(8):
        e("v_pk_mul_f32 %s, %s, %s op_sel_hi:[1,0]" % (v(aQ + 2 * p, 2), v(aQ + 2 * p, 2), v(vRQ, 2)))
    for p in range(8):
        e("v_cvt_pk_bf16_f32 %s, %s, %s" % (v(C1 + p), v(aQ + 2 * p), v(aQ + 2 * p + 1)))
    lstores(["buffer_store_dwordx4 %s, %s, %s, %s offen offset:%d" % (v(C1 + 4 * hh, 4), v(vL16), sWS, T[3], 1024 * hh) for hh in range(2)])
    fine("q")
    for k in range(4):
        e("v_mov_b32 %s, %s" % (v(vSTS + k), v(vFV + k % 2)))
    flag(T[6], 0, local=True)
    e("buffer_store_dwordx4 %s, %s, %s, %s offen sc1" % (v(vSTS, 4), v(vL16), sWS, T[7]))
    e("s_branch %s" % done)


def qkv():
    cm("================ QKV projection")
    hl, done, kb = newlab("qkv_h"), newlab("qkv_done"), newlab("qkv_k")
    e("s_cmp_ge_u32 %s, 4" % sW)
    e("s_cbranch_scc1 %s" % hl)
    l1, l2 = newlab("fx"), newlab("fx")
    e("s_cmp_lg_u32 %s, 0" % sL)
    e("s_cbranch_scc1 %s" % l1)
    mode_poll(True)
    e("v_mov_b32 v60, %s" % sMODE)
    e("v_mov_b32 v61, %d" % MODE_L)
    e("ds_write_b32 v61, v60")
    e("s_waitcnt lgkmcnt(0)")
    e("s_branch %s" % l2)
    lab(l1)
    poll(T[0])
    lab(l2)
    stamp()
    load_frags(T[1], 0, DEPTH, lambda j: vA + 4 * j)
    fine("q")
    e("s_barrier")
    e("s_bitcmp1_b32 %s, 0" % sC)
    e("s_cbranch_scc1 %s" % kb)
    n0, f0 = nstamp[0], nfine[0]
    qkv_body(False, done)
    lab(kb)
    nstamp[0], nfine[0] = n0, f0
    qkv_body(True, done)
    lab(hl)
    h1, h2, lp = newlab("qh1"), newlab("qh2"), newlab("qhl")
    e("s_cmp_lg_u32 %s, 0" % sL)
    e("s_cbranch_scc1 %s" % h1)
    wq_begin()
    if FINE == "h":
        make_tag()
        fine("h")
    dma_loop(2, wq_chunk)
    fine("h")
    if FINE != "h":
        make_tag()
    colsum_begin()
    tr_pair(42)
    e("s_lshl_b32 %s, %s, 12" % (T[0], sHW))
    e("v_add_u32 v42, %s, v42" % T[0])
    e("v_xor_b32 v48, 64, v42")
    tr_rows(50, 64)
    addr(T[0], None, 65536, [(sHW, 2048)])
    e("v_add_u32 v50, %s, v50" % T[0])
    e("s_mov_b32 %s, 0" % sIT)
    lab(lp)
    b1, b2 = newlab("qw"), newlab("qw")
    e("s_cmp_ge_u32 %s, 2" % sIT)
    e("s_cbranch_scc1 %s" % b1)
    wq_chunk()
    e("s_waitcnt vmcnt(12)")
    e("s_branch %s" % b2)
    lab(b1)
    e("s_waitcnt vmcnt(6)")
    e("s_cmp_eq_u32 %s, 2" % sIT)
    e("s_cbranch_scc1 %s" % b2)
    e("s_waitcnt vmcnt(0)")
    lab(b2)
    fine("h")
    colsum2((42, 48, 50), (2048, 2048, 1024), (1024, 1024, 512))
    e("v_add_u32 v42, 16384, v42")
    e("v_add_u32 v48, 16384, v48")
    e("v_add_u32 v50, 8192, v50")
    e("s_add_u32 %s, %s, 1" % (sIT, sIT))
    e("s_cmp_lt_u32 %s, 4" % sIT)
    e("s_cbranch_scc1 %s" % lp)
    colsum_partial()
    fine("h")
    e("s_waitcnt lgkmcnt(0)")
    e("s_barrier")
    fine("h")
    colsum_combine(CSQ_L)
    e("v_mov_b32 v61, %d" % MODE_L)
    e("ds_read_b32 v60, v61")
    cm("park the weight tile in registers for the second layer pair")
    stash_addr()
    for k in range(24):
        e("ds_read_b128 %s, v42 offset:%d" % (v(vSTASH + 4 * k, 4), 1024 * k))
    e("s_waitcnt lgkmcnt(15)")
    e("v_readfirstlane_b32 %s, v60" % sMODE)
    e("s_branch %s" % h2)
    lab(h1)
    e("s_waitcnt lgkmcnt(0)")
    e("s_barrier")
    lab(h2)
    cm("lanes 0-15: Q lines; lanes 16-47: the K or V kilobyte of four head blocks")
    e("v_subrev_u32 v20, 16, v0")
    e("v_lshrrev_b32 v21, 3, v20")
    e("v_lshlrev_b32 v21, 10, v21")
    e("v_lshl_add_u32 v20, v20, 7, v21")
    e("s_lshr_b32 %s, %s, 1" % (T[1], sC))
    e("s_and_b32 %s, %s, 1" % (T[2], sC))
    addr(T[3], None, 32768 + 1024, [(T[1], 8192), (T[2], -1024), (sC, -2048)])
    e("v_add_u32 v20, %s, v20" % T[3])
    e("v_lshlrev_b32 v19, 7, v0")
    e("v_cmp_lt_u32 vcc, 15, v0")
    addr(T[0], sLB, BLK, [(sTBW, HSTR), (sC, 2048)])
    e("v_cndmask_b32 v19, v19, v20, vcc")
    e("s_waitcnt lgkmcnt(0)")
    e("s_barrier")
    e("s_barrier")
    cm("all activation loads are out: bring in the lines the Q/K/V stores will write, so they need no fill")
    e("s_mov_b32 exec_hi, 0xffff")
    e("buffer_load_dword v21, v19, %s, %s offen sc1" % (sWS, T[0]))
    e("s_mov_b64 exec, -1")
    e("s_cmp_lg_u32 %s, 0" % sL)
    e("s_cbranch_scc1 %s" % done)
    cm("this workgroup's slices of b1 and b2; they are staged in LDS after attention")
    srd(sTMP, 22, 2752)
    e("v_and_b32 v19, 31, v0")
    e("v_lshlrev_b32 v19, 1, v19")
    addr(T[0], None, 0, [(sHW, 64), (sC, 192)])
    e("buffer_load_ushort v224, v19, %s, %s offen" % (sTMP, T[0]))
    srd(sTMP, 26, 1024)
    e("s_and_b32 %s, %s, 1" % (T[4], sHW))
    addr(T[0], None, 0, [(T[4], 64), (sNB, 128)])
    e("buffer_load_ushort v225, v19, %s, %s offen" % (sTMP, T[0]))
    lab(done)
    stamp()


def attention():
    cm("================ attention: S^T = K Q^T, P = exp2(S^T), O^T += V^T P via sparse MFMA")
    S, O, Q, KB, VB, IDX, AD, VO, CN = (16, 32), 48, 64, (68, 72), (76, 84), 92, 93, 94, 100
    PF = 100
    KVG, LP, CH, GF, ISS = T[2], T[3], T[4], T[5], T[6]
    cm("rows 16 and 20 of the V operand are ones (row sums for both lane halves); the other spare rows are zero")
    e("v_and_b32 %s, 27, v0" % v(IDX))
    e("v_cmp_eq_u32 vcc, 16, %s" % v(IDX))
    e("v_mov_b32 %s, 0x3f803f80" % v(AD))
    e("s_nop 0")
    for i in range(16):
        e("v_mov_b32 %s, 0" % v(O + i))
        e("v_cndmask_b32 %s, 0, %s, vcc" % (v(VB[0] + i), v(AD)))
    for i in range(8):
        e("v_mov_b32 %s, 0" % v(S[1] + 8 + i))
    e("v_mov_b32 %s, 0xdddddddd" % v(IDX))
    e("v_mov_b32 %s, 0" % v(PF + 6))
    e("v_mov_b32 %s, %s" % (v(AD), v(vL16)))
    voff_128(VO)
    voff_192(VO + 1)
    e("s_mov_b32 %s, 1" % ISS)
    a1 = newlab("a1")
    e("v_lshlrev_b32 %s, 7, v0" % v(PF))
    cm("first layer pair, waves 1-3: first touch of Wo / W1 / W2 (one line per lane, spread over all workgroups)")
    e("s_mov_b32 s66, %d" % (1376 * 1024))
    e("s_mov_b32 %s, %d" % (T[1], 43 * 128))
    e("s_cmp_eq_u32 %s, 2" % sW)
    e("s_cselect_b64 s[64:65], s[20:21], s[24:25]")
    e("s_cmp_eq_u32 %s, 1" % sW)
    e("s_cselect_b64 s[64:65], s[16:17], s[64:65]")
    e("s_cselect_b32 s66, %d, s66" % (512 * 1024))
    e("s_cselect_b32 %s, %d, %s" % (T[1], 16 * 128, T[1]))
    e("s_and_b32 s65, s65, 0xffff")
    e("s_mov_b32 s67, 0x20000")
    e("s_mul_i32 %s, %s, s2" % (T[1], T[1]))
    e("s_cmp_eq_u32 %s, 0" % sL)
    e("s_cselect_b32 %s, %d, 99" % (T[8], OPT("ftit", 2)))
    e("s_cmp_eq_u32 %s, 0" % sW)
    e("s_cselect_b32 %s, 99, %s" % (T[8], T[8]))
    cm("lines of the W1 rows that are loaded after attention (128-351, 480-511): half per workgroup of a pair")
    srd(sTMP, 20, 512 * 2752)
    e("s_lshr_b32 %s, %s, 4" % (T[0], sJ))
    addr(T[7], None, 128, [(T[0], 128), (sHW, 32)])
    e("s_cmp_eq_u32 %s, 352" % T[7])
    e("s_cselect_b32 %s, 480, %s" % (T[7], T[7]))
    e("s_mul_i32 %s, %s, 2752" % (T[7], T[7]))
    e("s_mul_i32 %s, %s, 192" % (T[0], sC))
    e("s_add_u32 %s, %s, %s" % (T[7], T[7], T[0]))
    e("v_lshrrev_b32 %s, 1, v0" % v(PF + 1))
    e("v_mul_u32_u24 %s, 2752, %s" % (v(PF + 1), v(PF + 1)))
    e("v_and_b32 %s, 1, v0" % v(PF + 2))
    e("v_lshl_add_u32 %s, %s, 7, %s" % (v(PF + 1), v(PF + 2), v(PF + 1)))
    e("s_cmp_lt_u32 %s, 4" % sW)
    e("s_cbranch_scc1 %s" % a1)
    cm("waves 4-7 fetch Q and this die's K/V, and later the other dies' K/V")
    e("v_and_b32 %s, 15, v0" % v(vPO))
    e("v_lshlrev_b32 %s, 3, %s" % (v(vPO), v(vPO)))
    e("s_lshr_b32 %s, %s, 2" % (T[1], sHEAD))
    e("s_lshl_b32 %s, %s, 1" % (T[1], T[1]))
    addr(GF, None, GFL, [(sL, GFL_L), (T[1], 65536), (sXCD, 128)])
    slot(T[0], FQ, [(T[1], 8)])
    addr(T[1], sLB, QF, [(sHEAD, 1024), (sHW, 2 * HSTR)])
    addr(KVG, None, KVF, [(sL, KVF_L), (sHEAD, 131072), (sHW, 4096)])
    addr(T[8], sLB, KVL, [(sHEAD, 2048), (sHW, 2 * HSTR)])
    addr(T[7], None, QL, [(sHW, 2048)])
    e("s_lshl_b32 %s, %s, 12" % (LP, sHW))
    e("s_add_u32 %s, %s, 1" % (CH, sXCD))
    e("s_mov_b32 %s, 0" % ISS)
    cm("last barrier of the projection: its weight tile in LDS is dead from here on")
    e("s_barrier")
    poll(T[0])
    for b in range(2):
        e("s_add_u32 m0, %s, %d" % (LP, 2048 * b))
        e("v_lshlrev_b32 %s, 10, v0" % v(vPO))
        for i in range(2):
            e("buffer_load_dwordx4 %s, %s, %s offen offset:%d sc1 lds" % (v(vL16), sWS, T[8], 1024 * i))
        e("s_add_u32 m0, %s, %d" % (T[7], 1024 * b))
        e("s_add_u32 %s, %s, %d" % (T[8], T[8], HSTR))
        e("buffer_load_dwordx4 %s, %s, %s offen sc1 lds" % (v(vL16), sWS, T[1]))
        e("s_add_u32 %s, %s, %d" % (T[1], T[1], HSTR))

    def gflag_load():
        e("buffer_load_dwordx2 %s, %s, %s, %s offen sc1" % (v(vPD, 2), v(vPO), sWS, GF))
        e("buffer_load_dwordx2 %s, %s, %s, %s offen sc1" % (v(PF + 4, 2), v(PF + 6), sWS, GF))

    def kv_issue(n=4):
        e("s_and_b32 %s, %s, 7" % (CH, CH))
        e("s_lshl_b32 %s, %s, 14" % (T[9], CH))
        e("s_add_u32 %s, %s, 16384" % (LP, LP))
        e("s_add_u32 %s, %s, %s" % (T[9], T[9], KVG))
        e("s_mov_b32 m0, %s" % LP)
        e("s_add_u32 %s, %s, 1" % (CH, CH))
        for i in range(n):
            e("buffer_load_dwordx4 %s, %s, %s offen offset:%d sc1%s lds" % (v(vL16), sWS, T[9], 1024 * i, " nt" if OPT("kvnt", 1) else ""))

    def kv_issue_helpers():
        sk, cw = newlab("kvs"), newlab("kvc")
        e("s_cmp_lt_u32 %s, 4" % sW)
        e("s_cbranch_scc1 %s" % cw)
        e("s_cmp_eq_u32 %s, 0" % sIT)
        e("s_cbranch_scc1 %s" % sk)
        kv_issue()
        lab(sk)
        ft = newlab("ft")
        wp = newlab("wp")
        TAIL.extend([wp + ":", "    s_cmp_lg_u32 %s, %d" % (sIT, OPT("woit", 3)), "    s_cbranch_scc1 %s" % sk]
                    + ["    " + x for x in capture(lambda: (srd("s[64:67]", 16, 512 * 1024), addr(T[1], None, 0, [(sJ, 128 * 128), (sW, 32 * 128)])))]
                    + (["    " + x for x in capture(lambda: (
                        e("v_lshrrev_b32 %s, 3, v0" % v(PF + 3)), e("v_mul_u32_u24 %s, %d, %s" % (v(PF + 3), XSTR - 1024, v(PF + 3))),
                        e("v_add_u32 %s, %s, %s" % (v(PF + 3), v(PF + 3), v(PF))),
                        addr(T[0], sLB, OF, [(sW, 2 * XSTR), (sHEAD, 1024)]), e("s_mov_b64 exec, 0xffff"),
                        e("buffer_load_dword %s, %s, %s, %s offen sc1" % (v(PF + 2), v(PF + 3), sWS, T[0])), e("s_mov_b64 exec, -1")))])
                    + ["    s_mov_b32 exec_hi, 0", "    buffer_load_dword %s, %s, s[64:67], %s offen" % (v(PF + 2), v(PF), T[1]),
                       "    s_mov_b64 exec, -1", "    s_branch %s" % sk])
        TAIL.extend([ft + ":", "    s_cmp_lg_u32 %s, %s" % (sIT, T[8]), "    s_cbranch_scc1 %s" % wp,
                     "    buffer_load_dword %s, %s, s[64:67], %s offen" % (v(PF + 2), v(PF), T[1]), "    s_branch %s" % sk])
        if OPT("cpf", 3) & 2:
            c2 = newlab("c2")
            LATE.extend([cw + ":", "    s_lshl_b32 %s, %s, 4" % (T[9], sL), "    s_add_u32 %s, %s, %s" % (T[9], T[9], sW),
                         "    s_lshl_b32 %s, %s, 4" % (T[9], T[9]), "    s_add_u32 %s, %s, %s" % (T[9], T[9], sIT),
                         "    s_cmp_lg_u32 %s, %d" % (T[9], OPT("cpi", 5)), "    s_cbranch_scc1 %s" % c2, "CODE2", "    s_branch " + c2])
            cw = c2
        TAIL.extend([cw + ":", "    s_cmp_lt_u32 %s, 4" % sIT, "    s_cbranch_scc1 %s" % ft, "    s_mov_b32 exec_hi, 0",
                     "    buffer_load_dword %s, %s, %s, %s offen" % (v(PF + 2), v(PF + 1), sTMP, T[7]),
                     "    s_mov_b64 exec, -1", "    s_add_u32 %s, %s, %d" % (T[7], T[7], 16 * 2752),
                     "    s_branch %s" % sk])
    e("v_add_u32 %s, 0x10000, %s" % (v(PF + 6), v(vPO)))
    fine("k")
    e("s_waitcnt vmcnt(0)")
    fine("k")
    gflag_load()
    lab(a1)
    addr(T[0], None, QL, [(sW, 1024)])
    e("v_add_u32 v16, %s, %s" % (T[0], v(vL16)))
    e("s_barrier")
    stamp()

    def rdk(t):
        e("ds_read_b128 %s, %s offset:%d" % (v(KB[t & 1], 4), v(AD), t * 2048))

    def rdv(t):
        e("s_mov_b64 exec, %s" % sMV)
        e("ds_read_b128 %s, %s offset:%d" % (v(VB[t & 1], 4), v(AD), t * 2048 + 1024))
        e("ds_read_b128 %s, %s offset:%d" % (v(VB[t & 1] + 4, 4), v(AD), t * 2048 + 1280))
        e("s_mov_b64 exec, -1")

    def smf(vb, p):
        e("v_smfmac_f32_32x32x32_bf16 %s, %s, %s, %s" % (v(O, 16), v(vb, 4), v(p, 8), v(IDX)))

    def ex(cur, a, b):
        for i in range(a, b):
            e("v_exp_f32 %s, %s" % (v(S[cur] + i), v(S[cur] + i)))

    def tile(t, extra=None):
        cur, nxt = t & 1, (t + 1) & 1
        ex(cur, 0, 2)
        smf(VB[nxt] + 4, S[nxt] + 8)
        rdv(t + 1)
        ex(cur, 2, 6)
        e("s_waitcnt lgkmcnt(2)")
        mfma(S[nxt], KB[nxt], Q, "0")
        rdk(t + 2)
        if extra:
            extra()
        ex(cur, 6, 12)
        smf(VB[cur], S[cur])
        ex(cur, 12, 16)
    e("ds_read_b128 %s, v16" % v(Q, 4))
    rdk(0)
    rdv(0)
    rdk(1)
    e("s_waitcnt lgkmcnt(3)")
    mfma(S[0], KB[0], Q, "0")
    e("s_mov_b32 %s, 0" % sIT)
    e("s_mov_b32 %s, %d" % (sCNT, POLL_LIMIT))
    e("s_nop 8")
    cm("chunk 0 = keys of this die group; the other groups' K/V are requested as soon as their flags arrive")

    def check(blocking):
        blk, back, issue = newlab("chk"), newlab("chkb"), newlab("iss")
        e("s_cmp_eq_u32 %s, 0" % ISS)
        e("s_cbranch_scc1 %s" % blk)
        lab(back)

        def body():
            e("s_waitcnt vmcnt(0)")
            e("v_cmp_eq_u64 s[12:13], %s, %s" % (v(PF + 4, 2), v(vFV, 2)))
            e("v_cmp_eq_u64 vcc, %s, %s" % (v(vPD, 2), v(vFV, 2)))
            e("s_nop 1")
            e("s_and_b64 vcc, vcc, s[12:13]")
            e("s_cmp_eq_u64 vcc, -1")
            e("s_cbranch_scc1 %s" % issue)
            gflag_load()
            if blocking:
                e("s_sub_u32 %s, %s, 1" % (sCNT, sCNT))
                e("s_cbranch_scc0 %s" % blk)
                e("s_endpgm")
            else:
                e("s_branch %s" % back)

        def go():
            kv_issue()
            kv_issue()
            e("s_mov_b32 %s, 1" % ISS)
            e("s_branch %s" % back)
        NEAR.extend([blk + ":"] + ["    " + x for x in capture(body)] + [issue + ":"] + ["    " + x for x in capture(go)])
    NEAR = []
    loop = newlab("att")
    L.append(".p2align 6")
    lab(loop)
    for t in range(8):
        if t % 2 == 0:
            e("s_setprio %d" % (3 - t // 2))
        if t in (2, 4, 6):
            check(t == 6)
        if t == 6:
            e("s_waitcnt vmcnt(4)")
            e("s_barrier")
        tile(t, kv_issue_helpers if t == 1 else None)
    e("v_add_u32 %s, 16384, %s" % (v(AD), v(AD)))
    e("s_add_u32 %s, %s, 1" % (sIT, sIT))
    e("s_cmp_lt_u32 %s, 6" % sIT)
    e("s_cbranch_scc1 %s" % loop)
    if LATE:
        n = len(L)
        code_lines("L_wo", "L_code_end", 5, 108, True)
        k = LATE.index("CODE2")
        LATE[k:k + 1] = L[n:]
        del L[n:]
    TAIL[:0] = NEAR + LATE
    fine("a")
    cm("last two chunks: stream Wo and part of W1 into the dead K/V space, one piece per tile")
    srd(sTMP, 16, 512 * 1024)
    addr(T[0], None, 0, [(sW, 65536), (sNB, 128)])
    e("s_lshl_b32 %s, %s, 13" % (T[1], sW))

    srd("s[64:67]", 24, 1376 * 1024)
    addr(T[2], None, 0, [(sJ, 344 * 128), (sW, 43 * 128)])

    def w2_lines(trip):
        cm("one line per lane: pull this workgroup's share of W2 into the die's L2")
        e("s_mov_b64 exec, 0x3fffff")
        e("buffer_load_dword %s, %s, s[64:67], %s offen" % (v(PF + 2), v(PF), T[2]))
        e("s_mov_b64 exec, -1")
        e("s_add_u32 %s, %s, %d" % (T[2], T[2], 22 * 128))

    def wo_piece(t):
        e("s_add_u32 m0, %s, %d" % (T[1], 1024 * t))
        e("s_nop 0")
        dma1(VO, T[0], 1)
        e("s_add_u32 %s, %s, 8192" % (T[0], T[0]))

    def w1_piece(t):
        if t in (1, 3):
            w2_lines(1)
        for u in ([2 * t, 2 * t + 1] if t < 2 else [t + 2] if t < 4 else []):
            e("s_add_u32 m0, %s, %d" % (T[1], (u // 3) * 22 * 3072 + (u % 3) * 1024))
            e("s_nop 0")
            dma1(VO + 1 + u % 3, T[0], 8)
            if u == 2:
                e("s_add_u32 %s, %s, %d" % (T[0], T[0], 22 * 16 * 2752))
    for trip in range(2):
        for t in range(8):
            if t % 2 == 0:
                e("s_setprio %d" % (3 - t // 2))
            if t == 6 and trip == 0:
                e("s_waitcnt vmcnt(6)")
                e("s_barrier")
            tile(t + 8 * trip, (lambda t=t: wo_piece(t)) if trip == 0 else (lambda t=t: w1_piece(t)))
        if trip == 0:
            addr(T[4], sLB, OF, [(sW, XSTR), (sHEAD, 1024)])
            slot(T[5], FA, [(sW, 32), (sHEAD, 1)])
            srd(sTMP, 20, 512 * 2752)
            addr(T[0], None, 0, [(sW, 16 * 2752), (sC, 192)])
            addr(T[1], None, 65536, [(sW, 3072)])
    e("s_nop 1")
    smf(VB[1] + 4, S[1] + 8)
    e("s_setprio 0")
    e("s_mov_b32 %s, %s" % (T[6], f32(2.0 ** (64 if FORCE_SLOW else -64))))
    e("s_mov_b32 %s, %s" % (T[7], f32(2.0 ** 64)))
    e("s_waitcnt lgkmcnt(0)")
    e("s_nop 7")
    stamp()
    cm("Softmax guard. The loops above used 0 as a stand-in for the row max. That is exact while the row sum")
    cm("stays in [2^-64, 2^64] and the accumulators are finite; otherwise redo this tile with the true max.")
    fin, slow = newlab("att_fin"), newlab("att_slow")
    e("v_cmp_le_f32 %s, %s, %s" % (sM0, T[6], v(O + 8)))
    e("v_cmp_ge_f32 %s, %s, %s" % (sM1, T[7], v(O + 8)))
    e("v_pk_mul_f32 v[18:19], %s, 0 op_sel_hi:[1,0]" % v(O, 2))
    for p in range(1, 4):
        e("v_pk_fma_f32 v[18:19], %s, 0, v[18:19] op_sel_hi:[1,0,1]" % v(O + 2 * p, 2))
    e("s_and_b64 %s, %s, %s" % (sM0, sM0, sM1))
    e("v_cmp_eq_f32 vcc, v18, v19")
    e("s_nop 0")
    e("s_and_b64 %s, %s, vcc" % (sM0, sM0))
    e("s_cmp_eq_u64 %s, -1" % sM0)
    e("s_cbranch_scc0 %s" % slow)
    lab(fin)
    e("v_rcp_f32 v16, %s" % v(O + 8))
    e("s_nop 0")
    for p in range(4):
        e("v_pk_mul_f32 %s, %s, v[16:17] op_sel_hi:[1,0]" % (v(O + 2 * p, 2), v(O + 2 * p, 2)))
    for p in range(4):
        e("v_cvt_pk_bf16_f32 %s, %s, %s" % (v(20 + p), v(O + 2 * p), v(O + 2 * p + 1)))
    lstores(["buffer_store_dwordx4 v[20:23], %s, %s, %s offen" % (v(vL16), sWS, T[4])])
    ns = newlab("ns")
    e("s_cmp_ge_u32 %s, 4" % sW)
    e("s_cbranch_scc1 %s" % ns)
    n512_setup(True)
    lab(ns)
    flag(T[5], 0, local=True)
    e("s_waitcnt vmcnt(1)")
    e("s_barrier")
    keep = L[:]
    del L[:]
    lab(slow)
    l1, l2 = newlab("slow1"), newlab("slow2")
    addr(T[2], None, KVF, [(sL, KVF_L), (sHEAD, 131072)])
    e("v_mov_b32 %s, 0xff800000" % v(CN))
    e("s_mov_b32 %s, 0" % sIT)
    lab(l1)
    e("buffer_load_dwordx4 %s, %s, %s, %s offen sc1" % (v(KB[0], 4), v(vL16), sWS, T[2]))
    e("s_waitcnt vmcnt(0)")
    mfma(S[0], KB[0], Q, "0")
    e("s_nop 15")
    for i in range(8):
        e("v_max3_f32 %s, %s, %s, %s" % (v(CN), v(S[0] + 2 * i), v(S[0] + 2 * i + 1), v(CN)))
    e("s_add_u32 %s, %s, 2048" % (T[2], T[2]))
    e("s_add_u32 %s, %s, 1" % (sIT, sIT))
    e("s_cmp_lt_u32 %s, 64" % sIT)
    e("s_cbranch_scc1 %s" % l1)
    e("v_mov_b32 %s, %s" % (v(CN + 1), v(CN)))
    e("s_nop 1")
    e("v_permlane32_swap_b32 %s, %s" % (v(CN), v(CN + 1)))
    e("s_nop 1")
    e("v_max_f32 %s, %s, %s" % (v(CN), v(CN), v(CN + 1)))
    e("v_sub_f32 %s, 0, %s" % (v(CN), v(CN)))
    for i in range(1, 16):
        e("v_mov_b32 %s, %s" % (v(CN + i), v(CN)))
    for i in range(16):
        e("v_mov_b32 %s, 0" % v(O + i))
    addr(T[2], None, KVF, [(sL, KVF_L), (sHEAD, 131072)])
    e("s_mov_b32 %s, 0" % sIT)
    lab(l2)
    e("buffer_load_dwordx4 %s, %s, %s, %s offen sc1" % (v(KB[0], 4), v(vL16), sWS, T[2]))
    e("s_mov_b64 exec, %s" % sMV)
    e("buffer_load_dwordx4 %s, %s, %s, %s offen offset:1024 sc1" % (v(VB[0], 4), v(vL16), sWS, T[2]))
    e("buffer_load_dwordx4 %s, %s, %s, %s offen offset:1280 sc1" % (v(VB[0] + 4, 4), v(vL16), sWS, T[2]))
    e("s_mov_b64 exec, -1")
    e("s_waitcnt vmcnt(0)")
    mfma(S[0], KB[0], Q, CN)
    e("s_nop 15")
    for i in range(16):
        e("v_exp_f32 %s, %s" % (v(S[0] + i), v(S[0] + i)))
    e("s_nop 1")
    smf(VB[0], S[0])
    smf(VB[0] + 4, S[0] + 8)
    e("s_nop 15")
    e("s_add_u32 %s, %s, 2048" % (T[2], T[2]))
    e("s_add_u32 %s, %s, 1" % (sIT, sIT))
    e("s_cmp_lt_u32 %s, 64" % sIT)
    e("s_cbranch_scc1 %s" % l2)
    e("s_branch %s" % fin)
    TAIL.extend(L)
    L[:] = keep
    stamp()


def ffn1_setup():
    e("v_and_b32 %s, 15, v0" % v(vPO))
    e("v_lshlrev_b32 %s, 3, %s" % (v(vPO), v(vPO)))
    slot(T[0], FO, [(sTBW, 16)])
    addr(T[1], sLB, X1F, [(sTBW, XSTR)])
    addr(T[2], sLB, ST1, [(sTBW, 4096)])
    e("v_add_u32 %s, %d, %s" % (v(vCA), CONST, v(vH16)))
    tr_rows(vW2, 192)
    e("v_add_u32 %s, 0x10000, %s" % (v(vW0), v(vW2)))
    e("v_add_u32 %s, %d, %s" % (v(vW1), 21 * 3072, v(vW0)))


def n512_setup(wo):
    J = 16 if wo else 39
    AK, AS = vACC, vACC + 16
    if not wo:
        addr(T[0], None, CONST + 384, [(sKH, 512)])
        e("v_add_u32 %s, %s, %s" % (v(vPO), T[0], v(vH16)))
        for i in range(4):
            e("ds_read_b128 %s, %s offset:%d" % (v(AS + 4 * i, 4), v(vPO), 32 * i))
    unpack(AK, vRES, 8)
    tr_rows(vW0, 128)
    e("v_bfe_u32 %s, v0, 3, 1" % v(vPD))
    e("v_xor_b32 %s, %s, %s" % (v(vPD), sKH, v(vPD)))
    e("v_lshl_or_b32 %s, %s, 6, %s" % (v(vW0), v(vPD), v(vW0)))
    e("s_mul_i32 %s, %s, %d" % (T[0], sKH, J * 2048))
    e("v_add_u32 %s, %s, %s" % (v(vW0), T[0], v(vW0)))
    e("v_xor_b32 %s, 64, %s" % (v(vW1), v(vW0)))
    if not wo:
        e("v_add_u32 %s, 0x10000, %s" % (v(vW2), v(vW0)))
        e("v_add_u32 %s, 0x10000, %s" % (v(vW3), v(vW1)))
    if wo:
        e("v_and_b32 %s, 15, v0" % v(vPO))
        slot(T[0], FA, [(sTBN, 32), (sKH, 16)])
        addr(T[1], sLB, OF, [(sTBN, XSTR), (sKH, 16384)])
    else:
        e("v_and_b32 %s, 7, v0" % v(vPO))
        slot(T[0], FH, [(sTBN, 16), (sKH, 7)])
        addr(T[1], sLB, HF, [(sTBN, HSTR), (sKH, 43 * 1024)])
    e("v_lshlrev_b32 %s, 3, %s" % (v(vPO), v(vPO)))
    if not wo:
        e("s_waitcnt lgkmcnt(0)")
        for p in range(8):
            e("v_pk_add_f32 %s, %s, %s" % (v(AK + 2 * p, 2), v(AK + 2 * p, 2), v(AS + 2 * p, 2)))


def n512(kind):
    wo = kind == "wo"
    ph = "o" if wo else "g"
    if wo:
        lab("L_wo")
    cm("================ %s" % ("output projection + residual" if wo else "MLP down projection + residual"))
    NS, J = (16, 16) if wo else (43, 39)
    ND = OPT("nd", 10 if wo else 13)
    AK, AS = vACC, vACC + 16
    hl, done = newlab("n_h"), newlab("n_done")
    e("s_cmp_ge_u32 %s, 4" % sW)
    e("s_cbranch_scc1 %s" % hl)
    if not wo:
        e("s_barrier")

    def rd(j, i):
        jj = j % J
        base, off = ((vW0, vW1)[i], jj * 2048) if jj < 32 else ((vW2, vW3)[i], (jj - 32) * 2048)
        d = vWB + (j % 3) * 8 + 4 * i
        e("ds_read_b64_tr_b16 %s, %s offset:%d" % (v(d, 2), v(base), off))
        e("ds_read_b64_tr_b16 %s, %s offset:%d" % (v(d + 2, 2), v(base), off + 1024))
    for j in range(2):
        for i in range(2):
            rd(j, i)
    poll(T[0])
    stamp()
    areg = lambda j: vA + 4 * (j % 32)
    load_frags(T[1], 0, ND, areg)
    fine(ph)

    def late_addresses():
        e("s_and_b32 %s, %s, 1" % (T[2], sW))
        if wo:
            addr(T[0], None, 0, [(T[2], 4096), (sKH, 32768)])
            e("s_xor_b32 %s, %s, 32768" % (T[3], T[0]))
            publish_addr(X1F, ST1, 0, FO)
        else:
            addr(T[0], None, 98304, [(T[2], 4096), (sKH, 8192)])
            e("s_xor_b32 %s, %s, 8192" % (T[3], T[0]))
            publish_addr(XF, ST, LFL_L * 8, FX)
        e("v_add_u32 %s, %s, %s" % (v(vPO), T[0], v(vL16)))
        e("v_add_u32 %s, %s, %s" % (v(vPD), T[3], v(vL16)))
    sh = capture(late_addresses)
    for j in range(NS):
        issued = min(NS, ND + j)
        if not wo and j == J - 2:
            e("s_barrier")
        if j < NS - 1:
            last2 = j == NS - 2
            e("s_waitcnt vmcnt(%d) lgkmcnt(%d)" % (0 if last2 else issued - j - 1, 0 if last2 else 4))
        if j in ((0, 4, 8, 15) if wo else (0, 11, 22, 42)):
            fine(ph)
        seq = [(j, 0), (j, 1)] if j < NS - 2 else [(j, 1), (j + 1, 1)] if j == NS - 2 else [(j - 1, 0), (j, 0)]
        for m, (jj, i) in enumerate(seq):
            acc = AK + 16 * i
            mfma(acc, vWB + (jj % 3) * 8 + 4 * i, areg(jj), "0" if (jj == 0 and i == 1) else acc)
            if j + 2 < NS:
                rd(j + 2, i)
            if m == 0 and ND + j < NS:
                load_frags(T[1], ND + j, 1, areg, False)
            if j >= 2:
                g = (j - 2) * 2 + m
                for x in sh[2 * g:2 * g + 2]:
                    e(x)
        if j == (8 if wo else NS - J - 1):
            e("s_barrier")
    assert len(sh) <= 4 * (NS - 2)
    e("s_nop 9")
    for i in range(4):
        e("ds_write_b128 %s, %s offset:%d" % (v(vPO), v(AS + 4 * i, 4), 1024 * i))
    e("s_waitcnt lgkmcnt(0)")
    e("s_barrier")
    stamp()
    for i in range(4):
        e("ds_read_b128 %s, %s offset:%d" % (v(AS + 4 * i, 4), v(vPD), 1024 * i))
    for i in range(4):
        e("s_waitcnt lgkmcnt(%d)" % (3 - i))
        for p in (2 * i, 2 * i + 1):
            e("v_pk_add_f32 %s, %s, %s" % (v(AK + 2 * p, 2), v(AK + 2 * p, 2), v(AS + 2 * p, 2)))
    for p in range(8):
        e("v_cvt_pk_bf16_f32 %s, %s, %s" % (v(vRES + p), v(AK + 2 * p), v(AK + 2 * p + 1)))
    if wo:
        publish_x(AK, 20, ffn1_setup)
    else:
        last = newlab("last")
        e("s_cmp_lg_u32 %s, 0" % sL)
        e("s_cbranch_scc1 %s" % last)
        publish_x(AK, 20, lambda: qkv_setup(True))
        e("s_branch %s" % done)
        lab(last)
        srd(sTMP, 28, 2048 * 1024)
        e("v_and_b32 v16, 31, v0")
        e("v_lshlrev_b32 v16, 10, v16")
        e("v_add_u32 v16, v16, %s" % v(vH16))
        addr(T[0], None, 0, [(sXCD, 262144), (sTBN, 32768), (sNT, 64)])
        for g in range(2):
            e("v_permlane32_swap_b32 %s, %s" % (v(vRES + 4 * g), v(vRES + 4 * g + 2)))
            e("v_permlane32_swap_b32 %s, %s" % (v(vRES + 4 * g + 1), v(vRES + 4 * g + 3)))
        for g in range(2):
            e("buffer_store_dwordx4 %s, v16, %s, %s offen offset:%d" % (v(vRES + 4 * g, 4), sTMP, T[0], 32 * g))
    e("s_branch %s" % done)
    lab(hl)
    if wo:
        voff_192(44)
        e("s_lshl_b32 %s, %s, 2" % (T[3], sHW))
        e("s_min_u32 %s, %s, 10" % (T[3], T[3]))
        addr(T[0], None, 8 * 16 * 2752, [(T[3], 16 * 2752), (sC, 192)])
        addr(T[1], None, 65536 + 8 * 3072, [(T[3], 3072)])
        dma_w1(2)
        e("s_mov_b32 %s, %s" % (T[3], T[0]))
        e("s_mov_b32 %s, %s" % (T[4], T[1]))
        w0, w1, w2 = newlab("wcs"), newlab("wcs"), newlab("wcs")
        e("s_cmp_lg_u32 %s, 0" % sL)
        e("s_cbranch_scc1 %s" % w0)
        tr_rows(43, 192)
        colsum_begin()
        addr(T[0], None, 65536, [(sHW, 2 * 3072)])
        colsum_w1()
        addr(T[0], None, 65536 + 22 * 3072, [(sHW, 2 * 3072)])
        colsum_w1()
        lab(w0)
        e("s_mov_b32 %s, %s" % (T[0], T[3]))
        e("s_mov_b32 %s, %s" % (T[1], T[4]))
        e("s_barrier")
        dma_w1(2)
        e("s_barrier")
        e("s_cmp_lg_u32 %s, 3" % sHW)
        e("s_cbranch_scc1 %s" % w1)
        addr(T[0], None, 30 * 16 * 2752, [(sC, 192)])
        e("s_mov_b32 %s, %d" % (T[1], 58 * 1024))
        dma_w1(2)
        lab(w1)
        e("s_cmp_lg_u32 %s, 0" % sL)
        e("s_cbranch_scc1 %s" % done)
        cm("own late k-steps: 8-11 | 12-15 | 16-19 | 20-21 and 30-31")
        e("s_and_b32 %s, %s, 1" % (T[4], sHW))
        addr(T[0], None, 65536 + 8 * 3072, [(sHW, 4 * 3072)])
        e("s_add_u32 %s, %s, %d" % (T[3], T[0], 2 * 3072))
        e("s_cmp_eq_u32 %s, 3" % sHW)
        e("s_cselect_b32 %s, %d, %s" % (T[3], 58 * 1024, T[3]))
        e("s_waitcnt vmcnt(0)")
        colsum_w1()
        e("s_mov_b32 %s, %s" % (T[0], T[3]))
        colsum_w1()
        colsum_partial()
        e("v_lshlrev_b32 v47, 16, v224")
        addr(T[0], None, B1_L, [(sHW, 128)])
        e("v_add_u32 v42, %s, v41" % T[0])
        e("ds_write_b32 v42, v47")
        e("v_lshlrev_b32 v49, 16, v225")
        addr(T[0], None, CONST + 384, [(T[4], 512)])
        e("v_add_u32 v42, %s, v41" % T[0])
        e("ds_write_b32 v42, v49")
    else:
        e("s_waitcnt vmcnt(0)")
        fine("w")
        e("s_barrier")
        fine("w")
        e("s_lshr_b32 %s, %s, 1" % (T[3], sHW))
        e("s_and_b32 %s, %s, 1" % (T[4], sHW))
        addr(T[0], None, 78 * 8192, [(T[3], 86 * 8192), (T[4], 4 * 8192), (sNB, 128)])
        addr(T[1], None, 0, [(T[3], 78 * 1024), (T[4], 4096)])
        e("s_barrier")
        for k in range(4):
            e("s_add_u32 m0, %s, %d" % (T[1], 1024 * k))
            e("s_nop 0")
            dma1(40, T[0], 4)
            e("s_add_u32 %s, %s, 8192" % (T[0], T[0]))
        e("s_waitcnt vmcnt(0)")
        e("s_barrier")
        stash_addr()
        e("s_barrier")
        e("s_cmp_lg_u32 %s, 0" % sL)
        e("s_cbranch_scc1 %s" % done)
        for k in range(24):
            e("ds_write_b128 v42, %s offset:%d" % (v(vSTASH + 4 * k, 4), 1024 * k))
    lab(done)
    stamp()


def ffn1():
    cm("================ MLP up projection + GELU")
    hl, done = newlab("f1_h"), newlab("f1_done")
    e("s_cmp_ge_u32 %s, 4" % sW)
    e("s_cbranch_scc1 %s" % hl)
    idle = newlab("f1_idle")
    e("s_cmp_eq_u32 %s, 15" % sC)
    e("s_cbranch_scc1 %s" % idle)
    setup = newlab("f1_setup")
    TAIL.extend([idle + ":"] + ["    s_barrier"] * 3 + ["    s_branch " + setup])

    lds = Lds()

    def rd(ks, i):
        d = vWB + (ks % 3) * 12 + 4 * i
        base, off = (vW0, ks * 3072) if ks < 21 else (vW1, (ks - 21) * 3072) if ks < 30 else (vW2, 58 * 1024 + (ks - 30) * 3072)
        lds.op(("w", ks), "ds_read_b64_tr_b16 %s, %s offset:%d" % (v(d, 2), v(base), off + 64 * i))
        lds.op(("w", ks), "ds_read_b64_tr_b16 %s, %s offset:%d" % (v(d + 2, 2), v(base), off + 64 * i + 1536))

    def wait(name):
        n = lds.need(name)
        if n is not None:
            e("s_waitcnt lgkmcnt(%d)" % n)
    for ks in range(2):
        for i in range(3):
            rd(ks, i)
    poll(T[0])
    stamp()

    def item(n):
        if n < 32:
            load_frags(T[1], n, 1, lambda j: vA + 4 * j, n % 4 == 0)
        else:
            e("buffer_load_dwordx4 %s, %s, %s, %s offen offset:%d sc1" % (v(vSTS + 4 * (n - 32), 4), v(vL16), sWS, T[2], 1024 * (n - 32)))
    sched = [[ks + DEPTH] if ks + DEPTH < 32 else [] for ks in range(32)]
    for k in range(4):
        sched[3 + 2 * k].append(32 + k)
    order = list(range(DEPTH))
    for n in range(DEPTH):
        item(n)
    fine("f")
    c0 = -2.0 * 1.4426950408889634 * 0.7978845608028654
    GC = vSTS + 4

    def early():
        addr(T[4], sLB, HF, [(sTBW, HSTR), (sC, 6144)])
        e("s_add_u32 %s, %s, 4096" % (T[5], T[4]))
        slot(T[6], FH, [(sTBW, 16), (sC, 1)])
    mid = stats_code(True) + ["v_mul_f32 %s, %s, %s" % (v(vMU), v(vMU), v(vR)), "v_mov_b32 %s, %s" % (v(GC), f32(c0)),
                              "v_mov_b32 %s, %s" % (v(GC + 1), f32(c0 * 0.044715)), "v_mov_b32 %s, 1.0" % v(GC + 2)]
    sh = [(10, lambda x=x: e(x)) for x in capture(early)] + [(17, lambda x=x: e(x)) for x in mid]
    cm("bias' = b1 - mean*rstd*colsum is formed under the last MFMAs, in dead activation registers")
    rdc, fmc = [], []
    for t in range(3):
        rdc.append([(22 if t < 2 else 24, lambda t=t, k=k: lds.op(("c", t), "ds_read_b128 %s, %s offset:%d" % (
            v(16 + 32 * t + 4 * k, 4), v(vCA), 512 + 512 * (k // 4) + t * 128 + 32 * (k % 4)))) for k in range(8)])
        fmc.append([(22, lambda t=t: wait(("c", t)))] + [(22, lambda t=t, r=r: e("v_fma_f32 %s, -%s, %s, %s" % (
            v(32 + 32 * t + r), v(vMU), v(16 + 32 * t + r), v(32 + 32 * t + r)))) for r in range(16)])
    mix = lambda a, b: [x for k in range(max(len(a), len(b))) for x in a[2 * k:2 * k + 2] + b[k:k + 1]]
    sh += rdc[0] + rdc[1][:4] + mix(fmc[0], rdc[1][4:]) + mix(fmc[1], rdc[2]) + fmc[2]
    pos = 0
    for ks in range(32):
        if ks in (6, 22):
            e("s_barrier")
        newest = max(order.index(n) for n in ([ks, 35] if ks >= 17 else [ks]))
        lg = lds.need(("w", ks))
        e("s_waitcnt vmcnt(%d)%s" % (len(order) - 1 - newest, "" if lg is None else " lgkmcnt(%d)" % lg))
        if ks in FINEKS:
            fine("f")
        for i in range(3):
            mfma(vACC + 16 * i, vWB + (ks % 3) * 12 + 4 * i, vA + 4 * ks, "0" if ks == 0 else vACC + 16 * i)
            if ks + 2 < 32:
                rd(ks + 2, i)
            if i < len(sched[ks]):
                item(sched[ks][i])
                order.append(sched[ks][i])
            for _ in range(3 if ks < 30 else 5):
                if pos < len(sh) and ks >= sh[pos][0]:
                    sh[pos][1]()
                    pos += 1
    for x in sh[pos:]:
        x[1]()
    stamp()
    e("s_nop %d" % max(0, 9 - len(sh[pos:])))
    Z, P = 120, vWB
    for t in range(3):
        acc, b1 = vACC + 16 * t, 32 + 32 * t
        for p in range(8):
            e("v_pk_fma_f32 %s, %s, %s, %s op_sel_hi:[1,0,1]" %
              (v(acc + 2 * p, 2), v(acc + 2 * p, 2), v(vR, 2), v(b1 + 2 * p, 2)))
        for p in range(8):
            e("v_pk_mul_f32 %s, %s, %s" % (v(Z + 2 * p, 2), v(acc + 2 * p, 2), v(acc + 2 * p, 2)))
        for p in range(8):
            e("v_pk_fma_f32 %s, %s, %s, %s op_sel:[0,1,0] op_sel_hi:[1,1,0]" %
              (v(Z + 2 * p, 2), v(Z + 2 * p, 2), v(GC, 2), v(GC, 2)))
        for p in range(8):
            e("v_pk_mul_f32 %s, %s, %s" % (v(Z + 2 * p, 2), v(Z + 2 * p, 2), v(acc + 2 * p, 2)))
        for i in range(16):
            e("v_exp_f32 %s, %s" % (v(Z + i), v(Z + i)))
        for p in range(8):
            e("v_pk_add_f32 %s, %s, %s op_sel_hi:[1,0]" % (v(Z + 2 * p, 2), v(Z + 2 * p, 2), v(GC + 2, 2)))
        for i in range(16):
            e("v_rcp_f32 %s, %s" % (v(Z + i), v(Z + i)))
        for p in range(8):
            e("v_pk_mul_f32 %s, %s, %s" % (v(acc + 2 * p, 2), v(acc + 2 * p, 2), v(Z + 2 * p, 2)))
        for p in range(8):
            e("v_cvt_pk_bf16_f32 %s, %s, %s" % (v(P + 8 * t + p), v(acc + 2 * p), v(acc + 2 * p + 1)))
        lstores(["buffer_store_dwordx4 %s, %s, %s, %s offen offset:%d" %
                 (v(P + 8 * t + 4 * hh, 4), v(vL16), sWS, T[4 + (2 * t + hh) // 4], ((2 * t + hh) % 4) * 1024) for hh in range(2)])
        if t == 0:
            e("s_barrier")
        if t != 1:
            fine("f")
    lab(setup)
    n512_setup(False)
    e("s_cmp_eq_u32 %s, 15" % sC)
    e("s_cbranch_scc1 %s" % done)
    flag(T[6], 0, local=True)
    e("s_branch %s" % done)
    lab(hl)
    h1 = newlab("fh1")
    voff_128(40)
    srd(sTMP, 24, 1376 * 1024)
    e("s_waitcnt vmcnt(0) lgkmcnt(0)")
    e("s_barrier")
    e("s_cmp_lg_u32 %s, 0" % sL)
    e("s_cbranch_scc1 %s" % h1)
    colsum_combine(CS1_L)
    e("s_waitcnt lgkmcnt(0)")
    lab(h1)
    E0 = OPT("e0", 4)
    if E0:
        dma_w2(0, 0, E0, OPT("e0p", 1) or -1)
    e("s_barrier")
    fine("w")
    dma_w2(86, 78 * 1024, 7, None)
    dma_w2(4 * E0, 4 * E0 * 1024, 14 - E0, None)
    dma_w2(86 + 28, (78 + 28) * 1024, 6, None)
    fine("w")
    e("s_barrier")
    fine("w")
    dma_w2(54, 54 * 1024, 6)
    dma_w2(86 + 50, (78 + 50) * 1024, 7)
    fine("w")
    lab(done)
    stamp()


def epilogue():
    e("s_add_u32 %s, %s, 1" % (sL, sL))
    e("s_add_u32 %s, %s, %d" % (sFB, sFB, LFL_L * 8))
    e("s_cmp_lt_u32 %s, 2" % sL)
    e("s_cbranch_scc1 L_layer")
    if PROFILE:
        e("s_memrealtime s[22:23]")
        e("s_waitcnt lgkmcnt(0)")
        stamp("s23")
        e("s_lshl_b32 %s, s2, 3" % T[0])
        e("s_add_u32 %s, %s, %s" % (T[0], T[0], sW))
        e("s_lshl_b32 %s, %s, 8" % (T[0], T[0]))
        e("s_add_u32 %s, %s, 0x%x" % (T[0], T[0], TSB))
        e("s_mov_b64 exec, 1")
        for i, r in enumerate([68, 18, 19] + list(range(STAMP0, STAMP0 + 30)) + [22, 23, 0, 1]):
            e("v_mov_b32 v16, s%d" % r)
            e("buffer_store_dword v16, off, %s, %s offset:%d" % (sWS, T[0], 4 * i))
        e("s_mov_b64 exec, 0xff")
        e("v_lshlrev_b32 v16, 2, v0")
        e("buffer_store_dword v5, v16, %s, %s offen offset:148" % (sWS, T[0]))
        e("s_mov_b64 exec, -1")
    if "--dbg" in sys.argv:
        sk = newlab("dbg")
        e("s_or_b32 %s, s2, %s" % (T[0], sW))
        e("s_cmp_lg_u32 %s, 0" % T[0])
        e("s_cbranch_scc1 %s" % sk)
        srd(sTMP, 30, 256)
        e("s_mov_b64 exec, 1")
        for i, r in enumerate([19, 72, 73, 74, 75, 76, 77, 80, 83, 86, 89, 90, 91, 95, 98, 101]):
            e("s_sub_u32 %s, s%d, s18" % (T[0], r))
            e("v_mov_b32 v16, %s" % T[0])
            e("buffer_store_dword v16, off, %s, 0 offset:%d" % (sTMP, 4 * i))
        e("s_mov_b64 exec, -1")
        lab(sk)
    if OPT("hold", 0):
        hl = newlab("hold")
        lab(hl)
        e("s_memrealtime s[70:71]")
        e("s_waitcnt lgkmcnt(0)")
        e("s_sub_u32 s70, s70, s68")
        e("s_cmp_lt_u32 s70, %d" % OPT("hold", 0))
        e("s_cbranch_scc1 %s" % hl)
    cm("advance the hand-off tag for the next launch")
    e("s_or_b32 %s, s2, %s" % (T[0], sW))
    e("s_cmp_lg_u32 %s, 0" % T[0])
    e("s_cbranch_scc1 L_end")
    e("s_mov_b64 exec, 1")
    e("buffer_store_dword %s, off, %s, 0" % (v(vFV), sWS))
    lab("L_end")
    e("s_endpgm")
    L.extend(TAIL)
    lab("L_code_end")


HEADER = open(f"cdna_kernels/{NAME}.s.ref").read().split("; Override launch")[0]


OVERVIEW = """;
; Generated by gen/gen.py (hand-written generator). One persistent launch, one 8-wave workgroup per CU.
; Hand-offs: payload stores, vmcnt wait, then an 8-byte flag {tag, ~tag}; tag = ws[0] + 16 differs per launch.
;   Every workgroup reports the die it runs on. If a die group shares one die its hand-offs use plain stores
"""


def main():
    prologue()
    p0()
    lab("L_layer")
    qkv()
    attention()
    n512("wo")
    ffn1()
    n512("f2")
    epilogue()
    k = NAME + "_kernel"
    out = HEADER
    out += "; @launch grid=(256,1,1) block=(512,1,1) lds=%d\n" % LDS_BYTES
    out += OVERVIEW
    out += '.amdgcn_target "amdgcn-amd-amdhsa--gfx950"\n.text\n.globl %s\n.p2align 8\n.type %s,@function\n%s:\n' % (k, k, k)
    out += "\n".join(L) + "\n"
    out += """.section .rodata,"a"
.p2align 6
.amdhsa_kernel %s
  .amdhsa_next_free_vgpr 256
  .amdhsa_next_free_sgpr 102
  .amdhsa_accum_offset 256
  .amdhsa_group_segment_fixed_size 0
  .amdhsa_kernarg_size 88
  .amdhsa_user_sgpr_count 2
  .amdhsa_user_sgpr_kernarg_segment_ptr 1
  .amdhsa_system_sgpr_workgroup_id_x 1
.end_amdhsa_kernel
""" % k
    open(OUT, "w").write(out)
    import subprocess
    r = subprocess.run([sys.executable, "hazard.py", OUT], capture_output=True, text=True).stdout
    if not r.strip().endswith("violations 0"):
        print(r)


main()
```

```python
import struct
import sys

NAME = "interleave_layers__softmax_full_mha__mixer_channel_mlp__prompt"
PROFILE = "--prof" in sys.argv
CLK = "s_memrealtime" if "--rt" in sys.argv else "s_memtime"
FORCE_SLOW = "--slow" in sys.argv
FORCE_GLOBAL = "--global" in sys.argv
OUT = [a for a in sys.argv[1:] if not a.startswith("--")]
OUT = OUT[0] if OUT else f"cdna_kernels/{NAME}.s"


def OPT(name, default):
    a = [x.split("=")[1] for x in sys.argv if x.startswith("--%s=" % name)]
    return int(a[0]) if a else default


def f32(x):
    return "0x%08x" % struct.unpack("<I", struct.pack("<f", x))[0]


WS_SIZE = 0x10000000
FLG = 0x100000
FI = 0
GFL, GFL_L = 0xA00000, 0x100000
KVF, KVF_L = 0x200000, 0x400000
ARENA, ARENA_X = 0x1000000, 0x200000
XSTR, HSTR = 33 * 1024, 97 * 1024
XF, OF, BLK, ST, LFL = 0, 0x48000, 0x90000, 0x158000, 0x160000
X1F, ST1, HF, QF, KVL = XF, ST, BLK, BLK, BLK + 32768
FX, FQ, FA, FO, FH, LFL_L = 0, 128, 256, 512, 640, 768
TSB = 0x4000000
DEPTH = OPT("depth", 10)
PACE = OPT("pace", 5)
RED = 140 * 1024
CONST = 156 * 1024
CSQ_L, CS1_L, B1_L, STAT_L, PART_L = CONST, CONST + 512, CONST + 1024, CONST + 1536, CONST + 2560
MODE_L = B1_L + 400
LDS_BYTES = 160 * 1024
sWS, sTMP = "s[4:7]", "s[8:11]"
sW, sNONCE, sL, sLB, sFB = "s34", "s35", "s36", "s37", "s38"
sXCD, sJ, sTBW, sC, sTBN, sNB, sKH, sNT, sHEAD, sQB = ("s%d" % i for i in range(39, 49))
sHW = "s49"
T = ["s%d" % i for i in range(50, 60)]
sCNT, sIT = "s60", "s61"
sMV = "s[62:63]"
sM0, sM1 = "s[64:65]", "s[66:67]"
sMODE = "s3"
STAMP0 = 72
vLANE, vL16, vFV, vPO, vT5, vPD = 0, 1, 2, 4, 5, 6
vRES = 8
vA, vACC, vWB, vSTS = 16, 144, 192, 228
vW0, vW1, vMU, vW2, vR, vW3, vRQ, vCA, vTR, vK16, vVOF, vH16 = 244, 245, 246, 247, 248, 249, 250, 251, 252, 253, 254, 255
vSTASH = 128
QL = 128 * 1024
POLL_LIMIT = 1 << 16

L = []
TAIL = []
uid = [0]
nstamp = [0]


def e(s):
    L.append("    " + s)


def lab(n):
    L.append(n + ":")


def cm(s):
    L.append("    ; " + s)


def v(i, n=1):
    return "v%d" % i if n == 1 else "v[%d:%d]" % (i, i + n - 1)


def capture(f):
    n = len(L)
    f()
    out = [x.strip() for x in L[n:]]
    del L[n:]
    return out


def newlab(p):
    uid[0] += 1
    return "L_%s_%d" % (p, uid[0])


def stamp(fixed=None):
    if not PROFILE:
        return
    e(CLK + " s[70:71]")
    e("s_waitcnt lgkmcnt(0)")
    if fixed:
        e("s_mov_b32 %s, s70" % fixed)
        return
    e("s_mul_i32 s69, %s, 15" % sL)
    e("s_add_u32 m0, s69, %d" % nstamp[0])
    e("s_nop 1")
    e("s_movreld_b32 s%d, s70" % STAMP0)
    nstamp[0] += 1
    assert nstamp[0] <= 15


FINE = [a.split("=")[1] for a in sys.argv if a.startswith("--fine=")]
FINE = FINE[0] if FINE else None
nfine = [0]
FINEKS = eval([a.split('=')[1] for a in sys.argv if a.startswith('--ks=')][0]) if any(a.startswith('--ks=') for a in sys.argv) else (0, 8, 16, 31)


def fine(phase):
    if not PROFILE or FINE != phase:
        return
    e(CLK + " s[70:71]")
    e("s_waitcnt lgkmcnt(0)")
    sk = newlab("fs")
    e("s_cmp_lg_u32 %s, %d" % (sL, 0 if "--l0" in sys.argv else 1))
    e("s_cbranch_scc1 %s" % sk)
    e("v_writelane_b32 v5, s70, %d" % nfine[0])
    lab(sk)
    nfine[0] += 1


def srd(dst, lo, size):
    b = int(dst[2:dst.index(":")])
    e("s_mov_b32 s%d, s%d" % (b, lo))
    e("s_and_b32 s%d, s%d, 0xffff" % (b + 1, lo + 1))
    e("s_mov_b32 s%d, %s" % (b + 2, size if isinstance(size, str) else hex(size)))
    e("s_mov_b32 s%d, 0x20000" % (b + 3))


def poll(soff):
    a, b = newlab("poll"), newlab("pok")
    regs = (vPD, 16) if OPT("p2", 1) else (vPD,)
    ld = lambda r: e("buffer_load_dwordx2 %s, %s, %s, %s offen sc1" % (v(r, 2), v(vPO), sWS, soff))
    e("s_mov_b32 %s, %d" % (sCNT, POLL_LIMIT))
    if len(regs) == 2:
        ld(regs[0])
    lab(a)
    for k, r in enumerate(regs):
        ld(regs[(k + 1) % len(regs)])
        e("s_waitcnt vmcnt(%d)" % (len(regs) - 1))
        e("v_cmp_eq_u64 vcc, %s, %s" % (v(r, 2), v(vFV, 2)))
        e("s_nop 0")
        e("s_cmp_eq_u64 vcc, -1")
        e("s_cbranch_scc1 %s" % b)
    e("s_sub_u32 %s, %s, 1" % (sCNT, sCNT))
    e("s_cbranch_scc0 %s" % a)
    e("s_endpgm")
    lab(b)


def lstores(lines):
    g, d = newlab("wt"), newlab("wtd")
    e("s_cmp_eq_u32 %s, 0" % sMODE)
    e("s_cbranch_scc1 %s" % g)
    for x in lines:
        e(x)
    lab(d)
    TAIL.append(g + ":")
    for x in lines:
        TAIL.append("    " + x + (" sc1" if x.startswith("buffer_store") else ""))
    TAIL.append("    s_branch " + d)


def flag(soff, n=0, local=False):
    if n is not None:
        e("s_waitcnt vmcnt(%d)" % n)
    if local:
        e("s_mov_b64 exec, 1")
        lstores(["buffer_store_dwordx2 %s, off, %s, %s" % (v(vFV, 2), sWS, soff)])
    else:
        e("v_lshlrev_b32 %s, 3, v0" % v(vPD))
        e("s_mov_b64 exec, 0xffff")
        e("buffer_store_dwordx2 %s, %s, %s, %s offen sc1" % (v(vFV, 2), v(vPD), sWS, soff))
    e("s_mov_b64 exec, -1")


def mode_poll(first=False):
    a, b, glob, out = newlab("mp"), newlab("mpok"), newlab("mpg"), newlab("mpo")
    e("v_and_b32 %s, 31, v0" % v(vPD))
    e("v_lshlrev_b32 %s, 10, %s" % (v(vPD), v(vPD)))
    addr(T[3], None, FLG + FI * 128, [(sXCD, 128)])
    e("v_add_u32 %s, %s, %s" % (v(vPD), T[3], v(vPD)))
    if first:
        e("v_add_u32 %s, %s, %s" % (v(vPD + 1), T[0], v(vPO)))
        e("v_cmp_gt_u32 vcc, 32, v0")
        e("s_nop 1")
        e("v_cndmask_b32 v60, %s, %s, vcc" % (v(vPD), v(vPD + 1)))
    e("s_getreg_b32 %s, hwreg(HW_REG_XCC_ID, 0, 4)" % T[3])
    e("s_mov_b32 %s, %d" % (sCNT, POLL_LIMIT))
    e("s_mov_b32 %s, 1" % sMODE)
    lab(a)
    e("buffer_load_dwordx2 %s, v60, %s, 0 offen sc1" % (v(vPD, 2), sWS))
    e("s_waitcnt vmcnt(0)")
    e("v_xor_b32 %s, %s, %s" % (v(vPD + 1), v(vPD + 1), v(vFV + 1)))
    e("v_cmp_eq_u32 %s, %s, %s" % (sM0, v(vPD), v(vFV)))
    e("v_cmp_eq_u32 %s, %s, %s" % (sM1, T[3], v(vPD + 1)))
    e("v_cmp_gt_u32 vcc, 16, %s" % v(vPD + 1))
    e("s_nop 1")
    e("s_and_b64 %s, %s, %s" % (sM1, sM1, sM0))
    e("s_and_b64 vcc, vcc, %s" % sM0)
    if not FORCE_GLOBAL:
        e("s_cmp_eq_u64 %s, -1" % sM1)
        e("s_cbranch_scc1 %s" % out)
    e("s_cmp_eq_u32 vcc_hi, -1")
    e("s_cbranch_scc0 %s" % b)
    if not FORCE_GLOBAL:
        e("s_cmp_eq_u32 s67, -1")
        e("s_cbranch_scc0 %s" % glob)
    else:
        e("s_branch %s" % glob)
    lab(b)
    e("s_sub_u32 %s, %s, 1" % (sCNT, sCNT))
    e("s_cbranch_scc0 %s" % a)
    e("s_endpgm")
    lab(glob)
    e("s_mov_b32 %s, 0" % sMODE)
    if first:
        e("v_xor_b32 %s, 31, %s" % (v(vFV + 1), v(vFV + 1)))
        publish_addr(XF, ST, 0, FX)
        publish_x(None, 84)
        poll(T[0])
        e("v_xor_b32 %s, 31, %s" % (v(vFV + 1), v(vFV + 1)))
    lab(out)


def slot(dst, base, terms):
    e("s_add_u32 %s, %s, %d" % (dst, sFB, base * 8))
    for r, m in terms:
        e("s_mul_i32 %s, %s, %d" % (T[9], r, m * 8))
        e("s_add_u32 %s, %s, %s" % (dst, dst, T[9]))


def addr(dst, base_reg, const, terms):
    if base_reg is None:
        e("s_mov_b32 %s, 0x%x" % (dst, const))
    else:
        e("s_add_u32 %s, %s, 0x%x" % (dst, base_reg, const))
    for r, m in terms:
        e("s_mul_i32 %s, %s, %d" % (T[9], r, m))
        e("s_add_u32 %s, %s, %s" % (dst, dst, T[9]))


def load_frags(sg, first, n, reg_of, rebase=True):
    for j in range(first, first + n):
        if j % 4 == 0 or (j == first and rebase):
            e("s_add_u32 %s, %s, %d" % (T[8], sg, (j // 4) * 4096))
        e("buffer_load_dwordx4 %s, %s, %s, %s offen offset:%d sc1" %
          (v(reg_of(j), 4), v(vL16), sWS, T[8], (j % 4) * 1024))


def mfma(d, a, b, c):
    e("v_mfma_f32_32x32x16_bf16 %s, %s, %s, %s" % (v(d, 16), v(a, 4), v(b, 4), c if isinstance(c, str) else v(c, 16)))


def half_sum(a, b):
    e("s_nop 1")
    e("v_permlane32_swap_b32 %s, %s" % (v(a), v(b)))
    e("s_nop 1")
    e("v_add_f32 %s, %s, %s" % (v(a), v(a), v(b)))


def tile_stats(y, t):
    e("v_pk_add_f32 %s, %s, %s" % (v(t, 2), v(y, 2), v(y + 2, 2)))
    e("v_pk_mul_f32 %s, %s, %s" % (v(t + 2, 2), v(y, 2), v(y, 2)))
    for p in range(1, 8):
        if p > 1:
            e("v_pk_add_f32 %s, %s, %s" % (v(t, 2), v(t, 2), v(y + 2 * p, 2)))
        e("v_pk_fma_f32 %s, %s, %s, %s" % (v(t + 2, 2), v(y + 2 * p, 2), v(y + 2 * p, 2), v(t + 2, 2)))
    e("v_add_f32 %s, %s, %s" % (v(t), v(t), v(t + 1)))
    e("v_add_f32 %s, %s, %s" % (v(t + 2), v(t + 2), v(t + 3)))
    half_sum(t, t + 2)


def unpack(dst, src, n):
    for i in range(n):
        e("v_lshlrev_b32 %s, 16, %s" % (v(dst + 2 * i), v(src + i)))
        e("v_and_b32 %s, 0xffff0000, %s" % (v(dst + 2 * i + 1), v(src + i)))


def publish_addr(xoff, stoff, fbase_add, fbase):
    addr(T[4], sLB, xoff, [(sTBN, XSTR), (sNT, 2048)])
    e("s_lshr_b32 %s, %s, 2" % (T[6], sNT))
    e("s_and_b32 %s, %s, 3" % (T[7], sNT))
    addr(T[5], sLB, stoff, [(sTBN, 4096), (T[6], 1024), (T[7], 4)])
    slot(T[6], fbase, [(sTBN, 16), (sNT, 1)])
    if fbase_add:
        e("s_add_u32 %s, %s, %d" % (T[6], T[6], fbase_add))


def publish_x(y, t, meanwhile=None):
    lstores(["buffer_store_dwordx4 %s, %s, %s, %s offen" % (v(vRES, 4), v(vL16), sWS, T[4]),
             "buffer_store_dwordx4 %s, %s, %s, %s offen offset:1024" % (v(vRES + 4, 4), v(vL16), sWS, T[4])])
    if y is not None:
        tile_stats(y, t)
    lstores(["buffer_store_dword %s, %s, %s, %s offen" % (v(t), v(vL16), sWS, T[5])])
    if meanwhile:
        meanwhile()
    flag(T[6], local=True)


def prologue():
    e("s_cmp_ge_u32 s2, 256")
    e("s_cbranch_scc1 L_end")
    e("s_load_dwordx16 s[12:27], s[0:1], 0")
    e("s_load_dwordx4 s[28:31], s[0:1], 64")
    e("s_load_dwordx2 s[32:33], s[0:1], 80")
    e("v_lshrrev_b32 v1, 6, v0")
    e("v_and_b32 v0, 63, v0")
    e("v_readfirstlane_b32 %s, v1" % sW)
    e("v_lshlrev_b32 %s, 4, v0" % v(vL16))
    cm("column part of a transposing-read address: (lane&3)*8 + ((lane>>4)&1)*32")
    e("v_and_b32 %s, 3, v0" % v(vTR))
    e("v_lshlrev_b32 %s, 3, %s" % (v(vTR), v(vTR)))
    e("v_bfe_u32 %s, v0, 4, 1" % v(vT5))
    e("v_lshl_or_b32 %s, %s, 5, %s" % (v(vTR), v(vT5), v(vTR)))
    e("v_lshrrev_b32 %s, 5, v0" % v(vT5))
    e("v_lshlrev_b32 %s, 4, %s" % (v(vH16), v(vT5)))
    cm("K fragments are stored with token bits 2 and 3 swapped (matches the sparse-MFMA key order)")
    e("v_and_b32 %s, 0x33, v0" % v(vK16))
    e("v_and_b32 %s, 4, v0" % v(vPO))
    e("v_lshl_or_b32 %s, %s, 1, %s" % (v(vK16), v(vPO), v(vK16)))
    e("v_and_b32 %s, 8, v0" % v(vPO))
    e("v_lshrrev_b32 %s, 1, %s" % (v(vPO), v(vPO)))
    e("v_or_b32 %s, %s, %s" % (v(vK16), v(vK16), v(vPO)))
    e("v_lshlrev_b32 %s, 4, %s" % (v(vK16), v(vK16)))
    cm("V store offset: head parity*128K + half*512 + d*16")
    e("v_and_b32 %s, 15, v0" % v(vVOF))
    e("v_lshlrev_b32 %s, 4, %s" % (v(vVOF), v(vVOF)))
    e("v_lshl_or_b32 %s, %s, 9, %s" % (v(vVOF), v(vT5), v(vVOF)))
    e("v_bfe_u32 %s, v0, 4, 1" % v(vPO))
    e("v_lshl_or_b32 %s, %s, 17, %s" % (v(vVOF), v(vPO), v(vVOF)))
    e("s_and_b32 %s, s2, 7" % sXCD)
    e("s_lshr_b32 %s, s2, 3" % sJ)
    e("s_and_b32 %s, %s, 3" % (sHW, sW))
    e("s_and_b32 %s, %s, 15" % (sC, sJ))
    e("s_lshr_b32 %s, %s, 4" % (T[0], sJ))
    e("s_lshl_b32 %s, %s, 2" % (T[0], T[0]))
    e("s_add_u32 %s, %s, %s" % (sTBW, T[0], sHW))
    e("s_and_b32 %s, %s, 7" % (sNB, sJ))
    e("s_lshr_b32 %s, %s, 3" % (T[0], sJ))
    e("s_mov_b32 %s, %s" % (sHEAD, sJ))
    e("s_lshl_b32 %s, %s, 1" % (sTBN, T[0]))
    e("s_and_b32 %s, %s, 1" % (T[0], sW))
    e("s_add_u32 %s, %s, %s" % (sTBN, sTBN, T[0]))
    e("s_lshr_b32 %s, %s, 1" % (sKH, sHW))
    e("s_lshl_b32 %s, %s, 1" % (sNT, sNB))
    e("s_add_u32 %s, %s, %s" % (sNT, sNT, sKH))
    e("s_mov_b32 s62, 0xffff")
    e("s_mov_b32 s63, 0xffff")
    e("s_mov_b32 %s, 0" % sL)
    addr(sLB, None, ARENA, [(sXCD, ARENA_X)])
    e("s_add_u32 %s, %s, 0x%x" % (sFB, sLB, LFL))
    e("s_waitcnt lgkmcnt(0)")
    srd(sWS, 32, WS_SIZE)
    srd(sTMP, 12, 2048 * 1024)
    cm("hand-off tag: ws[0] only tells this launch's flags from an earlier launch's")
    e("s_load_dword %s, s[32:33], 0" % sNONCE)
    if OPT("hold", 0) and not PROFILE:
        e("s_memrealtime s[70:71]")
        e("s_waitcnt lgkmcnt(0)")
        e("s_mov_b32 s68, s70")
    if PROFILE:
        e("s_memrealtime s[70:71]")
        e("s_waitcnt lgkmcnt(0)")
        e("s_mov_b32 s68, s70")
        stamp("s18")


def make_tag():
    e("s_waitcnt lgkmcnt(0)")
    e("s_add_u32 %s, %s, 16" % (sNONCE, sNONCE))
    e("v_mov_b32 %s, %s" % (v(vFV), sNONCE))
    e("v_not_b32 %s, %s" % (v(vFV + 1), v(vFV)))


def qkv_setup(next_layer):
    e("v_and_b32 %s, 15, v0" % v(vPO))
    e("v_lshlrev_b32 %s, 3, %s" % (v(vPO), v(vPO)))
    slot(T[0], FX + (LFL_L if next_layer else 0), [(sTBW, 16)])
    addr(T[1], sLB, XF, [(sTBW, XSTR)])
    addr(T[2], sLB, ST, [(sTBW, 4096)])
    e("v_add_u32 %s, %d, %s" % (v(vCA), CONST, v(vH16)))
    tr_pair(vW0)
    e("v_xor_b32 %s, 64, %s" % (v(vW2), v(vW0)))
    tr_rows(vW1, 64)
    e("v_add_u32 %s, 0x10000, %s" % (v(vW1), v(vW1)))


def p0():
    cm("================ P0 (waves 0-3): x tile -> residual registers, fragments and row statistics")
    p0end, noid, nox, npt = newlab("p0end"), newlab("noid"), newlab("nox"), newlab("npt")
    e("s_cmp_ge_u32 %s, 4" % sW)
    e("s_cbranch_scc1 %s" % nox)
    e("v_and_b32 %s, 31, v0" % v(vPO))
    e("v_lshlrev_b32 %s, 10, %s" % (v(vPO), v(vPO)))
    e("v_add_u32 %s, %s, %s" % (v(vPO), v(vPO), v(vH16)))
    addr(T[0], None, 0, [(sXCD, 262144), (sTBN, 32768), (sNT, 64)])
    for g in range(2):
        e("buffer_load_dwordx4 %s, %s, %s, %s offen offset:%d" % (v(vRES + 4 * g, 4), v(vPO), sTMP, T[0], 32 * g))
    lab(nox)
    e("v_lshlrev_b32 v17, 7, v0")
    for bit, wave in ((1, OPT("w1", 6)), (2, OPT("w2", 5))):
        if not OPT("qft", 3) & bit:
            continue
        nq = newlab("nq")
        e("s_cmp_lg_u32 %s, %d" % (sW, wave))
        e("s_cbranch_scc1 %s" % nq)
        srd(sTMP, 14, 512 * 3072)
        if bit == 1:
            cm("first touch of Wqkv, one line per lane, spread over all workgroups")
            e("s_mul_i32 %s, s2, %d" % (T[0], 48 * 128))
            e("v_mov_b32 v19, v17")
        else:
            cm("one 128-byte column class of Wqkv arrives slowest: the die group requests its lines up front")
            addr(T[0], None, 384, [(sJ, 48 * 1024)])
            e("v_lshlrev_b32 v19, 10, v0")
        e("s_mov_b32 exec_hi, 0xffff")
        e("buffer_load_dword v16, v19, %s, %s offen" % (sTMP, T[0]))
        e("s_mov_b64 exec, -1")
        lab(nq)
    e("s_cmp_lg_u32 %s, 4" % sW)
    e("s_cbranch_scc1 %s" % npt)
    cm("statistics and flag lines receive partial writes: bring them into L2 first")
    addr(T[0], sLB, ST, [(sJ, 11 * 128)])
    e("s_mov_b64 exec, 0x7ff")
    e("buffer_load_dword v18, v17, %s, %s offen sc1" % (sWS, T[0]))
    e("s_mov_b64 exec, -1")
    lab(npt)
    e("s_cmp_ge_u32 %s, 4" % sW)
    e("s_cbranch_scc1 %s" % p0end)
    stamp("s0")
    make_tag()
    e("s_getreg_b32 %s, hwreg(HW_REG_XCC_ID, 0, 4)" % T[7])
    e("s_mov_b32 %s, 1" % sMODE)
    e("v_xor_b32 %s, %s, %s" % (v(vFV + 1), T[7], v(vFV + 1)))
    publish_addr(XF, ST, 0, FX)
    nid = newlab("nid")
    e("s_cmp_lg_u32 %s, 0" % sW)
    e("s_cbranch_scc1 %s" % nid)
    e("s_lshl_b32 %s, s2, 7" % T[8])
    e("s_add_u32 %s, %s, 0x%x" % (T[8], T[8], FLG + FI * 128))
    flag(T[8], None)
    e("s_waitcnt vmcnt(1)")
    e("s_branch %s" % noid)
    lab(nid)
    e("s_waitcnt vmcnt(0)")
    lab(noid)
    stamp("s1")
    for g in range(2):
        e("v_permlane32_swap_b32 %s, %s" % (v(vRES + 4 * g), v(vRES + 4 * g + 2)))
        e("v_permlane32_swap_b32 %s, %s" % (v(vRES + 4 * g + 1), v(vRES + 4 * g + 3)))
    e("s_nop 0")
    unpack(66, vRES, 8)
    publish_x(66, 84, lambda: qkv_setup(False))
    e("s_nop 0")
    e("v_not_b32 %s, %s" % (v(vFV + 1), v(vFV)))
    lab(p0end)
    stamp("s19")


def tr_pair(dst):
    tr_rows(dst, 128)
    e("v_bfe_u32 %s, v0, 3, 1" % v(vPD))
    e("v_lshl_or_b32 %s, %s, 6, %s" % (v(dst), v(vPD), v(dst)))


def tr_rows(dst, rowbytes):
    e("v_bfe_u32 %s, v0, 2, 2" % v(dst))
    e("v_lshrrev_b32 %s, 2, %s" % (v(vPD), v(vH16)))
    e("v_add_u32 %s, %s, %s" % (v(dst), v(dst), v(vPD)))
    e("v_mul_u32_u24 %s, %d, %s" % (v(dst), rowbytes, v(dst)))
    e("v_add_u32 %s, %s, %s" % (v(dst), v(dst), v(vTR)))


def voff_128(dst, row=1024):
    e("v_lshrrev_b32 %s, 3, v0" % v(dst))
    e("v_mul_u32_u24 %s, %d, %s" % (v(dst), row, v(dst)))
    e("v_and_b32 %s, 7, v0" % v(vPD))
    e("v_lshrrev_b32 %s, 2, v0" % v(vPD + 1))
    e("v_and_b32 %s, 4, %s" % (v(vPD + 1), v(vPD + 1)))
    e("v_xor_b32 %s, %s, %s" % (v(vPD), v(vPD), v(vPD + 1)))
    e("v_lshl_or_b32 %s, %s, 4, %s" % (v(dst), v(vPD), v(dst)))


def voff_192(dst):
    for i in range(3):
        e("v_add_u32 %s, %d, v0" % (v(vPD), 64 * i))
        e("v_mul_u32_u24 %s, 5462, %s" % (v(vPD + 1), v(vPD)))
        e("v_lshrrev_b32 %s, 16, %s" % (v(vPD + 1), v(vPD + 1)))
        e("v_mul_u32_u24 %s, %d, %s" % (v(dst + i), 2752 - 192, v(vPD + 1)))
        e("v_lshl_add_u32 %s, %s, 4, %s" % (v(dst + i), v(vPD), v(dst + i)))


def dma1(vo, sg, cls):
    e("buffer_load_dwordx4 %s, %s, %s offen%s lds" % (v(vo), sTMP, sg, " nt" if OPT("wnt", 0) & cls else ""))


def dma_loop(n, body):
    lp = newlab("dl")
    e("s_mov_b32 %s, %d" % (T[2], n))
    lab(lp)
    body()
    e("s_sub_u32 %s, %s, 1" % (T[2], T[2]))
    e("s_cmp_lg_u32 %s, 0" % T[2])
    e("s_cbranch_scc1 %s" % lp)


def dma_w2(piece0, lds0, n, pace=PACE):
    addr(T[0], None, piece0 * 8192, [(sHW, n * 8192), (sNB, 128)])
    addr(T[1], None, lds0, [(sHW, n * 1024)])

    def body():
        e("s_mov_b32 m0, %s" % T[1])
        e("s_add_u32 %s, %s, 1024" % (T[1], T[1]))
        dma1(40, T[0], 4)
        e("s_add_u32 %s, %s, 8192" % (T[0], T[0]))
        if pace:
            e("s_waitcnt vmcnt(%d)" % max(pace, 0))
    dma_loop(n, body)


def dma_w1(n):
    def body():
        for i in range(3):
            e("s_add_u32 m0, %s, %d" % (T[1], 1024 * i))
            e("s_nop 0")
            dma1(44 + i, T[0], 2)
        e("s_add_u32 %s, %s, %d" % (T[0], T[0], 16 * 2752))
        e("s_add_u32 %s, %s, 3072" % (T[1], T[1]))
    dma_loop(n, body)


def wq_begin():
    srd(sTMP, 14, 512 * 3072)
    voff_128(44, 3072)
    e("v_lshrrev_b32 v40, 2, v0")
    e("v_mul_u32_u24 v40, 3072, v40")
    e("v_and_b32 v41, 3, v0")
    e("v_lshl_or_b32 v40, v41, 4, v40")
    cm("odd groups take a K column pair, even groups a V column pair; every group takes one Q tile")
    e("s_and_b32 %s, %s, 1" % (T[0], sC))
    e("s_lshr_b32 %s, %s, 1" % (T[1], sC))
    e("s_mul_i32 %s, %s, -1024" % (T[0], T[0]))
    addr(T[3], T[0], 2048, [(sHW, 2 * 49152), (T[1], 128)])
    addr(T[5], None, 0, [(sHW, 2 * 49152), (sC, 64)])
    e("s_lshl_b32 %s, %s, 12" % (T[4], sHW))
    addr(T[6], None, 65536, [(sHW, 2048)])


def wq_chunk():
    for k in range(4):
        e("s_add_u32 m0, %s, %d" % (T[4], 1024 * k))
        e("s_nop 0")
        e("buffer_load_dwordx4 v44, %s, %s offen lds" % (sTMP, T[3]))
        e("s_add_u32 %s, %s, %d" % (T[3], T[3], 24576 if k < 3 else 24576 + 6 * 49152))
        if k % 2:
            e("s_add_u32 m0, %s, %d" % (T[6], 1024 * (k // 2)))
            e("s_nop 0")
            e("buffer_load_dwordx4 v40, %s, %s offen lds" % (sTMP, T[5]))
            e("s_add_u32 %s, %s, %d" % (T[5], T[5], 49152 if k == 1 else 7 * 49152))
    e("s_add_u32 %s, %s, 16384" % (T[4], T[4]))
    e("s_add_u32 %s, %s, 8192" % (T[6], T[6]))


CSA = 64


def colsum_begin():
    for r in range(48):
        e("v_mov_b32 v%d, 0" % (CSA + r))
    for r in range(4):
        e("v_mov_b32 v%d, 0x3f803f80" % (52 + r))


def colsum2(regs, steps, seconds):
    for k in range(2):
        for i in range(3):
            for h in range(2):
                e("ds_read_b64_tr_b16 %s, v%d offset:%d" % (v(16 + 12 * k + 4 * i + 2 * h, 2), regs[i], k * steps[i] + h * seconds[i]))
    for k in range(6):
        e("s_waitcnt lgkmcnt(%d)" % (10 - 2 * k))
        mfma(CSA + 16 * (k % 3), 52, 16 + 4 * k, CSA + 16 * (k % 3))


def colsum_w1():
    e("v_add_u32 v42, %s, v43" % T[0])
    e("v_add_u32 v48, 64, v42")
    e("v_add_u32 v50, 128, v42")
    colsum2((42, 48, 50), (3072,) * 3, (1536,) * 3)


def colsum_partial():
    e("v_and_b32 v41, 31, v0")
    e("v_lshlrev_b32 v41, 2, v41")
    addr(T[0], None, PART_L, [(sHW, 384)])
    e("v_add_u32 v42, %s, v41" % T[0])
    e("s_nop 7")
    for i in range(3):
        e("ds_write_b32 v42, v%d offset:%d" % (CSA + 16 * i, 128 * i))


def colsum_combine(dst_l):
    e("s_min_u32 %s, %s, 2" % (T[0], sHW))
    e("s_lshl_b32 %s, %s, 7" % (T[0], T[0]))
    e("v_add_u32 v41, %s, v41" % T[0])
    e("v_add_u32 v42, %d, v41" % PART_L)
    for k in range(4):
        e("ds_read_b32 v%d, v42 offset:%d" % (16 + k, 384 * k))
    e("v_add_u32 v41, %d, v41" % dst_l)
    e("s_waitcnt lgkmcnt(0)")
    e("v_add_f32 v16, v16, v17")
    e("v_add_f32 v18, v18, v19")
    e("v_add_f32 v16, v16, v18")
    e("ds_write_b32 v41, v16")


def stats_code(second_ln):
    c = []
    for k in range(1, 16):
        c.append("v_add_f32 %s, %s, %s" % (v(vSTS), v(vSTS), v(vSTS + k)))
    c += ["v_mov_b32 %s, %s" % (v(vSTS + 1), v(vSTS)), "s_nop 1",
          "v_permlane32_swap_b32 %s, %s" % (v(vSTS), v(vSTS + 1)), "s_nop 1",
          "v_mul_f32 %s, %s, %s" % (v(vMU), f32(1.0 / 512), v(vSTS)),
          "v_mul_f32 %s, %s, %s" % (v(vSTS + 1), f32(1.0 / 512), v(vSTS + 1)),
          "v_fma_f32 %s, -%s, %s, %s" % (v(vSTS + 1), v(vMU), v(vMU), v(vSTS + 1)),
          "v_max_f32 %s, 0, %s" % (v(vSTS + 1), v(vSTS + 1)),
          "v_add_f32 %s, %s, %s" % (v(vSTS + 2), f32(1e-5), v(vSTS + 1)),
          "v_rsq_f32 %s, %s" % (v(vR), v(vSTS + 2)), "s_nop 0"]
    if second_ln:
        c += ["v_mul_f32 %s, %s, %s" % (v(vSTS + 2), v(vR), v(vR)),
              "v_mul_f32 %s, %s, %s" % (v(vSTS + 2), v(vSTS + 2), v(vSTS + 1)),
              "v_add_f32 %s, %s, %s" % (v(vSTS + 2), f32(1e-5), v(vSTS + 2)),
              "v_rsq_f32 %s, %s" % (v(vSTS + 2), v(vSTS + 2)), "s_nop 0",
              "v_mul_f32 %s, %s, %s" % (v(vR), v(vR), v(vSTS + 2))]
    return c


def center(acc, cs, p):
    e("v_pk_fma_f32 %s, %s, %s, %s op_sel_hi:[0,1,1] neg_lo:[1,0,0] neg_hi:[1,0,0]" %
      (v(acc + 2 * p, 2), v(vMU, 2), v(cs + 2 * p, 2), v(acc + 2 * p, 2)))


def stash_addr():
    e("s_mul_i32 %s, %s, 24576" % (T[0], sHW))
    e("v_add_u32 v42, %s, %s" % (T[0], v(vL16)))


class Lds:
    def __init__(self):
        self.ops, self.done = [], 0

    def op(self, name, text):
        e(text)
        self.ops.append(name)

    def need(self, name):
        last = max(i for i, n in enumerate(self.ops) if n == name)
        if last < self.done:
            return None
        self.done = last + 1
        return min(15, len(self.ops) - 1 - last)


def qkv_body(isk, done):
    H = 16

    def item(n):
        if n < 32:
            load_frags(T[1], n, 1, lambda j: vA + 4 * j, n % 4 == 0)
        else:
            e("buffer_load_dwordx4 %s, %s, %s, %s offen offset:%d sc1" % (v(vSTS + 4 * (n - 32), 4), v(vL16), sWS, T[2], 1024 * (n - 32)))
    sched = [[ks + DEPTH] if ks + DEPTH < 32 else [] for ks in range(32)]
    for k in range(4):
        sched[3 + 2 * k].append(32 + k)
    order = list(range(DEPTH))
    lds = Lds()

    def rd(ks, i, d):
        base, off, sec = ((vW0, vW2)[i], ks * 2048, 1024) if i < 2 else (vW1, ks * 1024, 512)
        lds.op(("w", i, ks), "ds_read_b64_tr_b16 %s, %s offset:%d" % (v(d, 2), v(base), off))
        lds.op(("w", i, ks), "ds_read_b64_tr_b16 %s, %s offset:%d" % (v(d + 2, 2), v(base), off + sec))

    def wait(name):
        n = lds.need(name)
        if n is not None:
            e("s_waitcnt lgkmcnt(%d)" % n)
    wb1 = lambda ks, i: vWB + (ks % 3) * 12 + 4 * i
    wb2 = lambda ks: vWB + (12 * (ks - H) + 8 if ks < H + 3 else [0, 4, 12, 16, 24, 28, 8, 20, 32][(ks - H - 3) % 9])
    tiles = lambda ks: (2, 0, 1) if ks < H else (0, 1)
    for ks in range(2):
        for i in tiles(ks):
            rd(ks, i, wb1(ks, i))
    fine("q")
    SA, SB, SC = vPO, vPD, vPD + 1
    PK, C0, C1, VC, QC = vA, vA + 16, vA + 32, vA + 48, vSTS

    def addresses():
        e("s_lshr_b32 %s, %s, 1" % (T[0], sC))
        addr(T[4], None, KVF, [(sL, KVF_L), (T[0], 4 * 131072), (sXCD, 16384), (sTBW, 2048)])
        addr(T[2], sLB, KVL, [(T[0], 8192), (sTBW, HSTR)])
        slot(T[6], FQ, [(sC, 8), (sTBW, 1)])
        addr(T[7], None, GFL, [(sL, GFL_L), (sC, 65536), (sXCD, 8192), (sTBW, 1024)])
        addr(T[3], sLB, QF, [(sC, 2048), (sTBW, HSTR)])
        if not isk:
            e("v_and_b32 %s, 31, v0" % v(SA))
            e("v_lshlrev_b32 %s, 2, %s" % (v(SA), v(SA)))
            addr(T[0], None, STAT_L, [(sHW, 256)])
            e("v_add_u32 %s, %s, %s" % (v(SB), T[0], v(SA)))
            e("v_add_u32 %s, %s, %s" % (v(SC), T[0], v(vH16)))
            e("v_add_u32 %s, %d, %s" % (v(SA), CSQ_L, v(SA)))
    sh = [lambda x=x: e(x) for x in capture(addresses) + stats_code(False)]
    sh.append(lambda: e("v_mul_f32 %s, %s, %s" % (v(vRQ), f32(0.25 * 1.4426950408889634), v(vR))))
    if isk:
        for k in range(8):
            sh.append(lambda k=k: lds.op("c", "ds_read_b128 %s, %s offset:%d" % (v(C0 + 4 * k, 4), v(vCA), 32 * k)))
    else:
        sh.append(lambda: lds.op("sw", "ds_write_b32 %s, %s" % (v(SB), v(vMU))))
        sh.append(lambda: lds.op("sw", "ds_write_b32 %s, %s offset:128" % (v(SB), v(vR))))
        for k in range(8):
            sh.append(lambda k=k: lds.op("c", "ds_read_b128 %s, %s offset:%d" % (v(C0 + 4 * k, 4), v(SC), 32 * k)))
        for t in range(2):
            sh.append(lambda t=t: lds.op("c", "ds_read_b32 %s, %s offset:%d" % (v(VC + t), v(SA), 128 * t)))
    nsal = len(capture(addresses))
    pos = 0
    for ks in range(32):
        if ks in (16, 22):
            e("s_barrier")
        newest = max(order.index(n) for n in ([ks, 35] if ks >= 18 else [ks]))
        e("s_waitcnt vmcnt(%d) lgkmcnt(%d)" % (len(order) - 1 - newest, lds.need(("w", 1, ks))))
        if ks in FINEKS:
            fine("q")
        for m, i in enumerate(tiles(ks)):
            c = "0" if ks == 0 else vACC + 16 * i
            if i < 2 and not isk:
                mfma(vACC + 16 * i, vA + 4 * ks, wb1(ks, i), c)
            else:
                mfma(vACC + 16 * i, wb1(ks, i), vA + 4 * ks, c)
            if ks + 2 < 32 and i in tiles(ks + 2):
                rd(ks + 2, i, wb1(ks + 2, i))
            elif ks >= 30 and (i == 0 or ks == 30):
                k2 = H + (ks - 30) * 2 + i
                rd(k2, 2, wb2(k2))
            if m < len(sched[ks]):
                item(sched[ks][m])
                order.append(sched[ks][m])
            if ks >= 10:
                for _ in range(2):
                    if pos < len(sh) and (pos < nsal or ks >= 18):
                        sh[pos]()
                        pos += 1
    assert pos == len(sh), (pos, len(sh))
    cm("remaining Q k-steps with the pair's epilogue underneath")
    fill = [lambda: wait("c")]
    for i in range(4):
        fill.append(lambda i=i: lds.op("qc", "ds_read_b128 %s, %s offset:%d" % (v(QC + 4 * i, 4), v(vCA), 256 + 32 * i)))
    fill.append(lambda: e("s_add_u32 %s, %s, 0x%x" % (T[5], T[4], 0x20000 if isk else 0x40000)))
    fill.append(lambda: e("s_add_u32 %s, %s, 4096" % (T[0], T[2])))
    if isk:
        fill.append(lambda: e("s_add_u32 %s, %s, 0x40000" % (T[8], T[4])))
        fill.append(lambda: e("s_add_u32 %s, %s, 0x60000" % (T[1], T[4])))
    else:
        fill.append(lambda: e("v_and_b32 %s, 0x1ffff, %s" % (v(SC), v(vVOF))))
        fill.append(lambda: e("v_lshrrev_b32 %s, 17, %s" % (v(SB), v(vVOF))))
        fill.append(lambda: e("v_lshl_or_b32 %s, %s, 11, %s" % (v(SC), v(SB), v(SC))))
    local = []
    for t in range(2):
        a = vACC + 16 * t
        for r in range(16):
            if isk:
                fill.append(lambda a=a, t=t, r=r: e("v_fma_f32 %s, -%s, %s, %s" % (v(a + r), v(vMU), v(C0 + 16 * t + r), v(a + r))))
            else:
                fill.append(lambda a=a, t=t, r=r: e("v_fma_f32 %s, -%s, %s, %s" % (v(a + r), v(C0 + r), v(VC + t), v(a + r))))
        for r in range(16):
            fill.append(lambda a=a, r=r: e("v_mul_f32 %s, %s, %s" % (v(a + r), v(vR if isk else C1 + r), v(a + r))))
        for p in range(8):
            fill.append(lambda a=a, t=t, p=p: e("v_cvt_pk_bf16_f32 %s, %s, %s" % (v(PK + 8 * t + p), v(a + 2 * p), v(a + 2 * p + 1))))
        for hh in range(2):
            d = v(PK + 8 * t + 4 * hh, 4)
            if isk:
                g = "%s, %s, %s, %s offen" % (d, v(vK16), sWS, (T[4], T[5], T[8], T[1])[2 * t + hh])
                local.append("buffer_store_dwordx4 %s, %s, %s, %s offen offset:%d" % (d, v(vK16), sWS, (T[2], T[0])[t], 2048 * hh))
            else:
                g = "%s, %s, %s, %s offen offset:%d" % (d, v(vVOF), sWS, (T[4], T[5])[t], 1024 + 256 * hh)
                local.append("buffer_store_dwordx4 %s, %s, %s, %s offen offset:%d" % (d, v(SC), sWS, (T[2], T[0])[t], 1024 + 256 * hh))
            fill.append(lambda g=g: e("buffer_store_dwordx4 " + g + " sc1"))
    fill.append(lambda: lstores(local))
    per = -(-len(fill) // (32 - H))
    aQ = vACC + 32
    for ks in range(H, 32):
        wait(("w", 2, ks + 1 if ks % 2 == 0 and H + 2 < ks < 31 else ks))
        mfma(aQ, wb2(ks), vA + 4 * ks, aQ)
        if ks == H:
            fine("q")
        for n in ([H + 3, H + 4] if ks == H else [H + 5, H + 6] if ks == H + 1 else [ks + 5] if ks + 5 < 32 else []):
            rd(n, 2, wb2(n))
        for f in fill[(ks - H) * per:(ks + 1 - H) * per]:
            f()
    e("s_barrier")
    stamp()
    wait("qc")
    e("s_nop %d" % max(0, 10 - len(fill[(31 - H) * per:])))
    for p in range(8):
        center(aQ, QC, p)
    for p in range(8):
        e("v_pk_mul_f32 %s, %s, %s op_sel_hi:[1,0]" % (v(aQ + 2 * p, 2), v(aQ + 2 * p, 2), v(vRQ, 2)))
    for p in range(8):
        e("v_cvt_pk_bf16_f32 %s, %s, %s" % (v(C1 + p), v(aQ + 2 * p), v(aQ + 2 * p + 1)))
    lstores(["buffer_store_dwordx4 %s, %s, %s, %s offen offset:%d" % (v(C1 + 4 * hh, 4), v(vL16), sWS, T[3], 1024 * hh) for hh in range(2)])
    fine("q")
    for k in range(4):
        e("v_mov_b32 %s, %s" % (v(vSTS + k), v(vFV + k % 2)))
    flag(T[6], 0, local=True)
    e("buffer_store_dwordx4 %s, %s, %s, %s offen sc1" % (v(vSTS, 4), v(vL16), sWS, T[7]))
    e("s_branch %s" % done)


def qkv():
    cm("================ QKV projection")
    hl, done, kb = newlab("qkv_h"), newlab("qkv_done"), newlab("qkv_k")
    e("s_cmp_ge_u32 %s, 4" % sW)
    e("s_cbranch_scc1 %s" % hl)
    l1, l2 = newlab("fx"), newlab("fx")
    e("s_cmp_lg_u32 %s, 0" % sL)
    e("s_cbranch_scc1 %s" % l1)
    mode_poll(True)
    e("v_mov_b32 v60, %s" % sMODE)
    e("v_mov_b32 v61, %d" % MODE_L)
    e("ds_write_b32 v61, v60")
    e("s_waitcnt lgkmcnt(0)")
    e("s_branch %s" % l2)
    lab(l1)
    poll(T[0])
    lab(l2)
    stamp()
    load_frags(T[1], 0, DEPTH, lambda j: vA + 4 * j)
    fine("q")
    e("s_barrier")
    e("s_bitcmp1_b32 %s, 0" % sC)
    e("s_cbranch_scc1 %s" % kb)
    n0, f0 = nstamp[0], nfine[0]
    qkv_body(False, done)
    lab(kb)
    nstamp[0], nfine[0] = n0, f0
    qkv_body(True, done)
    lab(hl)
    h1, h2, lp = newlab("qh1"), newlab("qh2"), newlab("qhl")
    e("s_cmp_lg_u32 %s, 0" % sL)
    e("s_cbranch_scc1 %s" % h1)
    wq_begin()
    if FINE == "h":
        make_tag()
        fine("h")
    dma_loop(2, wq_chunk)
    fine("h")
    if FINE != "h":
        make_tag()
    colsum_begin()
    tr_pair(42)
    e("s_lshl_b32 %s, %s, 12" % (T[0], sHW))
    e("v_add_u32 v42, %s, v42" % T[0])
    e("v_xor_b32 v48, 64, v42")
    tr_rows(50, 64)
    addr(T[0], None, 65536, [(sHW, 2048)])
    e("v_add_u32 v50, %s, v50" % T[0])
    e("s_mov_b32 %s, 0" % sIT)
    lab(lp)
    b1, b2 = newlab("qw"), newlab("qw")
    e("s_cmp_ge_u32 %s, 2" % sIT)
    e("s_cbranch_scc1 %s" % b1)
    wq_chunk()
    e("s_waitcnt vmcnt(12)")
    e("s_branch %s" % b2)
    lab(b1)
    e("s_waitcnt vmcnt(6)")
    e("s_cmp_eq_u32 %s, 2" % sIT)
    e("s_cbranch_scc1 %s" % b2)
    e("s_waitcnt vmcnt(0)")
    lab(b2)
    fine("h")
    colsum2((42, 48, 50), (2048, 2048, 1024), (1024, 1024, 512))
    e("v_add_u32 v42, 16384, v42")
    e("v_add_u32 v48, 16384, v48")
    e("v_add_u32 v50, 8192, v50")
    e("s_add_u32 %s, %s, 1" % (sIT, sIT))
    e("s_cmp_lt_u32 %s, 4" % sIT)
    e("s_cbranch_scc1 %s" % lp)
    colsum_partial()
    fine("h")
    e("s_waitcnt lgkmcnt(0)")
    e("s_barrier")
    fine("h")
    colsum_combine(CSQ_L)
    e("v_mov_b32 v61, %d" % MODE_L)
    e("ds_read_b32 v60, v61")
    cm("park the weight tile in registers for the second layer pair")
    stash_addr()
    for k in range(24):
        e("ds_read_b128 %s, v42 offset:%d" % (v(vSTASH + 4 * k, 4), 1024 * k))
    e("s_waitcnt lgkmcnt(15)")
    e("v_readfirstlane_b32 %s, v60" % sMODE)
    e("s_branch %s" % h2)
    lab(h1)
    e("s_waitcnt lgkmcnt(0)")
    e("s_barrier")
    lab(h2)
    cm("lanes 0-15: Q lines; lanes 16-47: the K or V kilobyte of four head blocks")
    e("v_subrev_u32 v20, 16, v0")
    e("v_lshrrev_b32 v21, 3, v20")
    e("v_lshlrev_b32 v21, 10, v21")
    e("v_lshl_add_u32 v20, v20, 7, v21")
    e("s_lshr_b32 %s, %s, 1" % (T[1], sC))
    e("s_and_b32 %s, %s, 1" % (T[2], sC))
    addr(T[3], None, 32768 + 1024, [(T[1], 8192), (T[2], -1024), (sC, -2048)])
    e("v_add_u32 v20, %s, v20" % T[3])
    e("v_lshlrev_b32 v19, 7, v0")
    e("v_cmp_lt_u32 vcc, 15, v0")
    addr(T[0], sLB, BLK, [(sTBW, HSTR), (sC, 2048)])
    e("v_cndmask_b32 v19, v19, v20, vcc")
    e("s_waitcnt lgkmcnt(0)")
    e("s_barrier")
    e("s_barrier")
    cm("all activation loads are out: bring in the lines the Q/K/V stores will write, so they need no fill")
    e("s_mov_b32 exec_hi, 0xffff")
    e("buffer_load_dword v21, v19, %s, %s offen sc1" % (sWS, T[0]))
    e("s_mov_b64 exec, -1")
    e("s_cmp_lg_u32 %s, 0" % sL)
    e("s_cbranch_scc1 %s" % done)
    cm("this workgroup's slices of b1 and b2; they are staged in LDS after attention")
    srd(sTMP, 22, 2752)
    e("v_and_b32 v19, 31, v0")
    e("v_lshlrev_b32 v19, 1, v19")
    addr(T[0], None, 0, [(sHW, 64), (sC, 192)])
    e("buffer_load_ushort v224, v19, %s, %s offen" % (sTMP, T[0]))
    srd(sTMP, 26, 1024)
    e("s_and_b32 %s, %s, 1" % (T[4], sHW))
    addr(T[0], None, 0, [(T[4], 64), (sNB, 128)])
    e("buffer_load_ushort v225, v19, %s, %s offen" % (sTMP, T[0]))
    lab(done)
    stamp()


def attention():
    cm("================ attention: S^T = K Q^T, P = exp2(S^T), O^T += V^T P via sparse MFMA")
    S, O, Q, KB, VB, IDX, AD, VO, CN = (16, 32), 48, 64, (68, 72), (76, 84), 92, 93, 94, 100
    PF = 100
    KVG, LP, CH, GF, ISS = T[2], T[3], T[4], T[5], T[6]
    cm("rows 16 and 20 of the V operand are ones (row sums for both lane halves); the other spare rows are zero")
    e("v_and_b32 %s, 27, v0" % v(IDX))
    e("v_cmp_eq_u32 vcc, 16, %s" % v(IDX))
    e("v_mov_b32 %s, 0x3f803f80" % v(AD))
    e("s_nop 0")
    for i in range(16):
        e("v_mov_b32 %s, 0" % v(O + i))
        e("v_cndmask_b32 %s, 0, %s, vcc" % (v(VB[0] + i), v(AD)))
    for i in range(8):
        e("v_mov_b32 %s, 0" % v(S[1] + 8 + i))
    e("v_mov_b32 %s, 0xdddddddd" % v(IDX))
    e("v_mov_b32 %s, 0" % v(PF + 6))
    e("v_mov_b32 %s, %s" % (v(AD), v(vL16)))
    voff_128(VO)
    voff_192(VO + 1)
    e("s_mov_b32 %s, 1" % ISS)
    a1 = newlab("a1")
    e("v_lshlrev_b32 %s, 7, v0" % v(PF))
    cm("first layer pair, waves 1-3: first touch of Wo / W1 / W2 (one line per lane, spread over all workgroups)")
    e("s_mov_b32 s66, %d" % (1376 * 1024))
    e("s_mov_b32 %s, %d" % (T[1], 43 * 128))
    e("s_cmp_eq_u32 %s, 2" % sW)
    e("s_cselect_b64 s[64:65], s[20:21], s[24:25]")
    e("s_cmp_eq_u32 %s, 1" % sW)
    e("s_cselect_b64 s[64:65], s[16:17], s[64:65]")
    e("s_cselect_b32 s66, %d, s66" % (512 * 1024))
    e("s_cselect_b32 %s, %d, %s" % (T[1], 16 * 128, T[1]))
    e("s_and_b32 s65, s65, 0xffff")
    e("s_mov_b32 s67, 0x20000")
    e("s_mul_i32 %s, %s, s2" % (T[1], T[1]))
    e("s_cmp_eq_u32 %s, 0" % sL)
    e("s_cselect_b32 %s, %d, 99" % (T[8], OPT("ftit", 2)))
    e("s_cmp_eq_u32 %s, 0" % sW)
    e("s_cselect_b32 %s, 99, %s" % (T[8], T[8]))
    cm("lines of the W1 rows that are loaded after attention (128-351, 480-511): half per workgroup of a pair")
    srd(sTMP, 20, 512 * 2752)
    e("s_lshr_b32 %s, %s, 4" % (T[0], sJ))
    addr(T[7], None, 128, [(T[0], 128), (sHW, 32)])
    e("s_cmp_eq_u32 %s, 352" % T[7])
    e("s_cselect_b32 %s, 480, %s" % (T[7], T[7]))
    e("s_mul_i32 %s, %s, 2752" % (T[7], T[7]))
    e("s_mul_i32 %s, %s, 192" % (T[0], sC))
    e("s_add_u32 %s, %s, %s" % (T[7], T[7], T[0]))
    e("v_lshrrev_b32 %s, 1, v0" % v(PF + 1))
    e("v_mul_u32_u24 %s, 2752, %s" % (v(PF + 1), v(PF + 1)))
    e("v_and_b32 %s, 1, v0" % v(PF + 2))
    e("v_lshl_add_u32 %s, %s, 7, %s" % (v(PF + 1), v(PF + 2), v(PF + 1)))
    e("s_cmp_lt_u32 %s, 4" % sW)
    e("s_cbranch_scc1 %s" % a1)
    cm("waves 4-7 fetch Q and this die's K/V, and later the other dies' K/V")
    e("v_and_b32 %s, 15, v0" % v(vPO))
    e("v_lshlrev_b32 %s, 3, %s" % (v(vPO), v(vPO)))
    e("s_lshr_b32 %s, %s, 2" % (T[1], sHEAD))
    e("s_lshl_b32 %s, %s, 1" % (T[1], T[1]))
    addr(GF, None, GFL, [(sL, GFL_L), (T[1], 65536), (sXCD, 128)])
    slot(T[0], FQ, [(T[1], 8)])
    addr(T[1], sLB, QF, [(sHEAD, 1024), (sHW, 2 * HSTR)])
    addr(KVG, None, KVF, [(sL, KVF_L), (sHEAD, 131072), (sHW, 4096)])
    addr(T[8], sLB, KVL, [(sHEAD, 2048), (sHW, 2 * HSTR)])
    addr(T[7], None, QL, [(sHW, 2048)])
    e("s_lshl_b32 %s, %s, 12" % (LP, sHW))
    e("s_add_u32 %s, %s, 1" % (CH, sXCD))
    e("s_mov_b32 %s, 0" % ISS)
    cm("last barrier of the projection: its weight tile in LDS is dead from here on")
    e("s_barrier")
    poll(T[0])
    for b in range(2):
        e("s_add_u32 m0, %s, %d" % (LP, 2048 * b))
        e("v_lshlrev_b32 %s, 10, v0" % v(vPO))
        for i in range(2):
            e("buffer_load_dwordx4 %s, %s, %s offen offset:%d sc1 lds" % (v(vL16), sWS, T[8], 1024 * i))
        e("s_add_u32 m0, %s, %d" % (T[7], 1024 * b))
        e("s_add_u32 %s, %s, %d" % (T[8], T[8], HSTR))
        e("buffer_load_dwordx4 %s, %s, %s offen sc1 lds" % (v(vL16), sWS, T[1]))
        e("s_add_u32 %s, %s, %d" % (T[1], T[1], HSTR))

    def gflag_load():
        e("buffer_load_dwordx2 %s, %s, %s, %s offen sc1" % (v(vPD, 2), v(vPO), sWS, GF))
        e("buffer_load_dwordx2 %s, %s, %s, %s offen sc1" % (v(PF + 4, 2), v(PF + 6), sWS, GF))

    def kv_issue(n=4):
        e("s_and_b32 %s, %s, 7" % (CH, CH))
        e("s_lshl_b32 %s, %s, 14" % (T[9], CH))
        e("s_add_u32 %s, %s, 16384" % (LP, LP))
        e("s_add_u32 %s, %s, %s" % (T[9], T[9], KVG))
        e("s_mov_b32 m0, %s" % LP)
        e("s_add_u32 %s, %s, 1" % (CH, CH))
        for i in range(n):
            e("buffer_load_dwordx4 %s, %s, %s offen offset:%d sc1%s lds" % (v(vL16), sWS, T[9], 1024 * i, " nt" if OPT("kvnt", 1) else ""))

    def kv_issue_helpers():
        sk, cw = newlab("kvs"), newlab("kvc")
        e("s_cmp_lt_u32 %s, 4" % sW)
        e("s_cbranch_scc1 %s" % cw)
        e("s_cmp_eq_u32 %s, 0" % sIT)
        e("s_cbranch_scc1 %s" % sk)
        kv_issue()
        lab(sk)
        ft = newlab("ft")
        wp = newlab("wp")
        TAIL.extend([wp + ":", "    s_cmp_lg_u32 %s, %d" % (sIT, OPT("woit", 3)), "    s_cbranch_scc1 %s" % sk]
                    + ["    " + x for x in capture(lambda: (srd("s[64:67]", 16, 512 * 1024), addr(T[1], None, 0, [(sJ, 128 * 128), (sW, 32 * 128)])))]
                    + (["    " + x for x in capture(lambda: (
                        e("v_lshrrev_b32 %s, 3, v0" % v(PF + 3)), e("v_mul_u32_u24 %s, %d, %s" % (v(PF + 3), XSTR - 1024, v(PF + 3))),
                        e("v_add_u32 %s, %s, %s" % (v(PF + 3), v(PF + 3), v(PF))),
                        addr(T[0], sLB, OF, [(sW, 2 * XSTR), (sHEAD, 1024)]), e("s_mov_b64 exec, 0xffff"),
                        e("buffer_load_dword %s, %s, %s, %s offen sc1" % (v(PF + 2), v(PF + 3), sWS, T[0])), e("s_mov_b64 exec, -1")))])
                    + ["    s_mov_b32 exec_hi, 0", "    buffer_load_dword %s, %s, s[64:67], %s offen" % (v(PF + 2), v(PF), T[1]),
                       "    s_mov_b64 exec, -1", "    s_branch %s" % sk])
        TAIL.extend([ft + ":", "    s_cmp_lg_u32 %s, %s" % (sIT, T[8]), "    s_cbranch_scc1 %s" % wp,
                     "    buffer_load_dword %s, %s, s[64:67], %s offen" % (v(PF + 2), v(PF), T[1]), "    s_branch %s" % sk])
        TAIL.extend([cw + ":", "    s_cmp_lt_u32 %s, 4" % sIT, "    s_cbranch_scc1 %s" % ft, "    s_mov_b32 exec_hi, 0",
                     "    buffer_load_dword %s, %s, %s, %s offen" % (v(PF + 2), v(PF + 1), sTMP, T[7]),
                     "    s_mov_b64 exec, -1", "    s_add_u32 %s, %s, %d" % (T[7], T[7], 16 * 2752),
                     "    s_branch %s" % sk])
    e("v_add_u32 %s, 0x10000, %s" % (v(PF + 6), v(vPO)))
    fine("k")
    e("s_waitcnt vmcnt(0)")
    fine("k")
    gflag_load()
    lab(a1)
    addr(T[0], None, QL, [(sW, 1024)])
    e("v_add_u32 v16, %s, %s" % (T[0], v(vL16)))
    e("s_barrier")
    stamp()

    def rdk(t):
        e("ds_read_b128 %s, %s offset:%d" % (v(KB[t & 1], 4), v(AD), t * 2048))

    def rdv(t):
        e("s_mov_b64 exec, %s" % sMV)
        e("ds_read_b128 %s, %s offset:%d" % (v(VB[t & 1], 4), v(AD), t * 2048 + 1024))
        e("ds_read_b128 %s, %s offset:%d" % (v(VB[t & 1] + 4, 4), v(AD), t * 2048 + 1280))
        e("s_mov_b64 exec, -1")

    def smf(vb, p):
        e("v_smfmac_f32_32x32x32_bf16 %s, %s, %s, %s" % (v(O, 16), v(vb, 4), v(p, 8), v(IDX)))

    def ex(cur, a, b):
        for i in range(a, b):
            e("v_exp_f32 %s, %s" % (v(S[cur] + i), v(S[cur] + i)))

    def tile(t, extra=None):
        cur, nxt = t & 1, (t + 1) & 1
        ex(cur, 0, 2)
        smf(VB[nxt] + 4, S[nxt] + 8)
        rdv(t + 1)
        ex(cur, 2, 6)
        e("s_waitcnt lgkmcnt(2)")
        mfma(S[nxt], KB[nxt], Q, "0")
        rdk(t + 2)
        if extra:
            extra()
        ex(cur, 6, 12)
        smf(VB[cur], S[cur])
        ex(cur, 12, 16)
    e("ds_read_b128 %s, v16" % v(Q, 4))
    rdk(0)
    rdv(0)
    rdk(1)
    e("s_waitcnt lgkmcnt(3)")
    mfma(S[0], KB[0], Q, "0")
    e("s_mov_b32 %s, 0" % sIT)
    e("s_mov_b32 %s, %d" % (sCNT, POLL_LIMIT))
    e("s_nop 8")
    cm("chunk 0 = keys of this die group; the other groups' K/V are requested as soon as their flags arrive")

    def check(blocking):
        blk, back, issue = newlab("chk"), newlab("chkb"), newlab("iss")
        e("s_cmp_eq_u32 %s, 0" % ISS)
        e("s_cbranch_scc1 %s" % blk)
        lab(back)

        def body():
            e("s_waitcnt vmcnt(0)")
            e("v_cmp_eq_u64 s[12:13], %s, %s" % (v(PF + 4, 2), v(vFV, 2)))
            e("v_cmp_eq_u64 vcc, %s, %s" % (v(vPD, 2), v(vFV, 2)))
            e("s_nop 1")
            e("s_and_b64 vcc, vcc, s[12:13]")
            e("s_cmp_eq_u64 vcc, -1")
            e("s_cbranch_scc1 %s" % issue)
            gflag_load()
            if blocking:
                e("s_sub_u32 %s, %s, 1" % (sCNT, sCNT))
                e("s_cbranch_scc0 %s" % blk)
                e("s_endpgm")
            else:
                e("s_branch %s" % back)

        def go():
            kv_issue()
            kv_issue()
            e("s_mov_b32 %s, 1" % ISS)
            e("s_branch %s" % back)
        NEAR.extend([blk + ":"] + ["    " + x for x in capture(body)] + [issue + ":"] + ["    " + x for x in capture(go)])
    NEAR = []
    loop = newlab("att")
    L.append(".p2align 6")
    lab(loop)
    for t in range(8):
        if t % 2 == 0:
            e("s_setprio %d" % (3 - t // 2))
        if t in (2, 4, 6):
            check(t == 6)
        if t == 6:
            e("s_waitcnt vmcnt(4)")
            e("s_barrier")
        tile(t, kv_issue_helpers if t == 1 else None)
    e("v_add_u32 %s, 16384, %s" % (v(AD), v(AD)))
    e("s_add_u32 %s, %s, 1" % (sIT, sIT))
    e("s_cmp_lt_u32 %s, 6" % sIT)
    e("s_cbranch_scc1 %s" % loop)
    TAIL[:0] = NEAR
    fine("a")
    cm("last two chunks: stream Wo and part of W1 into the dead K/V space, one piece per tile")
    srd(sTMP, 16, 512 * 1024)
    addr(T[0], None, 0, [(sW, 65536), (sNB, 128)])
    e("s_lshl_b32 %s, %s, 13" % (T[1], sW))

    srd("s[64:67]", 24, 1376 * 1024)
    addr(T[2], None, 0, [(sJ, 344 * 128), (sW, 43 * 128)])

    def w2_lines(trip):
        cm("one line per lane: pull this workgroup's share of W2 into the die's L2")
        e("s_mov_b64 exec, 0x3fffff")
        e("buffer_load_dword %s, %s, s[64:67], %s offen" % (v(PF + 2), v(PF), T[2]))
        e("s_mov_b64 exec, -1")
        e("s_add_u32 %s, %s, %d" % (T[2], T[2], 22 * 128))

    def wo_piece(t):
        e("s_add_u32 m0, %s, %d" % (T[1], 1024 * t))
        e("s_nop 0")
        dma1(VO, T[0], 1)
        e("s_add_u32 %s, %s, 8192" % (T[0], T[0]))

    def w1_piece(t):
        if t in (1, 3):
            w2_lines(1)
        for u in ([2 * t, 2 * t + 1] if t < 2 else [t + 2] if t < 4 else []):
            e("s_add_u32 m0, %s, %d" % (T[1], (u // 3) * 22 * 3072 + (u % 3) * 1024))
            e("s_nop 0")
            dma1(VO + 1 + u % 3, T[0], 8)
            if u == 2:
                e("s_add_u32 %s, %s, %d" % (T[0], T[0], 22 * 16 * 2752))
    for trip in range(2):
        for t in range(8):
            if t % 2 == 0:
                e("s_setprio %d" % (3 - t // 2))
            if t == 6 and trip == 0:
                e("s_waitcnt vmcnt(6)")
                e("s_barrier")
            tile(t + 8 * trip, (lambda t=t: wo_piece(t)) if trip == 0 else (lambda t=t: w1_piece(t)))
        if trip == 0:
            addr(T[4], sLB, OF, [(sW, XSTR), (sHEAD, 1024)])
            slot(T[5], FA, [(sW, 32), (sHEAD, 1)])
            srd(sTMP, 20, 512 * 2752)
            addr(T[0], None, 0, [(sW, 16 * 2752), (sC, 192)])
            addr(T[1], None, 65536, [(sW, 3072)])
    e("s_nop 1")
    smf(VB[1] + 4, S[1] + 8)
    e("s_setprio 0")
    e("s_mov_b32 %s, %s" % (T[6], f32(2.0 ** (64 if FORCE_SLOW else -64))))
    e("s_mov_b32 %s, %s" % (T[7], f32(2.0 ** 64)))
    e("s_waitcnt lgkmcnt(0)")
    e("s_nop 7")
    stamp()
    cm("Softmax guard. The loops above used 0 as a stand-in for the row max. That is exact while the row sum")
    cm("stays in [2^-64, 2^64] and the accumulators are finite; otherwise redo this tile with the true max.")
    fin, slow = newlab("att_fin"), newlab("att_slow")
    e("v_cmp_le_f32 %s, %s, %s" % (sM0, T[6], v(O + 8)))
    e("v_cmp_ge_f32 %s, %s, %s" % (sM1, T[7], v(O + 8)))
    e("v_pk_mul_f32 v[18:19], %s, 0 op_sel_hi:[1,0]" % v(O, 2))
    for p in range(1, 4):
        e("v_pk_fma_f32 v[18:19], %s, 0, v[18:19] op_sel_hi:[1,0,1]" % v(O + 2 * p, 2))
    e("s_and_b64 %s, %s, %s" % (sM0, sM0, sM1))
    e("v_cmp_eq_f32 vcc, v18, v19")
    e("s_nop 0")
    e("s_and_b64 %s, %s, vcc" % (sM0, sM0))
    e("s_cmp_eq_u64 %s, -1" % sM0)
    e("s_cbranch_scc0 %s" % slow)
    lab(fin)
    e("v_rcp_f32 v16, %s" % v(O + 8))
    e("s_nop 0")
    for p in range(4):
        e("v_pk_mul_f32 %s, %s, v[16:17] op_sel_hi:[1,0]" % (v(O + 2 * p, 2), v(O + 2 * p, 2)))
    for p in range(4):
        e("v_cvt_pk_bf16_f32 %s, %s, %s" % (v(20 + p), v(O + 2 * p), v(O + 2 * p + 1)))
    lstores(["buffer_store_dwordx4 v[20:23], %s, %s, %s offen" % (v(vL16), sWS, T[4])])
    ns = newlab("ns")
    e("s_cmp_ge_u32 %s, 4" % sW)
    e("s_cbranch_scc1 %s" % ns)
    n512_setup(True)
    lab(ns)
    flag(T[5], 0, local=True)
    e("s_waitcnt vmcnt(1)")
    e("s_barrier")
    keep = L[:]
    del L[:]
    lab(slow)
    l1, l2 = newlab("slow1"), newlab("slow2")
    addr(T[2], None, KVF, [(sL, KVF_L), (sHEAD, 131072)])
    e("v_mov_b32 %s, 0xff800000" % v(CN))
    e("s_mov_b32 %s, 0" % sIT)
    lab(l1)
    e("buffer_load_dwordx4 %s, %s, %s, %s offen sc1" % (v(KB[0], 4), v(vL16), sWS, T[2]))
    e("s_waitcnt vmcnt(0)")
    mfma(S[0], KB[0], Q, "0")
    e("s_nop 15")
    for i in range(8):
        e("v_max3_f32 %s, %s, %s, %s" % (v(CN), v(S[0] + 2 * i), v(S[0] + 2 * i + 1), v(CN)))
    e("s_add_u32 %s, %s, 2048" % (T[2], T[2]))
    e("s_add_u32 %s, %s, 1" % (sIT, sIT))
    e("s_cmp_lt_u32 %s, 64" % sIT)
    e("s_cbranch_scc1 %s" % l1)
    e("v_mov_b32 %s, %s" % (v(CN + 1), v(CN)))
    e("s_nop 1")
    e("v_permlane32_swap_b32 %s, %s" % (v(CN), v(CN + 1)))
    e("s_nop 1")
    e("v_max_f32 %s, %s, %s" % (v(CN), v(CN), v(CN + 1)))
    e("v_sub_f32 %s, 0, %s" % (v(CN), v(CN)))
    for i in range(1, 16):
        e("v_mov_b32 %s, %s" % (v(CN + i), v(CN)))
    for i in range(16):
        e("v_mov_b32 %s, 0" % v(O + i))
    addr(T[2], None, KVF, [(sL, KVF_L), (sHEAD, 131072)])
    e("s_mov_b32 %s, 0" % sIT)
    lab(l2)
    e("buffer_load_dwordx4 %s, %s, %s, %s offen sc1" % (v(KB[0], 4), v(vL16), sWS, T[2]))
    e("s_mov_b64 exec, %s" % sMV)
    e("buffer_load_dwordx4 %s, %s, %s, %s offen offset:1024 sc1" % (v(VB[0], 4), v(vL16), sWS, T[2]))
    e("buffer_load_dwordx4 %s, %s, %s, %s offen offset:1280 sc1" % (v(VB[0] + 4, 4), v(vL16), sWS, T[2]))
    e("s_mov_b64 exec, -1")
    e("s_waitcnt vmcnt(0)")
    mfma(S[0], KB[0], Q, CN)
    e("s_nop 15")
    for i in range(16):
        e("v_exp_f32 %s, %s" % (v(S[0] + i), v(S[0] + i)))
    e("s_nop 1")
    smf(VB[0], S[0])
    smf(VB[0] + 4, S[0] + 8)
    e("s_nop 15")
    e("s_add_u32 %s, %s, 2048" % (T[2], T[2]))
    e("s_add_u32 %s, %s, 1" % (sIT, sIT))
    e("s_cmp_lt_u32 %s, 64" % sIT)
    e("s_cbranch_scc1 %s" % l2)
    e("s_branch %s" % fin)
    TAIL.extend(L)
    L[:] = keep
    stamp()


def ffn1_setup():
    e("v_and_b32 %s, 15, v0" % v(vPO))
    e("v_lshlrev_b32 %s, 3, %s" % (v(vPO), v(vPO)))
    slot(T[0], FO, [(sTBW, 16)])
    addr(T[1], sLB, X1F, [(sTBW, XSTR)])
    addr(T[2], sLB, ST1, [(sTBW, 4096)])
    e("v_add_u32 %s, %d, %s" % (v(vCA), CONST, v(vH16)))
    tr_rows(vW2, 192)
    e("v_add_u32 %s, 0x10000, %s" % (v(vW0), v(vW2)))
    e("v_add_u32 %s, %d, %s" % (v(vW1), 21 * 3072, v(vW0)))


def n512_setup(wo):
    J = 16 if wo else 39
    AK, AS = vACC, vACC + 16
    if not wo:
        addr(T[0], None, CONST + 384, [(sKH, 512)])
        e("v_add_u32 %s, %s, %s" % (v(vPO), T[0], v(vH16)))
        for i in range(4):
            e("ds_read_b128 %s, %s offset:%d" % (v(AS + 4 * i, 4), v(vPO), 32 * i))
    unpack(AK, vRES, 8)
    tr_rows(vW0, 128)
    e("v_bfe_u32 %s, v0, 3, 1" % v(vPD))
    e("v_xor_b32 %s, %s, %s" % (v(vPD), sKH, v(vPD)))
    e("v_lshl_or_b32 %s, %s, 6, %s" % (v(vW0), v(vPD), v(vW0)))
    e("s_mul_i32 %s, %s, %d" % (T[0], sKH, J * 2048))
    e("v_add_u32 %s, %s, %s" % (v(vW0), T[0], v(vW0)))
    e("v_xor_b32 %s, 64, %s" % (v(vW1), v(vW0)))
    if not wo:
        e("v_add_u32 %s, 0x10000, %s" % (v(vW2), v(vW0)))
        e("v_add_u32 %s, 0x10000, %s" % (v(vW3), v(vW1)))
    if wo:
        e("v_and_b32 %s, 15, v0" % v(vPO))
        slot(T[0], FA, [(sTBN, 32), (sKH, 16)])
        addr(T[1], sLB, OF, [(sTBN, XSTR), (sKH, 16384)])
    else:
        e("v_and_b32 %s, 7, v0" % v(vPO))
        slot(T[0], FH, [(sTBN, 16), (sKH, 7)])
        addr(T[1], sLB, HF, [(sTBN, HSTR), (sKH, 43 * 1024)])
    e("v_lshlrev_b32 %s, 3, %s" % (v(vPO), v(vPO)))
    if not wo:
        e("s_waitcnt lgkmcnt(0)")
        for p in range(8):
            e("v_pk_add_f32 %s, %s, %s" % (v(AK + 2 * p, 2), v(AK + 2 * p, 2), v(AS + 2 * p, 2)))


def n512(kind):
    wo = kind == "wo"
    ph = "o" if wo else "g"
    cm("================ %s" % ("output projection + residual" if wo else "MLP down projection + residual"))
    NS, J = (16, 16) if wo else (43, 39)
    ND = OPT("nd", 10 if wo else 13)
    AK, AS = vACC, vACC + 16
    hl, done = newlab("n_h"), newlab("n_done")
    e("s_cmp_ge_u32 %s, 4" % sW)
    e("s_cbranch_scc1 %s" % hl)
    if not wo:
        e("s_barrier")

    def rd(j, i):
        jj = j % J
        base, off = ((vW0, vW1)[i], jj * 2048) if jj < 32 else ((vW2, vW3)[i], (jj - 32) * 2048)
        d = vWB + (j % 3) * 8 + 4 * i
        e("ds_read_b64_tr_b16 %s, %s offset:%d" % (v(d, 2), v(base), off))
        e("ds_read_b64_tr_b16 %s, %s offset:%d" % (v(d + 2, 2), v(base), off + 1024))
    for j in range(2):
        for i in range(2):
            rd(j, i)
    poll(T[0])
    stamp()
    areg = lambda j: vA + 4 * (j % 32)
    load_frags(T[1], 0, ND, areg)
    fine(ph)

    def late_addresses():
        e("s_and_b32 %s, %s, 1" % (T[2], sW))
        if wo:
            addr(T[0], None, 0, [(T[2], 4096), (sKH, 32768)])
            e("s_xor_b32 %s, %s, 32768" % (T[3], T[0]))
            publish_addr(X1F, ST1, 0, FO)
        else:
            addr(T[0], None, 98304, [(T[2], 4096), (sKH, 8192)])
            e("s_xor_b32 %s, %s, 8192" % (T[3], T[0]))
            publish_addr(XF, ST, LFL_L * 8, FX)
        e("v_add_u32 %s, %s, %s" % (v(vPO), T[0], v(vL16)))
        e("v_add_u32 %s, %s, %s" % (v(vPD), T[3], v(vL16)))
    sh = capture(late_addresses)
    for j in range(NS):
        issued = min(NS, ND + j)
        if not wo and j == J - 2:
            e("s_barrier")
        if j < NS - 1:
            last2 = j == NS - 2
            e("s_waitcnt vmcnt(%d) lgkmcnt(%d)" % (0 if last2 else issued - j - 1, 0 if last2 else 4))
        if j in ((0, 4, 8, 15) if wo else (0, 11, 22, 42)):
            fine(ph)
        seq = [(j, 0), (j, 1)] if j < NS - 2 else [(j, 1), (j + 1, 1)] if j == NS - 2 else [(j - 1, 0), (j, 0)]
        for m, (jj, i) in enumerate(seq):
            acc = AK + 16 * i
            mfma(acc, vWB + (jj % 3) * 8 + 4 * i, areg(jj), "0" if (jj == 0 and i == 1) else acc)
            if j + 2 < NS:
                rd(j + 2, i)
            if m == 0 and ND + j < NS:
                load_frags(T[1], ND + j, 1, areg, False)
            if j >= 2:
                g = (j - 2) * 2 + m
                for x in sh[2 * g:2 * g + 2]:
                    e(x)
        if j == (8 if wo else NS - J - 1):
            e("s_barrier")
    assert len(sh) <= 4 * (NS - 2)
    e("s_nop 9")
    for i in range(4):
        e("ds_write_b128 %s, %s offset:%d" % (v(vPO), v(AS + 4 * i, 4), 1024 * i))
    e("s_waitcnt lgkmcnt(0)")
    e("s_barrier")
    stamp()
    for i in range(4):
        e("ds_read_b128 %s, %s offset:%d" % (v(AS + 4 * i, 4), v(vPD), 1024 * i))
    for i in range(4):
        e("s_waitcnt lgkmcnt(%d)" % (3 - i))
        for p in (2 * i, 2 * i + 1):
            e("v_pk_add_f32 %s, %s, %s" % (v(AK + 2 * p, 2), v(AK + 2 * p, 2), v(AS + 2 * p, 2)))
    for p in range(8):
        e("v_cvt_pk_bf16_f32 %s, %s, %s" % (v(vRES + p), v(AK + 2 * p), v(AK + 2 * p + 1)))
    if wo:
        publish_x(AK, 20, ffn1_setup)
    else:
        last = newlab("last")
        e("s_cmp_lg_u32 %s, 0" % sL)
        e("s_cbranch_scc1 %s" % last)
        publish_x(AK, 20, lambda: qkv_setup(True))
        e("s_branch %s" % done)
        lab(last)
        srd(sTMP, 28, 2048 * 1024)
        e("v_and_b32 v16, 31, v0")
        e("v_lshlrev_b32 v16, 10, v16")
        e("v_add_u32 v16, v16, %s" % v(vH16))
        addr(T[0], None, 0, [(sXCD, 262144), (sTBN, 32768), (sNT, 64)])
        for g in range(2):
            e("v_permlane32_swap_b32 %s, %s" % (v(vRES + 4 * g), v(vRES + 4 * g + 2)))
            e("v_permlane32_swap_b32 %s, %s" % (v(vRES + 4 * g + 1), v(vRES + 4 * g + 3)))
        for g in range(2):
            e("buffer_store_dwordx4 %s, v16, %s, %s offen offset:%d" % (v(vRES + 4 * g, 4), sTMP, T[0], 32 * g))
    e("s_branch %s" % done)
    lab(hl)
    if wo:
        voff_192(44)
        e("s_lshl_b32 %s, %s, 2" % (T[3], sHW))
        e("s_min_u32 %s, %s, 10" % (T[3], T[3]))
        addr(T[0], None, 8 * 16 * 2752, [(T[3], 16 * 2752), (sC, 192)])
        addr(T[1], None, 65536 + 8 * 3072, [(T[3], 3072)])
        dma_w1(2)
        e("s_mov_b32 %s, %s" % (T[3], T[0]))
        e("s_mov_b32 %s, %s" % (T[4], T[1]))
        w0, w1, w2 = newlab("wcs"), newlab("wcs"), newlab("wcs")
        e("s_cmp_lg_u32 %s, 0" % sL)
        e("s_cbranch_scc1 %s" % w0)
        tr_rows(43, 192)
        colsum_begin()
        addr(T[0], None, 65536, [(sHW, 2 * 3072)])
        colsum_w1()
        addr(T[0], None, 65536 + 22 * 3072, [(sHW, 2 * 3072)])
        colsum_w1()
        lab(w0)
        e("s_mov_b32 %s, %s" % (T[0], T[3]))
        e("s_mov_b32 %s, %s" % (T[1], T[4]))
        e("s_barrier")
        fine("v")
        dma_w1(2)
        e("s_barrier")
        fine("v")
        e("s_cmp_lg_u32 %s, 3" % sHW)
        e("s_cbranch_scc1 %s" % w1)
        addr(T[0], None, 30 * 16 * 2752, [(sC, 192)])
        e("s_mov_b32 %s, %d" % (T[1], 58 * 1024))
        dma_w1(2)
        lab(w1)
        e("s_cmp_lg_u32 %s, 0" % sL)
        e("s_cbranch_scc1 %s" % done)
        cm("own late k-steps: 8-11 | 12-15 | 16-19 | 20-21 and 30-31")
        e("s_and_b32 %s, %s, 1" % (T[4], sHW))
        addr(T[0], None, 65536 + 8 * 3072, [(sHW, 4 * 3072)])
        e("s_add_u32 %s, %s, %d" % (T[3], T[0], 2 * 3072))
        e("s_cmp_eq_u32 %s, 3" % sHW)
        e("s_cselect_b32 %s, %d, %s" % (T[3], 58 * 1024, T[3]))
        e("s_waitcnt vmcnt(0)")
        colsum_w1()
        e("s_mov_b32 %s, %s" % (T[0], T[3]))
        colsum_w1()
        colsum_partial()
        e("v_lshlrev_b32 v47, 16, v224")
        addr(T[0], None, B1_L, [(sHW, 128)])
        e("v_add_u32 v42, %s, v41" % T[0])
        e("ds_write_b32 v42, v47")
        e("v_lshlrev_b32 v49, 16, v225")
        addr(T[0], None, CONST + 384, [(T[4], 512)])
        e("v_add_u32 v42, %s, v41" % T[0])
        e("ds_write_b32 v42, v49")
    else:
        e("s_waitcnt vmcnt(0)")
        fine("w")
        e("s_barrier")
        fine("w")
        e("s_lshr_b32 %s, %s, 1" % (T[3], sHW))
        e("s_and_b32 %s, %s, 1" % (T[4], sHW))
        addr(T[0], None, 78 * 8192, [(T[3], 86 * 8192), (T[4], 4 * 8192), (sNB, 128)])
        addr(T[1], None, 0, [(T[3], 78 * 1024), (T[4], 4096)])
        e("s_barrier")
        for k in range(4):
            e("s_add_u32 m0, %s, %d" % (T[1], 1024 * k))
            e("s_nop 0")
            dma1(40, T[0], 4)
            e("s_add_u32 %s, %s, 8192" % (T[0], T[0]))
        e("s_waitcnt vmcnt(0)")
        e("s_barrier")
        stash_addr()
        e("s_barrier")
        e("s_cmp_lg_u32 %s, 0" % sL)
        e("s_cbranch_scc1 %s" % done)
        for k in range(24):
            e("ds_write_b128 v42, %s offset:%d" % (v(vSTASH + 4 * k, 4), 1024 * k))
    lab(done)
    stamp()


def ffn1():
    cm("================ MLP up projection + GELU")
    hl, done = newlab("f1_h"), newlab("f1_done")
    e("s_cmp_ge_u32 %s, 4" % sW)
    e("s_cbranch_scc1 %s" % hl)
    idle = newlab("f1_idle")
    e("s_cmp_eq_u32 %s, 15" % sC)
    e("s_cbranch_scc1 %s" % idle)
    setup = newlab("f1_setup")
    TAIL.extend([idle + ":"] + ["    s_barrier"] * 4 + ["    s_branch " + setup])

    lds = Lds()

    def rd(ks, i):
        d = vWB + (ks % 3) * 12 + 4 * i
        base, off = (vW0, ks * 3072) if ks < 21 else (vW1, (ks - 21) * 3072) if ks < 30 else (vW2, 58 * 1024 + (ks - 30) * 3072)
        lds.op(("w", ks), "ds_read_b64_tr_b16 %s, %s offset:%d" % (v(d, 2), v(base), off + 64 * i))
        lds.op(("w", ks), "ds_read_b64_tr_b16 %s, %s offset:%d" % (v(d + 2, 2), v(base), off + 64 * i + 1536))

    def wait(name):
        n = lds.need(name)
        if n is not None:
            e("s_waitcnt lgkmcnt(%d)" % n)
    for ks in range(2):
        for i in range(3):
            rd(ks, i)
    poll(T[0])
    stamp()

    def item(n):
        if n < 32:
            load_frags(T[1], n, 1, lambda j: vA + 4 * j, n % 4 == 0)
        else:
            e("buffer_load_dwordx4 %s, %s, %s, %s offen offset:%d sc1" % (v(vSTS + 4 * (n - 32), 4), v(vL16), sWS, T[2], 1024 * (n - 32)))
    sched = [[ks + DEPTH] if ks + DEPTH < 32 else [] for ks in range(32)]
    for k in range(4):
        sched[1 + k].append(32 + k)
    order = list(range(DEPTH))
    for n in range(DEPTH):
        item(n)
    fine("f")
    c0 = -2.0 * 1.4426950408889634 * 0.7978845608028654
    GC = vSTS + 4

    def early():
        addr(T[4], sLB, HF, [(sTBW, HSTR), (sC, 6144)])
        e("s_add_u32 %s, %s, 4096" % (T[5], T[4]))
        slot(T[6], FH, [(sTBW, 16), (sC, 1)])
    S0 = OPT("s0", 11)
    mid = stats_code(True) + ["v_mul_f32 %s, %s, %s" % (v(vMU), v(vMU), v(vR)), "v_mov_b32 %s, %s" % (v(GC), f32(c0)),
                              "v_mov_b32 %s, %s" % (v(GC + 1), f32(c0 * 0.044715)), "v_mov_b32 %s, 1.0" % v(GC + 2)]
    sh = [(5, lambda x=x: e(x)) for x in capture(early)] + [(S0, lambda x=x: e(x)) for x in mid]
    cm("bias' = b1 - mean*rstd*colsum is formed under the last MFMAs, in dead activation registers")
    rdc, fmc = [], []
    for t in range(3):
        rdc.append([(max(12, 8 * t + 8), lambda t=t, k=k: lds.op(("c", t), "ds_read_b128 %s, %s offset:%d" % (
            v(16 + 32 * t + 4 * k, 4), v(vCA), 512 + 512 * (k // 4) + t * 128 + 32 * (k % 4)))) for k in range(8)])
        fmc.append([(0, lambda t=t: wait(("c", t)))] + [(0, lambda t=t, r=r: e("v_fma_f32 %s, -%s, %s, %s" % (
            v(32 + 32 * t + r), v(vMU), v(16 + 32 * t + r), v(32 + 32 * t + r)))) for r in range(16)])
    mix = lambda a, b: [x for k in range(max(len(a), len(b))) for x in a[2 * k:2 * k + 2] + b[k:k + 1]]
    sh += rdc[0] + mix(fmc[0], rdc[1]) + fmc[1][:9] + mix(fmc[1][9:], rdc[2]) + fmc[2]
    pos = 0
    for ks in range(32):
        if ks in (6, 12, 22):
            e("s_barrier")
        newest = max(order.index(n) for n in ([ks, 35] if ks >= S0 else [ks]))
        lg = lds.need(("w", ks))
        e("s_waitcnt vmcnt(%d)%s" % (len(order) - 1 - newest, "" if lg is None else " lgkmcnt(%d)" % lg))
        if ks in FINEKS:
            fine("f")
        for i in range(3):
            mfma(vACC + 16 * i, vWB + (ks % 3) * 12 + 4 * i, vA + 4 * ks, "0" if ks == 0 else vACC + 16 * i)
            if ks + 2 < 32:
                rd(ks + 2, i)
            if i < len(sched[ks]):
                item(sched[ks][i])
                order.append(sched[ks][i])
            for _ in range(OPT("fp", 2) if ks < 30 else 5):
                if pos < len(sh) and ks >= sh[pos][0]:
                    sh[pos][1]()
                    pos += 1
    for x in sh[pos:]:
        x[1]()
    stamp()
    e("s_nop %d" % max(0, 9 - len(sh[pos:])))
    Z, P = 120, vWB
    for t in range(3):
        acc, b1 = vACC + 16 * t, 32 + 32 * t
        for p in range(8):
            e("v_pk_fma_f32 %s, %s, %s, %s op_sel_hi:[1,0,1]" %
              (v(acc + 2 * p, 2), v(acc + 2 * p, 2), v(vR, 2), v(b1 + 2 * p, 2)))
        for p in range(8):
            e("v_pk_mul_f32 %s, %s, %s" % (v(Z + 2 * p, 2), v(acc + 2 * p, 2), v(acc + 2 * p, 2)))
        for p in range(8):
            e("v_pk_fma_f32 %s, %s, %s, %s op_sel:[0,1,0] op_sel_hi:[1,1,0]" %
              (v(Z + 2 * p, 2), v(Z + 2 * p, 2), v(GC, 2), v(GC, 2)))
        for p in range(8):
            e("v_pk_mul_f32 %s, %s, %s" % (v(Z + 2 * p, 2), v(Z + 2 * p, 2), v(acc + 2 * p, 2)))
        for i in range(16):
            e("v_exp_f32 %s, %s" % (v(Z + i), v(Z + i)))
        for p in range(8):
            e("v_pk_add_f32 %s, %s, %s op_sel_hi:[1,0]" % (v(Z + 2 * p, 2), v(Z + 2 * p, 2), v(GC + 2, 2)))
        for i in range(16):
            e("v_rcp_f32 %s, %s" % (v(Z + i), v(Z + i)))
        for p in range(8):
            e("v_pk_mul_f32 %s, %s, %s" % (v(acc + 2 * p, 2), v(acc + 2 * p, 2), v(Z + 2 * p, 2)))
        for p in range(8):
            e("v_cvt_pk_bf16_f32 %s, %s, %s" % (v(P + 8 * t + p), v(acc + 2 * p), v(acc + 2 * p + 1)))
        lstores(["buffer_store_dwordx4 %s, %s, %s, %s offen offset:%d" %
                 (v(P + 8 * t + 4 * hh, 4), v(vL16), sWS, T[4 + (2 * t + hh) // 4], ((2 * t + hh) % 4) * 1024) for hh in range(2)])
        if t == 0:
            e("s_barrier")
        if t != 1:
            fine("f")
    lab(setup)
    n512_setup(False)
    e("s_cmp_eq_u32 %s, 15" % sC)
    e("s_cbranch_scc1 %s" % done)
    flag(T[6], 0, local=True)
    e("s_branch %s" % done)
    lab(hl)
    h1 = newlab("fh1")
    voff_128(40)
    srd(sTMP, 24, 1376 * 1024)
    fine("v")
    e("s_waitcnt vmcnt(0) lgkmcnt(0)")
    fine("v")
    e("s_barrier")
    fine("v")
    e("s_cmp_lg_u32 %s, 0" % sL)
    e("s_cbranch_scc1 %s" % h1)
    colsum_combine(CS1_L)
    e("s_waitcnt lgkmcnt(0)")
    lab(h1)
    e("s_barrier")
    E0 = OPT("e0", 2)
    if E0:
        dma_w2(0, 0, E0, OPT("e0p", 1) or -1)
    e("s_barrier")
    fine("w")
    dma_w2(86, 78 * 1024, 7, None)
    dma_w2(4 * E0, 4 * E0 * 1024, 14 - E0, None)
    dma_w2(86 + 28, (78 + 28) * 1024, 6, None)
    fine("w")
    e("s_barrier")
    fine("w")
    dma_w2(54, 54 * 1024, 6)
    dma_w2(86 + 50, (78 + 50) * 1024, 7)
    fine("w")
    lab(done)
    stamp()


def epilogue():
    e("s_add_u32 %s, %s, 1" % (sL, sL))
    e("s_add_u32 %s, %s, %d" % (sFB, sFB, LFL_L * 8))
    e("s_cmp_lt_u32 %s, 2" % sL)
    e("s_cbranch_scc1 L_layer")
    if PROFILE:
        e("s_memrealtime s[22:23]")
        e("s_waitcnt lgkmcnt(0)")
        stamp("s23")
        e("s_lshl_b32 %s, s2, 3" % T[0])
        e("s_add_u32 %s, %s, %s" % (T[0], T[0], sW))
        e("s_lshl_b32 %s, %s, 8" % (T[0], T[0]))
        e("s_add_u32 %s, %s, 0x%x" % (T[0], T[0], TSB))
        e("s_mov_b64 exec, 1")
        for i, r in enumerate([68, 18, 19] + list(range(STAMP0, STAMP0 + 30)) + [22, 23, 0, 1]):
            e("v_mov_b32 v16, s%d" % r)
            e("buffer_store_dword v16, off, %s, %s offset:%d" % (sWS, T[0], 4 * i))
        e("s_mov_b64 exec, 0xff")
        e("v_lshlrev_b32 v16, 2, v0")
        e("buffer_store_dword v5, v16, %s, %s offen offset:148" % (sWS, T[0]))
        e("s_mov_b64 exec, -1")
    if "--dbg" in sys.argv:
        sk = newlab("dbg")
        e("s_or_b32 %s, s2, %s" % (T[0], sW))
        e("s_cmp_lg_u32 %s, 0" % T[0])
        e("s_cbranch_scc1 %s" % sk)
        srd(sTMP, 30, 256)
        e("s_mov_b64 exec, 1")
        for i, r in enumerate([19, 72, 73, 74, 75, 76, 77, 80, 83, 86, 89, 90, 91, 95, 98, 101]):
            e("s_sub_u32 %s, s%d, s18" % (T[0], r))
            e("v_mov_b32 v16, %s" % T[0])
            e("buffer_store_dword v16, off, %s, 0 offset:%d" % (sTMP, 4 * i))
        e("s_mov_b64 exec, -1")
        lab(sk)
    if OPT("hold", 0):
        hl = newlab("hold")
        lab(hl)
        e("s_memrealtime s[70:71]")
        e("s_waitcnt lgkmcnt(0)")
        e("s_sub_u32 s70, s70, s68")
        e("s_cmp_lt_u32 s70, %d" % OPT("hold", 0))
        e("s_cbranch_scc1 %s" % hl)
    cm("advance the hand-off tag for the next launch")
    e("s_or_b32 %s, s2, %s" % (T[0], sW))
    e("s_cmp_lg_u32 %s, 0" % T[0])
    e("s_cbranch_scc1 L_end")
    e("s_mov_b64 exec, 1")
    e("buffer_store_dword %s, off, %s, 0" % (v(vFV), sWS))
    lab("L_end")
    e("s_endpgm")
    L.extend(TAIL)


HEADER = open(f"cdna_kernels/{NAME}.s.ref").read().split("; Override launch")[0]


OVERVIEW = """;
; Generated by gen/gen.py (hand-written generator). One persistent launch, one 8-wave workgroup per CU.
; Hand-offs: payload stores, vmcnt wait, then an 8-byte flag {tag, ~tag}; tag = ws[0] + 16 differs per launch.
;   Every workgroup reports the die it runs on. If a die group shares one die its hand-offs use plain stores
"""


def main():
    prologue()
    p0()
    lab("L_layer")
    qkv()
    attention()
    n512("wo")
    ffn1()
    n512("f2")
    epilogue()
    k = NAME + "_kernel"
    out = HEADER
    out += "; @launch grid=(256,1,1) block=(512,1,1) lds=%d\n" % LDS_BYTES
    out += OVERVIEW
    out += '.amdgcn_target "amdgcn-amd-amdhsa--gfx950"\n.text\n.globl %s\n.p2align 8\n.type %s,@function\n%s:\n' % (k, k, k)
    out += "\n".join(L) + "\n"
    out += """.section .rodata,"a"
.p2align 6
.amdhsa_kernel %s
  .amdhsa_next_free_vgpr 256
  .amdhsa_next_free_sgpr 102
  .amdhsa_accum_offset 256
  .amdhsa_group_segment_fixed_size 0
  .amdhsa_kernarg_size 88
  .amdhsa_user_sgpr_count 2
  .amdhsa_user_sgpr_kernarg_segment_ptr 1
  .amdhsa_system_sgpr_workgroup_id_x 1
.end_amdhsa_kernel
""" % k
    open(OUT, "w").write(out)
    import subprocess
    r = subprocess.run([sys.executable, "hazard.py", OUT], capture_output=True, text=True).stdout
    if not r.strip().endswith("violations 0"):
        print(r)


main()
```

```python
import struct
import sys

NAME = "interleave_layers__softmax_full_mha__mixer_channel_mlp__prompt"
PROFILE = "--prof" in sys.argv
CLK = "s_memrealtime" if "--rt" in sys.argv else "s_memtime"
FORCE_SLOW = "--slow" in sys.argv
FORCE_GLOBAL = "--global" in sys.argv
OUT = [a for a in sys.argv[1:] if not a.startswith("--")]
OUT = OUT[0] if OUT else f"cdna_kernels/{NAME}.s"


def OPT(name, default):
    a = [x.split("=")[1] for x in sys.argv if x.startswith("--%s=" % name)]
    return int(a[0]) if a else default


def f32(x):
    return "0x%08x" % struct.unpack("<I", struct.pack("<f", x))[0]


WS_SIZE = 0x10000000
FLG = 0x100000
FI = 0
GFL, GFL_L = 0xA00000, 0x100000
KVF, KVF_L = 0x200000, 0x400000
ARENA, ARENA_X = 0x1000000, 0x200000
XSTR, HSTR = 33 * 1024, 97 * 1024
XF, OF, BLK, ST, LFL = 0, 0x48000, 0x90000, 0x158000, 0x160000
X1F, ST1, HF, QF, KVL = XF, ST, BLK, BLK, BLK + 32768
FX, FQ, FA, FO, FH, LFL_L = 0, 128, 256, 512, 640, 768
TSB = 0x4000000
DEPTH = OPT("depth", 10)
PACE = OPT("pace", 5)
RED = 140 * 1024
CONST = 156 * 1024
CSQ_L, CS1_L, B1_L, STAT_L, PART_L = CONST, CONST + 512, CONST + 1024, CONST + 1536, CONST + 2560
MODE_L = B1_L + 400
LDS_BYTES = 160 * 1024
sWS, sTMP = "s[4:7]", "s[8:11]"
sW, sNONCE, sL, sLB, sFB = "s34", "s35", "s36", "s37", "s38"
sXCD, sJ, sTBW, sC, sTBN, sNB, sKH, sNT, sHEAD, sQB = ("s%d" % i for i in range(39, 49))
sHW = "s49"
T = ["s%d" % i for i in range(50, 60)]
sCNT, sIT = "s60", "s61"
sMV = "s[62:63]"
sM0, sM1 = "s[64:65]", "s[66:67]"
sMODE = "s3"
STAMP0 = 72
vLANE, vL16, vFV, vPO, vT5, vPD = 0, 1, 2, 4, 5, 6
vRES = 8
vA, vACC, vWB, vSTS = 16, 144, 192, 228
vW0, vW1, vMU, vW2, vR, vW3, vRQ, vCA, vTR, vK16, vVOF, vH16 = 244, 245, 246, 247, 248, 249, 250, 251, 252, 253, 254, 255
vSTASH = 128
QL = 128 * 1024
POLL_LIMIT = 1 << 16

L = []
TAIL = []
uid = [0]
nstamp = [0]


def e(s):
    L.append("    " + s)


def lab(n):
    L.append(n + ":")


def cm(s):
    L.append("    ; " + s)


def v(i, n=1):
    return "v%d" % i if n == 1 else "v[%d:%d]" % (i, i + n - 1)


def capture(f):
    n = len(L)
    f()
    out = [x.strip() for x in L[n:]]
    del L[n:]
    return out


def newlab(p):
    uid[0] += 1
    return "L_%s_%d" % (p, uid[0])


def stamp(fixed=None):
    if not PROFILE:
        return
    e(CLK + " s[70:71]")
    e("s_waitcnt lgkmcnt(0)")
    if fixed:
        e("s_mov_b32 %s, s70" % fixed)
        return
    e("s_mul_i32 s69, %s, 15" % sL)
    e("s_add_u32 m0, s69, %d" % nstamp[0])
    e("s_nop 1")
    e("s_movreld_b32 s%d, s70" % STAMP0)
    nstamp[0] += 1
    assert nstamp[0] <= 15


FINE = [a.split("=")[1] for a in sys.argv if a.startswith("--fine=")]
FINE = FINE[0] if FINE else None
nfine = [0]
FINEKS = eval([a.split('=')[1] for a in sys.argv if a.startswith('--ks=')][0]) if any(a.startswith('--ks=') for a in sys.argv) else (0, 8, 16, 31)


def fine(phase):
    if not PROFILE or FINE != phase:
        return
    e(CLK + " s[70:71]")
    e("s_waitcnt lgkmcnt(0)")
    sk = newlab("fs")
    e("s_cmp_lg_u32 %s, %d" % (sL, 0 if "--l0" in sys.argv else 1))
    e("s_cbranch_scc1 %s" % sk)
    e("v_writelane_b32 v5, s70, %d" % nfine[0])
    lab(sk)
    nfine[0] += 1


def srd(dst, lo, size):
    b = int(dst[2:dst.index(":")])
    e("s_mov_b32 s%d, s%d" % (b, lo))
    e("s_and_b32 s%d, s%d, 0xffff" % (b + 1, lo + 1))
    e("s_mov_b32 s%d, %s" % (b + 2, size if isinstance(size, str) else hex(size)))
    e("s_mov_b32 s%d, 0x20000" % (b + 3))


def poll(soff):
    a, b = newlab("poll"), newlab("pok")
    regs = (vPD, 16) if OPT("p2", 1) else (vPD,)
    ld = lambda r: e("buffer_load_dwordx2 %s, %s, %s, %s offen sc1" % (v(r, 2), v(vPO), sWS, soff))
    e("s_mov_b32 %s, %d" % (sCNT, POLL_LIMIT))
    if len(regs) == 2:
        ld(regs[0])
    lab(a)
    for k, r in enumerate(regs):
        ld(regs[(k + 1) % len(regs)])
        e("s_waitcnt vmcnt(%d)" % (len(regs) - 1))
        e("v_cmp_eq_u64 vcc, %s, %s" % (v(r, 2), v(vFV, 2)))
        e("s_nop 0")
        e("s_cmp_eq_u64 vcc, -1")
        e("s_cbranch_scc1 %s" % b)
    e("s_sub_u32 %s, %s, 1" % (sCNT, sCNT))
    e("s_cbranch_scc0 %s" % a)
    e("s_endpgm")
    lab(b)


def lstores(lines):
    g, d = newlab("wt"), newlab("wtd")
    e("s_cmp_eq_u32 %s, 0" % sMODE)
    e("s_cbranch_scc1 %s" % g)
    for x in lines:
        e(x)
    lab(d)
    TAIL.append(g + ":")
    for x in lines:
        TAIL.append("    " + x + (" sc1" if x.startswith("buffer_store") else ""))
    TAIL.append("    s_branch " + d)


def flag(soff, n=0, local=False):
    if n is not None:
        e("s_waitcnt vmcnt(%d)" % n)
    if local:
        e("s_mov_b64 exec, 1")
        lstores(["buffer_store_dwordx2 %s, off, %s, %s" % (v(vFV, 2), sWS, soff)])
    else:
        e("v_lshlrev_b32 %s, 3, v0" % v(vPD))
        e("s_mov_b64 exec, 0xffff")
        e("buffer_store_dwordx2 %s, %s, %s, %s offen sc1" % (v(vFV, 2), v(vPD), sWS, soff))
    e("s_mov_b64 exec, -1")


def mode_poll(first=False):
    a, b, glob, out = newlab("mp"), newlab("mpok"), newlab("mpg"), newlab("mpo")
    e("v_and_b32 %s, 31, v0" % v(vPD))
    e("v_lshlrev_b32 %s, 10, %s" % (v(vPD), v(vPD)))
    addr(T[3], None, FLG + FI * 128, [(sXCD, 128)])
    e("v_add_u32 %s, %s, %s" % (v(vPD), T[3], v(vPD)))
    if first:
        e("v_add_u32 %s, %s, %s" % (v(vPD + 1), T[0], v(vPO)))
        e("v_cmp_gt_u32 vcc, 32, v0")
        e("s_nop 1")
        e("v_cndmask_b32 v60, %s, %s, vcc" % (v(vPD), v(vPD + 1)))
    e("s_getreg_b32 %s, hwreg(HW_REG_XCC_ID, 0, 4)" % T[3])
    e("s_mov_b32 %s, %d" % (sCNT, POLL_LIMIT))
    e("s_mov_b32 %s, 1" % sMODE)
    lab(a)
    e("buffer_load_dwordx2 %s, v60, %s, 0 offen sc1" % (v(vPD, 2), sWS))
    e("s_waitcnt vmcnt(0)")
    e("v_xor_b32 %s, %s, %s" % (v(vPD + 1), v(vPD + 1), v(vFV + 1)))
    e("v_cmp_eq_u32 %s, %s, %s" % (sM0, v(vPD), v(vFV)))
    e("v_cmp_eq_u32 %s, %s, %s" % (sM1, T[3], v(vPD + 1)))
    e("v_cmp_gt_u32 vcc, 16, %s" % v(vPD + 1))
    e("s_nop 1")
    e("s_and_b64 %s, %s, %s" % (sM1, sM1, sM0))
    e("s_and_b64 vcc, vcc, %s" % sM0)
    if not FORCE_GLOBAL:
        e("s_cmp_eq_u64 %s, -1" % sM1)
        e("s_cbranch_scc1 %s" % out)
    e("s_cmp_eq_u32 vcc_hi, -1")
    e("s_cbranch_scc0 %s" % b)
    if not FORCE_GLOBAL:
        e("s_cmp_eq_u32 s67, -1")
        e("s_cbranch_scc0 %s" % glob)
    else:
        e("s_branch %s" % glob)
    lab(b)
    e("s_sub_u32 %s, %s, 1" % (sCNT, sCNT))
    e("s_cbranch_scc0 %s" % a)
    e("s_endpgm")
    lab(glob)
    e("s_mov_b32 %s, 0" % sMODE)
    if first:
        e("v_xor_b32 %s, 31, %s" % (v(vFV + 1), v(vFV + 1)))
        publish_addr(XF, ST, 0, FX)
        publish_x(None, 84)
        poll(T[0])
        e("v_xor_b32 %s, 31, %s" % (v(vFV + 1), v(vFV + 1)))
    lab(out)


def slot(dst, base, terms):
    e("s_add_u32 %s, %s, %d" % (dst, sFB, base * 8))
    for r, m in terms:
        e("s_mul_i32 %s, %s, %d" % (T[9], r, m * 8))
        e("s_add_u32 %s, %s, %s" % (dst, dst, T[9]))


def addr(dst, base_reg, const, terms):
    if base_reg is None:
        e("s_mov_b32 %s, 0x%x" % (dst, const))
    else:
        e("s_add_u32 %s, %s, 0x%x" % (dst, base_reg, const))
    for r, m in terms:
        e("s_mul_i32 %s, %s, %d" % (T[9], r, m))
        e("s_add_u32 %s, %s, %s" % (dst, dst, T[9]))


def load_frags(sg, first, n, reg_of, rebase=True):
    for j in range(first, first + n):
        if j % 4 == 0 or (j == first and rebase):
            e("s_add_u32 %s, %s, %d" % (T[8], sg, (j // 4) * 4096))
        e("buffer_load_dwordx4 %s, %s, %s, %s offen offset:%d sc1" %
          (v(reg_of(j), 4), v(vL16), sWS, T[8], (j % 4) * 1024))


def mfma(d, a, b, c):
    e("v_mfma_f32_32x32x16_bf16 %s, %s, %s, %s" % (v(d, 16), v(a, 4), v(b, 4), c if isinstance(c, str) else v(c, 16)))


def half_sum(a, b):
    e("s_nop 1")
    e("v_permlane32_swap_b32 %s, %s" % (v(a), v(b)))
    e("s_nop 1")
    e("v_add_f32 %s, %s, %s" % (v(a), v(a), v(b)))


def tile_stats(y, t):
    e("v_pk_add_f32 %s, %s, %s" % (v(t, 2), v(y, 2), v(y + 2, 2)))
    e("v_pk_mul_f32 %s, %s, %s" % (v(t + 2, 2), v(y, 2), v(y, 2)))
    for p in range(1, 8):
        if p > 1:
            e("v_pk_add_f32 %s, %s, %s" % (v(t, 2), v(t, 2), v(y + 2 * p, 2)))
        e("v_pk_fma_f32 %s, %s, %s, %s" % (v(t + 2, 2), v(y + 2 * p, 2), v(y + 2 * p, 2), v(t + 2, 2)))
    e("v_add_f32 %s, %s, %s" % (v(t), v(t), v(t + 1)))
    e("v_add_f32 %s, %s, %s" % (v(t + 2), v(t + 2), v(t + 3)))
    half_sum(t, t + 2)


def unpack(dst, src, n):
    for i in range(n):
        e("v_lshlrev_b32 %s, 16, %s" % (v(dst + 2 * i), v(src + i)))
        e("v_and_b32 %s, 0xffff0000, %s" % (v(dst + 2 * i + 1), v(src + i)))


def publish_addr(xoff, stoff, fbase_add, fbase):
    addr(T[4], sLB, xoff, [(sTBN, XSTR), (sNT, 2048)])
    e("s_lshr_b32 %s, %s, 2" % (T[6], sNT))
    e("s_and_b32 %s, %s, 3" % (T[7], sNT))
    addr(T[5], sLB, stoff, [(sTBN, 4096), (T[6], 1024), (T[7], 4)])
    slot(T[6], fbase, [(sTBN, 16), (sNT, 1)])
    if fbase_add:
        e("s_add_u32 %s, %s, %d" % (T[6], T[6], fbase_add))


def publish_x(y, t, meanwhile=None):
    lstores(["buffer_store_dwordx4 %s, %s, %s, %s offen" % (v(vRES, 4), v(vL16), sWS, T[4]),
             "buffer_store_dwordx4 %s, %s, %s, %s offen offset:1024" % (v(vRES + 4, 4), v(vL16), sWS, T[4])])
    if y is not None:
        tile_stats(y, t)
    lstores(["buffer_store_dword %s, %s, %s, %s offen" % (v(t), v(vL16), sWS, T[5])])
    if meanwhile:
        meanwhile()
    flag(T[6], local=True)


def prologue():
    e("s_cmp_ge_u32 s2, 256")
    e("s_cbranch_scc1 L_end")
    e("s_load_dwordx16 s[12:27], s[0:1], 0")
    e("s_load_dwordx4 s[28:31], s[0:1], 64")
    e("s_load_dwordx2 s[32:33], s[0:1], 80")
    e("v_lshrrev_b32 v1, 6, v0")
    e("v_and_b32 v0, 63, v0")
    e("v_readfirstlane_b32 %s, v1" % sW)
    e("v_lshlrev_b32 %s, 4, v0" % v(vL16))
    cm("column part of a transposing-read address: (lane&3)*8 + ((lane>>4)&1)*32")
    e("v_and_b32 %s, 3, v0" % v(vTR))
    e("v_lshlrev_b32 %s, 3, %s" % (v(vTR), v(vTR)))
    e("v_bfe_u32 %s, v0, 4, 1" % v(vT5))
    e("v_lshl_or_b32 %s, %s, 5, %s" % (v(vTR), v(vT5), v(vTR)))
    e("v_lshrrev_b32 %s, 5, v0" % v(vT5))
    e("v_lshlrev_b32 %s, 4, %s" % (v(vH16), v(vT5)))
    cm("K fragments are stored with token bits 2 and 3 swapped (matches the sparse-MFMA key order)")
    e("v_and_b32 %s, 0x33, v0" % v(vK16))
    e("v_and_b32 %s, 4, v0" % v(vPO))
    e("v_lshl_or_b32 %s, %s, 1, %s" % (v(vK16), v(vPO), v(vK16)))
    e("v_and_b32 %s, 8, v0" % v(vPO))
    e("v_lshrrev_b32 %s, 1, %s" % (v(vPO), v(vPO)))
    e("v_or_b32 %s, %s, %s" % (v(vK16), v(vK16), v(vPO)))
    e("v_lshlrev_b32 %s, 4, %s" % (v(vK16), v(vK16)))
    cm("V store offset: head parity*128K + half*512 + d*16")
    e("v_and_b32 %s, 15, v0" % v(vVOF))
    e("v_lshlrev_b32 %s, 4, %s" % (v(vVOF), v(vVOF)))
    e("v_lshl_or_b32 %s, %s, 9, %s" % (v(vVOF), v(vT5), v(vVOF)))
    e("v_bfe_u32 %s, v0, 4, 1" % v(vPO))
    e("v_lshl_or_b32 %s, %s, 17, %s" % (v(vVOF), v(vPO), v(vVOF)))
    e("s_and_b32 %s, s2, 7" % sXCD)
    e("s_lshr_b32 %s, s2, 3" % sJ)
    e("s_and_b32 %s, %s, 3" % (sHW, sW))
    e("s_and_b32 %s, %s, 15" % (sC, sJ))
    e("s_lshr_b32 %s, %s, 4" % (T[0], sJ))
    e("s_lshl_b32 %s, %s, 2" % (T[0], T[0]))
    e("s_add_u32 %s, %s, %s" % (sTBW, T[0], sHW))
    e("s_and_b32 %s, %s, 7" % (sNB, sJ))
    e("s_lshr_b32 %s, %s, 3" % (T[0], sJ))
    e("s_mov_b32 %s, %s" % (sHEAD, sJ))
    e("s_lshl_b32 %s, %s, 1" % (sTBN, T[0]))
    e("s_and_b32 %s, %s, 1" % (T[0], sW))
    e("s_add_u32 %s, %s, %s" % (sTBN, sTBN, T[0]))
    e("s_lshr_b32 %s, %s, 1" % (sKH, sHW))
    e("s_lshl_b32 %s, %s, 1" % (sNT, sNB))
    e("s_add_u32 %s, %s, %s" % (sNT, sNT, sKH))
    e("s_mov_b32 s62, 0xffff")
    e("s_mov_b32 s63, 0xffff")
    e("s_mov_b32 %s, 0" % sL)
    addr(sLB, None, ARENA, [(sXCD, ARENA_X)])
    e("s_add_u32 %s, %s, 0x%x" % (sFB, sLB, LFL))
    e("s_waitcnt lgkmcnt(0)")
    srd(sWS, 32, WS_SIZE)
    srd(sTMP, 12, 2048 * 1024)
    cm("hand-off tag: ws[0] only tells this launch's flags from an earlier launch's")
    e("s_load_dword %s, s[32:33], 0" % sNONCE)
    if OPT("hold", 0) and not PROFILE:
        e("s_memrealtime s[70:71]")
        e("s_waitcnt lgkmcnt(0)")
        e("s_mov_b32 s68, s70")
    if PROFILE:
        e("s_memrealtime s[70:71]")
        e("s_waitcnt lgkmcnt(0)")
        e("s_mov_b32 s68, s70")
        stamp("s18")


def make_tag():
    e("s_waitcnt lgkmcnt(0)")
    e("s_add_u32 %s, %s, 16" % (sNONCE, sNONCE))
    e("v_mov_b32 %s, %s" % (v(vFV), sNONCE))
    e("v_not_b32 %s, %s" % (v(vFV + 1), v(vFV)))


def qkv_setup(next_layer):
    e("v_and_b32 %s, 15, v0" % v(vPO))
    e("v_lshlrev_b32 %s, 3, %s" % (v(vPO), v(vPO)))
    slot(T[0], FX + (LFL_L if next_layer else 0), [(sTBW, 16)])
    addr(T[1], sLB, XF, [(sTBW, XSTR)])
    addr(T[2], sLB, ST, [(sTBW, 4096)])
    e("v_add_u32 %s, %d, %s" % (v(vCA), CONST, v(vH16)))
    tr_pair(vW0)
    e("v_xor_b32 %s, 64, %s" % (v(vW2), v(vW0)))
    tr_rows(vW1, 64)
    e("v_add_u32 %s, 0x10000, %s" % (v(vW1), v(vW1)))


def p0():
    cm("================ P0 (waves 0-3): x tile -> residual registers, fragments and row statistics")
    p0end, noid, nox, npt = newlab("p0end"), newlab("noid"), newlab("nox"), newlab("npt")
    e("s_cmp_ge_u32 %s, 4" % sW)
    e("s_cbranch_scc1 %s" % nox)
    e("v_and_b32 %s, 31, v0" % v(vPO))
    e("v_lshlrev_b32 %s, 10, %s" % (v(vPO), v(vPO)))
    e("v_add_u32 %s, %s, %s" % (v(vPO), v(vPO), v(vH16)))
    addr(T[0], None, 0, [(sXCD, 262144), (sTBN, 32768), (sNT, 64)])
    for g in range(2):
        e("buffer_load_dwordx4 %s, %s, %s, %s offen offset:%d" % (v(vRES + 4 * g, 4), v(vPO), sTMP, T[0], 32 * g))
    lab(nox)
    e("v_lshlrev_b32 v17, 7, v0")
    for bit, wave in ((1, OPT("w1", 6)), (2, OPT("w2", 5))):
        if not OPT("qft", 3) & bit:
            continue
        nq = newlab("nq")
        e("s_cmp_lg_u32 %s, %d" % (sW, wave))
        e("s_cbranch_scc1 %s" % nq)
        srd(sTMP, 14, 512 * 3072)
        if bit == 1:
            cm("first touch of Wqkv, one line per lane, spread over all workgroups")
            e("s_mul_i32 %s, s2, %d" % (T[0], 48 * 128))
            e("v_mov_b32 v19, v17")
        else:
            cm("one 128-byte column class of Wqkv arrives slowest: the die group requests its lines up front")
            addr(T[0], None, 384, [(sJ, 48 * 1024)])
            e("v_lshlrev_b32 v19, 10, v0")
        e("s_mov_b32 exec_hi, 0xffff")
        e("buffer_load_dword v16, v19, %s, %s offen" % (sTMP, T[0]))
        e("s_mov_b64 exec, -1")
        lab(nq)
    e("s_cmp_lg_u32 %s, 4" % sW)
    e("s_cbranch_scc1 %s" % npt)
    cm("statistics and flag lines receive partial writes: bring them into L2 first")
    addr(T[0], sLB, ST, [(sJ, 11 * 128)])
    e("s_mov_b64 exec, 0x7ff")
    e("buffer_load_dword v18, v17, %s, %s offen sc1" % (sWS, T[0]))
    e("s_mov_b64 exec, -1")
    lab(npt)
    e("s_cmp_ge_u32 %s, 4" % sW)
    e("s_cbranch_scc1 %s" % p0end)
    stamp("s0")
    make_tag()
    e("s_getreg_b32 %s, hwreg(HW_REG_XCC_ID, 0, 4)" % T[7])
    e("s_mov_b32 %s, 1" % sMODE)
    e("v_xor_b32 %s, %s, %s" % (v(vFV + 1), T[7], v(vFV + 1)))
    publish_addr(XF, ST, 0, FX)
    nid = newlab("nid")
    e("s_cmp_lg_u32 %s, 0" % sW)
    e("s_cbranch_scc1 %s" % nid)
    e("s_lshl_b32 %s, s2, 7" % T[8])
    e("s_add_u32 %s, %s, 0x%x" % (T[8], T[8], FLG + FI * 128))
    flag(T[8], None)
    e("s_waitcnt vmcnt(1)")
    e("s_branch %s" % noid)
    lab(nid)
    e("s_waitcnt vmcnt(0)")
    lab(noid)
    stamp("s1")
    for g in range(2):
        e("v_permlane32_swap_b32 %s, %s" % (v(vRES + 4 * g), v(vRES + 4 * g + 2)))
        e("v_permlane32_swap_b32 %s, %s" % (v(vRES + 4 * g + 1), v(vRES + 4 * g + 3)))
    e("s_nop 0")
    unpack(66, vRES, 8)
    publish_x(66, 84, lambda: qkv_setup(False))
    e("s_nop 0")
    e("v_not_b32 %s, %s" % (v(vFV + 1), v(vFV)))
    lab(p0end)
    stamp("s19")


def tr_pair(dst):
    tr_rows(dst, 128)
    e("v_bfe_u32 %s, v0, 3, 1" % v(vPD))
    e("v_lshl_or_b32 %s, %s, 6, %s" % (v(dst), v(vPD), v(dst)))


def tr_rows(dst, rowbytes):
    e("v_bfe_u32 %s, v0, 2, 2" % v(dst))
    e("v_lshrrev_b32 %s, 2, %s" % (v(vPD), v(vH16)))
    e("v_add_u32 %s, %s, %s" % (v(dst), v(dst), v(vPD)))
    e("v_mul_u32_u24 %s, %d, %s" % (v(dst), rowbytes, v(dst)))
    e("v_add_u32 %s, %s, %s" % (v(dst), v(dst), v(vTR)))


def voff_128(dst, row=1024):
    e("v_lshrrev_b32 %s, 3, v0" % v(dst))
    e("v_mul_u32_u24 %s, %d, %s" % (v(dst), row, v(dst)))
    e("v_and_b32 %s, 7, v0" % v(vPD))
    e("v_lshrrev_b32 %s, 2, v0" % v(vPD + 1))
    e("v_and_b32 %s, 4, %s" % (v(vPD + 1), v(vPD + 1)))
    e("v_xor_b32 %s, %s, %s" % (v(vPD), v(vPD), v(vPD + 1)))
    e("v_lshl_or_b32 %s, %s, 4, %s" % (v(dst), v(vPD), v(dst)))


def voff_192(dst):
    for i in range(3):
        e("v_add_u32 %s, %d, v0" % (v(vPD), 64 * i))
        e("v_mul_u32_u24 %s, 5462, %s" % (v(vPD + 1), v(vPD)))
        e("v_lshrrev_b32 %s, 16, %s" % (v(vPD + 1), v(vPD + 1)))
        e("v_mul_u32_u24 %s, %d, %s" % (v(dst + i), 2752 - 192, v(vPD + 1)))
        e("v_lshl_add_u32 %s, %s, 4, %s" % (v(dst + i), v(vPD), v(dst + i)))


def dma1(vo, sg, cls):
    e("buffer_load_dwordx4 %s, %s, %s offen%s lds" % (v(vo), sTMP, sg, " nt" if OPT("wnt", 0) & cls else ""))


def dma_loop(n, body):
    lp = newlab("dl")
    e("s_mov_b32 %s, %d" % (T[2], n))
    lab(lp)
    body()
    e("s_sub_u32 %s, %s, 1" % (T[2], T[2]))
    e("s_cmp_lg_u32 %s, 0" % T[2])
    e("s_cbranch_scc1 %s" % lp)


def dma_w2(piece0, lds0, n, pace=PACE):
    addr(T[0], None, piece0 * 8192, [(sHW, n * 8192), (sNB, 128)])
    addr(T[1], None, lds0, [(sHW, n * 1024)])

    def body():
        e("s_mov_b32 m0, %s" % T[1])
        e("s_add_u32 %s, %s, 1024" % (T[1], T[1]))
        dma1(40, T[0], 4)
        e("s_add_u32 %s, %s, 8192" % (T[0], T[0]))
        if pace:
            e("s_waitcnt vmcnt(%d)" % max(pace, 0))
    dma_loop(n, body)


def dma_w1(n):
    def body():
        for i in range(3):
            e("s_add_u32 m0, %s, %d" % (T[1], 1024 * i))
            e("s_nop 0")
            dma1(44 + i, T[0], 2)
        e("s_add_u32 %s, %s, %d" % (T[0], T[0], 16 * 2752))
        e("s_add_u32 %s, %s, 3072" % (T[1], T[1]))
    dma_loop(n, body)


def wq_begin():
    srd(sTMP, 14, 512 * 3072)
    voff_128(44, 3072)
    e("v_lshrrev_b32 v40, 2, v0")
    e("v_mul_u32_u24 v40, 3072, v40")
    e("v_and_b32 v41, 3, v0")
    e("v_lshl_or_b32 v40, v41, 4, v40")
    cm("odd groups take a K column pair, even groups a V column pair; every group takes one Q tile")
    e("s_and_b32 %s, %s, 1" % (T[0], sC))
    e("s_lshr_b32 %s, %s, 1" % (T[1], sC))
    e("s_mul_i32 %s, %s, -1024" % (T[0], T[0]))
    addr(T[3], T[0], 2048, [(sHW, 2 * 49152), (T[1], 128)])
    addr(T[5], None, 0, [(sHW, 2 * 49152), (sC, 64)])
    e("s_lshl_b32 %s, %s, 12" % (T[4], sHW))
    addr(T[6], None, 65536, [(sHW, 2048)])


def wq_chunk():
    for k in range(4):
        e("s_add_u32 m0, %s, %d" % (T[4], 1024 * k))
        e("s_nop 0")
        e("buffer_load_dwordx4 v44, %s, %s offen lds" % (sTMP, T[3]))
        e("s_add_u32 %s, %s, %d" % (T[3], T[3], 24576 if k < 3 else 24576 + 6 * 49152))
        if k % 2:
            e("s_add_u32 m0, %s, %d" % (T[6], 1024 * (k // 2)))
            e("s_nop 0")
            e("buffer_load_dwordx4 v40, %s, %s offen lds" % (sTMP, T[5]))
            e("s_add_u32 %s, %s, %d" % (T[5], T[5], 49152 if k == 1 else 7 * 49152))
    e("s_add_u32 %s, %s, 16384" % (T[4], T[4]))
    e("s_add_u32 %s, %s, 8192" % (T[6], T[6]))


CSA = 64


def colsum_begin():
    for r in range(48):
        e("v_mov_b32 v%d, 0" % (CSA + r))
    for r in range(4):
        e("v_mov_b32 v%d, 0x3f803f80" % (52 + r))


def colsum2(regs, steps, seconds):
    for k in range(2):
        for i in range(3):
            for h in range(2):
                e("ds_read_b64_tr_b16 %s, v%d offset:%d" % (v(16 + 12 * k + 4 * i + 2 * h, 2), regs[i], k * steps[i] + h * seconds[i]))
    for k in range(6):
        e("s_waitcnt lgkmcnt(%d)" % (10 - 2 * k))
        mfma(CSA + 16 * (k % 3), 52, 16 + 4 * k, CSA + 16 * (k % 3))


def colsum_w1():
    e("v_add_u32 v42, %s, v43" % T[0])
    e("v_add_u32 v48, 64, v42")
    e("v_add_u32 v50, 128, v42")
    colsum2((42, 48, 50), (3072,) * 3, (1536,) * 3)


def colsum_partial():
    e("v_and_b32 v41, 31, v0")
    e("v_lshlrev_b32 v41, 2, v41")
    addr(T[0], None, PART_L, [(sHW, 384)])
    e("v_add_u32 v42, %s, v41" % T[0])
    e("s_nop 7")
    for i in range(3):
        e("ds_write_b32 v42, v%d offset:%d" % (CSA + 16 * i, 128 * i))


def colsum_combine(dst_l):
    e("s_min_u32 %s, %s, 2" % (T[0], sHW))
    e("s_lshl_b32 %s, %s, 7" % (T[0], T[0]))
    e("v_add_u32 v41, %s, v41" % T[0])
    e("v_add_u32 v42, %d, v41" % PART_L)
    for k in range(4):
        e("ds_read_b32 v%d, v42 offset:%d" % (16 + k, 384 * k))
    e("v_add_u32 v41, %d, v41" % dst_l)
    e("s_waitcnt lgkmcnt(0)")
    e("v_add_f32 v16, v16, v17")
    e("v_add_f32 v18, v18, v19")
    e("v_add_f32 v16, v16, v18")
    e("ds_write_b32 v41, v16")


def stats_code(second_ln):
    c = []
    for k in range(1, 16):
        c.append("v_add_f32 %s, %s, %s" % (v(vSTS), v(vSTS), v(vSTS + k)))
    c += ["v_mov_b32 %s, %s" % (v(vSTS + 1), v(vSTS)), "s_nop 1",
          "v_permlane32_swap_b32 %s, %s" % (v(vSTS), v(vSTS + 1)), "s_nop 1",
          "v_mul_f32 %s, %s, %s" % (v(vMU), f32(1.0 / 512), v(vSTS)),
          "v_mul_f32 %s, %s, %s" % (v(vSTS + 1), f32(1.0 / 512), v(vSTS + 1)),
          "v_fma_f32 %s, -%s, %s, %s" % (v(vSTS + 1), v(vMU), v(vMU), v(vSTS + 1)),
          "v_max_f32 %s, 0, %s" % (v(vSTS + 1), v(vSTS + 1)),
          "v_add_f32 %s, %s, %s" % (v(vSTS + 2), f32(1e-5), v(vSTS + 1)),
          "v_rsq_f32 %s, %s" % (v(vR), v(vSTS + 2)), "s_nop 0"]
    if second_ln:
        c += ["v_mul_f32 %s, %s, %s" % (v(vSTS + 2), v(vR), v(vR)),
              "v_mul_f32 %s, %s, %s" % (v(vSTS + 2), v(vSTS + 2), v(vSTS + 1)),
              "v_add_f32 %s, %s, %s" % (v(vSTS + 2), f32(1e-5), v(vSTS + 2)),
              "v_rsq_f32 %s, %s" % (v(vSTS + 2), v(vSTS + 2)), "s_nop 0",
              "v_mul_f32 %s, %s, %s" % (v(vR), v(vR), v(vSTS + 2))]
    return c


def center(acc, cs, p):
    e("v_pk_fma_f32 %s, %s, %s, %s op_sel_hi:[0,1,1] neg_lo:[1,0,0] neg_hi:[1,0,0]" %
      (v(acc + 2 * p, 2), v(vMU, 2), v(cs + 2 * p, 2), v(acc + 2 * p, 2)))


def stash_addr():
    e("s_mul_i32 %s, %s, 24576" % (T[0], sHW))
    e("v_add_u32 v42, %s, %s" % (T[0], v(vL16)))


class Lds:
    def __init__(self):
        self.ops, self.done = [], 0

    def op(self, name, text):
        e(text)
        self.ops.append(name)

    def need(self, name):
        last = max(i for i, n in enumerate(self.ops) if n == name)
        if last < self.done:
            return None
        self.done = last + 1
        return min(15, len(self.ops) - 1 - last)


def qkv_body(isk, done):
    H = 16

    def item(n):
        if n < 32:
            load_frags(T[1], n, 1, lambda j: vA + 4 * j, n % 4 == 0)
        else:
            e("buffer_load_dwordx4 %s, %s, %s, %s offen offset:%d sc1" % (v(vSTS + 4 * (n - 32), 4), v(vL16), sWS, T[2], 1024 * (n - 32)))
    sched = [[ks + DEPTH] if ks + DEPTH < 32 else [] for ks in range(32)]
    for k in range(4):
        sched[3 + 2 * k].append(32 + k)
    order = list(range(DEPTH))
    lds = Lds()

    def rd(ks, i, d):
        base, off, sec = ((vW0, vW2)[i], ks * 2048, 1024) if i < 2 else (vW1, ks * 1024, 512)
        lds.op(("w", i, ks), "ds_read_b64_tr_b16 %s, %s offset:%d" % (v(d, 2), v(base), off))
        lds.op(("w", i, ks), "ds_read_b64_tr_b16 %s, %s offset:%d" % (v(d + 2, 2), v(base), off + sec))

    def wait(name):
        n = lds.need(name)
        if n is not None:
            e("s_waitcnt lgkmcnt(%d)" % n)
    wb1 = lambda ks, i: vWB + (ks % 3) * 12 + 4 * i
    wb2 = lambda ks: vWB + (12 * (ks - H) + 8 if ks < H + 3 else [0, 4, 12, 16, 24, 28, 8, 20, 32][(ks - H - 3) % 9])
    tiles = lambda ks: (2, 0, 1) if ks < H else (0, 1)
    for ks in range(2):
        for i in tiles(ks):
            rd(ks, i, wb1(ks, i))
    fine("q")
    SA, SB, SC = vPO, vPD, vPD + 1
    PK, C0, C1, VC, QC = vA, vA + 16, vA + 32, vA + 48, vSTS

    def addresses():
        e("s_lshr_b32 %s, %s, 1" % (T[0], sC))
        addr(T[4], None, KVF, [(sL, KVF_L), (T[0], 4 * 131072), (sXCD, 16384), (sTBW, 2048)])
        addr(T[2], sLB, KVL, [(T[0], 8192), (sTBW, HSTR)])
        slot(T[6], FQ, [(sC, 8), (sTBW, 1)])
        addr(T[7], None, GFL, [(sL, GFL_L), (sC, 65536), (sXCD, 8192), (sTBW, 1024)])
        addr(T[3], sLB, QF, [(sC, 2048), (sTBW, HSTR)])
        if not isk:
            e("v_and_b32 %s, 31, v0" % v(SA))
            e("v_lshlrev_b32 %s, 2, %s" % (v(SA), v(SA)))
            addr(T[0], None, STAT_L, [(sHW, 256)])
            e("v_add_u32 %s, %s, %s" % (v(SB), T[0], v(SA)))
            e("v_add_u32 %s, %s, %s" % (v(SC), T[0], v(vH16)))
            e("v_add_u32 %s, %d, %s" % (v(SA), CSQ_L, v(SA)))
    sh = [lambda x=x: e(x) for x in capture(addresses) + stats_code(False)]
    sh.append(lambda: e("v_mul_f32 %s, %s, %s" % (v(vRQ), f32(0.25 * 1.4426950408889634), v(vR))))
    if isk:
        for k in range(8):
            sh.append(lambda k=k: lds.op("c", "ds_read_b128 %s, %s offset:%d" % (v(C0 + 4 * k, 4), v(vCA), 32 * k)))
    else:
        sh.append(lambda: lds.op("sw", "ds_write_b32 %s, %s" % (v(SB), v(vMU))))
        sh.append(lambda: lds.op("sw", "ds_write_b32 %s, %s offset:128" % (v(SB), v(vR))))
        for k in range(8):
            sh.append(lambda k=k: lds.op("c", "ds_read_b128 %s, %s offset:%d" % (v(C0 + 4 * k, 4), v(SC), 32 * k)))
        for t in range(2):
            sh.append(lambda t=t: lds.op("c", "ds_read_b32 %s, %s offset:%d" % (v(VC + t), v(SA), 128 * t)))
    nsal = len(capture(addresses))
    pos = 0
    for ks in range(32):
        if ks in (16, 22):
            e("s_barrier")
        newest = max(order.index(n) for n in ([ks, 35] if ks >= 18 else [ks]))
        e("s_waitcnt vmcnt(%d) lgkmcnt(%d)" % (len(order) - 1 - newest, lds.need(("w", 1, ks))))
        if ks in FINEKS:
            fine("q")
        for m, i in enumerate(tiles(ks)):
            c = "0" if ks == 0 else vACC + 16 * i
            if i < 2 and not isk:
                mfma(vACC + 16 * i, vA + 4 * ks, wb1(ks, i), c)
            else:
                mfma(vACC + 16 * i, wb1(ks, i), vA + 4 * ks, c)
            if ks + 2 < 32 and i in tiles(ks + 2):
                rd(ks + 2, i, wb1(ks + 2, i))
            elif ks >= 30 and (i == 0 or ks == 30):
                k2 = H + (ks - 30) * 2 + i
                rd(k2, 2, wb2(k2))
            if m < len(sched[ks]):
                item(sched[ks][m])
                order.append(sched[ks][m])
            if ks >= 10:
                for _ in range(2):
                    if pos < len(sh) and (pos < nsal or ks >= 18):
                        sh[pos]()
                        pos += 1
    assert pos == len(sh), (pos, len(sh))
    cm("remaining Q k-steps with the pair's epilogue underneath")
    fill = [lambda: wait("c")]
    for i in range(4):
        fill.append(lambda i=i: lds.op("qc", "ds_read_b128 %s, %s offset:%d" % (v(QC + 4 * i, 4), v(vCA), 256 + 32 * i)))
    fill.append(lambda: e("s_add_u32 %s, %s, 0x%x" % (T[5], T[4], 0x20000 if isk else 0x40000)))
    fill.append(lambda: e("s_add_u32 %s, %s, 4096" % (T[0], T[2])))
    if isk:
        fill.append(lambda: e("s_add_u32 %s, %s, 0x40000" % (T[8], T[4])))
        fill.append(lambda: e("s_add_u32 %s, %s, 0x60000" % (T[1], T[4])))
    else:
        fill.append(lambda: e("v_and_b32 %s, 0x1ffff, %s" % (v(SC), v(vVOF))))
        fill.append(lambda: e("v_lshrrev_b32 %s, 17, %s" % (v(SB), v(vVOF))))
        fill.append(lambda: e("v_lshl_or_b32 %s, %s, 11, %s" % (v(SC), v(SB), v(SC))))
    local = []
    for t in range(2):
        a = vACC + 16 * t
        for r in range(16):
            if isk:
                fill.append(lambda a=a, t=t, r=r: e("v_fma_f32 %s, -%s, %s, %s" % (v(a + r), v(vMU), v(C0 + 16 * t + r), v(a + r))))
            else:
                fill.append(lambda a=a, t=t, r=r: e("v_fma_f32 %s, -%s, %s, %s" % (v(a + r), v(C0 + r), v(VC + t), v(a + r))))
        for r in range(16):
            fill.append(lambda a=a, r=r: e("v_mul_f32 %s, %s, %s" % (v(a + r), v(vR if isk else C1 + r), v(a + r))))
        for p in range(8):
            fill.append(lambda a=a, t=t, p=p: e("v_cvt_pk_bf16_f32 %s, %s, %s" % (v(PK + 8 * t + p), v(a + 2 * p), v(a + 2 * p + 1))))
        for hh in range(2):
            d = v(PK + 8 * t + 4 * hh, 4)
            if isk:
                g = "%s, %s, %s, %s offen" % (d, v(vK16), sWS, (T[4], T[5], T[8], T[1])[2 * t + hh])
                local.append("buffer_store_dwordx4 %s, %s, %s, %s offen offset:%d" % (d, v(vK16), sWS, (T[2], T[0])[t], 2048 * hh))
            else:
                g = "%s, %s, %s, %s offen offset:%d" % (d, v(vVOF), sWS, (T[4], T[5])[t], 1024 + 256 * hh)
                local.append("buffer_store_dwordx4 %s, %s, %s, %s offen offset:%d" % (d, v(SC), sWS, (T[2], T[0])[t], 1024 + 256 * hh))
            fill.append(lambda g=g: e("buffer_store_dwordx4 " + g + " sc1"))
    fill.append(lambda: lstores(local))
    per = -(-len(fill) // (32 - H))
    aQ = vACC + 32
    for ks in range(H, 32):
        wait(("w", 2, ks + 1 if ks % 2 == 0 and H + 2 < ks < 31 else ks))
        mfma(aQ, wb2(ks), vA + 4 * ks, aQ)
        if ks == H:
            fine("q")
        for n in ([H + 3, H + 4] if ks == H else [H + 5, H + 6] if ks == H + 1 else [ks + 5] if ks + 5 < 32 else []):
            rd(n, 2, wb2(n))
        for f in fill[(ks - H) * per:(ks + 1 - H) * per]:
            f()
    e("s_barrier")
    stamp()
    wait("qc")
    e("s_nop %d" % max(0, 10 - len(fill[(31 - H) * per:])))
    for p in range(8):
        center(aQ, QC, p)
    for p in range(8):
        e("v_pk_mul_f32 %s, %s, %s op_sel_hi:[1,0]" % (v(aQ + 2 * p, 2), v(aQ + 2 * p, 2), v(vRQ, 2)))
    for p in range(8):
        e("v_cvt_pk_bf16_f32 %s, %s, %s" % (v(C1 + p), v(aQ + 2 * p), v(aQ + 2 * p + 1)))
    lstores(["buffer_store_dwordx4 %s, %s, %s, %s offen offset:%d" % (v(C1 + 4 * hh, 4), v(vL16), sWS, T[3], 1024 * hh) for hh in range(2)])
    fine("q")
    for k in range(4):
        e("v_mov_b32 %s, %s" % (v(vSTS + k), v(vFV + k % 2)))
    flag(T[6], 0, local=True)
    e("buffer_store_dwordx4 %s, %s, %s, %s offen sc1" % (v(vSTS, 4), v(vL16), sWS, T[7]))
    e("s_branch %s" % done)


def qkv():
    cm("================ QKV projection")
    hl, done, kb = newlab("qkv_h"), newlab("qkv_done"), newlab("qkv_k")
    e("s_cmp_ge_u32 %s, 4" % sW)
    e("s_cbranch_scc1 %s" % hl)
    l1, l2 = newlab("fx"), newlab("fx")
    e("s_cmp_lg_u32 %s, 0" % sL)
    e("s_cbranch_scc1 %s" % l1)
    mode_poll(True)
    e("v_mov_b32 v60, %s" % sMODE)
    e("v_mov_b32 v61, %d" % MODE_L)
    e("ds_write_b32 v61, v60")
    e("s_waitcnt lgkmcnt(0)")
    e("s_branch %s" % l2)
    lab(l1)
    poll(T[0])
    lab(l2)
    stamp()
    load_frags(T[1], 0, DEPTH, lambda j: vA + 4 * j)
    fine("q")
    e("s_barrier")
    e("s_bitcmp1_b32 %s, 0" % sC)
    e("s_cbranch_scc1 %s" % kb)
    n0, f0 = nstamp[0], nfine[0]
    qkv_body(False, done)
    lab(kb)
    nstamp[0], nfine[0] = n0, f0
    qkv_body(True, done)
    lab(hl)
    h1, h2, lp = newlab("qh1"), newlab("qh2"), newlab("qhl")
    e("s_cmp_lg_u32 %s, 0" % sL)
    e("s_cbranch_scc1 %s" % h1)
    wq_begin()
    if FINE == "h":
        make_tag()
        fine("h")
    dma_loop(2, wq_chunk)
    fine("h")
    if FINE != "h":
        make_tag()
    colsum_begin()
    tr_pair(42)
    e("s_lshl_b32 %s, %s, 12" % (T[0], sHW))
    e("v_add_u32 v42, %s, v42" % T[0])
    e("v_xor_b32 v48, 64, v42")
    tr_rows(50, 64)
    addr(T[0], None, 65536, [(sHW, 2048)])
    e("v_add_u32 v50, %s, v50" % T[0])
    e("s_mov_b32 %s, 0" % sIT)
    lab(lp)
    b1, b2 = newlab("qw"), newlab("qw")
    e("s_cmp_ge_u32 %s, 2" % sIT)
    e("s_cbranch_scc1 %s" % b1)
    wq_chunk()
    e("s_waitcnt vmcnt(12)")
    e("s_branch %s" % b2)
    lab(b1)
    e("s_waitcnt vmcnt(6)")
    e("s_cmp_eq_u32 %s, 2" % sIT)
    e("s_cbranch_scc1 %s" % b2)
    e("s_waitcnt vmcnt(0)")
    lab(b2)
    fine("h")
    colsum2((42, 48, 50), (2048, 2048, 1024), (1024, 1024, 512))
    e("v_add_u32 v42, 16384, v42")
    e("v_add_u32 v48, 16384, v48")
    e("v_add_u32 v50, 8192, v50")
    e("s_add_u32 %s, %s, 1" % (sIT, sIT))
    e("s_cmp_lt_u32 %s, 4" % sIT)
    e("s_cbranch_scc1 %s" % lp)
    colsum_partial()
    fine("h")
    e("s_waitcnt lgkmcnt(0)")
    e("s_barrier")
    fine("h")
    colsum_combine(CSQ_L)
    e("v_mov_b32 v61, %d" % MODE_L)
    e("ds_read_b32 v60, v61")
    cm("park the weight tile in registers for the second layer pair")
    stash_addr()
    for k in range(24):
        e("ds_read_b128 %s, v42 offset:%d" % (v(vSTASH + 4 * k, 4), 1024 * k))
    e("s_waitcnt lgkmcnt(15)")
    e("v_readfirstlane_b32 %s, v60" % sMODE)
    e("s_branch %s" % h2)
    lab(h1)
    e("s_waitcnt lgkmcnt(0)")
    e("s_barrier")
    lab(h2)
    cm("lanes 0-15: Q lines; lanes 16-47: the K or V kilobyte of four head blocks")
    e("v_subrev_u32 v20, 16, v0")
    e("v_lshrrev_b32 v21, 3, v20")
    e("v_lshlrev_b32 v21, 10, v21")
    e("v_lshl_add_u32 v20, v20, 7, v21")
    e("s_lshr_b32 %s, %s, 1" % (T[1], sC))
    e("s_and_b32 %s, %s, 1" % (T[2], sC))
    addr(T[3], None, 32768 + 1024, [(T[1], 8192), (T[2], -1024), (sC, -2048)])
    e("v_add_u32 v20, %s, v20" % T[3])
    e("v_lshlrev_b32 v19, 7, v0")
    e("v_cmp_lt_u32 vcc, 15, v0")
    addr(T[0], sLB, BLK, [(sTBW, HSTR), (sC, 2048)])
    e("v_cndmask_b32 v19, v19, v20, vcc")
    e("s_waitcnt lgkmcnt(0)")
    e("s_barrier")
    e("s_barrier")
    cm("all activation loads are out: bring in the lines the Q/K/V stores will write, so they need no fill")
    e("s_mov_b32 exec_hi, 0xffff")
    e("buffer_load_dword v21, v19, %s, %s offen sc1" % (sWS, T[0]))
    e("s_mov_b64 exec, -1")
    e("s_cmp_lg_u32 %s, 0" % sL)
    e("s_cbranch_scc1 %s" % done)
    cm("this workgroup's slices of b1 and b2; they are staged in LDS after attention")
    srd(sTMP, 22, 2752)
    e("v_and_b32 v19, 31, v0")
    e("v_lshlrev_b32 v19, 1, v19")
    addr(T[0], None, 0, [(sHW, 64), (sC, 192)])
    e("buffer_load_ushort v224, v19, %s, %s offen" % (sTMP, T[0]))
    srd(sTMP, 26, 1024)
    e("s_and_b32 %s, %s, 1" % (T[4], sHW))
    addr(T[0], None, 0, [(T[4], 64), (sNB, 128)])
    e("buffer_load_ushort v225, v19, %s, %s offen" % (sTMP, T[0]))
    lab(done)
    stamp()


def attention():
    cm("================ attention: S^T = K Q^T, P = exp2(S^T), O^T += V^T P via sparse MFMA")
    S, O, Q, KB, VB, IDX, AD, VO, CN = (16, 32), 48, 64, (68, 72), (76, 84), 92, 93, 94, 100
    PF = 100
    KVG, LP, CH, GF, ISS = T[2], T[3], T[4], T[5], T[6]
    cm("rows 16 and 20 of the V operand are ones (row sums for both lane halves); the other spare rows are zero")
    e("v_and_b32 %s, 27, v0" % v(IDX))
    e("v_cmp_eq_u32 vcc, 16, %s" % v(IDX))
    e("v_mov_b32 %s, 0x3f803f80" % v(AD))
    e("s_nop 0")
    for i in range(16):
        e("v_mov_b32 %s, 0" % v(O + i))
        e("v_cndmask_b32 %s, 0, %s, vcc" % (v(VB[0] + i), v(AD)))
    for i in range(8):
        e("v_mov_b32 %s, 0" % v(S[1] + 8 + i))
    e("v_mov_b32 %s, 0xdddddddd" % v(IDX))
    cm("flags a loading wave needs: 2 producer groups x 8 die groups x its 2 token blocks")
    e("v_bfe_u32 %s, v0, 1, 4" % v(PF + 6))
    e("v_lshlrev_b32 %s, 13, %s" % (v(PF + 6), v(PF + 6)))
    e("v_and_b32 %s, 1, v0" % v(PF + 5))
    e("v_lshl_or_b32 %s, %s, 10, %s" % (v(PF + 6), v(PF + 5), v(PF + 6)))
    e("v_mov_b32 %s, %s" % (v(AD), v(vL16)))
    voff_128(VO)
    voff_192(VO + 1)
    e("s_mov_b32 %s, 1" % ISS)
    a1 = newlab("a1")
    e("v_lshlrev_b32 %s, 7, v0" % v(PF))
    cm("first layer pair, waves 1-3: first touch of Wo / W1 / W2 (one line per lane, spread over all workgroups)")
    e("s_mov_b32 s66, %d" % (1376 * 1024))
    e("s_mov_b32 %s, %d" % (T[1], 43 * 128))
    e("s_cmp_eq_u32 %s, 2" % sW)
    e("s_cselect_b64 s[64:65], s[20:21], s[24:25]")
    e("s_cmp_eq_u32 %s, 1" % sW)
    e("s_cselect_b64 s[64:65], s[16:17], s[64:65]")
    e("s_cselect_b32 s66, %d, s66" % (512 * 1024))
    e("s_cselect_b32 %s, %d, %s" % (T[1], 16 * 128, T[1]))
    e("s_and_b32 s65, s65, 0xffff")
    e("s_mov_b32 s67, 0x20000")
    e("s_mul_i32 %s, %s, s2" % (T[1], T[1]))
    e("s_cmp_eq_u32 %s, 0" % sL)
    e("s_cselect_b32 %s, %d, 99" % (T[8], OPT("ftit", 2)))
    e("s_cmp_eq_u32 %s, 0" % sW)
    e("s_cselect_b32 %s, 99, %s" % (T[8], T[8]))
    cm("lines of the W1 rows that are loaded after attention (128-351, 480-511): half per workgroup of a pair")
    srd(sTMP, 20, 512 * 2752)
    e("s_lshr_b32 %s, %s, 4" % (T[0], sJ))
    addr(T[7], None, 128, [(T[0], 128), (sHW, 32)])
    e("s_cmp_eq_u32 %s, 352" % T[7])
    e("s_cselect_b32 %s, 480, %s" % (T[7], T[7]))
    e("s_mul_i32 %s, %s, 2752" % (T[7], T[7]))
    e("s_mul_i32 %s, %s, 192" % (T[0], sC))
    e("s_add_u32 %s, %s, %s" % (T[7], T[7], T[0]))
    e("v_lshrrev_b32 %s, 1, v0" % v(PF + 1))
    e("v_mul_u32_u24 %s, 2752, %s" % (v(PF + 1), v(PF + 1)))
    e("v_and_b32 %s, 1, v0" % v(PF + 2))
    e("v_lshl_add_u32 %s, %s, 7, %s" % (v(PF + 1), v(PF + 2), v(PF + 1)))
    e("s_cmp_lt_u32 %s, 4" % sW)
    e("s_cbranch_scc1 %s" % a1)
    cm("waves 4-7 fetch Q and this die's K/V, and later the other dies' K/V")
    e("v_and_b32 %s, 15, v0" % v(vPO))
    e("v_lshlrev_b32 %s, 3, %s" % (v(vPO), v(vPO)))
    e("s_lshr_b32 %s, %s, 2" % (T[1], sHEAD))
    e("s_lshl_b32 %s, %s, 1" % (T[1], T[1]))
    addr(GF, None, GFL, [(sL, GFL_L), (T[1], 65536), (sXCD, 128), (sHW, 2048)])
    slot(T[0], FQ, [(T[1], 8)])
    addr(T[1], sLB, QF, [(sHEAD, 1024), (sHW, 2 * HSTR)])
    addr(KVG, None, KVF, [(sL, KVF_L), (sHEAD, 131072), (sHW, 4096)])
    addr(T[8], sLB, KVL, [(sHEAD, 2048), (sHW, 2 * HSTR)])
    addr(T[7], None, QL, [(sHW, 2048)])
    e("s_lshl_b32 %s, %s, 12" % (LP, sHW))
    e("s_add_u32 %s, %s, 1" % (CH, sXCD))
    e("s_mov_b32 %s, 0" % ISS)
    cm("last barrier of the projection: its weight tile in LDS is dead from here on")
    e("s_barrier")
    poll(T[0])
    for b in range(2):
        e("s_add_u32 m0, %s, %d" % (LP, 2048 * b))
        e("s_nop 0")
        for i in range(2):
            e("buffer_load_dwordx4 %s, %s, %s offen offset:%d sc1 lds" % (v(vL16), sWS, T[8], 1024 * i))
        e("s_add_u32 m0, %s, %d" % (T[7], 1024 * b))
        e("s_add_u32 %s, %s, %d" % (T[8], T[8], HSTR))
        e("buffer_load_dwordx4 %s, %s, %s offen sc1 lds" % (v(vL16), sWS, T[1]))
        e("s_add_u32 %s, %s, %d" % (T[1], T[1], HSTR))

    def gflag_load():
        e("buffer_load_dwordx2 %s, %s, %s, %s offen sc1" % (v(vPD, 2), v(PF + 6), sWS, GF))

    def kv_issue(n=4):
        e("s_and_b32 %s, %s, 7" % (CH, CH))
        e("s_lshl_b32 %s, %s, 14" % (T[9], CH))
        e("s_add_u32 %s, %s, 16384" % (LP, LP))
        e("s_add_u32 %s, %s, %s" % (T[9], T[9], KVG))
        e("s_mov_b32 m0, %s" % LP)
        e("s_add_u32 %s, %s, 1" % (CH, CH))
        for i in range(n):
            e("buffer_load_dwordx4 %s, %s, %s offen offset:%d sc1%s lds" % (v(vL16), sWS, T[9], 1024 * i, " nt" if OPT("kvnt", 1) else ""))

    def kv_issue_helpers():
        sk, cw = newlab("kvs"), newlab("kvc")
        e("s_cmp_lt_u32 %s, 4" % sW)
        e("s_cbranch_scc1 %s" % cw)
        e("s_cmp_eq_u32 %s, 0" % sIT)
        e("s_cbranch_scc1 %s" % sk)
        kv_issue()
        lab(sk)
        ft = newlab("ft")
        wp = newlab("wp")
        TAIL.extend([wp + ":", "    s_cmp_lg_u32 %s, %d" % (sIT, OPT("woit", 3)), "    s_cbranch_scc1 %s" % sk]
                    + ["    " + x for x in capture(lambda: (srd("s[64:67]", 16, 512 * 1024), addr(T[1], None, 0, [(sJ, 128 * 128), (sW, 32 * 128)])))]
                    + (["    " + x for x in capture(lambda: (
                        e("v_lshrrev_b32 %s, 3, v0" % v(PF + 3)), e("v_mul_u32_u24 %s, %d, %s" % (v(PF + 3), XSTR - 1024, v(PF + 3))),
                        e("v_add_u32 %s, %s, %s" % (v(PF + 3), v(PF + 3), v(PF))),
                        addr(T[0], sLB, OF, [(sW, 2 * XSTR), (sHEAD, 1024)]), e("s_mov_b64 exec, 0xffff"),
                        e("buffer_load_dword %s, %s, %s, %s offen sc1" % (v(PF + 2), v(PF + 3), sWS, T[0])), e("s_mov_b64 exec, -1")))])
                    + ["    s_mov_b32 exec_hi, 0", "    buffer_load_dword %s, %s, s[64:67], %s offen" % (v(PF + 2), v(PF), T[1]),
                       "    s_mov_b64 exec, -1", "    s_branch %s" % sk])
        TAIL.extend([ft + ":", "    s_cmp_lg_u32 %s, %s" % (sIT, T[8]), "    s_cbranch_scc1 %s" % wp,
                     "    buffer_load_dword %s, %s, s[64:67], %s offen" % (v(PF + 2), v(PF), T[1]), "    s_branch %s" % sk])
        TAIL.extend([cw + ":", "    s_cmp_lt_u32 %s, 4" % sIT, "    s_cbranch_scc1 %s" % ft, "    s_mov_b32 exec_hi, 0",
                     "    buffer_load_dword %s, %s, %s, %s offen" % (v(PF + 2), v(PF + 1), sTMP, T[7]),
                     "    s_mov_b64 exec, -1", "    s_add_u32 %s, %s, %d" % (T[7], T[7], 16 * 2752),
                     "    s_branch %s" % sk])
    fine("k")
    e("s_waitcnt vmcnt(0)")
    fine("k")
    gflag_load()
    lab(a1)
    addr(T[0], None, QL, [(sW, 1024)])
    e("v_add_u32 v16, %s, %s" % (T[0], v(vL16)))
    e("s_barrier")
    stamp()

    def rdk(t):
        e("ds_read_b128 %s, %s offset:%d" % (v(KB[t & 1], 4), v(AD), t * 2048))

    def rdv(t):
        e("s_mov_b64 exec, %s" % sMV)
        e("ds_read_b128 %s, %s offset:%d" % (v(VB[t & 1], 4), v(AD), t * 2048 + 1024))
        e("ds_read_b128 %s, %s offset:%d" % (v(VB[t & 1] + 4, 4), v(AD), t * 2048 + 1280))
        e("s_mov_b64 exec, -1")

    def smf(vb, p):
        e("v_smfmac_f32_32x32x32_bf16 %s, %s, %s, %s" % (v(O, 16), v(vb, 4), v(p, 8), v(IDX)))

    def ex(cur, a, b):
        for i in range(a, b):
            e("v_exp_f32 %s, %s" % (v(S[cur] + i), v(S[cur] + i)))

    def tile(t, extra=None):
        cur, nxt = t & 1, (t + 1) & 1
        ex(cur, 0, 2)
        smf(VB[nxt] + 4, S[nxt] + 8)
        rdv(t + 1)
        ex(cur, 2, 6)
        e("s_waitcnt lgkmcnt(2)")
        mfma(S[nxt], KB[nxt], Q, "0")
        rdk(t + 2)
        if extra:
            extra()
        ex(cur, 6, 12)
        smf(VB[cur], S[cur])
        ex(cur, 12, 16)
    e("ds_read_b128 %s, v16" % v(Q, 4))
    rdk(0)
    rdv(0)
    rdk(1)
    e("s_waitcnt lgkmcnt(3)")
    mfma(S[0], KB[0], Q, "0")
    e("s_mov_b32 %s, 0" % sIT)
    e("s_mov_b32 %s, %d" % (sCNT, POLL_LIMIT))
    e("s_nop 8")
    cm("chunk 0 = keys of this die group; the other groups' K/V are requested as soon as their flags arrive")

    def check(blocking):
        blk, back, issue = newlab("chk"), newlab("chkb"), newlab("iss")
        e("s_cmp_eq_u32 %s, 0" % ISS)
        e("s_cbranch_scc1 %s" % blk)
        lab(back)

        def body():
            e("s_waitcnt vmcnt(0)")
            e("v_cmp_eq_u64 vcc, %s, %s" % (v(vPD, 2), v(vFV, 2)))
            e("s_nop 1")
            e("s_cmp_eq_u64 vcc, -1")
            e("s_cbranch_scc1 %s" % issue)
            gflag_load()
            if blocking:
                e("s_sub_u32 %s, %s, 1" % (sCNT, sCNT))
                e("s_cbranch_scc0 %s" % blk)
                e("s_endpgm")
            else:
                e("s_branch %s" % back)

        def go():
            kv_issue()
            kv_issue()
            e("s_mov_b32 %s, 1" % ISS)
            e("s_branch %s" % back)
        NEAR.extend([blk + ":"] + ["    " + x for x in capture(body)] + [issue + ":"] + ["    " + x for x in capture(go)])
    NEAR = []
    loop = newlab("att")
    L.append(".p2align 6")
    lab(loop)
    for t in range(8):
        if t % 2 == 0:
            e("s_setprio %d" % (3 - t // 2))
        if t in (2, 4, 6):
            check(t == 6)
        if t == 6:
            e("s_waitcnt vmcnt(4)")
            e("s_barrier")
        tile(t, kv_issue_helpers if t == 1 else None)
    e("v_add_u32 %s, 16384, %s" % (v(AD), v(AD)))
    e("s_add_u32 %s, %s, 1" % (sIT, sIT))
    e("s_cmp_lt_u32 %s, 6" % sIT)
    e("s_cbranch_scc1 %s" % loop)
    TAIL[:0] = NEAR
    fine("a")
    cm("last two chunks: stream Wo and part of W1 into the dead K/V space, one piece per tile")
    srd(sTMP, 16, 512 * 1024)
    addr(T[0], None, 0, [(sW, 65536), (sNB, 128)])
    e("s_lshl_b32 %s, %s, 13" % (T[1], sW))

    srd("s[64:67]", 24, 1376 * 1024)
    addr(T[2], None, 0, [(sJ, 344 * 128), (sW, 43 * 128)])

    def w2_lines(trip):
        cm("one line per lane: pull this workgroup's share of W2 into the die's L2")
        e("s_mov_b64 exec, 0x3fffff")
        e("buffer_load_dword %s, %s, s[64:67], %s offen" % (v(PF + 2), v(PF), T[2]))
        e("s_mov_b64 exec, -1")
        e("s_add_u32 %s, %s, %d" % (T[2], T[2], 22 * 128))

    def wo_piece(t):
        e("s_add_u32 m0, %s, %d" % (T[1], 1024 * t))
        e("s_nop 0")
        dma1(VO, T[0], 1)
        e("s_add_u32 %s, %s, 8192" % (T[0], T[0]))

    def w1_piece(t):
        if t in (1, 3):
            w2_lines(1)
        for u in ([2 * t, 2 * t + 1] if t < 2 else [t + 2] if t < 4 else []):
            e("s_add_u32 m0, %s, %d" % (T[1], (u // 3) * 22 * 3072 + (u % 3) * 1024))
            e("s_nop 0")
            dma1(VO + 1 + u % 3, T[0], 8)
            if u == 2:
                e("s_add_u32 %s, %s, %d" % (T[0], T[0], 22 * 16 * 2752))
    for trip in range(2):
        for t in range(8):
            if t % 2 == 0:
                e("s_setprio %d" % (3 - t // 2))
            if t == 6 and trip == 0:
                e("s_waitcnt vmcnt(6)")
                e("s_barrier")
            tile(t + 8 * trip, (lambda t=t: wo_piece(t)) if trip == 0 else (lambda t=t: w1_piece(t)))
        if trip == 0:
            addr(T[4], sLB, OF, [(sW, XSTR), (sHEAD, 1024)])
            slot(T[5], FA, [(sW, 32), (sHEAD, 1)])
            srd(sTMP, 20, 512 * 2752)
            addr(T[0], None, 0, [(sW, 16 * 2752), (sC, 192)])
            addr(T[1], None, 65536, [(sW, 3072)])
    e("s_nop 1")
    smf(VB[1] + 4, S[1] + 8)
    e("s_setprio 0")
    e("s_mov_b32 %s, %s" % (T[6], f32(2.0 ** (64 if FORCE_SLOW else -64))))
    e("s_mov_b32 %s, %s" % (T[7], f32(2.0 ** 64)))
    e("s_waitcnt lgkmcnt(0)")
    e("s_nop 7")
    stamp()
    cm("Softmax guard. The loops above used 0 as a stand-in for the row max. That is exact while the row sum")
    cm("stays in [2^-64, 2^64] and the accumulators are finite; otherwise redo this tile with the true max.")
    fin, slow = newlab("att_fin"), newlab("att_slow")
    e("v_cmp_le_f32 %s, %s, %s" % (sM0, T[6], v(O + 8)))
    e("v_cmp_ge_f32 %s, %s, %s" % (sM1, T[7], v(O + 8)))
    e("v_pk_mul_f32 v[18:19], %s, 0 op_sel_hi:[1,0]" % v(O, 2))
    for p in range(1, 4):
        e("v_pk_fma_f32 v[18:19], %s, 0, v[18:19] op_sel_hi:[1,0,1]" % v(O + 2 * p, 2))
    e("s_and_b64 %s, %s, %s" % (sM0, sM0, sM1))
    e("v_cmp_eq_f32 vcc, v18, v19")
    e("s_nop 0")
    e("s_and_b64 %s, %s, vcc" % (sM0, sM0))
    e("s_cmp_eq_u64 %s, -1" % sM0)
    e("s_cbranch_scc0 %s" % slow)
    lab(fin)
    e("v_rcp_f32 v16, %s" % v(O + 8))
    e("s_nop 0")
    for p in range(4):
        e("v_pk_mul_f32 %s, %s, v[16:17] op_sel_hi:[1,0]" % (v(O + 2 * p, 2), v(O + 2 * p, 2)))
    for p in range(4):
        e("v_cvt_pk_bf16_f32 %s, %s, %s" % (v(20 + p), v(O + 2 * p), v(O + 2 * p + 1)))
    lstores(["buffer_store_dwordx4 v[20:23], %s, %s, %s offen" % (v(vL16), sWS, T[4])])
    ns = newlab("ns")
    e("s_cmp_ge_u32 %s, 4" % sW)
    e("s_cbranch_scc1 %s" % ns)
    n512_setup(True)
    lab(ns)
    flag(T[5], 0, local=True)
    e("s_waitcnt vmcnt(1)")
    e("s_barrier")
    keep = L[:]
    del L[:]
    lab(slow)
    cm("true-max softmax for this query tile: pass 1 finds the row max, pass 2 accumulates exp2(s - max)")
    l1, l2 = newlab("slow1"), newlab("slow2")
    addr(T[2], None, KVF, [(sL, KVF_L), (sHEAD, 131072)])
    e("v_mov_b32 %s, 0xff800000" % v(CN))
    e("s_mov_b32 %s, 0" % sIT)
    lab(l1)
    e("buffer_load_dwordx4 %s, %s, %s, %s offen sc1" % (v(KB[0], 4), v(vL16), sWS, T[2]))
    e("s_waitcnt vmcnt(0)")
    mfma(S[0], KB[0], Q, "0")
    e("s_nop 15")
    for i in range(8):
        e("v_max3_f32 %s, %s, %s, %s" % (v(CN), v(S[0] + 2 * i), v(S[0] + 2 * i + 1), v(CN)))
    e("s_add_u32 %s, %s, 2048" % (T[2], T[2]))
    e("s_add_u32 %s, %s, 1" % (sIT, sIT))
    e("s_cmp_lt_u32 %s, 64" % sIT)
    e("s_cbranch_scc1 %s" % l1)
    e("v_mov_b32 %s, %s" % (v(CN + 1), v(CN)))
    e("s_nop 1")
    e("v_permlane32_swap_b32 %s, %s" % (v(CN), v(CN + 1)))
    e("s_nop 1")
    e("v_max_f32 %s, %s, %s" % (v(CN), v(CN), v(CN + 1)))
    e("v_sub_f32 %s, 0, %s" % (v(CN), v(CN)))
    for i in range(1, 16):
        e("v_mov_b32 %s, %s" % (v(CN + i), v(CN)))
    for i in range(16):
        e("v_mov_b32 %s, 0" % v(O + i))
    addr(T[2], None, KVF, [(sL, KVF_L), (sHEAD, 131072)])
    e("s_mov_b32 %s, 0" % sIT)
    lab(l2)
    e("buffer_load_dwordx4 %s, %s, %s, %s offen sc1" % (v(KB[0], 4), v(vL16), sWS, T[2]))
    e("s_mov_b64 exec, %s" % sMV)
    e("buffer_load_dwordx4 %s, %s, %s, %s offen offset:1024 sc1" % (v(VB[0], 4), v(vL16), sWS, T[2]))
    e("buffer_load_dwordx4 %s, %s, %s, %s offen offset:1280 sc1" % (v(VB[0] + 4, 4), v(vL16), sWS, T[2]))
    e("s_mov_b64 exec, -1")
    e("s_waitcnt vmcnt(0)")
    mfma(S[0], KB[0], Q, CN)
    e("s_nop 15")
    for i in range(16):
        e("v_exp_f32 %s, %s" % (v(S[0] + i), v(S[0] + i)))
    e("s_nop 1")
    smf(VB[0], S[0])
    smf(VB[0] + 4, S[0] + 8)
    e("s_nop 15")
    e("s_add_u32 %s, %s, 2048" % (T[2], T[2]))
    e("s_add_u32 %s, %s, 1" % (sIT, sIT))
    e("s_cmp_lt_u32 %s, 64" % sIT)
    e("s_cbranch_scc1 %s" % l2)
    e("s_branch %s" % fin)
    TAIL.extend(L)
    L[:] = keep
    stamp()


def ffn1_setup():
    e("v_and_b32 %s, 15, v0" % v(vPO))
    e("v_lshlrev_b32 %s, 3, %s" % (v(vPO), v(vPO)))
    slot(T[0], FO, [(sTBW, 16)])
    addr(T[1], sLB, X1F, [(sTBW, XSTR)])
    addr(T[2], sLB, ST1, [(sTBW, 4096)])
    e("v_add_u32 %s, %d, %s" % (v(vCA), CONST, v(vH16)))
    tr_rows(vW2, 192)
    e("v_add_u32 %s, 0x10000, %s" % (v(vW0), v(vW2)))
    e("v_add_u32 %s, %d, %s" % (v(vW1), 21 * 3072, v(vW0)))


def n512_setup(wo):
    J = 16 if wo else 39
    AK, AS = vACC, vACC + 16
    if not wo:
        addr(T[0], None, CONST + 384, [(sKH, 512)])
        e("v_add_u32 %s, %s, %s" % (v(vPO), T[0], v(vH16)))
        for i in range(4):
            e("ds_read_b128 %s, %s offset:%d" % (v(AS + 4 * i, 4), v(vPO), 32 * i))
    unpack(AK, vRES, 8)
    tr_rows(vW0, 128)
    e("v_bfe_u32 %s, v0, 3, 1" % v(vPD))
    e("v_xor_b32 %s, %s, %s" % (v(vPD), sKH, v(vPD)))
    e("v_lshl_or_b32 %s, %s, 6, %s" % (v(vW0), v(vPD), v(vW0)))
    e("s_mul_i32 %s, %s, %d" % (T[0], sKH, J * 2048))
    e("v_add_u32 %s, %s, %s" % (v(vW0), T[0], v(vW0)))
    e("v_xor_b32 %s, 64, %s" % (v(vW1), v(vW0)))
    if not wo:
        e("v_add_u32 %s, 0x10000, %s" % (v(vW2), v(vW0)))
        e("v_add_u32 %s, 0x10000, %s" % (v(vW3), v(vW1)))
    if wo:
        e("v_and_b32 %s, 15, v0" % v(vPO))
        slot(T[0], FA, [(sTBN, 32), (sKH, 16)])
        addr(T[1], sLB, OF, [(sTBN, XSTR), (sKH, 16384)])
    else:
        e("v_and_b32 %s, 7, v0" % v(vPO))
        slot(T[0], FH, [(sTBN, 16), (sKH, 7)])
        addr(T[1], sLB, HF, [(sTBN, HSTR), (sKH, 43 * 1024)])
    e("v_lshlrev_b32 %s, 3, %s" % (v(vPO), v(vPO)))
    if not wo:
        e("s_waitcnt lgkmcnt(0)")
        for p in range(8):
            e("v_pk_add_f32 %s, %s, %s" % (v(AK + 2 * p, 2), v(AK + 2 * p, 2), v(AS + 2 * p, 2)))


def n512(kind):
    wo = kind == "wo"
    ph = "o" if wo else "g"
    cm("================ %s" % ("output projection + residual" if wo else "MLP down projection + residual"))
    NS, J = (16, 16) if wo else (43, 39)
    ND = OPT("nd", 10 if wo else 13)
    AK, AS = vACC, vACC + 16
    hl, done = newlab("n_h"), newlab("n_done")
    e("s_cmp_ge_u32 %s, 4" % sW)
    e("s_cbranch_scc1 %s" % hl)
    if not wo:
        e("s_barrier")

    def rd(j, i):
        jj = j % J
        base, off = ((vW0, vW1)[i], jj * 2048) if jj < 32 else ((vW2, vW3)[i], (jj - 32) * 2048)
        d = vWB + (j % 3) * 8 + 4 * i
        e("ds_read_b64_tr_b16 %s, %s offset:%d" % (v(d, 2), v(base), off))
        e("ds_read_b64_tr_b16 %s, %s offset:%d" % (v(d + 2, 2), v(base), off + 1024))
    for j in range(2):
        for i in range(2):
            rd(j, i)
    poll(T[0])
    stamp()
    areg = lambda j: vA + 4 * (j % 32)
    load_frags(T[1], 0, ND, areg)
    fine(ph)

    def late_addresses():
        e("s_and_b32 %s, %s, 1" % (T[2], sW))
        if wo:
            addr(T[0], None, 0, [(T[2], 4096), (sKH, 32768)])
            e("s_xor_b32 %s, %s, 32768" % (T[3], T[0]))
            publish_addr(X1F, ST1, 0, FO)
        else:
            addr(T[0], None, 98304, [(T[2], 4096), (sKH, 8192)])
            e("s_xor_b32 %s, %s, 8192" % (T[3], T[0]))
            publish_addr(XF, ST, LFL_L * 8, FX)
        e("v_add_u32 %s, %s, %s" % (v(vPO), T[0], v(vL16)))
        e("v_add_u32 %s, %s, %s" % (v(vPD), T[3], v(vL16)))
    sh = capture(late_addresses)
    for j in range(NS):
        issued = min(NS, ND + j)
        if not wo and j == J - 2:
            e("s_barrier")
        if j < NS - 1:
            last2 = j == NS - 2
            e("s_waitcnt vmcnt(%d) lgkmcnt(%d)" % (0 if last2 else issued - j - 1, 0 if last2 else 4))
        if j in ((0, 4, 8, 15) if wo else (0, 11, 22, 42)):
            fine(ph)
        seq = [(j, 0), (j, 1)] if j < NS - 2 else [(j, 1), (j + 1, 1)] if j == NS - 2 else [(j - 1, 0), (j, 0)]
        for m, (jj, i) in enumerate(seq):
            acc = AK + 16 * i
            mfma(acc, vWB + (jj % 3) * 8 + 4 * i, areg(jj), "0" if (jj == 0 and i == 1) else acc)
            if j + 2 < NS:
                rd(j + 2, i)
            if m == 0 and ND + j < NS:
                load_frags(T[1], ND + j, 1, areg, False)
            if j >= 2:
                g = (j - 2) * 2 + m
                for x in sh[2 * g:2 * g + 2]:
                    e(x)
        if j == (8 if wo else NS - J - 1):
            e("s_barrier")
    assert len(sh) <= 4 * (NS - 2)
    e("s_nop 9")
    for i in range(4):
        e("ds_write_b128 %s, %s offset:%d" % (v(vPO), v(AS + 4 * i, 4), 1024 * i))
    e("s_waitcnt lgkmcnt(0)")
    e("s_barrier")
    stamp()
    for i in range(4):
        e("ds_read_b128 %s, %s offset:%d" % (v(AS + 4 * i, 4), v(vPD), 1024 * i))
    for i in range(4):
        e("s_waitcnt lgkmcnt(%d)" % (3 - i))
        for p in (2 * i, 2 * i + 1):
            e("v_pk_add_f32 %s, %s, %s" % (v(AK + 2 * p, 2), v(AK + 2 * p, 2), v(AS + 2 * p, 2)))
    for p in range(8):
        e("v_cvt_pk_bf16_f32 %s, %s, %s" % (v(vRES + p), v(AK + 2 * p), v(AK + 2 * p + 1)))
    if wo:
        publish_x(AK, 20, ffn1_setup)
    else:
        last = newlab("last")
        e("s_cmp_lg_u32 %s, 0" % sL)
        e("s_cbranch_scc1 %s" % last)
        publish_x(AK, 20, lambda: qkv_setup(True))
        e("s_branch %s" % done)
        lab(last)
        srd(sTMP, 28, 2048 * 1024)
        e("v_and_b32 v16, 31, v0")
        e("v_lshlrev_b32 v16, 10, v16")
        e("v_add_u32 v16, v16, %s" % v(vH16))
        addr(T[0], None, 0, [(sXCD, 262144), (sTBN, 32768), (sNT, 64)])
        for g in range(2):
            e("v_permlane32_swap_b32 %s, %s" % (v(vRES + 4 * g), v(vRES + 4 * g + 2)))
            e("v_permlane32_swap_b32 %s, %s" % (v(vRES + 4 * g + 1), v(vRES + 4 * g + 3)))
        for g in range(2):
            e("buffer_store_dwordx4 %s, v16, %s, %s offen offset:%d" % (v(vRES + 4 * g, 4), sTMP, T[0], 32 * g))
    e("s_branch %s" % done)
    lab(hl)
    if wo:
        voff_192(44)
        e("s_lshl_b32 %s, %s, 2" % (T[3], sHW))
        e("s_min_u32 %s, %s, 10" % (T[3], T[3]))
        addr(T[0], None, 8 * 16 * 2752, [(T[3], 16 * 2752), (sC, 192)])
        addr(T[1], None, 65536 + 8 * 3072, [(T[3], 3072)])
        dma_w1(2)
        e("s_mov_b32 %s, %s" % (T[3], T[0]))
        e("s_mov_b32 %s, %s" % (T[4], T[1]))
        w0, w1, w2 = newlab("wcs"), newlab("wcs"), newlab("wcs")
        e("s_cmp_lg_u32 %s, 0" % sL)
        e("s_cbranch_scc1 %s" % w0)
        tr_rows(43, 192)
        colsum_begin()
        addr(T[0], None, 65536, [(sHW, 2 * 3072)])
        colsum_w1()
        addr(T[0], None, 65536 + 22 * 3072, [(sHW, 2 * 3072)])
        colsum_w1()
        lab(w0)
        e("s_mov_b32 %s, %s" % (T[0], T[3]))
        e("s_mov_b32 %s, %s" % (T[1], T[4]))
        e("s_barrier")
        fine("v")
        dma_w1(2)
        e("s_barrier")
        fine("v")
        e("s_cmp_lg_u32 %s, 3" % sHW)
        e("s_cbranch_scc1 %s" % w1)
        addr(T[0], None, 30 * 16 * 2752, [(sC, 192)])
        e("s_mov_b32 %s, %d" % (T[1], 58 * 1024))
        dma_w1(2)
        lab(w1)
        e("s_cmp_lg_u32 %s, 0" % sL)
        e("s_cbranch_scc1 %s" % done)
        cm("own late k-steps: 8-11 | 12-15 | 16-19 | 20-21 and 30-31")
        e("s_and_b32 %s, %s, 1" % (T[4], sHW))
        addr(T[0], None, 65536 + 8 * 3072, [(sHW, 4 * 3072)])
        e("s_add_u32 %s, %s, %d" % (T[3], T[0], 2 * 3072))
        e("s_cmp_eq_u32 %s, 3" % sHW)
        e("s_cselect_b32 %s, %d, %s" % (T[3], 58 * 1024, T[3]))
        e("s_waitcnt vmcnt(0)")
        colsum_w1()
        e("s_mov_b32 %s, %s" % (T[0], T[3]))
        colsum_w1()
        colsum_partial()
        e("v_lshlrev_b32 v47, 16, v224")
        addr(T[0], None, B1_L, [(sHW, 128)])
        e("v_add_u32 v42, %s, v41" % T[0])
        e("ds_write_b32 v42, v47")
        e("v_lshlrev_b32 v49, 16, v225")
        addr(T[0], None, CONST + 384, [(T[4], 512)])
        e("v_add_u32 v42, %s, v41" % T[0])
        e("ds_write_b32 v42, v49")
    else:
        e("s_waitcnt vmcnt(0)")
        fine("w")
        e("s_barrier")
        fine("w")
        e("s_lshr_b32 %s, %s, 1" % (T[3], sHW))
        e("s_and_b32 %s, %s, 1" % (T[4], sHW))
        addr(T[0], None, 78 * 8192, [(T[3], 86 * 8192), (T[4], 4 * 8192), (sNB, 128)])
        addr(T[1], None, 0, [(T[3], 78 * 1024), (T[4], 4096)])
        e("s_barrier")
        for k in range(4):
            e("s_add_u32 m0, %s, %d" % (T[1], 1024 * k))
            e("s_nop 0")
            dma1(40, T[0], 4)
            e("s_add_u32 %s, %s, 8192" % (T[0], T[0]))
        e("s_waitcnt vmcnt(0)")
        e("s_barrier")
        stash_addr()
        e("s_barrier")
        e("s_cmp_lg_u32 %s, 0" % sL)
        e("s_cbranch_scc1 %s" % done)
        for k in range(24):
            e("ds_write_b128 v42, %s offset:%d" % (v(vSTASH + 4 * k, 4), 1024 * k))
    lab(done)
    stamp()


def ffn1():
    cm("================ MLP up projection + GELU")
    hl, done = newlab("f1_h"), newlab("f1_done")
    e("s_cmp_ge_u32 %s, 4" % sW)
    e("s_cbranch_scc1 %s" % hl)
    idle = newlab("f1_idle")
    e("s_cmp_eq_u32 %s, 15" % sC)
    e("s_cbranch_scc1 %s" % idle)
    setup = newlab("f1_setup")
    TAIL.extend([idle + ":"] + ["    s_barrier"] * 4 + ["    s_branch " + setup])

    lds = Lds()

    def rd(ks, i):
        d = vWB + (ks % 3) * 12 + 4 * i
        base, off = (vW0, ks * 3072) if ks < 21 else (vW1, (ks - 21) * 3072) if ks < 30 else (vW2, 58 * 1024 + (ks - 30) * 3072)
        lds.op(("w", ks), "ds_read_b64_tr_b16 %s, %s offset:%d" % (v(d, 2), v(base), off + 64 * i))
        lds.op(("w", ks), "ds_read_b64_tr_b16 %s, %s offset:%d" % (v(d + 2, 2), v(base), off + 64 * i + 1536))

    def wait(name):
        n = lds.need(name)
        if n is not None:
            e("s_waitcnt lgkmcnt(%d)" % n)
    for ks in range(2):
        for i in range(3):
            rd(ks, i)
    poll(T[0])
    stamp()

    def item(n):
        if n < 32:
            load_frags(T[1], n, 1, lambda j: vA + 4 * j, n % 4 == 0)
        else:
            e("buffer_load_dwordx4 %s, %s, %s, %s offen offset:%d sc1" % (v(vSTS + 4 * (n - 32), 4), v(vL16), sWS, T[2], 1024 * (n - 32)))
    sched = [[ks + DEPTH] if ks + DEPTH < 32 else [] for ks in range(32)]
    for k in range(4):
        sched[1 + k].append(32 + k)
    order = list(range(DEPTH))
    for n in range(DEPTH):
        item(n)
    fine("f")
    c0 = -2.0 * 1.4426950408889634 * 0.7978845608028654
    GC = vSTS + 4

    def early():
        addr(T[4], sLB, HF, [(sTBW, HSTR), (sC, 6144)])
        e("s_add_u32 %s, %s, 4096" % (T[5], T[4]))
        slot(T[6], FH, [(sTBW, 16), (sC, 1)])
    S0 = OPT("s0", 11)
    mid = stats_code(True) + ["v_mul_f32 %s, %s, %s" % (v(vMU), v(vMU), v(vR)), "v_mov_b32 %s, %s" % (v(GC), f32(c0)),
                              "v_mov_b32 %s, %s" % (v(GC + 1), f32(c0 * 0.044715)), "v_mov_b32 %s, 1.0" % v(GC + 2)]
    sh = [(5, lambda x=x: e(x)) for x in capture(early)] + [(S0, lambda x=x: e(x)) for x in mid]
    cm("bias' = b1 - mean*rstd*colsum is formed under the last MFMAs, in dead activation registers")
    rdc, fmc = [], []
    for t in range(3):
        rdc.append([(max(12, 8 * t + 8), lambda t=t, k=k: lds.op(("c", t), "ds_read_b128 %s, %s offset:%d" % (
            v(16 + 32 * t + 4 * k, 4), v(vCA), 512 + 512 * (k // 4) + t * 128 + 32 * (k % 4)))) for k in range(8)])
        fmc.append([(0, lambda t=t: wait(("c", t)))] + [(0, lambda t=t, r=r: e("v_fma_f32 %s, -%s, %s, %s" % (
            v(32 + 32 * t + r), v(vMU), v(16 + 32 * t + r), v(32 + 32 * t + r)))) for r in range(16)])
    mix = lambda a, b: [x for k in range(max(len(a), len(b))) for x in a[2 * k:2 * k + 2] + b[k:k + 1]]
    sh += rdc[0] + mix(fmc[0], rdc[1]) + fmc[1][:9] + mix(fmc[1][9:], rdc[2]) + fmc[2]
    pos = 0
    for ks in range(32):
        if ks in (6, 12, 22):
            e("s_barrier")
        newest = max(order.index(n) for n in ([ks, 35] if ks >= S0 else [ks]))
        lg = lds.need(("w", ks))
        e("s_waitcnt vmcnt(%d)%s" % (len(order) - 1 - newest, "" if lg is None else " lgkmcnt(%d)" % lg))
        if ks in FINEKS:
            fine("f")
        for i in range(3):
            mfma(vACC + 16 * i, vWB + (ks % 3) * 12 + 4 * i, vA + 4 * ks, "0" if ks == 0 else vACC + 16 * i)
            if ks + 2 < 32:
                rd(ks + 2, i)
            if i < len(sched[ks]):
                item(sched[ks][i])
                order.append(sched[ks][i])
            for _ in range(OPT("fp", 2) if ks < 30 else 5):
                if pos < len(sh) and ks >= sh[pos][0]:
                    sh[pos][1]()
                    pos += 1
    for x in sh[pos:]:
        x[1]()
    stamp()
    e("s_nop %d" % max(0, 9 - len(sh[pos:])))
    Z, P = 120, vWB
    for t in range(3):
        acc, b1 = vACC + 16 * t, 32 + 32 * t
        for p in range(8):
            e("v_pk_fma_f32 %s, %s, %s, %s op_sel_hi:[1,0,1]" %
              (v(acc + 2 * p, 2), v(acc + 2 * p, 2), v(vR, 2), v(b1 + 2 * p, 2)))
        for p in range(8):
            e("v_pk_mul_f32 %s, %s, %s" % (v(Z + 2 * p, 2), v(acc + 2 * p, 2), v(acc + 2 * p, 2)))
        for p in range(8):
            e("v_pk_fma_f32 %s, %s, %s, %s op_sel:[0,1,0] op_sel_hi:[1,1,0]" %
              (v(Z + 2 * p, 2), v(Z + 2 * p, 2), v(GC, 2), v(GC, 2)))
        for p in range(8):
            e("v_pk_mul_f32 %s, %s, %s" % (v(Z + 2 * p, 2), v(Z + 2 * p, 2), v(acc + 2 * p, 2)))
        for i in range(16):
            e("v_exp_f32 %s, %s" % (v(Z + i), v(Z + i)))
        for p in range(8):
            e("v_pk_add_f32 %s, %s, %s op_sel_hi:[1,0]" % (v(Z + 2 * p, 2), v(Z + 2 * p, 2), v(GC + 2, 2)))
        for i in range(16):
            e("v_rcp_f32 %s, %s" % (v(Z + i), v(Z + i)))
        for p in range(8):
            e("v_pk_mul_f32 %s, %s, %s" % (v(acc + 2 * p, 2), v(acc + 2 * p, 2), v(Z + 2 * p, 2)))
        for p in range(8):
            e("v_cvt_pk_bf16_f32 %s, %s, %s" % (v(P + 8 * t + p), v(acc + 2 * p), v(acc + 2 * p + 1)))
        lstores(["buffer_store_dwordx4 %s, %s, %s, %s offen offset:%d" %
                 (v(P + 8 * t + 4 * hh, 4), v(vL16), sWS, T[4 + (2 * t + hh) // 4], ((2 * t + hh) % 4) * 1024) for hh in range(2)])
        if t == 0:
            e("s_barrier")
        if t != 1:
            fine("f")
    lab(setup)
    n512_setup(False)
    e("s_cmp_eq_u32 %s, 15" % sC)
    e("s_cbranch_scc1 %s" % done)
    flag(T[6], 0, local=True)
    e("s_branch %s" % done)
    lab(hl)
    h1 = newlab("fh1")
    voff_128(40)
    srd(sTMP, 24, 1376 * 1024)
    fine("v")
    e("s_waitcnt vmcnt(0) lgkmcnt(0)")
    fine("v")
    e("s_barrier")
    fine("v")
    e("s_cmp_lg_u32 %s, 0" % sL)
    e("s_cbranch_scc1 %s" % h1)
    colsum_combine(CS1_L)
    e("s_waitcnt lgkmcnt(0)")
    lab(h1)
    e("s_barrier")
    E0 = OPT("e0", 2)
    if E0:
        dma_w2(0, 0, E0, OPT("e0p", 1) or -1)
    e("s_barrier")
    fine("w")
    dma_w2(86, 78 * 1024, 7, None)
    dma_w2(4 * E0, 4 * E0 * 1024, 14 - E0, None)
    dma_w2(86 + 28, (78 + 28) * 1024, 6, None)
    fine("w")
    e("s_barrier")
    fine("w")
    dma_w2(54, 54 * 1024, 6)
    dma_w2(86 + 50, (78 + 50) * 1024, 7)
    fine("w")
    lab(done)
    stamp()


def epilogue():
    e("s_add_u32 %s, %s, 1" % (sL, sL))
    e("s_add_u32 %s, %s, %d" % (sFB, sFB, LFL_L * 8))
    e("s_cmp_lt_u32 %s, 2" % sL)
    e("s_cbranch_scc1 L_layer")
    if PROFILE:
        e("s_memrealtime s[22:23]")
        e("s_waitcnt lgkmcnt(0)")
        stamp("s23")
        e("s_lshl_b32 %s, s2, 3" % T[0])
        e("s_add_u32 %s, %s, %s" % (T[0], T[0], sW))
        e("s_lshl_b32 %s, %s, 8" % (T[0], T[0]))
        e("s_add_u32 %s, %s, 0x%x" % (T[0], T[0], TSB))
        e("s_mov_b64 exec, 1")
        for i, r in enumerate([68, 18, 19] + list(range(STAMP0, STAMP0 + 30)) + [22, 23, 0, 1]):
            e("v_mov_b32 v16, s%d" % r)
            e("buffer_store_dword v16, off, %s, %s offset:%d" % (sWS, T[0], 4 * i))
        e("s_mov_b64 exec, 0xff")
        e("v_lshlrev_b32 v16, 2, v0")
        e("buffer_store_dword v5, v16, %s, %s offen offset:148" % (sWS, T[0]))
        e("s_mov_b64 exec, -1")
    if "--dbg" in sys.argv:
        sk = newlab("dbg")
        e("s_or_b32 %s, s2, %s" % (T[0], sW))
        e("s_cmp_lg_u32 %s, 0" % T[0])
        e("s_cbranch_scc1 %s" % sk)
        srd(sTMP, 30, 256)
        e("s_mov_b64 exec, 1")
        for i, r in enumerate([19, 72, 73, 74, 75, 76, 77, 80, 83, 86, 89, 90, 91, 95, 98, 101]):
            e("s_sub_u32 %s, s%d, s18" % (T[0], r))
            e("v_mov_b32 v16, %s" % T[0])
            e("buffer_store_dword v16, off, %s, 0 offset:%d" % (sTMP, 4 * i))
        e("s_mov_b64 exec, -1")
        lab(sk)
    if OPT("hold", 0):
        hl = newlab("hold")
        lab(hl)
        e("s_memrealtime s[70:71]")
        e("s_waitcnt lgkmcnt(0)")
        e("s_sub_u32 s70, s70, s68")
        e("s_cmp_lt_u32 s70, %d" % OPT("hold", 0))
        e("s_cbranch_scc1 %s" % hl)
    cm("advance the hand-off tag for the next launch")
    e("s_or_b32 %s, s2, %s" % (T[0], sW))
    e("s_cmp_lg_u32 %s, 0" % T[0])
    e("s_cbranch_scc1 L_end")
    e("s_mov_b64 exec, 1")
    e("buffer_store_dword %s, off, %s, 0" % (v(vFV), sWS))
    lab("L_end")
    e("s_endpgm")
    L.extend(TAIL)


HEADER = open(f"cdna_kernels/{NAME}.s.ref").read().split("; Override launch")[0]


OVERVIEW = """;
; Generated by gen/gen.py (hand-written generator). One persistent launch, one 8-wave workgroup per CU.
; Hand-offs: payload stores, vmcnt wait, then an 8-byte flag {tag, ~tag}; tag = ws[0] + 16 differs per launch.
;   Every workgroup reports the die it runs on. If a die group shares one die its hand-offs use plain stores
"""


def main():
    prologue()
    p0()
    lab("L_layer")
    qkv()
    attention()
    n512("wo")
    ffn1()
    n512("f2")
    epilogue()
    k = NAME + "_kernel"
    out = HEADER
    out += "; @launch grid=(256,1,1) block=(512,1,1) lds=%d\n" % LDS_BYTES
    out += OVERVIEW
    out += '.amdgcn_target "amdgcn-amd-amdhsa--gfx950"\n.text\n.globl %s\n.p2align 8\n.type %s,@function\n%s:\n' % (k, k, k)
    out += "\n".join(L) + "\n"
    out += """.section .rodata,"a"
.p2align 6
.amdhsa_kernel %s
  .amdhsa_next_free_vgpr 256
  .amdhsa_next_free_sgpr 102
  .amdhsa_accum_offset 256
  .amdhsa_group_segment_fixed_size 0
  .amdhsa_kernarg_size 88
  .amdhsa_user_sgpr_count 2
  .amdhsa_user_sgpr_kernarg_segment_ptr 1
  .amdhsa_system_sgpr_workgroup_id_x 1
.end_amdhsa_kernel
""" % k
    open(OUT, "w").write(out)
    import subprocess
    r = subprocess.run([sys.executable, "hazard.py", OUT], capture_output=True, text=True).stdout
    if not r.strip().endswith("violations 0"):
        print(r)


main()
```

```python
import struct
import sys

NAME = "interleave_layers__softmax_full_mha__mixer_channel_mlp__prompt"
PROFILE = "--prof" in sys.argv
CLK = "s_memrealtime" if "--rt" in sys.argv else "s_memtime"
FORCE_SLOW = "--slow" in sys.argv
FORCE_GLOBAL = "--global" in sys.argv
OUT = [a for a in sys.argv[1:] if not a.startswith("--")]
OUT = OUT[0] if OUT else f"cdna_kernels/{NAME}.s"


def OPT(name, default):
    a = [x.split("=")[1] for x in sys.argv if x.startswith("--%s=" % name)]
    return int(a[0]) if a else default


def f32(x):
    return "0x%08x" % struct.unpack("<I", struct.pack("<f", x))[0]


WS_SIZE = 0x10000000
FLG = 0x100000
FI = 0
GFL, GFL_L = 0xA00000, 0x100000
KVF, KVF_L = 0x200000, 0x400000
ARENA, ARENA_X = 0x1000000, 0x200000
XSTR, HSTR = 33 * 1024, 97 * 1024
XF, OF, BLK, ST, LFL = 0, 0x48000, 0x90000, 0x158000, 0x160000
X1F, ST1, HF, QF, KVL = XF, ST, BLK, BLK, BLK + 32768
FX, FQ, FA, FO, FH, LFL_L = 0, 128, 256, 512, 640, 768
TSB = 0x4000000
DEPTH = OPT("depth", 10)
PACE = OPT("pace", 5)
RED = 140 * 1024
CONST = 156 * 1024
CSQ_L, CS1_L, B1_L, STAT_L, PART_L = CONST, CONST + 512, CONST + 1024, CONST + 1536, CONST + 2560
MODE_L = B1_L + 400
LDS_BYTES = 160 * 1024
sWS, sTMP = "s[4:7]", "s[8:11]"
sW, sNONCE, sL, sLB, sFB = "s34", "s35", "s36", "s37", "s38"
sXCD, sJ, sTBW, sC, sTBN, sNB, sKH, sNT, sHEAD, sQB = ("s%d" % i for i in range(39, 49))
sHW = "s49"
T = ["s%d" % i for i in range(50, 60)]
sCNT, sIT = "s60", "s61"
sMV = "s[62:63]"
sM0, sM1 = "s[64:65]", "s[66:67]"
sMODE = "s3"
STAMP0 = 72
vLANE, vL16, vFV, vPO, vT5, vPD = 0, 1, 2, 4, 5, 6
vRES = 8
vA, vACC, vWB, vSTS = 16, 144, 192, 228
vW0, vW1, vMU, vW2, vR, vW3, vRQ, vCA, vTR, vK16, vVOF, vH16 = 244, 245, 246, 247, 248, 249, 250, 251, 252, 253, 254, 255
vSTASH = 128
QL = 128 * 1024
POLL_LIMIT = 1 << 16

L = []
TAIL = []
uid = [0]
nstamp = [0]


def e(s):
    L.append("    " + s)


def lab(n):
    L.append(n + ":")


def cm(s):
    L.append("    ; " + s)


def v(i, n=1):
    return "v%d" % i if n == 1 else "v[%d:%d]" % (i, i + n - 1)


def capture(f):
    n = len(L)
    f()
    out = [x.strip() for x in L[n:]]
    del L[n:]
    return out


def newlab(p):
    uid[0] += 1
    return "L_%s_%d" % (p, uid[0])


def stamp(fixed=None):
    if not PROFILE:
        return
    e(CLK + " s[70:71]")
    e("s_waitcnt lgkmcnt(0)")
    if fixed:
        e("s_mov_b32 %s, s70" % fixed)
        return
    e("s_mul_i32 s69, %s, 15" % sL)
    e("s_add_u32 m0, s69, %d" % nstamp[0])
    e("s_nop 1")
    e("s_movreld_b32 s%d, s70" % STAMP0)
    nstamp[0] += 1
    assert nstamp[0] <= 15


FINE = [a.split("=")[1] for a in sys.argv if a.startswith("--fine=")]
FINE = FINE[0] if FINE else None
nfine = [0]
FINEKS = eval([a.split('=')[1] for a in sys.argv if a.startswith('--ks=')][0]) if any(a.startswith('--ks=') for a in sys.argv) else (0, 8, 16, 31)


def fine(phase):
    if not PROFILE or FINE != phase:
        return
    e(CLK + " s[70:71]")
    e("s_waitcnt lgkmcnt(0)")
    sk = newlab("fs")
    e("s_cmp_lg_u32 %s, %d" % (sL, 0 if "--l0" in sys.argv else 1))
    e("s_cbranch_scc1 %s" % sk)
    e("v_writelane_b32 v5, s70, %d" % nfine[0])
    lab(sk)
    nfine[0] += 1


def srd(dst, lo, size):
    b = int(dst[2:dst.index(":")])
    e("s_mov_b32 s%d, s%d" % (b, lo))
    e("s_and_b32 s%d, s%d, 0xffff" % (b + 1, lo + 1))
    e("s_mov_b32 s%d, %s" % (b + 2, size if isinstance(size, str) else hex(size)))
    e("s_mov_b32 s%d, 0x20000" % (b + 3))


def poll(soff):
    a, b = newlab("poll"), newlab("pok")
    regs = (vPD, 16) if OPT("p2", 1) else (vPD,)
    ld = lambda r: e("buffer_load_dwordx2 %s, %s, %s, %s offen sc1" % (v(r, 2), v(vPO), sWS, soff))
    e("s_mov_b32 %s, %d" % (sCNT, POLL_LIMIT))
    if len(regs) == 2:
        ld(regs[0])
    lab(a)
    for k, r in enumerate(regs):
        ld(regs[(k + 1) % len(regs)])
        e("s_waitcnt vmcnt(%d)" % (len(regs) - 1))
        e("v_cmp_eq_u64 vcc, %s, %s" % (v(r, 2), v(vFV, 2)))
        e("s_nop 0")
        e("s_cmp_eq_u64 vcc, -1")
        e("s_cbranch_scc1 %s" % b)
    e("s_sub_u32 %s, %s, 1" % (sCNT, sCNT))
    e("s_cbranch_scc0 %s" % a)
    e("s_endpgm")
    lab(b)


def lstores(lines):
    g, d = newlab("wt"), newlab("wtd")
    e("s_cmp_eq_u32 %s, 0" % sMODE)
    e("s_cbranch_scc1 %s" % g)
    for x in lines:
        e(x)
    lab(d)
    TAIL.append(g + ":")
    for x in lines:
        TAIL.append("    " + x + (" sc1" if x.startswith("buffer_store") else ""))
    TAIL.append("    s_branch " + d)


def flag(soff, n=0, local=False):
    if n is not None:
        e("s_waitcnt vmcnt(%d)" % n)
    if local:
        e("s_mov_b64 exec, 1")
        lstores(["buffer_store_dwordx2 %s, off, %s, %s" % (v(vFV, 2), sWS, soff)])
    else:
        e("v_lshlrev_b32 %s, 3, v0" % v(vPD))
        e("s_mov_b64 exec, 0xffff")
        e("buffer_store_dwordx2 %s, %s, %s, %s offen sc1" % (v(vFV, 2), v(vPD), sWS, soff))
    e("s_mov_b64 exec, -1")


def mode_poll(first=False):
    a, b, glob, out = newlab("mp"), newlab("mpok"), newlab("mpg"), newlab("mpo")
    e("v_and_b32 %s, 31, v0" % v(vPD))
    e("v_lshlrev_b32 %s, 10, %s" % (v(vPD), v(vPD)))
    addr(T[3], None, FLG + FI * 128, [(sXCD, 128)])
    e("v_add_u32 %s, %s, %s" % (v(vPD), T[3], v(vPD)))
    if first:
        e("v_add_u32 %s, %s, %s" % (v(vPD + 1), T[0], v(vPO)))
        e("v_cmp_gt_u32 vcc, 32, v0")
        e("s_nop 1")
        e("v_cndmask_b32 v60, %s, %s, vcc" % (v(vPD), v(vPD + 1)))
    e("s_getreg_b32 %s, hwreg(HW_REG_XCC_ID, 0, 4)" % T[3])
    e("s_mov_b32 %s, %d" % (sCNT, POLL_LIMIT))
    e("s_mov_b32 %s, 1" % sMODE)
    lab(a)
    e("buffer_load_dwordx2 %s, v60, %s, 0 offen sc1" % (v(vPD, 2), sWS))
    e("s_waitcnt vmcnt(0)")
    e("v_xor_b32 %s, %s, %s" % (v(vPD + 1), v(vPD + 1), v(vFV + 1)))
    e("v_cmp_eq_u32 %s, %s, %s" % (sM0, v(vPD), v(vFV)))
    e("v_cmp_eq_u32 %s, %s, %s" % (sM1, T[3], v(vPD + 1)))
    e("v_cmp_gt_u32 vcc, 16, %s" % v(vPD + 1))
    e("s_nop 1")
    e("s_and_b64 %s, %s, %s" % (sM1, sM1, sM0))
    e("s_and_b64 vcc, vcc, %s" % sM0)
    if not FORCE_GLOBAL:
        e("s_cmp_eq_u64 %s, -1" % sM1)
        e("s_cbranch_scc1 %s" % out)
    e("s_cmp_eq_u32 vcc_hi, -1")
    e("s_cbranch_scc0 %s" % b)
    if not FORCE_GLOBAL:
        e("s_cmp_eq_u32 s67, -1")
        e("s_cbranch_scc0 %s" % glob)
    else:
        e("s_branch %s" % glob)
    lab(b)
    e("s_sub_u32 %s, %s, 1" % (sCNT, sCNT))
    e("s_cbranch_scc0 %s" % a)
    e("s_endpgm")
    lab(glob)
    e("s_mov_b32 %s, 0" % sMODE)
    if first:
        e("v_xor_b32 %s, 31, %s" % (v(vFV + 1), v(vFV + 1)))
        publish_addr(XF, ST, 0, FX)
        publish_x(None, 84)
        poll(T[0])
        e("v_xor_b32 %s, 31, %s" % (v(vFV + 1), v(vFV + 1)))
    lab(out)


def slot(dst, base, terms):
    e("s_add_u32 %s, %s, %d" % (dst, sFB, base * 8))
    for r, m in terms:
        e("s_mul_i32 %s, %s, %d" % (T[9], r, m * 8))
        e("s_add_u32 %s, %s, %s" % (dst, dst, T[9]))


def addr(dst, base_reg, const, terms):
    if base_reg is None:
        e("s_mov_b32 %s, 0x%x" % (dst, const))
    else:
        e("s_add_u32 %s, %s, 0x%x" % (dst, base_reg, const))
    for r, m in terms:
        e("s_mul_i32 %s, %s, %d" % (T[9], r, m))
        e("s_add_u32 %s, %s, %s" % (dst, dst, T[9]))


def load_frags(sg, first, n, reg_of, rebase=True):
    for j in range(first, first + n):
        if j % 4 == 0 or (j == first and rebase):
            e("s_add_u32 %s, %s, %d" % (T[8], sg, (j // 4) * 4096))
        e("buffer_load_dwordx4 %s, %s, %s, %s offen offset:%d sc1" %
          (v(reg_of(j), 4), v(vL16), sWS, T[8], (j % 4) * 1024))


def mfma(d, a, b, c):
    e("v_mfma_f32_32x32x16_bf16 %s, %s, %s, %s" % (v(d, 16), v(a, 4), v(b, 4), c if isinstance(c, str) else v(c, 16)))


def half_sum(a, b):
    e("s_nop 1")
    e("v_permlane32_swap_b32 %s, %s" % (v(a), v(b)))
    e("s_nop 1")
    e("v_add_f32 %s, %s, %s" % (v(a), v(a), v(b)))


def tile_stats(y, t):
    e("v_pk_add_f32 %s, %s, %s" % (v(t, 2), v(y, 2), v(y + 2, 2)))
    e("v_pk_mul_f32 %s, %s, %s" % (v(t + 2, 2), v(y, 2), v(y, 2)))
    for p in range(1, 8):
        if p > 1:
            e("v_pk_add_f32 %s, %s, %s" % (v(t, 2), v(t, 2), v(y + 2 * p, 2)))
        e("v_pk_fma_f32 %s, %s, %s, %s" % (v(t + 2, 2), v(y + 2 * p, 2), v(y + 2 * p, 2), v(t + 2, 2)))
    e("v_add_f32 %s, %s, %s" % (v(t), v(t), v(t + 1)))
    e("v_add_f32 %s, %s, %s" % (v(t + 2), v(t + 2), v(t + 3)))
    half_sum(t, t + 2)


def unpack(dst, src, n):
    for i in range(n):
        e("v_lshlrev_b32 %s, 16, %s" % (v(dst + 2 * i), v(src + i)))
        e("v_and_b32 %s, 0xffff0000, %s" % (v(dst + 2 * i + 1), v(src + i)))


def publish_addr(xoff, stoff, fbase_add, fbase):
    addr(T[4], sLB, xoff, [(sTBN, XSTR), (sNT, 2048)])
    e("s_lshr_b32 %s, %s, 2" % (T[6], sNT))
    e("s_and_b32 %s, %s, 3" % (T[7], sNT))
    addr(T[5], sLB, stoff, [(sTBN, 4096), (T[6], 1024), (T[7], 4)])
    slot(T[6], fbase, [(sTBN, 16), (sNT, 1)])
    if fbase_add:
        e("s_add_u32 %s, %s, %d" % (T[6], T[6], fbase_add))


def publish_x(y, t, meanwhile=None):
    lstores(["buffer_store_dwordx4 %s, %s, %s, %s offen" % (v(vRES, 4), v(vL16), sWS, T[4]),
             "buffer_store_dwordx4 %s, %s, %s, %s offen offset:1024" % (v(vRES + 4, 4), v(vL16), sWS, T[4])])
    if y is not None:
        tile_stats(y, t)
    lstores(["buffer_store_dword %s, %s, %s, %s offen" % (v(t), v(vL16), sWS, T[5])])
    if meanwhile:
        meanwhile()
    flag(T[6], local=True)


def prologue():
    e("s_cmp_ge_u32 s2, 256")
    e("s_cbranch_scc1 L_end")
    e("s_load_dwordx16 s[12:27], s[0:1], 0")
    e("s_load_dwordx4 s[28:31], s[0:1], 64")
    e("s_load_dwordx2 s[32:33], s[0:1], 80")
    e("v_lshrrev_b32 v1, 6, v0")
    e("v_and_b32 v0, 63, v0")
    e("v_readfirstlane_b32 %s, v1" % sW)
    e("v_lshlrev_b32 %s, 4, v0" % v(vL16))
    cm("column part of a transposing-read address: (lane&3)*8 + ((lane>>4)&1)*32")
    e("v_and_b32 %s, 3, v0" % v(vTR))
    e("v_lshlrev_b32 %s, 3, %s" % (v(vTR), v(vTR)))
    e("v_bfe_u32 %s, v0, 4, 1" % v(vT5))
    e("v_lshl_or_b32 %s, %s, 5, %s" % (v(vTR), v(vT5), v(vTR)))
    e("v_lshrrev_b32 %s, 5, v0" % v(vT5))
    e("v_lshlrev_b32 %s, 4, %s" % (v(vH16), v(vT5)))
    cm("K fragments are stored with token bits 2 and 3 swapped (matches the sparse-MFMA key order)")
    e("v_and_b32 %s, 0x33, v0" % v(vK16))
    e("v_and_b32 %s, 4, v0" % v(vPO))
    e("v_lshl_or_b32 %s, %s, 1, %s" % (v(vK16), v(vPO), v(vK16)))
    e("v_and_b32 %s, 8, v0" % v(vPO))
    e("v_lshrrev_b32 %s, 1, %s" % (v(vPO), v(vPO)))
    e("v_or_b32 %s, %s, %s" % (v(vK16), v(vK16), v(vPO)))
    e("v_lshlrev_b32 %s, 4, %s" % (v(vK16), v(vK16)))
    cm("V store offset: head parity*128K + half*512 + d*16")
    e("v_and_b32 %s, 15, v0" % v(vVOF))
    e("v_lshlrev_b32 %s, 4, %s" % (v(vVOF), v(vVOF)))
    e("v_lshl_or_b32 %s, %s, 9, %s" % (v(vVOF), v(vT5), v(vVOF)))
    e("v_bfe_u32 %s, v0, 4, 1" % v(vPO))
    e("v_lshl_or_b32 %s, %s, 17, %s" % (v(vVOF), v(vPO), v(vVOF)))
    e("s_and_b32 %s, s2, 7" % sXCD)
    e("s_lshr_b32 %s, s2, 3" % sJ)
    e("s_and_b32 %s, %s, 3" % (sHW, sW))
    e("s_and_b32 %s, %s, 15" % (sC, sJ))
    e("s_lshr_b32 %s, %s, 4" % (T[0], sJ))
    e("s_lshl_b32 %s, %s, 2" % (T[0], T[0]))
    e("s_add_u32 %s, %s, %s" % (sTBW, T[0], sHW))
    e("s_and_b32 %s, %s, 7" % (sNB, sJ))
    e("s_lshr_b32 %s, %s, 3" % (T[0], sJ))
    e("s_mov_b32 %s, %s" % (sHEAD, sJ))
    e("s_lshl_b32 %s, %s, 1" % (sTBN, T[0]))
    e("s_and_b32 %s, %s, 1" % (T[0], sW))
    e("s_add_u32 %s, %s, %s" % (sTBN, sTBN, T[0]))
    e("s_lshr_b32 %s, %s, 1" % (sKH, sHW))
    e("s_lshl_b32 %s, %s, 1" % (sNT, sNB))
    e("s_add_u32 %s, %s, %s" % (sNT, sNT, sKH))
    e("s_mov_b32 s62, 0xffff")
    e("s_mov_b32 s63, 0xffff")
    e("s_mov_b32 %s, 0" % sL)
    addr(sLB, None, ARENA, [(sXCD, ARENA_X)])
    e("s_add_u32 %s, %s, 0x%x" % (sFB, sLB, LFL))
    e("s_waitcnt lgkmcnt(0)")
    srd(sWS, 32, WS_SIZE)
    srd(sTMP, 12, 2048 * 1024)
    cm("hand-off tag: ws[0] only tells this launch's flags from an earlier launch's")
    e("s_load_dword %s, s[32:33], 0" % sNONCE)
    if OPT("hold", 0) and not PROFILE:
        e("s_memrealtime s[70:71]")
        e("s_waitcnt lgkmcnt(0)")
        e("s_mov_b32 s68, s70")
    if PROFILE:
        e("s_memrealtime s[70:71]")
        e("s_waitcnt lgkmcnt(0)")
        e("s_mov_b32 s68, s70")
        stamp("s18")


def make_tag():
    e("s_waitcnt lgkmcnt(0)")
    e("s_add_u32 %s, %s, 16" % (sNONCE, sNONCE))
    e("v_mov_b32 %s, %s" % (v(vFV), sNONCE))
    e("v_not_b32 %s, %s" % (v(vFV + 1), v(vFV)))


def qkv_setup(next_layer):
    e("v_and_b32 %s, 15, v0" % v(vPO))
    e("v_lshlrev_b32 %s, 3, %s" % (v(vPO), v(vPO)))
    slot(T[0], FX + (LFL_L if next_layer else 0), [(sTBW, 16)])
    addr(T[1], sLB, XF, [(sTBW, XSTR)])
    addr(T[2], sLB, ST, [(sTBW, 4096)])
    e("v_add_u32 %s, %d, %s" % (v(vCA), CONST, v(vH16)))
    tr_pair(vW0)
    e("v_xor_b32 %s, 64, %s" % (v(vW2), v(vW0)))
    tr_rows(vW1, 64)
    e("v_add_u32 %s, 0x10000, %s" % (v(vW1), v(vW1)))


def p0():
    cm("================ P0 (waves 0-3): x tile -> residual registers, fragments and row statistics")
    p0end, noid, nox, npt = newlab("p0end"), newlab("noid"), newlab("nox"), newlab("npt")
    e("s_cmp_ge_u32 %s, 4" % sW)
    e("s_cbranch_scc1 %s" % nox)
    e("v_and_b32 %s, 31, v0" % v(vPO))
    e("v_lshlrev_b32 %s, 10, %s" % (v(vPO), v(vPO)))
    e("v_add_u32 %s, %s, %s" % (v(vPO), v(vPO), v(vH16)))
    addr(T[0], None, 0, [(sXCD, 262144), (sTBN, 32768), (sNT, 64)])
    for g in range(2):
        e("buffer_load_dwordx4 %s, %s, %s, %s offen offset:%d" % (v(vRES + 4 * g, 4), v(vPO), sTMP, T[0], 32 * g))
    lab(nox)
    e("v_lshlrev_b32 v17, 7, v0")
    for bit, wave in ((1, OPT("w1", 6)), (2, OPT("w2", 5))):
        if not OPT("qft", 3) & bit:
            continue
        nq = newlab("nq")
        e("s_cmp_lg_u32 %s, %d" % (sW, wave))
        e("s_cbranch_scc1 %s" % nq)
        srd(sTMP, 14, 512 * 3072)
        if bit == 1:
            cm("first touch of Wqkv, one line per lane, spread over all workgroups")
            e("s_mul_i32 %s, s2, %d" % (T[0], 48 * 128))
            e("v_mov_b32 v19, v17")
        else:
            cm("one 128-byte column class of Wqkv arrives slowest: the die group requests its lines up front")
            addr(T[0], None, 384, [(sJ, 48 * 1024)])
            e("v_lshlrev_b32 v19, 10, v0")
        e("s_mov_b32 exec_hi, 0xffff")
        e("buffer_load_dword v16, v19, %s, %s offen" % (sTMP, T[0]))
        e("s_mov_b64 exec, -1")
        lab(nq)
    e("s_cmp_lg_u32 %s, 4" % sW)
    e("s_cbranch_scc1 %s" % npt)
    cm("statistics and flag lines receive partial writes: bring them into L2 first")
    addr(T[0], sLB, ST, [(sJ, 11 * 128)])
    e("s_mov_b64 exec, 0x7ff")
    e("buffer_load_dword v18, v17, %s, %s offen sc1" % (sWS, T[0]))
    e("s_mov_b64 exec, -1")
    lab(npt)
    e("s_cmp_ge_u32 %s, 4" % sW)
    e("s_cbranch_scc1 %s" % p0end)
    stamp("s0")
    make_tag()
    e("s_getreg_b32 %s, hwreg(HW_REG_XCC_ID, 0, 4)" % T[7])
    e("s_mov_b32 %s, 1" % sMODE)
    e("v_xor_b32 %s, %s, %s" % (v(vFV + 1), T[7], v(vFV + 1)))
    publish_addr(XF, ST, 0, FX)
    nid = newlab("nid")
    e("s_cmp_lg_u32 %s, 0" % sW)
    e("s_cbranch_scc1 %s" % nid)
    e("s_lshl_b32 %s, s2, 7" % T[8])
    e("s_add_u32 %s, %s, 0x%x" % (T[8], T[8], FLG + FI * 128))
    flag(T[8], None)
    e("s_waitcnt vmcnt(1)")
    e("s_branch %s" % noid)
    lab(nid)
    e("s_waitcnt vmcnt(0)")
    lab(noid)
    stamp("s1")
    for g in range(2):
        e("v_permlane32_swap_b32 %s, %s" % (v(vRES + 4 * g), v(vRES + 4 * g + 2)))
        e("v_permlane32_swap_b32 %s, %s" % (v(vRES + 4 * g + 1), v(vRES + 4 * g + 3)))
    e("s_nop 0")
    unpack(66, vRES, 8)
    publish_x(66, 84, lambda: qkv_setup(False))
    e("s_nop 0")
    e("v_not_b32 %s, %s" % (v(vFV + 1), v(vFV)))
    lab(p0end)
    stamp("s19")


def tr_pair(dst):
    tr_rows(dst, 128)
    e("v_bfe_u32 %s, v0, 3, 1" % v(vPD))
    e("v_lshl_or_b32 %s, %s, 6, %s" % (v(dst), v(vPD), v(dst)))


def tr_rows(dst, rowbytes):
    e("v_bfe_u32 %s, v0, 2, 2" % v(dst))
    e("v_lshrrev_b32 %s, 2, %s" % (v(vPD), v(vH16)))
    e("v_add_u32 %s, %s, %s" % (v(dst), v(dst), v(vPD)))
    e("v_mul_u32_u24 %s, %d, %s" % (v(dst), rowbytes, v(dst)))
    e("v_add_u32 %s, %s, %s" % (v(dst), v(dst), v(vTR)))


def voff_128(dst, row=1024):
    e("v_lshrrev_b32 %s, 3, v0" % v(dst))
    e("v_mul_u32_u24 %s, %d, %s" % (v(dst), row, v(dst)))
    e("v_and_b32 %s, 7, v0" % v(vPD))
    e("v_lshrrev_b32 %s, 2, v0" % v(vPD + 1))
    e("v_and_b32 %s, 4, %s" % (v(vPD + 1), v(vPD + 1)))
    e("v_xor_b32 %s, %s, %s" % (v(vPD), v(vPD), v(vPD + 1)))
    e("v_lshl_or_b32 %s, %s, 4, %s" % (v(dst), v(vPD), v(dst)))


def voff_192(dst):
    for i in range(3):
        e("v_add_u32 %s, %d, v0" % (v(vPD), 64 * i))
        e("v_mul_u32_u24 %s, 5462, %s" % (v(vPD + 1), v(vPD)))
        e("v_lshrrev_b32 %s, 16, %s" % (v(vPD + 1), v(vPD + 1)))
        e("v_mul_u32_u24 %s, %d, %s" % (v(dst + i), 2752 - 192, v(vPD + 1)))
        e("v_lshl_add_u32 %s, %s, 4, %s" % (v(dst + i), v(vPD), v(dst + i)))


def dma1(vo, sg, cls):
    e("buffer_load_dwordx4 %s, %s, %s offen%s lds" % (v(vo), sTMP, sg, " nt" if OPT("wnt", 0) & cls else ""))


def dma_loop(n, body):
    lp = newlab("dl")
    e("s_mov_b32 %s, %d" % (T[2], n))
    lab(lp)
    body()
    e("s_sub_u32 %s, %s, 1" % (T[2], T[2]))
    e("s_cmp_lg_u32 %s, 0" % T[2])
    e("s_cbranch_scc1 %s" % lp)


def dma_w2(piece0, lds0, n, pace=PACE):
    addr(T[0], None, piece0 * 8192, [(sHW, n * 8192), (sNB, 128)])
    addr(T[1], None, lds0, [(sHW, n * 1024)])

    def body():
        e("s_mov_b32 m0, %s" % T[1])
        e("s_add_u32 %s, %s, 1024" % (T[1], T[1]))
        dma1(40, T[0], 4)
        e("s_add_u32 %s, %s, 8192" % (T[0], T[0]))
        if pace:
            e("s_waitcnt vmcnt(%d)" % max(pace, 0))
    dma_loop(n, body)


def dma_w1(n):
    def body():
        for i in range(3):
            e("s_add_u32 m0, %s, %d" % (T[1], 1024 * i))
            e("s_nop 0")
            dma1(44 + i, T[0], 2)
        e("s_add_u32 %s, %s, %d" % (T[0], T[0], 16 * 2752))
        e("s_add_u32 %s, %s, 3072" % (T[1], T[1]))
    dma_loop(n, body)


def wq_begin():
    srd(sTMP, 14, 512 * 3072)
    voff_128(44, 3072)
    e("v_lshrrev_b32 v40, 2, v0")
    e("v_mul_u32_u24 v40, 3072, v40")
    e("v_and_b32 v41, 3, v0")
    e("v_lshl_or_b32 v40, v41, 4, v40")
    cm("odd groups take a K column pair, even groups a V column pair; every group takes one Q tile")
    e("s_and_b32 %s, %s, 1" % (T[0], sC))
    e("s_lshr_b32 %s, %s, 1" % (T[1], sC))
    e("s_mul_i32 %s, %s, -1024" % (T[0], T[0]))
    addr(T[3], T[0], 2048, [(sHW, 2 * 49152), (T[1], 128)])
    addr(T[5], None, 0, [(sHW, 2 * 49152), (sC, 64)])
    e("s_lshl_b32 %s, %s, 12" % (T[4], sHW))
    addr(T[6], None, 65536, [(sHW, 2048)])


def wq_chunk():
    for k in range(4):
        e("s_add_u32 m0, %s, %d" % (T[4], 1024 * k))
        e("s_nop 0")
        e("buffer_load_dwordx4 v44, %s, %s offen lds" % (sTMP, T[3]))
        e("s_add_u32 %s, %s, %d" % (T[3], T[3], 24576 if k < 3 else 24576 + 6 * 49152))
        if k % 2:
            e("s_add_u32 m0, %s, %d" % (T[6], 1024 * (k // 2)))
            e("s_nop 0")
            e("buffer_load_dwordx4 v40, %s, %s offen lds" % (sTMP, T[5]))
            e("s_add_u32 %s, %s, %d" % (T[5], T[5], 49152 if k == 1 else 7 * 49152))
    e("s_add_u32 %s, %s, 16384" % (T[4], T[4]))
    e("s_add_u32 %s, %s, 8192" % (T[6], T[6]))


CSA = 64


def colsum_begin():
    for r in range(48):
        e("v_mov_b32 v%d, 0" % (CSA + r))
    for r in range(4):
        e("v_mov_b32 v%d, 0x3f803f80" % (52 + r))


def colsum2(regs, steps, seconds):
    for k in range(2):
        for i in range(3):
            for h in range(2):
                e("ds_read_b64_tr_b16 %s, v%d offset:%d" % (v(16 + 12 * k + 4 * i + 2 * h, 2), regs[i], k * steps[i] + h * seconds[i]))
    for k in range(6):
        e("s_waitcnt lgkmcnt(%d)" % (10 - 2 * k))
        mfma(CSA + 16 * (k % 3), 52, 16 + 4 * k, CSA + 16 * (k % 3))


def colsum_w1():
    e("v_add_u32 v42, %s, v43" % T[0])
    e("v_add_u32 v48, 64, v42")
    e("v_add_u32 v50, 128, v42")
    colsum2((42, 48, 50), (3072,) * 3, (1536,) * 3)


def colsum_partial():
    e("v_and_b32 v41, 31, v0")
    e("v_lshlrev_b32 v41, 2, v41")
    addr(T[0], None, PART_L, [(sHW, 384)])
    e("v_add_u32 v42, %s, v41" % T[0])
    e("s_nop 7")
    for i in range(3):
        e("ds_write_b32 v42, v%d offset:%d" % (CSA + 16 * i, 128 * i))


def colsum_combine(dst_l):
    e("s_min_u32 %s, %s, 2" % (T[0], sHW))
    e("s_lshl_b32 %s, %s, 7" % (T[0], T[0]))
    e("v_add_u32 v41, %s, v41" % T[0])
    e("v_add_u32 v42, %d, v41" % PART_L)
    for k in range(4):
        e("ds_read_b32 v%d, v42 offset:%d" % (16 + k, 384 * k))
    e("v_add_u32 v41, %d, v41" % dst_l)
    e("s_waitcnt lgkmcnt(0)")
    e("v_add_f32 v16, v16, v17")
    e("v_add_f32 v18, v18, v19")
    e("v_add_f32 v16, v16, v18")
    e("ds_write_b32 v41, v16")


def stats_code(second_ln):
    c = []
    for k in range(1, 16):
        c.append("v_add_f32 %s, %s, %s" % (v(vSTS), v(vSTS), v(vSTS + k)))
    c += ["v_mov_b32 %s, %s" % (v(vSTS + 1), v(vSTS)), "s_nop 1",
          "v_permlane32_swap_b32 %s, %s" % (v(vSTS), v(vSTS + 1)), "s_nop 1",
          "v_mul_f32 %s, %s, %s" % (v(vMU), f32(1.0 / 512), v(vSTS)),
          "v_mul_f32 %s, %s, %s" % (v(vSTS + 1), f32(1.0 / 512), v(vSTS + 1)),
          "v_fma_f32 %s, -%s, %s, %s" % (v(vSTS + 1), v(vMU), v(vMU), v(vSTS + 1)),
          "v_max_f32 %s, 0, %s" % (v(vSTS + 1), v(vSTS + 1)),
          "v_add_f32 %s, %s, %s" % (v(vSTS + 2), f32(1e-5), v(vSTS + 1)),
          "v_rsq_f32 %s, %s" % (v(vR), v(vSTS + 2)), "s_nop 0"]
    if second_ln:
        c += ["v_mul_f32 %s, %s, %s" % (v(vSTS + 2), v(vR), v(vR)),
              "v_mul_f32 %s, %s, %s" % (v(vSTS + 2), v(vSTS + 2), v(vSTS + 1)),
              "v_add_f32 %s, %s, %s" % (v(vSTS + 2), f32(1e-5), v(vSTS + 2)),
              "v_rsq_f32 %s, %s" % (v(vSTS + 2), v(vSTS + 2)), "s_nop 0",
              "v_mul_f32 %s, %s, %s" % (v(vR), v(vR), v(vSTS + 2))]
    return c


def center(acc, cs, p):
    e("v_pk_fma_f32 %s, %s, %s, %s op_sel_hi:[0,1,1] neg_lo:[1,0,0] neg_hi:[1,0,0]" %
      (v(acc + 2 * p, 2), v(vMU, 2), v(cs + 2 * p, 2), v(acc + 2 * p, 2)))


def stash_addr():
    e("s_mul_i32 %s, %s, 24576" % (T[0], sHW))
    e("v_add_u32 v42, %s, %s" % (T[0], v(vL16)))


class Lds:
    def __init__(self):
        self.ops, self.done = [], 0

    def op(self, name, text):
        e(text)
        self.ops.append(name)

    def need(self, name):
        last = max(i for i, n in enumerate(self.ops) if n == name)
        if last < self.done:
            return None
        self.done = last + 1
        return min(15, len(self.ops) - 1 - last)


def qkv_body(isk, done):
    H = 16

    def item(n):
        if n < 32:
            load_frags(T[1], n, 1, lambda j: vA + 4 * j, n % 4 == 0)
        else:
            e("buffer_load_dwordx4 %s, %s, %s, %s offen offset:%d sc1" % (v(vSTS + 4 * (n - 32), 4), v(vL16), sWS, T[2], 1024 * (n - 32)))
    sched = [[ks + DEPTH] if ks + DEPTH < 32 else [] for ks in range(32)]
    for k in range(4):
        sched[3 + 2 * k].append(32 + k)
    order = list(range(DEPTH))
    lds = Lds()

    def rd(ks, i, d):
        base, off, sec = ((vW0, vW2)[i], ks * 2048, 1024) if i < 2 else (vW1, ks * 1024, 512)
        lds.op(("w", i, ks), "ds_read_b64_tr_b16 %s, %s offset:%d" % (v(d, 2), v(base), off))
        lds.op(("w", i, ks), "ds_read_b64_tr_b16 %s, %s offset:%d" % (v(d + 2, 2), v(base), off + sec))

    def wait(name):
        n = lds.need(name)
        if n is not None:
            e("s_waitcnt lgkmcnt(%d)" % n)
    wb1 = lambda ks, i: vWB + (ks % 3) * 12 + 4 * i
    wb2 = lambda ks: vWB + (12 * (ks - H) + 8 if ks < H + 3 else [0, 4, 12, 16, 24, 28, 8, 20, 32][(ks - H - 3) % 9])
    tiles = lambda ks: (2, 0, 1) if ks < H else (0, 1)
    for ks in range(2):
        for i in tiles(ks):
            rd(ks, i, wb1(ks, i))
    fine("q")
    SA, SB, SC = vPO, vPD, vPD + 1
    PK, C0, C1, VC, QC = vA, vA + 16, vA + 32, vA + 48, vSTS

    def addresses():
        e("s_lshr_b32 %s, %s, 1" % (T[0], sC))
        addr(T[4], None, KVF, [(sL, KVF_L), (T[0], 4 * 131072), (sXCD, 16384), (sTBW, 2048)])
        addr(T[2], sLB, KVL, [(T[0], 8192), (sTBW, HSTR)])
        slot(T[6], FQ, [(sC, 8), (sTBW, 1)])
        addr(T[7], None, GFL, [(sL, GFL_L), (sC, 65536), (sXCD, 8192), (sTBW, 1024)])
        addr(T[3], sLB, QF, [(sC, 2048), (sTBW, HSTR)])
        if not isk:
            e("v_and_b32 %s, 31, v0" % v(SA))
            e("v_lshlrev_b32 %s, 2, %s" % (v(SA), v(SA)))
            addr(T[0], None, STAT_L, [(sHW, 256)])
            e("v_add_u32 %s, %s, %s" % (v(SB), T[0], v(SA)))
            e("v_add_u32 %s, %s, %s" % (v(SC), T[0], v(vH16)))
            e("v_add_u32 %s, %d, %s" % (v(SA), CSQ_L, v(SA)))
    sh = [lambda x=x: e(x) for x in capture(addresses) + stats_code(False)]
    sh.append(lambda: e("v_mul_f32 %s, %s, %s" % (v(vRQ), f32(0.25 * 1.4426950408889634), v(vR))))
    if isk:
        for k in range(8):
            sh.append(lambda k=k: lds.op("c", "ds_read_b128 %s, %s offset:%d" % (v(C0 + 4 * k, 4), v(vCA), 32 * k)))
    else:
        sh.append(lambda: lds.op("sw", "ds_write_b32 %s, %s" % (v(SB), v(vMU))))
        sh.append(lambda: lds.op("sw", "ds_write_b32 %s, %s offset:128" % (v(SB), v(vR))))
        for k in range(8):
            sh.append(lambda k=k: lds.op("c", "ds_read_b128 %s, %s offset:%d" % (v(C0 + 4 * k, 4), v(SC), 32 * k)))
        for t in range(2):
            sh.append(lambda t=t: lds.op("c", "ds_read_b32 %s, %s offset:%d" % (v(VC + t), v(SA), 128 * t)))
    nsal = len(capture(addresses))
    pos = 0
    for ks in range(32):
        if ks in (16, 22):
            e("s_barrier")
        newest = max(order.index(n) for n in ([ks, 35] if ks >= 18 else [ks]))
        e("s_waitcnt vmcnt(%d) lgkmcnt(%d)" % (len(order) - 1 - newest, lds.need(("w", 1, ks))))
        if ks in FINEKS:
            fine("q")
        for m, i in enumerate(tiles(ks)):
            c = "0" if ks == 0 else vACC + 16 * i
            if i < 2 and not isk:
                mfma(vACC + 16 * i, vA + 4 * ks, wb1(ks, i), c)
            else:
                mfma(vACC + 16 * i, wb1(ks, i), vA + 4 * ks, c)
            if ks + 2 < 32 and i in tiles(ks + 2):
                rd(ks + 2, i, wb1(ks + 2, i))
            elif ks >= 30 and (i == 0 or ks == 30):
                k2 = H + (ks - 30) * 2 + i
                rd(k2, 2, wb2(k2))
            if m < len(sched[ks]):
                item(sched[ks][m])
                order.append(sched[ks][m])
            if ks >= 10:
                for _ in range(2):
                    if pos < len(sh) and (pos < nsal or ks >= 18):
                        sh[pos]()
                        pos += 1
    assert pos == len(sh), (pos, len(sh))
    cm("remaining Q k-steps with the pair's epilogue underneath")
    fill = [lambda: wait("c")]
    for i in range(4):
        fill.append(lambda i=i: lds.op("qc", "ds_read_b128 %s, %s offset:%d" % (v(QC + 4 * i, 4), v(vCA), 256 + 32 * i)))
    fill.append(lambda: e("s_add_u32 %s, %s, 0x%x" % (T[5], T[4], 0x20000 if isk else 0x40000)))
    fill.append(lambda: e("s_add_u32 %s, %s, 4096" % (T[0], T[2])))
    if isk:
        fill.append(lambda: e("s_add_u32 %s, %s, 0x40000" % (T[8], T[4])))
        fill.append(lambda: e("s_add_u32 %s, %s, 0x60000" % (T[1], T[4])))
    else:
        fill.append(lambda: e("v_and_b32 %s, 0x1ffff, %s" % (v(SC), v(vVOF))))
        fill.append(lambda: e("v_lshrrev_b32 %s, 17, %s" % (v(SB), v(vVOF))))
        fill.append(lambda: e("v_lshl_or_b32 %s, %s, 11, %s" % (v(SC), v(SB), v(SC))))
    local = []
    for t in range(2):
        a = vACC + 16 * t
        for r in range(16):
            if isk:
                fill.append(lambda a=a, t=t, r=r: e("v_fma_f32 %s, -%s, %s, %s" % (v(a + r), v(vMU), v(C0 + 16 * t + r), v(a + r))))
            else:
                fill.append(lambda a=a, t=t, r=r: e("v_fma_f32 %s, -%s, %s, %s" % (v(a + r), v(C0 + r), v(VC + t), v(a + r))))
        for r in range(16):
            fill.append(lambda a=a, r=r: e("v_mul_f32 %s, %s, %s" % (v(a + r), v(vR if isk else C1 + r), v(a + r))))
        for p in range(8):
            fill.append(lambda a=a, t=t, p=p: e("v_cvt_pk_bf16_f32 %s, %s, %s" % (v(PK + 8 * t + p), v(a + 2 * p), v(a + 2 * p + 1))))
        for hh in range(2):
            d = v(PK + 8 * t + 4 * hh, 4)
            if isk:
                g = "%s, %s, %s, %s offen" % (d, v(vK16), sWS, (T[4], T[5], T[8], T[1])[2 * t + hh])
                local.append("buffer_store_dwordx4 %s, %s, %s, %s offen offset:%d" % (d, v(vK16), sWS, (T[2], T[0])[t], 2048 * hh))
            else:
                g = "%s, %s, %s, %s offen offset:%d" % (d, v(vVOF), sWS, (T[4], T[5])[t], 1024 + 256 * hh)
                local.append("buffer_store_dwordx4 %s, %s, %s, %s offen offset:%d" % (d, v(SC), sWS, (T[2], T[0])[t], 1024 + 256 * hh))
            fill.append(lambda g=g: e("buffer_store_dwordx4 " + g + " sc1"))
    fill.append(lambda: lstores(local))
    per = -(-len(fill) // (32 - H))
    aQ = vACC + 32
    for ks in range(H, 32):
        wait(("w", 2, ks + 1 if ks % 2 == 0 and H + 2 < ks < 31 else ks))
        mfma(aQ, wb2(ks), vA + 4 * ks, aQ)
        if ks == H:
            fine("q")
        for n in ([H + 3, H + 4] if ks == H else [H + 5, H + 6] if ks == H + 1 else [ks + 5] if ks + 5 < 32 else []):
            rd(n, 2, wb2(n))
        for f in fill[(ks - H) * per:(ks + 1 - H) * per]:
            f()
    e("s_barrier")
    stamp()
    wait("qc")
    e("s_nop %d" % max(0, 10 - len(fill[(31 - H) * per:])))
    for p in range(8):
        center(aQ, QC, p)
    for p in range(8):
        e("v_pk_mul_f32 %s, %s, %s op_sel_hi:[1,0]" % (v(aQ + 2 * p, 2), v(aQ + 2 * p, 2), v(vRQ, 2)))
    for p in range(8):
        e("v_cvt_pk_bf16_f32 %s, %s, %s" % (v(C1 + p), v(aQ + 2 * p), v(aQ + 2 * p + 1)))
    lstores(["buffer_store_dwordx4 %s, %s, %s, %s offen offset:%d" % (v(C1 + 4 * hh, 4), v(vL16), sWS, T[3], 1024 * hh) for hh in range(2)])
    fine("q")
    for k in range(4):
        e("v_mov_b32 %s, %s" % (v(vSTS + k), v(vFV + k % 2)))
    flag(T[6], 0, local=True)
    e("buffer_store_dwordx4 %s, %s, %s, %s offen sc1" % (v(vSTS, 4), v(vL16), sWS, T[7]))
    e("s_branch %s" % done)


def qkv():
    cm("================ QKV projection")
    hl, done, kb = newlab("qkv_h"), newlab("qkv_done"), newlab("qkv_k")
    e("s_cmp_ge_u32 %s, 4" % sW)
    e("s_cbranch_scc1 %s" % hl)
    l1, l2 = newlab("fx"), newlab("fx")
    e("s_cmp_lg_u32 %s, 0" % sL)
    e("s_cbranch_scc1 %s" % l1)
    mode_poll(True)
    e("v_mov_b32 v60, %s" % sMODE)
    e("v_mov_b32 v61, %d" % MODE_L)
    e("ds_write_b32 v61, v60")
    e("s_waitcnt lgkmcnt(0)")
    e("s_branch %s" % l2)
    lab(l1)
    poll(T[0])
    lab(l2)
    stamp()
    load_frags(T[1], 0, DEPTH, lambda j: vA + 4 * j)
    fine("q")
    e("s_barrier")
    e("s_bitcmp1_b32 %s, 0" % sC)
    e("s_cbranch_scc1 %s" % kb)
    n0, f0 = nstamp[0], nfine[0]
    qkv_body(False, done)
    lab(kb)
    nstamp[0], nfine[0] = n0, f0
    qkv_body(True, done)
    lab(hl)
    h1, h2, lp = newlab("qh1"), newlab("qh2"), newlab("qhl")
    e("s_cmp_lg_u32 %s, 0" % sL)
    e("s_cbranch_scc1 %s" % h1)
    wq_begin()
    if FINE == "h":
        make_tag()
        fine("h")
    dma_loop(2, wq_chunk)
    fine("h")
    if FINE != "h":
        make_tag()
    colsum_begin()
    tr_pair(42)
    e("s_lshl_b32 %s, %s, 12" % (T[0], sHW))
    e("v_add_u32 v42, %s, v42" % T[0])
    e("v_xor_b32 v48, 64, v42")
    tr_rows(50, 64)
    addr(T[0], None, 65536, [(sHW, 2048)])
    e("v_add_u32 v50, %s, v50" % T[0])
    e("s_mov_b32 %s, 0" % sIT)
    lab(lp)
    b1, b2 = newlab("qw"), newlab("qw")
    e("s_cmp_ge_u32 %s, 2" % sIT)
    e("s_cbranch_scc1 %s" % b1)
    wq_chunk()
    e("s_waitcnt vmcnt(12)")
    e("s_branch %s" % b2)
    lab(b1)
    e("s_waitcnt vmcnt(6)")
    e("s_cmp_eq_u32 %s, 2" % sIT)
    e("s_cbranch_scc1 %s" % b2)
    e("s_waitcnt vmcnt(0)")
    lab(b2)
    fine("h")
    colsum2((42, 48, 50), (2048, 2048, 1024), (1024, 1024, 512))
    e("v_add_u32 v42, 16384, v42")
    e("v_add_u32 v48, 16384, v48")
    e("v_add_u32 v50, 8192, v50")
    e("s_add_u32 %s, %s, 1" % (sIT, sIT))
    e("s_cmp_lt_u32 %s, 4" % sIT)
    e("s_cbranch_scc1 %s" % lp)
    colsum_partial()
    fine("h")
    e("s_waitcnt lgkmcnt(0)")
    e("s_barrier")
    fine("h")
    colsum_combine(CSQ_L)
    e("v_mov_b32 v61, %d" % MODE_L)
    e("ds_read_b32 v60, v61")
    cm("park the weight tile in registers for the second layer pair")
    stash_addr()
    for k in range(24):
        e("ds_read_b128 %s, v42 offset:%d" % (v(vSTASH + 4 * k, 4), 1024 * k))
    e("s_waitcnt lgkmcnt(15)")
    e("v_readfirstlane_b32 %s, v60" % sMODE)
    e("s_branch %s" % h2)
    lab(h1)
    e("s_waitcnt lgkmcnt(0)")
    e("s_barrier")
    lab(h2)
    cm("lanes 0-15: Q lines; lanes 16-47: the K or V kilobyte of four head blocks")
    e("v_subrev_u32 v20, 16, v0")
    e("v_lshrrev_b32 v21, 3, v20")
    e("v_lshlrev_b32 v21, 10, v21")
    e("v_lshl_add_u32 v20, v20, 7, v21")
    e("s_lshr_b32 %s, %s, 1" % (T[1], sC))
    e("s_and_b32 %s, %s, 1" % (T[2], sC))
    addr(T[3], None, 32768 + 1024, [(T[1], 8192), (T[2], -1024), (sC, -2048)])
    e("v_add_u32 v20, %s, v20" % T[3])
    e("v_lshlrev_b32 v19, 7, v0")
    e("v_cmp_lt_u32 vcc, 15, v0")
    addr(T[0], sLB, BLK, [(sTBW, HSTR), (sC, 2048)])
    e("v_cndmask_b32 v19, v19, v20, vcc")
    e("s_waitcnt lgkmcnt(0)")
    e("s_barrier")
    e("s_barrier")
    cm("all activation loads are out: bring in the lines the Q/K/V stores will write, so they need no fill")
    e("s_mov_b32 exec_hi, 0xffff")
    e("buffer_load_dword v21, v19, %s, %s offen sc1" % (sWS, T[0]))
    e("s_mov_b64 exec, -1")
    e("s_cmp_lg_u32 %s, 0" % sL)
    e("s_cbranch_scc1 %s" % done)
    cm("this workgroup's slices of b1 and b2; they are staged in LDS after attention")
    srd(sTMP, 22, 2752)
    e("v_and_b32 v19, 31, v0")
    e("v_lshlrev_b32 v19, 1, v19")
    addr(T[0], None, 0, [(sHW, 64), (sC, 192)])
    e("buffer_load_ushort v224, v19, %s, %s offen" % (sTMP, T[0]))
    srd(sTMP, 26, 1024)
    e("s_and_b32 %s, %s, 1" % (T[4], sHW))
    addr(T[0], None, 0, [(T[4], 64), (sNB, 128)])
    e("buffer_load_ushort v225, v19, %s, %s offen" % (sTMP, T[0]))
    lab(done)
    stamp()


def attention():
    cm("================ attention: S^T = K Q^T, P = exp2(S^T), O^T += V^T P via sparse MFMA")
    S, O, Q, KB, VB, IDX, AD, VO, CN = (16, 32), 48, 64, (68, 72), (76, 84), 92, 93, 94, 100
    PF = 100
    KVG, LP, CH, GF, ISS = T[2], T[3], T[4], T[5], T[6]
    cm("rows 16 and 20 of the V operand are ones (row sums for both lane halves); the other spare rows are zero")
    e("v_and_b32 %s, 27, v0" % v(IDX))
    e("v_cmp_eq_u32 vcc, 16, %s" % v(IDX))
    e("v_mov_b32 %s, 0x3f803f80" % v(AD))
    e("s_nop 0")
    for i in range(16):
        e("v_mov_b32 %s, 0" % v(O + i))
        e("v_cndmask_b32 %s, 0, %s, vcc" % (v(VB[0] + i), v(AD)))
    for i in range(8):
        e("v_mov_b32 %s, 0" % v(S[1] + 8 + i))
    e("v_mov_b32 %s, 0xdddddddd" % v(IDX))
    cm("flags a loading wave needs: 2 producer groups x 8 die groups x its 2 token blocks")
    e("v_bfe_u32 %s, v0, 1, 4" % v(PF + 6))
    e("v_lshlrev_b32 %s, 13, %s" % (v(PF + 6), v(PF + 6)))
    e("v_and_b32 %s, 1, v0" % v(PF + 5))
    e("v_lshl_or_b32 %s, %s, 10, %s" % (v(PF + 6), v(PF + 5), v(PF + 6)))
    e("v_mov_b32 %s, %s" % (v(AD), v(vL16)))
    voff_128(VO)
    voff_192(VO + 1)
    e("s_mov_b32 %s, 2" % ISS)
    a1 = newlab("a1")
    e("v_lshlrev_b32 %s, 7, v0" % v(PF))
    cm("first layer pair, waves 1-3: first touch of Wo / W1 / W2 (one line per lane, spread over all workgroups)")
    e("s_mov_b32 s66, %d" % (1376 * 1024))
    e("s_mov_b32 %s, %d" % (T[1], 43 * 128))
    e("s_cmp_eq_u32 %s, 2" % sW)
    e("s_cselect_b64 s[64:65], s[20:21], s[24:25]")
    e("s_cmp_eq_u32 %s, 1" % sW)
    e("s_cselect_b64 s[64:65], s[16:17], s[64:65]")
    e("s_cselect_b32 s66, %d, s66" % (512 * 1024))
    e("s_cselect_b32 %s, %d, %s" % (T[1], 16 * 128, T[1]))
    e("s_and_b32 s65, s65, 0xffff")
    e("s_mov_b32 s67, 0x20000")
    e("s_mul_i32 %s, %s, s2" % (T[1], T[1]))
    e("s_cmp_eq_u32 %s, 0" % sL)
    e("s_cselect_b32 %s, %d, 99" % (T[8], OPT("ftit", 2)))
    e("s_cmp_eq_u32 %s, 0" % sW)
    e("s_cselect_b32 %s, 99, %s" % (T[8], T[8]))
    cm("lines of the W1 rows that are loaded after attention (128-351, 480-511): half per workgroup of a pair")
    srd(sTMP, 20, 512 * 2752)
    e("s_lshr_b32 %s, %s, 4" % (T[0], sJ))
    addr(T[7], None, 128, [(T[0], 128), (sHW, 32)])
    e("s_cmp_eq_u32 %s, 352" % T[7])
    e("s_cselect_b32 %s, 480, %s" % (T[7], T[7]))
    e("s_mul_i32 %s, %s, 2752" % (T[7], T[7]))
    e("s_mul_i32 %s, %s, 192" % (T[0], sC))
    e("s_add_u32 %s, %s, %s" % (T[7], T[7], T[0]))
    e("v_lshrrev_b32 %s, 1, v0" % v(PF + 1))
    e("v_mul_u32_u24 %s, 2752, %s" % (v(PF + 1), v(PF + 1)))
    e("v_and_b32 %s, 1, v0" % v(PF + 2))
    e("v_lshl_add_u32 %s, %s, 7, %s" % (v(PF + 1), v(PF + 2), v(PF + 1)))
    e("s_cmp_lt_u32 %s, 4" % sW)
    e("s_cbranch_scc1 %s" % a1)
    cm("waves 4-7 fetch Q and this die's K/V, and later the other dies' K/V")
    e("v_and_b32 %s, 15, v0" % v(vPO))
    e("v_lshlrev_b32 %s, 3, %s" % (v(vPO), v(vPO)))
    e("s_lshr_b32 %s, %s, 2" % (T[1], sHEAD))
    e("s_lshl_b32 %s, %s, 1" % (T[1], T[1]))
    addr(GF, None, GFL, [(sL, GFL_L), (T[1], 65536), (sXCD, 128), (sHW, 2048)])
    slot(T[0], FQ, [(T[1], 8)])
    addr(T[1], sLB, QF, [(sHEAD, 1024), (sHW, 2 * HSTR)])
    addr(KVG, None, KVF, [(sL, KVF_L), (sHEAD, 131072), (sHW, 4096)])
    addr(T[8], sLB, KVL, [(sHEAD, 2048), (sHW, 2 * HSTR)])
    addr(T[7], None, QL, [(sHW, 2048)])
    e("s_lshl_b32 %s, %s, 12" % (LP, sHW))
    e("s_add_u32 %s, %s, 1" % (CH, sXCD))
    e("s_mov_b32 %s, 0" % ISS)
    cm("last barrier of the projection: its weight tile in LDS is dead from here on")
    e("s_barrier")
    poll(T[0])
    for b in range(2):
        e("s_add_u32 m0, %s, %d" % (LP, 2048 * b))
        e("s_nop 0")
        for i in range(2):
            e("buffer_load_dwordx4 %s, %s, %s offen offset:%d sc1 lds" % (v(vL16), sWS, T[8], 1024 * i))
        e("s_add_u32 m0, %s, %d" % (T[7], 1024 * b))
        e("s_add_u32 %s, %s, %d" % (T[8], T[8], HSTR))
        e("buffer_load_dwordx4 %s, %s, %s offen sc1 lds" % (v(vL16), sWS, T[1]))
        e("s_add_u32 %s, %s, %d" % (T[1], T[1], HSTR))

    HT, H2 = OPT("ht", 1), OPT("h2", 4)

    def second_chunk():
        blk, back = newlab("sc"), newlab("scb")
        e("s_cmp_eq_u32 %s, 1" % ISS)
        e("s_cbranch_scc1 %s" % blk)
        lab(back)
        NEAR.extend([blk + ":"] + ["    " + x for x in capture(lambda: kv_issue(4, OPT("nt2", 1)))] +
                    ["    s_mov_b32 %s, 2" % ISS, "    s_branch " + back])

    def gflag_load():
        e("buffer_load_dwordx2 %s, %s, %s, %s offen sc1" % (v(vPD, 2), v(PF + 6), sWS, GF))

    def kv_issue(n=4, nt=True):
        e("s_and_b32 %s, %s, 7" % (CH, CH))
        e("s_lshl_b32 %s, %s, 14" % (T[9], CH))
        e("s_add_u32 %s, %s, 16384" % (LP, LP))
        e("s_add_u32 %s, %s, %s" % (T[9], T[9], KVG))
        e("s_mov_b32 m0, %s" % LP)
        e("s_add_u32 %s, %s, 1" % (CH, CH))
        for i in range(n):
            e("buffer_load_dwordx4 %s, %s, %s offen offset:%d sc1%s lds" % (v(vL16), sWS, T[9], 1024 * i, " nt" if OPT("kvnt", 1) and nt else ""))

    def kv_issue_helpers():
        sk, cw = newlab("kvs"), newlab("kvc")
        e("s_cmp_lt_u32 %s, 4" % sW)
        e("s_cbranch_scc1 %s" % cw)
        if HT == 1:
            e("s_cmp_eq_u32 %s, 0" % sIT)
            e("s_cbranch_scc1 %s" % sk)
        kv_issue()
        lab(sk)
        ft = newlab("ft")
        wp = newlab("wp")
        TAIL.extend([wp + ":", "    s_cmp_lg_u32 %s, %d" % (sIT, OPT("woit", 3)), "    s_cbranch_scc1 %s" % sk]
                    + ["    " + x for x in capture(lambda: (srd("s[64:67]", 16, 512 * 1024), addr(T[1], None, 0, [(sJ, 128 * 128), (sW, 32 * 128)])))]
                    + (["    " + x for x in capture(lambda: (
                        e("v_lshrrev_b32 %s, 3, v0" % v(PF + 3)), e("v_mul_u32_u24 %s, %d, %s" % (v(PF + 3), XSTR - 1024, v(PF + 3))),
                        e("v_add_u32 %s, %s, %s" % (v(PF + 3), v(PF + 3), v(PF))),
                        addr(T[0], sLB, OF, [(sW, 2 * XSTR), (sHEAD, 1024)]), e("s_mov_b64 exec, 0xffff"),
                        e("buffer_load_dword %s, %s, %s, %s offen sc1" % (v(PF + 2), v(PF + 3), sWS, T[0])), e("s_mov_b64 exec, -1")))])
                    + ["    s_mov_b32 exec_hi, 0", "    buffer_load_dword %s, %s, s[64:67], %s offen" % (v(PF + 2), v(PF), T[1]),
                       "    s_mov_b64 exec, -1", "    s_branch %s" % sk])
        TAIL.extend([ft + ":", "    s_cmp_lg_u32 %s, %s" % (sIT, T[8]), "    s_cbranch_scc1 %s" % wp,
                     "    buffer_load_dword %s, %s, s[64:67], %s offen" % (v(PF + 2), v(PF), T[1]), "    s_branch %s" % sk])
        TAIL.extend([cw + ":", "    s_cmp_lt_u32 %s, 4" % sIT, "    s_cbranch_scc1 %s" % ft, "    s_mov_b32 exec_hi, 0",
                     "    buffer_load_dword %s, %s, %s, %s offen" % (v(PF + 2), v(PF + 1), sTMP, T[7]),
                     "    s_mov_b64 exec, -1", "    s_add_u32 %s, %s, %d" % (T[7], T[7], 16 * 2752),
                     "    s_branch %s" % sk])
    fine("k")
    e("s_waitcnt vmcnt(0)")
    fine("k")
    if not OPT("late", 0):
        gflag_load()
    lab(a1)
    addr(T[0], None, QL, [(sW, 1024)])
    e("v_add_u32 v16, %s, %s" % (T[0], v(vL16)))
    e("s_barrier")
    stamp()

    def rdk(t):
        e("ds_read_b128 %s, %s offset:%d" % (v(KB[t & 1], 4), v(AD), t * 2048))

    def rdv(t):
        e("s_mov_b64 exec, %s" % sMV)
        e("ds_read_b128 %s, %s offset:%d" % (v(VB[t & 1], 4), v(AD), t * 2048 + 1024))
        e("ds_read_b128 %s, %s offset:%d" % (v(VB[t & 1] + 4, 4), v(AD), t * 2048 + 1280))
        e("s_mov_b64 exec, -1")

    def smf(vb, p):
        e("v_smfmac_f32_32x32x32_bf16 %s, %s, %s, %s" % (v(O, 16), v(vb, 4), v(p, 8), v(IDX)))

    def ex(cur, a, b):
        for i in range(a, b):
            e("v_exp_f32 %s, %s" % (v(S[cur] + i), v(S[cur] + i)))

    def tile(t, extra=None):
        cur, nxt = t & 1, (t + 1) & 1
        ex(cur, 0, 2)
        smf(VB[nxt] + 4, S[nxt] + 8)
        rdv(t + 1)
        ex(cur, 2, 6)
        e("s_waitcnt lgkmcnt(2)")
        mfma(S[nxt], KB[nxt], Q, "0")
        rdk(t + 2)
        if extra:
            extra()
        ex(cur, 6, 12)
        smf(VB[cur], S[cur])
        ex(cur, 12, 16)
    e("ds_read_b128 %s, v16" % v(Q, 4))
    rdk(0)
    rdv(0)
    rdk(1)
    e("s_waitcnt lgkmcnt(3)")
    mfma(S[0], KB[0], Q, "0")
    e("s_mov_b32 %s, 0" % sIT)
    e("s_mov_b32 %s, %d" % (sCNT, POLL_LIMIT))
    e("s_nop 8")
    cm("chunk 0 = keys of this die group; the other groups' K/V are requested as soon as their flags arrive")

    def check(blocking):
        blk, back, issue = newlab("chk"), newlab("chkb"), newlab("iss")
        e("s_cmp_eq_u32 %s, 0" % ISS)
        e("s_cbranch_scc1 %s" % blk)
        lab(back)

        def body():
            if OPT("late", 0):
                gflag_load()
            e("s_waitcnt vmcnt(0)")
            e("v_cmp_eq_u64 vcc, %s, %s" % (v(vPD, 2), v(vFV, 2)))
            e("s_nop 1")
            e("s_cmp_eq_u64 vcc, -1")
            e("s_cbranch_scc1 %s" % issue)
            if not OPT("late", 0):
                gflag_load()
            if blocking:
                e("s_sub_u32 %s, %s, 1" % (sCNT, sCNT))
                e("s_cbranch_scc0 %s" % blk)
                e("s_endpgm")
            else:
                e("s_branch %s" % back)

        def go():
            kv_issue(4, OPT("nt1", 0))
            if HT == 1 and not H2:
                kv_issue(4, OPT("nt1", 0))
            e("s_mov_b32 %s, 1" % ISS)
            e("s_branch %s" % back)
        NEAR.extend([blk + ":"] + ["    " + x for x in capture(body)] + [issue + ":"] + ["    " + x for x in capture(go)])
    NEAR = []
    loop = newlab("att")
    L.append(".p2align 6")
    lab(loop)
    for t in range(8):
        if t % 2 == 0:
            e("s_setprio %d" % ((3 - t // 2) if OPT("pr", 1) else 0))
        BP = OPT("bp", 0)
        if BP < 0 and t in (2, 4, 6):
            check(t == 6)
        if t == BP:
            check(True)
        if t == 6:
            e("s_waitcnt vmcnt(4)")
            e("s_barrier")
        tile(t, kv_issue_helpers if t == HT else second_chunk if H2 and t == H2 else None)
    if PROFILE and FINE == "i":
        e(CLK + " s[70:71]")
        e("s_waitcnt lgkmcnt(0)")
        e("v_mov_b32 v112, s70")
        e("v_cmp_eq_u32 vcc, %s, v0" % sIT)
        e("s_nop 1")
        e("v_cndmask_b32 v5, v5, v112, vcc")
    e("v_add_u32 %s, 16384, %s" % (v(AD), v(AD)))
    e("s_add_u32 %s, %s, 1" % (sIT, sIT))
    e("s_cmp_lt_u32 %s, 6" % sIT)
    e("s_cbranch_scc1 %s" % loop)
    TAIL[:0] = NEAR
    fine("a")
    cm("last two chunks: stream Wo and part of W1 into the dead K/V space, one piece per tile")
    srd(sTMP, 16, 512 * 1024)
    addr(T[0], None, 0, [(sW, 65536), (sNB, 128)])
    e("s_lshl_b32 %s, %s, 13" % (T[1], sW))

    srd("s[64:67]", 24, 1376 * 1024)
    addr(T[2], None, 0, [(sJ, 344 * 128), (sW, 43 * 128)])

    def w2_lines(trip):
        cm("one line per lane: pull this workgroup's share of W2 into the die's L2")
        e("s_mov_b64 exec, 0x3fffff")
        e("buffer_load_dword %s, %s, s[64:67], %s offen" % (v(PF + 2), v(PF), T[2]))
        e("s_mov_b64 exec, -1")
        e("s_add_u32 %s, %s, %d" % (T[2], T[2], 22 * 128))

    def wo_piece(t):
        e("s_add_u32 m0, %s, %d" % (T[1], 1024 * t))
        e("s_nop 0")
        dma1(VO, T[0], 1)
        e("s_add_u32 %s, %s, 8192" % (T[0], T[0]))

    def w1_piece(t):
        if t in (1, 3):
            w2_lines(1)
        for u in ([2 * t, 2 * t + 1] if t < 2 else [t + 2] if t < 4 else []):
            e("s_add_u32 m0, %s, %d" % (T[1], (u // 3) * 22 * 3072 + (u % 3) * 1024))
            e("s_nop 0")
            dma1(VO + 1 + u % 3, T[0], 8)
            if u == 2:
                e("s_add_u32 %s, %s, %d" % (T[0], T[0], 22 * 16 * 2752))
    for trip in range(2):
        for t in range(8):
            if t % 2 == 0:
                e("s_setprio %d" % (3 - t // 2))
            if t == 6 and trip == 0:
                e("s_waitcnt vmcnt(6)")
                e("s_barrier")
            tile(t + 8 * trip, (lambda t=t: wo_piece(t)) if trip == 0 else (lambda t=t: w1_piece(t)))
        if trip == 0:
            addr(T[4], sLB, OF, [(sW, XSTR), (sHEAD, 1024)])
            slot(T[5], FA, [(sW, 32), (sHEAD, 1)])
            srd(sTMP, 20, 512 * 2752)
            addr(T[0], None, 0, [(sW, 16 * 2752), (sC, 192)])
            addr(T[1], None, 65536, [(sW, 3072)])
    e("s_nop 1")
    smf(VB[1] + 4, S[1] + 8)
    e("s_setprio 0")
    e("s_mov_b32 %s, %s" % (T[6], f32(2.0 ** (64 if FORCE_SLOW else -64))))
    e("s_mov_b32 %s, %s" % (T[7], f32(2.0 ** 64)))
    e("s_waitcnt lgkmcnt(0)")
    e("s_nop 7")
    stamp()
    cm("Softmax guard. The loops above used 0 as a stand-in for the row max. That is exact while the row sum")
    cm("stays in [2^-64, 2^64] and the accumulators are finite; otherwise redo this tile with the true max.")
    fin, slow = newlab("att_fin"), newlab("att_slow")
    e("v_cmp_le_f32 %s, %s, %s" % (sM0, T[6], v(O + 8)))
    e("v_cmp_ge_f32 %s, %s, %s" % (sM1, T[7], v(O + 8)))
    e("v_pk_mul_f32 v[18:19], %s, 0 op_sel_hi:[1,0]" % v(O, 2))
    for p in range(1, 4):
        e("v_pk_fma_f32 v[18:19], %s, 0, v[18:19] op_sel_hi:[1,0,1]" % v(O + 2 * p, 2))
    e("s_and_b64 %s, %s, %s" % (sM0, sM0, sM1))
    e("v_cmp_eq_f32 vcc, v18, v19")
    e("s_nop 0")
    e("s_and_b64 %s, %s, vcc" % (sM0, sM0))
    e("s_cmp_eq_u64 %s, -1" % sM0)
    e("s_cbranch_scc0 %s" % slow)
    lab(fin)
    e("v_rcp_f32 v16, %s" % v(O + 8))
    e("s_nop 0")
    for p in range(4):
        e("v_pk_mul_f32 %s, %s, v[16:17] op_sel_hi:[1,0]" % (v(O + 2 * p, 2), v(O + 2 * p, 2)))
    for p in range(4):
        e("v_cvt_pk_bf16_f32 %s, %s, %s" % (v(20 + p), v(O + 2 * p), v(O + 2 * p + 1)))
    lstores(["buffer_store_dwordx4 v[20:23], %s, %s, %s offen" % (v(vL16), sWS, T[4])])
    ns = newlab("ns")
    e("s_cmp_ge_u32 %s, 4" % sW)
    e("s_cbranch_scc1 %s" % ns)
    n512_setup(True)
    lab(ns)
    flag(T[5], 0, local=True)
    e("s_waitcnt vmcnt(1)")
    e("s_barrier")
    keep = L[:]
    del L[:]
    lab(slow)
    cm("true-max softmax for this query tile: pass 1 finds the row max, pass 2 accumulates exp2(s - max)")
    l1, l2 = newlab("slow1"), newlab("slow2")
    addr(T[2], None, KVF, [(sL, KVF_L), (sHEAD, 131072)])
    e("v_mov_b32 %s, 0xff800000" % v(CN))
    e("s_mov_b32 %s, 0" % sIT)
    lab(l1)
    e("buffer_load_dwordx4 %s, %s, %s, %s offen sc1" % (v(KB[0], 4), v(vL16), sWS, T[2]))
    e("s_waitcnt vmcnt(0)")
    mfma(S[0], KB[0], Q, "0")
    e("s_nop 15")
    for i in range(8):
        e("v_max3_f32 %s, %s, %s, %s" % (v(CN), v(S[0] + 2 * i), v(S[0] + 2 * i + 1), v(CN)))
    e("s_add_u32 %s, %s, 2048" % (T[2], T[2]))
    e("s_add_u32 %s, %s, 1" % (sIT, sIT))
    e("s_cmp_lt_u32 %s, 64" % sIT)
    e("s_cbranch_scc1 %s" % l1)
    e("v_mov_b32 %s, %s" % (v(CN + 1), v(CN)))
    e("s_nop 1")
    e("v_permlane32_swap_b32 %s, %s" % (v(CN), v(CN + 1)))
    e("s_nop 1")
    e("v_max_f32 %s, %s, %s" % (v(CN), v(CN), v(CN + 1)))
    e("v_sub_f32 %s, 0, %s" % (v(CN), v(CN)))
    for i in range(1, 16):
        e("v_mov_b32 %s, %s" % (v(CN + i), v(CN)))
    for i in range(16):
        e("v_mov_b32 %s, 0" % v(O + i))
    addr(T[2], None, KVF, [(sL, KVF_L), (sHEAD, 131072)])
    e("s_mov_b32 %s, 0" % sIT)
    lab(l2)
    e("buffer_load_dwordx4 %s, %s, %s, %s offen sc1" % (v(KB[0], 4), v(vL16), sWS, T[2]))
    e("s_mov_b64 exec, %s" % sMV)
    e("buffer_load_dwordx4 %s, %s, %s, %s offen offset:1024 sc1" % (v(VB[0], 4), v(vL16), sWS, T[2]))
    e("buffer_load_dwordx4 %s, %s, %s, %s offen offset:1280 sc1" % (v(VB[0] + 4, 4), v(vL16), sWS, T[2]))
    e("s_mov_b64 exec, -1")
    e("s_waitcnt vmcnt(0)")
    mfma(S[0], KB[0], Q, CN)
    e("s_nop 15")
    for i in range(16):
        e("v_exp_f32 %s, %s" % (v(S[0] + i), v(S[0] + i)))
    e("s_nop 1")
    smf(VB[0], S[0])
    smf(VB[0] + 4, S[0] + 8)
    e("s_nop 15")
    e("s_add_u32 %s, %s, 2048" % (T[2], T[2]))
    e("s_add_u32 %s, %s, 1" % (sIT, sIT))
    e("s_cmp_lt_u32 %s, 64" % sIT)
    e("s_cbranch_scc1 %s" % l2)
    e("s_branch %s" % fin)
    TAIL.extend(L)
    L[:] = keep
    stamp()


def ffn1_setup():
    e("v_and_b32 %s, 15, v0" % v(vPO))
    e("v_lshlrev_b32 %s, 3, %s" % (v(vPO), v(vPO)))
    slot(T[0], FO, [(sTBW, 16)])
    addr(T[1], sLB, X1F, [(sTBW, XSTR)])
    addr(T[2], sLB, ST1, [(sTBW, 4096)])
    e("v_add_u32 %s, %d, %s" % (v(vCA), CONST, v(vH16)))
    tr_rows(vW2, 192)
    e("v_add_u32 %s, 0x10000, %s" % (v(vW0), v(vW2)))
    e("v_add_u32 %s, %d, %s" % (v(vW1), 21 * 3072, v(vW0)))


def n512_setup(wo):
    J = 16 if wo else 39
    AK, AS = vACC, vACC + 16
    if not wo:
        addr(T[0], None, CONST + 384, [(sKH, 512)])
        e("v_add_u32 %s, %s, %s" % (v(vPO), T[0], v(vH16)))
        for i in range(4):
            e("ds_read_b128 %s, %s offset:%d" % (v(AS + 4 * i, 4), v(vPO), 32 * i))
    unpack(AK, vRES, 8)
    tr_rows(vW0, 128)
    e("v_bfe_u32 %s, v0, 3, 1" % v(vPD))
    e("v_xor_b32 %s, %s, %s" % (v(vPD), sKH, v(vPD)))
    e("v_lshl_or_b32 %s, %s, 6, %s" % (v(vW0), v(vPD), v(vW0)))
    e("s_mul_i32 %s, %s, %d" % (T[0], sKH, J * 2048))
    e("v_add_u32 %s, %s, %s" % (v(vW0), T[0], v(vW0)))
    e("v_xor_b32 %s, 64, %s" % (v(vW1), v(vW0)))
    if not wo:
        e("v_add_u32 %s, 0x10000, %s" % (v(vW2), v(vW0)))
        e("v_add_u32 %s, 0x10000, %s" % (v(vW3), v(vW1)))
    if wo:
        e("v_and_b32 %s, 15, v0" % v(vPO))
        slot(T[0], FA, [(sTBN, 32), (sKH, 16)])
        addr(T[1], sLB, OF, [(sTBN, XSTR), (sKH, 16384)])
    else:
        e("v_and_b32 %s, 7, v0" % v(vPO))
        slot(T[0], FH, [(sTBN, 16), (sKH, 7)])
        addr(T[1], sLB, HF, [(sTBN, HSTR), (sKH, 43 * 1024)])
    e("v_lshlrev_b32 %s, 3, %s" % (v(vPO), v(vPO)))
    if not wo:
        e("s_waitcnt lgkmcnt(0)")
        for p in range(8):
            e("v_pk_add_f32 %s, %s, %s" % (v(AK + 2 * p, 2), v(AK + 2 * p, 2), v(AS + 2 * p, 2)))


def n512(kind):
    wo = kind == "wo"
    ph = "o" if wo else "g"
    cm("================ %s" % ("output projection + residual" if wo else "MLP down projection + residual"))
    NS, J = (16, 16) if wo else (43, 39)
    ND = OPT("nd", 10 if wo else 13)
    AK, AS = vACC, vACC + 16
    hl, done = newlab("n_h"), newlab("n_done")
    e("s_cmp_ge_u32 %s, 4" % sW)
    e("s_cbranch_scc1 %s" % hl)
    if not wo:
        e("s_barrier")

    def rd(j, i):
        jj = j % J
        base, off = ((vW0, vW1)[i], jj * 2048) if jj < 32 else ((vW2, vW3)[i], (jj - 32) * 2048)
        d = vWB + (j % 3) * 8 + 4 * i
        e("ds_read_b64_tr_b16 %s, %s offset:%d" % (v(d, 2), v(base), off))
        e("ds_read_b64_tr_b16 %s, %s offset:%d" % (v(d + 2, 2), v(base), off + 1024))
    for j in range(2):
        for i in range(2):
            rd(j, i)
    poll(T[0])
    stamp()
    areg = lambda j: vA + 4 * (j % 32)
    load_frags(T[1], 0, ND, areg)
    fine(ph)

    def late_addresses():
        e("s_and_b32 %s, %s, 1" % (T[2], sW))
        if wo:
            addr(T[0], None, 0, [(T[2], 4096), (sKH, 32768)])
            e("s_xor_b32 %s, %s, 32768" % (T[3], T[0]))
            publish_addr(X1F, ST1, 0, FO)
        else:
            addr(T[0], None, 98304, [(T[2], 4096), (sKH, 8192)])
            e("s_xor_b32 %s, %s, 8192" % (T[3], T[0]))
            publish_addr(XF, ST, LFL_L * 8, FX)
        e("v_add_u32 %s, %s, %s" % (v(vPO), T[0], v(vL16)))
        e("v_add_u32 %s, %s, %s" % (v(vPD), T[3], v(vL16)))
    sh = capture(late_addresses)
    for j in range(NS):
        issued = min(NS, ND + j)
        if not wo and j == J - 2:
            e("s_barrier")
        if j < NS - 1:
            last2 = j == NS - 2
            e("s_waitcnt vmcnt(%d) lgkmcnt(%d)" % (0 if last2 else issued - j - 1, 0 if last2 else 4))
        if j in ((0, 4, 8, 15) if wo else (0, 11, 22, 42)):
            fine(ph)
        seq = [(j, 0), (j, 1)] if j < NS - 2 else [(j, 1), (j + 1, 1)] if j == NS - 2 else [(j - 1, 0), (j, 0)]
        for m, (jj, i) in enumerate(seq):
            acc = AK + 16 * i
            mfma(acc, vWB + (jj % 3) * 8 + 4 * i, areg(jj), "0" if (jj == 0 and i == 1) else acc)
            if j + 2 < NS:
                rd(j + 2, i)
            if m == 0 and ND + j < NS:
                load_frags(T[1], ND + j, 1, areg, False)
            if j >= 2:
                g = (j - 2) * 2 + m
                for x in sh[2 * g:2 * g + 2]:
                    e(x)
        if j == (8 if wo else NS - J - 1):
            e("s_barrier")
    assert len(sh) <= 4 * (NS - 2)
    e("s_nop 9")
    for i in range(4):
        e("ds_write_b128 %s, %s offset:%d" % (v(vPO), v(AS + 4 * i, 4), 1024 * i))
    e("s_waitcnt lgkmcnt(0)")
    e("s_barrier")
    stamp()
    for i in range(4):
        e("ds_read_b128 %s, %s offset:%d" % (v(AS + 4 * i, 4), v(vPD), 1024 * i))
    for i in range(4):
        e("s_waitcnt lgkmcnt(%d)" % (3 - i))
        for p in (2 * i, 2 * i + 1):
            e("v_pk_add_f32 %s, %s, %s" % (v(AK + 2 * p, 2), v(AK + 2 * p, 2), v(AS + 2 * p, 2)))
    for p in range(8):
        e("v_cvt_pk_bf16_f32 %s, %s, %s" % (v(vRES + p), v(AK + 2 * p), v(AK + 2 * p + 1)))
    if wo:
        publish_x(AK, 20, ffn1_setup)
    else:
        last = newlab("last")
        e("s_cmp_lg_u32 %s, 0" % sL)
        e("s_cbranch_scc1 %s" % last)
        publish_x(AK, 20, lambda: qkv_setup(True))
        e("s_branch %s" % done)
        lab(last)
        srd(sTMP, 28, 2048 * 1024)
        e("v_and_b32 v16, 31, v0")
        e("v_lshlrev_b32 v16, 10, v16")
        e("v_add_u32 v16, v16, %s" % v(vH16))
        addr(T[0], None, 0, [(sXCD, 262144), (sTBN, 32768), (sNT, 64)])
        for g in range(2):
            e("v_permlane32_swap_b32 %s, %s" % (v(vRES + 4 * g), v(vRES + 4 * g + 2)))
            e("v_permlane32_swap_b32 %s, %s" % (v(vRES + 4 * g + 1), v(vRES + 4 * g + 3)))
        for g in range(2):
            e("buffer_store_dwordx4 %s, v16, %s, %s offen offset:%d" % (v(vRES + 4 * g, 4), sTMP, T[0], 32 * g))
    e("s_branch %s" % done)
    lab(hl)
    if wo:
        voff_192(44)
        e("s_lshl_b32 %s, %s, 2" % (T[3], sHW))
        e("s_min_u32 %s, %s, 10" % (T[3], T[3]))
        addr(T[0], None, 8 * 16 * 2752, [(T[3], 16 * 2752), (sC, 192)])
        addr(T[1], None, 65536 + 8 * 3072, [(T[3], 3072)])
        dma_w1(2)
        e("s_mov_b32 %s, %s" % (T[3], T[0]))
        e("s_mov_b32 %s, %s" % (T[4], T[1]))
        w0, w1, w2 = newlab("wcs"), newlab("wcs"), newlab("wcs")
        e("s_cmp_lg_u32 %s, 0" % sL)
        e("s_cbranch_scc1 %s" % w0)
        tr_rows(43, 192)
        colsum_begin()
        addr(T[0], None, 65536, [(sHW, 2 * 3072)])
        colsum_w1()
        addr(T[0], None, 65536 + 22 * 3072, [(sHW, 2 * 3072)])
        colsum_w1()
        lab(w0)
        e("s_mov_b32 %s, %s" % (T[0], T[3]))
        e("s_mov_b32 %s, %s" % (T[1], T[4]))
        e("s_barrier")
        fine("v")
        dma_w1(2)
        e("s_barrier")
        fine("v")
        e("s_cmp_lg_u32 %s, 3" % sHW)
        e("s_cbranch_scc1 %s" % w1)
        addr(T[0], None, 30 * 16 * 2752, [(sC, 192)])
        e("s_mov_b32 %s, %d" % (T[1], 58 * 1024))
        dma_w1(2)
        lab(w1)
        e("s_cmp_lg_u32 %s, 0" % sL)
        e("s_cbranch_scc1 %s" % done)
        cm("own late k-steps: 8-11 | 12-15 | 16-19 | 20-21 and 30-31")
        e("s_and_b32 %s, %s, 1" % (T[4], sHW))
        addr(T[0], None, 65536 + 8 * 3072, [(sHW, 4 * 3072)])
        e("s_add_u32 %s, %s, %d" % (T[3], T[0], 2 * 3072))
        e("s_cmp_eq_u32 %s, 3" % sHW)
        e("s_cselect_b32 %s, %d, %s" % (T[3], 58 * 1024, T[3]))
        e("s_waitcnt vmcnt(0)")
        colsum_w1()
        e("s_mov_b32 %s, %s" % (T[0], T[3]))
        colsum_w1()
        colsum_partial()
        e("v_lshlrev_b32 v47, 16, v224")
        addr(T[0], None, B1_L, [(sHW, 128)])
        e("v_add_u32 v42, %s, v41" % T[0])
        e("ds_write_b32 v42, v47")
        e("v_lshlrev_b32 v49, 16, v225")
        addr(T[0], None, CONST + 384, [(T[4], 512)])
        e("v_add_u32 v42, %s, v41" % T[0])
        e("ds_write_b32 v42, v49")
    else:
        e("s_waitcnt vmcnt(0)")
        fine("w")
        e("s_barrier")
        fine("w")
        e("s_lshr_b32 %s, %s, 1" % (T[3], sHW))
        e("s_and_b32 %s, %s, 1" % (T[4], sHW))
        addr(T[0], None, 78 * 8192, [(T[3], 86 * 8192), (T[4], 4 * 8192), (sNB, 128)])
        addr(T[1], None, 0, [(T[3], 78 * 1024), (T[4], 4096)])
        e("s_barrier")
        for k in range(4):
            e("s_add_u32 m0, %s, %d" % (T[1], 1024 * k))
            e("s_nop 0")
            dma1(40, T[0], 4)
            e("s_add_u32 %s, %s, 8192" % (T[0], T[0]))
        e("s_waitcnt vmcnt(0)")
        e("s_barrier")
        stash_addr()
        e("s_barrier")
        e("s_cmp_lg_u32 %s, 0" % sL)
        e("s_cbranch_scc1 %s" % done)
        for k in range(24):
            e("ds_write_b128 v42, %s offset:%d" % (v(vSTASH + 4 * k, 4), 1024 * k))
    lab(done)
    stamp()


def ffn1():
    cm("================ MLP up projection + GELU")
    hl, done = newlab("f1_h"), newlab("f1_done")
    e("s_cmp_ge_u32 %s, 4" % sW)
    e("s_cbranch_scc1 %s" % hl)
    idle = newlab("f1_idle")
    e("s_cmp_eq_u32 %s, 15" % sC)
    e("s_cbranch_scc1 %s" % idle)
    setup = newlab("f1_setup")
    TAIL.extend([idle + ":"] + ["    s_barrier"] * 4 + ["    s_branch " + setup])

    lds = Lds()

    def rd(ks, i):
        d = vWB + (ks % 3) * 12 + 4 * i
        base, off = (vW0, ks * 3072) if ks < 21 else (vW1, (ks - 21) * 3072) if ks < 30 else (vW2, 58 * 1024 + (ks - 30) * 3072)
        lds.op(("w", ks), "ds_read_b64_tr_b16 %s, %s offset:%d" % (v(d, 2), v(base), off + 64 * i))
        lds.op(("w", ks), "ds_read_b64_tr_b16 %s, %s offset:%d" % (v(d + 2, 2), v(base), off + 64 * i + 1536))

    def wait(name):
        n = lds.need(name)
        if n is not None:
            e("s_waitcnt lgkmcnt(%d)" % n)
    for ks in range(2):
        for i in range(3):
            rd(ks, i)
    poll(T[0])
    stamp()

    def item(n):
        if n < 32:
            load_frags(T[1], n, 1, lambda j: vA + 4 * j, n % 4 == 0)
        else:
            e("buffer_load_dwordx4 %s, %s, %s, %s offen offset:%d sc1" % (v(vSTS + 4 * (n - 32), 4), v(vL16), sWS, T[2], 1024 * (n - 32)))
    sched = [[ks + DEPTH] if ks + DEPTH < 32 else [] for ks in range(32)]
    for k in range(4):
        sched[1 + k].append(32 + k)
    order = list(range(DEPTH))
    for n in range(DEPTH):
        item(n)
    fine("f")
    c0 = -2.0 * 1.4426950408889634 * 0.7978845608028654
    GC = vSTS + 4

    def early():
        addr(T[4], sLB, HF, [(sTBW, HSTR), (sC, 6144)])
        e("s_add_u32 %s, %s, 4096" % (T[5], T[4]))
        slot(T[6], FH, [(sTBW, 16), (sC, 1)])
    S0 = OPT("s0", 11)
    mid = stats_code(True) + ["v_mul_f32 %s, %s, %s" % (v(vMU), v(vMU), v(vR)), "v_mov_b32 %s, %s" % (v(GC), f32(c0)),
                              "v_mov_b32 %s, %s" % (v(GC + 1), f32(c0 * 0.044715)), "v_mov_b32 %s, 1.0" % v(GC + 2)]
    sh = [(5, lambda x=x: e(x)) for x in capture(early)] + [(S0, lambda x=x: e(x)) for x in mid]
    cm("bias' = b1 - mean*rstd*colsum is formed under the last MFMAs, in dead activation registers")
    rdc, fmc = [], []
    for t in range(3):
        rdc.append([(max(12, 8 * t + 8), lambda t=t, k=k: lds.op(("c", t), "ds_read_b128 %s, %s offset:%d" % (
            v(16 + 32 * t + 4 * k, 4), v(vCA), 512 + 512 * (k // 4) + t * 128 + 32 * (k % 4)))) for k in range(8)])
        fmc.append([(0, lambda t=t: wait(("c", t)))] + [(0, lambda t=t, r=r: e("v_fma_f32 %s, -%s, %s, %s" % (
            v(32 + 32 * t + r), v(vMU), v(16 + 32 * t + r), v(32 + 32 * t + r)))) for r in range(16)])
    mix = lambda a, b: [x for k in range(max(len(a), len(b))) for x in a[2 * k:2 * k + 2] + b[k:k + 1]]
    sh += rdc[0] + mix(fmc[0], rdc[1]) + fmc[1][:9] + mix(fmc[1][9:], rdc[2]) + fmc[2]
    pos = 0
    for ks in range(32):
        if ks in (6, 12, 22):
            e("s_barrier")
        newest = max(order.index(n) for n in ([ks, 35] if ks >= S0 else [ks]))
        lg = lds.need(("w", ks))
        e("s_waitcnt vmcnt(%d)%s" % (len(order) - 1 - newest, "" if lg is None else " lgkmcnt(%d)" % lg))
        if ks in FINEKS:
            fine("f")
        for i in range(3):
            mfma(vACC + 16 * i, vWB + (ks % 3) * 12 + 4 * i, vA + 4 * ks, "0" if ks == 0 else vACC + 16 * i)
            if ks + 2 < 32:
                rd(ks + 2, i)
            if i < len(sched[ks]):
                item(sched[ks][i])
                order.append(sched[ks][i])
            for _ in range(OPT("fp", 2) if ks < 30 else 5):
                if pos < len(sh) and ks >= sh[pos][0]:
                    sh[pos][1]()
                    pos += 1
    for x in sh[pos:]:
        x[1]()
    stamp()
    e("s_nop %d" % max(0, 9 - len(sh[pos:])))
    Z, P = 120, vWB
    for t in range(3):
        acc, b1 = vACC + 16 * t, 32 + 32 * t
        for p in range(8):
            e("v_pk_fma_f32 %s, %s, %s, %s op_sel_hi:[1,0,1]" %
              (v(acc + 2 * p, 2), v(acc + 2 * p, 2), v(vR, 2), v(b1 + 2 * p, 2)))
        for p in range(8):
            e("v_pk_mul_f32 %s, %s, %s" % (v(Z + 2 * p, 2), v(acc + 2 * p, 2), v(acc + 2 * p, 2)))
        for p in range(8):
            e("v_pk_fma_f32 %s, %s, %s, %s op_sel:[0,1,0] op_sel_hi:[1,1,0]" %
              (v(Z + 2 * p, 2), v(Z + 2 * p, 2), v(GC, 2), v(GC, 2)))
        for p in range(8):
            e("v_pk_mul_f32 %s, %s, %s" % (v(Z + 2 * p, 2), v(Z + 2 * p, 2), v(acc + 2 * p, 2)))
        for i in range(16):
            e("v_exp_f32 %s, %s" % (v(Z + i), v(Z + i)))
        for p in range(8):
            e("v_pk_add_f32 %s, %s, %s op_sel_hi:[1,0]" % (v(Z + 2 * p, 2), v(Z + 2 * p, 2), v(GC + 2, 2)))
        for i in range(16):
            e("v_rcp_f32 %s, %s" % (v(Z + i), v(Z + i)))
        for p in range(8):
            e("v_pk_mul_f32 %s, %s, %s" % (v(acc + 2 * p, 2), v(acc + 2 * p, 2), v(Z + 2 * p, 2)))
        for p in range(8):
            e("v_cvt_pk_bf16_f32 %s, %s, %s" % (v(P + 8 * t + p), v(acc + 2 * p), v(acc + 2 * p + 1)))
        lstores(["buffer_store_dwordx4 %s, %s, %s, %s offen offset:%d" %
                 (v(P + 8 * t + 4 * hh, 4), v(vL16), sWS, T[4 + (2 * t + hh) // 4], ((2 * t + hh) % 4) * 1024) for hh in range(2)])
        if t == 0:
            e("s_barrier")
        if t != 1:
            fine("f")
    lab(setup)
    n512_setup(False)
    e("s_cmp_eq_u32 %s, 15" % sC)
    e("s_cbranch_scc1 %s" % done)
    flag(T[6], 0, local=True)
    e("s_branch %s" % done)
    lab(hl)
    h1 = newlab("fh1")
    voff_128(40)
    srd(sTMP, 24, 1376 * 1024)
    fine("v")
    e("s_waitcnt vmcnt(0) lgkmcnt(0)")
    fine("v")
    e("s_barrier")
    fine("v")
    e("s_cmp_lg_u32 %s, 0" % sL)
    e("s_cbranch_scc1 %s" % h1)
    colsum_combine(CS1_L)
    e("s_waitcnt lgkmcnt(0)")
    lab(h1)
    e("s_barrier")
    E0 = OPT("e0", 2)
    if E0:
        dma_w2(0, 0, E0, OPT("e0p", 1) or -1)
    e("s_barrier")
    fine("w")
    dma_w2(86, 78 * 1024, 7, None)
    dma_w2(4 * E0, 4 * E0 * 1024, 14 - E0, None)
    dma_w2(86 + 28, (78 + 28) * 1024, 6, None)
    fine("w")
    e("s_barrier")
    fine("w")
    dma_w2(54, 54 * 1024, 6)
    dma_w2(86 + 50, (78 + 50) * 1024, 7)
    fine("w")
    lab(done)
    stamp()


def epilogue():
    e("s_add_u32 %s, %s, 1" % (sL, sL))
    e("s_add_u32 %s, %s, %d" % (sFB, sFB, LFL_L * 8))
    e("s_cmp_lt_u32 %s, 2" % sL)
    e("s_cbranch_scc1 L_layer")
    if PROFILE:
        e("s_memrealtime s[22:23]")
        e("s_waitcnt lgkmcnt(0)")
        stamp("s23")
        e("s_lshl_b32 %s, s2, 3" % T[0])
        e("s_add_u32 %s, %s, %s" % (T[0], T[0], sW))
        e("s_lshl_b32 %s, %s, 8" % (T[0], T[0]))
        e("s_add_u32 %s, %s, 0x%x" % (T[0], T[0], TSB))
        e("s_mov_b64 exec, 1")
        for i, r in enumerate([68, 18, 19] + list(range(STAMP0, STAMP0 + 30)) + [22, 23, 0, 1]):
            e("v_mov_b32 v16, s%d" % r)
            e("buffer_store_dword v16, off, %s, %s offset:%d" % (sWS, T[0], 4 * i))
        e("s_mov_b64 exec, 0xff")
        e("v_lshlrev_b32 v16, 2, v0")
        e("buffer_store_dword v5, v16, %s, %s offen offset:148" % (sWS, T[0]))
        e("s_mov_b64 exec, -1")
    if "--dbg" in sys.argv:
        sk = newlab("dbg")
        e("s_or_b32 %s, s2, %s" % (T[0], sW))
        e("s_cmp_lg_u32 %s, 0" % T[0])
        e("s_cbranch_scc1 %s" % sk)
        srd(sTMP, 30, 256)
        e("s_mov_b64 exec, 1")
        for i, r in enumerate([19, 72, 73, 74, 75, 76, 77, 80, 83, 86, 89, 90, 91, 95, 98, 101]):
            e("s_sub_u32 %s, s%d, s18" % (T[0], r))
            e("v_mov_b32 v16, %s" % T[0])
            e("buffer_store_dword v16, off, %s, 0 offset:%d" % (sTMP, 4 * i))
        e("s_mov_b64 exec, -1")
        lab(sk)
    if OPT("hold", 0):
        hl = newlab("hold")
        lab(hl)
        e("s_memrealtime s[70:71]")
        e("s_waitcnt lgkmcnt(0)")
        e("s_sub_u32 s70, s70, s68")
        e("s_cmp_lt_u32 s70, %d" % OPT("hold", 0))
        e("s_cbranch_scc1 %s" % hl)
    cm("advance the hand-off tag for the next launch")
    e("s_or_b32 %s, s2, %s" % (T[0], sW))
    e("s_cmp_lg_u32 %s, 0" % T[0])
    e("s_cbranch_scc1 L_end")
    e("s_mov_b64 exec, 1")
    e("buffer_store_dword %s, off, %s, 0" % (v(vFV), sWS))
    lab("L_end")
    e("s_endpgm")
    L.extend(TAIL)


HEADER = open(f"cdna_kernels/{NAME}.s.ref").read().split("; Override launch")[0]


OVERVIEW = """;
; Generated by gen/gen.py (hand-written generator). One persistent launch, one 8-wave workgroup per CU.
; Hand-offs: payload stores, vmcnt wait, then an 8-byte flag {tag, ~tag}; tag = ws[0] + 16 differs per launch.
;   Every workgroup reports the die it runs on. If a die group shares one die its hand-offs use plain stores
"""


def main():
    prologue()
    p0()
    lab("L_layer")
    qkv()
    attention()
    n512("wo")
    ffn1()
    n512("f2")
    epilogue()
    k = NAME + "_kernel"
    out = HEADER
    out += "; @launch grid=(256,1,1) block=(512,1,1) lds=%d\n" % LDS_BYTES
    out += OVERVIEW
    out += '.amdgcn_target "amdgcn-amd-amdhsa--gfx950"\n.text\n.globl %s\n.p2align 8\n.type %s,@function\n%s:\n' % (k, k, k)
    out += "\n".join(L) + "\n"
    out += """.section .rodata,"a"
.p2align 6
.amdhsa_kernel %s
  .amdhsa_next_free_vgpr 256
  .amdhsa_next_free_sgpr 102
  .amdhsa_accum_offset 256
  .amdhsa_group_segment_fixed_size 0
  .amdhsa_kernarg_size 88
  .amdhsa_user_sgpr_count 2
  .amdhsa_user_sgpr_kernarg_segment_ptr 1
  .amdhsa_system_sgpr_workgroup_id_x 1
.end_amdhsa_kernel
""" % k
    open(OUT, "w").write(out)
    import subprocess
    r = subprocess.run([sys.executable, "hazard.py", OUT], capture_output=True, text=True).stdout
    if not r.strip().endswith("violations 0"):
        print(r)


main()
```

```python
import struct
import sys

NAME = "interleave_layers__softmax_full_mha__mixer_channel_mlp__prompt"
PROFILE = "--prof" in sys.argv
CLK = "s_memrealtime" if "--rt" in sys.argv else "s_memtime"
FORCE_SLOW = "--slow" in sys.argv
FORCE_GLOBAL = "--global" in sys.argv
OUT = [a for a in sys.argv[1:] if not a.startswith("--")]
OUT = OUT[0] if OUT else f"cdna_kernels/{NAME}.s"


def OPT(name, default):
    a = [x.split("=")[1] for x in sys.argv if x.startswith("--%s=" % name)]
    return int(a[0]) if a else default


def f32(x):
    return "0x%08x" % struct.unpack("<I", struct.pack("<f", x))[0]


WS_SIZE = 0x10000000
FLG = 0x100000
FI = 0
GFL, GFL_L = 0xA00000, 0x100000
KVF, KVF_L = 0x200000, 0x400000
ARENA, ARENA_X = 0x1000000, 0x200000
XSTR, HSTR = 33 * 1024, 97 * 1024
XF, OF, BLK, ST, LFL = 0, 0x48000, 0x90000, 0x158000, 0x160000
X1F, ST1, HF, QF, KVL = XF, ST, BLK, BLK, BLK + 32768
FX, FQ, FA, FO, FH, LFL_L = 0, 128, 256, 512, 640, 768
TSB = 0x4000000
DEPTH = OPT("depth", 10)
PACE = OPT("pace", 5)
RED = 140 * 1024
CONST = 156 * 1024
CSQ_L, CS1_L, B1_L, STAT_L, PART_L = CONST, CONST + 512, CONST + 1024, CONST + 1536, CONST + 2560
MODE_L = B1_L + 400
LDS_BYTES = 160 * 1024
sWS, sTMP = "s[4:7]", "s[8:11]"
sW, sNONCE, sL, sLB, sFB = "s34", "s35", "s36", "s37", "s38"
sXCD, sJ, sTBW, sC, sTBN, sNB, sKH, sNT, sHEAD, sQB = ("s%d" % i for i in range(39, 49))
sHW = "s49"
T = ["s%d" % i for i in range(50, 60)]
sCNT, sIT = "s60", "s61"
sMV = "s[62:63]"
sM0, sM1 = "s[64:65]", "s[66:67]"
sMODE = "s3"
STAMP0 = 72
vLANE, vL16, vFV, vPO, vT5, vPD = 0, 1, 2, 4, 5, 6
vRES = 8
vA, vACC, vWB, vSTS = 16, 144, 192, 228
vW0, vW1, vMU, vW2, vR, vW3, vRQ, vCA, vTR, vK16, vVOF, vH16 = 244, 245, 246, 247, 248, 249, 250, 251, 252, 253, 254, 255
vSTASH = 128
QL = 128 * 1024
POLL_LIMIT = 1 << 16

L = []
TAIL = []
uid = [0]
nstamp = [0]


def e(s):
    L.append("    " + s)


def lab(n):
    L.append(n + ":")


def cm(s):
    L.append("    ; " + s)


def v(i, n=1):
    return "v%d" % i if n == 1 else "v[%d:%d]" % (i, i + n - 1)


def capture(f):
    n = len(L)
    f()
    out = [x.strip() for x in L[n:]]
    del L[n:]
    return out


def newlab(p):
    uid[0] += 1
    return "L_%s_%d" % (p, uid[0])


def stamp(fixed=None):
    if not PROFILE:
        return
    e(CLK + " s[70:71]")
    e("s_waitcnt lgkmcnt(0)")
    if fixed:
        e("s_mov_b32 %s, s70" % fixed)
        return
    e("s_mul_i32 s69, %s, 15" % sL)
    e("s_add_u32 m0, s69, %d" % nstamp[0])
    e("s_nop 1")
    e("s_movreld_b32 s%d, s70" % STAMP0)
    nstamp[0] += 1
    assert nstamp[0] <= 15


FINE = [a.split("=")[1] for a in sys.argv if a.startswith("--fine=")]
FINE = FINE[0] if FINE else None
nfine = [0]
FINEKS = eval([a.split('=')[1] for a in sys.argv if a.startswith('--ks=')][0]) if any(a.startswith('--ks=') for a in sys.argv) else (0, 8, 16, 31)


def fine(phase):
    if not PROFILE or FINE != phase:
        return
    e(CLK + " s[70:71]")
    e("s_waitcnt lgkmcnt(0)")
    sk = newlab("fs")
    e("s_cmp_lg_u32 %s, %d" % (sL, 0 if "--l0" in sys.argv else 1))
    e("s_cbranch_scc1 %s" % sk)
    e("v_writelane_b32 v5, s70, %d" % nfine[0])
    lab(sk)
    nfine[0] += 1


def srd(dst, lo, size):
    b = int(dst[2:dst.index(":")])
    e("s_mov_b32 s%d, s%d" % (b, lo))
    e("s_and_b32 s%d, s%d, 0xffff" % (b + 1, lo + 1))
    e("s_mov_b32 s%d, %s" % (b + 2, size if isinstance(size, str) else hex(size)))
    e("s_mov_b32 s%d, 0x20000" % (b + 3))


def poll(soff):
    a, b = newlab("poll"), newlab("pok")
    regs = (vPD, 16) if OPT("p2", 1) else (vPD,)
    ld = lambda r: e("buffer_load_dwordx2 %s, %s, %s, %s offen sc1" % (v(r, 2), v(vPO), sWS, soff))
    e("s_mov_b32 %s, %d" % (sCNT, POLL_LIMIT))
    if len(regs) == 2:
        ld(regs[0])
    lab(a)
    for k, r in enumerate(regs):
        ld(regs[(k + 1) % len(regs)])
        e("s_waitcnt vmcnt(%d)" % (len(regs) - 1))
        e("v_cmp_eq_u64 vcc, %s, %s" % (v(r, 2), v(vFV, 2)))
        e("s_nop 0")
        e("s_cmp_eq_u64 vcc, -1")
        e("s_cbranch_scc1 %s" % b)
    e("s_sub_u32 %s, %s, 1" % (sCNT, sCNT))
    e("s_cbranch_scc0 %s" % a)
    e("s_endpgm")
    lab(b)


def lstores(lines):
    g, d = newlab("wt"), newlab("wtd")
    e("s_cmp_eq_u32 %s, 0" % sMODE)
    e("s_cbranch_scc1 %s" % g)
    for x in lines:
        e(x)
    lab(d)
    TAIL.append(g + ":")
    for x in lines:
        TAIL.append("    " + x + (" sc1" if x.startswith("buffer_store") else ""))
    TAIL.append("    s_branch " + d)


def flag(soff, n=0, local=False):
    if n is not None:
        e("s_waitcnt vmcnt(%d)" % n)
    if local:
        e("s_mov_b64 exec, 1")
        lstores(["buffer_store_dwordx2 %s, off, %s, %s" % (v(vFV, 2), sWS, soff)])
    else:
        e("v_lshlrev_b32 %s, 3, v0" % v(vPD))
        e("s_mov_b64 exec, 0xffff")
        e("buffer_store_dwordx2 %s, %s, %s, %s offen sc1" % (v(vFV, 2), v(vPD), sWS, soff))
    e("s_mov_b64 exec, -1")


def mode_poll(first=False):
    a, b, glob, out = newlab("mp"), newlab("mpok"), newlab("mpg"), newlab("mpo")
    e("v_and_b32 %s, 31, v0" % v(vPD))
    e("v_lshlrev_b32 %s, 10, %s" % (v(vPD), v(vPD)))
    addr(T[3], None, FLG + FI * 128, [(sXCD, 128)])
    e("v_add_u32 %s, %s, %s" % (v(vPD), T[3], v(vPD)))
    if first:
        e("v_add_u32 %s, %s, %s" % (v(vPD + 1), T[0], v(vPO)))
        e("v_cmp_gt_u32 vcc, 32, v0")
        e("s_nop 1")
        e("v_cndmask_b32 v60, %s, %s, vcc" % (v(vPD), v(vPD + 1)))
    e("s_getreg_b32 %s, hwreg(HW_REG_XCC_ID, 0, 4)" % T[3])
    e("s_mov_b32 %s, %d" % (sCNT, POLL_LIMIT))
    e("s_mov_b32 %s, 1" % sMODE)
    lab(a)
    e("buffer_load_dwordx2 %s, v60, %s, 0 offen sc1" % (v(vPD, 2), sWS))
    e("s_waitcnt vmcnt(0)")
    e("v_xor_b32 %s, %s, %s" % (v(vPD + 1), v(vPD + 1), v(vFV + 1)))
    e("v_cmp_eq_u32 %s, %s, %s" % (sM0, v(vPD), v(vFV)))
    e("v_cmp_eq_u32 %s, %s, %s" % (sM1, T[3], v(vPD + 1)))
    e("v_cmp_gt_u32 vcc, 16, %s" % v(vPD + 1))
    e("s_nop 1")
    e("s_and_b64 %s, %s, %s" % (sM1, sM1, sM0))
    e("s_and_b64 vcc, vcc, %s" % sM0)
    if not FORCE_GLOBAL:
        e("s_cmp_eq_u64 %s, -1" % sM1)
        e("s_cbranch_scc1 %s" % out)
    e("s_cmp_eq_u32 vcc_hi, -1")
    e("s_cbranch_scc0 %s" % b)
    if not FORCE_GLOBAL:
        e("s_cmp_eq_u32 s67, -1")
        e("s_cbranch_scc0 %s" % glob)
    else:
        e("s_branch %s" % glob)
    lab(b)
    e("s_sub_u32 %s, %s, 1" % (sCNT, sCNT))
    e("s_cbranch_scc0 %s" % a)
    e("s_endpgm")
    lab(glob)
    e("s_mov_b32 %s, 0" % sMODE)
    if first:
        e("v_xor_b32 %s, 31, %s" % (v(vFV + 1), v(vFV + 1)))
        publish_addr(XF, ST, 0, FX)
        publish_x(None, 84)
        poll(T[0])
        e("v_xor_b32 %s, 31, %s" % (v(vFV + 1), v(vFV + 1)))
    lab(out)


def slot(dst, base, terms):
    e("s_add_u32 %s, %s, %d" % (dst, sFB, base * 8))
    for r, m in terms:
        e("s_mul_i32 %s, %s, %d" % (T[9], r, m * 8))
        e("s_add_u32 %s, %s, %s" % (dst, dst, T[9]))


def addr(dst, base_reg, const, terms):
    if base_reg is None:
        e("s_mov_b32 %s, 0x%x" % (dst, const))
    else:
        e("s_add_u32 %s, %s, 0x%x" % (dst, base_reg, const))
    for r, m in terms:
        e("s_mul_i32 %s, %s, %d" % (T[9], r, m))
        e("s_add_u32 %s, %s, %s" % (dst, dst, T[9]))


def load_frags(sg, first, n, reg_of, rebase=True):
    for j in range(first, first + n):
        if j % 4 == 0 or (j == first and rebase):
            e("s_add_u32 %s, %s, %d" % (T[8], sg, (j // 4) * 4096))
        e("buffer_load_dwordx4 %s, %s, %s, %s offen offset:%d sc1" %
          (v(reg_of(j), 4), v(vL16), sWS, T[8], (j % 4) * 1024))


def mfma(d, a, b, c):
    e("v_mfma_f32_32x32x16_bf16 %s, %s, %s, %s" % (v(d, 16), v(a, 4), v(b, 4), c if isinstance(c, str) else v(c, 16)))


def half_sum(a, b):
    e("s_nop 1")
    e("v_permlane32_swap_b32 %s, %s" % (v(a), v(b)))
    e("s_nop 1")
    e("v_add_f32 %s, %s, %s" % (v(a), v(a), v(b)))


def tile_stats(y, t):
    e("v_pk_add_f32 %s, %s, %s" % (v(t, 2), v(y, 2), v(y + 2, 2)))
    e("v_pk_mul_f32 %s, %s, %s" % (v(t + 2, 2), v(y, 2), v(y, 2)))
    for p in range(1, 8):
        if p > 1:
            e("v_pk_add_f32 %s, %s, %s" % (v(t, 2), v(t, 2), v(y + 2 * p, 2)))
        e("v_pk_fma_f32 %s, %s, %s, %s" % (v(t + 2, 2), v(y + 2 * p, 2), v(y + 2 * p, 2), v(t + 2, 2)))
    e("v_add_f32 %s, %s, %s" % (v(t), v(t), v(t + 1)))
    e("v_add_f32 %s, %s, %s" % (v(t + 2), v(t + 2), v(t + 3)))
    half_sum(t, t + 2)


def unpack(dst, src, n):
    for i in range(n):
        e("v_lshlrev_b32 %s, 16, %s" % (v(dst + 2 * i), v(src + i)))
        e("v_and_b32 %s, 0xffff0000, %s" % (v(dst + 2 * i + 1), v(src + i)))


def publish_addr(xoff, stoff, fbase_add, fbase):
    addr(T[4], sLB, xoff, [(sTBN, XSTR), (sNT, 2048)])
    e("s_lshr_b32 %s, %s, 2" % (T[6], sNT))
    e("s_and_b32 %s, %s, 3" % (T[7], sNT))
    addr(T[5], sLB, stoff, [(sTBN, 4096), (T[6], 1024), (T[7], 4)])
    slot(T[6], fbase, [(sTBN, 16), (sNT, 1)])
    if fbase_add:
        e("s_add_u32 %s, %s, %d" % (T[6], T[6], fbase_add))


def publish_x(y, t, meanwhile=None):
    lstores(["buffer_store_dwordx4 %s, %s, %s, %s offen" % (v(vRES, 4), v(vL16), sWS, T[4]),
             "buffer_store_dwordx4 %s, %s, %s, %s offen offset:1024" % (v(vRES + 4, 4), v(vL16), sWS, T[4])])
    if y is not None:
        tile_stats(y, t)
    lstores(["buffer_store_dword %s, %s, %s, %s offen" % (v(t), v(vL16), sWS, T[5])])
    if meanwhile:
        meanwhile()
    flag(T[6], local=True)


def prologue():
    e("s_cmp_ge_u32 s2, 256")
    e("s_cbranch_scc1 L_end")
    e("s_load_dwordx16 s[12:27], s[0:1], 0")
    e("s_load_dwordx4 s[28:31], s[0:1], 64")
    e("s_load_dwordx2 s[32:33], s[0:1], 80")
    e("v_lshrrev_b32 v1, 6, v0")
    e("v_and_b32 v0, 63, v0")
    e("v_readfirstlane_b32 %s, v1" % sW)
    e("v_lshlrev_b32 %s, 4, v0" % v(vL16))
    cm("column part of a transposing-read address: (lane&3)*8 + ((lane>>4)&1)*32")
    e("v_and_b32 %s, 3, v0" % v(vTR))
    e("v_lshlrev_b32 %s, 3, %s" % (v(vTR), v(vTR)))
    e("v_bfe_u32 %s, v0, 4, 1" % v(vT5))
    e("v_lshl_or_b32 %s, %s, 5, %s" % (v(vTR), v(vT5), v(vTR)))
    e("v_lshrrev_b32 %s, 5, v0" % v(vT5))
    e("v_lshlrev_b32 %s, 4, %s" % (v(vH16), v(vT5)))
    cm("K fragments are stored with token bits 2 and 3 swapped (matches the sparse-MFMA key order)")
    e("v_and_b32 %s, 0x33, v0" % v(vK16))
    e("v_and_b32 %s, 4, v0" % v(vPO))
    e("v_lshl_or_b32 %s, %s, 1, %s" % (v(vK16), v(vPO), v(vK16)))
    e("v_and_b32 %s, 8, v0" % v(vPO))
    e("v_lshrrev_b32 %s, 1, %s" % (v(vPO), v(vPO)))
    e("v_or_b32 %s, %s, %s" % (v(vK16), v(vK16), v(vPO)))
    e("v_lshlrev_b32 %s, 4, %s" % (v(vK16), v(vK16)))
    cm("V store offset: head parity*128K + half*512 + d*16")
    e("v_and_b32 %s, 15, v0" % v(vVOF))
    e("v_lshlrev_b32 %s, 4, %s" % (v(vVOF), v(vVOF)))
    e("v_lshl_or_b32 %s, %s, 9, %s" % (v(vVOF), v(vT5), v(vVOF)))
    e("v_bfe_u32 %s, v0, 4, 1" % v(vPO))
    e("v_lshl_or_b32 %s, %s, 17, %s" % (v(vVOF), v(vPO), v(vVOF)))
    e("s_and_b32 %s, s2, 7" % sXCD)
    e("s_lshr_b32 %s, s2, 3" % sJ)
    e("s_and_b32 %s, %s, 3" % (sHW, sW))
    e("s_and_b32 %s, %s, 15" % (sC, sJ))
    e("s_lshr_b32 %s, %s, 4" % (T[0], sJ))
    e("s_lshl_b32 %s, %s, 2" % (T[0], T[0]))
    e("s_add_u32 %s, %s, %s" % (sTBW, T[0], sHW))
    e("s_and_b32 %s, %s, 7" % (sNB, sJ))
    e("s_lshr_b32 %s, %s, 3" % (T[0], sJ))
    e("s_mov_b32 %s, %s" % (sHEAD, sJ))
    e("s_lshl_b32 %s, %s, 1" % (sTBN, T[0]))
    e("s_and_b32 %s, %s, 1" % (T[0], sW))
    e("s_add_u32 %s, %s, %s" % (sTBN, sTBN, T[0]))
    e("s_lshr_b32 %s, %s, 1" % (sKH, sHW))
    e("s_lshl_b32 %s, %s, 1" % (sNT, sNB))
    e("s_add_u32 %s, %s, %s" % (sNT, sNT, sKH))
    e("s_mov_b32 s62, 0xffff")
    e("s_mov_b32 s63, 0xffff")
    e("s_mov_b32 %s, 0" % sL)
    addr(sLB, None, ARENA, [(sXCD, ARENA_X)])
    e("s_add_u32 %s, %s, 0x%x" % (sFB, sLB, LFL))
    e("s_waitcnt lgkmcnt(0)")
    srd(sWS, 32, WS_SIZE)
    srd(sTMP, 12, 2048 * 1024)
    cm("hand-off tag: ws[0] only tells this launch's flags from an earlier launch's")
    e("s_load_dword %s, s[32:33], 0" % sNONCE)
    if OPT("hold", 0) and not PROFILE:
        e("s_memrealtime s[70:71]")
        e("s_waitcnt lgkmcnt(0)")
        e("s_mov_b32 s68, s70")
    if PROFILE:
        e("s_memrealtime s[70:71]")
        e("s_waitcnt lgkmcnt(0)")
        e("s_mov_b32 s68, s70")
        stamp("s18")


def make_tag():
    e("s_waitcnt lgkmcnt(0)")
    e("s_add_u32 %s, %s, 16" % (sNONCE, sNONCE))
    e("v_mov_b32 %s, %s" % (v(vFV), sNONCE))
    e("v_not_b32 %s, %s" % (v(vFV + 1), v(vFV)))


def qkv_setup(next_layer):
    e("v_and_b32 %s, 15, v0" % v(vPO))
    e("v_lshlrev_b32 %s, 3, %s" % (v(vPO), v(vPO)))
    slot(T[0], FX + (LFL_L if next_layer else 0), [(sTBW, 16)])
    addr(T[1], sLB, XF, [(sTBW, XSTR)])
    addr(T[2], sLB, ST, [(sTBW, 4096)])
    e("v_add_u32 %s, %d, %s" % (v(vCA), CONST, v(vH16)))
    tr_pair(vW0)
    e("v_xor_b32 %s, 64, %s" % (v(vW2), v(vW0)))
    tr_rows(vW1, 64)
    e("v_add_u32 %s, 0x10000, %s" % (v(vW1), v(vW1)))


def p0():
    cm("================ P0 (waves 0-3): x tile -> residual registers, fragments and row statistics")
    p0end, noid, nox, npt = newlab("p0end"), newlab("noid"), newlab("nox"), newlab("npt")
    e("s_cmp_ge_u32 %s, 4" % sW)
    e("s_cbranch_scc1 %s" % nox)
    e("v_and_b32 %s, 31, v0" % v(vPO))
    e("v_lshlrev_b32 %s, 10, %s" % (v(vPO), v(vPO)))
    e("v_add_u32 %s, %s, %s" % (v(vPO), v(vPO), v(vH16)))
    addr(T[0], None, 0, [(sXCD, 262144), (sTBN, 32768), (sNT, 64)])
    for g in range(2):
        e("buffer_load_dwordx4 %s, %s, %s, %s offen offset:%d" % (v(vRES + 4 * g, 4), v(vPO), sTMP, T[0], 32 * g))
    lab(nox)
    e("v_lshlrev_b32 v17, 7, v0")
    for bit, wave in ((1, OPT("w1", 6)), (2, OPT("w2", 5))):
        if not OPT("qft", 3) & bit:
            continue
        nq = newlab("nq")
        e("s_cmp_lg_u32 %s, %d" % (sW, wave))
        e("s_cbranch_scc1 %s" % nq)
        srd(sTMP, 14, 512 * 3072)
        if bit == 1:
            cm("first touch of Wqkv, one line per lane, spread over all workgroups")
            e("s_mul_i32 %s, s2, %d" % (T[0], 48 * 128))
            e("v_mov_b32 v19, v17")
        else:
            cm("one 128-byte column class of Wqkv arrives slowest: the die group requests its lines up front")
            addr(T[0], None, 384, [(sJ, 48 * 1024)])
            e("v_lshlrev_b32 v19, 10, v0")
        e("s_mov_b32 exec_hi, 0xffff")
        e("buffer_load_dword v16, v19, %s, %s offen" % (sTMP, T[0]))
        e("s_mov_b64 exec, -1")
        lab(nq)
    e("s_cmp_lg_u32 %s, 4" % sW)
    e("s_cbranch_scc1 %s" % npt)
    cm("statistics and flag lines receive partial writes: bring them into L2 first")
    addr(T[0], sLB, ST, [(sJ, 11 * 128)])
    e("s_mov_b64 exec, 0x7ff")
    e("buffer_load_dword v18, v17, %s, %s offen sc1" % (sWS, T[0]))
    e("s_mov_b64 exec, -1")
    lab(npt)
    e("s_cmp_ge_u32 %s, 4" % sW)
    e("s_cbranch_scc1 %s" % p0end)
    stamp("s0")
    make_tag()
    e("s_getreg_b32 %s, hwreg(HW_REG_XCC_ID, 0, 4)" % T[7])
    e("s_mov_b32 %s, 1" % sMODE)
    e("v_xor_b32 %s, %s, %s" % (v(vFV + 1), T[7], v(vFV + 1)))
    publish_addr(XF, ST, 0, FX)
    nid = newlab("nid")
    e("s_cmp_lg_u32 %s, 0" % sW)
    e("s_cbranch_scc1 %s" % nid)
    e("s_lshl_b32 %s, s2, 7" % T[8])
    e("s_add_u32 %s, %s, 0x%x" % (T[8], T[8], FLG + FI * 128))
    flag(T[8], None)
    e("s_waitcnt vmcnt(1)")
    e("s_branch %s" % noid)
    lab(nid)
    e("s_waitcnt vmcnt(0)")
    lab(noid)
    stamp("s1")
    for g in range(2):
        e("v_permlane32_swap_b32 %s, %s" % (v(vRES + 4 * g), v(vRES + 4 * g + 2)))
        e("v_permlane32_swap_b32 %s, %s" % (v(vRES + 4 * g + 1), v(vRES + 4 * g + 3)))
    e("s_nop 0")
    unpack(66, vRES, 8)
    publish_x(66, 84, lambda: qkv_setup(False))
    e("s_nop 0")
    e("v_not_b32 %s, %s" % (v(vFV + 1), v(vFV)))
    lab(p0end)
    stamp("s19")


def tr_pair(dst):
    tr_rows(dst, 128)
    e("v_bfe_u32 %s, v0, 3, 1" % v(vPD))
    e("v_lshl_or_b32 %s, %s, 6, %s" % (v(dst), v(vPD), v(dst)))


def tr_rows(dst, rowbytes):
    e("v_bfe_u32 %s, v0, 2, 2" % v(dst))
    e("v_lshrrev_b32 %s, 2, %s" % (v(vPD), v(vH16)))
    e("v_add_u32 %s, %s, %s" % (v(dst), v(dst), v(vPD)))
    e("v_mul_u32_u24 %s, %d, %s" % (v(dst), rowbytes, v(dst)))
    e("v_add_u32 %s, %s, %s" % (v(dst), v(dst), v(vTR)))


def voff_128(dst, row=1024):
    e("v_lshrrev_b32 %s, 3, v0" % v(dst))
    e("v_mul_u32_u24 %s, %d, %s" % (v(dst), row, v(dst)))
    e("v_and_b32 %s, 7, v0" % v(vPD))
    e("v_lshrrev_b32 %s, 2, v0" % v(vPD + 1))
    e("v_and_b32 %s, 4, %s" % (v(vPD + 1), v(vPD + 1)))
    e("v_xor_b32 %s, %s, %s" % (v(vPD), v(vPD), v(vPD + 1)))
    e("v_lshl_or_b32 %s, %s, 4, %s" % (v(dst), v(vPD), v(dst)))


def voff_192(dst):
    for i in range(3):
        e("v_add_u32 %s, %d, v0" % (v(vPD), 64 * i))
        e("v_mul_u32_u24 %s, 5462, %s" % (v(vPD + 1), v(vPD)))
        e("v_lshrrev_b32 %s, 16, %s" % (v(vPD + 1), v(vPD + 1)))
        e("v_mul_u32_u24 %s, %d, %s" % (v(dst + i), 2752 - 192, v(vPD + 1)))
        e("v_lshl_add_u32 %s, %s, 4, %s" % (v(dst + i), v(vPD), v(dst + i)))


def dma1(vo, sg, cls):
    e("buffer_load_dwordx4 %s, %s, %s offen%s lds" % (v(vo), sTMP, sg, " nt" if OPT("wnt", 0) & cls else ""))


def dma_loop(n, body):
    lp = newlab("dl")
    e("s_mov_b32 %s, %d" % (T[2], n))
    lab(lp)
    body()
    e("s_sub_u32 %s, %s, 1" % (T[2], T[2]))
    e("s_cmp_lg_u32 %s, 0" % T[2])
    e("s_cbranch_scc1 %s" % lp)


def dma_w2(piece0, lds0, n, pace=PACE):
    addr(T[0], None, piece0 * 8192, [(sHW, n * 8192), (sNB, 128)])
    addr(T[1], None, lds0, [(sHW, n * 1024)])

    def body():
        e("s_mov_b32 m0, %s" % T[1])
        e("s_add_u32 %s, %s, 1024" % (T[1], T[1]))
        dma1(40, T[0], 4)
        e("s_add_u32 %s, %s, 8192" % (T[0], T[0]))
        if pace:
            e("s_waitcnt vmcnt(%d)" % max(pace, 0))
    dma_loop(n, body)


def dma_w1(n):
    def body():
        for i in range(3):
            e("s_add_u32 m0, %s, %d" % (T[1], 1024 * i))
            e("s_nop 0")
            dma1(44 + i, T[0], 2)
        e("s_add_u32 %s, %s, %d" % (T[0], T[0], 16 * 2752))
        e("s_add_u32 %s, %s, 3072" % (T[1], T[1]))
    dma_loop(n, body)


def wq_begin():
    srd(sTMP, 14, 512 * 3072)
    voff_128(44, 3072)
    e("v_lshrrev_b32 v40, 2, v0")
    e("v_mul_u32_u24 v40, 3072, v40")
    e("v_and_b32 v41, 3, v0")
    e("v_lshl_or_b32 v40, v41, 4, v40")
    cm("odd groups take a K column pair, even groups a V column pair; every group takes one Q tile")
    e("s_and_b32 %s, %s, 1" % (T[0], sC))
    e("s_lshr_b32 %s, %s, 1" % (T[1], sC))
    e("s_mul_i32 %s, %s, -1024" % (T[0], T[0]))
    addr(T[3], T[0], 2048, [(sHW, 2 * 49152), (T[1], 128)])
    addr(T[5], None, 0, [(sHW, 2 * 49152), (sC, 64)])
    e("s_lshl_b32 %s, %s, 12" % (T[4], sHW))
    addr(T[6], None, 65536, [(sHW, 2048)])


def wq_chunk():
    for k in range(4):
        e("s_add_u32 m0, %s, %d" % (T[4], 1024 * k))
        e("s_nop 0")
        e("buffer_load_dwordx4 v44, %s, %s offen lds" % (sTMP, T[3]))
        e("s_add_u32 %s, %s, %d" % (T[3], T[3], 24576 if k < 3 else 24576 + 6 * 49152))
        if k % 2:
            e("s_add_u32 m0, %s, %d" % (T[6], 1024 * (k // 2)))
            e("s_nop 0")
            e("buffer_load_dwordx4 v40, %s, %s offen lds" % (sTMP, T[5]))
            e("s_add_u32 %s, %s, %d" % (T[5], T[5], 49152 if k == 1 else 7 * 49152))
    e("s_add_u32 %s, %s, 16384" % (T[4], T[4]))
    e("s_add_u32 %s, %s, 8192" % (T[6], T[6]))


CSA = 64


def colsum_begin():
    for r in range(48):
        e("v_mov_b32 v%d, 0" % (CSA + r))
    for r in range(4):
        e("v_mov_b32 v%d, 0x3f803f80" % (52 + r))


def colsum2(regs, steps, seconds):
    for k in range(2):
        for i in range(3):
            for h in range(2):
                e("ds_read_b64_tr_b16 %s, v%d offset:%d" % (v(16 + 12 * k + 4 * i + 2 * h, 2), regs[i], k * steps[i] + h * seconds[i]))
    for k in range(6):
        e("s_waitcnt lgkmcnt(%d)" % (10 - 2 * k))
        mfma(CSA + 16 * (k % 3), 52, 16 + 4 * k, CSA + 16 * (k % 3))


def colsum_w1():
    e("v_add_u32 v42, %s, v43" % T[0])
    e("v_add_u32 v48, 64, v42")
    e("v_add_u32 v50, 128, v42")
    colsum2((42, 48, 50), (3072,) * 3, (1536,) * 3)


def colsum_partial():
    e("v_and_b32 v41, 31, v0")
    e("v_lshlrev_b32 v41, 2, v41")
    addr(T[0], None, PART_L, [(sHW, 384)])
    e("v_add_u32 v42, %s, v41" % T[0])
    e("s_nop 7")
    for i in range(3):
        e("ds_write_b32 v42, v%d offset:%d" % (CSA + 16 * i, 128 * i))


def colsum_combine(dst_l):
    e("s_min_u32 %s, %s, 2" % (T[0], sHW))
    e("s_lshl_b32 %s, %s, 7" % (T[0], T[0]))
    e("v_add_u32 v41, %s, v41" % T[0])
    e("v_add_u32 v42, %d, v41" % PART_L)
    for k in range(4):
        e("ds_read_b32 v%d, v42 offset:%d" % (16 + k, 384 * k))
    e("v_add_u32 v41, %d, v41" % dst_l)
    e("s_waitcnt lgkmcnt(0)")
    e("v_add_f32 v16, v16, v17")
    e("v_add_f32 v18, v18, v19")
    e("v_add_f32 v16, v16, v18")
    e("ds_write_b32 v41, v16")


def stats_code(second_ln):
    c = []
    for k in range(1, 16):
        c.append("v_add_f32 %s, %s, %s" % (v(vSTS), v(vSTS), v(vSTS + k)))
    c += ["v_mov_b32 %s, %s" % (v(vSTS + 1), v(vSTS)), "s_nop 1",
          "v_permlane32_swap_b32 %s, %s" % (v(vSTS), v(vSTS + 1)), "s_nop 1",
          "v_mul_f32 %s, %s, %s" % (v(vMU), f32(1.0 / 512), v(vSTS)),
          "v_mul_f32 %s, %s, %s" % (v(vSTS + 1), f32(1.0 / 512), v(vSTS + 1)),
          "v_fma_f32 %s, -%s, %s, %s" % (v(vSTS + 1), v(vMU), v(vMU), v(vSTS + 1)),
          "v_max_f32 %s, 0, %s" % (v(vSTS + 1), v(vSTS + 1)),
          "v_add_f32 %s, %s, %s" % (v(vSTS + 2), f32(1e-5), v(vSTS + 1)),
          "v_rsq_f32 %s, %s" % (v(vR), v(vSTS + 2)), "s_nop 0"]
    if second_ln:
        c += ["v_mul_f32 %s, %s, %s" % (v(vSTS + 2), v(vR), v(vR)),
              "v_mul_f32 %s, %s, %s" % (v(vSTS + 2), v(vSTS + 2), v(vSTS + 1)),
              "v_add_f32 %s, %s, %s" % (v(vSTS + 2), f32(1e-5), v(vSTS + 2)),
              "v_rsq_f32 %s, %s" % (v(vSTS + 2), v(vSTS + 2)), "s_nop 0",
              "v_mul_f32 %s, %s, %s" % (v(vR), v(vR), v(vSTS + 2))]
    return c


def center(acc, cs, p):
    e("v_pk_fma_f32 %s, %s, %s, %s op_sel_hi:[0,1,1] neg_lo:[1,0,0] neg_hi:[1,0,0]" %
      (v(acc + 2 * p, 2), v(vMU, 2), v(cs + 2 * p, 2), v(acc + 2 * p, 2)))


def stash_addr():
    e("s_mul_i32 %s, %s, 24576" % (T[0], sHW))
    e("v_add_u32 v42, %s, %s" % (T[0], v(vL16)))


class Lds:
    def __init__(self):
        self.ops, self.done = [], 0

    def op(self, name, text):
        e(text)
        self.ops.append(name)

    def need(self, name):
        last = max(i for i, n in enumerate(self.ops) if n == name)
        if last < self.done:
            return None
        self.done = last + 1
        return min(15, len(self.ops) - 1 - last)


def qkv_body(isk, done):
    H = 16

    def item(n):
        if n < 32:
            load_frags(T[1], n, 1, lambda j: vA + 4 * j, n % 4 == 0)
        else:
            e("buffer_load_dwordx4 %s, %s, %s, %s offen offset:%d sc1" % (v(vSTS + 4 * (n - 32), 4), v(vL16), sWS, T[2], 1024 * (n - 32)))
    sched = [[ks + DEPTH] if ks + DEPTH < 32 else [] for ks in range(32)]
    for k in range(4):
        sched[3 + 2 * k].append(32 + k)
    order = list(range(DEPTH))
    lds = Lds()

    def rd(ks, i, d):
        base, off, sec = ((vW0, vW2)[i], ks * 2048, 1024) if i < 2 else (vW1, ks * 1024, 512)
        lds.op(("w", i, ks), "ds_read_b64_tr_b16 %s, %s offset:%d" % (v(d, 2), v(base), off))
        lds.op(("w", i, ks), "ds_read_b64_tr_b16 %s, %s offset:%d" % (v(d + 2, 2), v(base), off + sec))

    def wait(name):
        n = lds.need(name)
        if n is not None:
            e("s_waitcnt lgkmcnt(%d)" % n)
    wb1 = lambda ks, i: vWB + (ks % 3) * 12 + 4 * i
    wb2 = lambda ks: vWB + (12 * (ks - H) + 8 if ks < H + 3 else [0, 4, 12, 16, 24, 28, 8, 20, 32][(ks - H - 3) % 9])
    tiles = lambda ks: (2, 0, 1) if ks < H else (0, 1)
    for ks in range(2):
        for i in tiles(ks):
            rd(ks, i, wb1(ks, i))
    fine("q")
    SA, SB, SC = vPO, vPD, vPD + 1
    PK, C0, C1, VC, QC = vA, vA + 16, vA + 32, vA + 48, vSTS

    def addresses():
        e("s_lshr_b32 %s, %s, 1" % (T[0], sC))
        addr(T[4], None, KVF, [(sL, KVF_L), (T[0], 4 * 131072), (sXCD, 16384), (sTBW, 2048)])
        addr(T[2], sLB, KVL, [(T[0], 8192), (sTBW, HSTR)])
        slot(T[6], FQ, [(sC, 8), (sTBW, 1)])
        addr(T[7], None, GFL, [(sL, GFL_L), (sC, 65536), (sXCD, 8192), (sTBW, 1024)])
        addr(T[3], sLB, QF, [(sC, 2048), (sTBW, HSTR)])
        if not isk:
            e("v_and_b32 %s, 31, v0" % v(SA))
            e("v_lshlrev_b32 %s, 2, %s" % (v(SA), v(SA)))
            addr(T[0], None, STAT_L, [(sHW, 256)])
            e("v_add_u32 %s, %s, %s" % (v(SB), T[0], v(SA)))
            e("v_add_u32 %s, %s, %s" % (v(SC), T[0], v(vH16)))
            e("v_add_u32 %s, %d, %s" % (v(SA), CSQ_L, v(SA)))
    sh = [lambda x=x: e(x) for x in capture(addresses) + stats_code(False)]
    sh.append(lambda: e("v_mul_f32 %s, %s, %s" % (v(vRQ), f32(0.25 * 1.4426950408889634), v(vR))))
    if isk:
        for k in range(8):
            sh.append(lambda k=k: lds.op("c", "ds_read_b128 %s, %s offset:%d" % (v(C0 + 4 * k, 4), v(vCA), 32 * k)))
    else:
        sh.append(lambda: lds.op("sw", "ds_write_b32 %s, %s" % (v(SB), v(vMU))))
        sh.append(lambda: lds.op("sw", "ds_write_b32 %s, %s offset:128" % (v(SB), v(vR))))
        for k in range(8):
            sh.append(lambda k=k: lds.op("c", "ds_read_b128 %s, %s offset:%d" % (v(C0 + 4 * k, 4), v(SC), 32 * k)))
        for t in range(2):
            sh.append(lambda t=t: lds.op("c", "ds_read_b32 %s, %s offset:%d" % (v(VC + t), v(SA), 128 * t)))
    nsal = len(capture(addresses))
    pos = 0
    for ks in range(32):
        if ks in (16, 22):
            e("s_barrier")
        newest = max(order.index(n) for n in ([ks, 35] if ks >= 18 else [ks]))
        e("s_waitcnt vmcnt(%d) lgkmcnt(%d)" % (len(order) - 1 - newest, lds.need(("w", 1, ks))))
        if ks in FINEKS:
            fine("q")
        for m, i in enumerate(tiles(ks)):
            c = "0" if ks == 0 else vACC + 16 * i
            if i < 2 and not isk:
                mfma(vACC + 16 * i, vA + 4 * ks, wb1(ks, i), c)
            else:
                mfma(vACC + 16 * i, wb1(ks, i), vA + 4 * ks, c)
            if ks + 2 < 32 and i in tiles(ks + 2):
                rd(ks + 2, i, wb1(ks + 2, i))
            elif ks >= 30 and (i == 0 or ks == 30):
                k2 = H + (ks - 30) * 2 + i
                rd(k2, 2, wb2(k2))
            if m < len(sched[ks]):
                item(sched[ks][m])
                order.append(sched[ks][m])
            if ks >= 10:
                for _ in range(2):
                    if pos < len(sh) and (pos < nsal or ks >= 18):
                        sh[pos]()
                        pos += 1
    assert pos == len(sh), (pos, len(sh))
    cm("remaining Q k-steps with the pair's epilogue underneath")
    fill = [lambda: wait("c")]
    for i in range(4):
        fill.append(lambda i=i: lds.op("qc", "ds_read_b128 %s, %s offset:%d" % (v(QC + 4 * i, 4), v(vCA), 256 + 32 * i)))
    fill.append(lambda: e("s_add_u32 %s, %s, 0x%x" % (T[5], T[4], 0x20000 if isk else 0x40000)))
    fill.append(lambda: e("s_add_u32 %s, %s, 4096" % (T[0], T[2])))
    if isk:
        fill.append(lambda: e("s_add_u32 %s, %s, 0x40000" % (T[8], T[4])))
        fill.append(lambda: e("s_add_u32 %s, %s, 0x60000" % (T[1], T[4])))
    else:
        fill.append(lambda: e("v_and_b32 %s, 0x1ffff, %s" % (v(SC), v(vVOF))))
        fill.append(lambda: e("v_lshrrev_b32 %s, 17, %s" % (v(SB), v(vVOF))))
        fill.append(lambda: e("v_lshl_or_b32 %s, %s, 11, %s" % (v(SC), v(SB), v(SC))))
    local = []
    for t in range(2):
        a = vACC + 16 * t
        for r in range(16):
            if isk:
                fill.append(lambda a=a, t=t, r=r: e("v_fma_f32 %s, -%s, %s, %s" % (v(a + r), v(vMU), v(C0 + 16 * t + r), v(a + r))))
            else:
                fill.append(lambda a=a, t=t, r=r: e("v_fma_f32 %s, -%s, %s, %s" % (v(a + r), v(C0 + r), v(VC + t), v(a + r))))
        for r in range(16):
            fill.append(lambda a=a, r=r: e("v_mul_f32 %s, %s, %s" % (v(a + r), v(vR if isk else C1 + r), v(a + r))))
        for p in range(8):
            fill.append(lambda a=a, t=t, p=p: e("v_cvt_pk_bf16_f32 %s, %s, %s" % (v(PK + 8 * t + p), v(a + 2 * p), v(a + 2 * p + 1))))
        for hh in range(2):
            d = v(PK + 8 * t + 4 * hh, 4)
            if isk:
                g = "%s, %s, %s, %s offen" % (d, v(vK16), sWS, (T[4], T[5], T[8], T[1])[2 * t + hh])
                local.append("buffer_store_dwordx4 %s, %s, %s, %s offen offset:%d" % (d, v(vK16), sWS, (T[2], T[0])[t], 2048 * hh))
            else:
                g = "%s, %s, %s, %s offen offset:%d" % (d, v(vVOF), sWS, (T[4], T[5])[t], 1024 + 256 * hh)
                local.append("buffer_store_dwordx4 %s, %s, %s, %s offen offset:%d" % (d, v(SC), sWS, (T[2], T[0])[t], 1024 + 256 * hh))
            fill.append(lambda g=g: e("buffer_store_dwordx4 " + g + " sc1"))
    fill.append(lambda: lstores(local))
    per = -(-len(fill) // (32 - H))
    aQ = vACC + 32
    for ks in range(H, 32):
        wait(("w", 2, ks + 1 if ks % 2 == 0 and H + 2 < ks < 31 else ks))
        mfma(aQ, wb2(ks), vA + 4 * ks, aQ)
        if ks == H:
            fine("q")
        for n in ([H + 3, H + 4] if ks == H else [H + 5, H + 6] if ks == H + 1 else [ks + 5] if ks + 5 < 32 else []):
            rd(n, 2, wb2(n))
        for f in fill[(ks - H) * per:(ks + 1 - H) * per]:
            f()
    e("s_barrier")
    stamp()
    wait("qc")
    e("s_nop %d" % max(0, 10 - len(fill[(31 - H) * per:])))
    for p in range(8):
        center(aQ, QC, p)
    for p in range(8):
        e("v_pk_mul_f32 %s, %s, %s op_sel_hi:[1,0]" % (v(aQ + 2 * p, 2), v(aQ + 2 * p, 2), v(vRQ, 2)))
    for p in range(8):
        e("v_cvt_pk_bf16_f32 %s, %s, %s" % (v(C1 + p), v(aQ + 2 * p), v(aQ + 2 * p + 1)))
    lstores(["buffer_store_dwordx4 %s, %s, %s, %s offen offset:%d" % (v(C1 + 4 * hh, 4), v(vL16), sWS, T[3], 1024 * hh) for hh in range(2)])
    fine("q")
    for k in range(4):
        e("v_mov_b32 %s, %s" % (v(vSTS + k), v(vFV + k % 2)))
    flag(T[6], 0, local=True)
    e("buffer_store_dwordx4 %s, %s, %s, %s offen sc1" % (v(vSTS, 4), v(vL16), sWS, T[7]))
    e("s_branch %s" % done)


def qkv():
    cm("================ QKV projection")
    hl, done, kb = newlab("qkv_h"), newlab("qkv_done"), newlab("qkv_k")
    e("s_cmp_ge_u32 %s, 4" % sW)
    e("s_cbranch_scc1 %s" % hl)
    l1, l2 = newlab("fx"), newlab("fx")
    e("s_cmp_lg_u32 %s, 0" % sL)
    e("s_cbranch_scc1 %s" % l1)
    mode_poll(True)
    e("v_mov_b32 v60, %s" % sMODE)
    e("v_mov_b32 v61, %d" % MODE_L)
    e("ds_write_b32 v61, v60")
    e("s_waitcnt lgkmcnt(0)")
    e("s_branch %s" % l2)
    lab(l1)
    poll(T[0])
    lab(l2)
    stamp()
    load_frags(T[1], 0, DEPTH, lambda j: vA + 4 * j)
    fine("q")
    e("s_barrier")
    e("s_bitcmp1_b32 %s, 0" % sC)
    e("s_cbranch_scc1 %s" % kb)
    n0, f0 = nstamp[0], nfine[0]
    qkv_body(False, done)
    lab(kb)
    nstamp[0], nfine[0] = n0, f0
    qkv_body(True, done)
    lab(hl)
    h1, h2, lp = newlab("qh1"), newlab("qh2"), newlab("qhl")
    e("s_cmp_lg_u32 %s, 0" % sL)
    e("s_cbranch_scc1 %s" % h1)
    wq_begin()
    if FINE == "h":
        make_tag()
        fine("h")
    dma_loop(2, wq_chunk)
    fine("h")
    if FINE != "h":
        make_tag()
    colsum_begin()
    tr_pair(42)
    e("s_lshl_b32 %s, %s, 12" % (T[0], sHW))
    e("v_add_u32 v42, %s, v42" % T[0])
    e("v_xor_b32 v48, 64, v42")
    tr_rows(50, 64)
    addr(T[0], None, 65536, [(sHW, 2048)])
    e("v_add_u32 v50, %s, v50" % T[0])
    e("s_mov_b32 %s, 0" % sIT)
    lab(lp)
    b1, b2 = newlab("qw"), newlab("qw")
    e("s_cmp_ge_u32 %s, 2" % sIT)
    e("s_cbranch_scc1 %s" % b1)
    wq_chunk()
    e("s_waitcnt vmcnt(12)")
    e("s_branch %s" % b2)
    lab(b1)
    e("s_waitcnt vmcnt(6)")
    e("s_cmp_eq_u32 %s, 2" % sIT)
    e("s_cbranch_scc1 %s" % b2)
    e("s_waitcnt vmcnt(0)")
    lab(b2)
    fine("h")
    colsum2((42, 48, 50), (2048, 2048, 1024), (1024, 1024, 512))
    e("v_add_u32 v42, 16384, v42")
    e("v_add_u32 v48, 16384, v48")
    e("v_add_u32 v50, 8192, v50")
    e("s_add_u32 %s, %s, 1" % (sIT, sIT))
    e("s_cmp_lt_u32 %s, 4" % sIT)
    e("s_cbranch_scc1 %s" % lp)
    colsum_partial()
    fine("h")
    e("s_waitcnt lgkmcnt(0)")
    e("s_barrier")
    fine("h")
    colsum_combine(CSQ_L)
    e("v_mov_b32 v61, %d" % MODE_L)
    e("ds_read_b32 v60, v61")
    cm("park the weight tile in registers for the second layer pair")
    stash_addr()
    for k in range(24):
        e("ds_read_b128 %s, v42 offset:%d" % (v(vSTASH + 4 * k, 4), 1024 * k))
    e("s_waitcnt lgkmcnt(15)")
    e("v_readfirstlane_b32 %s, v60" % sMODE)
    e("s_branch %s" % h2)
    lab(h1)
    e("s_waitcnt lgkmcnt(0)")
    e("s_barrier")
    lab(h2)
    cm("lanes 0-15: Q lines; lanes 16-47: the K or V kilobyte of four head blocks")
    e("v_subrev_u32 v20, 16, v0")
    e("v_lshrrev_b32 v21, 3, v20")
    e("v_lshlrev_b32 v21, 10, v21")
    e("v_lshl_add_u32 v20, v20, 7, v21")
    e("s_lshr_b32 %s, %s, 1" % (T[1], sC))
    e("s_and_b32 %s, %s, 1" % (T[2], sC))
    addr(T[3], None, 32768 + 1024, [(T[1], 8192), (T[2], -1024), (sC, -2048)])
    e("v_add_u32 v20, %s, v20" % T[3])
    e("v_lshlrev_b32 v19, 7, v0")
    e("v_cmp_lt_u32 vcc, 15, v0")
    addr(T[0], sLB, BLK, [(sTBW, HSTR), (sC, 2048)])
    e("v_cndmask_b32 v19, v19, v20, vcc")
    e("s_waitcnt lgkmcnt(0)")
    e("s_barrier")
    e("s_barrier")
    cm("all activation loads are out: bring in the lines the Q/K/V stores will write, so they need no fill")
    e("s_mov_b32 exec_hi, 0xffff")
    e("buffer_load_dword v21, v19, %s, %s offen sc1" % (sWS, T[0]))
    e("s_mov_b64 exec, -1")
    e("s_cmp_lg_u32 %s, 0" % sL)
    e("s_cbranch_scc1 %s" % done)
    cm("this workgroup's slices of b1 and b2; they are staged in LDS after attention")
    srd(sTMP, 22, 2752)
    e("v_and_b32 v19, 31, v0")
    e("v_lshlrev_b32 v19, 1, v19")
    addr(T[0], None, 0, [(sHW, 64), (sC, 192)])
    e("buffer_load_ushort v224, v19, %s, %s offen" % (sTMP, T[0]))
    srd(sTMP, 26, 1024)
    e("s_and_b32 %s, %s, 1" % (T[4], sHW))
    addr(T[0], None, 0, [(T[4], 64), (sNB, 128)])
    e("buffer_load_ushort v225, v19, %s, %s offen" % (sTMP, T[0]))
    lab(done)
    stamp()


def attention():
    cm("================ attention: S^T = K Q^T, P = exp2(S^T), O^T += V^T P via sparse MFMA")
    S, O, Q, KB, VB, IDX, AD, VO, CN = (16, 32), 48, 64, (68, 72), (76, 84), 92, 93, 94, 100
    PF = 100
    KVG, LP, CH, GF, ISS = T[2], T[3], T[4], T[5], T[6]
    cm("rows 16 and 20 of the V operand are ones (row sums for both lane halves); the other spare rows are zero")
    e("v_and_b32 %s, 27, v0" % v(IDX))
    e("v_cmp_eq_u32 vcc, 16, %s" % v(IDX))
    e("v_mov_b32 %s, 0x3f803f80" % v(AD))
    e("s_nop 0")
    for i in range(16):
        e("v_mov_b32 %s, 0" % v(O + i))
        e("v_cndmask_b32 %s, 0, %s, vcc" % (v(VB[0] + i), v(AD)))
    for i in range(8):
        e("v_mov_b32 %s, 0" % v(S[1] + 8 + i))
    e("v_mov_b32 %s, 0xdddddddd" % v(IDX))
    cm("flags a loading wave needs: 2 producer groups x 8 die groups x its 2 token blocks")
    e("v_bfe_u32 %s, v0, 1, 4" % v(PF + 6))
    e("v_lshlrev_b32 %s, 13, %s" % (v(PF + 6), v(PF + 6)))
    e("v_and_b32 %s, 1, v0" % v(PF + 5))
    e("v_lshl_or_b32 %s, %s, 10, %s" % (v(PF + 6), v(PF + 5), v(PF + 6)))
    e("v_mov_b32 %s, %s" % (v(AD), v(vL16)))
    voff_128(VO)
    voff_192(VO + 1)
    e("s_mov_b32 %s, 2" % ISS)
    a1 = newlab("a1")
    e("v_lshlrev_b32 %s, 7, v0" % v(PF))
    cm("first layer pair, waves 1-3: first touch of Wo / W1 / W2 (one line per lane, spread over all workgroups)")
    e("s_mov_b32 s66, %d" % (1376 * 1024))
    e("s_mov_b32 %s, %d" % (T[1], 43 * 128))
    e("s_cmp_eq_u32 %s, 2" % sW)
    e("s_cselect_b64 s[64:65], s[20:21], s[24:25]")
    e("s_cmp_eq_u32 %s, 1" % sW)
    e("s_cselect_b64 s[64:65], s[16:17], s[64:65]")
    e("s_cselect_b32 s66, %d, s66" % (512 * 1024))
    e("s_cselect_b32 %s, %d, %s" % (T[1], 16 * 128, T[1]))
    e("s_and_b32 s65, s65, 0xffff")
    e("s_mov_b32 s67, 0x20000")
    e("s_mul_i32 %s, %s, s2" % (T[1], T[1]))
    e("s_cmp_eq_u32 %s, 0" % sL)
    e("s_cselect_b32 %s, %d, 99" % (T[8], OPT("ftit", 2)))
    e("s_cmp_eq_u32 %s, 0" % sW)
    e("s_cselect_b32 %s, 99, %s" % (T[8], T[8]))
    cm("lines of the W1 rows that are loaded after attention (128-351, 480-511): half per workgroup of a pair")
    srd(sTMP, 20, 512 * 2752)
    e("s_lshr_b32 %s, %s, 4" % (T[0], sJ))
    addr(T[7], None, 128, [(T[0], 128), (sHW, 32)])
    e("s_cmp_eq_u32 %s, 352" % T[7])
    e("s_cselect_b32 %s, 480, %s" % (T[7], T[7]))
    e("s_mul_i32 %s, %s, 2752" % (T[7], T[7]))
    e("s_mul_i32 %s, %s, 192" % (T[0], sC))
    e("s_add_u32 %s, %s, %s" % (T[7], T[7], T[0]))
    e("v_lshrrev_b32 %s, 1, v0" % v(PF + 1))
    e("v_mul_u32_u24 %s, 2752, %s" % (v(PF + 1), v(PF + 1)))
    e("v_and_b32 %s, 1, v0" % v(PF + 2))
    e("v_lshl_add_u32 %s, %s, 7, %s" % (v(PF + 1), v(PF + 2), v(PF + 1)))
    e("s_cmp_lt_u32 %s, 4" % sW)
    e("s_cbranch_scc1 %s" % a1)
    cm("waves 4-7 fetch Q and this die's K/V, and later the other dies' K/V")
    e("v_and_b32 %s, 15, v0" % v(vPO))
    e("v_lshlrev_b32 %s, 3, %s" % (v(vPO), v(vPO)))
    e("s_lshr_b32 %s, %s, 2" % (T[1], sHEAD))
    e("s_lshl_b32 %s, %s, 1" % (T[1], T[1]))
    addr(GF, None, GFL, [(sL, GFL_L), (T[1], 65536), (sXCD, 128), (sHW, 2048)])
    slot(T[0], FQ, [(T[1], 8)])
    addr(T[1], sLB, QF, [(sHEAD, 1024), (sHW, 2 * HSTR)])
    addr(KVG, None, KVF, [(sL, KVF_L), (sHEAD, 131072), (sHW, 4096)])
    addr(T[8], sLB, KVL, [(sHEAD, 2048), (sHW, 2 * HSTR)])
    addr(T[7], None, QL, [(sHW, 2048)])
    e("s_lshl_b32 %s, %s, 12" % (LP, sHW))
    e("s_add_u32 %s, %s, 1" % (CH, sXCD))
    e("s_mov_b32 %s, 0" % ISS)
    cm("last barrier of the projection: its weight tile in LDS is dead from here on")
    e("s_barrier")
    poll(T[0])
    for b in range(2):
        e("s_add_u32 m0, %s, %d" % (LP, 2048 * b))
        e("s_nop 0")
        for i in range(2):
            e("buffer_load_dwordx4 %s, %s, %s offen offset:%d sc1 lds" % (v(vL16), sWS, T[8], 1024 * i))
        e("s_add_u32 m0, %s, %d" % (T[7], 1024 * b))
        e("s_add_u32 %s, %s, %d" % (T[8], T[8], HSTR))
        e("buffer_load_dwordx4 %s, %s, %s offen sc1 lds" % (v(vL16), sWS, T[1]))
        e("s_add_u32 %s, %s, %d" % (T[1], T[1], HSTR))

    HT, H2 = OPT("ht", 1), OPT("h2", 4)

    def second_chunk():
        blk, back = newlab("sc"), newlab("scb")
        e("s_cmp_eq_u32 %s, 1" % ISS)
        e("s_cbranch_scc1 %s" % blk)
        lab(back)
        NEAR.extend([blk + ":"] + ["    " + x for x in capture(lambda: kv_issue(4, OPT("nt2", 1)))] +
                    ["    s_mov_b32 %s, 2" % ISS, "    s_branch " + back])

    def gflag_load():
        e("buffer_load_dwordx2 %s, %s, %s, %s offen sc1" % (v(vPD, 2), v(PF + 6), sWS, GF))

    def kv_issue(n=4, nt=True):
        e("s_and_b32 %s, %s, 7" % (CH, CH))
        e("s_lshl_b32 %s, %s, 14" % (T[9], CH))
        e("s_add_u32 %s, %s, 16384" % (LP, LP))
        e("s_add_u32 %s, %s, %s" % (T[9], T[9], KVG))
        e("s_mov_b32 m0, %s" % LP)
        e("s_add_u32 %s, %s, 1" % (CH, CH))
        for i in range(n):
            e("buffer_load_dwordx4 %s, %s, %s offen offset:%d sc1%s lds" % (v(vL16), sWS, T[9], 1024 * i, " nt" if OPT("kvnt", 1) and nt else ""))

    def kv_issue_helpers():
        sk, cw = newlab("kvs"), newlab("kvc")
        e("s_cmp_lt_u32 %s, 4" % sW)
        e("s_cbranch_scc1 %s" % cw)
        if HT == 1:
            e("s_cmp_eq_u32 %s, 0" % sIT)
            e("s_cbranch_scc1 %s" % sk)
        kv_issue()
        lab(sk)
        ft = newlab("ft")
        wp = newlab("wp")
        TAIL.extend([wp + ":", "    s_cmp_lg_u32 %s, %d" % (sIT, OPT("woit", 3)), "    s_cbranch_scc1 %s" % sk]
                    + ["    " + x for x in capture(lambda: (srd("s[64:67]", 16, 512 * 1024), addr(T[1], None, 0, [(sJ, 128 * 128), (sW, 32 * 128)])))]
                    + (["    " + x for x in capture(lambda: (
                        e("v_lshrrev_b32 %s, 3, v0" % v(PF + 3)), e("v_mul_u32_u24 %s, %d, %s" % (v(PF + 3), XSTR - 1024, v(PF + 3))),
                        e("v_add_u32 %s, %s, %s" % (v(PF + 3), v(PF + 3), v(PF))),
                        addr(T[0], sLB, OF, [(sW, 2 * XSTR), (sHEAD, 1024)]), e("s_mov_b64 exec, 0xffff"),
                        e("buffer_load_dword %s, %s, %s, %s offen sc1" % (v(PF + 2), v(PF + 3), sWS, T[0])), e("s_mov_b64 exec, -1")))])
                    + ["    s_mov_b32 exec_hi, 0", "    buffer_load_dword %s, %s, s[64:67], %s offen" % (v(PF + 2), v(PF), T[1]),
                       "    s_mov_b64 exec, -1", "    s_branch %s" % sk])
        TAIL.extend([ft + ":", "    s_cmp_lg_u32 %s, %s" % (sIT, T[8]), "    s_cbranch_scc1 %s" % wp,
                     "    buffer_load_dword %s, %s, s[64:67], %s offen" % (v(PF + 2), v(PF), T[1]), "    s_branch %s" % sk])
        TAIL.extend([cw + ":", "    s_cmp_lt_u32 %s, 4" % sIT, "    s_cbranch_scc1 %s" % ft, "    s_mov_b32 exec_hi, 0",
                     "    buffer_load_dword %s, %s, %s, %s offen" % (v(PF + 2), v(PF + 1), sTMP, T[7]),
                     "    s_mov_b64 exec, -1", "    s_add_u32 %s, %s, %d" % (T[7], T[7], 16 * 2752),
                     "    s_branch %s" % sk])
    fine("k")
    e("s_waitcnt vmcnt(0)")
    fine("k")
    if not OPT("late", 0):
        gflag_load()
    lab(a1)
    addr(T[0], None, QL, [(sW, 1024)])
    e("v_add_u32 v16, %s, %s" % (T[0], v(vL16)))
    e("s_barrier")
    stamp()

    KD = OPT("kd", 2)

    def rdk(t):
        e("ds_read_b128 %s, %s offset:%d" % (v(KB[t & 1], 4), v(AD), t * 2048))

    def rdv(t):
        e("s_mov_b64 exec, %s" % sMV)
        e("ds_read_b128 %s, %s offset:%d" % (v(VB[t & 1], 4), v(AD), t * 2048 + 1024))
        e("ds_read_b128 %s, %s offset:%d" % (v(VB[t & 1] + 4, 4), v(AD), t * 2048 + 1280))
        e("s_mov_b64 exec, -1")

    def smf(vb, p):
        e("v_smfmac_f32_32x32x32_bf16 %s, %s, %s, %s" % (v(O, 16), v(vb, 4), v(p, 8), v(IDX)))

    def ex(cur, a, b):
        for i in range(a, b):
            e("v_exp_f32 %s, %s" % (v(S[cur] + i), v(S[cur] + i)))

    def tile(t, extra=None, mid=None):
        cur, nxt = t & 1, (t + 1) & 1
        if KD == 1:
            rdk(t + 1)
        ex(cur, 0, 2)
        smf(VB[nxt] + 4, S[nxt] + 8)
        rdv(t + 1)
        ex(cur, 2, 6)
        e("s_waitcnt lgkmcnt(2)")
        mfma(S[nxt], KB[nxt], Q, "0")
        if KD == 2:
            rdk(t + 2)
        else:
            e("s_nop 0")
        if extra:
            extra()
        ex(cur, 6, 9)
        if mid is not None:
            e("s_setprio %d" % mid)
        ex(cur, 9, 12)
        smf(VB[cur], S[cur])
        ex(cur, 12, 16)
    e("ds_read_b128 %s, v16" % v(Q, 4))
    rdk(0)
    rdv(0)
    if KD == 2:
        rdk(1)
    e("s_waitcnt lgkmcnt(%d)" % (KD + 1))
    mfma(S[0], KB[0], Q, "0")
    e("s_mov_b32 %s, 0" % sIT)
    e("s_mov_b32 %s, %d" % (sCNT, POLL_LIMIT))
    e("s_nop 8")
    cm("chunk 0 = keys of this die group; the other groups' K/V are requested as soon as their flags arrive")

    def check(blocking):
        blk, back, issue = newlab("chk"), newlab("chkb"), newlab("iss")
        e("s_cmp_eq_u32 %s, 0" % ISS)
        e("s_cbranch_scc1 %s" % blk)
        lab(back)

        def body():
            if OPT("late", 0):
                gflag_load()
            e("s_waitcnt vmcnt(0)")
            e("v_cmp_eq_u64 vcc, %s, %s" % (v(vPD, 2), v(vFV, 2)))
            e("s_nop 1")
            e("s_cmp_eq_u64 vcc, -1")
            e("s_cbranch_scc1 %s" % issue)
            if not OPT("late", 0):
                gflag_load()
            if blocking:
                e("s_sub_u32 %s, %s, 1" % (sCNT, sCNT))
                e("s_cbranch_scc0 %s" % blk)
                e("s_endpgm")
            else:
                e("s_branch %s" % back)

        def go():
            kv_issue(4, OPT("nt1", 0))
            if HT == 1 and not H2:
                kv_issue(4, OPT("nt1", 0))
            e("s_mov_b32 %s, 1" % ISS)
            e("s_branch %s" % back)
        NEAR.extend([blk + ":"] + ["    " + x for x in capture(body)] + [issue + ":"] + ["    " + x for x in capture(go)])
    NEAR = []
    loop = newlab("att")
    L.append(".p2align 6")
    lab(loop)
    for t in range(8):
        if t % 2 == 0:
            e("s_setprio %d" % ((3 - t // 2) if OPT("pr", 1) else 0))
        BP = OPT("bp", 0)
        if BP < 0 and t in (2, 4, 6):
            check(t == 6)
        if t == BP:
            check(True)
        if t == 8 - KD:
            e("s_waitcnt vmcnt(4)")
            e("s_barrier")
        tile(t, kv_issue_helpers if t == HT else second_chunk if H2 and t == H2 else None)
    if PROFILE and FINE == "i":
        e(CLK + " s[70:71]")
        e("s_waitcnt lgkmcnt(0)")
        e("v_mov_b32 v112, s70")
        e("s_lshl_b32 s71, %s, 4" % sL)
        e("s_add_u32 s71, s71, %s" % sIT)
        e("s_sub_u32 s71, s71, %d" % (0 if "--l0" in sys.argv else 16))
        e("v_cmp_eq_u32 vcc, s71, v0")
        e("s_nop 1")
        e("v_cndmask_b32 v5, v5, v112, vcc")
    e("v_add_u32 %s, 16384, %s" % (v(AD), v(AD)))
    e("s_add_u32 %s, %s, 1" % (sIT, sIT))
    e("s_cmp_lt_u32 %s, 6" % sIT)
    e("s_cbranch_scc1 %s" % loop)
    TAIL[:0] = NEAR
    fine("a")
    cm("last two chunks: stream Wo and part of W1 into the dead K/V space, one piece per tile")
    srd(sTMP, 16, 512 * 1024)
    addr(T[0], None, 0, [(sW, 65536), (sNB, 128)])
    e("s_lshl_b32 %s, %s, 13" % (T[1], sW))

    srd("s[64:67]", 24, 1376 * 1024)
    addr(T[2], None, 0, [(sJ, 344 * 128), (sW, 43 * 128)])

    def w2_lines(trip):
        cm("one line per lane: pull this workgroup's share of W2 into the die's L2")
        e("s_mov_b64 exec, 0x3fffff")
        e("buffer_load_dword %s, %s, s[64:67], %s offen" % (v(PF + 2), v(PF), T[2]))
        e("s_mov_b64 exec, -1")
        e("s_add_u32 %s, %s, %d" % (T[2], T[2], 22 * 128))

    def wo_piece(t):
        e("s_add_u32 m0, %s, %d" % (T[1], 1024 * t))
        e("s_nop 0")
        dma1(VO, T[0], 1)
        e("s_add_u32 %s, %s, 8192" % (T[0], T[0]))

    def w1_piece(t):
        if t in (1, 3):
            w2_lines(1)
        for u in ([2 * t, 2 * t + 1] if t < 2 else [t + 2] if t < 4 else []):
            e("s_add_u32 m0, %s, %d" % (T[1], (u // 3) * 22 * 3072 + (u % 3) * 1024))
            e("s_nop 0")
            dma1(VO + 1 + u % 3, T[0], 8)
            if u == 2:
                e("s_add_u32 %s, %s, %d" % (T[0], T[0], 22 * 16 * 2752))
    for trip in range(2):
        for t in range(8):
            LP_ = {0: {0: 3, 2: 2, 4: 1, 6: 0}, 1: {0: 3, 5: 2, 7: 1}, 2: {0: 3, 4: 2, 6: 1, 7: 0}, 3: {0: 3, 6: 2, 7: 1}}[OPT("lp", 2) if trip else 0]
            if t in LP_:
                e("s_setprio %d" % LP_[t])
            if t == 8 - KD and trip == 0:
                e("s_waitcnt vmcnt(%d)" % (8 - KD))
                e("s_barrier")
            tile(t + 8 * trip, (lambda t=t: wo_piece(t)) if trip == 0 else (lambda t=t: w1_piece(t)),
                 0 if trip and t == 7 and OPT("lp", 2) in (1, 3) else None)
        if trip == 0:
            addr(T[4], sLB, OF, [(sW, XSTR), (sHEAD, 1024)])
            slot(T[5], FA, [(sW, 32), (sHEAD, 1)])
            srd(sTMP, 20, 512 * 2752)
            addr(T[0], None, 0, [(sW, 16 * 2752), (sC, 192)])
            addr(T[1], None, 65536, [(sW, 3072)])
    e("s_nop 1")
    smf(VB[1] + 4, S[1] + 8)
    e("s_setprio 0")
    e("s_mov_b32 %s, %s" % (T[6], f32(2.0 ** (64 if FORCE_SLOW else -64))))
    e("s_mov_b32 %s, %s" % (T[7], f32(2.0 ** 64)))
    e("s_waitcnt lgkmcnt(0)")
    e("s_nop 7")
    stamp()
    cm("Softmax guard. The loops above used 0 as a stand-in for the row max. That is exact while the row sum")
    cm("stays in [2^-64, 2^64] and the accumulators are finite; otherwise redo this tile with the true max.")
    fin, slow = newlab("att_fin"), newlab("att_slow")
    e("v_cmp_le_f32 %s, %s, %s" % (sM0, T[6], v(O + 8)))
    e("v_cmp_ge_f32 %s, %s, %s" % (sM1, T[7], v(O + 8)))
    e("v_pk_mul_f32 v[18:19], %s, 0 op_sel_hi:[1,0]" % v(O, 2))
    for p in range(1, 4):
        e("v_pk_fma_f32 v[18:19], %s, 0, v[18:19] op_sel_hi:[1,0,1]" % v(O + 2 * p, 2))
    e("s_and_b64 %s, %s, %s" % (sM0, sM0, sM1))
    e("v_cmp_eq_f32 vcc, v18, v19")
    e("s_nop 0")
    e("s_and_b64 %s, %s, vcc" % (sM0, sM0))
    e("s_cmp_eq_u64 %s, -1" % sM0)
    e("s_cbranch_scc0 %s" % slow)
    lab(fin)
    e("v_rcp_f32 v16, %s" % v(O + 8))
    e("s_nop 0")
    for p in range(4):
        e("v_pk_mul_f32 %s, %s, v[16:17] op_sel_hi:[1,0]" % (v(O + 2 * p, 2), v(O + 2 * p, 2)))
    for p in range(4):
        e("v_cvt_pk_bf16_f32 %s, %s, %s" % (v(20 + p), v(O + 2 * p), v(O + 2 * p + 1)))
    lstores(["buffer_store_dwordx4 v[20:23], %s, %s, %s offen" % (v(vL16), sWS, T[4])])
    ns = newlab("ns")
    e("s_cmp_ge_u32 %s, 4" % sW)
    e("s_cbranch_scc1 %s" % ns)
    n512_setup(True)
    lab(ns)
    flag(T[5], 0, local=True)
    e("s_waitcnt vmcnt(1)")
    e("s_barrier")
    keep = L[:]
    del L[:]
    lab(slow)
    cm("true-max softmax for this query tile: pass 1 finds the row max, pass 2 accumulates exp2(s - max)")
    l1, l2 = newlab("slow1"), newlab("slow2")
    addr(T[2], None, KVF, [(sL, KVF_L), (sHEAD, 131072)])
    e("v_mov_b32 %s, 0xff800000" % v(CN))
    e("s_mov_b32 %s, 0" % sIT)
    lab(l1)
    e("buffer_load_dwordx4 %s, %s, %s, %s offen sc1" % (v(KB[0], 4), v(vL16), sWS, T[2]))
    e("s_waitcnt vmcnt(0)")
    mfma(S[0], KB[0], Q, "0")
    e("s_nop 15")
    for i in range(8):
        e("v_max3_f32 %s, %s, %s, %s" % (v(CN), v(S[0] + 2 * i), v(S[0] + 2 * i + 1), v(CN)))
    e("s_add_u32 %s, %s, 2048" % (T[2], T[2]))
    e("s_add_u32 %s, %s, 1" % (sIT, sIT))
    e("s_cmp_lt_u32 %s, 64" % sIT)
    e("s_cbranch_scc1 %s" % l1)
    e("v_mov_b32 %s, %s" % (v(CN + 1), v(CN)))
    e("s_nop 1")
    e("v_permlane32_swap_b32 %s, %s" % (v(CN), v(CN + 1)))
    e("s_nop 1")
    e("v_max_f32 %s, %s, %s" % (v(CN), v(CN), v(CN + 1)))
    e("v_sub_f32 %s, 0, %s" % (v(CN), v(CN)))
    for i in range(1, 16):
        e("v_mov_b32 %s, %s" % (v(CN + i), v(CN)))
    for i in range(16):
        e("v_mov_b32 %s, 0" % v(O + i))
    addr(T[2], None, KVF, [(sL, KVF_L), (sHEAD, 131072)])
    e("s_mov_b32 %s, 0" % sIT)
    lab(l2)
    e("buffer_load_dwordx4 %s, %s, %s, %s offen sc1" % (v(KB[0], 4), v(vL16), sWS, T[2]))
    e("s_mov_b64 exec, %s" % sMV)
    e("buffer_load_dwordx4 %s, %s, %s, %s offen offset:1024 sc1" % (v(VB[0], 4), v(vL16), sWS, T[2]))
    e("buffer_load_dwordx4 %s, %s, %s, %s offen offset:1280 sc1" % (v(VB[0] + 4, 4), v(vL16), sWS, T[2]))
    e("s_mov_b64 exec, -1")
    e("s_waitcnt vmcnt(0)")
    mfma(S[0], KB[0], Q, CN)
    e("s_nop 15")
    for i in range(16):
        e("v_exp_f32 %s, %s" % (v(S[0] + i), v(S[0] + i)))
    e("s_nop 1")
    smf(VB[0], S[0])
    smf(VB[0] + 4, S[0] + 8)
    e("s_nop 15")
    e("s_add_u32 %s, %s, 2048" % (T[2], T[2]))
    e("s_add_u32 %s, %s, 1" % (sIT, sIT))
    e("s_cmp_lt_u32 %s, 64" % sIT)
    e("s_cbranch_scc1 %s" % l2)
    e("s_branch %s" % fin)
    TAIL.extend(L)
    L[:] = keep
    stamp()


def ffn1_setup():
    e("v_and_b32 %s, 15, v0" % v(vPO))
    e("v_lshlrev_b32 %s, 3, %s" % (v(vPO), v(vPO)))
    slot(T[0], FO, [(sTBW, 16)])
    addr(T[1], sLB, X1F, [(sTBW, XSTR)])
    addr(T[2], sLB, ST1, [(sTBW, 4096)])
    e("v_add_u32 %s, %d, %s" % (v(vCA), CONST, v(vH16)))
    tr_rows(vW2, 192)
    e("v_add_u32 %s, 0x10000, %s" % (v(vW0), v(vW2)))
    e("v_add_u32 %s, %d, %s" % (v(vW1), 21 * 3072, v(vW0)))


def n512_setup(wo):
    J = 16 if wo else 39
    AK, AS = vACC, vACC + 16
    if not wo:
        addr(T[0], None, CONST + 384, [(sKH, 512)])
        e("v_add_u32 %s, %s, %s" % (v(vPO), T[0], v(vH16)))
        for i in range(4):
            e("ds_read_b128 %s, %s offset:%d" % (v(AS + 4 * i, 4), v(vPO), 32 * i))
    unpack(AK, vRES, 8)
    tr_rows(vW0, 128)
    e("v_bfe_u32 %s, v0, 3, 1" % v(vPD))
    e("v_xor_b32 %s, %s, %s" % (v(vPD), sKH, v(vPD)))
    e("v_lshl_or_b32 %s, %s, 6, %s" % (v(vW0), v(vPD), v(vW0)))
    e("s_mul_i32 %s, %s, %d" % (T[0], sKH, J * 2048))
    e("v_add_u32 %s, %s, %s" % (v(vW0), T[0], v(vW0)))
    e("v_xor_b32 %s, 64, %s" % (v(vW1), v(vW0)))
    if not wo:
        e("v_add_u32 %s, 0x10000, %s" % (v(vW2), v(vW0)))
        e("v_add_u32 %s, 0x10000, %s" % (v(vW3), v(vW1)))
    if wo:
        e("v_and_b32 %s, 15, v0" % v(vPO))
        slot(T[0], FA, [(sTBN, 32), (sKH, 16)])
        addr(T[1], sLB, OF, [(sTBN, XSTR), (sKH, 16384)])
    else:
        e("v_and_b32 %s, 7, v0" % v(vPO))
        slot(T[0], FH, [(sTBN, 16), (sKH, 7)])
        addr(T[1], sLB, HF, [(sTBN, HSTR), (sKH, 43 * 1024)])
    e("v_lshlrev_b32 %s, 3, %s" % (v(vPO), v(vPO)))
    if not wo:
        e("s_waitcnt lgkmcnt(0)")
        for p in range(8):
            e("v_pk_add_f32 %s, %s, %s" % (v(AK + 2 * p, 2), v(AK + 2 * p, 2), v(AS + 2 * p, 2)))


def n512(kind):
    wo = kind == "wo"
    ph = "o" if wo else "g"
    cm("================ %s" % ("output projection + residual" if wo else "MLP down projection + residual"))
    NS, J = (16, 16) if wo else (43, 39)
    ND = OPT("nd", 10 if wo else 13)
    AK, AS = vACC, vACC + 16
    hl, done = newlab("n_h"), newlab("n_done")
    e("s_cmp_ge_u32 %s, 4" % sW)
    e("s_cbranch_scc1 %s" % hl)
    if not wo:
        e("s_barrier")

    def rd(j, i):
        jj = j % J
        base, off = ((vW0, vW1)[i], jj * 2048) if jj < 32 else ((vW2, vW3)[i], (jj - 32) * 2048)
        d = vWB + (j % 3) * 8 + 4 * i
        e("ds_read_b64_tr_b16 %s, %s offset:%d" % (v(d, 2), v(base), off))
        e("ds_read_b64_tr_b16 %s, %s offset:%d" % (v(d + 2, 2), v(base), off + 1024))
    for j in range(2):
        for i in range(2):
            rd(j, i)
    poll(T[0])
    stamp()
    areg = lambda j: vA + 4 * (j % 32)
    load_frags(T[1], 0, ND, areg)
    fine(ph)

    def late_addresses():
        e("s_and_b32 %s, %s, 1" % (T[2], sW))
        if wo:
            addr(T[0], None, 0, [(T[2], 4096), (sKH, 32768)])
            e("s_xor_b32 %s, %s, 32768" % (T[3], T[0]))
            publish_addr(X1F, ST1, 0, FO)
        else:
            addr(T[0], None, 98304, [(T[2], 4096), (sKH, 8192)])
            e("s_xor_b32 %s, %s, 8192" % (T[3], T[0]))
            publish_addr(XF, ST, LFL_L * 8, FX)
        e("v_add_u32 %s, %s, %s" % (v(vPO), T[0], v(vL16)))
        e("v_add_u32 %s, %s, %s" % (v(vPD), T[3], v(vL16)))
    sh = capture(late_addresses)
    for j in range(NS):
        issued = min(NS, ND + j)
        if not wo and j == J - 2:
            e("s_barrier")
        if j < NS - 1:
            last2 = j == NS - 2
            e("s_waitcnt vmcnt(%d) lgkmcnt(%d)" % (0 if last2 else issued - j - 1, 0 if last2 else 4))
        if j in ((0, 4, 8, 15) if wo else (0, 11, 22, 42)):
            fine(ph)
        seq = [(j, 0), (j, 1)] if j < NS - 2 else [(j, 1), (j + 1, 1)] if j == NS - 2 else [(j - 1, 0), (j, 0)]
        for m, (jj, i) in enumerate(seq):
            acc = AK + 16 * i
            mfma(acc, vWB + (jj % 3) * 8 + 4 * i, areg(jj), "0" if (jj == 0 and i == 1) else acc)
            if j + 2 < NS:
                rd(j + 2, i)
            if m == 0 and ND + j < NS:
                load_frags(T[1], ND + j, 1, areg, False)
            if j >= 2:
                g = (j - 2) * 2 + m
                for x in sh[2 * g:2 * g + 2]:
                    e(x)
        if j == (8 if wo else NS - J - 1):
            e("s_barrier")
    assert len(sh) <= 4 * (NS - 2)
    e("s_nop 9")
    for i in range(4):
        e("ds_write_b128 %s, %s offset:%d" % (v(vPO), v(AS + 4 * i, 4), 1024 * i))
    e("s_waitcnt lgkmcnt(0)")
    e("s_barrier")
    stamp()
    for i in range(4):
        e("ds_read_b128 %s, %s offset:%d" % (v(AS + 4 * i, 4), v(vPD), 1024 * i))
    for i in range(4):
        e("s_waitcnt lgkmcnt(%d)" % (3 - i))
        for p in (2 * i, 2 * i + 1):
            e("v_pk_add_f32 %s, %s, %s" % (v(AK + 2 * p, 2), v(AK + 2 * p, 2), v(AS + 2 * p, 2)))
    for p in range(8):
        e("v_cvt_pk_bf16_f32 %s, %s, %s" % (v(vRES + p), v(AK + 2 * p), v(AK + 2 * p + 1)))
    if wo:
        publish_x(AK, 20, ffn1_setup)
    else:
        last = newlab("last")
        e("s_cmp_lg_u32 %s, 0" % sL)
        e("s_cbranch_scc1 %s" % last)
        publish_x(AK, 20, lambda: qkv_setup(True))
        e("s_branch %s" % done)
        lab(last)
        srd(sTMP, 28, 2048 * 1024)
        e("v_and_b32 v16, 31, v0")
        e("v_lshlrev_b32 v16, 10, v16")
        e("v_add_u32 v16, v16, %s" % v(vH16))
        addr(T[0], None, 0, [(sXCD, 262144), (sTBN, 32768), (sNT, 64)])
        for g in range(2):
            e("v_permlane32_swap_b32 %s, %s" % (v(vRES + 4 * g), v(vRES + 4 * g + 2)))
            e("v_permlane32_swap_b32 %s, %s" % (v(vRES + 4 * g + 1), v(vRES + 4 * g + 3)))
        for g in range(2):
            e("buffer_store_dwordx4 %s, v16, %s, %s offen offset:%d" % (v(vRES + 4 * g, 4), sTMP, T[0], 32 * g))
    e("s_branch %s" % done)
    lab(hl)
    if wo:
        voff_192(44)
        e("s_lshl_b32 %s, %s, 2" % (T[3], sHW))
        e("s_min_u32 %s, %s, 10" % (T[3], T[3]))
        addr(T[0], None, 8 * 16 * 2752, [(T[3], 16 * 2752), (sC, 192)])
        addr(T[1], None, 65536 + 8 * 3072, [(T[3], 3072)])
        dma_w1(2)
        e("s_mov_b32 %s, %s" % (T[3], T[0]))
        e("s_mov_b32 %s, %s" % (T[4], T[1]))
        w0, w1, w2 = newlab("wcs"), newlab("wcs"), newlab("wcs")
        e("s_cmp_lg_u32 %s, 0" % sL)
        e("s_cbranch_scc1 %s" % w0)
        tr_rows(43, 192)
        colsum_begin()
        addr(T[0], None, 65536, [(sHW, 2 * 3072)])
        colsum_w1()
        addr(T[0], None, 65536 + 22 * 3072, [(sHW, 2 * 3072)])
        colsum_w1()
        lab(w0)
        e("s_mov_b32 %s, %s" % (T[0], T[3]))
        e("s_mov_b32 %s, %s" % (T[1], T[4]))
        e("s_barrier")
        fine("v")
        dma_w1(2)
        e("s_barrier")
        fine("v")
        e("s_cmp_lg_u32 %s, 3" % sHW)
        e("s_cbranch_scc1 %s" % w1)
        addr(T[0], None, 30 * 16 * 2752, [(sC, 192)])
        e("s_mov_b32 %s, %d" % (T[1], 58 * 1024))
        dma_w1(2)
        lab(w1)
        e("s_cmp_lg_u32 %s, 0" % sL)
        e("s_cbranch_scc1 %s" % done)
        cm("own late k-steps: 8-11 | 12-15 | 16-19 | 20-21 and 30-31")
        e("s_and_b32 %s, %s, 1" % (T[4], sHW))
        addr(T[0], None, 65536 + 8 * 3072, [(sHW, 4 * 3072)])
        e("s_add_u32 %s, %s, %d" % (T[3], T[0], 2 * 3072))
        e("s_cmp_eq_u32 %s, 3" % sHW)
        e("s_cselect_b32 %s, %d, %s" % (T[3], 58 * 1024, T[3]))
        e("s_waitcnt vmcnt(0)")
        colsum_w1()
        e("s_mov_b32 %s, %s" % (T[0], T[3]))
        colsum_w1()
        colsum_partial()
        e("v_lshlrev_b32 v47, 16, v224")
        addr(T[0], None, B1_L, [(sHW, 128)])
        e("v_add_u32 v42, %s, v41" % T[0])
        e("ds_write_b32 v42, v47")
        e("v_lshlrev_b32 v49, 16, v225")
        addr(T[0], None, CONST + 384, [(T[4], 512)])
        e("v_add_u32 v42, %s, v41" % T[0])
        e("ds_write_b32 v42, v49")
    else:
        e("s_waitcnt vmcnt(0)")
        fine("w")
        e("s_barrier")
        fine("w")
        e("s_lshr_b32 %s, %s, 1" % (T[3], sHW))
        e("s_and_b32 %s, %s, 1" % (T[4], sHW))
        addr(T[0], None, 78 * 8192, [(T[3], 86 * 8192), (T[4], 4 * 8192), (sNB, 128)])
        addr(T[1], None, 0, [(T[3], 78 * 1024), (T[4], 4096)])
        e("s_barrier")
        for k in range(4):
            e("s_add_u32 m0, %s, %d" % (T[1], 1024 * k))
            e("s_nop 0")
            dma1(40, T[0], 4)
            e("s_add_u32 %s, %s, 8192" % (T[0], T[0]))
        e("s_waitcnt vmcnt(0)")
        e("s_barrier")
        stash_addr()
        e("s_barrier")
        e("s_cmp_lg_u32 %s, 0" % sL)
        e("s_cbranch_scc1 %s" % done)
        for k in range(24):
            e("ds_write_b128 v42, %s offset:%d" % (v(vSTASH + 4 * k, 4), 1024 * k))
    lab(done)
    stamp()


def ffn1():
    cm("================ MLP up projection + GELU")
    hl, done = newlab("f1_h"), newlab("f1_done")
    e("s_cmp_ge_u32 %s, 4" % sW)
    e("s_cbranch_scc1 %s" % hl)
    idle = newlab("f1_idle")
    e("s_cmp_eq_u32 %s, 15" % sC)
    e("s_cbranch_scc1 %s" % idle)
    setup = newlab("f1_setup")
    TAIL.extend([idle + ":"] + ["    s_barrier"] * 4 + ["    s_branch " + setup])

    lds = Lds()

    def rd(ks, i):
        d = vWB + (ks % 3) * 12 + 4 * i
        base, off = (vW0, ks * 3072) if ks < 21 else (vW1, (ks - 21) * 3072) if ks < 30 else (vW2, 58 * 1024 + (ks - 30) * 3072)
        lds.op(("w", ks), "ds_read_b64_tr_b16 %s, %s offset:%d" % (v(d, 2), v(base), off + 64 * i))
        lds.op(("w", ks), "ds_read_b64_tr_b16 %s, %s offset:%d" % (v(d + 2, 2), v(base), off + 64 * i + 1536))

    def wait(name):
        n = lds.need(name)
        if n is not None:
            e("s_waitcnt lgkmcnt(%d)" % n)
    for ks in range(2):
        for i in range(3):
            rd(ks, i)
    poll(T[0])
    stamp()

    def item(n):
        if n < 32:
            load_frags(T[1], n, 1, lambda j: vA + 4 * j, n % 4 == 0)
        else:
            e("buffer_load_dwordx4 %s, %s, %s, %s offen offset:%d sc1" % (v(vSTS + 4 * (n - 32), 4), v(vL16), sWS, T[2], 1024 * (n - 32)))
    sched = [[ks + DEPTH] if ks + DEPTH < 32 else [] for ks in range(32)]
    for k in range(4):
        sched[1 + k].append(32 + k)
    order = list(range(DEPTH))
    for n in range(DEPTH):
        item(n)
    fine("f")
    c0 = -2.0 * 1.4426950408889634 * 0.7978845608028654
    GC = vSTS + 4

    def early():
        addr(T[4], sLB, HF, [(sTBW, HSTR), (sC, 6144)])
        e("s_add_u32 %s, %s, 4096" % (T[5], T[4]))
        slot(T[6], FH, [(sTBW, 16), (sC, 1)])
    S0 = OPT("s0", 11)
    mid = stats_code(True) + ["v_mul_f32 %s, %s, %s" % (v(vMU), v(vMU), v(vR)), "v_mov_b32 %s, %s" % (v(GC), f32(c0)),
                              "v_mov_b32 %s, %s" % (v(GC + 1), f32(c0 * 0.044715)), "v_mov_b32 %s, 1.0" % v(GC + 2)]
    sh = [(5, lambda x=x: e(x)) for x in capture(early)] + [(S0, lambda x=x: e(x)) for x in mid]
    cm("bias' = b1 - mean*rstd*colsum is formed under the last MFMAs, in dead activation registers")
    rdc, fmc = [], []
    for t in range(3):
        rdc.append([(max(12, 8 * t + 8), lambda t=t, k=k: lds.op(("c", t), "ds_read_b128 %s, %s offset:%d" % (
            v(16 + 32 * t + 4 * k, 4), v(vCA), 512 + 512 * (k // 4) + t * 128 + 32 * (k % 4)))) for k in range(8)])
        fmc.append([(0, lambda t=t: wait(("c", t)))] + [(0, lambda t=t, r=r: e("v_fma_f32 %s, -%s, %s, %s" % (
            v(32 + 32 * t + r), v(vMU), v(16 + 32 * t + r), v(32 + 32 * t + r)))) for r in range(16)])
    mix = lambda a, b: [x for k in range(max(len(a), len(b))) for x in a[2 * k:2 * k + 2] + b[k:k + 1]]
    sh += rdc[0] + mix(fmc[0], rdc[1]) + fmc[1][:9] + mix(fmc[1][9:], rdc[2]) + fmc[2]
    pos = 0
    for ks in range(32):
        if ks in (6, 12, 22):
            e("s_barrier")
        newest = max(order.index(n) for n in ([ks, 35] if ks >= S0 else [ks]))
        lg = lds.need(("w", ks))
        e("s_waitcnt vmcnt(%d)%s" % (len(order) - 1 - newest, "" if lg is None else " lgkmcnt(%d)" % lg))
        if ks in FINEKS:
            fine("f")
        for i in range(3):
            mfma(vACC + 16 * i, vWB + (ks % 3) * 12 + 4 * i, vA + 4 * ks, "0" if ks == 0 else vACC + 16 * i)
            if ks + 2 < 32:
                rd(ks + 2, i)
            if i < len(sched[ks]):
                item(sched[ks][i])
                order.append(sched[ks][i])
            for _ in range(OPT("fp", 2) if ks < 30 else 5):
                if pos < len(sh) and ks >= sh[pos][0]:
                    sh[pos][1]()
                    pos += 1
    for x in sh[pos:]:
        x[1]()
    stamp()
    e("s_nop %d" % max(0, 9 - len(sh[pos:])))
    Z, P = 120, vWB
    for t in range(3):
        acc, b1 = vACC + 16 * t, 32 + 32 * t
        for p in range(8):
            e("v_pk_fma_f32 %s, %s, %s, %s op_sel_hi:[1,0,1]" %
              (v(acc + 2 * p, 2), v(acc + 2 * p, 2), v(vR, 2), v(b1 + 2 * p, 2)))
        for p in range(8):
            e("v_pk_mul_f32 %s, %s, %s" % (v(Z + 2 * p, 2), v(acc + 2 * p, 2), v(acc + 2 * p, 2)))
        for p in range(8):
            e("v_pk_fma_f32 %s, %s, %s, %s op_sel:[0,1,0] op_sel_hi:[1,1,0]" %
              (v(Z + 2 * p, 2), v(Z + 2 * p, 2), v(GC, 2), v(GC, 2)))
        for p in range(8):
            e("v_pk_mul_f32 %s, %s, %s" % (v(Z + 2 * p, 2), v(Z + 2 * p, 2), v(acc + 2 * p, 2)))
        for i in range(16):
            e("v_exp_f32 %s, %s" % (v(Z + i), v(Z + i)))
        for p in range(8):
            e("v_pk_add_f32 %s, %s, %s op_sel_hi:[1,0]" % (v(Z + 2 * p, 2), v(Z + 2 * p, 2), v(GC + 2, 2)))
        for i in range(16):
            e("v_rcp_f32 %s, %s" % (v(Z + i), v(Z + i)))
        for p in range(8):
            e("v_pk_mul_f32 %s, %s, %s" % (v(acc + 2 * p, 2), v(acc + 2 * p, 2), v(Z + 2 * p, 2)))
        for p in range(8):
            e("v_cvt_pk_bf16_f32 %s, %s, %s" % (v(P + 8 * t + p), v(acc + 2 * p), v(acc + 2 * p + 1)))
        lstores(["buffer_store_dwordx4 %s, %s, %s, %s offen offset:%d" %
                 (v(P + 8 * t + 4 * hh, 4), v(vL16), sWS, T[4 + (2 * t + hh) // 4], ((2 * t + hh) % 4) * 1024) for hh in range(2)])
        if t == 0:
            e("s_barrier")
        if t != 1:
            fine("f")
    lab(setup)
    n512_setup(False)
    e("s_cmp_eq_u32 %s, 15" % sC)
    e("s_cbranch_scc1 %s" % done)
    flag(T[6], 0, local=True)
    e("s_branch %s" % done)
    lab(hl)
    h1 = newlab("fh1")
    voff_128(40)
    srd(sTMP, 24, 1376 * 1024)
    fine("v")
    e("s_waitcnt vmcnt(0) lgkmcnt(0)")
    fine("v")
    e("s_barrier")
    fine("v")
    e("s_cmp_lg_u32 %s, 0" % sL)
    e("s_cbranch_scc1 %s" % h1)
    colsum_combine(CS1_L)
    e("s_waitcnt lgkmcnt(0)")
    lab(h1)
    e("s_barrier")
    E0 = OPT("e0", 2)
    if E0:
        dma_w2(0, 0, E0, OPT("e0p", 1) or -1)
    e("s_barrier")
    fine("w")
    dma_w2(86, 78 * 1024, 7, None)
    dma_w2(4 * E0, 4 * E0 * 1024, 14 - E0, None)
    dma_w2(86 + 28, (78 + 28) * 1024, 6, None)
    fine("w")
    e("s_barrier")
    fine("w")
    dma_w2(54, 54 * 1024, 6)
    dma_w2(86 + 50, (78 + 50) * 1024, 7)
    fine("w")
    lab(done)
    stamp()


def epilogue():
    e("s_add_u32 %s, %s, 1" % (sL, sL))
    e("s_add_u32 %s, %s, %d" % (sFB, sFB, LFL_L * 8))
    e("s_cmp_lt_u32 %s, 2" % sL)
    e("s_cbranch_scc1 L_layer")
    if PROFILE:
        e("s_memrealtime s[22:23]")
        e("s_waitcnt lgkmcnt(0)")
        stamp("s23")
        e("s_lshl_b32 %s, s2, 3" % T[0])
        e("s_add_u32 %s, %s, %s" % (T[0], T[0], sW))
        e("s_lshl_b32 %s, %s, 8" % (T[0], T[0]))
        e("s_add_u32 %s, %s, 0x%x" % (T[0], T[0], TSB))
        e("s_mov_b64 exec, 1")
        for i, r in enumerate([68, 18, 19] + list(range(STAMP0, STAMP0 + 30)) + [22, 23, 0, 1]):
            e("v_mov_b32 v16, s%d" % r)
            e("buffer_store_dword v16, off, %s, %s offset:%d" % (sWS, T[0], 4 * i))
        e("s_mov_b64 exec, 0xff")
        e("v_lshlrev_b32 v16, 2, v0")
        e("buffer_store_dword v5, v16, %s, %s offen offset:148" % (sWS, T[0]))
        e("s_mov_b64 exec, -1")
    if "--dbg" in sys.argv:
        sk = newlab("dbg")
        e("s_or_b32 %s, s2, %s" % (T[0], sW))
        e("s_cmp_lg_u32 %s, 0" % T[0])
        e("s_cbranch_scc1 %s" % sk)
        srd(sTMP, 30, 256)
        e("s_mov_b64 exec, 1")
        for i, r in enumerate([19, 72, 73, 74, 75, 76, 77, 80, 83, 86, 89, 90, 91, 95, 98, 101]):
            e("s_sub_u32 %s, s%d, s18" % (T[0], r))
            e("v_mov_b32 v16, %s" % T[0])
            e("buffer_store_dword v16, off, %s, 0 offset:%d" % (sTMP, 4 * i))
        e("s_mov_b64 exec, -1")
        lab(sk)
    if OPT("hold", 0):
        hl = newlab("hold")
        lab(hl)
        e("s_memrealtime s[70:71]")
        e("s_waitcnt lgkmcnt(0)")
        e("s_sub_u32 s70, s70, s68")
        e("s_cmp_lt_u32 s70, %d" % OPT("hold", 0))
        e("s_cbranch_scc1 %s" % hl)
    cm("advance the hand-off tag for the next launch")
    e("s_or_b32 %s, s2, %s" % (T[0], sW))
    e("s_cmp_lg_u32 %s, 0" % T[0])
    e("s_cbranch_scc1 L_end")
    e("s_mov_b64 exec, 1")
    e("buffer_store_dword %s, off, %s, 0" % (v(vFV), sWS))
    lab("L_end")
    e("s_endpgm")
    L.extend(TAIL)


HEADER = open(f"cdna_kernels/{NAME}.s.ref").read().split("; Override launch")[0]


OVERVIEW = """;
; Generated by gen/gen.py (hand-written generator). One persistent launch, one 8-wave workgroup per CU.
; Hand-offs: payload stores, vmcnt wait, then an 8-byte flag {tag, ~tag}; tag = ws[0] + 16 differs per launch.
;   Every workgroup reports the die it runs on. If a die group shares one die its hand-offs use plain stores
"""


def main():
    prologue()
    p0()
    lab("L_layer")
    qkv()
    attention()
    n512("wo")
    ffn1()
    n512("f2")
    epilogue()
    k = NAME + "_kernel"
    out = HEADER
    out += "; @launch grid=(256,1,1) block=(512,1,1) lds=%d\n" % LDS_BYTES
    out += OVERVIEW
    out += '.amdgcn_target "amdgcn-amd-amdhsa--gfx950"\n.text\n.globl %s\n.p2align 8\n.type %s,@function\n%s:\n' % (k, k, k)
    out += "\n".join(L) + "\n"
    out += """.section .rodata,"a"
.p2align 6
.amdhsa_kernel %s
  .amdhsa_next_free_vgpr 256
  .amdhsa_next_free_sgpr 102
  .amdhsa_accum_offset 256
  .amdhsa_group_segment_fixed_size 0
  .amdhsa_kernarg_size 88
  .amdhsa_user_sgpr_count 2
  .amdhsa_user_sgpr_kernarg_segment_ptr 1
  .amdhsa_system_sgpr_workgroup_id_x 1
.end_amdhsa_kernel
""" % k
    open(OUT, "w").write(out)
    import subprocess
    r = subprocess.run([sys.executable, "hazard.py", OUT], capture_output=True, text=True).stdout
    if not r.strip().endswith("violations 0"):
        print(r)


main()
```

```python
import struct
import sys

NAME = "interleave_layers__softmax_full_mha__mixer_channel_mlp__prompt"
PROFILE = "--prof" in sys.argv
CLK = "s_memrealtime" if "--rt" in sys.argv else "s_memtime"
FORCE_SLOW = "--slow" in sys.argv
FORCE_GLOBAL = "--global" in sys.argv
OUT = [a for a in sys.argv[1:] if not a.startswith("--")]
OUT = OUT[0] if OUT else f"cdna_kernels/{NAME}.s"


def OPT(name, default):
    a = [x.split("=")[1] for x in sys.argv if x.startswith("--%s=" % name)]
    return int(a[0]) if a else default


def f32(x):
    return "0x%08x" % struct.unpack("<I", struct.pack("<f", x))[0]


WS_SIZE = 0x10000000
FLG = 0x100000
FI = 0
GFL, GFL_L = 0xA00000, 0x100000
KVF, KVF_L = 0x200000, 0x400000
ARENA, ARENA_X = 0x1000000, 0x200000
XSTR, HSTR = 33 * 1024, 97 * 1024
XF, OF, BLK, ST, LFL = 0, 0x48000, 0x90000, 0x158000, 0x160000
X1F, ST1, HF, QF, KVL = XF, ST, BLK, BLK, BLK + 32768
FX, FQ, FA, FO, FH, LFL_L = 0, 128, 256, 512, 640, 768
TSB = 0x4000000
DEPTH = OPT("depth", 10)
PACE = OPT("pace", 5)
RED = 140 * 1024
CONST = 156 * 1024
CSQ_L, CS1_L, B1_L, STAT_L, PART_L = CONST, CONST + 512, CONST + 1024, CONST + 1536, CONST + 2560
MODE_L = B1_L + 400
LDS_BYTES = 160 * 1024
sWS, sTMP = "s[4:7]", "s[8:11]"
sW, sNONCE, sL, sLB, sFB = "s34", "s35", "s36", "s37", "s38"
sXCD, sJ, sTBW, sC, sTBN, sNB, sKH, sNT, sHEAD, sQB = ("s%d" % i for i in range(39, 49))
sHW = "s49"
T = ["s%d" % i for i in range(50, 60)]
sCNT, sIT = "s60", "s61"
sMV = "s[62:63]"
sM0, sM1 = "s[64:65]", "s[66:67]"
sMODE = "s3"
STAMP0 = 72
vLANE, vL16, vFV, vPO, vT5, vPD = 0, 1, 2, 4, 5, 6
vRES = 8
vA, vACC, vWB, vSTS = 16, 144, 192, 228
vW0, vW1, vMU, vW2, vR, vW3, vRQ, vCA, vTR, vK16, vVOF, vH16 = 244, 245, 246, 247, 248, 249, 250, 251, 252, 253, 254, 255
vSTASH = 128
QL = 128 * 1024
POLL_LIMIT = 1 << 16

L = []
TAIL = []
uid = [0]
nstamp = [0]


def e(s):
    L.append("    " + s)


def lab(n):
    L.append(n + ":")


def cm(s):
    L.append("    ; " + s)


def v(i, n=1):
    return "v%d" % i if n == 1 else "v[%d:%d]" % (i, i + n - 1)


def capture(f):
    n = len(L)
    f()
    out = [x.strip() for x in L[n:]]
    del L[n:]
    return out


def newlab(p):
    uid[0] += 1
    return "L_%s_%d" % (p, uid[0])


def stamp(fixed=None):
    if not PROFILE:
        return
    e(CLK + " s[70:71]")
    e("s_waitcnt lgkmcnt(0)")
    if fixed:
        e("s_mov_b32 %s, s70" % fixed)
        return
    e("s_mul_i32 s69, %s, 15" % sL)
    e("s_add_u32 m0, s69, %d" % nstamp[0])
    e("s_nop 1")
    e("s_movreld_b32 s%d, s70" % STAMP0)
    nstamp[0] += 1
    assert nstamp[0] <= 15


FINE = [a.split("=")[1] for a in sys.argv if a.startswith("--fine=")]
FINE = FINE[0] if FINE else None
nfine = [0]
FINEKS = eval([a.split('=')[1] for a in sys.argv if a.startswith('--ks=')][0]) if any(a.startswith('--ks=') for a in sys.argv) else (0, 8, 16, 31)


def fine(phase):
    if not PROFILE or FINE != phase:
        return
    e(CLK + " s[70:71]")
    e("s_waitcnt lgkmcnt(0)")
    sk = newlab("fs")
    e("s_cmp_lg_u32 %s, %d" % (sL, 0 if "--l0" in sys.argv else 1))
    e("s_cbranch_scc1 %s" % sk)
    e("v_writelane_b32 v5, s70, %d" % nfine[0])
    lab(sk)
    nfine[0] += 1


def srd(dst, lo, size):
    b = int(dst[2:dst.index(":")])
    e("s_mov_b32 s%d, s%d" % (b, lo))
    e("s_and_b32 s%d, s%d, 0xffff" % (b + 1, lo + 1))
    e("s_mov_b32 s%d, %s" % (b + 2, size if isinstance(size, str) else hex(size)))
    e("s_mov_b32 s%d, 0x20000" % (b + 3))


def poll(soff):
    a, b = newlab("poll"), newlab("pok")
    regs = (vPD, 16) if OPT("p2", 1) else (vPD,)
    ld = lambda r: e("buffer_load_dwordx2 %s, %s, %s, %s offen sc1" % (v(r, 2), v(vPO), sWS, soff))
    e("s_mov_b32 %s, %d" % (sCNT, POLL_LIMIT))
    if len(regs) == 2:
        ld(regs[0])
    lab(a)
    for k, r in enumerate(regs):
        ld(regs[(k + 1) % len(regs)])
        e("s_waitcnt vmcnt(%d)" % (len(regs) - 1))
        e("v_cmp_eq_u64 vcc, %s, %s" % (v(r, 2), v(vFV, 2)))
        e("s_nop 0")
        e("s_cmp_eq_u64 vcc, -1")
        e("s_cbranch_scc1 %s" % b)
    e("s_sub_u32 %s, %s, 1" % (sCNT, sCNT))
    e("s_cbranch_scc0 %s" % a)
    e("s_endpgm")
    lab(b)


def lstores(lines):
    g, d = newlab("wt"), newlab("wtd")
    e("s_cmp_eq_u32 %s, 0" % sMODE)
    e("s_cbranch_scc1 %s" % g)
    for x in lines:
        e(x)
    lab(d)
    TAIL.append(g + ":")
    for x in lines:
        TAIL.append("    " + x + (" sc1" if x.startswith("buffer_store") else ""))
    TAIL.append("    s_branch " + d)


def flag(soff, n=0, local=False):
    if n is not None:
        e("s_waitcnt vmcnt(%d)" % n)
    if local:
        e("s_mov_b64 exec, 1")
        lstores(["buffer_store_dwordx2 %s, off, %s, %s" % (v(vFV, 2), sWS, soff)])
    else:
        e("v_lshlrev_b32 %s, 3, v0" % v(vPD))
        e("s_mov_b64 exec, 0xffff")
        e("buffer_store_dwordx2 %s, %s, %s, %s offen sc1" % (v(vFV, 2), v(vPD), sWS, soff))
    e("s_mov_b64 exec, -1")


def mode_poll(first=False):
    a, b, glob, out = newlab("mp"), newlab("mpok"), newlab("mpg"), newlab("mpo")
    e("v_and_b32 %s, 31, v0" % v(vPD))
    e("v_lshlrev_b32 %s, 10, %s" % (v(vPD), v(vPD)))
    addr(T[3], None, FLG + FI * 128, [(sXCD, 128)])
    e("v_add_u32 %s, %s, %s" % (v(vPD), T[3], v(vPD)))
    if first:
        e("v_add_u32 %s, %s, %s" % (v(vPD + 1), T[0], v(vPO)))
        e("v_cmp_gt_u32 vcc, 32, v0")
        e("s_nop 1")
        e("v_cndmask_b32 v60, %s, %s, vcc" % (v(vPD), v(vPD + 1)))
    e("s_getreg_b32 %s, hwreg(HW_REG_XCC_ID, 0, 4)" % T[3])
    e("s_mov_b32 %s, %d" % (sCNT, POLL_LIMIT))
    e("s_mov_b32 %s, 1" % sMODE)
    lab(a)
    e("buffer_load_dwordx2 %s, v60, %s, 0 offen sc1" % (v(vPD, 2), sWS))
    e("s_waitcnt vmcnt(0)")
    e("v_xor_b32 %s, %s, %s" % (v(vPD + 1), v(vPD + 1), v(vFV + 1)))
    e("v_cmp_eq_u32 %s, %s, %s" % (sM0, v(vPD), v(vFV)))
    e("v_cmp_eq_u32 %s, %s, %s" % (sM1, T[3], v(vPD + 1)))
    e("v_cmp_gt_u32 vcc, 16, %s" % v(vPD + 1))
    e("s_nop 1")
    e("s_and_b64 %s, %s, %s" % (sM1, sM1, sM0))
    e("s_and_b64 vcc, vcc, %s" % sM0)
    if not FORCE_GLOBAL:
        e("s_cmp_eq_u64 %s, -1" % sM1)
        e("s_cbranch_scc1 %s" % out)
    e("s_cmp_eq_u32 vcc_hi, -1")
    e("s_cbranch_scc0 %s" % b)
    if not FORCE_GLOBAL:
        e("s_cmp_eq_u32 s67, -1")
        e("s_cbranch_scc0 %s" % glob)
    else:
        e("s_branch %s" % glob)
    lab(b)
    e("s_sub_u32 %s, %s, 1" % (sCNT, sCNT))
    e("s_cbranch_scc0 %s" % a)
    e("s_endpgm")
    lab(glob)
    e("s_mov_b32 %s, 0" % sMODE)
    if first:
        e("v_xor_b32 %s, 31, %s" % (v(vFV + 1), v(vFV + 1)))
        publish_addr(XF, ST, 0, FX)
        publish_x(None, 84)
        poll(T[0])
        e("v_xor_b32 %s, 31, %s" % (v(vFV + 1), v(vFV + 1)))
    lab(out)


def slot(dst, base, terms):
    e("s_add_u32 %s, %s, %d" % (dst, sFB, base * 8))
    for r, m in terms:
        e("s_mul_i32 %s, %s, %d" % (T[9], r, m * 8))
        e("s_add_u32 %s, %s, %s" % (dst, dst, T[9]))


def addr(dst, base_reg, const, terms):
    if base_reg is None:
        e("s_mov_b32 %s, 0x%x" % (dst, const))
    else:
        e("s_add_u32 %s, %s, 0x%x" % (dst, base_reg, const))
    for r, m in terms:
        e("s_mul_i32 %s, %s, %d" % (T[9], r, m))
        e("s_add_u32 %s, %s, %s" % (dst, dst, T[9]))


def load_frags(sg, first, n, reg_of, rebase=True):
    for j in range(first, first + n):
        if j % 4 == 0 or (j == first and rebase):
            e("s_add_u32 %s, %s, %d" % (T[8], sg, (j // 4) * 4096))
        e("buffer_load_dwordx4 %s, %s, %s, %s offen offset:%d sc1" %
          (v(reg_of(j), 4), v(vL16), sWS, T[8], (j % 4) * 1024))


def mfma(d, a, b, c):
    e("v_mfma_f32_32x32x16_bf16 %s, %s, %s, %s" % (v(d, 16), v(a, 4), v(b, 4), c if isinstance(c, str) else v(c, 16)))


def half_sum(a, b):
    e("s_nop 1")
    e("v_permlane32_swap_b32 %s, %s" % (v(a), v(b)))
    e("s_nop 1")
    e("v_add_f32 %s, %s, %s" % (v(a), v(a), v(b)))


def tile_stats(y, t):
    e("v_pk_add_f32 %s, %s, %s" % (v(t, 2), v(y, 2), v(y + 2, 2)))
    e("v_pk_mul_f32 %s, %s, %s" % (v(t + 2, 2), v(y, 2), v(y, 2)))
    for p in range(1, 8):
        if p > 1:
            e("v_pk_add_f32 %s, %s, %s" % (v(t, 2), v(t, 2), v(y + 2 * p, 2)))
        e("v_pk_fma_f32 %s, %s, %s, %s" % (v(t + 2, 2), v(y + 2 * p, 2), v(y + 2 * p, 2), v(t + 2, 2)))
    e("v_add_f32 %s, %s, %s" % (v(t), v(t), v(t + 1)))
    e("v_add_f32 %s, %s, %s" % (v(t + 2), v(t + 2), v(t + 3)))
    half_sum(t, t + 2)


def unpack(dst, src, n):
    for i in range(n):
        e("v_lshlrev_b32 %s, 16, %s" % (v(dst + 2 * i), v(src + i)))
        e("v_and_b32 %s, 0xffff0000, %s" % (v(dst + 2 * i + 1), v(src + i)))


def publish_addr(xoff, stoff, fbase_add, fbase):
    addr(T[4], sLB, xoff, [(sTBN, XSTR), (sNT, 2048)])
    e("s_lshr_b32 %s, %s, 2" % (T[6], sNT))
    e("s_and_b32 %s, %s, 3" % (T[7], sNT))
    addr(T[5], sLB, stoff, [(sTBN, 4096), (T[6], 1024), (T[7], 4)])
    slot(T[6], fbase, [(sTBN, 16), (sNT, 1)])
    if fbase_add:
        e("s_add_u32 %s, %s, %d" % (T[6], T[6], fbase_add))


def publish_x(y, t, meanwhile=None):
    lstores(["buffer_store_dwordx4 %s, %s, %s, %s offen" % (v(vRES, 4), v(vL16), sWS, T[4]),
             "buffer_store_dwordx4 %s, %s, %s, %s offen offset:1024" % (v(vRES + 4, 4), v(vL16), sWS, T[4])])
    if y is not None:
        tile_stats(y, t)
    lstores(["buffer_store_dword %s, %s, %s, %s offen" % (v(t), v(vL16), sWS, T[5])])
    if meanwhile:
        meanwhile()
    flag(T[6], local=True)


def prologue():
    e("s_cmp_ge_u32 s2, 256")
    e("s_cbranch_scc1 L_end")
    e("s_load_dwordx16 s[12:27], s[0:1], 0")
    e("s_load_dwordx4 s[28:31], s[0:1], 64")
    e("s_load_dwordx2 s[32:33], s[0:1], 80")
    e("v_lshrrev_b32 v1, 6, v0")
    e("v_and_b32 v0, 63, v0")
    e("v_readfirstlane_b32 %s, v1" % sW)
    e("v_lshlrev_b32 %s, 4, v0" % v(vL16))
    cm("column part of a transposing-read address: (lane&3)*8 + ((lane>>4)&1)*32")
    e("v_and_b32 %s, 3, v0" % v(vTR))
    e("v_lshlrev_b32 %s, 3, %s" % (v(vTR), v(vTR)))
    e("v_bfe_u32 %s, v0, 4, 1" % v(vT5))
    e("v_lshl_or_b32 %s, %s, 5, %s" % (v(vTR), v(vT5), v(vTR)))
    e("v_lshrrev_b32 %s, 5, v0" % v(vT5))
    e("v_lshlrev_b32 %s, 4, %s" % (v(vH16), v(vT5)))
    cm("K fragments are stored with token bits 2 and 3 swapped (matches the sparse-MFMA key order)")
    e("v_and_b32 %s, 0x33, v0" % v(vK16))
    e("v_and_b32 %s, 4, v0" % v(vPO))
    e("v_lshl_or_b32 %s, %s, 1, %s" % (v(vK16), v(vPO), v(vK16)))
    e("v_and_b32 %s, 8, v0" % v(vPO))
    e("v_lshrrev_b32 %s, 1, %s" % (v(vPO), v(vPO)))
    e("v_or_b32 %s, %s, %s" % (v(vK16), v(vK16), v(vPO)))
    e("v_lshlrev_b32 %s, 4, %s" % (v(vK16), v(vK16)))
    cm("V store offset: head parity*128K + half*512 + d*16")
    e("v_and_b32 %s, 15, v0" % v(vVOF))
    e("v_lshlrev_b32 %s, 4, %s" % (v(vVOF), v(vVOF)))
    e("v_lshl_or_b32 %s, %s, 9, %s" % (v(vVOF), v(vT5), v(vVOF)))
    e("v_bfe_u32 %s, v0, 4, 1" % v(vPO))
    e("v_lshl_or_b32 %s, %s, 17, %s" % (v(vVOF), v(vPO), v(vVOF)))
    e("s_and_b32 %s, s2, 7" % sXCD)
    e("s_lshr_b32 %s, s2, 3" % sJ)
    e("s_and_b32 %s, %s, 3" % (sHW, sW))
    e("s_and_b32 %s, %s, 15" % (sC, sJ))
    e("s_lshr_b32 %s, %s, 4" % (T[0], sJ))
    e("s_lshl_b32 %s, %s, 2" % (T[0], T[0]))
    e("s_add_u32 %s, %s, %s" % (sTBW, T[0], sHW))
    e("s_and_b32 %s, %s, 7" % (sNB, sJ))
    e("s_lshr_b32 %s, %s, 3" % (T[0], sJ))
    e("s_mov_b32 %s, %s" % (sHEAD, sJ))
    e("s_lshl_b32 %s, %s, 1" % (sTBN, T[0]))
    e("s_and_b32 %s, %s, 1" % (T[0], sW))
    e("s_add_u32 %s, %s, %s" % (sTBN, sTBN, T[0]))
    e("s_lshr_b32 %s, %s, 1" % (sKH, sHW))
    e("s_lshl_b32 %s, %s, 1" % (sNT, sNB))
    e("s_add_u32 %s, %s, %s" % (sNT, sNT, sKH))
    e("s_mov_b32 s62, 0xffff")
    e("s_mov_b32 s63, 0xffff")
    e("s_mov_b32 %s, 0" % sL)
    addr(sLB, None, ARENA, [(sXCD, ARENA_X)])
    e("s_add_u32 %s, %s, 0x%x" % (sFB, sLB, LFL))
    e("s_waitcnt lgkmcnt(0)")
    srd(sWS, 32, WS_SIZE)
    srd(sTMP, 12, 2048 * 1024)
    cm("hand-off tag: ws[0] only tells this launch's flags from an earlier launch's")
    e("s_load_dword %s, s[32:33], 0" % sNONCE)
    if OPT("hold", 0) and not PROFILE:
        e("s_memrealtime s[70:71]")
        e("s_waitcnt lgkmcnt(0)")
        e("s_mov_b32 s68, s70")
    if PROFILE:
        e("s_memrealtime s[70:71]")
        e("s_waitcnt lgkmcnt(0)")
        e("s_mov_b32 s68, s70")
        stamp("s18")


def make_tag():
    e("s_waitcnt lgkmcnt(0)")
    e("s_add_u32 %s, %s, 16" % (sNONCE, sNONCE))
    e("v_mov_b32 %s, %s" % (v(vFV), sNONCE))
    e("v_not_b32 %s, %s" % (v(vFV + 1), v(vFV)))


def qkv_setup(next_layer):
    e("v_and_b32 %s, 15, v0" % v(vPO))
    e("v_lshlrev_b32 %s, 3, %s" % (v(vPO), v(vPO)))
    slot(T[0], FX + (LFL_L if next_layer else 0), [(sTBW, 16)])
    addr(T[1], sLB, XF, [(sTBW, XSTR)])
    addr(T[2], sLB, ST, [(sTBW, 4096)])
    e("v_add_u32 %s, %d, %s" % (v(vCA), CONST, v(vH16)))
    tr_pair(vW0)
    e("v_xor_b32 %s, 64, %s" % (v(vW2), v(vW0)))
    tr_rows(vW1, 64)
    e("v_add_u32 %s, 0x10000, %s" % (v(vW1), v(vW1)))


def p0():
    cm("================ P0 (waves 0-3): x tile -> residual registers, fragments and row statistics")
    p0end, noid, nox, npt = newlab("p0end"), newlab("noid"), newlab("nox"), newlab("npt")
    e("s_cmp_ge_u32 %s, 4" % sW)
    e("s_cbranch_scc1 %s" % nox)
    e("v_and_b32 %s, 31, v0" % v(vPO))
    e("v_lshlrev_b32 %s, 10, %s" % (v(vPO), v(vPO)))
    e("v_add_u32 %s, %s, %s" % (v(vPO), v(vPO), v(vH16)))
    addr(T[0], None, 0, [(sXCD, 262144), (sTBN, 32768), (sNT, 64)])
    for g in range(2):
        e("buffer_load_dwordx4 %s, %s, %s, %s offen offset:%d" % (v(vRES + 4 * g, 4), v(vPO), sTMP, T[0], 32 * g))
    lab(nox)
    e("v_lshlrev_b32 v17, 7, v0")
    for bit, wave in ((1, OPT("w1", 6)), (2, OPT("w2", 5))):
        if not OPT("qft", 3) & bit:
            continue
        nq = newlab("nq")
        e("s_cmp_lg_u32 %s, %d" % (sW, wave))
        e("s_cbranch_scc1 %s" % nq)
        srd(sTMP, 14, 512 * 3072)
        if bit == 1:
            cm("first touch of Wqkv, one line per lane, spread over all workgroups")
            e("s_mul_i32 %s, s2, %d" % (T[0], 48 * 128))
            e("v_mov_b32 v19, v17")
        else:
            cm("one 128-byte column class of Wqkv arrives slowest: the die group requests its lines up front")
            addr(T[0], None, 384, [(sJ, 48 * 1024)])
            e("v_lshlrev_b32 v19, 10, v0")
        e("s_mov_b32 exec_hi, 0xffff")
        e("buffer_load_dword v16, v19, %s, %s offen" % (sTMP, T[0]))
        e("s_mov_b64 exec, -1")
        lab(nq)
    e("s_cmp_lg_u32 %s, 4" % sW)
    e("s_cbranch_scc1 %s" % npt)
    cm("statistics and flag lines receive partial writes: bring them into L2 first")
    addr(T[0], sLB, ST, [(sJ, 11 * 128)])
    e("s_mov_b64 exec, 0x7ff")
    e("buffer_load_dword v18, v17, %s, %s offen sc1" % (sWS, T[0]))
    e("s_mov_b64 exec, -1")
    lab(npt)
    e("s_cmp_ge_u32 %s, 4" % sW)
    e("s_cbranch_scc1 %s" % p0end)
    stamp("s0")
    make_tag()
    e("s_getreg_b32 %s, hwreg(HW_REG_XCC_ID, 0, 4)" % T[7])
    e("s_mov_b32 %s, 1" % sMODE)
    e("v_xor_b32 %s, %s, %s" % (v(vFV + 1), T[7], v(vFV + 1)))
    publish_addr(XF, ST, 0, FX)
    nid = newlab("nid")
    e("s_cmp_lg_u32 %s, 0" % sW)
    e("s_cbranch_scc1 %s" % nid)
    e("s_lshl_b32 %s, s2, 7" % T[8])
    e("s_add_u32 %s, %s, 0x%x" % (T[8], T[8], FLG + FI * 128))
    flag(T[8], None)
    e("s_waitcnt vmcnt(1)")
    e("s_branch %s" % noid)
    lab(nid)
    e("s_waitcnt vmcnt(0)")
    lab(noid)
    stamp("s1")
    for g in range(2):
        e("v_permlane32_swap_b32 %s, %s" % (v(vRES + 4 * g), v(vRES + 4 * g + 2)))
        e("v_permlane32_swap_b32 %s, %s" % (v(vRES + 4 * g + 1), v(vRES + 4 * g + 3)))
    e("s_nop 0")
    unpack(66, vRES, 8)
    publish_x(66, 84, lambda: qkv_setup(False))
    e("s_nop 0")
    e("v_not_b32 %s, %s" % (v(vFV + 1), v(vFV)))
    lab(p0end)
    stamp("s19")


def tr_pair(dst):
    tr_rows(dst, 128)
    e("v_bfe_u32 %s, v0, 3, 1" % v(vPD))
    e("v_lshl_or_b32 %s, %s, 6, %s" % (v(dst), v(vPD), v(dst)))


def tr_rows(dst, rowbytes):
    e("v_bfe_u32 %s, v0, 2, 2" % v(dst))
    e("v_lshrrev_b32 %s, 2, %s" % (v(vPD), v(vH16)))
    e("v_add_u32 %s, %s, %s" % (v(dst), v(dst), v(vPD)))
    e("v_mul_u32_u24 %s, %d, %s" % (v(dst), rowbytes, v(dst)))
    e("v_add_u32 %s, %s, %s" % (v(dst), v(dst), v(vTR)))


def voff_128(dst, row=1024):
    e("v_lshrrev_b32 %s, 3, v0" % v(dst))
    e("v_mul_u32_u24 %s, %d, %s" % (v(dst), row, v(dst)))
    e("v_and_b32 %s, 7, v0" % v(vPD))
    e("v_lshrrev_b32 %s, 2, v0" % v(vPD + 1))
    e("v_and_b32 %s, 4, %s" % (v(vPD + 1), v(vPD + 1)))
    e("v_xor_b32 %s, %s, %s" % (v(vPD), v(vPD), v(vPD + 1)))
    e("v_lshl_or_b32 %s, %s, 4, %s" % (v(dst), v(vPD), v(dst)))


def voff_192(dst):
    for i in range(3):
        e("v_add_u32 %s, %d, v0" % (v(vPD), 64 * i))
        e("v_mul_u32_u24 %s, 5462, %s" % (v(vPD + 1), v(vPD)))
        e("v_lshrrev_b32 %s, 16, %s" % (v(vPD + 1), v(vPD + 1)))
        e("v_mul_u32_u24 %s, %d, %s" % (v(dst + i), 2752 - 192, v(vPD + 1)))
        e("v_lshl_add_u32 %s, %s, 4, %s" % (v(dst + i), v(vPD), v(dst + i)))


def dma1(vo, sg, cls):
    e("buffer_load_dwordx4 %s, %s, %s offen%s lds" % (v(vo), sTMP, sg, " nt" if OPT("wnt", 0) & cls else ""))


def dma_loop(n, body):
    lp = newlab("dl")
    e("s_mov_b32 %s, %d" % (T[2], n))
    lab(lp)
    body()
    e("s_sub_u32 %s, %s, 1" % (T[2], T[2]))
    e("s_cmp_lg_u32 %s, 0" % T[2])
    e("s_cbranch_scc1 %s" % lp)


def dma_w2(piece0, lds0, n, pace=PACE):
    addr(T[0], None, piece0 * 8192, [(sHW, n * 8192), (sNB, 128)])
    addr(T[1], None, lds0, [(sHW, n * 1024)])

    def body():
        e("s_mov_b32 m0, %s" % T[1])
        e("s_add_u32 %s, %s, 1024" % (T[1], T[1]))
        dma1(40, T[0], 4)
        e("s_add_u32 %s, %s, 8192" % (T[0], T[0]))
        if pace:
            e("s_waitcnt vmcnt(%d)" % max(pace, 0))
    dma_loop(n, body)


def dma_w1(n):
    def body():
        for i in range(3):
            e("s_add_u32 m0, %s, %d" % (T[1], 1024 * i))
            e("s_nop 0")
            dma1(44 + i, T[0], 2)
        e("s_add_u32 %s, %s, %d" % (T[0], T[0], 16 * 2752))
        e("s_add_u32 %s, %s, 3072" % (T[1], T[1]))
    dma_loop(n, body)


def wq_begin():
    srd(sTMP, 14, 512 * 3072)
    voff_128(44, 3072)
    e("v_lshrrev_b32 v40, 2, v0")
    e("v_mul_u32_u24 v40, 3072, v40")
    e("v_and_b32 v41, 3, v0")
    e("v_lshl_or_b32 v40, v41, 4, v40")
    cm("odd groups take a K column pair, even groups a V column pair; every group takes one Q tile")
    e("s_and_b32 %s, %s, 1" % (T[0], sC))
    e("s_lshr_b32 %s, %s, 1" % (T[1], sC))
    e("s_mul_i32 %s, %s, -1024" % (T[0], T[0]))
    addr(T[3], T[0], 2048, [(sHW, 2 * 49152), (T[1], 128)])
    addr(T[5], None, 0, [(sHW, 2 * 49152), (sC, 64)])
    e("s_lshl_b32 %s, %s, 12" % (T[4], sHW))
    addr(T[6], None, 65536, [(sHW, 2048)])


def wq_chunk():
    for k in range(4):
        e("s_add_u32 m0, %s, %d" % (T[4], 1024 * k))
        e("s_nop 0")
        e("buffer_load_dwordx4 v44, %s, %s offen lds" % (sTMP, T[3]))
        e("s_add_u32 %s, %s, %d" % (T[3], T[3], 24576 if k < 3 else 24576 + 6 * 49152))
        if k % 2:
            e("s_add_u32 m0, %s, %d" % (T[6], 1024 * (k // 2)))
            e("s_nop 0")
            e("buffer_load_dwordx4 v40, %s, %s offen lds" % (sTMP, T[5]))
            e("s_add_u32 %s, %s, %d" % (T[5], T[5], 49152 if k == 1 else 7 * 49152))
    e("s_add_u32 %s, %s, 16384" % (T[4], T[4]))
    e("s_add_u32 %s, %s, 8192" % (T[6], T[6]))


CSA = 64


def colsum_begin():
    for r in range(48):
        e("v_mov_b32 v%d, 0" % (CSA + r))
    for r in range(4):
        e("v_mov_b32 v%d, 0x3f803f80" % (52 + r))


def colsum2(regs, steps, seconds):
    for k in range(2):
        for i in range(3):
            for h in range(2):
                e("ds_read_b64_tr_b16 %s, v%d offset:%d" % (v(16 + 12 * k + 4 * i + 2 * h, 2), regs[i], k * steps[i] + h * seconds[i]))
    for k in range(6):
        e("s_waitcnt lgkmcnt(%d)" % (10 - 2 * k))
        mfma(CSA + 16 * (k % 3), 52, 16 + 4 * k, CSA + 16 * (k % 3))


def colsum_w1():
    e("v_add_u32 v42, %s, v43" % T[0])
    e("v_add_u32 v48, 64, v42")
    e("v_add_u32 v50, 128, v42")
    colsum2((42, 48, 50), (3072,) * 3, (1536,) * 3)


def colsum_partial():
    e("v_and_b32 v41, 31, v0")
    e("v_lshlrev_b32 v41, 2, v41")
    addr(T[0], None, PART_L, [(sHW, 384)])
    e("v_add_u32 v42, %s, v41" % T[0])
    e("s_nop 7")
    for i in range(3):
        e("ds_write_b32 v42, v%d offset:%d" % (CSA + 16 * i, 128 * i))


def colsum_combine(dst_l):
    e("s_min_u32 %s, %s, 2" % (T[0], sHW))
    e("s_lshl_b32 %s, %s, 7" % (T[0], T[0]))
    e("v_add_u32 v41, %s, v41" % T[0])
    e("v_add_u32 v42, %d, v41" % PART_L)
    for k in range(4):
        e("ds_read_b32 v%d, v42 offset:%d" % (16 + k, 384 * k))
    e("v_add_u32 v41, %d, v41" % dst_l)
    e("s_waitcnt lgkmcnt(0)")
    e("v_add_f32 v16, v16, v17")
    e("v_add_f32 v18, v18, v19")
    e("v_add_f32 v16, v16, v18")
    e("ds_write_b32 v41, v16")


def stats_code(second_ln):
    c = []
    for k in range(1, 16):
        c.append("v_add_f32 %s, %s, %s" % (v(vSTS), v(vSTS), v(vSTS + k)))
    c += ["v_mov_b32 %s, %s" % (v(vSTS + 1), v(vSTS)), "s_nop 1",
          "v_permlane32_swap_b32 %s, %s" % (v(vSTS), v(vSTS + 1)), "s_nop 1",
          "v_mul_f32 %s, %s, %s" % (v(vMU), f32(1.0 / 512), v(vSTS)),
          "v_mul_f32 %s, %s, %s" % (v(vSTS + 1), f32(1.0 / 512), v(vSTS + 1)),
          "v_fma_f32 %s, -%s, %s, %s" % (v(vSTS + 1), v(vMU), v(vMU), v(vSTS + 1)),
          "v_max_f32 %s, 0, %s" % (v(vSTS + 1), v(vSTS + 1)),
          "v_add_f32 %s, %s, %s" % (v(vSTS + 2), f32(1e-5), v(vSTS + 1)),
          "v_rsq_f32 %s, %s" % (v(vR), v(vSTS + 2)), "s_nop 0"]
    if second_ln:
        c += ["v_mul_f32 %s, %s, %s" % (v(vSTS + 2), v(vR), v(vR)),
              "v_mul_f32 %s, %s, %s" % (v(vSTS + 2), v(vSTS + 2), v(vSTS + 1)),
              "v_add_f32 %s, %s, %s" % (v(vSTS + 2), f32(1e-5), v(vSTS + 2)),
              "v_rsq_f32 %s, %s" % (v(vSTS + 2), v(vSTS + 2)), "s_nop 0",
              "v_mul_f32 %s, %s, %s" % (v(vR), v(vR), v(vSTS + 2))]
    return c


def center(acc, cs, p):
    e("v_pk_fma_f32 %s, %s, %s, %s op_sel_hi:[0,1,1] neg_lo:[1,0,0] neg_hi:[1,0,0]" %
      (v(acc + 2 * p, 2), v(vMU, 2), v(cs + 2 * p, 2), v(acc + 2 * p, 2)))


def stash_addr():
    e("s_mul_i32 %s, %s, 24576" % (T[0], sHW))
    e("v_add_u32 v42, %s, %s" % (T[0], v(vL16)))


class Lds:
    def __init__(self):
        self.ops, self.done = [], 0

    def op(self, name, text):
        e(text)
        self.ops.append(name)

    def need(self, name):
        last = max(i for i, n in enumerate(self.ops) if n == name)
        if last < self.done:
            return None
        self.done = last + 1
        return min(15, len(self.ops) - 1 - last)


def qkv_body(isk, done):
    H = 16

    def item(n):
        if n < 32:
            load_frags(T[1], n, 1, lambda j: vA + 4 * j, n % 4 == 0)
        else:
            e("buffer_load_dwordx4 %s, %s, %s, %s offen offset:%d sc1" % (v(vSTS + 4 * (n - 32), 4), v(vL16), sWS, T[2], 1024 * (n - 32)))
    sched = [[ks + DEPTH] if ks + DEPTH < 32 else [] for ks in range(32)]
    for k in range(4):
        sched[3 + 2 * k].append(32 + k)
    order = list(range(DEPTH))
    lds = Lds()

    def rd(ks, i, d):
        base, off, sec = ((vW0, vW2)[i], ks * 2048, 1024) if i < 2 else (vW1, ks * 1024, 512)
        lds.op(("w", i, ks), "ds_read_b64_tr_b16 %s, %s offset:%d" % (v(d, 2), v(base), off))
        lds.op(("w", i, ks), "ds_read_b64_tr_b16 %s, %s offset:%d" % (v(d + 2, 2), v(base), off + sec))

    def wait(name):
        n = lds.need(name)
        if n is not None:
            e("s_waitcnt lgkmcnt(%d)" % n)
    wb1 = lambda ks, i: vWB + (ks % 3) * 12 + 4 * i
    wb2 = lambda ks: vWB + (12 * (ks - H) + 8 if ks < H + 3 else [0, 4, 12, 16, 24, 28, 8, 20, 32][(ks - H - 3) % 9])
    tiles = lambda ks: (2, 0, 1) if ks < H else (0, 1)
    for ks in range(2):
        for i in tiles(ks):
            rd(ks, i, wb1(ks, i))
    fine("q")
    SA, SB, SC = vPO, vPD, vPD + 1
    PK, C0, C1, VC, QC = vA, vA + 16, vA + 32, vA + 48, vSTS

    def addresses():
        e("s_lshr_b32 %s, %s, 1" % (T[0], sC))
        addr(T[4], None, KVF, [(sL, KVF_L), (T[0], 4 * 131072), (sXCD, 16384), (sTBW, 2048)])
        addr(T[2], sLB, KVL, [(T[0], 8192), (sTBW, HSTR)])
        slot(T[6], FQ, [(sC, 8), (sTBW, 1)])
        addr(T[7], None, GFL, [(sL, GFL_L), (sC, 65536), (sXCD, 8192), (sTBW, 1024)])
        addr(T[3], sLB, QF, [(sC, 2048), (sTBW, HSTR)])
        if not isk:
            e("v_and_b32 %s, 31, v0" % v(SA))
            e("v_lshlrev_b32 %s, 2, %s" % (v(SA), v(SA)))
            addr(T[0], None, STAT_L, [(sHW, 256)])
            e("v_add_u32 %s, %s, %s" % (v(SB), T[0], v(SA)))
            e("v_add_u32 %s, %s, %s" % (v(SC), T[0], v(vH16)))
            e("v_add_u32 %s, %d, %s" % (v(SA), CSQ_L, v(SA)))
    sh = [lambda x=x: e(x) for x in capture(addresses) + stats_code(False)]
    sh.append(lambda: e("v_mul_f32 %s, %s, %s" % (v(vRQ), f32(0.25 * 1.4426950408889634), v(vR))))
    if isk:
        for k in range(8):
            sh.append(lambda k=k: lds.op("c", "ds_read_b128 %s, %s offset:%d" % (v(C0 + 4 * k, 4), v(vCA), 32 * k)))
    else:
        sh.append(lambda: lds.op("sw", "ds_write_b32 %s, %s" % (v(SB), v(vMU))))
        sh.append(lambda: lds.op("sw", "ds_write_b32 %s, %s offset:128" % (v(SB), v(vR))))
        for k in range(8):
            sh.append(lambda k=k: lds.op("c", "ds_read_b128 %s, %s offset:%d" % (v(C0 + 4 * k, 4), v(SC), 32 * k)))
        for t in range(2):
            sh.append(lambda t=t: lds.op("c", "ds_read_b32 %s, %s offset:%d" % (v(VC + t), v(SA), 128 * t)))
    nsal = len(capture(addresses))
    pos = 0
    for ks in range(32):
        if ks in (16, 22):
            e("s_barrier")
        newest = max(order.index(n) for n in ([ks, 35] if ks >= 18 else [ks]))
        e("s_waitcnt vmcnt(%d) lgkmcnt(%d)" % (len(order) - 1 - newest, lds.need(("w", 1, ks))))
        if ks in FINEKS:
            fine("q")
        for m, i in enumerate(tiles(ks)):
            c = "0" if ks == 0 else vACC + 16 * i
            if i < 2 and not isk:
                mfma(vACC + 16 * i, vA + 4 * ks, wb1(ks, i), c)
            else:
                mfma(vACC + 16 * i, wb1(ks, i), vA + 4 * ks, c)
            if ks + 2 < 32 and i in tiles(ks + 2):
                rd(ks + 2, i, wb1(ks + 2, i))
            elif ks >= 30 and (i == 0 or ks == 30):
                k2 = H + (ks - 30) * 2 + i
                rd(k2, 2, wb2(k2))
            if m < len(sched[ks]):
                item(sched[ks][m])
                order.append(sched[ks][m])
            if ks >= 10:
                for _ in range(2):
                    if pos < len(sh) and (pos < nsal or ks >= 18):
                        sh[pos]()
                        pos += 1
    assert pos == len(sh), (pos, len(sh))
    cm("remaining Q k-steps with the pair's epilogue underneath")
    fill = [lambda: wait("c")]
    for i in range(4):
        fill.append(lambda i=i: lds.op("qc", "ds_read_b128 %s, %s offset:%d" % (v(QC + 4 * i, 4), v(vCA), 256 + 32 * i)))
    fill.append(lambda: e("s_add_u32 %s, %s, 0x%x" % (T[5], T[4], 0x20000 if isk else 0x40000)))
    fill.append(lambda: e("s_add_u32 %s, %s, 4096" % (T[0], T[2])))
    if isk:
        fill.append(lambda: e("s_add_u32 %s, %s, 0x40000" % (T[8], T[4])))
        fill.append(lambda: e("s_add_u32 %s, %s, 0x60000" % (T[1], T[4])))
    else:
        fill.append(lambda: e("v_and_b32 %s, 0x1ffff, %s" % (v(SC), v(vVOF))))
        fill.append(lambda: e("v_lshrrev_b32 %s, 17, %s" % (v(SB), v(vVOF))))
        fill.append(lambda: e("v_lshl_or_b32 %s, %s, 11, %s" % (v(SC), v(SB), v(SC))))
    local = []
    for t in range(2):
        a = vACC + 16 * t
        for r in range(16):
            if isk:
                fill.append(lambda a=a, t=t, r=r: e("v_fma_f32 %s, -%s, %s, %s" % (v(a + r), v(vMU), v(C0 + 16 * t + r), v(a + r))))
            else:
                fill.append(lambda a=a, t=t, r=r: e("v_fma_f32 %s, -%s, %s, %s" % (v(a + r), v(C0 + r), v(VC + t), v(a + r))))
        for r in range(16):
            fill.append(lambda a=a, r=r: e("v_mul_f32 %s, %s, %s" % (v(a + r), v(vR if isk else C1 + r), v(a + r))))
        for p in range(8):
            fill.append(lambda a=a, t=t, p=p: e("v_cvt_pk_bf16_f32 %s, %s, %s" % (v(PK + 8 * t + p), v(a + 2 * p), v(a + 2 * p + 1))))
        for hh in range(2):
            d = v(PK + 8 * t + 4 * hh, 4)
            if isk:
                g = "%s, %s, %s, %s offen" % (d, v(vK16), sWS, (T[4], T[5], T[8], T[1])[2 * t + hh])
                local.append("buffer_store_dwordx4 %s, %s, %s, %s offen offset:%d" % (d, v(vK16), sWS, (T[2], T[0])[t], 2048 * hh))
            else:
                g = "%s, %s, %s, %s offen offset:%d" % (d, v(vVOF), sWS, (T[4], T[5])[t], 1024 + 256 * hh)
                local.append("buffer_store_dwordx4 %s, %s, %s, %s offen offset:%d" % (d, v(SC), sWS, (T[2], T[0])[t], 1024 + 256 * hh))
            fill.append(lambda g=g: e("buffer_store_dwordx4 " + g + " sc1"))
    fill.append(lambda: lstores(local))
    per = -(-len(fill) // (32 - H))
    aQ = vACC + 32
    for ks in range(H, 32):
        wait(("w", 2, ks + 1 if ks % 2 == 0 and H + 2 < ks < 31 else ks))
        mfma(aQ, wb2(ks), vA + 4 * ks, aQ)
        if ks == H:
            fine("q")
        for n in ([H + 3, H + 4] if ks == H else [H + 5, H + 6] if ks == H + 1 else [ks + 5] if ks + 5 < 32 else []):
            rd(n, 2, wb2(n))
        for f in fill[(ks - H) * per:(ks + 1 - H) * per]:
            f()
    e("s_barrier")
    stamp()
    wait("qc")
    e("s_nop %d" % max(0, 10 - len(fill[(31 - H) * per:])))
    for p in range(8):
        center(aQ, QC, p)
    for p in range(8):
        e("v_pk_mul_f32 %s, %s, %s op_sel_hi:[1,0]" % (v(aQ + 2 * p, 2), v(aQ + 2 * p, 2), v(vRQ, 2)))
    for p in range(8):
        e("v_cvt_pk_bf16_f32 %s, %s, %s" % (v(C1 + p), v(aQ + 2 * p), v(aQ + 2 * p + 1)))
    lstores(["buffer_store_dwordx4 %s, %s, %s, %s offen offset:%d" % (v(C1 + 4 * hh, 4), v(vL16), sWS, T[3], 1024 * hh) for hh in range(2)])
    fine("q")
    for k in range(4):
        e("v_mov_b32 %s, %s" % (v(vSTS + k), v(vFV + k % 2)))
    flag(T[6], 0, local=True)
    e("buffer_store_dwordx4 %s, %s, %s, %s offen sc1" % (v(vSTS, 4), v(vL16), sWS, T[7]))
    e("s_branch %s" % done)


def qkv():
    cm("================ QKV projection")
    hl, done, kb = newlab("qkv_h"), newlab("qkv_done"), newlab("qkv_k")
    e("s_cmp_ge_u32 %s, 4" % sW)
    e("s_cbranch_scc1 %s" % hl)
    l1, l2 = newlab("fx"), newlab("fx")
    e("s_cmp_lg_u32 %s, 0" % sL)
    e("s_cbranch_scc1 %s" % l1)
    mode_poll(True)
    e("v_mov_b32 v60, %s" % sMODE)
    e("v_mov_b32 v61, %d" % MODE_L)
    e("ds_write_b32 v61, v60")
    e("s_waitcnt lgkmcnt(0)")
    e("s_branch %s" % l2)
    lab(l1)
    poll(T[0])
    lab(l2)
    stamp()
    load_frags(T[1], 0, DEPTH, lambda j: vA + 4 * j)
    fine("q")
    e("s_barrier")
    e("s_bitcmp1_b32 %s, 0" % sC)
    e("s_cbranch_scc1 %s" % kb)
    n0, f0 = nstamp[0], nfine[0]
    qkv_body(False, done)
    lab(kb)
    nstamp[0], nfine[0] = n0, f0
    qkv_body(True, done)
    lab(hl)
    h1, h2, lp = newlab("qh1"), newlab("qh2"), newlab("qhl")
    e("s_cmp_lg_u32 %s, 0" % sL)
    e("s_cbranch_scc1 %s" % h1)
    wq_begin()
    if FINE == "h":
        make_tag()
        fine("h")
    dma_loop(2, wq_chunk)
    fine("h")
    if FINE != "h":
        make_tag()
    colsum_begin()
    tr_pair(42)
    e("s_lshl_b32 %s, %s, 12" % (T[0], sHW))
    e("v_add_u32 v42, %s, v42" % T[0])
    e("v_xor_b32 v48, 64, v42")
    tr_rows(50, 64)
    addr(T[0], None, 65536, [(sHW, 2048)])
    e("v_add_u32 v50, %s, v50" % T[0])
    e("s_mov_b32 %s, 0" % sIT)
    lab(lp)
    b1, b2 = newlab("qw"), newlab("qw")
    e("s_cmp_ge_u32 %s, 2" % sIT)
    e("s_cbranch_scc1 %s" % b1)
    wq_chunk()
    e("s_waitcnt vmcnt(12)")
    e("s_branch %s" % b2)
    lab(b1)
    e("s_waitcnt vmcnt(6)")
    e("s_cmp_eq_u32 %s, 2" % sIT)
    e("s_cbranch_scc1 %s" % b2)
    e("s_waitcnt vmcnt(0)")
    lab(b2)
    fine("h")
    colsum2((42, 48, 50), (2048, 2048, 1024), (1024, 1024, 512))
    e("v_add_u32 v42, 16384, v42")
    e("v_add_u32 v48, 16384, v48")
    e("v_add_u32 v50, 8192, v50")
    e("s_add_u32 %s, %s, 1" % (sIT, sIT))
    e("s_cmp_lt_u32 %s, 4" % sIT)
    e("s_cbranch_scc1 %s" % lp)
    colsum_partial()
    fine("h")
    e("s_waitcnt lgkmcnt(0)")
    e("s_barrier")
    fine("h")
    colsum_combine(CSQ_L)
    e("v_mov_b32 v61, %d" % MODE_L)
    e("ds_read_b32 v60, v61")
    cm("park the weight tile in registers for the second layer pair")
    stash_addr()
    for k in range(24):
        e("ds_read_b128 %s, v42 offset:%d" % (v(vSTASH + 4 * k, 4), 1024 * k))
    e("s_waitcnt lgkmcnt(15)")
    e("v_readfirstlane_b32 %s, v60" % sMODE)
    e("s_branch %s" % h2)
    lab(h1)
    e("s_waitcnt lgkmcnt(0)")
    e("s_barrier")
    lab(h2)
    cm("lanes 0-15: Q lines; lanes 16-47: the K or V kilobyte of four head blocks")
    e("v_subrev_u32 v20, 16, v0")
    e("v_lshrrev_b32 v21, 3, v20")
    e("v_lshlrev_b32 v21, 10, v21")
    e("v_lshl_add_u32 v20, v20, 7, v21")
    e("s_lshr_b32 %s, %s, 1" % (T[1], sC))
    e("s_and_b32 %s, %s, 1" % (T[2], sC))
    addr(T[3], None, 32768 + 1024, [(T[1], 8192), (T[2], -1024), (sC, -2048)])
    e("v_add_u32 v20, %s, v20" % T[3])
    e("v_lshlrev_b32 v19, 7, v0")
    e("v_cmp_lt_u32 vcc, 15, v0")
    addr(T[0], sLB, BLK, [(sTBW, HSTR), (sC, 2048)])
    e("v_cndmask_b32 v19, v19, v20, vcc")
    e("s_waitcnt lgkmcnt(0)")
    e("s_barrier")
    e("s_barrier")
    cm("all activation loads are out: bring in the lines the Q/K/V stores will write, so they need no fill")
    e("s_mov_b32 exec_hi, 0xffff")
    e("buffer_load_dword v21, v19, %s, %s offen sc1" % (sWS, T[0]))
    e("s_mov_b64 exec, -1")
    e("s_cmp_lg_u32 %s, 0" % sL)
    e("s_cbranch_scc1 %s" % done)
    cm("this workgroup's slices of b1 and b2; they are staged in LDS after attention")
    srd(sTMP, 22, 2752)
    e("v_and_b32 v19, 31, v0")
    e("v_lshlrev_b32 v19, 1, v19")
    addr(T[0], None, 0, [(sHW, 64), (sC, 192)])
    e("buffer_load_ushort v224, v19, %s, %s offen" % (sTMP, T[0]))
    srd(sTMP, 26, 1024)
    e("s_and_b32 %s, %s, 1" % (T[4], sHW))
    addr(T[0], None, 0, [(T[4], 64), (sNB, 128)])
    e("buffer_load_ushort v225, v19, %s, %s offen" % (sTMP, T[0]))
    lab(done)
    stamp()


def attention():
    cm("================ attention: S^T = K Q^T, P = exp2(S^T), O^T += V^T P via sparse MFMA")
    S, O, Q, KB, VB, IDX, AD, VO, CN = (16, 32), 48, 64, (68, 72), (76, 84), 92, 93, 94, 100
    PF = 100
    KVG, LP, CH, GF, ISS = T[2], T[3], T[4], T[5], T[6]
    cm("rows 16 and 20 of the V operand are ones (row sums for both lane halves); the other spare rows are zero")
    e("v_and_b32 %s, 27, v0" % v(IDX))
    e("v_cmp_eq_u32 vcc, 16, %s" % v(IDX))
    e("v_mov_b32 %s, 0x3f803f80" % v(AD))
    e("s_nop 0")
    for i in range(16):
        e("v_mov_b32 %s, 0" % v(O + i))
        e("v_cndmask_b32 %s, 0, %s, vcc" % (v(VB[0] + i), v(AD)))
    for i in range(8):
        e("v_mov_b32 %s, 0" % v(S[1] + 8 + i))
    e("v_mov_b32 %s, 0xdddddddd" % v(IDX))
    cm("flags a loading wave needs: 2 producer groups x 8 die groups x its 2 token blocks")
    e("v_bfe_u32 %s, v0, 1, 4" % v(PF + 6))
    e("v_lshlrev_b32 %s, 13, %s" % (v(PF + 6), v(PF + 6)))
    e("v_and_b32 %s, 1, v0" % v(PF + 5))
    e("v_lshl_or_b32 %s, %s, 10, %s" % (v(PF + 6), v(PF + 5), v(PF + 6)))
    e("v_mov_b32 %s, %s" % (v(AD), v(vL16)))
    voff_128(VO)
    voff_192(VO + 1)
    e("s_mov_b32 %s, 2" % ISS)
    a1 = newlab("a1")
    e("v_lshlrev_b32 %s, 7, v0" % v(PF))
    cm("first layer pair, waves 1-3: first touch of Wo / W1 / W2 (one line per lane, spread over all workgroups)")
    e("s_mov_b32 s66, %d" % (1376 * 1024))
    e("s_mov_b32 %s, %d" % (T[1], 43 * 128))
    e("s_cmp_eq_u32 %s, 2" % sW)
    e("s_cselect_b64 s[64:65], s[20:21], s[24:25]")
    e("s_cmp_eq_u32 %s, 1" % sW)
    e("s_cselect_b64 s[64:65], s[16:17], s[64:65]")
    e("s_cselect_b32 s66, %d, s66" % (512 * 1024))
    e("s_cselect_b32 %s, %d, %s" % (T[1], 16 * 128, T[1]))
    e("s_and_b32 s65, s65, 0xffff")
    e("s_mov_b32 s67, 0x20000")
    e("s_mul_i32 %s, %s, s2" % (T[1], T[1]))
    e("s_cmp_eq_u32 %s, 0" % sL)
    e("s_cselect_b32 %s, %d, 99" % (T[8], OPT("ftit", 2)))
    e("s_cmp_eq_u32 %s, 0" % sW)
    e("s_cselect_b32 %s, 99, %s" % (T[8], T[8]))
    cm("lines of the W1 rows that are loaded after attention (128-351, 480-511): half per workgroup of a pair")
    srd(sTMP, 20, 512 * 2752)
    e("s_lshr_b32 %s, %s, 4" % (T[0], sJ))
    addr(T[7], None, 128, [(T[0], 128), (sHW, 32)])
    e("s_cmp_eq_u32 %s, 352" % T[7])
    e("s_cselect_b32 %s, 480, %s" % (T[7], T[7]))
    e("s_mul_i32 %s, %s, 2752" % (T[7], T[7]))
    e("s_mul_i32 %s, %s, 192" % (T[0], sC))
    e("s_add_u32 %s, %s, %s" % (T[7], T[7], T[0]))
    e("v_lshrrev_b32 %s, 1, v0" % v(PF + 1))
    e("v_mul_u32_u24 %s, 2752, %s" % (v(PF + 1), v(PF + 1)))
    e("v_and_b32 %s, 1, v0" % v(PF + 2))
    e("v_lshl_add_u32 %s, %s, 7, %s" % (v(PF + 1), v(PF + 2), v(PF + 1)))
    e("s_cmp_lt_u32 %s, 4" % sW)
    e("s_cbranch_scc1 %s" % a1)
    cm("waves 4-7 fetch Q and this die's K/V, and later the other dies' K/V")
    e("v_and_b32 %s, 15, v0" % v(vPO))
    e("v_lshlrev_b32 %s, 3, %s" % (v(vPO), v(vPO)))
    e("s_lshr_b32 %s, %s, 2" % (T[1], sHEAD))
    e("s_lshl_b32 %s, %s, 1" % (T[1], T[1]))
    addr(GF, None, GFL, [(sL, GFL_L), (T[1], 65536), (sXCD, 128), (sHW, 2048)])
    slot(T[0], FQ, [(T[1], 8)])
    addr(T[1], sLB, QF, [(sHEAD, 1024), (sHW, 2 * HSTR)])
    addr(KVG, None, KVF, [(sL, KVF_L), (sHEAD, 131072), (sHW, 4096)])
    addr(T[8], sLB, KVL, [(sHEAD, 2048), (sHW, 2 * HSTR)])
    addr(T[7], None, QL, [(sHW, 2048)])
    e("s_lshl_b32 %s, %s, 12" % (LP, sHW))
    e("s_add_u32 %s, %s, 1" % (CH, sXCD))
    e("s_mov_b32 %s, 0" % ISS)
    cm("last barrier of the projection: its weight tile in LDS is dead from here on")
    e("s_barrier")
    poll(T[0])
    for b in range(2):
        e("s_add_u32 m0, %s, %d" % (LP, 2048 * b))
        e("s_nop 0")
        for i in range(2):
            e("buffer_load_dwordx4 %s, %s, %s offen offset:%d sc1 lds" % (v(vL16), sWS, T[8], 1024 * i))
        e("s_add_u32 m0, %s, %d" % (T[7], 1024 * b))
        e("s_add_u32 %s, %s, %d" % (T[8], T[8], HSTR))
        e("buffer_load_dwordx4 %s, %s, %s offen sc1 lds" % (v(vL16), sWS, T[1]))
        e("s_add_u32 %s, %s, %d" % (T[1], T[1], HSTR))

    def second_chunk():
        blk, back = newlab("sc"), newlab("scb")
        e("s_cmp_eq_u32 %s, 1" % ISS)
        e("s_cbranch_scc1 %s" % blk)
        lab(back)
        NEAR.extend([blk + ":"] + ["    " + x for x in capture(lambda: kv_issue())] +
                    ["    s_mov_b32 %s, 2" % ISS, "    s_branch " + back])

    def gflag_load():
        e("buffer_load_dwordx2 %s, %s, %s, %s offen sc1" % (v(vPD, 2), v(PF + 6), sWS, GF))

    def kv_issue(n=4, nt=True):
        e("s_and_b32 %s, %s, 7" % (CH, CH))
        e("s_lshl_b32 %s, %s, 14" % (T[9], CH))
        e("s_add_u32 %s, %s, 16384" % (LP, LP))
        e("s_add_u32 %s, %s, %s" % (T[9], T[9], KVG))
        e("s_mov_b32 m0, %s" % LP)
        e("s_add_u32 %s, %s, 1" % (CH, CH))
        for i in range(n):
            e("buffer_load_dwordx4 %s, %s, %s offen offset:%d sc1%s lds" % (v(vL16), sWS, T[9], 1024 * i, " nt" if OPT("kvnt", 1) and nt else ""))

    def kv_issue_helpers():
        sk, cw = newlab("kvs"), newlab("kvc")
        e("s_cmp_lt_u32 %s, 4" % sW)
        e("s_cbranch_scc1 %s" % cw)
        e("s_cmp_eq_u32 %s, 0" % sIT)
        e("s_cbranch_scc1 %s" % sk)
        kv_issue()
        lab(sk)
        ft = newlab("ft")
        wp = newlab("wp")
        TAIL.extend([wp + ":", "    s_cmp_lg_u32 %s, %d" % (sIT, OPT("woit", 3)), "    s_cbranch_scc1 %s" % sk]
                    + ["    " + x for x in capture(lambda: (srd("s[64:67]", 16, 512 * 1024), addr(T[1], None, 0, [(sJ, 128 * 128), (sW, 32 * 128)])))]
                    + (["    " + x for x in capture(lambda: (
                        e("v_lshrrev_b32 %s, 3, v0" % v(PF + 3)), e("v_mul_u32_u24 %s, %d, %s" % (v(PF + 3), XSTR - 1024, v(PF + 3))),
                        e("v_add_u32 %s, %s, %s" % (v(PF + 3), v(PF + 3), v(PF))),
                        addr(T[0], sLB, OF, [(sW, 2 * XSTR), (sHEAD, 1024)]), e("s_mov_b64 exec, 0xffff"),
                        e("buffer_load_dword %s, %s, %s, %s offen sc1" % (v(PF + 2), v(PF + 3), sWS, T[0])), e("s_mov_b64 exec, -1")))])
                    + ["    s_mov_b32 exec_hi, 0", "    buffer_load_dword %s, %s, s[64:67], %s offen" % (v(PF + 2), v(PF), T[1]),
                       "    s_mov_b64 exec, -1", "    s_branch %s" % sk])
        TAIL.extend([ft + ":", "    s_cmp_lg_u32 %s, %s" % (sIT, T[8]), "    s_cbranch_scc1 %s" % wp,
                     "    buffer_load_dword %s, %s, s[64:67], %s offen" % (v(PF + 2), v(PF), T[1]), "    s_branch %s" % sk])
        TAIL.extend([cw + ":", "    s_cmp_lt_u32 %s, 4" % sIT, "    s_cbranch_scc1 %s" % ft, "    s_mov_b32 exec_hi, 0",
                     "    buffer_load_dword %s, %s, %s, %s offen" % (v(PF + 2), v(PF + 1), sTMP, T[7]),
                     "    s_mov_b64 exec, -1", "    s_add_u32 %s, %s, %d" % (T[7], T[7], 16 * 2752),
                     "    s_branch %s" % sk])
    fine("k")
    e("s_waitcnt vmcnt(0)")
    fine("k")
    gflag_load()
    lab(a1)
    addr(T[0], None, QL, [(sW, 1024)])
    e("v_add_u32 v16, %s, %s" % (T[0], v(vL16)))
    e("s_barrier")
    stamp()

    def rdk(t):
        e("ds_read_b128 %s, %s offset:%d" % (v(KB[t & 1], 4), v(AD), t * 2048))

    def rdv(t):
        e("s_mov_b64 exec, %s" % sMV)
        e("ds_read_b128 %s, %s offset:%d" % (v(VB[t & 1], 4), v(AD), t * 2048 + 1024))
        e("ds_read_b128 %s, %s offset:%d" % (v(VB[t & 1] + 4, 4), v(AD), t * 2048 + 1280))
        e("s_mov_b64 exec, -1")

    def smf(vb, p):
        e("v_smfmac_f32_32x32x32_bf16 %s, %s, %s, %s" % (v(O, 16), v(vb, 4), v(p, 8), v(IDX)))

    def ex(cur, a, b):
        for i in range(a, b):
            e("v_exp_f32 %s, %s" % (v(S[cur] + i), v(S[cur] + i)))

    def tile(t, extra=None):
        cur, nxt = t & 1, (t + 1) & 1
        ex(cur, 0, 2)
        smf(VB[nxt] + 4, S[nxt] + 8)
        rdv(t + 1)
        ex(cur, 2, 6)
        e("s_waitcnt lgkmcnt(2)")
        mfma(S[nxt], KB[nxt], Q, "0")
        rdk(t + 2)
        if extra:
            extra()
        ex(cur, 6, 12)
        smf(VB[cur], S[cur])
        ex(cur, 12, 16)
    e("ds_read_b128 %s, v16" % v(Q, 4))
    rdk(0)
    rdv(0)
    rdk(1)
    e("s_waitcnt lgkmcnt(3)")
    mfma(S[0], KB[0], Q, "0")
    e("s_mov_b32 %s, 0" % sIT)
    e("s_mov_b32 %s, %d" % (sCNT, POLL_LIMIT))
    e("s_nop 8")
    cm("chunk 0 = keys of this die group; waves 4-7 first wait for the other groups' flags and request chunk 1")

    def check(blocking):
        blk, back, issue = newlab("chk"), newlab("chkb"), newlab("iss")
        e("s_cmp_eq_u32 %s, 0" % ISS)
        e("s_cbranch_scc1 %s" % blk)
        lab(back)

        def body():
            e("s_waitcnt vmcnt(0)")
            e("v_cmp_eq_u64 vcc, %s, %s" % (v(vPD, 2), v(vFV, 2)))
            e("s_nop 1")
            e("s_cmp_eq_u64 vcc, -1")
            e("s_cbranch_scc1 %s" % issue)
            gflag_load()
            if blocking:
                e("s_sub_u32 %s, %s, 1" % (sCNT, sCNT))
                e("s_cbranch_scc0 %s" % blk)
                e("s_endpgm")
            else:
                e("s_branch %s" % back)

        def go():
            kv_issue(4, False)
            e("s_mov_b32 %s, 1" % ISS)
            e("s_branch %s" % back)
        NEAR.extend([blk + ":"] + ["    " + x for x in capture(body)] + [issue + ":"] + ["    " + x for x in capture(go)])
    NEAR = []
    loop = newlab("att")
    L.append(".p2align 6")
    lab(loop)
    for t in range(8):
        if t % 2 == 0:
            e("s_setprio %d" % (3 - t // 2))
        if t == 0:
            check(True)
        if t == 6:
            e("s_waitcnt vmcnt(4)")
            e("s_barrier")
        tile(t, kv_issue_helpers if t == 1 else second_chunk if t == 4 else None)
    if PROFILE and FINE == "i":
        e(CLK + " s[70:71]")
        e("s_waitcnt lgkmcnt(0)")
        e("v_mov_b32 v112, s70")
        e("s_lshl_b32 s71, %s, 4" % sL)
        e("s_add_u32 s71, s71, %s" % sIT)
        e("s_sub_u32 s71, s71, %d" % (0 if "--l0" in sys.argv else 16))
        e("v_cmp_eq_u32 vcc, s71, v0")
        e("s_nop 1")
        e("v_cndmask_b32 v5, v5, v112, vcc")
    e("v_add_u32 %s, 16384, %s" % (v(AD), v(AD)))
    e("s_add_u32 %s, %s, 1" % (sIT, sIT))
    e("s_cmp_lt_u32 %s, 6" % sIT)
    e("s_cbranch_scc1 %s" % loop)
    TAIL[:0] = NEAR
    fine("a")
    cm("last two chunks: stream Wo and part of W1 into the dead K/V space, one piece per tile")
    srd(sTMP, 16, 512 * 1024)
    addr(T[0], None, 0, [(sW, 65536), (sNB, 128)])
    e("s_lshl_b32 %s, %s, 13" % (T[1], sW))

    srd("s[64:67]", 24, 1376 * 1024)
    addr(T[2], None, 0, [(sJ, 344 * 128), (sW, 43 * 128)])

    def w2_lines(trip):
        cm("one line per lane: pull this workgroup's share of W2 into the die's L2")
        e("s_mov_b64 exec, 0x3fffff")
        e("buffer_load_dword %s, %s, s[64:67], %s offen" % (v(PF + 2), v(PF), T[2]))
        e("s_mov_b64 exec, -1")
        e("s_add_u32 %s, %s, %d" % (T[2], T[2], 22 * 128))

    def wo_piece(t):
        e("s_add_u32 m0, %s, %d" % (T[1], 1024 * t))
        e("s_nop 0")
        dma1(VO, T[0], 1)
        e("s_add_u32 %s, %s, 8192" % (T[0], T[0]))

    def w1_piece(t):
        if t in (1, 3):
            w2_lines(1)
        for u in ([2 * t, 2 * t + 1] if t < 2 else [t + 2] if t < 4 else []):
            e("s_add_u32 m0, %s, %d" % (T[1], (u // 3) * 22 * 3072 + (u % 3) * 1024))
            e("s_nop 0")
            dma1(VO + 1 + u % 3, T[0], 8)
            if u == 2:
                e("s_add_u32 %s, %s, %d" % (T[0], T[0], 22 * 16 * 2752))
    for trip in range(2):
        for t in range(8):
            LP_ = {0: 3, 4: 2, 6: 1, 7: 0} if trip else {0: 3, 2: 2, 4: 1, 6: 0}
            if t in LP_:
                e("s_setprio %d" % LP_[t])
            if t == 6 and trip == 0:
                e("s_waitcnt vmcnt(6)")
                e("s_barrier")
            tile(t + 8 * trip, (lambda t=t: wo_piece(t)) if trip == 0 else (lambda t=t: w1_piece(t)))
        if trip == 0:
            addr(T[4], sLB, OF, [(sW, XSTR), (sHEAD, 1024)])
            slot(T[5], FA, [(sW, 32), (sHEAD, 1)])
            srd(sTMP, 20, 512 * 2752)
            addr(T[0], None, 0, [(sW, 16 * 2752), (sC, 192)])
            addr(T[1], None, 65536, [(sW, 3072)])
    e("s_nop 1")
    smf(VB[1] + 4, S[1] + 8)
    e("s_setprio 0")
    e("s_mov_b32 %s, %s" % (T[6], f32(2.0 ** (64 if FORCE_SLOW else -64))))
    e("s_mov_b32 %s, %s" % (T[7], f32(2.0 ** 64)))
    e("s_waitcnt lgkmcnt(0)")
    e("s_nop 7")
    stamp()
    cm("Softmax guard. The loops above used 0 as a stand-in for the row max. That is exact while the row sum")
    cm("stays in [2^-64, 2^64] and the accumulators are finite; otherwise redo this tile with the true max.")
    fin, slow = newlab("att_fin"), newlab("att_slow")
    e("v_cmp_le_f32 %s, %s, %s" % (sM0, T[6], v(O + 8)))
    e("v_cmp_ge_f32 %s, %s, %s" % (sM1, T[7], v(O + 8)))
    e("v_pk_mul_f32 v[18:19], %s, 0 op_sel_hi:[1,0]" % v(O, 2))
    for p in range(1, 4):
        e("v_pk_fma_f32 v[18:19], %s, 0, v[18:19] op_sel_hi:[1,0,1]" % v(O + 2 * p, 2))
    e("s_and_b64 %s, %s, %s" % (sM0, sM0, sM1))
    e("v_cmp_eq_f32 vcc, v18, v19")
    e("s_nop 0")
    e("s_and_b64 %s, %s, vcc" % (sM0, sM0))
    e("s_cmp_eq_u64 %s, -1" % sM0)
    e("s_cbranch_scc0 %s" % slow)
    lab(fin)
    e("v_rcp_f32 v16, %s" % v(O + 8))
    e("s_nop 0")
    for p in range(4):
        e("v_pk_mul_f32 %s, %s, v[16:17] op_sel_hi:[1,0]" % (v(O + 2 * p, 2), v(O + 2 * p, 2)))
    for p in range(4):
        e("v_cvt_pk_bf16_f32 %s, %s, %s" % (v(20 + p), v(O + 2 * p), v(O + 2 * p + 1)))
    lstores(["buffer_store_dwordx4 v[20:23], %s, %s, %s offen" % (v(vL16), sWS, T[4])])
    ns = newlab("ns")
    e("s_cmp_ge_u32 %s, 4" % sW)
    e("s_cbranch_scc1 %s" % ns)
    n512_setup(True)
    lab(ns)
    flag(T[5], 0, local=True)
    e("s_waitcnt vmcnt(1)")
    e("s_barrier")
    keep = L[:]
    del L[:]
    lab(slow)
    cm("true-max softmax for this query tile: pass 1 finds the row max, pass 2 accumulates exp2(s - max)")
    l1, l2 = newlab("slow1"), newlab("slow2")
    addr(T[2], None, KVF, [(sL, KVF_L), (sHEAD, 131072)])
    e("v_mov_b32 %s, 0xff800000" % v(CN))
    e("s_mov_b32 %s, 0" % sIT)
    lab(l1)
    e("buffer_load_dwordx4 %s, %s, %s, %s offen sc1" % (v(KB[0], 4), v(vL16), sWS, T[2]))
    e("s_waitcnt vmcnt(0)")
    mfma(S[0], KB[0], Q, "0")
    e("s_nop 15")
    for i in range(8):
        e("v_max3_f32 %s, %s, %s, %s" % (v(CN), v(S[0] + 2 * i), v(S[0] + 2 * i + 1), v(CN)))
    e("s_add_u32 %s, %s, 2048" % (T[2], T[2]))
    e("s_add_u32 %s, %s, 1" % (sIT, sIT))
    e("s_cmp_lt_u32 %s, 64" % sIT)
    e("s_cbranch_scc1 %s" % l1)
    e("v_mov_b32 %s, %s" % (v(CN + 1), v(CN)))
    e("s_nop 1")
    e("v_permlane32_swap_b32 %s, %s" % (v(CN), v(CN + 1)))
    e("s_nop 1")
    e("v_max_f32 %s, %s, %s" % (v(CN), v(CN), v(CN + 1)))
    e("v_sub_f32 %s, 0, %s" % (v(CN), v(CN)))
    for i in range(1, 16):
        e("v_mov_b32 %s, %s" % (v(CN + i), v(CN)))
    for i in range(16):
        e("v_mov_b32 %s, 0" % v(O + i))
    addr(T[2], None, KVF, [(sL, KVF_L), (sHEAD, 131072)])
    e("s_mov_b32 %s, 0" % sIT)
    lab(l2)
    e("buffer_load_dwordx4 %s, %s, %s, %s offen sc1" % (v(KB[0], 4), v(vL16), sWS, T[2]))
    e("s_mov_b64 exec, %s" % sMV)
    e("buffer_load_dwordx4 %s, %s, %s, %s offen offset:1024 sc1" % (v(VB[0], 4), v(vL16), sWS, T[2]))
    e("buffer_load_dwordx4 %s, %s, %s, %s offen offset:1280 sc1" % (v(VB[0] + 4, 4), v(vL16), sWS, T[2]))
    e("s_mov_b64 exec, -1")
    e("s_waitcnt vmcnt(0)")
    mfma(S[0], KB[0], Q, CN)
    e("s_nop 15")
    for i in range(16):
        e("v_exp_f32 %s, %s" % (v(S[0] + i), v(S[0] + i)))
    e("s_nop 1")
    smf(VB[0], S[0])
    smf(VB[0] + 4, S[0] + 8)
    e("s_nop 15")
    e("s_add_u32 %s, %s, 2048" % (T[2], T[2]))
    e("s_add_u32 %s, %s, 1" % (sIT, sIT))
    e("s_cmp_lt_u32 %s, 64" % sIT)
    e("s_cbranch_scc1 %s" % l2)
    e("s_branch %s" % fin)
    TAIL.extend(L)
    L[:] = keep
    stamp()


def ffn1_setup():
    e("v_and_b32 %s, 15, v0" % v(vPO))
    e("v_lshlrev_b32 %s, 3, %s" % (v(vPO), v(vPO)))
    slot(T[0], FO, [(sTBW, 16)])
    addr(T[1], sLB, X1F, [(sTBW, XSTR)])
    addr(T[2], sLB, ST1, [(sTBW, 4096)])
    e("v_add_u32 %s, %d, %s" % (v(vCA), CONST, v(vH16)))
    tr_rows(vW2, 192)
    e("v_add_u32 %s, 0x10000, %s" % (v(vW0), v(vW2)))
    e("v_add_u32 %s, %d, %s" % (v(vW1), 21 * 3072, v(vW0)))


def n512_setup(wo):
    J = 16 if wo else 39
    AK, AS = vACC, vACC + 16
    if not wo:
        addr(T[0], None, CONST + 384, [(sKH, 512)])
        e("v_add_u32 %s, %s, %s" % (v(vPO), T[0], v(vH16)))
        for i in range(4):
            e("ds_read_b128 %s, %s offset:%d" % (v(AS + 4 * i, 4), v(vPO), 32 * i))
    unpack(AK, vRES, 8)
    tr_rows(vW0, 128)
    e("v_bfe_u32 %s, v0, 3, 1" % v(vPD))
    e("v_xor_b32 %s, %s, %s" % (v(vPD), sKH, v(vPD)))
    e("v_lshl_or_b32 %s, %s, 6, %s" % (v(vW0), v(vPD), v(vW0)))
    e("s_mul_i32 %s, %s, %d" % (T[0], sKH, J * 2048))
    e("v_add_u32 %s, %s, %s" % (v(vW0), T[0], v(vW0)))
    e("v_xor_b32 %s, 64, %s" % (v(vW1), v(vW0)))
    if not wo:
        e("v_add_u32 %s, 0x10000, %s" % (v(vW2), v(vW0)))
        e("v_add_u32 %s, 0x10000, %s" % (v(vW3), v(vW1)))
    if wo:
        e("v_and_b32 %s, 15, v0" % v(vPO))
        slot(T[0], FA, [(sTBN, 32), (sKH, 16)])
        addr(T[1], sLB, OF, [(sTBN, XSTR), (sKH, 16384)])
    else:
        e("v_and_b32 %s, 7, v0" % v(vPO))
        slot(T[0], FH, [(sTBN, 16), (sKH, 7)])
        addr(T[1], sLB, HF, [(sTBN, HSTR), (sKH, 43 * 1024)])
    e("v_lshlrev_b32 %s, 3, %s" % (v(vPO), v(vPO)))
    if not wo:
        e("s_waitcnt lgkmcnt(0)")
        for p in range(8):
            e("v_pk_add_f32 %s, %s, %s" % (v(AK + 2 * p, 2), v(AK + 2 * p, 2), v(AS + 2 * p, 2)))


def n512(kind):
    wo = kind == "wo"
    ph = "o" if wo else "g"
    cm("================ %s" % ("output projection + residual" if wo else "MLP down projection + residual"))
    NS, J = (16, 16) if wo else (43, 39)
    ND = OPT("nd", 10 if wo else 13)
    AK, AS = vACC, vACC + 16
    hl, done = newlab("n_h"), newlab("n_done")
    e("s_cmp_ge_u32 %s, 4" % sW)
    e("s_cbranch_scc1 %s" % hl)
    if not wo:
        e("s_barrier")

    def rd(j, i):
        jj = j % J
        base, off = ((vW0, vW1)[i], jj * 2048) if jj < 32 else ((vW2, vW3)[i], (jj - 32) * 2048)
        d = vWB + (j % 3) * 8 + 4 * i
        e("ds_read_b64_tr_b16 %s, %s offset:%d" % (v(d, 2), v(base), off))
        e("ds_read_b64_tr_b16 %s, %s offset:%d" % (v(d + 2, 2), v(base), off + 1024))
    for j in range(2):
        for i in range(2):
            rd(j, i)
    poll(T[0])
    stamp()
    areg = lambda j: vA + 4 * (j % 32)
    load_frags(T[1], 0, ND, areg)
    fine(ph)

    def late_addresses():
        e("s_and_b32 %s, %s, 1" % (T[2], sW))
        if wo:
            addr(T[0], None, 0, [(T[2], 4096), (sKH, 32768)])
            e("s_xor_b32 %s, %s, 32768" % (T[3], T[0]))
            publish_addr(X1F, ST1, 0, FO)
        else:
            addr(T[0], None, 98304, [(T[2], 4096), (sKH, 8192)])
            e("s_xor_b32 %s, %s, 8192" % (T[3], T[0]))
            publish_addr(XF, ST, LFL_L * 8, FX)
        e("v_add_u32 %s, %s, %s" % (v(vPO), T[0], v(vL16)))
        e("v_add_u32 %s, %s, %s" % (v(vPD), T[3], v(vL16)))
    sh = capture(late_addresses)
    for j in range(NS):
        issued = min(NS, ND + j)
        if not wo and j == J - 2:
            e("s_barrier")
        if j < NS - 1:
            last2 = j == NS - 2
            e("s_waitcnt vmcnt(%d) lgkmcnt(%d)" % (0 if last2 else issued - j - 1, 0 if last2 else 4))
        if j in ((0, 4, 8, 15) if wo else (0, 11, 22, 42)):
            fine(ph)
        seq = [(j, 0), (j, 1)] if j < NS - 2 else [(j, 1), (j + 1, 1)] if j == NS - 2 else [(j - 1, 0), (j, 0)]
        for m, (jj, i) in enumerate(seq):
            acc = AK + 16 * i
            mfma(acc, vWB + (jj % 3) * 8 + 4 * i, areg(jj), "0" if (jj == 0 and i == 1) else acc)
            if j + 2 < NS:
                rd(j + 2, i)
            if m == 0 and ND + j < NS:
                load_frags(T[1], ND + j, 1, areg, False)
            if j >= 2:
                g = (j - 2) * 2 + m
                for x in sh[2 * g:2 * g + 2]:
                    e(x)
        if j == (8 if wo else NS - J - 1):
            e("s_barrier")
    assert len(sh) <= 4 * (NS - 2)
    e("s_nop 9")
    for i in range(4):
        e("ds_write_b128 %s, %s offset:%d" % (v(vPO), v(AS + 4 * i, 4), 1024 * i))
    e("s_waitcnt lgkmcnt(0)")
    e("s_barrier")
    stamp()
    for i in range(4):
        e("ds_read_b128 %s, %s offset:%d" % (v(AS + 4 * i, 4), v(vPD), 1024 * i))
    for i in range(4):
        e("s_waitcnt lgkmcnt(%d)" % (3 - i))
        for p in (2 * i, 2 * i + 1):
            e("v_pk_add_f32 %s, %s, %s" % (v(AK + 2 * p, 2), v(AK + 2 * p, 2), v(AS + 2 * p, 2)))
    for p in range(8):
        e("v_cvt_pk_bf16_f32 %s, %s, %s" % (v(vRES + p), v(AK + 2 * p), v(AK + 2 * p + 1)))
    if wo:
        publish_x(AK, 20, ffn1_setup)
    else:
        last = newlab("last")
        e("s_cmp_lg_u32 %s, 0" % sL)
        e("s_cbranch_scc1 %s" % last)
        publish_x(AK, 20, lambda: qkv_setup(True))
        e("s_branch %s" % done)
        lab(last)
        srd(sTMP, 28, 2048 * 1024)
        e("v_and_b32 v16, 31, v0")
        e("v_lshlrev_b32 v16, 10, v16")
        e("v_add_u32 v16, v16, %s" % v(vH16))
        addr(T[0], None, 0, [(sXCD, 262144), (sTBN, 32768), (sNT, 64)])
        for g in range(2):
            e("v_permlane32_swap_b32 %s, %s" % (v(vRES + 4 * g), v(vRES + 4 * g + 2)))
            e("v_permlane32_swap_b32 %s, %s" % (v(vRES + 4 * g + 1), v(vRES + 4 * g + 3)))
        for g in range(2):
            e("buffer_store_dwordx4 %s, v16, %s, %s offen offset:%d" % (v(vRES + 4 * g, 4), sTMP, T[0], 32 * g))
    e("s_branch %s" % done)
    lab(hl)
    if wo:
        voff_192(44)
        e("s_lshl_b32 %s, %s, 2" % (T[3], sHW))
        e("s_min_u32 %s, %s, 10" % (T[3], T[3]))
        addr(T[0], None, 8 * 16 * 2752, [(T[3], 16 * 2752), (sC, 192)])
        addr(T[1], None, 65536 + 8 * 3072, [(T[3], 3072)])
        e("s_mov_b32 %s, %s" % (T[3], T[0]))
        e("s_mov_b32 %s, %s" % (T[4], T[1]))
        w0, w1, w2 = newlab("wcs"), newlab("wcs"), newlab("wcs")
        e("s_cmp_lg_u32 %s, 0" % sL)
        e("s_cbranch_scc1 %s" % w0)
        tr_rows(43, 192)
        colsum_begin()
        addr(T[0], None, 65536, [(sHW, 2 * 3072)])
        colsum_w1()
        addr(T[0], None, 65536 + 22 * 3072, [(sHW, 2 * 3072)])
        colsum_w1()
        lab(w0)
        e("s_mov_b32 %s, %s" % (T[0], T[3]))
        e("s_mov_b32 %s, %s" % (T[1], T[4]))
        e("s_barrier")
        fine("v")
        dma_w1(3)
        e("s_barrier")
        fine("v")
        dma_w1(1)
        e("s_cmp_lg_u32 %s, 3" % sHW)
        e("s_cbranch_scc1 %s" % w1)
        addr(T[0], None, 30 * 16 * 2752, [(sC, 192)])
        e("s_mov_b32 %s, %d" % (T[1], 58 * 1024))
        dma_w1(2)
        lab(w1)
        e("s_cmp_lg_u32 %s, 0" % sL)
        e("s_cbranch_scc1 %s" % done)
        cm("own late k-steps: 8-11 | 12-15 | 16-19 | 20-21 and 30-31")
        e("s_and_b32 %s, %s, 1" % (T[4], sHW))
        addr(T[0], None, 65536 + 8 * 3072, [(sHW, 4 * 3072)])
        e("s_add_u32 %s, %s, %d" % (T[3], T[0], 2 * 3072))
        e("s_cmp_eq_u32 %s, 3" % sHW)
        e("s_cselect_b32 %s, %d, %s" % (T[3], 58 * 1024, T[3]))
        e("s_waitcnt vmcnt(0)")
        colsum_w1()
        e("s_mov_b32 %s, %s" % (T[0], T[3]))
        colsum_w1()
        colsum_partial()
        e("v_lshlrev_b32 v47, 16, v224")
        addr(T[0], None, B1_L, [(sHW, 128)])
        e("v_add_u32 v42, %s, v41" % T[0])
        e("ds_write_b32 v42, v47")
        e("v_lshlrev_b32 v49, 16, v225")
        addr(T[0], None, CONST + 384, [(T[4], 512)])
        e("v_add_u32 v42, %s, v41" % T[0])
        e("ds_write_b32 v42, v49")
    else:
        e("s_waitcnt vmcnt(0)")
        fine("w")
        e("s_barrier")
        fine("w")
        e("s_lshr_b32 %s, %s, 1" % (T[3], sHW))
        e("s_and_b32 %s, %s, 1" % (T[4], sHW))
        addr(T[0], None, 78 * 8192, [(T[3], 86 * 8192), (T[4], 4 * 8192), (sNB, 128)])
        addr(T[1], None, 0, [(T[3], 78 * 1024), (T[4], 4096)])
        e("s_barrier")
        for k in range(4):
            e("s_add_u32 m0, %s, %d" % (T[1], 1024 * k))
            e("s_nop 0")
            dma1(40, T[0], 4)
            e("s_add_u32 %s, %s, 8192" % (T[0], T[0]))
        e("s_waitcnt vmcnt(0)")
        e("s_barrier")
        stash_addr()
        e("s_barrier")
        e("s_cmp_lg_u32 %s, 0" % sL)
        e("s_cbranch_scc1 %s" % done)
        for k in range(24):
            e("ds_write_b128 v42, %s offset:%d" % (v(vSTASH + 4 * k, 4), 1024 * k))
    lab(done)
    stamp()


def ffn1():
    cm("================ MLP up projection + GELU")
    hl, done = newlab("f1_h"), newlab("f1_done")
    e("s_cmp_ge_u32 %s, 4" % sW)
    e("s_cbranch_scc1 %s" % hl)
    idle = newlab("f1_idle")
    e("s_cmp_eq_u32 %s, 15" % sC)
    e("s_cbranch_scc1 %s" % idle)
    setup = newlab("f1_setup")
    TAIL.extend([idle + ":"] + ["    s_barrier"] * 4 + ["    s_branch " + setup])

    lds = Lds()

    def rd(ks, i):
        d = vWB + (ks % 3) * 12 + 4 * i
        base, off = (vW0, ks * 3072) if ks < 21 else (vW1, (ks - 21) * 3072) if ks < 30 else (vW2, 58 * 1024 + (ks - 30) * 3072)
        lds.op(("w", ks), "ds_read_b64_tr_b16 %s, %s offset:%d" % (v(d, 2), v(base), off + 64 * i))
        lds.op(("w", ks), "ds_read_b64_tr_b16 %s, %s offset:%d" % (v(d + 2, 2), v(base), off + 64 * i + 1536))

    def wait(name):
        n = lds.need(name)
        if n is not None:
            e("s_waitcnt lgkmcnt(%d)" % n)
    for ks in range(2):
        for i in range(3):
            rd(ks, i)
    poll(T[0])
    stamp()

    def item(n):
        if n < 32:
            load_frags(T[1], n, 1, lambda j: vA + 4 * j, n % 4 == 0)
        else:
            e("buffer_load_dwordx4 %s, %s, %s, %s offen offset:%d sc1" % (v(vSTS + 4 * (n - 32), 4), v(vL16), sWS, T[2], 1024 * (n - 32)))
    sched = [[ks + DEPTH] if ks + DEPTH < 32 else [] for ks in range(32)]
    for k in range(4):
        sched[1 + k].append(32 + k)
    order = list(range(DEPTH))
    for n in range(DEPTH):
        item(n)
    fine("f")
    c0 = -2.0 * 1.4426950408889634 * 0.7978845608028654
    GC = vSTS + 4

    def early():
        addr(T[4], sLB, HF, [(sTBW, HSTR), (sC, 6144)])
        e("s_add_u32 %s, %s, 4096" % (T[5], T[4]))
        slot(T[6], FH, [(sTBW, 16), (sC, 1)])
    S0 = OPT("s0", 11)
    mid = stats_code(True) + ["v_mul_f32 %s, %s, %s" % (v(vMU), v(vMU), v(vR)), "v_mov_b32 %s, %s" % (v(GC), f32(c0)),
                              "v_mov_b32 %s, %s" % (v(GC + 1), f32(c0 * 0.044715)), "v_mov_b32 %s, 1.0" % v(GC + 2)]
    sh = [(5, lambda x=x: e(x)) for x in capture(early)] + [(S0, lambda x=x: e(x)) for x in mid]
    cm("bias' = b1 - mean*rstd*colsum is formed under the last MFMAs, in dead activation registers")
    rdc, fmc = [], []
    for t in range(3):
        rdc.append([(max(12, 8 * t + 8), lambda t=t, k=k: lds.op(("c", t), "ds_read_b128 %s, %s offset:%d" % (
            v(16 + 32 * t + 4 * k, 4), v(vCA), 512 + 512 * (k // 4) + t * 128 + 32 * (k % 4)))) for k in range(8)])
        fmc.append([(0, lambda t=t: wait(("c", t)))] + [(0, lambda t=t, r=r: e("v_fma_f32 %s, -%s, %s, %s" % (
            v(32 + 32 * t + r), v(vMU), v(16 + 32 * t + r), v(32 + 32 * t + r)))) for r in range(16)])
    mix = lambda a, b: [x for k in range(max(len(a), len(b))) for x in a[2 * k:2 * k + 2] + b[k:k + 1]]
    sh += rdc[0] + mix(fmc[0], rdc[1]) + fmc[1][:9] + mix(fmc[1][9:], rdc[2]) + fmc[2]
    pos = 0
    for ks in range(32):
        if ks in (6, 12, 22):
            e("s_barrier")
        newest = max(order.index(n) for n in ([ks, 35] if ks >= S0 else [ks]))
        lg = lds.need(("w", ks))
        e("s_waitcnt vmcnt(%d)%s" % (len(order) - 1 - newest, "" if lg is None else " lgkmcnt(%d)" % lg))
        if ks in FINEKS:
            fine("f")
        for i in range(3):
            mfma(vACC + 16 * i, vWB + (ks % 3) * 12 + 4 * i, vA + 4 * ks, "0" if ks == 0 else vACC + 16 * i)
            if ks + 2 < 32:
                rd(ks + 2, i)
            if i < len(sched[ks]):
                item(sched[ks][i])
                order.append(sched[ks][i])
            for _ in range(OPT("fp", 2) if ks < 30 else 5):
                if pos < len(sh) and ks >= sh[pos][0]:
                    sh[pos][1]()
                    pos += 1
    for x in sh[pos:]:
        x[1]()
    stamp()
    e("s_nop %d" % max(0, 9 - len(sh[pos:])))
    Z, P = 120, vWB
    for t in range(3):
        acc, b1 = vACC + 16 * t, 32 + 32 * t
        for p in range(8):
            e("v_pk_fma_f32 %s, %s, %s, %s op_sel_hi:[1,0,1]" %
              (v(acc + 2 * p, 2), v(acc + 2 * p, 2), v(vR, 2), v(b1 + 2 * p, 2)))
        for p in range(8):
            e("v_pk_mul_f32 %s, %s, %s" % (v(Z + 2 * p, 2), v(acc + 2 * p, 2), v(acc + 2 * p, 2)))
        for p in range(8):
            e("v_pk_fma_f32 %s, %s, %s, %s op_sel:[0,1,0] op_sel_hi:[1,1,0]" %
              (v(Z + 2 * p, 2), v(Z + 2 * p, 2), v(GC, 2), v(GC, 2)))
        for p in range(8):
            e("v_pk_mul_f32 %s, %s, %s" % (v(Z + 2 * p, 2), v(Z + 2 * p, 2), v(acc + 2 * p, 2)))
        for i in range(16):
            e("v_exp_f32 %s, %s" % (v(Z + i), v(Z + i)))
        for p in range(8):
            e("v_pk_add_f32 %s, %s, %s op_sel_hi:[1,0]" % (v(Z + 2 * p, 2), v(Z + 2 * p, 2), v(GC + 2, 2)))
        for i in range(16):
            e("v_rcp_f32 %s, %s" % (v(Z + i), v(Z + i)))
        for p in range(8):
            e("v_pk_mul_f32 %s, %s, %s" % (v(acc + 2 * p, 2), v(acc + 2 * p, 2), v(Z + 2 * p, 2)))
        for p in range(8):
            e("v_cvt_pk_bf16_f32 %s, %s, %s" % (v(P + 8 * t + p), v(acc + 2 * p), v(acc + 2 * p + 1)))
        lstores(["buffer_store_dwordx4 %s, %s, %s, %s offen offset:%d" %
                 (v(P + 8 * t + 4 * hh, 4), v(vL16), sWS, T[4 + (2 * t + hh) // 4], ((2 * t + hh) % 4) * 1024) for hh in range(2)])
        if t == 0:
            e("s_barrier")
        if t != 1:
            fine("f")
    lab(setup)
    n512_setup(False)
    e("s_cmp_eq_u32 %s, 15" % sC)
    e("s_cbranch_scc1 %s" % done)
    flag(T[6], 0, local=True)
    e("s_branch %s" % done)
    lab(hl)
    h1 = newlab("fh1")
    voff_128(40)
    srd(sTMP, 24, 1376 * 1024)
    fine("v")
    e("s_waitcnt vmcnt(0) lgkmcnt(0)")
    fine("v")
    e("s_barrier")
    fine("v")
    e("s_cmp_lg_u32 %s, 0" % sL)
    e("s_cbranch_scc1 %s" % h1)
    colsum_combine(CS1_L)
    e("s_waitcnt lgkmcnt(0)")
    lab(h1)
    e("s_barrier")
    E0 = OPT("e0", 2)
    if E0:
        dma_w2(0, 0, E0, OPT("e0p", 1) or -1)
    e("s_barrier")
    fine("w")
    dma_w2(86, 78 * 1024, 7, None)
    dma_w2(4 * E0, 4 * E0 * 1024, 14 - E0, None)
    dma_w2(86 + 28, (78 + 28) * 1024, 6, None)
    fine("w")
    e("s_barrier")
    fine("w")
    dma_w2(54, 54 * 1024, 6)
    dma_w2(86 + 50, (78 + 50) * 1024, 7)
    fine("w")
    lab(done)
    stamp()


def epilogue():
    e("s_add_u32 %s, %s, 1" % (sL, sL))
    e("s_add_u32 %s, %s, %d" % (sFB, sFB, LFL_L * 8))
    e("s_cmp_lt_u32 %s, 2" % sL)
    e("s_cbranch_scc1 L_layer")
    if PROFILE:
        e("s_memrealtime s[22:23]")
        e("s_waitcnt lgkmcnt(0)")
        stamp("s23")
        e("s_lshl_b32 %s, s2, 3" % T[0])
        e("s_add_u32 %s, %s, %s" % (T[0], T[0], sW))
        e("s_lshl_b32 %s, %s, 8" % (T[0], T[0]))
        e("s_add_u32 %s, %s, 0x%x" % (T[0], T[0], TSB))
        e("s_mov_b64 exec, 1")
        for i, r in enumerate([68, 18, 19] + list(range(STAMP0, STAMP0 + 30)) + [22, 23, 0, 1]):
            e("v_mov_b32 v16, s%d" % r)
            e("buffer_store_dword v16, off, %s, %s offset:%d" % (sWS, T[0], 4 * i))
        e("s_mov_b64 exec, 0xff")
        e("v_lshlrev_b32 v16, 2, v0")
        e("buffer_store_dword v5, v16, %s, %s offen offset:148" % (sWS, T[0]))
        e("s_mov_b64 exec, -1")
    if "--dbg" in sys.argv:
        sk = newlab("dbg")
        e("s_or_b32 %s, s2, %s" % (T[0], sW))
        e("s_cmp_lg_u32 %s, 0" % T[0])
        e("s_cbranch_scc1 %s" % sk)
        srd(sTMP, 30, 256)
        e("s_mov_b64 exec, 1")
        for i, r in enumerate([19, 72, 73, 74, 75, 76, 77, 80, 83, 86, 89, 90, 91, 95, 98, 101]):
            e("s_sub_u32 %s, s%d, s18" % (T[0], r))
            e("v_mov_b32 v16, %s" % T[0])
            e("buffer_store_dword v16, off, %s, 0 offset:%d" % (sTMP, 4 * i))
        e("s_mov_b64 exec, -1")
        lab(sk)
    if OPT("hold", 0):
        hl = newlab("hold")
        lab(hl)
        e("s_memrealtime s[70:71]")
        e("s_waitcnt lgkmcnt(0)")
        e("s_sub_u32 s70, s70, s68")
        e("s_cmp_lt_u32 s70, %d" % OPT("hold", 0))
        e("s_cbranch_scc1 %s" % hl)
    cm("advance the hand-off tag for the next launch")
    e("s_or_b32 %s, s2, %s" % (T[0], sW))
    e("s_cmp_lg_u32 %s, 0" % T[0])
    e("s_cbranch_scc1 L_end")
    e("s_mov_b64 exec, 1")
    e("buffer_store_dword %s, off, %s, 0" % (v(vFV), sWS))
    lab("L_end")
    e("s_endpgm")
    L.extend(TAIL)


HEADER = open(f"cdna_kernels/{NAME}.s.ref").read().split("; Override launch")[0]


OVERVIEW = """;
; Generated by gen/gen.py (hand-written generator). One persistent launch, one 8-wave workgroup per CU.
; Hand-offs: payload stores, vmcnt wait, then an 8-byte flag {tag, ~tag}; tag = ws[0] + 16 differs per launch.
;   Every workgroup reports the die it runs on. If a die group shares one die its hand-offs use plain stores
"""


def main():
    prologue()
    p0()
    lab("L_layer")
    qkv()
    attention()
    n512("wo")
    ffn1()
    n512("f2")
    epilogue()
    k = NAME + "_kernel"
    out = HEADER
    out += "; @launch grid=(256,1,1) block=(512,1,1) lds=%d\n" % LDS_BYTES
    out += OVERVIEW
    out += '.amdgcn_target "amdgcn-amd-amdhsa--gfx950"\n.text\n.globl %s\n.p2align 8\n.type %s,@function\n%s:\n' % (k, k, k)
    out += "\n".join(L) + "\n"
    out += """.section .rodata,"a"
.p2align 6
.amdhsa_kernel %s
  .amdhsa_next_free_vgpr 256
  .amdhsa_next_free_sgpr 102
  .amdhsa_accum_offset 256
  .amdhsa_group_segment_fixed_size 0
  .amdhsa_kernarg_size 88
  .amdhsa_user_sgpr_count 2
  .amdhsa_user_sgpr_kernarg_segment_ptr 1
  .amdhsa_system_sgpr_workgroup_id_x 1
.end_amdhsa_kernel
""" % k
    open(OUT, "w").write(out)
    import subprocess
    r = subprocess.run([sys.executable, "hazard.py", OUT], capture_output=True, text=True).stdout
    if not r.strip().endswith("violations 0"):
        print(r)


main()
```
